```python
import torch

def _softmax(x, axis=-1):
    return torch.softmax(x, dim=axis)
def _gelu(x):
    return torch.nn.functional.gelu(x, approximate="tanh")
def _silu(x):
    return torch.nn.functional.silu(x)
def _sigmoid(x):
    return torch.sigmoid(x)
def _layernorm(x, axis=-1, eps=1e-5):
    m = x.mean(dim=axis, keepdim=True)
    v = x.var(dim=axis, keepdim=True, unbiased=False)
    return (x - m) / torch.sqrt(v + eps)
def _scatter_add(tgt, idx, src, axis=0):
    return tgt.clone().index_add_(axis, idx, src)
def _segment_sum(src, seg, n):
    out = torch.zeros((n,) + src.shape[1:], dtype=src.dtype)
    return out.index_add_(0, seg, src)
def _pad(x, pw):
    flat = tuple(v for pair in reversed(pw) for v in pair)
    return torch.nn.functional.pad(x, flat)

kernel_name = 'sequential_preLN__sliding_block__dense_activation_silu__prompt'

def setup_inputs():

    _w = (lambda a: (lambda t: t.to(torch.bfloat16) if t.is_floating_point() else t)(torch.as_tensor(a)))
    def _A_setup():
        B, S, D = 1, 2048, 1024
        return {
            "x": _w((lambda *s: torch.randn(*s, dtype=torch.bfloat16) * 0.05)(B, S, D)),
            "wqkv": _w((lambda *s: torch.randn(*s, dtype=torch.bfloat16) * 0.05)(D, 3 * D)),
            "wo": _w((lambda *s: torch.randn(*s, dtype=torch.bfloat16) * 0.05)(D, D)),
        }
    _A_in = _A_setup()

    def _B_setup():
        B, S, D, F = 1, 2048, 1024, 3584
        return {
            "x": _w((lambda *s: torch.randn(*s, dtype=torch.bfloat16) * 0.05)(B, S, D)),
            "w1": _w((lambda *s: torch.randn(*s, dtype=torch.bfloat16) * 3.2)(D, F) * (D ** -0.5)),
            "w2": _w((lambda *s: torch.randn(*s, dtype=torch.bfloat16) * 0.4)(F, D) * (F ** -0.5)),
        }
    _B_in = _B_setup()

    return {
        "A_x": _A_in["x"],
        "A_wqkv": _A_in["wqkv"],
        "A_wo": _A_in["wo"],
        "B_x": _B_in["x"],
        "B_w1": _B_in["w1"],
        "B_w2": _B_in["w2"],
    }

def reference(A_x, A_wqkv, A_wo, B_x, B_w1, B_w2):
    def _A_ref(x, wqkv, wo):
        B, S, D = x.shape
        H = 32; Dh = D // H; W = 256
        qkv = (lambda x, *d: x.permute(*d))((x @ wqkv).reshape(B, S, 3, H, Dh), 2, 0, 3, 1, 4)
        q, k, v = qkv[0], qkv[1], qkv[2]
        scores = torch.einsum("bhqd,bhkd->bhqk", q, k) * (Dh ** -0.5)
        idx = torch.arange(S)
        mask = (idx[:, None] - idx[None, :] >= 0) & (idx[:, None] - idx[None, :] < W)
        scores = torch.where(mask[None, None], scores, -1e9)
        p = _softmax(scores, axis=-1)
        o = torch.einsum("bhqk,bhkd->bhqd", p, v)
        return (lambda x, *d: x.permute(*d))(o, 0, 2, 1, 3).reshape(B, S, D) @ wo

    def _B_ref(x, w1, w2):
        h = torch.einsum("bsd,df->bsf", x, w1)
        h = _silu(h)
        out = torch.einsum("bsf,fd->bsd", h, w2)
        return out

    x = A_x
    h = x + _A_ref(_layernorm(x, axis=-1), A_wqkv, A_wo)
    h2 = h + _B_ref(_layernorm(h, axis=-1), B_w1, B_w2)
    return h2
```

```python
class Asm:
    def __init__(self):
        self.lines = []
        self._lab = 0
    def __call__(self, s):
        for ln in s.strip("\n").split("\n"):
            ln = ln.strip()
            if not ln:
                continue
            if ln.endswith(":") or ln.startswith("."):
                self.lines.append(ln)
            else:
                self.lines.append("    " + ln)
    def label(self, base="L"):
        self._lab += 1
        return f"{base}_{self._lab}"
    def text(self):
        return "\n".join(self.lines) + "\n"

def vr(b, n=1):
    return f"v{b}" if n == 1 else f"v[{b}:{b+n-1}]"
def sr(b, n=1):
    return f"s{b}" if n == 1 else f"s[{b}:{b+n-1}]"

def kernel_begin(a, name):
    a(f".globl {name}")
    a(".p2align 8")
    a(f".type {name},@function")
    a(f"{name}:")

def kernel_desc(name, vgpr, sgpr=96, accum=None):
    if accum is None:
        accum = (vgpr + 3) // 4 * 4
    accum = min(accum, 256)
    return f""".section .rodata,"a"
.p2align 6
.amdhsa_kernel {name}
  .amdhsa_next_free_vgpr {vgpr}
  .amdhsa_next_free_sgpr {sgpr}
  .amdhsa_accum_offset {accum}
  .amdhsa_group_segment_fixed_size 0
  .amdhsa_kernarg_size 72
  .amdhsa_user_sgpr_count 2
  .amdhsa_user_sgpr_kernarg_segment_ptr 1
  .amdhsa_system_sgpr_workgroup_id_x 1
.end_amdhsa_kernel
.text
"""

def interleave(main, fill, start=0, every=1, per=1):
    out = []
    fi = 0
    for i, m in enumerate(main):
        out.append(m)
        if i >= start and (i - start) % every == 0:
            for _ in range(per):
                if fi < len(fill):
                    out.append(fill[fi]); fi += 1
    out.extend(fill[fi:])
    return out
```

```python
import re

TRANS = ("v_exp_f32", "v_log_f32", "v_rcp_f32", "v_rsq_f32", "v_sqrt_f32", "v_sin_f32", "v_cos_f32", "v_rcp_iflag_f32")

def regs_of(tok):
    tok = tok.strip()
    tok = re.sub(r"^-|^abs\(|\)$|^\|", "", tok).strip("|")
    m = re.fullmatch(r"([vsa])(\d+)", tok)
    if m: return {(m.group(1), int(m.group(2)))}
    m = re.fullmatch(r"([vsa])\[(\d+):(\d+)\]", tok)
    if m: return {(m.group(1), i) for i in range(int(m.group(2)), int(m.group(3)) + 1)}
    if tok in ("vcc", "vcc_lo", "vcc_hi"): return {("vcc", 0)}
    if tok == "m0": return {("m0", 0)}
    if tok in ("exec", "exec_lo", "exec_hi"): return {("exec", 0)}
    return set()

class Ins:
    def __init__(self, text):
        self.text = text
        t = text.split(";")[0].strip()
        self.op = t.split()[0]
        rest = t[len(self.op):].strip()
        ops = []; cur = ""; depth = 0
        for ch in rest:
            if ch in "[(": depth += 1
            if ch in "])": depth -= 1
            if ch == "," and depth == 0:
                ops.append(cur.strip()); cur = ""
            else: cur += ch
        if cur.strip(): ops.append(cur.strip())
        self.mods = ""
        if ops:
            parts = ops[-1].split(None, 1)
            if len(parts) == 2 and not ops[-1].startswith("abs"):
                ops[-1] = parts[0]; self.mods = parts[1]
        self.ops = ops
        op = self.op
        self.w = set(); self.r = set()
        self.kind = "other"; self.passes = 0
        self.srcC = set(); self.srcAB = set()
        self.lds_dma = False; self.wide_store = set()
        R = [regs_of(o) for o in ops]
        if op.startswith("v_mfma"):
            self.kind = "mfma"
            self.passes = 8 if "32x32x16" in op else 4 if "16x16x32" in op else 16
            self.w = R[0]; self.srcAB = R[1] | R[2]; self.srcC = R[3]; self.r = self.srcAB | self.srcC
        elif op.startswith("v_"):
            self.kind = "valu"
            base = re.sub(r"_(e32|e64|dpp|sdwa)$", "", op)
            self.base = base
            if base.startswith("v_cmp"):
                self.w = R[0]; self.r = set().union(*R[1:])
            elif base in ("v_readfirstlane_b32", "v_readlane_b32"):
                self.w = R[0]; self.r = set().union(*R[1:])
            elif base.startswith("v_permlane"):
                self.w = R[0] | R[1]; self.r = R[0] | R[1]
            elif base in ("v_add_co_u32", "v_sub_co_u32", "v_addc_co_u32", "v_subb_co_u32"):
                self.w = R[0] | R[1]; self.r = set().union(*R[2:])
            else:
                self.w = R[0]; self.r = set().union(*R[1:]) if len(R) > 1 else set()
                if base in ("v_fmac_f32", "v_dot2c_f32_bf16", "v_pk_fmac_f16"): self.r |= R[0]
                if base == "v_cndmask_b32" and len(ops) == 3: self.r |= {("vcc", 0)}
                if "dpp" in op or "row_" in self.mods or "quad_perm" in self.mods:
                    self.dpp = True; self.r |= R[0]
            self.trans = base in TRANS
            self.dpp = ("dpp" in op) or ("row_" in self.mods) or ("quad_perm" in self.mods)
            self.perm = base.startswith("v_permlane")
            self.rfl = base in ("v_readfirstlane_b32", "v_readlane_b32")
        elif op.startswith("buffer_") or op.startswith("global_"):
            self.kind = "vmem"
            allr = set().union(*R) if R else set()
            islds = (" lds" in (" " + self.mods)) or "_lds_" in op
            if "store" in op or ("atomic" in op and "sc0" not in self.mods):
                self.r = allr
                if "x4" in op or "x3" in op:
                    self.wide_store = R[0] if op.startswith("buffer_") else R[1]
            elif islds:
                self.r = allr | {("m0", 0)}; self.lds_dma = True
            elif op in ("buffer_wbl2", "buffer_inv"):
                pass
            else:
                self.w = R[0]; self.r = set().union(*R[1:])
                if "atomic" in op: self.r |= R[0]
        elif op.startswith("ds_"):
            self.kind = "ds"
            if "write" in op or op.startswith("ds_add") and "rtn" not in op:
                self.r = set().union(*R)
            else:
                self.w = R[0]; self.r = set().union(*R[1:])
        elif op.startswith("s_"):
            self.kind = "salu"
            if op.startswith(("s_cmp", "s_cbranch", "s_branch", "s_waitcnt", "s_barrier", "s_nop", "s_endpgm", "s_setprio", "s_sleep", "s_bitcmp")):
                self.r = set().union(*R) if R else set()
            else:
                self.w = R[0] if R else set(); self.r = set().union(*R[1:]) if len(R) > 1 else set()
                if "saveexec" in op: self.w |= {("exec", 0)}
        self.states = 1
        if op == "s_nop": self.states = int(ops[0], 0) + 1

def isv(s): return {x for x in s if x[0] in ("v", "a")}
def iss(s): return {x for x in s if x[0] in ("s", "vcc")}

def need(p, c):
    n = 0
    if p.kind == "valu":
        pw_v = isv(p.w); pw_s = iss(p.w)
        if c.kind == "mfma" and pw_v & c.r: n = max(n, 2)
        if c.kind == "valu":
            if c.rfl and pw_v & c.r: n = max(n, 1)
            if (c.perm or c.dpp) and pw_v & c.r: n = max(n, 2)
            if p.trans and not c.trans and pw_v & c.r: n = max(n, 1)
            if pw_s & c.r: n = max(n, 4 if c.base in ("v_readlane_b32", "v_writelane_b32") else 2)
        if c.kind == "vmem" and pw_s & c.r: n = max(n, 5)
        if c.kind == "salu" and pw_s & c.r: n = max(n, 1)
    if p.kind == "mfma":
        big = {4: 8, 8: 12, 16: 20}[p.passes]
        if c.kind == "mfma":
            if p.w & c.srcAB: n = max(n, big)
            if p.w & c.srcC and not (p.w == c.srcC and p.passes == c.passes): n = max(n, {4: 6, 8: 10, 16: 18}[p.passes])
            if p.w & c.w and not (p.w & c.srcC): n = max(n, big)
        elif c.kind in ("valu", "vmem", "ds"):
            if p.w & (c.r | c.w): n = max(n, big)
            if c.kind == "valu" and p.srcC & c.w: n = max(n, {4: 3, 8: 7, 16: 15}[p.passes])
    if p.kind == "vmem" and p.wide_store:
        if p.wide_store & c.w: n = max(n, 2 if c.kind in ("valu", "mfma") else 1)
    if p.kind == "salu" and ("m0", 0) in p.w and c.lds_dma: n = max(n, 1)
    return n

MAXD = 21

def fix(lines):
    items = []
    for ln in lines:
        s = ln.split(";")[0].strip()
        if not s or s.startswith(".") :
            items.append(("x", ln))
        elif s.endswith(":"):
            items.append(("l", s[:-1], ln))
        else:
            items.append(("i", Ins(ln), ln))
    inserted = 0
    def maps():
        labels = {it[1]: k for k, it in enumerate(items) if it[0] == "l"}
        preds = {}
        for k, it in enumerate(items):
            if it[0] == "i" and it[1].op.startswith(("s_cbranch", "s_branch")):
                tgt = it[1].ops[0]
                if tgt in labels: preds.setdefault(labels[tgt], []).append(k)
        return preds
    def back(k, dist, c, seen, preds, first=True):
        worst = 0
        j = k - 1
        while j >= 0 and dist < MAXD:
            it = items[j]
            if it[0] == "l":
                for b in preds.get(j, []):
                    if (b, dist) not in seen:
                        seen.add((b, dist))
                        worst = max(worst, back(b + 1, dist, c, seen, preds, True))
            elif it[0] == "i":
                p = it[1]
                if p.op in ("s_branch", "s_endpgm") and not (first and j == k - 1 and p.op == "s_branch"):
                    break
                n = need(p, c)
                if n > dist: worst = max(worst, n - dist)
                dist += p.states
            j -= 1
        return worst
    for _ in range(4):
        changed = False
        preds = maps()
        k = 0
        while k < len(items):
            it = items[k]
            if it[0] == "i":
                short = back(k, 0, it[1], set(), preds, False)
                if short > 0:
                    nn = short
                    new = []
                    while nn > 0:
                        t = min(nn, 16)
                        txt = f"    s_nop {t-1}"
                        new.append(("i", Ins(txt), txt)); nn -= t
                    items[k:k] = new
                    inserted += short
                    changed = True
                    k += len(new)
                    preds = maps()
            k += 1
        if not changed: break
    return [it[-1] for it in items], inserted
```

```python
import sys
from asmlib import *
import hazard

MB = 1 << 20
XH_OFF = 0
Q_OFF = 4 * MB
K_OFF = 8 * MB
V_OFF = 12 * MB
O_OFF = 16 * MB
H_OFF = 20 * MB
H1_OFF = 24 * MB
ST_OFF = 38 * MB
CS_OFF = 39 * MB
ARG_X, ARG_WQKV, ARG_WO, ARG_W1, ARG_W2, ARG_OUT, ARG_DBG, ARG_WS = 0, 8, 16, 32, 40, 48, 56, 64
LOG2E = 1.4426950408889634

import struct
def f32(x):
    return "0x%08x" % struct.unpack("<I", struct.pack("<f", x))[0]

def srd(a, d, base_lo, base_hi, nrec):
    a(f"s_mov_b32 s{d}, {base_lo}")
    a(f"s_mov_b32 s{d+1}, {base_hi}")
    a(f"s_mov_b32 s{d+2}, {nrec}")
    a(f"s_mov_b32 s{d+3}, 0x20000")

def srd_off(a, d, ptr, off, nrec):
    a(f"s_add_u32 s{d}, s{ptr}, {off}")
    a(f"s_addc_u32 s{d+1}, s{ptr+1}, 0")
    a(f"s_mov_b32 s{d+2}, {nrec}")
    a(f"s_mov_b32 s{d+3}, 0x20000")

def allreduce_add(a, v, t):
    a(f"v_add_f32_dpp v{v}, v{v}, v{v} quad_perm:[1,0,3,2] row_mask:0xf bank_mask:0xf")
    a(f"v_add_f32_dpp v{v}, v{v}, v{v} quad_perm:[2,3,0,1] row_mask:0xf bank_mask:0xf")
    a(f"v_add_f32_dpp v{v}, v{v}, v{v} row_half_mirror row_mask:0xf bank_mask:0xf")
    a(f"v_add_f32_dpp v{v}, v{v}, v{v} row_mirror row_mask:0xf bank_mask:0xf")
    a(f"v_mov_b32 v{t}, v{v}")
    a(f"v_permlane16_swap_b32 v{v}, v{t}")
    a(f"v_add_f32 v{v}, v{v}, v{t}")
    a(f"v_mov_b32 v{t}, v{v}")
    a(f"v_permlane32_swap_b32 v{v}, v{t}")
    a(f"v_add_f32 v{v}, v{v}, v{t}")

def k_pre(a, name):
    kernel_begin(a, name)
    end = a.label("pre_end"); cs = a.label("pre_cs")
    a(f"""
    s_cmp_ge_u32 s2, 368
    s_cbranch_scc1 {end}
    s_load_dwordx2 s[4:5], s[0:1], {ARG_WS}
    s_load_dwordx2 s[6:7], s[0:1], {ARG_X}
    s_load_dwordx2 s[24:25], s[0:1], {ARG_W1}
    v_lshrrev_b32 v2, 6, v0
    v_and_b32 v1, 63, v0
    v_readfirstlane_b32 s3, v2
    s_waitcnt lgkmcnt(0)
    """)
    srd(a, 8, "s6", "s7", 4 * MB)
    srd_off(a, 12, 4, XH_OFF, 4 * MB)
    srd(a, 16, "s24", "s25", 1024 * 3584 * 2)
    srd_off(a, 20, 4, CS_OFF, 16 * 3584 * 4)
    a(f"""
    s_cmp_ge_u32 s2, 256
    s_cbranch_scc1 {cs}
    s_lshl_b32 s26, s2, 3
    s_lshl_b32 s27, s3, 1
    s_add_u32 s26, s26, s27
    s_lshl_b32 s27, s26, 11
    v_lshlrev_b32 v2, 4, v1
    buffer_load_dwordx4 v[4:7], v2, s[8:11], s27 offen
    buffer_load_dwordx4 v[8:11], v2, s[8:11], s27 offen offset:1024
    buffer_load_dwordx4 v[12:15], v2, s[8:11], s27 offen offset:2048
    buffer_load_dwordx4 v[16:19], v2, s[8:11], s27 offen offset:3072
    v_lshrrev_b32 v3, 2, v1
    v_lshlrev_b32 v3, 13, v3
    v_and_b32 v2, 3, v1
    v_lshlrev_b32 v2, 8, v2
    v_add_u32 v3, v3, v2
    s_lshr_b32 s28, s26, 7
    s_lshl_b32 s28, s28, 18
    s_bfe_u32 s29, s26, 0x30004
    s_lshl_b32 s29, s29, 10
    s_add_u32 s28, s28, s29
    s_and_b32 s29, s26, 15
    s_lshl_b32 s29, s29, 4
    s_add_u32 s28, s28, s29
    s_add_u32 s29, s28, {16*8192}
    s_mov_b32 s30, 0xffff0000
    s_waitcnt vmcnt(0)
    """)
    for t in range(2):
        for d in range(8):
            s = 4 + 8 * t + d; o = 24 + 16 * t + 2 * d
            a(f"v_lshlrev_b32 v{o}, 16, v{s}")
            a(f"v_and_b32 v{o+1}, s30, v{s}")
    for t in range(2):
        b = 24 + 16 * t; acc = 56 + t
        a(f"v_add_f32 v{acc}, v{b}, v{b+1}")
        for i in range(2, 16):
            a(f"v_add_f32 v{acc}, v{acc}, v{b+i}")
    for t in range(2):
        allreduce_add(a, 56 + t, 60)
        a(f"v_mul_f32 v{56+t}, {f32(1.0/1024)}, v{56+t}")
    for t in range(2):
        b = 24 + 16 * t; acc = 58 + t
        for i in range(16):
            a(f"v_sub_f32 v{b+i}, v{b+i}, v{56+t}")
        a(f"v_mul_f32 v{acc}, v{b}, v{b}")
        for i in range(1, 16):
            a(f"v_fmac_f32 v{acc}, v{b+i}, v{b+i}")
    for t in range(2):
        acc = 58 + t
        allreduce_add(a, acc, 60)
        a(f"v_mov_b32 v60, {f32(1e-5)}")
        a(f"v_fmac_f32 v60, {f32(1.0/1024)}, v{acc}")
        a(f"v_rsq_f32 v{acc}, v60")
    for t in range(2):
        b = 24 + 16 * t
        for i in range(16):
            a(f"v_mul_f32 v{b+i}, v{b+i}, v{58+t}")
        for d in range(8):
            a(f"v_cvt_pk_bf16_f32 v{4+8*t+d}, v{b+2*d}, v{b+2*d+1}")
    a(f"""
    buffer_store_dwordx4 v[4:7], v3, s[12:15], s28 offen
    buffer_store_dwordx4 v[8:11], v3, s[12:15], s29 offen
    buffer_store_dwordx4 v[12:15], v3, s[12:15], s28 offen offset:16
    buffer_store_dwordx4 v[16:19], v3, s[12:15], s29 offen offset:16
    s_endpgm
    {cs}:
    ; ---- colsum(w1): id = wg-256 in [0,112): cc = id % 7 (512 cols), kc = id / 7 (64 rows); wave: 16 rows
    s_sub_u32 s26, s2, 256
    s_mul_i32 s27, s26, 9363
    s_lshr_b32 s27, s27, 16
    s_mul_i32 s28, s27, 7
    s_sub_u32 s28, s26, s28         ; cc
    s_lshl_b32 s29, s27, 6
    s_lshl_b32 s30, s3, 4
    s_add_u32 s29, s29, s30         ; row0
    s_mul_i32 s29, s29, 7168
    s_lshl_b32 s30, s28, 10
    s_add_u32 s29, s29, s30
    v_lshlrev_b32 v2, 4, v1
    s_mov_b32 s31, 0xffff0000
    """)
    for r in range(16):
        a(f"buffer_load_dwordx4 v[{8+4*r}:{11+4*r}], v2, s[16:19], s29 offen")
        a("s_add_u32 s29, s29, 7168")
    for i in range(8):
        a(f"v_mov_b32 v{72+i}, 0")
    for r in range(16):
        a(f"s_waitcnt vmcnt({15-r})")
        for d in range(4):
            s = 8 + 4 * r + d
            a(f"v_lshlrev_b32 v80, 16, v{s}")
            a(f"v_and_b32 v81, s31, v{s}")
            a(f"v_add_f32 v{72+2*d}, v{72+2*d}, v80")
            a(f"v_add_f32 v{73+2*d}, v{73+2*d}, v81")
    a(f"""
    v_lshlrev_b32 v3, 5, v0
    ds_write_b128 v3, v[72:75]
    ds_write_b128 v3, v[76:79] offset:16
    s_waitcnt lgkmcnt(0)
    s_barrier
    v_lshlrev_b32 v3, 3, v0
    ds_read_b64 v[8:9], v3
    ds_read_b64 v[10:11], v3 offset:2048
    ds_read_b64 v[12:13], v3 offset:4096
    ds_read_b64 v[14:15], v3 offset:6144
    s_mul_i32 s29, s27, {3584*4}
    s_lshl_b32 s30, s28, 11
    s_add_u32 s29, s29, s30
    s_waitcnt lgkmcnt(0)
    v_add_f32 v8, v8, v10
    v_add_f32 v9, v9, v11
    v_add_f32 v12, v12, v14
    v_add_f32 v13, v13, v15
    v_add_f32 v8, v8, v12
    v_add_f32 v9, v9, v13
    buffer_store_dwordx2 v[8:9], v3, s[20:23], s29 offen
    {end}:
    s_endpgm
    """)
    return kernel_desc(name, 88)

class G:
    pass

def wgmap(a, RX, CX):
    CT = 16 // CX; RB = 16 // RX
    lg = lambda x: x.bit_length() - 1
    a(f"""
    s_and_b32 s30, s2, 7
    s_lshr_b32 s31, s2, 3
    s_lshr_b32 s24, s30, {lg(CX)}
    s_lshl_b32 s24, s24, {lg(RB)}
    s_and_b32 s25, s30, {CX-1}
    s_lshl_b32 s25, s25, {lg(CT)}
    s_lshr_b32 s30, s31, {lg(CT)}
    s_add_u32 s24, s24, s30
    s_and_b32 s30, s31, {CT-1}
    s_add_u32 s25, s25, s30
    """)

def k_gemm(a, name, kind, cfg):
    c = G(); c.__dict__.update(cfg)
    kernel_begin(a, name)
    K = c.K; n = K // 64; S = c.S; NT = c.NT
    BBYTES = c.BN * 128
    SZ = 16384 + BBYTES
    NBW = BBYTES // 4096
    L = 4 + NBW
    end = a.label("g_end"); prod = a.label("g_prod")
    a(f"""
    s_cmp_ge_u32 s2, 256
    s_cbranch_scc1 {end}
    s_load_dwordx2 s[4:5], s[0:1], {ARG_WS}
    s_load_dwordx2 s[6:7], s[0:1], {c.warg}
    """)
    if kind == "wo": a(f"s_load_dwordx2 s[32:33], s[0:1], {ARG_X}")
    if kind == "w2": a(f"s_load_dwordx2 s[32:33], s[0:1], {ARG_OUT}")
    a("""
    v_lshrrev_b32 v2, 6, v0
    v_and_b32 v1, 63, v0
    v_readfirstlane_b32 s3, v2
    """)
    wgmap(a, c.RX, c.CX)
    a(f"""
    s_waitcnt lgkmcnt(0)
    s_cmp_ge_u32 s3, 4
    s_cbranch_scc1 {prod}
    """)
    vA0, vB00, vB01, vB02, vA, vB0, vB1, vB2 = 2, 3, 4, 5, 6, 7, 8, 9
    ACC = 16
    FX = ACC + 16 * NT
    FSZ = 16 + 4 * NT
    FY = FX + FSZ
    VTOP = FY + FSZ
    acc = lambda mt, nt: ACC + (nt * 4 + mt) * 4
    a(f"""
    s_lshr_b32 s34, s3, 1            ; wr
    s_and_b32 s35, s3, 1             ; wc
    v_lshlrev_b32 v{vA0}, 4, v1
    s_lshl_b32 s30, s34, 12
    v_add_u32 v{vA0}, s30, v{vA0}
    v_lshrrev_b32 v10, 4, v1          ; g
    v_bfe_u32 v11, v1, 2, 2           ; r
    v_and_b32 v12, 3, v1              ; c
    """)
    gmul = 4 if c.korder == "F" else 8
    rdrows = 16 if c.korder == "F" else 4
    if c.layout == "panel":
        RS = 128
        a(f"""
        v_mul_u32_u24 v13, {gmul}, v10
        v_add_u32 v13, v13, v11           ; row
        v_lshlrev_b32 v13, 7, v13
        v_lshlrev_b32 v14, 3, v12
        v_add_u32 v13, v13, v14
        v_add_u32 v13, 16384, v13
        v_lshrrev_b32 v14, 1, v11
        v_and_b32 v15, 1, v10
        v_lshl_or_b32 v14, v15, 1, v14    ; f
        s_lshl_b32 s30, s35, 1
        v_xor_b32 v15, s30, v14
        v_lshl_add_u32 v{vB00}, v15, 5, v13
        v_xor_b32 v15, 1, v15
        v_lshl_add_u32 v{vB01}, v15, 5, v13
        v_mov_b32 v{vB02}, 0
        """)
        def bread(nt, kg, rd):
            base = vB0 if nt % 2 == 0 else vB1
            return base, (nt // 2) * 8192 + kg * 32 * RS + rd * rdrows * RS
    else:
        RS = 448
        a(f"""
        v_mul_u32_u24 v13, {gmul}, v10
        v_add_u32 v13, v13, v11
        v_mul_u32_u24 v13, {RS}, v13
        v_lshlrev_b32 v14, 3, v12
        v_add_u32 v13, v13, v14
        v_add_u32 v13, 16384, v13
        v_and_b32 v15, 1, v10
        v_lshlrev_b32 v15, 5, v15         ; (g&1)*32
        s_lshl_b32 s30, s35, 8
        v_add_u32 v14, s30, v13
        v_add_u32 v{vB00}, v14, v15
        v_sub_u32 v{vB01}, v14, v15
        v_lshrrev_b32 v15, 5, v15
        s_add_u32 s30, s35, 6
        v_xor_b32 v15, s30, v15
        v_lshl_add_u32 v{vB02}, v15, 5, v13
        """)
        def bread(nt, kg, rd):
            o = kg * 32 * RS + rd * rdrows * RS
            if nt == 6: return vB2, o
            return (vB0 if nt % 2 == 0 else vB1), o + nt * 32
    RES = VTOP
    if kind == "wo":
        VTOP += 16
        srd(a, 20, "s32", "s33", 4 * MB)
        a(f"""
        v_and_b32 v13, 15, v1
        v_lshlrev_b32 v13, 11, v13
        v_lshl_add_u32 v13, v10, 3, v13
        s_lshl_b32 s30, s24, 18
        s_lshl_b32 s31, s34, 17
        s_add_u32 s30, s30, s31
        s_lshl_b32 s31, s25, 7
        s_add_u32 s30, s30, s31
        s_lshl_b32 s31, s35, 6
        s_add_u32 s30, s30, s31
        """)
        for mt in range(4):
            for nt in range(2):
                r = RES + mt * 4 + nt * 2
                a(f"buffer_load_dwordx2 v[{r}:{r+1}], v13, s[20:23], s30 offen offset:{nt*32}")
            a("s_add_u32 s30, s30, 32768")
    if kind == "w2":
        VTOP += 16
        srd_off(a, 20, 4, H_OFF, 4 * MB)
        a(f"""
        s_lshl_b32 s30, s24, 18
        s_lshl_b32 s31, s25, 14
        s_add_u32 s30, s30, s31
        s_lshl_b32 s31, s35, 13
        s_add_u32 s30, s30, s31
        """)
        for mt in range(4):
            r = RES + mt * 4
            a(f"buffer_load_dwordx4 v[{r}:{r+3}], v{vA0}, s[20:23], s30 offen offset:{mt*1024}")
    for i in range(16 * NT):
        a(f"v_mov_b32 v{ACC+i}, 0")
    a(f"""
    v_mov_b32 v{vA}, v{vA0}
    v_mov_b32 v{vB0}, v{vB00}
    v_mov_b32 v{vB1}, v{vB01}
    v_mov_b32 v{vB2}, v{vB02}
    s_mov_b32 s27, 0
    s_mov_b32 s26, {n}
    """)
    def reads(F, kg):
        r = []
        for nt in range(NT):
            if nt == 1 or (NT == 1):
                pass
            for rd in range(2):
                b, o = bread(nt, kg, rd)
                d = F + 16 + nt * 4 + rd * 2
                r.append(f"ds_read_b64_tr_b16 v[{d}:{d+1}], v{b} offset:{o}")
            if nt == 0:
                for mt in range(4):
                    d = F + mt * 4
                    r.append(f"ds_read_b128 v[{d}:{d+3}], v{vA} offset:{kg*8192 + mt*1024}")
        return r
    def mfmas(F):
        m = []
        for nt in range(NT):
            for mt in range(4):
                A = F + mt * 4; B = F + 16 + nt * 4; D = acc(mt, nt)
                if nt in c.normal_tiles:
                    m.append(f"v_mfma_f32_16x16x32_bf16 v[{D}:{D+3}], v[{A}:{A+3}], v[{B}:{B+3}], v[{D}:{D+3}]")
                else:
                    m.append(f"v_mfma_f32_16x16x32_bf16 v[{D}:{D+3}], v[{B}:{B+3}], v[{A}:{A+3}], v[{D}:{D+3}]")
        return m
    loop = a.label("g_loop")
    a("s_barrier")
    for r in reads(FX, 0): a(r)
    a(f"{loop}:")
    a("s_waitcnt lgkmcnt(0)")
    adv = [f"s_add_u32 s27, s27, {SZ}", f"s_cmp_eq_u32 s27, {S*SZ}", "s_cselect_b32 s27, 0, s27",
           f"v_add_u32 v{vA}, s27, v{vA0}", f"v_add_u32 v{vB0}, s27, v{vB00}", f"v_add_u32 v{vB1}, s27, v{vB01}"]
    if c.layout != "panel": adv.append(f"v_add_u32 v{vB2}, s27, v{vB02}")
    for x in interleave(mfmas(FX), reads(FY, 1) + adv, 0, 1, c.rpg): a(x)
    a("s_waitcnt lgkmcnt(0)")
    a("s_barrier")
    for x in interleave(mfmas(FY), reads(FX, 0) + ["s_sub_u32 s26, s26, 1", "s_cmp_lg_u32 s26, 0"], 0, 1, c.rpg): a(x)
    a(f"s_cbranch_scc1 {loop}")
    a("s_waitcnt lgkmcnt(0)")
    T = FX
    if kind == "qkv":
        srd_off(a, 16, 4, Q_OFF, 12 * MB)
        a(f"""
        s_lshl_b32 s30, s25, 1
        s_add_u32 s30, s30, s35
        s_lshl_b32 s30, s30, 17          ; head*128K
        s_lshl_b32 s31, s24, 13
        s_add_u32 s30, s30, s31
        s_add_u32 s31, s30, {4*MB}
        s_add_u32 s36, s30, {8*MB}
        """)
        t = T
        for which, so in ((0, "s30"), (1, "s31")):
            for mt in range(4):
                p0 = acc(mt, 2 * which); p1 = acc(mt, 2 * which + 1)
                a(f"v_cvt_pk_bf16_f32 v{t}, v{p0}, v{p0+1}")
                a(f"v_cvt_pk_bf16_f32 v{t+1}, v{p0+2}, v{p0+3}")
                a(f"v_cvt_pk_bf16_f32 v{t+2}, v{p1}, v{p1+1}")
                a(f"v_cvt_pk_bf16_f32 v{t+3}, v{p1+2}, v{p1+3}")
                a(f"buffer_store_dwordx4 v[{t}:{t+3}], v{vA0}, s[16:19], {so} offen offset:{mt*1024}")
                t += 4
        for mp in range(2):
            for dt in range(2):
                p0 = acc(2 * mp, 4 + dt); p1 = acc(2 * mp + 1, 4 + dt)
                a(f"v_cvt_pk_bf16_f32 v{t}, v{p0}, v{p0+1}")
                a(f"v_cvt_pk_bf16_f32 v{t+1}, v{p0+2}, v{p0+3}")
                a(f"v_cvt_pk_bf16_f32 v{t+2}, v{p1}, v{p1+1}")
                a(f"v_cvt_pk_bf16_f32 v{t+3}, v{p1+2}, v{p1+3}")
                a(f"buffer_store_dwordx4 v[{t}:{t+3}], v{vA0}, s[16:19], s36 offen offset:{(2*mp+dt)*1024}")
                t += 4
    elif kind == "wo":
        srd_off(a, 16, 4, H_OFF, 4 * MB)
        srd_off(a, 20, 4, ST_OFF, 16 * 32768)
        a(f"""
        s_lshl_b32 s30, s24, 18
        s_lshl_b32 s31, s25, 14
        s_add_u32 s30, s30, s31
        s_lshl_b32 s31, s35, 13
        s_add_u32 s30, s30, s31
        s_mov_b32 s36, 0xffff0000
        s_waitcnt vmcnt(0)
        """)
        SS = T + 16
        for mt in range(4):
            for nt in range(2):
                r = RES + mt * 4 + nt * 2; p = acc(mt, nt)
                for d in range(2):
                    a(f"v_lshlrev_b32 v{T+32}, 16, v{r+d}")
                    a(f"v_and_b32 v{T+33}, s36, v{r+d}")
                    a(f"v_add_f32 v{p+2*d}, v{p+2*d}, v{T+32}")
                    a(f"v_add_f32 v{p+2*d+1}, v{p+2*d+1}, v{T+33}")
            p0 = acc(mt, 0); p1 = acc(mt, 1); t = T + mt * 4
            a(f"v_cvt_pk_bf16_f32 v{t}, v{p0}, v{p0+1}")
            a(f"v_cvt_pk_bf16_f32 v{t+1}, v{p0+2}, v{p0+3}")
            a(f"v_cvt_pk_bf16_f32 v{t+2}, v{p1}, v{p1+1}")
            a(f"v_cvt_pk_bf16_f32 v{t+3}, v{p1+2}, v{p1+3}")
            a(f"buffer_store_dwordx4 v[{t}:{t+3}], v{vA0}, s[16:19], s30 offen offset:{mt*1024}")
            vals = [p0 + i for i in range(4)] + [p1 + i for i in range(4)]
            s_, q_ = SS + 2 * mt, SS + 2 * mt + 1
            a(f"v_add_f32 v{s_}, v{vals[0]}, v{vals[1]}")
            a(f"v_mul_f32 v{q_}, v{vals[0]}, v{vals[0]}")
            for i in range(1, 8):
                if i >= 2: a(f"v_add_f32 v{s_}, v{s_}, v{vals[i]}")
                a(f"v_fmac_f32 v{q_}, v{vals[i]}, v{vals[i]}")
        for mt in range(4):
            s_, q_ = SS + 2 * mt, SS + 2 * mt + 1
            a(f"v_permlane32_swap_b32 v{s_}, v{q_}")
            a(f"v_add_f32 v{s_}, v{s_}, v{q_}")
        a(f"""
        v_and_b32 v13, 31, v1
        v_lshlrev_b32 v13, 2, v13
        v_lshrrev_b32 v14, 5, v1
        v_lshl_add_u32 v13, v14, 9, v13
        s_lshl_b32 s30, s24, 15
        s_lshl_b32 s31, s25, 11
        s_add_u32 s30, s30, s31
        s_lshl_b32 s31, s35, 10
        s_add_u32 s30, s30, s31
        s_lshl_b32 s31, s34, 8
        s_add_u32 s30, s30, s31
        """)
        for mp in range(2):
            x0 = SS + 4 * mp; x1 = SS + 4 * mp + 2
            a(f"v_permlane16_swap_b32 v{x0}, v{x1}")
            a(f"v_add_f32 v{x0}, v{x0}, v{x1}")
            a(f"buffer_store_dword v{x0}, v13, s[20:23], s30 offen offset:{mp*128}")
    elif kind == "w1":
        STL = S * SZ
        a("s_barrier")
        srd_off(a, 16, 4, H1_OFF, 14 * MB)
        CSR = T
        MR = T + 28
        C2 = T + 36
        TT = T + 40
        a(f"""
        v_and_b32 v13, 15, v1
        v_lshlrev_b32 v13, 3, v13
        s_lshl_b32 s30, s34, 9
        v_add_u32 v13, s30, v13
        v_lshlrev_b32 v14, 4, v10        ; g*16 bytes
        s_lshl_b32 s30, s35, 9
        v_add_u32 v15, s30, v14
        s_lshl_b32 s30, s35, 6
        v_add_u32 v14, s30, v14
        v_add_u32 v13, {STL}, v13
        v_add_u32 v14, {STL}, v14
        v_add_u32 v15, {STL}, v15
        """)
        for mt in range(4):
            a(f"ds_read_b64 v[{MR+2*mt}:{MR+2*mt+1}], v13 offset:{mt*128}")
        for nt in range(6):
            a(f"ds_read_b128 v[{CSR+4*nt}:{CSR+4*nt+3}], v15 offset:{1024 + nt*64}")
        a(f"ds_read_b128 v[{CSR+24}:{CSR+27}], v14 offset:{1024 + 6*64}")
        a(f"""
        s_mul_i32 s30, s24, {112*8192}
        s_mul_i32 s31, s25, {7*8192}
        s_add_u32 s30, s30, s31
        s_add_u32 s36, s30, {3*8192}
        s_lshl_b32 s31, s35, 3
        s_add_u32 s36, s36, s31
        s_lshl_b32 s31, s35, 15
        s_add_u32 s30, s30, s31
        s_add_u32 s31, s30, 8192
        s_add_u32 s37, s30, 16384
        s_waitcnt lgkmcnt(0)
        """)
        for mt in range(4):
            a(f"v_mul_f32 v{C2+mt}, {f32(-LOG2E)}, v{MR+2*mt+1}")
        soffs = ["s30", "s31", "s37"]
        tcur = 0
        for nt in range(7):
            for mt in range(4):
                p = acc(mt, nt)
                e = TT + 8 + (mt % 2) * 4
                for r in range(4):
                    a(f"v_fma_f32 v{p+r}, -v{MR+2*mt}, v{CSR+4*nt+r}, v{p+r}")
                for r in range(4):
                    a(f"v_mul_f32 v{e+r}, v{C2+mt}, v{p+r}")
                for r in range(4):
                    a(f"v_exp_f32 v{e+r}, v{e+r}")
                for r in range(4):
                    a(f"v_mul_f32 v{p+r}, v{MR+2*mt+1}, v{p+r}")
                for r in range(4):
                    a(f"v_add_f32 v{e+r}, 1.0, v{e+r}")
                for r in range(4):
                    a(f"v_rcp_f32 v{e+r}, v{e+r}")
                for r in range(4):
                    a(f"v_mul_f32 v{p+r}, v{p+r}, v{e+r}")
                if nt % 2 == 1:
                    p0 = acc(mt, nt - 1)
                    a(f"v_cvt_pk_bf16_f32 v{p0}, v{p0}, v{p0+1}")
                    a(f"v_cvt_pk_bf16_f32 v{p0+1}, v{p0+2}, v{p0+3}")
                    a(f"v_cvt_pk_bf16_f32 v{p0+2}, v{p}, v{p+1}")
                    a(f"v_cvt_pk_bf16_f32 v{p0+3}, v{p+2}, v{p+3}")
                    a(f"buffer_store_dwordx4 v[{p0}:{p0+3}], v{vA0}, s[16:19], {soffs[nt//2]} offen offset:{mt*1024}")
                if nt == 6:
                    a(f"v_cvt_pk_bf16_f32 v{p}, v{p}, v{p+1}")
                    a(f"v_cvt_pk_bf16_f32 v{p+1}, v{p+2}, v{p+3}")
                    a(f"buffer_store_dwordx2 v[{p}:{p+1}], v{vA0}, s[16:19], s36 offen offset:{mt*1024}")
    elif kind == "w2":
        srd(a, 16, "s32", "s33", 4 * MB)
        a(f"""
        v_and_b32 v13, 15, v1
        v_lshlrev_b32 v13, 11, v13
        v_and_b32 v14, 1, v10
        v_lshl_add_u32 v13, v14, 5, v13
        v_lshrrev_b32 v14, 1, v10
        v_lshl_add_u32 v13, v14, 4, v13
        s_lshl_b32 s30, s24, 18
        s_lshl_b32 s31, s34, 17
        s_add_u32 s30, s30, s31
        s_lshl_b32 s31, s25, 7
        s_add_u32 s30, s30, s31
        s_lshl_b32 s31, s35, 6
        s_add_u32 s30, s30, s31
        s_mov_b32 s36, 0xffff0000
        s_waitcnt vmcnt(0)
        """)
        for mt in range(4):
            for nt in range(2):
                r = RES + mt * 4 + nt * 2; p = acc(mt, nt)
                for d in range(2):
                    a(f"v_lshlrev_b32 v{T+32}, 16, v{r+d}")
                    a(f"v_and_b32 v{T+33}, s36, v{r+d}")
                    a(f"v_add_f32 v{p+2*d}, v{p+2*d}, v{T+32}")
                    a(f"v_add_f32 v{p+2*d+1}, v{p+2*d+1}, v{T+33}")
            p0 = acc(mt, 0); p1 = acc(mt, 1); t = T + mt * 4
            a(f"v_cvt_pk_bf16_f32 v{t}, v{p0}, v{p0+1}")
            a(f"v_cvt_pk_bf16_f32 v{t+1}, v{p0+2}, v{p0+3}")
            a(f"v_cvt_pk_bf16_f32 v{t+2}, v{p1}, v{p1+1}")
            a(f"v_cvt_pk_bf16_f32 v{t+3}, v{p1+2}, v{p1+3}")
            a(f"v_permlane16_swap_b32 v{t}, v{t+2}")
            a(f"v_permlane16_swap_b32 v{t+1}, v{t+3}")
            a(f"buffer_store_dwordx4 v[{t}:{t+3}], v13, s[16:19], s30 offen")
            a("s_add_u32 s30, s30, 32768")
    a("s_endpgm")
    a(f"{prod}:")
    a(f"""
    s_sub_u32 s3, s3, 4
    s_mul_i32 s30, s24, {n*16384}
    s_add_u32 s30, s30, {c.a_off}
    """)
    srd_off(a, 8, 4, "s30", n * 16384)
    a(f"s_mul_i32 s30, s25, {c.bcol}")
    a(f"s_sub_u32 s31, {K*c.ldb}, s30")
    srd_off(a, 12, 6, "s30", "s31")
    a(f"""
    s_lshl_b32 s34, s3, 12
    v_lshlrev_b32 v2, 4, v1
    v_add_u32 v2, s34, v2             ; A voffset
    s_mul_i32 s35, s3, {NBW*1024}
    s_add_u32 s35, s35, 16384
    s_mul_i32 s30, s3, {NBW*64}
    """)
    VB = 8
    for i in range(NBW):
        a(f"s_add_u32 s31, s30, {i*64}")
        a(f"v_add_u32 v3, s31, v1")
        if c.layout == "panel":
            a("v_bfe_u32 v4, v3, 3, 6")
            if c.korder == "F":
                a("v_bfe_u32 v5, v4, 1, 2")
            else:
                a("v_bfe_u32 v5, v4, 1, 1")
                a("v_bfe_u32 v6, v4, 3, 1")
                a("v_lshl_or_b32 v5, v6, 1, v5")
            a(f"""
            v_lshlrev_b32 v5, 1, v5
            v_and_b32 v6, 7, v3
            v_xor_b32 v5, v5, v6
            v_lshlrev_b32 v5, 4, v5
            s_mov_b32 s36, {c.ldb}
            v_mul_lo_u32 v4, v4, s36
            v_add_u32 v4, v4, v5
            v_lshrrev_b32 v5, 9, v3           ; panel
            v_mul_u32_u24 v5, {c.pstride}, v5
            v_add_u32 v4, v4, v5
            v_subrev_u32 v{VB+i}, {(i&3)*1024}, v4
            """)
        else:
            a(f"""
            v_mul_u32_u24 v4, 2341, v3
            v_lshrrev_b32 v4, 16, v4          ; row = u/28
            v_mul_u32_u24 v5, 28, v4
            v_sub_u32 v5, v3, v5              ; cp
            v_bfe_u32 v6, v4, 2, 1
            v_lshlrev_b32 v6, 1, v6
            v_xor_b32 v5, v5, v6
            v_lshlrev_b32 v5, 4, v5
            s_mov_b32 s36, {c.ldb}
            v_mul_lo_u32 v4, v4, s36
            v_add_u32 v4, v4, v5
            v_subrev_u32 v{VB+i}, {(i&3)*1024}, v4
            """)
    def issue():
        a("s_add_u32 m0, s27, s34")
        for i in range(4):
            a(f"buffer_load_dwordx4 v2, s[8:11], s28 offen offset:{i*1024} lds")
        for i in range(NBW):
            if i % 4 == 0:
                a("s_add_u32 m0, s27, s35")
                if i: a(f"s_add_u32 m0, m0, {i*1024}")
            a(f"buffer_load_dwordx4 v{VB+i}, s[12:15], s29 offen offset:{(i&3)*1024} lds")
        a(f"""
        s_add_u32 s28, s28, 16384
        s_add_u32 s29, s29, {64*c.ldb}
        s_add_u32 s27, s27, {SZ}
        s_cmp_eq_u32 s27, {S*SZ}
        s_cselect_b32 s27, 0, s27
        """)
    a("""
    s_mov_b32 s27, 0
    s_mov_b32 s28, 0
    s_mov_b32 s29, 0
    """)
    for st in range(S): issue()
    a(f"s_waitcnt vmcnt({(S-1)*L})")
    a("s_barrier")
    ploop = a.label("g_ploop")
    a(f"s_mov_b32 s26, {n-S}")
    a(f"{ploop}:")
    a(f"s_waitcnt vmcnt({(S-2)*L})")
    a("s_barrier")
    issue()
    a(f"""
    s_sub_u32 s26, s26, 1
    s_cmp_lg_u32 s26, 0
    s_cbranch_scc1 {ploop}
    """)
    E = 0
    if kind == "w1":
        E = 48
        srd_off(a, 16, 4, ST_OFF, 16 * 32768)
        srd_off(a, 20, 4, CS_OFF, 16 * 3584 * 4)
        a(f"""
        v_and_b32 v3, 31, v1
        v_lshlrev_b32 v3, 2, v3
        v_lshrrev_b32 v4, 5, v1
        v_lshl_add_u32 v3, v4, 9, v3
        s_lshl_b32 s30, s24, 15
        s_lshl_b32 s31, s3, 7
        s_add_u32 s30, s30, s31
        """)
        for p in range(32):
            a(f"buffer_load_dword v{32+p}, v3, s[16:19], s30 offen offset:{(p&3)*1024}")
            if p % 4 == 3: a("s_add_u32 s30, s30, 4096")
        a(f"""
        v_lshlrev_b32 v4, 2, v1
        s_mul_i32 s30, s25, {224*4}
        s_mul_i32 s31, s3, {56*4}
        s_add_u32 s30, s30, s31
        """)
        for p in range(16):
            a(f"buffer_load_dword v{64+p}, v4, s[20:23], s30 offen")
            a(f"s_add_u32 s30, s30, {3584*4}")
    for j in range(n - S + 1, n):
        a(f"s_waitcnt vmcnt({(n-1-j)*L + E})")
        a("s_barrier")
    if kind == "w1":
        STL = S * SZ
        a("s_waitcnt vmcnt(0)")
        for p in range(1, 32): a(f"v_add_f32 v32, v32, v{32+p}")
        for p in range(1, 16): a(f"v_add_f32 v64, v64, v{64+p}")
        a(f"""
        v_mov_b32 v33, v32
        v_permlane32_swap_b32 v32, v33
        v_mul_f32 v32, {f32(1.0/1024)}, v32
        v_mul_f32 v33, {f32(1.0/1024)}, v33
        v_fma_f32 v33, -v32, v32, v33
        v_max_f32 v33, 0, v33
        v_add_f32 v33, {f32(1e-5)}, v33
        v_rsq_f32 v33, v33
        v_and_b32 v3, 31, v1
        v_lshlrev_b32 v3, 3, v3
        s_lshl_b32 s30, s3, 8
        v_add_u32 v3, s30, v3
        s_mul_i32 s31, s3, {56*4}
        v_add_u32 v4, s31, v4
        v_add_u32 v3, {STL}, v3
        v_add_u32 v4, {STL+1024}, v4
        ds_write_b64 v3, v[32:33]
        ds_write_b32 v4, v64
        s_waitcnt lgkmcnt(0)
        s_barrier
        """)
    a("s_barrier")
    a(f"{end}:")
    a("s_endpgm")
    lds = S * SZ + (2048 if kind == "w1" else 0)
    return kernel_desc(name, max(VTOP, 96)), lds

def k_attn(a, name):
    kernel_begin(a, name)
    end = a.label("at_end")
    SC = (32 ** -0.5) * LOG2E
    a(f"""
    s_cmp_ge_u32 s2, 256
    s_cbranch_scc1 {end}
    s_load_dwordx2 s[4:5], s[0:1], {ARG_WS}
    v_lshrrev_b32 v2, 6, v0
    v_and_b32 v1, 63, v0
    v_readfirstlane_b32 s3, v2
    s_and_b32 s30, s2, 7
    s_lshr_b32 s31, s2, 3
    s_and_b32 s24, s30, 3
    s_lshl_b32 s24, s24, 3
    s_lshr_b32 s26, s31, 2
    s_add_u32 s24, s24, s26          ; head
    s_lshr_b32 s25, s30, 2
    s_lshl_b32 s25, s25, 2
    s_and_b32 s26, s31, 3
    s_add_u32 s25, s25, s26          ; qb
    s_lshl_b32 s26, s24, 17
    s_add_u32 s27, s26, {Q_OFF}
    s_add_u32 s28, s26, {K_OFF}
    s_add_u32 s29, s26, {V_OFF}
    s_waitcnt lgkmcnt(0)
    """)
    srd_off(a, 8, 4, "s27", 131072)
    srd_off(a, 12, 4, "s28", 131072)
    srd_off(a, 16, 4, "s29", 131072)
    srd_off(a, 20, 4, O_OFF, 4 * MB)
    vF, vD, vL, vQH = 2, 3, 4, 5
    Q = 8; O = 16; SB = 32; F = 176; T = 248
    a(f"""
    v_bfe_u32 v6, v1, 4, 1
    v_lshlrev_b32 v{vF}, 10, v6
    v_lshrrev_b32 v6, 5, v1
    v_lshl_add_u32 v{vF}, v6, 8, v{vF}
    v_and_b32 v7, 15, v1
    v_lshl_add_u32 v{vF}, v7, 4, v{vF}
    ; q - 4h
    v_and_b32 v7, 31, v1
    v_lshlrev_b32 v6, 2, v6
    v_sub_u32 v{vQH}, v7, v6
    s_lshl_b32 s30, s25, 14
    s_lshl_b32 s31, s3, 11
    s_add_u32 s30, s30, s31
    buffer_load_dwordx4 v[{Q}:{Q+3}], v{vF}, s[8:11], s30 offen
    buffer_load_dwordx4 v[{Q+4}:{Q+7}], v{vF}, s[8:11], s30 offen offset:512
    s_lshl_b32 s30, s25, 14
    s_sub_u32 s30, s30, 16384
    s_lshl_b32 s31, s3, 12
    s_add_u32 s30, s30, s31
    v_lshlrev_b32 v{vD}, 4, v1
    v_add_u32 v{vD}, s30, v{vD}
    s_mov_b32 m0, s31
    """)
    for i in range(4):
        a(f"buffer_load_dwordx4 v{vD}, s[12:15], 0 offen offset:{i*1024} lds")
    a("s_add_u32 m0, s31, 32768")
    for i in range(4):
        a(f"buffer_load_dwordx4 v{vD}, s[16:19], 0 offen offset:{i*1024} lds")
    a(f"""
    s_lshl_b32 s31, s3, 11
    v_add_u32 v{vL}, s31, v{vF}
    """)
    for r in range(16):
        cst = 8 * (r >> 2) + (r & 3)
        a(f"v_cmp_gt_i32 s[{40+2*r}:{41+2*r}], {cst}, v{vQH}")
    for r in range(16):
        a(f"v_mov_b32 v{O+r}, 0")
    a("s_waitcnt vmcnt(4)")
    a("s_barrier")
    def fr(b, i): return F + b * 8 + i * 4
    rd = []
    for b in range(9):
        for i in range(2):
            rd.append(f"ds_read_b128 v[{fr(b,i)}:{fr(b,i)+3}], v{vL} offset:{b*2048 + i*512}")
    for x in rd[:8]: a(x)
    nissued = 8
    for b in range(9):
        a(f"s_waitcnt lgkmcnt({nissued - (2*b+2)})")
        s = SB + 16 * b
        a(f"v_mfma_f32_32x32x16_bf16 v[{s}:{s+15}], v[{fr(b,0)}:{fr(b,0)+3}], v[{Q}:{Q+3}], 0")
        if nissued < 18: a(rd[nissued]); nissued += 1
        a(f"v_mfma_f32_32x32x16_bf16 v[{s}:{s+15}], v[{fr(b,1)}:{fr(b,1)+3}], v[{Q+4}:{Q+7}], v[{s}:{s+15}]")
        if nissued < 18: a(rd[nissued]); nissued += 1
    a("s_waitcnt vmcnt(0)")
    a("s_barrier")
    rv = []
    for b in range(9):
        for i in range(2):
            rv.append(f"ds_read_b128 v[{fr(b,i)}:{fr(b,i)+3}], v{vL} offset:{32768 + b*2048 + i*512}")
    for x in rv[:14]: a(x)
    skip = a.label("at_valid")
    a(f"""
    s_cmp_lg_u32 s25, 0
    s_cbranch_scc1 {skip}
    """)
    for b in range(8):
        nb = a.label("at_nb")
        a(f"s_cmp_ge_u32 s3, {8-b}")
        a(f"s_cbranch_scc1 {nb}")
        for r in range(16):
            a(f"v_mov_b32 v{SB+16*b+r}, 0xff800000")
        a(f"{nb}:")
    a(f"{skip}:")
    for r in range(16):
        a(f"v_cndmask_b32 v{SB+r}, v{SB+128+r}, v{SB+r}, s[{40+2*r}:{41+2*r}]")
    mx = T; mx2 = T + 1; sm = T + 2; sm2 = T + 3; cc = T + 4
    a(f"v_max_f32 v{mx}, v{SB+16}, v{SB+17}")
    a(f"v_max_f32 v{mx2}, v{SB+18}, v{SB+19}")
    idx = list(range(20, 128)) + list(range(0, 16))
    for k in range(0, len(idx), 2):
        m = mx if (k // 2) % 2 == 0 else mx2
        a(f"v_max3_f32 v{m}, v{SB+idx[k]}, v{SB+idx[k+1]}, v{m}")
    for x in rv[14:]: a(x)
    a(f"""
    v_max_f32 v{mx}, v{mx}, v{mx2}
    v_mov_b32 v{mx2}, v{mx}
    v_permlane32_swap_b32 v{mx}, v{mx2}
    v_max_f32 v{mx}, v{mx}, v{mx2}
    s_mov_b32 s30, {f32(SC)}
    v_mul_f32 v{mx}, s30, v{mx}
    v_mov_b32 v{sm}, 0
    v_mov_b32 v{sm2}, 0
    s_waitcnt lgkmcnt(0)
    """)
    def pack(s):
        order = [(0, 0), (1, 2), (2, 8), (3, 10), (4, 4), (5, 6), (6, 12), (7, 14)]
        for d, r in order:
            a(f"v_cvt_pk_bf16_f32 v{s+d}, v{s+r}, v{s+r+1}")
    def pv(b, s):
        a(f"v_mfma_f32_32x32x16_bf16 v[{O}:{O+15}], v[{fr(b,0)}:{fr(b,0)+3}], v[{s}:{s+3}], v[{O}:{O+15}]")
        a(f"v_mfma_f32_32x32x16_bf16 v[{O}:{O+15}], v[{fr(b,1)}:{fr(b,1)+3}], v[{s+4}:{s+7}], v[{O}:{O+15}]")
    pending = None
    for b in [1, 2, 3, 4, 5, 6, 7, 0]:
        s = SB + 16 * b
        for r in range(16):
            a(f"v_fma_f32 v{s+r}, v{s+r}, s30, -v{mx}")
        if pending is not None:
            pv(*pending); pending = None
        for r in range(16):
            a(f"v_exp_f32 v{s+r}, v{s+r}")
        for r in range(16):
            m = sm if r % 2 == 0 else sm2
            a(f"v_add_f32 v{m}, v{m}, v{s+r}")
        if b == 0:
            s8 = SB + 128
            for r in range(16):
                a(f"v_cndmask_b32 v{s8+r}, v{s+r}, 0, s[{40+2*r}:{41+2*r}]")
                a(f"v_cndmask_b32 v{s+r}, 0, v{s+r}, s[{40+2*r}:{41+2*r}]")
            pack(s); pack(s8)
            pv(0, s); pv(8, s8)
        else:
            pack(s)
            pending = (b, s)
    a(f"""
    v_add_f32 v{sm}, v{sm}, v{sm2}
    v_mov_b32 v{sm2}, v{sm}
    v_permlane32_swap_b32 v{sm}, v{sm2}
    v_add_f32 v{sm}, v{sm}, v{sm2}
    v_rcp_f32 v{sm}, v{sm}
    s_lshl_b32 s30, s25, 19
    s_lshr_b32 s31, s3, 2
    s_lshl_b32 s31, s31, 18
    s_add_u32 s30, s30, s31
    s_lshl_b32 s31, s24, 13
    s_add_u32 s30, s30, s31
    s_and_b32 s31, s3, 3
    s_lshl_b32 s31, s31, 11
    s_add_u32 s30, s30, s31
    """)
    for r in range(16):
        a(f"v_mul_f32 v{O+r}, v{O+r}, v{sm}")
    pack(O)
    a(f"""
    buffer_store_dwordx4 v[{O}:{O+3}], v{vF}, s[20:23], s30 offen
    buffer_store_dwordx4 v[{O+4}:{O+7}], v{vF}, s[20:23], s30 offen offset:512
    {end}:
    s_endpgm
    """)
    return kernel_desc(name, 256)

CFG = dict(
    qkv=dict(K=1024, BN=192, NT=6, S=3, korder="N", layout="panel", warg=ARG_WQKV, ldb=6144, bcol=128, pstride=2048,
             a_off=XH_OFF, normal_tiles=(4, 5), RX=2, CX=4, rpg=1),
    wo=dict(K=1024, BN=64, NT=2, S=6, korder="F", layout="panel", warg=ARG_WO, ldb=2048, bcol=128, pstride=0,
            a_off=O_OFF, normal_tiles=(), RX=4, CX=2, rpg=2),
    w1=dict(K=1024, BN=224, NT=7, S=3, korder="F", layout="w1", warg=ARG_W1, ldb=7168, bcol=448, pstride=0,
            a_off=H_OFF, normal_tiles=(), RX=2, CX=4, rpg=1),
    w2=dict(K=3584, BN=64, NT=2, S=6, korder="F", layout="panel", warg=ARG_W2, ldb=2048, bcol=128, pstride=0,
            a_off=H1_OFF, normal_tiles=(), RX=4, CX=2, rpg=2),
)

def build(cfg=CFG, header_src=None):
    a = Asm()
    descs = []
    launches = []
    descs.append(k_pre(a, "pre_kernel")); launches.append(("pre_kernel", 368, 256, 8192))
    d, lds = k_gemm(a, "qkv_kernel", "qkv", cfg["qkv"]); descs.append(d); launches.append(("qkv_kernel", 256, 512, lds))
    descs.append(k_attn(a, "attn_kernel")); launches.append(("attn_kernel", 256, 512, 65536))
    for kind in ("wo", "w1", "w2"):
        d, lds = k_gemm(a, kind + "_kernel", kind, cfg[kind]); descs.append(d); launches.append((kind + "_kernel", 256, 512, lds))
    body, nins = hazard.fix(a.lines)
    hdr = []
    if header_src:
        for ln in open(header_src):
            if ln.startswith(";") and "@launch" not in ln and "Override launch" not in ln and "grid=ceil" not in ln:
                hdr.append(ln.rstrip("\n"))
            elif not ln.startswith(";"):
                break
    for k, g, b, l in launches:
        hdr.append(f"; @launch kernel={k} grid=({g},1,1) block=({b},1,1) lds={l}")
    hdr.append('.amdgcn_target "amdgcn-amd-amdhsa--gfx950"')
    hdr.append(".text")
    return "\n".join(hdr) + "\n" + "\n".join(body) + "\n" + "".join(descs), nins

if __name__ == "__main__":
    out = sys.argv[1] if len(sys.argv) > 1 else "sequential_preLN__sliding_block__dense_activation_silu__prompt.s"
    txt, nins = build(header_src="sequential_preLN__sliding_block__dense_activation_silu__prompt.s.ref")
    open(out, "w").write(txt)
    print("wrote", out, len(txt), "bytes; nop states inserted:", nins)
```

```python
import re

TRANS = ("v_exp_f32", "v_log_f32", "v_rcp_f32", "v_rsq_f32", "v_sqrt_f32", "v_sin_f32", "v_cos_f32", "v_rcp_iflag_f32")

def regs_of(tok):
    tok = tok.strip()
    tok = re.sub(r"^-|^abs\(|\)$|^\|", "", tok).strip("|")
    m = re.fullmatch(r"([vsa])(\d+)", tok)
    if m: return {(m.group(1), int(m.group(2)))}
    m = re.fullmatch(r"([vsa])\[(\d+):(\d+)\]", tok)
    if m: return {(m.group(1), i) for i in range(int(m.group(2)), int(m.group(3)) + 1)}
    if tok in ("vcc", "vcc_lo", "vcc_hi"): return {("vcc", 0)}
    if tok == "m0": return {("m0", 0)}
    if tok in ("exec", "exec_lo", "exec_hi"): return {("exec", 0)}
    return set()

class Ins:
    def __init__(self, text):
        self.text = text
        t = text.split(";")[0].strip()
        self.op = t.split()[0]
        rest = t[len(self.op):].strip()
        ops = []; cur = ""; depth = 0
        for ch in rest:
            if ch in "[(": depth += 1
            if ch in "])": depth -= 1
            if ch == "," and depth == 0:
                ops.append(cur.strip()); cur = ""
            else: cur += ch
        if cur.strip(): ops.append(cur.strip())
        self.mods = ""
        if ops:
            parts = ops[-1].split(None, 1)
            if len(parts) == 2 and not ops[-1].startswith("abs"):
                ops[-1] = parts[0]; self.mods = parts[1]
        self.ops = ops
        op = self.op
        self.w = set(); self.r = set()
        self.kind = "other"; self.passes = 0
        self.srcC = set(); self.srcAB = set()
        self.lds_dma = False; self.wide_store = set()
        R = [regs_of(o) for o in ops]
        if op.startswith("v_mfma"):
            self.kind = "mfma"
            self.passes = 8 if "32x32x16" in op else 4 if "16x16x32" in op else 16
            self.w = R[0]; self.srcAB = R[1] | R[2]; self.srcC = R[3]; self.r = self.srcAB | self.srcC
        elif op.startswith("v_"):
            self.kind = "valu"
            base = re.sub(r"_(e32|e64|dpp|sdwa)$", "", op)
            self.base = base
            if base.startswith("v_cmp"):
                self.w = R[0]; self.r = set().union(*R[1:])
            elif base in ("v_readfirstlane_b32", "v_readlane_b32"):
                self.w = R[0]; self.r = set().union(*R[1:])
            elif base.startswith("v_permlane"):
                self.w = R[0] | R[1]; self.r = R[0] | R[1]
            elif base in ("v_add_co_u32", "v_sub_co_u32", "v_addc_co_u32", "v_subb_co_u32"):
                self.w = R[0] | R[1]; self.r = set().union(*R[2:])
            else:
                self.w = R[0]; self.r = set().union(*R[1:]) if len(R) > 1 else set()
                if base in ("v_fmac_f32", "v_dot2c_f32_bf16", "v_pk_fmac_f16"): self.r |= R[0]
                if base == "v_cndmask_b32" and len(ops) == 3: self.r |= {("vcc", 0)}
                if "dpp" in op or "row_" in self.mods or "quad_perm" in self.mods:
                    self.dpp = True; self.r |= R[0]
            self.trans = base in TRANS
            self.dpp = ("dpp" in op) or ("row_" in self.mods) or ("quad_perm" in self.mods)
            self.perm = base.startswith("v_permlane")
            self.rfl = base in ("v_readfirstlane_b32", "v_readlane_b32")
        elif op.startswith("buffer_") or op.startswith("global_"):
            self.kind = "vmem"
            allr = set().union(*R) if R else set()
            islds = (" lds" in (" " + self.mods)) or "_lds_" in op
            if "store" in op or ("atomic" in op and "sc0" not in self.mods):
                self.r = allr
                if "x4" in op or "x3" in op:
                    self.wide_store = R[0] if op.startswith("buffer_") else R[1]
            elif islds:
                self.r = allr | {("m0", 0)}; self.lds_dma = True
            elif op in ("buffer_wbl2", "buffer_inv"):
                pass
            else:
                self.w = R[0]; self.r = set().union(*R[1:])
                if "atomic" in op: self.r |= R[0]
        elif op.startswith("ds_"):
            self.kind = "ds"
            if "write" in op or op.startswith("ds_add") and "rtn" not in op:
                self.r = set().union(*R)
            else:
                self.w = R[0]; self.r = set().union(*R[1:])
        elif op.startswith("s_"):
            self.kind = "salu"
            if op.startswith(("s_cmp", "s_cbranch", "s_branch", "s_waitcnt", "s_barrier", "s_nop", "s_endpgm", "s_setprio", "s_sleep", "s_bitcmp")):
                self.r = set().union(*R) if R else set()
            else:
                self.w = R[0] if R else set(); self.r = set().union(*R[1:]) if len(R) > 1 else set()
                if "saveexec" in op: self.w |= {("exec", 0)}
        self.states = 1
        if op == "s_nop": self.states = int(ops[0], 0) + 1

def isv(s): return {x for x in s if x[0] in ("v", "a")}
def iss(s): return {x for x in s if x[0] in ("s", "vcc")}

def need(p, c):
    n = 0
    if p.kind == "valu":
        pw_v = isv(p.w); pw_s = iss(p.w)
        if c.kind == "mfma" and pw_v & c.r: n = max(n, 2)
        if c.kind == "valu":
            if c.rfl and pw_v & c.r: n = max(n, 1)
            if (c.perm or c.dpp) and pw_v & c.r: n = max(n, 2)
            if p.trans and not c.trans and pw_v & c.r: n = max(n, 1)
            if pw_s & c.r: n = max(n, 4 if c.base in ("v_readlane_b32", "v_writelane_b32") else 2)
        if p.base.startswith("v_dot") and c.kind in ("valu", "mfma", "vmem", "ds") and pw_v & (c.r | c.w):
            same = c.kind == "valu" and c.base == p.base
            if not same: n = max(n, 3)
            elif pw_v & (c.r - c.w): n = max(n, 3)
        if c.kind == "vmem" and pw_s & c.r: n = max(n, 5)
        if c.kind == "salu" and pw_s & c.r: n = max(n, 1)
    if p.kind == "mfma":
        big = {4: 8, 8: 12, 16: 20}[p.passes]
        if c.kind == "mfma":
            if p.w & c.srcAB: n = max(n, big)
            if p.w & c.srcC and not (p.w == c.srcC and p.passes == c.passes): n = max(n, {4: 6, 8: 10, 16: 18}[p.passes])
            if p.w & c.w and not (p.w & c.srcC): n = max(n, big)
        elif c.kind in ("valu", "vmem", "ds"):
            if p.w & (c.r | c.w): n = max(n, big)
            if c.kind == "valu" and p.srcC & c.w: n = max(n, {4: 3, 8: 7, 16: 15}[p.passes])
    if p.kind == "vmem" and p.wide_store:
        if p.wide_store & c.w: n = max(n, 2 if c.kind in ("valu", "mfma") else 1)
    if p.kind == "salu" and ("m0", 0) in p.w and c.lds_dma: n = max(n, 1)
    return n

MAXD = 21

def fix(lines):
    items = []
    for ln in lines:
        s = ln.split(";")[0].strip()
        if not s or s.startswith(".") :
            items.append(("x", ln))
        elif s.endswith(":"):
            items.append(("l", s[:-1], ln))
        else:
            items.append(("i", Ins(ln), ln))
    inserted = 0
    def maps():
        labels = {it[1]: k for k, it in enumerate(items) if it[0] == "l"}
        preds = {}
        for k, it in enumerate(items):
            if it[0] == "i" and it[1].op.startswith(("s_cbranch", "s_branch")):
                tgt = it[1].ops[0]
                if tgt in labels: preds.setdefault(labels[tgt], []).append(k)
        return preds
    def back(k, dist, c, seen, preds, first=True):
        worst = 0
        j = k - 1
        while j >= 0 and dist < MAXD:
            it = items[j]
            if it[0] == "l":
                for b in preds.get(j, []):
                    if (b, dist) not in seen:
                        seen.add((b, dist))
                        worst = max(worst, back(b + 1, dist, c, seen, preds, True))
            elif it[0] == "i":
                p = it[1]
                if p.op in ("s_branch", "s_endpgm") and not (first and j == k - 1 and p.op == "s_branch"):
                    break
                n = need(p, c)
                if n > dist: worst = max(worst, n - dist)
                dist += p.states
            j -= 1
        return worst
    for _ in range(4):
        changed = False
        preds = maps()
        k = 0
        while k < len(items):
            it = items[k]
            if it[0] == "i":
                short = back(k, 0, it[1], set(), preds, False)
                if short > 0:
                    nn = short
                    new = []
                    while nn > 0:
                        t = min(nn, 16)
                        txt = f"    s_nop {t-1}"
                        new.append(("i", Ins(txt), txt)); nn -= t
                    items[k:k] = new
                    inserted += short
                    changed = True
                    k += len(new)
                    preds = maps()
            k += 1
        if not changed: break
    return [it[-1] for it in items], inserted
```

```python
import sys, struct
from asmlib import *
import hazard

MB = 1 << 20
K_OFF = 8 * MB
V_OFF = 12 * MB
O_OFF = 16 * MB
H_OFF = 20 * MB
H1_OFF = 24 * MB
FL_OFF = 40 * MB
RS1_OFF = 41 * MB
CSG_OFF = 42 * MB
ST2_OFF = 43 * MB
DIAG_OFF = 64 * MB
LOG2E = 1.4426950408889634
KNAME = "sequential_preLN__sliding_block__dense_activation_silu__prompt_kernel"
P_X, P_WQKV, P_WO, P_W1, P_W2, P_OUT, P_DBG, P_WS = 80, 82, 84, 88, 90, 92, 94, 4
TAG = 72
FLS = 76
ST = 155648
ST_REC, ST_MEAN, ST_RSTD, ST_CS, ST_CSP = ST, ST + 2048, ST + 2560, ST + 3072, ST + 4096
HEADW = 57344
XB0 = 122880
XB1 = 81920
ST_TAG = ST + 4096
HRES = 232
VS = 254
DIAG = False
OPT = dict(pf=2, prio=0, inv=0)

def f32(x):
    return "0x%08x" % struct.unpack("<I", struct.pack("<f", x))[0]

def srd_off(a, d, ptr, off, nrec):
    a(f"s_add_u32 s{d}, s{ptr}, {off}")
    a(f"s_addc_u32 s{d+1}, s{ptr+1}, 0")
    a(f"s_mov_b32 s{d+2}, {nrec}")
    a(f"s_mov_b32 s{d+3}, 0x20000")

def stamp(a, idx):
    if not DIAG: return
    a("s_memrealtime s[96:97]")
    a("s_waitcnt lgkmcnt(0)")
    a(f"v_writelane_b32 v{VS}, s96, {idx}")

def stamp_flush(a):
    if not DIAG: return
    srd_off(a, 16, P_WS, DIAG_OFF, 524288)
    a(f"""
    s_lshl_b32 s30, s2, 11
    s_lshl_b32 s31, s3, 8
    s_add_u32 s30, s30, s31
    v_lshlrev_b32 v{VS+1}, 2, v1
    buffer_store_dword v{VS}, v{VS+1}, s[16:19], s30 offen
    """)

def wgmap(a, RX, CX):
    CT = 16 // CX; RB = 16 // RX
    lg = lambda x: x.bit_length() - 1
    a(f"""
    s_and_b32 s30, s2, 7
    s_lshr_b32 s31, s2, 3
    s_lshr_b32 s24, s30, {lg(CX)}
    s_lshl_b32 s24, s24, {lg(RB)}
    s_and_b32 s25, s30, {CX-1}
    s_lshl_b32 s25, s25, {lg(CT)}
    s_lshr_b32 s30, s31, {lg(CT)}
    s_add_u32 s24, s24, s30
    s_and_b32 s30, s31, {CT-1}
    s_add_u32 s25, s25, s30
    """)

def signal(a, seam, slot_shift, t):
    a(f"""
    s_lshl_b32 s30, s24, 10
    s_lshl_b32 s31, s25, {slot_shift+3}
    s_add_u32 s30, s30, s31
    s_lshl_b32 s31, s3, 3
    s_add_u32 s30, s30, s31
    s_add_u32 s30, s30, {seam*16384}
    v_mov_b32 v{t}, s{TAG}
    v_mov_b32 v{t+1}, s{TAG+1}
    v_mov_b32 v{t+2}, 0
    s_waitcnt vmcnt(0)
    s_mov_b64 exec, 1
    buffer_store_dwordx2 v[{t}:{t+1}], v{t+2}, s[{FLS}:{FLS+3}], s30 offen sc0 sc1
    s_mov_b64 exec, -1
    """)

def wait_flags(a, voff, soff, wide, t):
    lp = a.label("poll"); dn = a.label("polld")
    a(f"s_mov_b32 s39, 0x100000")
    if OPT["inv"] == 1: a("buffer_inv sc1")
    a(f"{lp}:")
    if wide:
        a(f"buffer_load_dwordx4 v[{t}:{t+3}], v{voff}, s[{FLS}:{FLS+3}], {soff} offen sc0 sc1")
    else:
        a(f"buffer_load_dwordx2 v[{t}:{t+1}], v{voff}, s[{FLS}:{FLS+3}], {soff} offen sc0 sc1")
    a("s_waitcnt vmcnt(0)")
    a(f"v_cmp_eq_u64 vcc, s[{TAG}:{TAG+1}], v[{t}:{t+1}]")
    if wide:
        a(f"v_cmp_eq_u64 s[36:37], s[{TAG}:{TAG+1}], v[{t+2}:{t+3}]")
        a("s_nop 3")
        a("s_and_b64 vcc, vcc, s[36:37]")
    else:
        a("s_nop 3")
    a(f"""
    s_cmp_eq_u64 vcc, -1
    s_cbranch_scc1 {dn}
    s_sleep 1
    s_sub_u32 s39, s39, 1
    s_cmp_lg_u32 s39, 0
    s_cbranch_scc1 {lp}
    {dn}:
    """)
    if OPT["inv"] == 2: a("buffer_inv sc1")

class G: pass

def mk(kind, **kw):
    c = G(); c.kind = kind; c.__dict__.update(kw)
    c.n = c.K // 64
    c.BB = c.BN * 128
    c.NBW = c.BB // 4096
    c.gmul = 4 if c.korder == "F" else 8
    c.rdrows = 16 if c.korder == "F" else 4
    c.RS = 128 if c.layout == "panel" else 448
    return c

CFG = dict(
    qkv=dict(K=1024, BN=192, NT=6, S=3, korder="N", layout="panel", wp=P_WQKV, ldb=6144, bcol=128, pstride=2048,
             a_off=None, normal_tiles=(4, 5), RX=2, CX=4, rpg=1, ABASE=0, BBASE=49152, ln=True, sid=0),
    wo=dict(K=1024, BN=64, NT=2, S=5, korder="F", layout="panel", wp=P_WO, ldb=2048, bcol=128, pstride=0,
            a_off=O_OFF, normal_tiles=(), RX=4, CX=2, rpg=2, ABASE=0, BBASE=114688, ln=False, sid=16),
    w1=dict(K=1024, BN=224, NT=7, S=3, korder="F", layout="w1", wp=P_W1, ldb=7168, bcol=448, pstride=0,
            a_off=H_OFF, normal_tiles=(), RX=2, CX=4, rpg=1, ABASE=0, BBASE=49152, ln=True, sid=24),
    w2=dict(K=3584, BN=64, NT=2, S=6, korder="F", layout="panel", wp=P_W2, ldb=2048, bcol=128, pstride=0,
            a_off=H1_OFF, normal_tiles=(), RX=4, CX=2, rpg=2, ABASE=0, BBASE=98304, ln=False, sid=32),
)

def gemm_consumer(a, c):
    kind = c.kind; n = c.n; S = c.S; NT = c.NT; RS = c.RS
    vA0, vA10, vB00, vB01, vB02, vA, vA1, vB0, vB1, vB2 = 2, 3, 4, 5, 6, 7, 8, 9, 10, 11
    vG = 12; vCH = 13
    t0, t1 = 14, 15
    ACC = 16
    FX = ACC + 16 * NT
    FSZ = 16 + 4 * NT
    FY = FX + FSZ
    VTOP = FY + FSZ
    acc = lambda mt, nt: ACC + (nt * 4 + mt) * 4
    wgmap(a, c.RX, c.CX)
    T = FX
    if kind == "qkv": row_stats_issue(a, FY)
    a(f"""
    s_lshr_b32 s34, s3, 1
    s_and_b32 s35, s3, 1
    v_lshlrev_b32 v{vCH}, 4, v1
    s_lshl_b32 s30, s34, 12
    v_add_u32 v{vCH}, s30, v{vCH}
    v_lshrrev_b32 v{vG}, 4, v1
    v_bfe_u32 v{T}, v1, 2, 2
    v_and_b32 v{T+1}, 3, v1
    """)
    if c.a_off is None:
        a(f"""
        v_and_b32 v{t0}, 15, v1
        v_lshrrev_b32 v{t1}, 1, v{t0}
        v_xor_b32 v{t1}, v{t1}, v{vG}
        v_lshlrev_b32 v{t1}, 4, v{t1}
        v_lshl_add_u32 v{vA0}, v{t0}, 7, v{t1}
        s_lshl_b32 s30, s34, 13
        v_add_u32 v{vA0}, s30, v{vA0}
        v_xor_b32 v{vA10}, 64, v{vA0}
        """)
        aread = lambda mt, kg: ((vA, vA1)[kg], mt * 2048)
    else:
        a(f"v_mov_b32 v{vA0}, v{vCH}")
        aread = lambda mt, kg: (vA, kg * 8192 + mt * 1024)
    if c.layout == "panel":
        a(f"""
        v_mul_u32_u24 v{t0}, {c.gmul}, v{vG}
        v_add_u32 v{t0}, v{t0}, v{T}
        v_lshlrev_b32 v{t0}, 7, v{t0}
        v_lshl_add_u32 v{t0}, v{T+1}, 3, v{t0}
        v_lshrrev_b32 v{t1}, 1, v{T}
        v_and_b32 v{T+2}, 1, v{vG}
        v_lshl_or_b32 v{t1}, v{T+2}, 1, v{t1}
        s_lshl_b32 s30, s35, 1
        v_xor_b32 v{t1}, s30, v{t1}
        v_lshl_add_u32 v{vB00}, v{t1}, 5, v{t0}
        v_xor_b32 v{t1}, 1, v{t1}
        v_lshl_add_u32 v{vB01}, v{t1}, 5, v{t0}
        """)
        def bread(nt, kg, rd):
            return (vB0 if nt % 2 == 0 else vB1), (nt // 2) * 8192 + kg * 32 * RS + rd * c.rdrows * RS
    else:
        a(f"""
        v_mul_u32_u24 v{t0}, {c.gmul}, v{vG}
        v_add_u32 v{t0}, v{t0}, v{T}
        v_mul_u32_u24 v{t0}, {RS}, v{t0}
        v_lshl_add_u32 v{t0}, v{T+1}, 3, v{t0}
        v_and_b32 v{t1}, 1, v{vG}
        v_lshlrev_b32 v{T+2}, 5, v{t1}
        s_lshl_b32 s30, s35, 8
        v_add_u32 v{T+3}, s30, v{t0}
        v_add_u32 v{vB00}, v{T+3}, v{T+2}
        v_sub_u32 v{vB01}, v{T+3}, v{T+2}
        s_add_u32 s30, s35, 6
        v_xor_b32 v{t1}, s30, v{t1}
        v_lshl_add_u32 v{vB02}, v{t1}, 5, v{t0}
        """)
        def bread(nt, kg, rd):
            o = kg * 32 * RS + rd * c.rdrows * RS
            if nt == 6: return vB2, o
            return (vB0 if nt % 2 == 0 else vB1), o + nt * 32
    RES = VTOP
    if kind == "wo":
        srd_off(a, 20, P_X, 0, 4 * MB)
        a(f"""
        v_and_b32 v{t0}, 15, v1
        v_lshlrev_b32 v{t0}, 11, v{t0}
        v_lshl_add_u32 v{t0}, v{vG}, 3, v{t0}
        s_lshl_b32 s30, s24, 18
        s_lshl_b32 s31, s34, 17
        s_add_u32 s30, s30, s31
        s_lshl_b32 s31, s25, 7
        s_add_u32 s30, s30, s31
        s_lshl_b32 s31, s35, 6
        s_add_u32 s30, s30, s31
        """)
        for mt in range(4):
            for nt in range(2):
                r = RES + mt * 4 + nt * 2
                a(f"buffer_load_dwordx2 v[{r}:{r+1}], v{t0}, s[20:23], s30 offen offset:{nt*32}")
            a("s_add_u32 s30, s30, 32768")
    for i in range(16 * NT):
        a(f"v_mov_b32 v{ACC+i}, 0")
    abases = [(vA, vA0)] + ([(vA1, vA10)] if c.a_off is None else [])
    bbases = [(vB0, vB00), (vB1, vB01)] + ([(vB2, vB02)] if c.layout != "panel" else [])
    a(f"s_mov_b32 s27, {c.ABASE}")
    a(f"s_mov_b32 s32, {c.BBASE}")
    setb = [f"v_add_u32 v{x}, s27, v{y}" for x, y in abases] + [f"v_add_u32 v{x}, s32, v{y}" for x, y in bbases]
    for x in setb: a(x)
    a(f"s_mov_b32 s26, {n}")
    def reads(F, kg):
        r = []
        for nt in range(NT):
            for rd in range(2):
                b, o = bread(nt, kg, rd)
                d = F + 16 + nt * 4 + rd * 2
                r.append(f"ds_read_b64_tr_b16 v[{d}:{d+1}], v{b} offset:{o}")
            if nt == 0:
                for mt in range(4):
                    d = F + mt * 4
                    b, o = aread(mt, kg)
                    r.append(f"ds_read_b128 v[{d}:{d+3}], v{b} offset:{o}")
        return r
    def mfmas(F):
        m = []
        for nt in range(NT):
            for mt in range(4):
                A = F + mt * 4; B = F + 16 + nt * 4; D = acc(mt, nt)
                if nt in c.normal_tiles:
                    m.append(f"v_mfma_f32_16x16x32_bf16 v[{D}:{D+3}], v[{A}:{A+3}], v[{B}:{B+3}], v[{D}:{D+3}]")
                else:
                    m.append(f"v_mfma_f32_16x16x32_bf16 v[{D}:{D+3}], v[{B}:{B+3}], v[{A}:{A+3}], v[{D}:{D+3}]")
        return m
    loop = a.label("c_loop")
    if kind == "qkv": row_stats_finish(a, FY, FX)
    stamp(a, c.sid)
    a("s_barrier")
    stamp(a, c.sid + 1)
    for r in reads(FX, 0): a(r)
    a(f"{loop}:")
    a("s_waitcnt lgkmcnt(0)")
    adv = [f"s_add_u32 s27, s27, 16384", f"s_add_u32 s32, s32, {c.BB}", f"s_cmp_eq_u32 s27, {c.ABASE + S*16384}",
           f"s_cselect_b32 s27, {c.ABASE}, s27", f"s_cselect_b32 s32, {c.BBASE}, s32"] + setb
    for x in interleave(mfmas(FX), reads(FY, 1) + adv, 0, 1, c.rpg): a(x)
    a("s_waitcnt lgkmcnt(0)")
    a("s_barrier")
    for x in interleave(mfmas(FY), reads(FX, 0) + ["s_sub_u32 s26, s26, 1", "s_cmp_lg_u32 s26, 0"], 0, 1, c.rpg): a(x)
    a(f"s_cbranch_scc1 {loop}")
    a("s_waitcnt lgkmcnt(0)")
    stamp(a, c.sid + 2)
    def pk4(t, p0, p1):
        a(f"v_cvt_pk_bf16_f32 v{t}, v{p0}, v{p0+1}")
        a(f"v_cvt_pk_bf16_f32 v{t+1}, v{p0+2}, v{p0+3}")
        a(f"v_cvt_pk_bf16_f32 v{t+2}, v{p1}, v{p1+1}")
        a(f"v_cvt_pk_bf16_f32 v{t+3}, v{p1+2}, v{p1+3}")
    if kind == "qkv":
        REC = T
        CSQ = T + 16
        MV = T + 32
        RV = T + 48
        CSV = T + 64
        a(f"""
        v_and_b32 v{t0}, 15, v1
        v_lshlrev_b32 v{vA}, 4, v{t0}
        s_lshl_b32 s30, s34, 10
        s_add_u32 s30, s30, {ST_REC}
        v_add_u32 v{vA}, s30, v{vA}
        v_lshlrev_b32 v{vA1}, 4, v{vG}
        s_lshl_b32 s30, s35, 7
        s_add_u32 s30, s30, {ST_CS}
        v_add_u32 v{vB0}, s30, v{vA1}
        v_lshlrev_b32 v{vB1}, 2, v{t0}
        v_add_u32 v{vB1}, s30, v{vB1}
        s_lshl_b32 s30, s34, 8
        s_add_u32 s30, s30, {ST_MEAN}
        v_add_u32 v{vA1}, s30, v{vA1}
        """)
        for mt in range(4):
            a(f"ds_read_b128 v[{REC+4*mt}:{REC+4*mt+3}], v{vA} offset:{mt*256}")
        for nt in range(4):
            a(f"ds_read_b128 v[{CSQ+4*nt}:{CSQ+4*nt+3}], v{vB0} offset:{(nt//2)*256 + (nt%2)*64}")
        for mt in range(4):
            a(f"ds_read_b128 v[{MV+4*mt}:{MV+4*mt+3}], v{vA1} offset:{mt*64}")
            a(f"ds_read_b128 v[{RV+4*mt}:{RV+4*mt+3}], v{vA1} offset:{512 + mt*64}")
        for dt in range(2):
            a(f"ds_read_b32 v{CSV+dt}, v{vB1} offset:{512 + dt*64}")
        srd_off(a, 16, P_WS, K_OFF, 8 * MB)
        a(f"""
        s_lshl_b32 s30, s25, 1
        s_add_u32 s30, s30, s35
        s_lshl_b32 s30, s30, 17
        s_lshl_b32 s31, s24, 13
        s_add_u32 s30, s30, s31
        s_add_u32 s31, s30, {4*MB}
        s_mul_i32 s33, s35, {HEADW}
        v_add_u32 v{vB2}, s33, v{vCH}
        s_waitcnt lgkmcnt(10)
        """)
        def fold_sw(mt, nt):
            p = acc(mt, nt); m = REC + 4 * mt; cs = CSQ + 4 * nt
            for h in range(2):
                a(f"v_pk_fma_f32 v[{p+2*h}:{p+2*h+1}], v[{m}:{m+1}], v[{cs+2*h}:{cs+2*h+1}], v[{p+2*h}:{p+2*h+1}] op_sel_hi:[0,1,1] neg_lo:[1,0,0] neg_hi:[1,0,0]")
            for h in range(2):
                a(f"v_pk_mul_f32 v[{p+2*h}:{p+2*h+1}], v[{m}:{m+1}], v[{p+2*h}:{p+2*h+1}] op_sel:[1,0] op_sel_hi:[1,1]")
        for mt in range(4):
            fold_sw(mt, 2); fold_sw(mt, 3)
            t = acc(mt, 2); pk4(t, acc(mt, 2), acc(mt, 3))
            a(f"buffer_store_dwordx4 v[{t}:{t+3}], v{vCH}, s[16:19], s30 offen offset:{mt*1024} sc0 sc1")
            a(f"ds_write_b128 v{vB2}, v[{t}:{t+3}] offset:{16384 + mt*1024}")
        a("s_waitcnt lgkmcnt(4)")
        for mp in range(2):
            for dt in range(2):
                for mt in (2 * mp, 2 * mp + 1):
                    p = acc(mt, 4 + dt)
                    sel = "op_sel_hi:[1,0,1]" if dt == 0 else "op_sel:[0,1,0] op_sel_hi:[1,1,1]"
                    for h in range(2):
                        a(f"v_pk_fma_f32 v[{p+2*h}:{p+2*h+1}], v[{MV+4*mt+2*h}:{MV+4*mt+2*h+1}], v[{CSV}:{CSV+1}], v[{p+2*h}:{p+2*h+1}] {sel} neg_lo:[1,0,0] neg_hi:[1,0,0]")
                    for h in range(2):
                        a(f"v_pk_mul_f32 v[{p+2*h}:{p+2*h+1}], v[{RV+4*mt+2*h}:{RV+4*mt+2*h+1}], v[{p+2*h}:{p+2*h+1}]")
                t = acc(2 * mp, 4 + dt); pk4(t, acc(2 * mp, 4 + dt), acc(2 * mp + 1, 4 + dt))
                a(f"buffer_store_dwordx4 v[{t}:{t+3}], v{vCH}, s[16:19], s31 offen offset:{(2*mp+dt)*1024} sc0 sc1")
                a(f"ds_write_b128 v{vB2}, v[{t}:{t+3}] offset:{24576 + 16384 + (2*mp+dt)*1024}")
        for mt in range(4):
            fold_sw(mt, 0); fold_sw(mt, 1)
            t = acc(mt, 0); pk4(t, acc(mt, 0), acc(mt, 1))
            a(f"ds_write_b128 v{vB2}, v[{t}:{t+3}] offset:{49152 + mt*1024}")
        stamp(a, c.sid + 3)
        signal(a, 0, 2, T)
        stamp(a, c.sid + 4)
        a("s_waitcnt lgkmcnt(0)")
    elif kind == "wo":
        srd_off(a, 16, P_WS, H_OFF, 4 * MB)
        a(f"""
        s_lshl_b32 s30, s24, 18
        s_lshl_b32 s31, s25, 14
        s_add_u32 s30, s30, s31
        s_lshl_b32 s31, s35, 13
        s_add_u32 s30, s30, s31
        s_mov_b32 s36, 0xffff0000
        s_waitcnt vmcnt(0)
        """)
        for mt in range(4):
            for nt in range(2):
                r = RES + mt * 4 + nt * 2; p = acc(mt, nt)
                for d in range(2):
                    a(f"v_lshlrev_b32 v{T}, 16, v{r+d}")
                    a(f"v_and_b32 v{T+1}, s36, v{r+d}")
                    a(f"v_pk_add_f32 v[{p+2*d}:{p+2*d+1}], v[{p+2*d}:{p+2*d+1}], v[{T}:{T+1}]")
            t = HRES + mt * 4
            pk4(t, acc(mt, 0), acc(mt, 1))
            a(f"buffer_store_dwordx4 v[{t}:{t+3}], v{vCH}, s[16:19], s30 offen offset:{mt*1024} sc0 sc1")
        SS = T + 4
        for mt in range(4):
            p0 = acc(mt, 0); p1 = acc(mt, 1)
            s_, q_ = SS + 2 * mt, SS + 2 * mt + 1
            a(f"v_pk_add_f32 v[{T}:{T+1}], v[{p0}:{p0+1}], v[{p0+2}:{p0+3}]")
            a(f"v_pk_mul_f32 v[{T+2}:{T+3}], v[{p0}:{p0+1}], v[{p0}:{p0+1}]")
            a(f"v_pk_add_f32 v[{T}:{T+1}], v[{T}:{T+1}], v[{p1}:{p1+1}]")
            a(f"v_pk_fma_f32 v[{T+2}:{T+3}], v[{p0+2}:{p0+3}], v[{p0+2}:{p0+3}], v[{T+2}:{T+3}]")
            a(f"v_pk_add_f32 v[{T}:{T+1}], v[{T}:{T+1}], v[{p1+2}:{p1+3}]")
            a(f"v_pk_fma_f32 v[{T+2}:{T+3}], v[{p1}:{p1+1}], v[{p1}:{p1+1}], v[{T+2}:{T+3}]")
            a(f"v_pk_fma_f32 v[{T+2}:{T+3}], v[{p1+2}:{p1+3}], v[{p1+2}:{p1+3}], v[{T+2}:{T+3}]")
            a(f"v_add_f32 v{s_}, v{T}, v{T+1}")
            a(f"v_add_f32 v{q_}, v{T+2}, v{T+3}")
        for mt in range(4):
            s_, q_ = SS + 2 * mt, SS + 2 * mt + 1
            a(f"v_permlane32_swap_b32 v{s_}, v{q_}")
            a(f"v_add_f32 v{s_}, v{s_}, v{q_}")
        srd_off(a, 20, P_WS, ST2_OFF, 16 * 32768)
        a(f"""
        v_and_b32 v{t0}, 31, v1
        v_lshlrev_b32 v{t0}, 2, v{t0}
        v_lshrrev_b32 v{t1}, 5, v1
        v_lshl_add_u32 v{t0}, v{t1}, 9, v{t0}
        s_lshl_b32 s30, s24, 15
        s_lshl_b32 s31, s25, 11
        s_add_u32 s30, s30, s31
        s_lshl_b32 s31, s35, 10
        s_add_u32 s30, s30, s31
        s_lshl_b32 s31, s34, 8
        s_add_u32 s30, s30, s31
        """)
        for mp in range(2):
            x0 = SS + 4 * mp; x1 = SS + 4 * mp + 2
            a(f"v_permlane16_swap_b32 v{x0}, v{x1}")
            a(f"v_add_f32 v{x0}, v{x0}, v{x1}")
            a(f"buffer_store_dword v{x0}, v{t0}, s[20:23], s30 offen offset:{mp*128} sc0 sc1")
        stamp(a, c.sid + 3)
        signal(a, 2, 2, T)
        stamp(a, c.sid + 4)
    elif kind == "w1":
        srd_off(a, 16, P_WS, H1_OFF, 14 * MB)
        CSR = T; REC = T + 28; E = T + 44
        a(f"""
        v_and_b32 v{t0}, 15, v1
        v_lshlrev_b32 v{vA}, 4, v{t0}
        s_lshl_b32 s30, s34, 10
        s_add_u32 s30, s30, {ST_REC}
        v_add_u32 v{vA}, s30, v{vA}
        v_lshlrev_b32 v{t1}, 4, v{vG}
        s_lshl_b32 s30, s35, 9
        s_add_u32 s30, s30, {ST_CS}
        v_add_u32 v{vB0}, s30, v{t1}
        s_lshl_b32 s30, s35, 6
        s_add_u32 s30, s30, {ST_CS}
        v_add_u32 v{vB1}, s30, v{t1}
        """)
        for mt in range(4):
            a(f"ds_read_b128 v[{REC+4*mt}:{REC+4*mt+3}], v{vA} offset:{mt*256}")
        for nt in range(6):
            a(f"ds_read_b128 v[{CSR+4*nt}:{CSR+4*nt+3}], v{vB0} offset:{nt*64}")
        a(f"ds_read_b128 v[{CSR+24}:{CSR+27}], v{vB1} offset:{6*64}")
        a(f"""
        s_mul_i32 s30, s24, {112*8192}
        s_mul_i32 s31, s25, {7*8192}
        s_add_u32 s30, s30, s31
        s_add_u32 s36, s30, {3*8192}
        s_lshl_b32 s31, s35, 15
        s_add_u32 s30, s30, s31
        s_add_u32 s31, s30, 8192
        s_add_u32 s37, s30, 16384
        s_lshl_b32 s33, s35, 3
        v_add_u32 v{vB2}, s33, v{vCH}
        s_waitcnt lgkmcnt(0)
        """)
        soffs = ["s30", "s31", "s37"]
        def silu(mt, nt, e):
            p = acc(mt, nt); m = REC + 4 * mt; cs = CSR + 4 * nt
            for h in range(2):
                a(f"v_pk_fma_f32 v[{p+2*h}:{p+2*h+1}], v[{m}:{m+1}], v[{cs+2*h}:{cs+2*h+1}], v[{p+2*h}:{p+2*h+1}] op_sel_hi:[0,1,1] neg_lo:[1,0,0] neg_hi:[1,0,0]")
            for h in range(2):
                a(f"v_pk_mul_f32 v[{e+2*h}:{e+2*h+1}], v[{m+2}:{m+3}], v[{p+2*h}:{p+2*h+1}] op_sel_hi:[0,1]")
            for r in range(4):
                a(f"v_exp_f32 v{e+r}, v{e+r}")
            for h in range(2):
                a(f"v_pk_fma_f32 v[{e+2*h}:{e+2*h+1}], v[{e+2*h}:{e+2*h+1}], v[{m+2}:{m+3}], v[{m+2}:{m+3}] op_sel:[0,1,1] op_sel_hi:[1,1,1]")
            for r in range(4):
                a(f"v_rcp_f32 v{e+r}, v{e+r}")
            for h in range(2):
                a(f"v_pk_mul_f32 v[{p+2*h}:{p+2*h+1}], v[{p+2*h}:{p+2*h+1}], v[{e+2*h}:{e+2*h+1}]")
        for mt in range(4):
            silu(mt, 6, E + (mt % 2) * 4)
            p = acc(mt, 6)
            a(f"v_cvt_pk_bf16_f32 v{p}, v{p}, v{p+1}")
            a(f"v_cvt_pk_bf16_f32 v{p+1}, v{p+2}, v{p+3}")
            a(f"ds_write_b64 v{vB2}, v[{p}:{p+1}] offset:{mt*1024}")
        a("s_waitcnt lgkmcnt(0)")
        a("s_barrier")
        a(f"""
        s_lshl_b32 s33, s35, 11
        v_add_u32 v{vB2}, s33, v{vCH}
        ds_read_b128 v[{acc(0,6)}:{acc(0,6)+3}], v{vB2}
        ds_read_b128 v[{acc(1,6)}:{acc(1,6)+3}], v{vB2} offset:1024
        """)
        for nt in range(6):
            for mt in range(4):
                silu(mt, nt, E + (mt % 2) * 4)
                if nt % 2 == 1:
                    p0 = acc(mt, nt - 1)
                    pk4(p0, p0, acc(mt, nt))
                    a(f"buffer_store_dwordx4 v[{p0}:{p0+3}], v{vCH}, s[16:19], {soffs[nt//2]} offen offset:{mt*1024} sc0 sc1")
            if nt == 0:
                a("s_waitcnt lgkmcnt(0)")
                a(f"buffer_store_dwordx4 v[{acc(0,6)}:{acc(0,6)+3}], v{vB2}, s[16:19], s36 offen sc0 sc1")
                a(f"buffer_store_dwordx4 v[{acc(1,6)}:{acc(1,6)+3}], v{vB2}, s[16:19], s36 offen offset:1024 sc0 sc1")
                a("s_barrier")
        stamp(a, c.sid + 3)
        signal(a, 3, 2, T)
        stamp(a, c.sid + 4)
    elif kind == "w2":
        srd_off(a, 16, P_OUT, 0, 4 * MB)
        a(f"""
        v_and_b32 v{t0}, 15, v1
        v_lshlrev_b32 v{t0}, 11, v{t0}
        v_and_b32 v{t1}, 1, v{vG}
        v_lshl_add_u32 v{t0}, v{t1}, 5, v{t0}
        v_lshrrev_b32 v{t1}, 1, v{vG}
        v_lshl_add_u32 v{t0}, v{t1}, 4, v{t0}
        s_lshl_b32 s30, s24, 18
        s_lshl_b32 s31, s34, 17
        s_add_u32 s30, s30, s31
        s_lshl_b32 s31, s25, 7
        s_add_u32 s30, s30, s31
        s_lshl_b32 s31, s35, 6
        s_add_u32 s30, s30, s31
        s_mov_b32 s36, 0xffff0000
        """)
        for mt in range(4):
            for nt in range(2):
                r = HRES + mt * 4 + nt * 2; p = acc(mt, nt)
                for d in range(2):
                    a(f"v_lshlrev_b32 v{T+16}, 16, v{r+d}")
                    a(f"v_and_b32 v{T+17}, s36, v{r+d}")
                    a(f"v_pk_add_f32 v[{p+2*d}:{p+2*d+1}], v[{p+2*d}:{p+2*d+1}], v[{T+16}:{T+17}]")
            t = T + mt * 4
            pk4(t, acc(mt, 0), acc(mt, 1))
            a(f"v_permlane16_swap_b32 v{t}, v{t+2}")
            a(f"v_permlane16_swap_b32 v{t+1}, v{t+3}")
            a(f"buffer_store_dwordx4 v[{t}:{t+3}], v{t0}, s[16:19], s30 offen")
            a("s_add_u32 s30, s30, 32768")
        stamp(a, c.sid + 3)
        if DIAG:
            a("s_waitcnt vmcnt(0)")
            stamp(a, c.sid + 4)

PV_A = 4
PV_B = 8
PV_SA = 16
PV_SB = 18
PV_RD = 32
PV_ACC = 80

def prod_setup(a, c):
    n = c.n
    wgmap(a, c.RX, c.CX)
    if c.a_off is None:
        a("s_lshl_b32 s30, s24, 18")
        srd_off(a, 8, P_X, "s30", 262144)
        for i in range(4):
            a(f"""
            v_lshrrev_b32 v2, 3, v1
            v_lshrrev_b32 v3, 4, v1
            v_add_u32 v3, {4*(i&1)}, v3
            v_and_b32 v{PV_A+i}, 7, v1
            v_xor_b32 v3, v3, v{PV_A+i}
            v_lshlrev_b32 v3, 4, v3
            v_lshl_add_u32 v3, v2, 11, v3
            s_lshl_b32 s30, s38, 16
            s_add_u32 s30, s30, {i*8*2048 - i*1024}
            v_add_u32 v{PV_A+i}, s30, v3
            """)
        c.astep = 128
    else:
        a(f"s_mul_i32 s30, s24, {n*16384}")
        a(f"s_add_u32 s30, s30, {c.a_off}")
        srd_off(a, 8, P_WS, "s30", n * 16384)
        a(f"""
        s_lshl_b32 s30, s38, 12
        v_lshlrev_b32 v{PV_A}, 4, v1
        v_add_u32 v{PV_A}, s30, v{PV_A}
        """)
        c.astep = 16384
    a(f"""
    s_lshl_b32 s34, s38, 12
    s_mul_i32 s35, s38, {c.NBW*1024}
    """)
    b_setup(a, c, PV_B, 12)
    a(f"""
    s_mov_b32 s27, {c.ABASE}
    s_mov_b32 s32, {c.BBASE}
    s_mov_b32 s28, 0
    s_mov_b32 s29, 0
    """)

def b_setup(a, c, dst, sr_):
    a(f"s_mul_i32 s30, s25, {c.bcol}")
    a(f"s_sub_u32 s31, {c.K*c.ldb}, s30")
    srd_off(a, sr_, c.wp, "s30", "s31")
    a(f"""
    s_mul_i32 s30, s38, {c.NBW*64}
    s_mov_b32 s36, {c.ldb}
    """)
    for i in range(c.NBW):
        a(f"s_add_u32 s31, s30, {i*64}")
        a(f"v_add_u32 v3, s31, v1")
        d = dst + i
        if c.layout == "panel":
            a("v_bfe_u32 v2, v3, 3, 6")
            if c.korder == "F":
                a(f"v_bfe_u32 v{d}, v2, 1, 2")
            else:
                a(f"v_bfe_u32 v{d}, v2, 1, 1")
                a("v_bfe_u32 v15, v2, 3, 1")
                a(f"v_lshl_or_b32 v{d}, v15, 1, v{d}")
            a(f"""
            v_lshlrev_b32 v{d}, 1, v{d}
            v_and_b32 v15, 7, v3
            v_xor_b32 v{d}, v{d}, v15
            v_mul_lo_u32 v2, v2, s36
            v_lshl_add_u32 v{d}, v{d}, 4, v2
            """)
            if c.pstride:
                a(f"""
                v_lshrrev_b32 v3, 9, v3
                v_mul_u32_u24 v3, {c.pstride}, v3
                v_add_u32 v{d}, v{d}, v3
                """)
        else:
            a(f"""
            v_mul_u32_u24 v2, 2341, v3
            v_lshrrev_b32 v2, 16, v2
            v_mul_u32_u24 v15, 28, v2
            v_sub_u32 v3, v3, v15
            v_bfe_u32 v15, v2, 2, 1
            v_lshlrev_b32 v15, 1, v15
            v_xor_b32 v3, v3, v15
            v_mul_lo_u32 v2, v2, s36
            v_lshl_add_u32 v{d}, v3, 4, v2
            """)
        if i & 3: a(f"v_subrev_u32 v{d}, {(i&3)*1024}, v{d}")

def issueA(a, c):
    a("s_add_u32 m0, s27, s34")
    for i in range(4):
        v = PV_A + (i if c.a_off is None else 0)
        a(f"buffer_load_dwordx4 v{v}, s[8:11], s28 offen offset:{i*1024}{'' if c.a_off is None else ' sc1'} lds")
    a(f"""
    s_add_u32 s28, s28, {c.astep}
    s_add_u32 s27, s27, 16384
    s_cmp_eq_u32 s27, {c.ABASE + c.S*16384}
    s_cselect_b32 s27, {c.ABASE}, s27
    """)

def issueB(a, c):
    for i in range(c.NBW):
        if i % 4 == 0:
            a("s_add_u32 m0, s32, s35")
            if i: a(f"s_add_u32 m0, m0, {i*1024}")
        a(f"buffer_load_dwordx4 v{PV_B+i}, s[12:15], s29 offen offset:{(i&3)*1024} lds")
    a(f"""
    s_add_u32 s29, s29, {64*c.ldb}
    s_add_u32 s32, s32, {c.BB}
    s_cmp_eq_u32 s32, {c.BBASE + c.S*c.BB}
    s_cselect_b32 s32, {c.BBASE}, s32
    """)

def colsum_tile(a, c, lds_base, wsg, which, R):
    AD = R; ACCU = R + 4; D = R + 8; t = R + 40
    a(f"""
    v_lshrrev_b32 v{t}, 4, v1
    v_bfe_u32 v{t+1}, v1, 2, 2
    v_mul_u32_u24 v{t+2}, {c.gmul}, v{t}
    v_add_u32 v{t+2}, v{t+2}, v{t+1}
    v_mul_u32_u24 v{t+2}, {c.RS}, v{t+2}
    v_and_b32 v{t+3}, 3, v1
    v_lshl_add_u32 v{t+2}, v{t+3}, 3, v{t+2}
    v_and_b32 v{t}, 1, v{t}
    s_lshl_b32 s30, {wsg}, {13 if c.layout == "panel" else 7}
    s_add_u32 s30, s30, {lds_base}
    v_add_u32 v{t+2}, s30, v{t+2}
    """)
    if c.layout == "panel":
        a(f"v_lshrrev_b32 v{t+1}, 1, v{t+1}")
        a(f"v_lshl_or_b32 v{t}, v{t}, 1, v{t+1}")
    for ts in range(4):
        a(f"v_xor_b32 v{t+3}, {ts}, v{t}")
        a(f"v_lshl_add_u32 v{AD+ts}, v{t+3}, 5, v{t+2}")
    for q in range(4):
        for ts in range(4):
            d = D + (q * 4 + ts) * 2
            a(f"ds_read_b64_tr_b16 v[{d}:{d+1}], v{AD+ts} offset:{((q>>1)*32 + (q&1)*c.rdrows) * c.RS}")
    for ts in range(4): a(f"v_mov_b32 v{ACCU+ts}, 0")
    srd_off(a, 16, P_WS, CSG_OFF + which * 524288, 524288)
    a(f"""
    s_mov_b32 s75, 0x3f803f80
    s_lshl_b32 s30, s25, 15
    s_lshl_b32 s31, s24, 11
    s_add_u32 s30, s30, s31
    s_lshl_b32 s31, {wsg}, 9
    s_add_u32 s30, s30, s31
    v_lshlrev_b32 v{t}, 3, v1
    """)
    for q in range(4):
        a(f"s_waitcnt lgkmcnt({12-4*q})")
        for d in range(2):
            for ts in range(4):
                a(f"v_dot2c_f32_bf16 v{ACCU+ts}, s75, v{D+(q*4+ts)*2+d}")
    t0, t1, t2, t3 = ACCU, ACCU + 1, ACCU + 2, ACCU + 3
    a(f"""
    v_permlane32_swap_b32 v{t0}, v{t2}
    v_permlane32_swap_b32 v{t1}, v{t3}
    v_add_f32 v{t0}, v{t0}, v{t2}
    v_add_f32 v{t1}, v{t1}, v{t3}
    v_permlane16_swap_b32 v{t0}, v{t1}
    v_add_f32 v{t0}, v{t0}, v{t1}
    v_mov_b32 v{t1}, s{TAG}
    buffer_store_dwordx2 v[{t0}:{t1}], v{t}, s[16:19], s30 offen sc0 sc1
    """)

G_CS = 32
G_RS = 64
def gather_issue(a, c):
    which = 0 if c.kind == "qkv" else 1
    srd_off(a, 16, P_WS, CSG_OFF + which * 524288, 524288)
    a(f"""
    s_lshl_b32 s30, s25, 15
    s_lshl_b32 s31, s38, 9
    s_add_u32 s30, s30, s31
    v_lshlrev_b32 v2, 3, v1
    """)
    for r in range(16):
        a(f"buffer_load_dwordx2 v[{G_CS+2*r}:{G_CS+2*r+1}], v2, s[16:19], s30 offen offset:{(r&1)*2048} sc0 sc1")
        if r & 1: a("s_add_u32 s30, s30, 4096")
    if c.kind == "qkv":
        srd_off(a, 20, P_WS, RS1_OFF, 32768)
        a(f"""
        v_and_b32 v3, 31, v1
        v_lshlrev_b32 v3, 4, v3
        s_lshl_b32 s30, s24, 11
        s_lshl_b32 s31, s38, 9
        s_add_u32 s30, s30, s31
        buffer_load_dwordx4 v[{G_RS}:{G_RS+3}], v3, s[20:23], s30 offen sc0 sc1
        """)
        return 17
    srd_off(a, 20, P_WS, ST2_OFF, 16 * 32768)
    a(f"""
    v_and_b32 v3, 31, v1
    v_lshlrev_b32 v3, 2, v3
    v_lshrrev_b32 v15, 5, v1
    v_lshl_add_u32 v3, v15, 9, v3
    s_lshl_b32 s30, s24, 15
    s_lshl_b32 s31, s38, 7
    s_add_u32 s30, s30, s31
    """)
    for p in range(32):
        a(f"buffer_load_dword v{G_RS+p}, v3, s[20:23], s30 offen offset:{(p&3)*1024} sc0 sc1")
        if p % 4 == 3: a("s_add_u32 s30, s30, 4096")
    return 48

def gather_finish(a, c, extra):
    lp = a.label("gchk"); ok = a.label("skip_gok")
    a("s_mov_b32 s39, 0x40000")
    a(f"s_waitcnt vmcnt({extra})")
    a(f"{lp}:")
    a(f"v_xor_b32 v15, s{TAG}, v{G_CS+1}")
    for r in range(1, 16):
        a(f"v_xor_b32 v14, s{TAG}, v{G_CS+2*r+1}")
        a("v_or_b32 v15, v15, v14")
    if c.kind == "qkv":
        a(f"v_xor_b32 v14, s{TAG}, v{G_RS+2}")
        a("v_or_b32 v15, v15, v14")
        a(f"v_xor_b32 v14, s{TAG+1}, v{G_RS+3}")
        a("v_or_b32 v15, v15, v14")
    a(f"""
    v_cmp_ne_u32 vcc, 0, v15
    s_nop 3
    s_cmp_eq_u64 vcc, 0
    s_cbranch_scc1 {ok}
    s_sub_u32 s39, s39, 1
    s_cmp_eq_u32 s39, 0
    s_cbranch_scc1 {ok}
    s_sleep 2
    """)
    gather_issue(a, c)
    a("s_waitcnt vmcnt(0)")
    a(f"s_branch {lp}")
    a(f"{ok}:")
    for r in range(1, 16): a(f"v_add_f32 v{G_CS}, v{G_CS}, v{G_CS+2*r}")
    a(f"""
    v_lshlrev_b32 v2, 2, v1
    s_lshl_b32 s30, s38, 8
    s_add_u32 s30, s30, {ST_CS}
    v_add_u32 v2, s30, v2
    ds_write_b32 v2, v{G_CS}
    v_and_b32 v3, 31, v1
    s_lshl_b32 s30, s38, 5
    v_add_u32 v3, s30, v3
    v_lshlrev_b32 v2, 4, v3
    v_add_u32 v2, {ST_REC}, v2
    """)
    R = G_RS
    if c.kind == "qkv":
        a(f"""
        v_lshlrev_b32 v3, 2, v3
        v_add_u32 v3, {ST_MEAN}, v3
        ds_write_b128 v2, v[{R}:{R+3}]
        ds_write_b32 v3, v{R}
        ds_write_b32 v3, v{R+1} offset:512
        """)
    else:
        for p in range(1, 32): a(f"v_add_f32 v{R}, v{R}, v{R+p}")
        a(f"""
        v_mov_b32 v{R+1}, v{R}
        v_permlane32_swap_b32 v{R}, v{R+1}
        v_mul_f32 v{R}, {f32(1.0/1024)}, v{R}
        v_mul_f32 v{R+1}, {f32(1.0/1024)}, v{R+1}
        v_fma_f32 v{R+1}, -v{R}, v{R}, v{R+1}
        v_max_f32 v{R+1}, 0, v{R+1}
        v_add_f32 v{R+4}, {f32(1e-5)}, v{R+1}
        v_rsq_f32 v{R+1}, v{R+4}
        v_sqrt_f32 v{R+3}, v{R+4}
        v_mul_f32 v{R+2}, {f32(-LOG2E)}, v{R+1}
        ds_write_b128 v2, v[{R}:{R+3}]
        """)
    a("s_waitcnt lgkmcnt(0)")

def row_stats_issue(a, X):
    srd_off(a, 20, P_X, 0, 4 * MB)
    srd_off(a, 16, P_DBG, 0, 256)
    a(f"""
    s_lshl_b32 s30, s24, 7
    s_lshl_b32 s31, s25, 3
    s_add_u32 s30, s30, s31
    s_lshl_b32 s31, s3, 1
    s_add_u32 s33, s30, s31
    s_lshl_b32 s30, s33, 11
    v_lshlrev_b32 v{X+18}, 4, v1
    v_mov_b32 v{X+19}, 0
    """)
    for i in range(4):
        a(f"buffer_load_dwordx4 v[{X+4*i}:{X+4*i+3}], v{X+18}, s[20:23], s30 offen offset:{i*1024}")

def row_stats_finish(a, X, T):
    s0, q0, s1, q1 = T, T + 1, T + 2, T + 3
    a(f"buffer_load_dwordx2 v[{X+16}:{X+17}], v{X+19}, s[16:19], 0 offen sc0 sc1")
    a("s_mov_b32 s75, 0x3f803f80")
    for i in range(4): a(f"v_mov_b32 v{T+i}, 0")
    a("s_waitcnt vmcnt(1)")
    for d in range(8):
        for row in range(2):
            r = X + 8 * row + d
            a(f"v_dot2c_f32_bf16 v{T+2*row}, s75, v{r}")
            a(f"v_dot2c_f32_bf16 v{T+2*row+1}, v{r}, v{r}")
    a(f"""
    v_permlane32_swap_b32 v{s0}, v{q0}
    v_permlane32_swap_b32 v{s1}, v{q1}
    v_add_f32 v{s0}, v{s0}, v{q0}
    v_add_f32 v{s1}, v{s1}, v{q1}
    v_permlane16_swap_b32 v{s0}, v{s1}
    v_add_f32 v{s0}, v{s0}, v{s1}
    v_add_f32_dpp v{s0}, v{s0}, v{s0} quad_perm:[1,0,3,2] row_mask:0xf bank_mask:0xf
    v_add_f32_dpp v{s0}, v{s0}, v{s0} quad_perm:[2,3,0,1] row_mask:0xf bank_mask:0xf
    v_add_f32_dpp v{s0}, v{s0}, v{s0} row_half_mirror row_mask:0xf bank_mask:0xf
    v_add_f32_dpp v{s0}, v{s0}, v{s0} row_mirror row_mask:0xf bank_mask:0xf
    v_mov_b32 v{q0}, v{s0}
    v_permlane32_swap_b32 v{s0}, v{q0}
    v_mul_f32 v{s0}, {f32(1.0/1024)}, v{s0}
    v_mul_f32 v{q0}, {f32(1.0/1024)}, v{q0}
    v_fma_f32 v{q0}, -v{s0}, v{s0}, v{q0}
    v_max_f32 v{q0}, 0, v{q0}
    v_add_f32 v{q0}, {f32(1e-5)}, v{q0}
    v_rsq_f32 v{q0}, v{q0}
    """)
    lp = a.label("tagp"); dn = a.label("tagd")
    a(f"""
    s_mov_b32 s39, 0x100000
    {lp}:
    s_waitcnt vmcnt(0)
    v_readfirstlane_b32 s{TAG}, v{X+16}
    v_readfirstlane_b32 s{TAG+1}, v{X+17}
    s_nop 3
    s_cmp_lg_u32 s{TAG}, 0
    s_cbranch_scc1 {dn}
    s_sleep 1
    buffer_load_dwordx2 v[{X+16}:{X+17}], v{X+19}, s[16:19], 0 offen sc0 sc1
    s_sub_u32 s39, s39, 1
    s_cmp_lg_u32 s39, 0
    s_cbranch_scc1 {lp}
    {dn}:
    """)
    srd_off(a, 20, P_WS, RS1_OFF, 32768)
    a(f"""
    v_mov_b32 v{s1}, s{TAG}
    v_mov_b32 v{q1}, s{TAG+1}
    v_and_b32 v{T+4}, 16, v1
    s_lshl_b32 s30, s33, 4
    v_mov_b32 v{T+5}, {ST_TAG}
    s_mov_b64 exec, 0x10001
    buffer_store_dwordx4 v[{T}:{T+3}], v{T+4}, s[20:23], s30 offen sc0 sc1
    ds_write_b64 v{T+5}, v[{s1}:{q1}]
    s_mov_b64 exec, -1
    s_waitcnt lgkmcnt(0)
    """)

def gemm_producer(a, c, preB, tail_hook=None, loop_hook=None):
    n = c.n; S = c.S; L = 4 + c.NBW
    ops = []
    def iss(st):
        issueA(a, c); ops.extend([st] * 4)
        if not (preB and st < S):
            issueB(a, c); ops.extend([st] * c.NBW)
    def wait(st):
        last = max(i for i, x in enumerate(ops) if x <= st)
        a(f"s_waitcnt vmcnt({len(ops) - 1 - last})")
    iss(0)
    if c.kind == "qkv":
        a(f"s_mul_i32 s33, s24, {64*c.ldb}")
        for i in range(c.NBW):
            if i % 4 == 0: a(f"s_add_u32 m0, s35, {XB0 + i*1024}")
            a(f"buffer_load_dwordx4 v{PV_B+i}, s[12:15], s33 offen offset:{(i&3)*1024} lds")
        ops.extend([1] * c.NBW)
    iss(1); issued = 2
    wait(0)
    stamp(a, c.sid + 1)
    a("s_barrier")
    j = 0
    minj = 3 if c.kind == "qkv" else 0
    while True:
        allowed = j - 1 + S
        todo = []
        while issued <= allowed and len(todo) < 2 and issued < n:
            todo.append(issued); issued += 1
        steady = (len(todo) == 1 and todo[0] == allowed and todo[0] - (S - 2) >= (S if preB else 0) and j >= minj)
        if steady:
            issued -= 1
            break
        for st in todo: iss(st)
        if c.kind == "qkv" and j == 1:
            a(f"""
            v_mov_b32 v2, {ST_TAG}
            ds_read_b64 v[{PV_RD}:{PV_RD+1}], v2
            s_waitcnt lgkmcnt(0)
            v_readfirstlane_b32 s{TAG}, v{PV_RD}
            v_readfirstlane_b32 s{TAG+1}, v{PV_RD+1}
            s_setprio 3
            """)
            colsum_tile(a, c, XB0, "s38", 0, PV_RD)
            a("s_setprio 0")
            ops.append(todo[-1])
        j += 1
        wait(j)
        a("s_barrier")
    cnt = n - S - j + 1
    lp = a.label("p_loop")
    a(f"s_mov_b32 s26, {cnt}")
    a(f"{lp}:")
    issueA(a, c); issueB(a, c)
    if loop_hook: loop_hook()
    a(f"s_waitcnt vmcnt({(S-2)*L})")
    a(f"""
    s_sub_u32 s26, s26, 1
    s_cmp_lg_u32 s26, 0
    s_barrier
    s_cbranch_scc1 {lp}
    """)
    j = n - S + 1
    stamp(a, c.sid + 2)
    E = 0
    if c.ln: E += gather_issue(a, c)
    X = tail_hook() if tail_hook else 0
    E += X
    while j < n:
        j += 1
        if j < n: a(f"s_waitcnt vmcnt({min(63, (n-1-j)*L + E)})")
        elif c.ln:
            a("s_setprio 3")
            gather_finish(a, c, X)
            a("s_setprio 0")
        a("s_barrier")
    stamp(a, c.sid + 3)

def touch(a, ptr, total_bytes):
    nl = total_bytes // 128 // 1024
    srd_off(a, 20, ptr, 0, total_bytes)
    a(f"""
    s_lshl_b32 s30, s2, 2
    s_add_u32 s30, s30, s38
    s_mul_i32 s30, s30, {nl*128}
    v_lshlrev_b32 v2, 7, v1
    s_mov_b32 exec_lo, {hex(((1 << nl) - 1) & 0xffffffff)}
    s_mov_b32 exec_hi, {hex(((1 << nl) - 1) >> 32)}
    buffer_load_dword v253, v2, s[20:23], s30 offen
    s_mov_b64 exec, -1
    """)
    return 1

def attention(a):
    SC = (32 ** -0.5) * LOG2E
    vF, vL, vQH = 2, 4, 5
    Q = 8; O = 16; SB = 32; F = 176; T = 248
    a(f"""
    v_bfe_u32 v6, v1, 4, 1
    v_lshlrev_b32 v{vF}, 10, v6
    v_lshrrev_b32 v6, 5, v1
    v_lshl_add_u32 v{vF}, v6, 8, v{vF}
    v_and_b32 v7, 15, v1
    v_lshl_add_u32 v{vF}, v7, 4, v{vF}
    v_and_b32 v7, 31, v1
    v_lshlrev_b32 v6, 2, v6
    v_sub_u32 v{vQH}, v7, v6
    s_lshr_b32 s34, s3, 2            ; hh
    s_and_b32 s35, s3, 3             ; qb
    s_mul_i32 s30, s34, {HEADW}
    s_lshl_b32 s31, s35, 11
    s_add_u32 s30, s30, s31
    v_add_u32 v{vL}, s30, v{vF}
    ds_read_b128 v[{Q}:{Q+3}], v{vL} offset:49152
    ds_read_b128 v[{Q+4}:{Q+7}], v{vL} offset:{49152+512}
    """)
    def fr(b, i): return F + b * 8 + i * 4
    rd = []
    for b in range(9):
        for i in range(2):
            rd.append(f"ds_read_b128 v[{fr(b,i)}:{fr(b,i)+3}], v{vL} offset:{b*2048 + i*512}")
    for x in rd[:8]: a(x)
    for r in range(16):
        cst = 8 * (r >> 2) + (r & 3)
        a(f"v_cmp_gt_i32 s[{40+2*r}:{41+2*r}], {cst}, v{vQH}")
    nissued = 8
    rv = []
    for b in range(9):
        for i in range(2):
            rv.append(f"ds_read_b128 v[{fr(b,i)}:{fr(b,i)+3}], v{vL} offset:{24576 + b*2048 + i*512}")
    for b in range(9):
        a(f"s_waitcnt lgkmcnt({nissued - (2*b+2)})")
        s = SB + 16 * b
        a(f"v_mfma_f32_32x32x16_bf16 v[{s}:{s+15}], v[{fr(b,0)}:{fr(b,0)+3}], v[{Q}:{Q+3}], 0")
        if nissued < 18: a(rd[nissued]); nissued += 1
        a(f"v_mfma_f32_32x32x16_bf16 v[{s}:{s+15}], v[{fr(b,1)}:{fr(b,1)+3}], v[{Q+4}:{Q+7}], v[{s}:{s+15}]")
        if nissued < 18: a(rd[nissued]); nissued += 1
    for x in rv[:14]: a(x)
    skip = a.label("at_valid")
    a(f"""
    s_lshl_b32 s30, s24, 2
    s_add_u32 s30, s30, s35
    s_cmp_ge_u32 s30, 8
    s_cbranch_scc1 {skip}
    """)
    for b in range(8):
        nb = a.label("at_nb")
        a(f"s_cmp_ge_u32 s30, {8-b}")
        a(f"s_cbranch_scc1 {nb}")
        for r in range(16):
            a(f"v_mov_b32 v{SB+16*b+r}, 0xff800000")
        a(f"{nb}:")
    a(f"{skip}:")
    mx = T; mx2 = T + 1; sm = T + 2
    a(f"v_max_f32 v{mx}, v{SB+16}, v{SB+17}")
    a(f"v_max_f32 v{mx2}, v{SB+18}, v{SB+19}")
    idx = list(range(20, 128))
    for k in range(0, len(idx), 2):
        m = mx if (k // 2) % 2 == 0 else mx2
        a(f"v_max3_f32 v{m}, v{SB+idx[k]}, v{SB+idx[k+1]}, v{m}")
    for r in range(16):
        a(f"v_cndmask_b32 v{SB+r}, v{SB+128+r}, v{SB+r}, s[{40+2*r}:{41+2*r}]")
    for k in range(0, 16, 2):
        m = mx if (k // 2) % 2 == 0 else mx2
        a(f"v_max3_f32 v{m}, v{SB+k}, v{SB+k+1}, v{m}")
    for x in rv[14:]: a(x)
    a(f"""
    v_max_f32 v{mx}, v{mx}, v{mx2}
    v_mov_b32 v{mx2}, v{mx}
    v_permlane32_swap_b32 v{mx}, v{mx2}
    v_max_f32 v{mx}, v{mx}, v{mx2}
    v_mov_b32 v{Q}, {f32(SC)}
    v_mul_f32 v{Q+1}, v{Q}, v{mx}
    v_mov_b32 v{sm}, 0
    v_mov_b32 v{sm+1}, 0
    s_waitcnt lgkmcnt(0)
    s_barrier
    """)
    sk = a.label("skip_x1")
    a(f"""
    s_cmp_lt_u32 s3, 4
    s_cbranch_scc1 {sk}
    s_mul_i32 s30, s24, {64*7168}
    s_mul_i32 s31, s38, 7168
    """)
    for i in range(7):
        if i % 4 == 0: a(f"s_add_u32 m0, s31, {XB1 + i*1024}")
        a(f"buffer_load_dwordx4 v{O+i}, s[20:23], s30 offen offset:{(i&3)*1024} lds")
    a(f"{sk}:")
    def pack(s):
        for d, r in [(0, 0), (1, 2), (2, 8), (3, 10), (4, 4), (5, 6), (6, 12), (7, 14)]:
            a(f"v_cvt_pk_bf16_f32 v{s+d}, v{s+r}, v{s+r+1}")
    first = [True]
    def pv(b, s):
        c0 = "0" if first[0] else f"v[{O}:{O+15}]"
        first[0] = False
        a(f"v_mfma_f32_32x32x16_bf16 v[{O}:{O+15}], v[{fr(b,0)}:{fr(b,0)+3}], v[{s}:{s+3}], {c0}")
        a(f"v_mfma_f32_32x32x16_bf16 v[{O}:{O+15}], v[{fr(b,1)}:{fr(b,1)+3}], v[{s+4}:{s+7}], v[{O}:{O+15}]")
    pending = None
    for b in [0, 1, 2, 3, 4, 5, 6, 7]:
        s = SB + 16 * b
        for r in range(0, 16, 2):
            a(f"v_pk_fma_f32 v[{s+r}:{s+r+1}], v[{s+r}:{s+r+1}], v[{Q}:{Q+1}], v[{Q}:{Q+1}] op_sel:[0,0,1] op_sel_hi:[1,0,1] neg_lo:[0,0,1] neg_hi:[0,0,1]")
        if pending is not None:
            for p in pending: pv(*p)
            pending = None
        for r in range(16):
            a(f"v_exp_f32 v{s+r}, v{s+r}")
        for r in range(0, 16, 2):
            a(f"v_pk_add_f32 v[{sm}:{sm+1}], v[{sm}:{sm+1}], v[{s+r}:{s+r+1}]")
        if b == 0:
            s8 = SB + 128
            for r in range(16):
                a(f"v_cndmask_b32 v{s8+r}, v{s+r}, 0, s[{40+2*r}:{41+2*r}]")
                a(f"v_cndmask_b32 v{s+r}, 0, v{s+r}, s[{40+2*r}:{41+2*r}]")
            pack(s); pack(s8)
            pending = [(0, s), (8, s8)]
        else:
            pack(s)
            pending = [(b, s)]
    for p in pending: pv(*p)
    srd_off(a, 16, P_WS, O_OFF, 4 * MB)
    a(f"""
    v_add_f32 v{sm}, v{sm}, v{sm+1}
    v_mov_b32 v{sm+1}, v{sm}
    v_permlane32_swap_b32 v{sm}, v{sm+1}
    v_add_f32 v{sm}, v{sm}, v{sm+1}
    v_rcp_f32 v{sm}, v{sm}
    s_lshl_b32 s30, s24, 18
    s_lshl_b32 s31, s25, 14
    s_add_u32 s30, s30, s31
    s_lshl_b32 s31, s34, 13
    s_add_u32 s30, s30, s31
    s_lshl_b32 s31, s35, 11
    s_add_u32 s30, s30, s31
    """)
    for r in range(0, 16, 2):
        a(f"v_pk_mul_f32 v[{O+r}:{O+r+1}], v[{O+r}:{O+r+1}], v[{sm}:{sm+1}] op_sel_hi:[1,0]")
    pack(O)
    a(f"""
    buffer_store_dwordx4 v[{O}:{O+3}], v{vF}, s[16:19], s30 offen sc0 sc1
    buffer_store_dwordx4 v[{O+4}:{O+7}], v{vF}, s[16:19], s30 offen offset:512 sc0 sc1
    """)
    stamp(a, 10)
    signal(a, 1, 3, SB)
    stamp(a, 11)

def build(header_src=None):
    a = Asm()
    C = {k: mk(k, **v) for k, v in CFG.items()}
    kernel_begin(a, KNAME)
    a(f"""
    s_cmp_ge_u32 s2, 256
    s_cbranch_scc1 L_end
    s_load_dwordx16 s[80:95], s[0:1], 0
    s_load_dwordx2 s[4:5], s[0:1], 64
    v_lshrrev_b32 v2, 6, v0
    v_and_b32 v1, 63, v0
    v_readfirstlane_b32 s3, v2
    s_mov_b32 s{TAG}, 0
    s_mov_b32 s{TAG+1}, 0
    s_waitcnt lgkmcnt(0)
    """)
    srd_off(a, FLS, P_WS, FL_OFF, 65536)
    if DIAG: a(f"v_mov_b32 v{VS}, 0")
    stamp(a, 63)
    a("""
    s_cmp_ge_u32 s3, 4
    s_cbranch_scc1 L_prod
    """)
    a("""
    s_or_b32 s30, s2, s3
    s_cmp_lg_u32 s30, 0
    s_cbranch_scc1 L_notag
    """)
    srd_off(a, 16, P_DBG, 0, 256)
    a("""
    s_memrealtime s[30:31]
    v_mov_b32 v4, 0
    s_waitcnt lgkmcnt(0)
    s_or_b32 s30, s30, 1
    v_mov_b32 v2, s30
    v_mov_b32 v3, s31
    s_mov_b64 exec, 1
    buffer_store_dwordx2 v[2:3], v4, s[16:19], 0 offen sc0 sc1
    s_mov_b64 exec, -1
    L_notag:
    """)
    if OPT["prio"]: a(f"s_setprio {OPT['prio']}")
    gemm_consumer(a, C["qkv"])
    a("s_barrier")
    a("L_attn:")
    stamp(a, 9)
    attention(a)
    a("""
    s_barrier
    s_cmp_ge_u32 s3, 4
    s_cbranch_scc1 L_prod2
    """)
    colsum_tile(a, C["w1"], XB1, "s3", 1, 32)
    gemm_consumer(a, C["wo"])
    gemm_consumer(a, C["w1"])
    gemm_consumer(a, C["w2"])
    stamp_flush(a)
    a("s_endpgm")
    a("L_prod:")
    a("s_sub_u32 s38, s3, 4")
    c = C["qkv"]
    prod_setup(a, c)
    stamp(a, c.sid)
    gemm_producer(a, c, False, (lambda: touch(a, P_WO, 2 * MB)) if OPT["pf"] else None)
    a(f"""
    s_sub_u32 s30, s24, 1
    s_max_i32 s30, s30, 0
    s_sub_u32 s31, s24, 2
    s_max_i32 s31, s31, 0
    s_sub_u32 s30, s30, s31
    s_lshl_b32 s30, s30, 10
    v_bfe_u32 v2, v1, 2, 1
    v_mul_lo_u32 v2, v2, s30
    v_and_b32 v3, 3, v1
    v_lshl_add_u32 v2, v3, 3, v2
    s_lshl_b32 s31, s31, 10
    s_lshl_b32 s30, s25, 5
    s_add_u32 s33, s30, s31
    """)
    a(f"""
    s_lshr_b32 s34, s38, 1
    s_and_b32 s35, s38, 1
    s_lshl_b32 s30, s25, 1
    s_add_u32 s30, s30, s34
    s_lshl_b32 s30, s30, 17
    s_lshl_b32 s31, s35, 22
    s_add_u32 s30, s30, s31
    s_add_u32 s30, s30, {K_OFF}
    """)
    srd_off(a, 8, P_WS, "s30", 131072)
    a(f"""
    s_lshl_b32 s30, s24, 13
    s_sub_u32 s30, s30, 16384
    v_lshlrev_b32 v4, 4, v1
    v_add_u32 v4, s30, v4
    s_mul_i32 s34, s34, {HEADW}
    s_mul_i32 s35, s35, 24576
    s_add_u32 s34, s34, s35
    """)
    a("v_mov_b32 v5, v2")
    b_setup(a, C["w1"], 16, 20)
    wait_flags(a, 5, "s33", False, PV_RD)
    stamp(a, 5)
    for q in range(4):
        a(f"s_add_u32 m0, s34, {q*4096}")
        for i in range(4):
            a(f"buffer_load_dwordx4 v4, s[8:11], 0 offen offset:{i*1024} sc1 lds")
        if q < 3: a("v_add_u32 v4, 0x1000, v4")
    a("s_mov_b32 s98, s24\ns_mov_b32 s99, s25")
    c = C["wo"]
    prod_setup(a, c)
    a("s_mov_b32 s24, s98\ns_mov_b32 s25, s99")
    a("s_waitcnt vmcnt(0)")
    stamp(a, 6)
    a("s_barrier")
    for st in range(c.S): issueB(a, c)
    a("s_branch L_attn")
    a("L_prod2:")
    def seam(c, seam_id, wide, preB_done):
        prod_setup(a, c)
        if preB_done:
            a(f"s_mov_b32 s29, {c.S*64*c.ldb}")
        else:
            for st in range(c.S): issueB(a, c)
        return
    def seam_wait(c, seam_id, wide):
        a(f"""
        v_lshlrev_b32 v2, {4 if wide else 3}, v1
        s_lshl_b32 s33, s24, 10
        s_add_u32 s33, s33, {seam_id*16384}
        """)
        wait_flags(a, 2, "s33", wide, PV_RD)
        stamp(a, c.sid)
    c = C["wo"]
    seam(c, 1, True, True); seam_wait(c, 1, True)
    gemm_producer(a, c, True, (lambda: touch(a, P_W2, 7 * MB)) if OPT["pf"] == 1 else None)
    c = C["w1"]
    seam(c, 2, False, False); seam_wait(c, 2, False)
    def w2hook():
        sk = a.label("skip_pf")
        a(f"""
        s_lshr_b32 s30, s2, 3
        s_and_b32 s30, s30, 7
        s_add_u32 s30, s30, 3
        s_cmp_lg_u32 s30, s26
        s_cbranch_scc1 {sk}
        """)
        touch(a, P_W2, 7 * MB)
        a(f"{sk}:")
    gemm_producer(a, c, True, None, w2hook if OPT["pf"] == 2 else None)
    c = C["w2"]
    seam(c, 3, False, False)
    a("s_barrier")
    a("s_barrier")
    seam_wait(c, 3, False)
    gemm_producer(a, c, True)
    stamp_flush(a)
    a("L_end:")
    a("s_endpgm")
    body, nins = hazard.fix(a.lines)
    hdr = []
    if header_src:
        for ln in open(header_src):
            if ln.startswith(";") and "@launch" not in ln:
                hdr.append(ln.rstrip("\n"))
            elif not ln.startswith(";"):
                break
    hdr.append(f"; @launch grid=(256,1,1) block=(512,1,1) lds=163840")
    hdr.append('.amdgcn_target "amdgcn-amd-amdhsa--gfx950"')
    hdr.append(".text")
    return "\n".join(hdr) + "\n" + "\n".join(body) + "\n" + kernel_desc(KNAME, 256, 102), nins

if __name__ == "__main__":
    if "--diag" in sys.argv:
        DIAG = True; sys.argv.remove("--diag")
    for arg in list(sys.argv[1:]):
        if "=" in arg:
            k_, v_ = arg.split("=", 1)
            if "." in k_:
                kk, f_ = k_.split(".")
                for kind_ in (CFG.keys() if kk == "all" else [kk]): CFG[kind_][f_] = int(v_)
            else: OPT[k_] = int(v_)
            sys.argv.remove(arg)
    out = sys.argv[1] if len(sys.argv) > 1 else "p1.s"
    txt, nins = build(header_src="sequential_preLN__sliding_block__dense_activation_silu__prompt.s.ref")
    open(out, "w").write(txt)
    print("wrote", out, len(txt), "bytes; nop states inserted:", nins)
```

```python
import sys, struct
from asmlib import *
import hazard

MB = 1 << 20
K_OFF = 8 * MB
V_OFF = 12 * MB
O_OFF = 16 * MB
H_OFF = 20 * MB
H1_OFF = 24 * MB
FL_OFF = 40 * MB
RS1_OFF = 41 * MB
CSG_OFF = 42 * MB
XP_OFF = 44 * MB
ST2_OFF = 43 * MB
DIAG_OFF = 64 * MB
LOG2E = 1.4426950408889634
KNAME = "sequential_preLN__sliding_block__dense_activation_silu__prompt_kernel"
P_X, P_WQKV, P_WO, P_W1, P_W2, P_OUT, P_DBG, P_WS = 80, 82, 84, 88, 90, 92, 94, 4
TAG = 72
FLS = 76
ST = 155648
ST_REC, ST_MEAN, ST_RSTD, ST_CS, ST_CSP = ST, ST + 2048, ST + 2560, ST + 3072, ST + 4096
HEADW = 57344
XB0 = 122880
XB1 = 81920
XCH = 147456
ST_TAG = ST + 4096
HRES = 232
DEF = 200
VS = 254
DIAG = False
OPT = dict(sk=1, skfull=0, pf=3, xt=1, prio=0, inv=0, nodma=0, steps=0, kvlocal=0, cpf=1, nbf=1, sigA=3, sigB=3, qnt=0, bar2=0, defer=0, dper=2, dstart=0, prepoll=21, wobar=0)

def f32(x):
    return "0x%08x" % struct.unpack("<I", struct.pack("<f", x))[0]

def srd_off(a, d, ptr, off, nrec):
    a(f"s_add_u32 s{d}, s{ptr}, {off}")
    a(f"s_addc_u32 s{d+1}, s{ptr+1}, 0")
    a(f"s_mov_b32 s{d+2}, {nrec}")
    a(f"s_mov_b32 s{d+3}, 0x20000")

def stamp(a, idx):
    if not DIAG: return
    a("s_memrealtime s[96:97]")
    a("s_waitcnt lgkmcnt(0)")
    a(f"v_writelane_b32 v{VS}, s96, {idx}")

def stamp_flush(a):
    if not DIAG: return
    srd_off(a, 16, P_WS, DIAG_OFF, 524288)
    a(f"""
    s_lshl_b32 s30, s2, 11
    s_lshl_b32 s31, s3, 8
    s_add_u32 s30, s30, s31
    v_lshlrev_b32 v{VS+1}, 2, v1
    buffer_store_dword v{VS}, v{VS+1}, s[16:19], s30 offen
    """)

def pbar(a):
    a("s_barrier")
    if DIAG and OPT["steps"]:
        a("s_memtime s[96:97]" if OPT["steps"] == 2 else "s_memrealtime s[96:97]")
        a("""
        s_waitcnt lgkmcnt(0)
        s_mov_b32 m0, s54
        s_nop 0
        v_writelane_b32 v252, s96, m0
        s_add_u32 s54, s54, 1
        """)

def pbar_flush(a, ph):
    if not (DIAG and OPT["steps"]): return
    srd_off(a, 16, P_WS, DIAG_OFF + 524288 * (1 + ph), 524288)
    a(f"""
    s_lshl_b32 s30, s2, 11
    s_lshl_b32 s31, s3, 8
    s_add_u32 s30, s30, s31
    v_lshlrev_b32 v2, 2, v1
    buffer_store_dword v252, v2, s[16:19], s30 offen
    """)

def wgmap(a, RX, CX):
    CT = 16 // CX; RB = 16 // RX
    lg = lambda x: x.bit_length() - 1
    a(f"""
    s_and_b32 s30, s2, 7
    s_lshr_b32 s31, s2, 3
    s_lshr_b32 s24, s30, {lg(CX)}
    s_lshl_b32 s24, s24, {lg(RB)}
    s_and_b32 s25, s30, {CX-1}
    s_lshl_b32 s25, s25, {lg(CT)}
    s_lshr_b32 s30, s31, {lg(CT)}
    s_add_u32 s24, s24, s30
    s_and_b32 s30, s31, {CT-1}
    s_add_u32 s25, s25, s30
    """)

def st2(a, text):
    if not OPT["kvlocal"]:
        a(text + " sc0 sc1"); return
    l1 = a.label("skip_s1"); l2 = a.label("skip_s2")
    a(f"""
    s_cmp_lg_u32 s55, 0
    s_cbranch_scc1 {l1}
    {text} sc0 sc1
    s_branch {l2}
    {l1}:
    {text}
    {l2}:
    """)

def signal(a, seam, slot_shift, t, local=False, cnt=0, plain0=False, rbj=('s24', 's25')):
    kv = seam == 0 and not plain0
    a(f"""
    s_lshl_b32 s40, {rbj[0]}, {11 if kv else 10}
    s_lshl_b32 s41, {rbj[1]}, {7 if kv else slot_shift+3}
    s_add_u32 s40, s40, s41
    s_lshl_b32 s41, s3, 3
    s_add_u32 s40, s40, s41
    s_add_u32 s40, s40, {65536 if kv else seam*16384}
    v_mov_b32 v{t}, s{TAG}
    v_mov_b32 v{t+1}, s{TAG+1}
    v_mov_b32 v{t+2}, 0
    s_waitcnt vmcnt({cnt})
    s_mov_b64 exec, 1
    """)
    txt = f"buffer_store_dwordx2 v[{t}:{t+1}], v{t+2}, s[{FLS}:{FLS+3}], s40 offen"
    if local: st2(a, txt)
    else: a(txt + " sc0 sc1")
    a("s_mov_b64 exec, -1")

def wait_flags(a, voff, soff, wide, t):
    lp = a.label("poll"); dn = a.label("polld")
    a(f"s_mov_b32 s39, 0x100000")
    if OPT["inv"] == 1: a("buffer_inv sc1")
    a(f"{lp}:")
    if wide:
        a(f"buffer_load_dwordx4 v[{t}:{t+3}], v{voff}, s[{FLS}:{FLS+3}], {soff} offen sc0 sc1")
    else:
        a(f"buffer_load_dwordx2 v[{t}:{t+1}], v{voff}, s[{FLS}:{FLS+3}], {soff} offen sc0 sc1")
    a("s_waitcnt vmcnt(0)")
    a(f"v_cmp_eq_u64 vcc, s[{TAG}:{TAG+1}], v[{t}:{t+1}]")
    if wide:
        a(f"v_cmp_eq_u64 s[36:37], s[{TAG}:{TAG+1}], v[{t+2}:{t+3}]")
        a("s_nop 3")
        a("s_and_b64 vcc, vcc, s[36:37]")
    else:
        a("s_nop 3")
    a(f"""
    s_cmp_eq_u64 vcc, -1
    s_cbranch_scc1 {dn}
    s_sleep 1
    s_sub_u32 s39, s39, 1
    s_cmp_lg_u32 s39, 0
    s_cbranch_scc1 {lp}
    {dn}:
    """)
    if OPT["inv"] == 2: a("buffer_inv sc1")

class G: pass
NBF = ['', ' sc1', ' sc0']

def mk(kind, **kw):
    c = G(); c.kind = kind; c.__dict__.update(kw)
    c.sk = 0
    if kind == "w2" and OPT["sk"]:
        c.sk = 1; c.BN = 128; c.NT = 4; c.S = 4; c.BBASE = 65536; c.full = OPT["skfull"]; c.rpg = 1; c.pstride = 512
    c.n = c.K // 64 // (2 if c.sk else 1)
    c.BB = c.BN * 128
    c.NBW = c.BB // 4096
    c.gmul = 4 if c.korder == "F" else 8
    c.rdrows = 16 if c.korder == "F" else 4
    c.RS = 128 if c.layout == "panel" else 448
    return c

CFG = dict(
    qkv=dict(K=1024, BN=192, NT=6, S=3, korder="N", layout="panel", wp=P_WQKV, ldb=6144, bcol=128, pstride=2048,
             a_off=None, normal_tiles=(4, 5), RX=2, CX=4, rpg=1, ABASE=0, BBASE=49152, ln=True, sid=0, lt=0, full=0, rot=0),
    wo=dict(K=1024, BN=64, NT=2, S=5, korder="F", layout="panel", wp=P_WO, ldb=2048, bcol=128, pstride=0,
            a_off=O_OFF, normal_tiles=(), RX=2, CX=4, rpg=2, ABASE=0, BBASE=114688, ln=False, sid=16, lt=0, full=1, rot=0),
    w1=dict(K=1024, BN=224, NT=7, S=3, korder="F", layout="w1", wp=P_W1, ldb=7168, bcol=448, pstride=0,
            a_off=H_OFF, normal_tiles=(), RX=2, CX=4, rpg=1, ABASE=0, BBASE=49152, ln=True, sid=24, lt=0, full=0, rot=0),
    w2=dict(K=3584, BN=64, NT=2, S=6, korder="F", layout="panel", wp=P_W2, ldb=2048, bcol=128, pstride=0,
            a_off=H1_OFF, normal_tiles=(), RX=2, CX=4, rpg=2, ABASE=0, BBASE=98304, ln=False, sid=32, lt=0, full=1, rot=0),
)

def gemm_consumer(a, c):
    kind = c.kind; n = c.n; S = c.S; NT = c.NT; RS = c.RS
    vA0, vA10, vB00, vB01, vB02, vA, vA1, vB0, vB1, vB2 = 2, 3, 4, 5, 6, 7, 8, 9, 10, 11
    vG = 12; vCH = 13
    t0, t1 = 14, 15
    ACC = 16
    FX = ACC + 16 * NT
    FSZ = 16 + 4 * NT
    if c.full: FSZ *= 2
    FY = FX + FSZ
    VTOP = FY + FSZ
    acc = lambda mt, nt: ACC + (nt * 4 + mt) * 4
    wgmap(a, c.RX, c.CX)
    T = FX
    if kind == "qkv": row_stats_issue(a, FY)
    a(f"""
    s_lshr_b32 s34, s3, 1
    s_and_b32 s35, s3, 1
    v_lshlrev_b32 v{vCH}, 4, v1
    s_lshl_b32 s30, s34, 12
    v_add_u32 v{vCH}, s30, v{vCH}
    v_lshrrev_b32 v{vG}, 4, v1
    v_bfe_u32 v{T}, v1, 2, 2
    v_and_b32 v{T+1}, 3, v1
    """)
    if c.a_off is None:
        a(f"""
        v_and_b32 v{t0}, 15, v1
        v_lshrrev_b32 v{t1}, 1, v{t0}
        v_xor_b32 v{t1}, v{t1}, v{vG}
        v_lshlrev_b32 v{t1}, 4, v{t1}
        v_lshl_add_u32 v{vA0}, v{t0}, 7, v{t1}
        s_lshl_b32 s30, s34, 13
        v_add_u32 v{vA0}, s30, v{vA0}
        v_xor_b32 v{vA10}, 64, v{vA0}
        """)
        aread = lambda mt, kg: ((vA, vA1)[kg], mt * 2048)
    else:
        a(f"v_mov_b32 v{vA0}, v{vCH}")
        aread = lambda mt, kg: (vA, kg * 8192 + mt * 1024)
    if c.layout == "panel":
        a(f"""
        v_mul_u32_u24 v{t0}, {c.gmul}, v{vG}
        v_add_u32 v{t0}, v{t0}, v{T}
        v_lshlrev_b32 v{t0}, 7, v{t0}
        v_lshl_add_u32 v{t0}, v{T+1}, 3, v{t0}
        v_lshrrev_b32 v{t1}, 1, v{T}
        v_and_b32 v{T+2}, 1, v{vG}
        v_lshl_or_b32 v{t1}, v{T+2}, 1, v{t1}
        s_lshl_b32 s30, s35, 1
        v_xor_b32 v{t1}, s30, v{t1}
        v_lshl_add_u32 v{vB00}, v{t1}, 5, v{t0}
        v_xor_b32 v{t1}, 1, v{t1}
        v_lshl_add_u32 v{vB01}, v{t1}, 5, v{t0}
        """)
        def bread(nt, kg, rd):
            return (vB0 if nt % 2 == 0 else vB1), (nt // 2) * 8192 + kg * 32 * RS + rd * c.rdrows * RS
    else:
        a(f"""
        v_mul_u32_u24 v{t0}, {c.gmul}, v{vG}
        v_add_u32 v{t0}, v{t0}, v{T}
        v_mul_u32_u24 v{t0}, {RS}, v{t0}
        v_lshl_add_u32 v{t0}, v{T+1}, 3, v{t0}
        v_and_b32 v{t1}, 1, v{vG}
        v_lshlrev_b32 v{T+2}, 5, v{t1}
        s_lshl_b32 s30, s35, 8
        v_add_u32 v{T+3}, s30, v{t0}
        v_add_u32 v{vB00}, v{T+3}, v{T+2}
        v_sub_u32 v{vB01}, v{T+3}, v{T+2}
        s_add_u32 s30, s35, 6
        v_xor_b32 v{t1}, s30, v{t1}
        v_lshl_add_u32 v{vB02}, v{t1}, 5, v{t0}
        """)
        def bread(nt, kg, rd):
            o = kg * 32 * RS + rd * c.rdrows * RS
            if nt == 6: return vB2, o
            return (vB0 if nt % 2 == 0 else vB1), o + nt * 32
    RES = VTOP
    if kind == "wo":
        srd_off(a, 20, P_X, 0, 4 * MB)
        a(f"""
        v_and_b32 v{t0}, 15, v1
        v_lshlrev_b32 v{t0}, 11, v{t0}
        v_lshl_add_u32 v{t0}, v{vG}, 3, v{t0}
        s_lshl_b32 s30, s24, 18
        s_lshl_b32 s31, s34, 17
        s_add_u32 s30, s30, s31
        s_lshl_b32 s31, s25, 7
        s_add_u32 s30, s30, s31
        s_lshl_b32 s31, s35, 6
        s_add_u32 s30, s30, s31
        """)
        for mt in range(4):
            for nt in range(2):
                r = RES + mt * 4 + nt * 2
                a(f"buffer_load_dwordx2 v[{r}:{r+1}], v{t0}, s[20:23], s30 offen offset:{nt*32}")
            a("s_add_u32 s30, s30, 32768")
    for i in range(16 * NT):
        a(f"v_mov_b32 v{ACC+i}, 0")
    abases = [(vA, vA0)] + ([(vA1, vA10)] if c.a_off is None else [])
    bbases = [(vB0, vB00), (vB1, vB01)] + ([(vB2, vB02)] if c.layout != "panel" else [])
    a(f"s_mov_b32 s27, {c.ABASE}")
    a(f"s_mov_b32 s32, {c.BBASE}")
    setb = [f"v_add_u32 v{x}, s27, v{y}" for x, y in abases] + [f"v_add_u32 v{x}, s32, v{y}" for x, y in bbases]
    for x in setb: a(x)
    a(f"s_mov_b32 s26, {n}")
    def reads(F, kg):
        r = []
        for nt in range(NT):
            for rd in range(2):
                b, o = bread(nt, kg, rd)
                d = F + 16 + nt * 4 + rd * 2
                r.append(f"ds_read_b64_tr_b16 v[{d}:{d+1}], v{b} offset:{o}")
            if nt == 0:
                for mt in range(4):
                    d = F + mt * 4
                    b, o = aread(mt, kg)
                    r.append(f"ds_read_b128 v[{d}:{d+3}], v{b} offset:{o}")
        return r
    def mfmas(F):
        m = []
        for nt in range(NT):
            for mt in range(4):
                A = F + mt * 4; B = F + 16 + nt * 4; D = acc(mt, nt)
                if nt in c.normal_tiles:
                    m.append(f"v_mfma_f32_16x16x32_bf16 v[{D}:{D+3}], v[{A}:{A+3}], v[{B}:{B+3}], v[{D}:{D+3}]")
                else:
                    m.append(f"v_mfma_f32_16x16x32_bf16 v[{D}:{D+3}], v[{B}:{B+3}], v[{A}:{A+3}], v[{D}:{D+3}]")
        return m
    loop = a.label("c_loop")
    if kind == "qkv": row_stats_finish(a, FY, FX)
    stamp(a, c.sid)
    a("s_barrier")
    stamp(a, c.sid + 1)
    adv = [f"s_add_u32 s27, s27, 16384", f"s_add_u32 s32, s32, {c.BB}", f"s_cmp_eq_u32 s27, {c.ABASE + S*16384}",
           f"s_cselect_b32 s27, {c.ABASE}, s27", f"s_cselect_b32 s32, {c.BBASE}, s32"] + setb
    NI = n // 2 if c.full else n
    def w2hook_c():
        if kind == "w2":
            back = a.label("w2back"); early = a.label("w2early")
            a(f"s_cmp_ge_u32 s26, {NI - OPT['sigB']}")
            a(f"s_cbranch_scc1 {early}")
            a(f"{back}:")
            def ool():
                a(f"{early}:")
                nst = OPT["dper"]
                its = 8 // nst if OPT["defer"] else 0
                for it in range(its):
                    nx = a.label("skip_e")
                    a(f"s_cmp_lg_u32 s26, {NI - it - OPT['dstart']}")
                    a(f"s_cbranch_scc1 {nx}")
                    for k in range(it * nst, it * nst + nst):
                        r = DEF + k * 4
                        a(f"buffer_store_dwordx4 v[{r}:{r+3}], v{vCH}, s[16:19], {'s44' if k < 4 else 's45'} offen offset:{(k%4)*1024} sc0 sc1")
                    a(f"s_branch {back}")
                    a(f"{nx}:")
                a(f"s_cmp_lg_u32 s26, {NI - OPT['sigB']}")
                a(f"s_cbranch_scc1 {back}")
                signal(a, 3, 2, VTOP, rbj=("s42", "s43"))
                a(f"s_branch {back}")
            c.ool = ool

    if c.full:
        H = FSZ // 2
        rd2 = lambda F: reads(F, 0) + reads(F + H, 1)
        mf2 = lambda F: mfmas(F) + mfmas(F + H)
        a(f"s_mov_b32 s26, {n//2}")
        for r in rd2(FX): a(r)
        for x in adv: a(x)
        a(f"{loop}:")
        w2hook_c()
        a("s_waitcnt lgkmcnt(0)")
        a("s_barrier")
        for x in interleave(mf2(FX), rd2(FY) + adv, 0, 1, c.rpg): a(x)
        a("s_waitcnt lgkmcnt(0)")
        a("s_barrier")
        for x in interleave(mf2(FY), rd2(FX) + adv + ["s_sub_u32 s26, s26, 1", "s_cmp_lg_u32 s26, 0"], 0, 1, c.rpg): a(x)
        a(f"s_cbranch_scc1 {loop}")
        a("s_waitcnt lgkmcnt(0)")
    else:
        for r in reads(FX, 0): a(r)
        a(f"{loop}:")
        w2hook_c()
        a("s_waitcnt lgkmcnt(0)")
        for x in interleave(mfmas(FX), reads(FY, 1) + adv, 0, 1, c.rpg): a(x)
        a("s_waitcnt lgkmcnt(0)")
        a("s_barrier")
        for x in interleave(mfmas(FY), reads(FX, 0) + ["s_sub_u32 s26, s26, 1", "s_cmp_lg_u32 s26, 0"], 0, 1, c.rpg): a(x)
        a(f"s_cbranch_scc1 {loop}")
        a("s_waitcnt lgkmcnt(0)")
    stamp(a, c.sid + 2)
    def pk4(t, p0, p1):
        a(f"v_cvt_pk_bf16_f32 v{t}, v{p0}, v{p0+1}")
        a(f"v_cvt_pk_bf16_f32 v{t+1}, v{p0+2}, v{p0+3}")
        a(f"v_cvt_pk_bf16_f32 v{t+2}, v{p1}, v{p1+1}")
        a(f"v_cvt_pk_bf16_f32 v{t+3}, v{p1+2}, v{p1+3}")
    if kind == "qkv":
        REC = T
        CSQ = T + 16
        MV = T + 32
        RV = T + 48
        CSV = T + 64
        a(f"""
        v_and_b32 v{t0}, 15, v1
        v_lshlrev_b32 v{vA}, 4, v{t0}
        s_lshl_b32 s30, s34, 10
        s_add_u32 s30, s30, {ST_REC}
        v_add_u32 v{vA}, s30, v{vA}
        v_lshlrev_b32 v{vA1}, 4, v{vG}
        s_lshl_b32 s30, s35, 7
        s_add_u32 s30, s30, {ST_CS}
        v_add_u32 v{vB0}, s30, v{vA1}
        v_lshlrev_b32 v{vB1}, 2, v{t0}
        v_add_u32 v{vB1}, s30, v{vB1}
        s_lshl_b32 s30, s34, 8
        s_add_u32 s30, s30, {ST_MEAN}
        v_add_u32 v{vA1}, s30, v{vA1}
        """)
        a(f"""
        s_lshl_b32 s30, s74, 2
        s_add_u32 s30, s30, {ST_CS + 768}
        v_mov_b32 v{t1}, s30
        ds_read_b32 v{t1}, v{t1}
        """)
        for mt in range(4):
            a(f"ds_read_b128 v[{REC+4*mt}:{REC+4*mt+3}], v{vA} offset:{mt*256}")
        for nt in range(4):
            a(f"ds_read_b128 v[{CSQ+4*nt}:{CSQ+4*nt+3}], v{vB0} offset:{(nt//2)*256 + (nt%2)*64}")
        for mt in range(4):
            a(f"ds_read_b128 v[{MV+4*mt}:{MV+4*mt+3}], v{vA1} offset:{mt*64}")
            a(f"ds_read_b128 v[{RV+4*mt}:{RV+4*mt+3}], v{vA1} offset:{512 + mt*64}")
        for dt in range(2):
            a(f"ds_read_b32 v{CSV+dt}, v{vB1} offset:{512 + dt*64}")
        srd_off(a, 16, P_WS, K_OFF, 8 * MB)
        a(f"""
        s_lshl_b32 s30, s25, 1
        s_add_u32 s30, s30, s35
        s_lshl_b32 s30, s30, 17
        s_lshl_b32 s31, s24, 13
        s_add_u32 s30, s30, s31
        s_add_u32 s31, s30, {4*MB}
        s_mul_i32 s33, s35, {HEADW}
        v_add_u32 v{vB2}, s33, v{vCH}
        s_waitcnt lgkmcnt(10)
        v_readfirstlane_b32 s55, v{t1}
        s_nop 3
        s_cmp_eq_u32 s55, 0x41800000
        s_cselect_b32 s55, {OPT["kvlocal"]}, 0
        """)
        def fold_sw(mt, nt):
            p = acc(mt, nt); m = REC + 4 * mt; cs = CSQ + 4 * nt
            for h in range(2):
                a(f"v_pk_fma_f32 v[{p+2*h}:{p+2*h+1}], v[{m}:{m+1}], v[{cs+2*h}:{cs+2*h+1}], v[{p+2*h}:{p+2*h+1}] op_sel_hi:[0,1,1] neg_lo:[1,0,0] neg_hi:[1,0,0]")
            for h in range(2):
                a(f"v_pk_mul_f32 v[{p+2*h}:{p+2*h+1}], v[{m}:{m+1}], v[{p+2*h}:{p+2*h+1}] op_sel:[1,0] op_sel_hi:[1,1]")
        for mt in range(4):
            fold_sw(mt, 2); fold_sw(mt, 3)
            t = acc(mt, 2); pk4(t, acc(mt, 2), acc(mt, 3))
            st2(a, f"buffer_store_dwordx4 v[{t}:{t+3}], v{vCH}, s[16:19], s30 offen offset:{mt*1024}")
            a(f"ds_write_b128 v{vB2}, v[{t}:{t+3}] offset:{16384 + mt*1024}")
        a("s_waitcnt lgkmcnt(4)")
        for mp in range(2):
            for dt in range(2):
                for mt in (2 * mp, 2 * mp + 1):
                    p = acc(mt, 4 + dt)
                    sel = "op_sel_hi:[1,0,1]" if dt == 0 else "op_sel:[0,1,0] op_sel_hi:[1,1,1]"
                    for h in range(2):
                        a(f"v_pk_fma_f32 v[{p+2*h}:{p+2*h+1}], v[{MV+4*mt+2*h}:{MV+4*mt+2*h+1}], v[{CSV}:{CSV+1}], v[{p+2*h}:{p+2*h+1}] {sel} neg_lo:[1,0,0] neg_hi:[1,0,0]")
                    for h in range(2):
                        a(f"v_pk_mul_f32 v[{p+2*h}:{p+2*h+1}], v[{RV+4*mt+2*h}:{RV+4*mt+2*h+1}], v[{p+2*h}:{p+2*h+1}]")
                t = acc(2 * mp, 4 + dt); pk4(t, acc(2 * mp, 4 + dt), acc(2 * mp + 1, 4 + dt))
                st2(a, f"buffer_store_dwordx4 v[{t}:{t+3}], v{vCH}, s[16:19], s31 offen offset:{(2*mp+dt)*1024}")
                a(f"ds_write_b128 v{vB2}, v[{t}:{t+3}] offset:{24576 + 16384 + (2*mp+dt)*1024}")
        for mt in range(4):
            fold_sw(mt, 0); fold_sw(mt, 1)
            t = acc(mt, 0); pk4(t, acc(mt, 0), acc(mt, 1))
            a(f"ds_write_b128 v{vB2}, v[{t}:{t+3}] offset:{49152 + mt*1024}")
        stamp(a, c.sid + 3)
        signal(a, 0, 2, T, True)
        stamp(a, c.sid + 4)
        a("s_waitcnt lgkmcnt(0)")
    elif kind == "wo":
        srd_off(a, 16, P_WS, H_OFF, 4 * MB)
        a(f"""
        s_lshl_b32 s30, s24, 18
        s_lshl_b32 s31, s25, 14
        s_add_u32 s30, s30, s31
        s_lshl_b32 s31, s35, 13
        s_add_u32 s30, s30, s31
        s_mov_b32 s36, 0xffff0000
        s_waitcnt vmcnt(0)
        """)
        for mt in range(4):
            for nt in range(2):
                r = RES + mt * 4 + nt * 2; p = acc(mt, nt)
                for d in range(2):
                    a(f"v_lshlrev_b32 v{T}, 16, v{r+d}")
                    a(f"v_and_b32 v{T+1}, s36, v{r+d}")
                    a(f"v_pk_add_f32 v[{p+2*d}:{p+2*d+1}], v[{p+2*d}:{p+2*d+1}], v[{T}:{T+1}]")
            t = HRES + mt * 4
            pk4(t, acc(mt, 0), acc(mt, 1))
            a(f"buffer_store_dwordx4 v[{t}:{t+3}], v{vCH}, s[16:19], s30 offen offset:{mt*1024} sc0 sc1")
        SS = T + 4
        for mt in range(4):
            p0 = acc(mt, 0); p1 = acc(mt, 1)
            s_, q_ = SS + 2 * mt, SS + 2 * mt + 1
            a(f"v_pk_add_f32 v[{T}:{T+1}], v[{p0}:{p0+1}], v[{p0+2}:{p0+3}]")
            a(f"v_pk_mul_f32 v[{T+2}:{T+3}], v[{p0}:{p0+1}], v[{p0}:{p0+1}]")
            a(f"v_pk_add_f32 v[{T}:{T+1}], v[{T}:{T+1}], v[{p1}:{p1+1}]")
            a(f"v_pk_fma_f32 v[{T+2}:{T+3}], v[{p0+2}:{p0+3}], v[{p0+2}:{p0+3}], v[{T+2}:{T+3}]")
            a(f"v_pk_add_f32 v[{T}:{T+1}], v[{T}:{T+1}], v[{p1+2}:{p1+3}]")
            a(f"v_pk_fma_f32 v[{T+2}:{T+3}], v[{p1}:{p1+1}], v[{p1}:{p1+1}], v[{T+2}:{T+3}]")
            a(f"v_pk_fma_f32 v[{T+2}:{T+3}], v[{p1+2}:{p1+3}], v[{p1+2}:{p1+3}], v[{T+2}:{T+3}]")
            a(f"v_add_f32 v{s_}, v{T}, v{T+1}")
            a(f"v_add_f32 v{q_}, v{T+2}, v{T+3}")
        for mt in range(4):
            s_, q_ = SS + 2 * mt, SS + 2 * mt + 1
            a(f"v_permlane32_swap_b32 v{s_}, v{q_}")
            a(f"v_add_f32 v{s_}, v{s_}, v{q_}")
        srd_off(a, 20, P_WS, ST2_OFF, 16 * 32768)
        a(f"""
        v_and_b32 v{t0}, 31, v1
        v_lshlrev_b32 v{t0}, 2, v{t0}
        v_lshrrev_b32 v{t1}, 5, v1
        v_lshl_add_u32 v{t0}, v{t1}, 9, v{t0}
        s_lshl_b32 s30, s24, 15
        s_lshl_b32 s31, s25, 11
        s_add_u32 s30, s30, s31
        s_lshl_b32 s31, s35, 10
        s_add_u32 s30, s30, s31
        s_lshl_b32 s31, s34, 8
        s_add_u32 s30, s30, s31
        """)
        for mp in range(2):
            x0 = SS + 4 * mp; x1 = SS + 4 * mp + 2
            a(f"v_permlane16_swap_b32 v{x0}, v{x1}")
            a(f"v_add_f32 v{x0}, v{x0}, v{x1}")
            a(f"buffer_store_dword v{x0}, v{t0}, s[20:23], s30 offen offset:{mp*128} sc0 sc1")
        stamp(a, c.sid + 3)
        if OPT["wobar"]: a("s_barrier")
        signal(a, 2, 2, T)
        stamp(a, c.sid + 4)
    elif kind == "w1":
        srd_off(a, 16, P_WS, H1_OFF, 14 * MB)
        CSR = T; REC = T + 28; E = T + 44
        a(f"""
        v_and_b32 v{t0}, 15, v1
        v_lshlrev_b32 v{vA}, 4, v{t0}
        s_lshl_b32 s30, s34, 10
        s_add_u32 s30, s30, {ST_REC}
        v_add_u32 v{vA}, s30, v{vA}
        v_lshlrev_b32 v{t1}, 4, v{vG}
        s_lshl_b32 s30, s35, 9
        s_add_u32 s30, s30, {ST_CS}
        v_add_u32 v{vB0}, s30, v{t1}
        s_lshl_b32 s30, s35, 6
        s_add_u32 s30, s30, {ST_CS}
        v_add_u32 v{vB1}, s30, v{t1}
        """)
        for mt in range(4):
            a(f"ds_read_b128 v[{REC+4*mt}:{REC+4*mt+3}], v{vA} offset:{mt*256}")
        for nt in range(6):
            a(f"ds_read_b128 v[{CSR+4*nt}:{CSR+4*nt+3}], v{vB0} offset:{nt*64}")
        a(f"ds_read_b128 v[{CSR+24}:{CSR+27}], v{vB1} offset:{6*64}")
        a(f"""
        s_mul_i32 s30, s24, {112*8192}
        s_mul_i32 s31, s25, {7*8192}
        s_add_u32 s30, s30, s31
        s_add_u32 s36, s30, {3*8192}
        s_lshl_b32 s31, s35, 15
        s_add_u32 s30, s30, s31
        s_add_u32 s31, s30, 8192
        s_add_u32 s37, s30, 16384
        s_lshl_b32 s33, s35, 3
        s_add_u32 s33, s33, {XCH}
        v_add_u32 v{vB2}, s33, v{vCH}
        s_waitcnt lgkmcnt(0)
        """)
        soffs = ["s30", "s31", "s37"]
        def silu(mt, nt, e):
            p = acc(mt, nt); m = REC + 4 * mt; cs = CSR + 4 * nt
            for h in range(2):
                a(f"v_pk_fma_f32 v[{p+2*h}:{p+2*h+1}], v[{m}:{m+1}], v[{cs+2*h}:{cs+2*h+1}], v[{p+2*h}:{p+2*h+1}] op_sel_hi:[0,1,1] neg_lo:[1,0,0] neg_hi:[1,0,0]")
            for h in range(2):
                a(f"v_pk_mul_f32 v[{e+2*h}:{e+2*h+1}], v[{m+2}:{m+3}], v[{p+2*h}:{p+2*h+1}] op_sel_hi:[0,1]")
            for r in range(4):
                a(f"v_exp_f32 v{e+r}, v{e+r}")
            for h in range(2):
                a(f"v_pk_fma_f32 v[{e+2*h}:{e+2*h+1}], v[{e+2*h}:{e+2*h+1}], v[{m+2}:{m+3}], v[{m+2}:{m+3}] op_sel:[0,1,1] op_sel_hi:[1,1,1]")
            for r in range(4):
                a(f"v_rcp_f32 v{e+r}, v{e+r}")
            for h in range(2):
                a(f"v_pk_mul_f32 v[{p+2*h}:{p+2*h+1}], v[{p+2*h}:{p+2*h+1}], v[{e+2*h}:{e+2*h+1}]")
        for mt in range(4):
            silu(mt, 6, E + (mt % 2) * 4)
            p = acc(mt, 6)
            a(f"v_cvt_pk_bf16_f32 v{p}, v{p}, v{p+1}")
            a(f"v_cvt_pk_bf16_f32 v{p+1}, v{p+2}, v{p+3}")
            a(f"ds_write_b64 v{vB2}, v[{p}:{p+1}] offset:{mt*1024}")
        a("s_waitcnt lgkmcnt(0)")
        stamp(a, 40)
        a("s_barrier")
        stamp(a, 41)
        a(f"""
        s_lshl_b32 s33, s35, 11
        v_add_u32 v{vB2}, s33, v{vCH}
        v_add_u32 v{vB1}, {XCH}, v{vB2}
        ds_read_b128 v[{acc(0,6)}:{acc(0,6)+3}], v{vB1}
        ds_read_b128 v[{acc(1,6)}:{acc(1,6)+3}], v{vB1} offset:1024
        """)
        for nt in range(6):
            for mt in range(4):
                silu(mt, nt, E + (mt % 2) * 4)
                if nt % 2 == 1:
                    p0 = acc(mt, nt - 1)
                    if OPT["defer"] and nt > 1:
                        pk4(DEF + (nt // 2 - 1) * 16 + mt * 4, p0, acc(mt, nt))
                    else:
                        pk4(p0, p0, acc(mt, nt))
                        a(f"buffer_store_dwordx4 v[{p0}:{p0+3}], v{vCH}, s[16:19], {soffs[nt//2]} offen offset:{mt*1024} sc0 sc1")
            if nt == 0:
                a("s_waitcnt lgkmcnt(0)")
                a(f"buffer_store_dwordx4 v[{acc(0,6)}:{acc(0,6)+3}], v{vB2}, s[16:19], s36 offen sc0 sc1")
                a(f"buffer_store_dwordx4 v[{acc(1,6)}:{acc(1,6)+3}], v{vB2}, s[16:19], s36 offen offset:1024 sc0 sc1")
            if nt % 2 == 1: stamp(a, 42 + nt // 2)
            if nt == OPT["sigA"]:
                signal(a, 0, 2, acc(2, 6), False, 4 if (nt == 3 and not OPT['defer']) else 0, True)
                stamp(a, 45)
                if OPT["bar2"] == 0: a("s_barrier")
                stamp(a, 46)
            if nt == 4 and OPT["bar2"] == 2: a("s_barrier")
        stamp(a, c.sid + 3)
        if OPT["bar2"] == 1: a("s_barrier")
        a("s_mov_b32 s42, s24\ns_mov_b32 s43, s25\ns_mov_b32 s44, s31\ns_mov_b32 s45, s37")
        stamp(a, c.sid + 4)
    elif kind == "w2":
        XR = T + 32
        if c.sk:
            srd_off(a, 20, P_WS, XP_OFF, 8 * MB)
            a(f"""
            s_lshl_b32 s30, s24, 19
            s_lshl_b32 s31, s3, 13
            s_add_u32 s30, s30, s31
            s_lshl_b32 s31, s25, 15
            s_add_u32 s33, s30, s31
            s_xor_b32 s31, s31, {4 << 15}
            s_add_u32 s37, s30, s31
            v_lshlrev_b32 v{vA}, 4, v1
            """)
            for mt in range(4):
                t = acc(mt, 2)
                pk4(t, acc(mt, 2), acc(mt, 3))
                a(f"buffer_store_dwordx4 v[{t}:{t+3}], v{vA}, s[20:23], s33 offen offset:{mt*1024} sc0 sc1")
            signal(a, 6, 2, T)
            stamp(a, 47)
        srd_off(a, 16, P_OUT, 0, 4 * MB)
        a(f"""
        v_and_b32 v{t0}, 15, v1
        v_lshlrev_b32 v{t0}, 11, v{t0}
        v_and_b32 v{t1}, 1, v{vG}
        v_lshl_add_u32 v{t0}, v{t1}, 5, v{t0}
        v_lshrrev_b32 v{t1}, 1, v{vG}
        v_lshl_add_u32 v{t0}, v{t1}, 4, v{t0}
        s_lshl_b32 s30, s24, 18
        s_lshl_b32 s31, s34, 17
        s_add_u32 s30, s30, s31
        s_lshl_b32 s31, s25, 7
        s_add_u32 s30, s30, s31
        s_lshl_b32 s31, s35, 6
        s_add_u32 s30, s30, s31
        s_mov_b32 s36, 0xffff0000
        """)
        for mt in range(4):
            for nt in range(2):
                r = HRES + mt * 4 + nt * 2; p = acc(mt, nt)
                for d in range(2):
                    a(f"v_lshlrev_b32 v{T+16}, 16, v{r+d}")
                    a(f"v_and_b32 v{T+17}, s36, v{r+d}")
                    a(f"v_pk_add_f32 v[{p+2*d}:{p+2*d+1}], v[{p+2*d}:{p+2*d+1}], v[{T+16}:{T+17}]")
        if c.sk:
            lp = a.label("xpoll"); dn = a.label("skip_xp")
            a(f"""
            s_xor_b32 s40, s40, {4 << 5}
            s_mov_b32 s39, 0x200000
            {lp}:
            buffer_load_dwordx2 v[{T+4}:{T+5}], v{T+2}, s[{FLS}:{FLS+3}], s40 offen sc0 sc1
            s_waitcnt vmcnt(0)
            v_cmp_eq_u64 vcc, s[{TAG}:{TAG+1}], v[{T+4}:{T+5}]
            s_nop 3
            s_cmp_eq_u64 vcc, -1
            s_cbranch_scc1 {dn}
            s_sub_u32 s39, s39, 1
            s_cbranch_scc0 {lp}
            {dn}:
            """)
            stamp(a, 48)
            for mt in range(4):
                a(f"buffer_load_dwordx4 v[{XR+4*mt}:{XR+4*mt+3}], v{vA}, s[20:23], s37 offen offset:{mt*1024} sc0 sc1")
        for mt in range(4):
            if c.sk:
                a(f"s_waitcnt vmcnt(3)")
                for nt in range(2):
                    r = XR + mt * 4 + nt * 2; p = acc(mt, nt)
                    for d in range(2):
                        a(f"v_lshlrev_b32 v{T+16}, 16, v{r+d}")
                        a(f"v_and_b32 v{T+17}, s36, v{r+d}")
                        a(f"v_pk_add_f32 v[{p+2*d}:{p+2*d+1}], v[{p+2*d}:{p+2*d+1}], v[{T+16}:{T+17}]")
            t = T + mt * 4
            pk4(t, acc(mt, 0), acc(mt, 1))
            a(f"v_permlane16_swap_b32 v{t}, v{t+2}")
            a(f"v_permlane16_swap_b32 v{t+1}, v{t+3}")
            a(f"buffer_store_dwordx4 v[{t}:{t+3}], v{t0}, s[16:19], s30 offen")
            a("s_add_u32 s30, s30, 32768")
        stamp(a, c.sid + 3)
        if DIAG:
            a("s_waitcnt vmcnt(0)")
            stamp(a, c.sid + 4)

PV_A = 4
PV_B = 8
PV_SA = 16
PV_SB = 18
PV_RD = 32
PV_ACC = 80

def prod_setup(a, c):
    n = c.n
    wgmap(a, c.RX, c.CX)
    if c.a_off is None:
        a("s_lshl_b32 s30, s24, 18")
        srd_off(a, 8, P_X, "s30", 262144)
        for i in range(4):
            a(f"""
            v_lshrrev_b32 v2, 3, v1
            v_lshrrev_b32 v3, 4, v1
            v_add_u32 v3, {4*(i&1)}, v3
            v_and_b32 v{PV_A+i}, 7, v1
            v_xor_b32 v3, v3, v{PV_A+i}
            v_lshlrev_b32 v3, 4, v3
            v_lshl_add_u32 v3, v2, 11, v3
            s_lshl_b32 s30, s38, 16
            s_add_u32 s30, s30, {i*8*2048 - i*1024}
            v_add_u32 v{PV_A+i}, s30, v3
            """)
        c.astep = 128
    else:
        a(f"s_mul_i32 s30, s24, {c.K*256}")
        a(f"s_add_u32 s30, s30, {c.a_off}")
        srd_off(a, 8, P_WS, "s30", c.K * 256)
        a(f"""
        {"s_lshr_b32 s30, s38, 1" if c.sk else f"s_and_b32 s30, s38, {1 if c.kind == 'w2' else 3}"}
        s_lshl_b32 s30, s30, 12
        v_lshlrev_b32 v{PV_A}, 4, v1
        v_add_u32 v{PV_A}, s30, v{PV_A}
        """)
        c.astep = 16384
        if c.kind == "w2":
            a(f"""
            {"s_and_b32 s30, s38, 1" if c.sk else "s_lshr_b32 s30, s38, 1"}
            s_mul_i32 s63, s30, {4*8192}
            s_mul_i32 s64, s30, {7*8192}
            """)
    c.bstep = 64 * c.ldb
    CT = 16 // c.CX
    a(f"""
    s_and_b32 s65, s25, {CT-1}
    s_mul_i32 s65, s65, {(16 // CT) if c.rot else 0}
    """)
    if c.sk: a("s_and_b32 s65, s25, 4\ns_lshl_b32 s65, s65, 1")
    a(f"""
    s_lshl_b32 s34, s38, 12
    s_mul_i32 s35, s38, {c.NBW*1024}
    """)
    if c.sk:
        a("""
        s_and_b32 s34, s38, 1
        s_lshl_b32 s34, s34, 13
        s_lshr_b32 s30, s38, 1
        s_lshl_b32 s30, s30, 12
        s_add_u32 s34, s34, s30
        """)
    if c.kind == "w2": a(f"s_mul_i32 s66, s65, {7*8192}")
    b_setup(a, c, PV_B, 12)
    a(f"""
    s_mov_b32 s27, {c.ABASE}
    s_mov_b32 s32, {c.BBASE}
    s_mul_i32 s28, s65, {c.astep}
    s_mul_i32 s29, s65, {c.bstep}
    """)

def b_setup(a, c, dst, sr_):
    if c.sk:
        a("s_andn2_b32 s30, s25, 4")
        a(f"s_mul_i32 s30, s30, {c.bcol}")
    else:
        a(f"s_mul_i32 s30, s25, {c.bcol}")
    a(f"s_sub_u32 s31, {c.K*c.ldb}, s30")
    srd_off(a, sr_, c.wp, "s30", "s31")
    a(f"""
    s_mul_i32 s30, s38, {c.NBW*64}
    s_mov_b32 s36, {c.ldb}
    """)
    for i in range(c.NBW):
        a(f"s_add_u32 s31, s30, {i*64}")
        a(f"v_add_u32 v3, s31, v1")
        d = dst + i
        if c.layout == "panel":
            a("v_bfe_u32 v2, v3, 3, 6")
            if c.korder == "F":
                a(f"v_bfe_u32 v{d}, v2, 1, 2")
            else:
                a(f"v_bfe_u32 v{d}, v2, 1, 1")
                a("v_bfe_u32 v15, v2, 3, 1")
                a(f"v_lshl_or_b32 v{d}, v15, 1, v{d}")
            a(f"""
            v_lshlrev_b32 v{d}, 1, v{d}
            v_and_b32 v15, 7, v3
            v_xor_b32 v{d}, v{d}, v15
            v_and_b32 v2, {31 if c.kind == "w2" else 63}, v2
            v_mul_lo_u32 v2, v2, s36
            v_lshl_add_u32 v{d}, v{d}, 4, v2
            """)
            if c.pstride:
                a(f"""
                v_lshrrev_b32 v3, 9, v3
                {"s_bfe_u32 s31, s25, 0x10002" if c.sk else ""}
                {"v_xor_b32 v3, s31, v3" if c.sk else ""}
                v_mul_u32_u24 v3, {c.pstride}, v3
                v_add_u32 v{d}, v{d}, v3
                """)
        else:
            a(f"""
            v_mul_u32_u24 v2, 2341, v3
            v_lshrrev_b32 v2, 16, v2
            v_mul_u32_u24 v15, 28, v2
            v_sub_u32 v3, v3, v15
            v_bfe_u32 v15, v2, 2, 1
            v_lshlrev_b32 v15, 1, v15
            v_xor_b32 v3, v3, v15
            v_mul_lo_u32 v2, v2, s36
            v_lshl_add_u32 v{d}, v3, 4, v2
            """)
        if i & 3: a(f"v_subrev_u32 v{d}, {(i&3)*1024}, v{d}")

def issueA(a, c, slot=None, adv=True):
    if slot is None: a("s_add_u32 m0, s27, s34")
    else: a(f"s_add_u32 m0, s34, {c.ABASE + slot*16384}")
    for i in range(4):
        v = PV_A + (i if c.a_off is None else 0)
        a(f"buffer_load_dwordx4 v{v}, s[8:11], s28 offen offset:{i*1024}{'' if c.a_off is None else ' sc1'} lds")
    if adv:
        a(f"s_add_u32 s28, s28, {c.astep}")
        if c.rot: a(f"s_and_b32 s28, s28, {16*c.astep - 1}")
    if slot is None:
        a(f"""
        s_add_u32 s27, s27, 16384
        s_cmp_eq_u32 s27, {c.ABASE + c.S*16384}
        s_cselect_b32 s27, {c.ABASE}, s27
        """)

def issueB(a, c, slot=None, adv=True):
    for i in range(c.NBW):
        if i % 4 == 0:
            if slot is None:
                a("s_add_u32 m0, s32, s35")
                if i: a(f"s_add_u32 m0, m0, {i*1024}")
            else:
                a(f"s_add_u32 m0, s35, {c.BBASE + slot*c.BB + i*1024}")
        a(f"buffer_load_dwordx4 v{PV_B+i}, s[12:15], s29 offen offset:{(i&3)*1024}{' nt' if (c.kind == 'qkv' and OPT['qnt'] >= 2) else ''} lds")
    if adv:
        a(f"s_add_u32 s29, s29, {c.bstep}")
        if c.rot:
            a(f"s_cmp_eq_u32 s29, {16*c.bstep}")
            a("s_cselect_b32 s29, 0, s29")
    if slot is None:
        a(f"""
        s_add_u32 s32, s32, {c.BB}
        s_cmp_eq_u32 s32, {c.BBASE + c.S*c.BB}
        s_cselect_b32 s32, {c.BBASE}, s32
        """)

PV_POLL = 28
def poll_once(a, wide):
    t = PV_POLL
    if wide: a(f"buffer_load_dwordx4 v[{t}:{t+3}], v26, s[{FLS}:{FLS+3}], s33 offen sc0 sc1")
    else: a(f"buffer_load_dwordx2 v[{t}:{t+1}], v26, s[{FLS}:{FLS+3}], s33 offen sc0 sc1")
    a("s_waitcnt vmcnt(0)")
    a(f"v_cmp_eq_u64 s[56:57], s[{TAG}:{TAG+1}], v[{t}:{t+1}]")
    if wide:
        a(f"v_cmp_eq_u64 s[58:59], s[{TAG}:{TAG+1}], v[{t+2}:{t+3}]")
        a("s_nop 3")
        a("s_and_b64 s[56:57], s[56:57], s[58:59]")
    else:
        a("s_nop 3")

def gate(a, t, wide):
    lp = a.label("gate"); ok = a.label("skip_gate")
    a(f"{lp}:")
    if t == "all":
        a("s_cmp_eq_u32 s56, -1" if OPT["sk"] else "s_cmp_eq_u64 s[56:57], -1")
    else:
        a(f"s_bfe_u32 s30, s{56 + t // 8}, {hex((4 << 16) | (4 * (t % 8)))}")
        a("s_cmp_eq_u32 s30, 15")
    a(f"s_cbranch_scc1 {ok}")
    poll_once(a, wide)
    a("""
    s_sub_u32 s39, s39, 1
    s_cselect_b64 s[58:59], -1, 0
    s_cselect_b32 s39, 0, s39
    s_or_b64 s[56:57], s[56:57], s[58:59]
    """)
    a(f"s_branch {lp}")
    a(f"{ok}:")

def gate_setup(a, seam_id, wide):
    a(f"""
    s_lshl_b32 s30, s65, 2
    v_add_u32 v26, s30, v1
    v_and_b32 v26, 63, v26
    v_lshlrev_b32 v26, {4 if wide else 3}, v26
    s_lshl_b32 s33, s24, 10
    s_add_u32 s33, s33, {seam_id*16384}
    s_mov_b64 s[56:57], 0
    s_mov_b32 s39, 0x200000
    """)

def colsum_tile(a, c, lds_base, wsg, which, R):
    AD = R; ACCU = R + 4; D = R + 8; t = R + 40
    a(f"""
    v_lshrrev_b32 v{t}, 4, v1
    v_bfe_u32 v{t+1}, v1, 2, 2
    v_mul_u32_u24 v{t+2}, {c.gmul}, v{t}
    v_add_u32 v{t+2}, v{t+2}, v{t+1}
    v_mul_u32_u24 v{t+2}, {c.RS}, v{t+2}
    v_and_b32 v{t+3}, 3, v1
    v_lshl_add_u32 v{t+2}, v{t+3}, 3, v{t+2}
    v_and_b32 v{t}, 1, v{t}
    s_lshl_b32 s30, {wsg}, {13 if c.layout == "panel" else 7}
    s_add_u32 s30, s30, {lds_base}
    v_add_u32 v{t+2}, s30, v{t+2}
    """)
    if c.layout == "panel":
        a(f"v_lshrrev_b32 v{t+1}, 1, v{t+1}")
        a(f"v_lshl_or_b32 v{t}, v{t}, 1, v{t+1}")
    for ts in range(4):
        a(f"v_xor_b32 v{t+3}, {ts}, v{t}")
        a(f"v_lshl_add_u32 v{AD+ts}, v{t+3}, 5, v{t+2}")
    for q in range(4):
        for ts in range(4):
            d = D + (q * 4 + ts) * 2
            a(f"ds_read_b64_tr_b16 v[{d}:{d+1}], v{AD+ts} offset:{((q>>1)*32 + (q&1)*c.rdrows) * c.RS}")
    for ts in range(4): a(f"v_mov_b32 v{ACCU+ts}, 0")
    srd_off(a, 16, P_WS, CSG_OFF + which * 524288, 524288)
    a(f"""
    s_mov_b32 s75, 0x3f803f80
    s_lshl_b32 s30, s25, 15
    s_lshl_b32 s31, s24, 11
    s_add_u32 s30, s30, s31
    s_lshl_b32 s31, {wsg}, 9
    s_add_u32 s30, s30, s31
    v_lshlrev_b32 v{t}, 3, v1
    """)
    for q in range(4):
        a(f"s_waitcnt lgkmcnt({12-4*q})")
        for d in range(2):
            for ts in range(4):
                a(f"v_dot2c_f32_bf16 v{ACCU+ts}, s75, v{D+(q*4+ts)*2+d}")
    t0, t1, t2, t3 = ACCU, ACCU + 1, ACCU + 2, ACCU + 3
    a(f"""
    v_permlane32_swap_b32 v{t0}, v{t2}
    v_permlane32_swap_b32 v{t1}, v{t3}
    v_add_f32 v{t0}, v{t0}, v{t2}
    v_add_f32 v{t1}, v{t1}, v{t3}
    v_permlane16_swap_b32 v{t0}, v{t1}
    v_add_f32 v{t0}, v{t0}, v{t1}
    v_mov_b32 v{t1}, s{TAG}
    """)
    if c.kind == "qkv":
        sk = a.label("skip_xi")
        a(f"""
        s_cmp_lg_u32 {wsg}, 3
        s_cbranch_scc1 {sk}
        v_cmp_eq_u32 vcc, s74, v1
        v_cndmask_b32 v{t0}, 0, 1.0, vcc
        {sk}:
        """)
    a(f"buffer_store_dwordx2 v[{t0}:{t1}], v{t}, s[16:19], s30 offen sc0 sc1")

G_CS = 32
G_RS = 64
def gather_cs_setup(a, c):
    which = 0 if c.kind == "qkv" else 1
    srd_off(a, 16, P_WS, CSG_OFF + which * 524288, 524288)
    a(f"""
    s_lshl_b32 s60, s25, 15
    s_lshl_b32 s31, s38, 9
    s_add_u32 s60, s60, s31
    v_lshlrev_b32 v24, 3, v1
    """)
    return 0
def gather_cs(a, r0, r1):
    for r in range(r0, r1):
        a(f"buffer_load_dwordx2 v[{G_CS+2*r}:{G_CS+2*r+1}], v24, s[16:19], s60 offen offset:{(r&1)*2048} sc0 sc1")
        if r & 1: a("s_add_u32 s60, s60, 4096")
    return r1 - r0
def gather_rs_setup(a, c):
    if c.kind == "qkv":
        srd_off(a, 20, P_WS, RS1_OFF, 32768)
        a(f"""
        v_and_b32 v25, 31, v1
        v_lshlrev_b32 v25, 4, v25
        s_lshl_b32 s61, s24, 11
        s_lshl_b32 s31, s38, 9
        s_add_u32 s61, s61, s31
        """)
    else:
        srd_off(a, 20, P_WS, ST2_OFF, 16 * 32768)
        a(f"""
        v_and_b32 v25, 31, v1
        v_lshlrev_b32 v25, 2, v25
        v_lshrrev_b32 v15, 5, v1
        v_lshl_add_u32 v25, v15, 9, v25
        s_lshl_b32 s61, s24, 15
        s_lshl_b32 s31, s38, 7
        s_add_u32 s61, s61, s31
        """)
    return 0
def gather_rs(a, c, p0=0, p1=32):
    if c.kind == "qkv":
        a(f"buffer_load_dwordx4 v[{G_RS}:{G_RS+3}], v25, s[20:23], s61 offen sc0 sc1")
        return 1
    a(f"s_add_u32 s30, s65, {p0 // 2}")
    a("s_and_b32 s30, s30, 15")
    a("s_lshl_b32 s30, s30, 11")
    a("s_add_u32 s30, s30, s61")
    for p in range(p0, p1):
        a(f"buffer_load_dword v{G_RS+p}, v25, s[20:23], s30 offen offset:{(p&1)*1024} sc0 sc1")
    return p1 - p0

def gather_finish_cs(a, c):
    lp = a.label("gchk"); ok = a.label("skip_gok")
    a("s_mov_b32 s62, 0x40000")
    a(f"{lp}:")
    a(f"v_xor_b32 v15, s{TAG}, v{G_CS+1}")
    for r in range(1, 16):
        a(f"v_xor_b32 v27, s{TAG}, v{G_CS+2*r+1}")
        a("v_or_b32 v15, v15, v27")
    if c.kind == "qkv":
        a(f"v_xor_b32 v27, s{TAG}, v{G_RS+2}")
        a("v_or_b32 v15, v15, v27")
        a(f"v_xor_b32 v27, s{TAG+1}, v{G_RS+3}")
        a("v_or_b32 v15, v15, v27")
    a(f"""
    v_cmp_ne_u32 vcc, 0, v15
    s_nop 3
    s_cmp_eq_u64 vcc, 0
    s_cbranch_scc1 {ok}
    s_sub_u32 s62, s62, 1
    s_cbranch_scc1 {ok}
    s_sleep 2
    """)
    gather_cs_setup(a, c); gather_cs(a, 0, 16)
    if c.kind == "qkv": gather_rs(a, c)
    a("s_waitcnt vmcnt(0)")
    a(f"s_branch {lp}")
    a(f"{ok}:")
    for r in range(1, 16): a(f"v_add_f32 v{G_CS}, v{G_CS}, v{G_CS+2*r}")
    a(f"""
    v_lshlrev_b32 v2, 2, v1
    s_lshl_b32 s30, s38, 8
    s_add_u32 s30, s30, {ST_CS}
    v_add_u32 v2, s30, v2
    ds_write_b32 v2, v{G_CS}
    """)
    return 0

def gather_finish_rs(a, c):
    a(f"""
    v_and_b32 v3, 31, v1
    s_lshl_b32 s30, s38, 5
    v_add_u32 v3, s30, v3
    v_lshlrev_b32 v2, 4, v3
    v_add_u32 v2, {ST_REC}, v2
    """)
    R = G_RS
    if c.kind == "qkv":
        a(f"""
        v_lshlrev_b32 v3, 2, v3
        v_add_u32 v3, {ST_MEAN}, v3
        ds_write_b128 v2, v[{R}:{R+3}]
        ds_write_b32 v3, v{R}
        ds_write_b32 v3, v{R+1} offset:512
        """)
    else:
        a(f"""
        v_mov_b32 v{R+1}, v{R}
        v_permlane32_swap_b32 v{R}, v{R+1}
        v_mul_f32 v{R}, {f32(1.0/1024)}, v{R}
        v_mul_f32 v{R+1}, {f32(1.0/1024)}, v{R+1}
        v_fma_f32 v{R+1}, -v{R}, v{R}, v{R+1}
        v_max_f32 v{R+1}, 0, v{R+1}
        v_add_f32 v{R+4}, {f32(1e-5)}, v{R+1}
        v_rsq_f32 v{R+1}, v{R+4}
        v_sqrt_f32 v{R+3}, v{R+4}
        v_mul_f32 v{R+2}, {f32(-LOG2E)}, v{R+1}
        ds_write_b128 v2, v[{R}:{R+3}]
        """)
    a("s_waitcnt lgkmcnt(0)")
    return 0

def row_stats_issue(a, X):
    srd_off(a, 20, P_X, 0, 4 * MB)
    srd_off(a, 16, P_DBG, 0, 256)
    a(f"""
    s_lshl_b32 s30, s24, 7
    s_lshl_b32 s31, s25, 3
    s_add_u32 s30, s30, s31
    s_lshl_b32 s31, s3, 1
    s_add_u32 s33, s30, s31
    s_lshl_b32 s30, s33, 11
    v_lshlrev_b32 v{X+18}, 4, v1
    v_mov_b32 v{X+19}, 0
    """)
    for i in range(4):
        a(f"buffer_load_dwordx4 v[{X+4*i}:{X+4*i+3}], v{X+18}, s[20:23], s30 offen offset:{i*1024}")

def row_stats_finish(a, X, T):
    s0, q0, s1, q1 = T, T + 1, T + 2, T + 3
    a(f"buffer_load_dwordx2 v[{X+16}:{X+17}], v{X+19}, s[16:19], 0 offen sc0 sc1")
    a("s_mov_b32 s75, 0x3f803f80")
    for i in range(4): a(f"v_mov_b32 v{T+i}, 0")
    a("s_waitcnt vmcnt(1)")
    for d in range(8):
        for row in range(2):
            r = X + 8 * row + d
            a(f"v_dot2c_f32_bf16 v{T+2*row}, s75, v{r}")
            a(f"v_dot2c_f32_bf16 v{T+2*row+1}, v{r}, v{r}")
    a(f"""
    v_permlane32_swap_b32 v{s0}, v{q0}
    v_permlane32_swap_b32 v{s1}, v{q1}
    v_add_f32 v{s0}, v{s0}, v{q0}
    v_add_f32 v{s1}, v{s1}, v{q1}
    v_permlane16_swap_b32 v{s0}, v{s1}
    v_add_f32 v{s0}, v{s0}, v{s1}
    v_add_f32_dpp v{s0}, v{s0}, v{s0} quad_perm:[1,0,3,2] row_mask:0xf bank_mask:0xf
    v_add_f32_dpp v{s0}, v{s0}, v{s0} quad_perm:[2,3,0,1] row_mask:0xf bank_mask:0xf
    v_add_f32_dpp v{s0}, v{s0}, v{s0} row_half_mirror row_mask:0xf bank_mask:0xf
    v_add_f32_dpp v{s0}, v{s0}, v{s0} row_mirror row_mask:0xf bank_mask:0xf
    v_mov_b32 v{q0}, v{s0}
    v_permlane32_swap_b32 v{s0}, v{q0}
    v_mul_f32 v{s0}, {f32(1.0/1024)}, v{s0}
    v_mul_f32 v{q0}, {f32(1.0/1024)}, v{q0}
    v_fma_f32 v{q0}, -v{s0}, v{s0}, v{q0}
    v_max_f32 v{q0}, 0, v{q0}
    v_add_f32 v{q0}, {f32(1e-5)}, v{q0}
    v_rsq_f32 v{q0}, v{q0}
    """)
    lp = a.label("tagp"); dn = a.label("tagd")
    a(f"""
    s_mov_b32 s39, 0x100000
    {lp}:
    s_waitcnt vmcnt(0)
    v_readfirstlane_b32 s{TAG}, v{X+16}
    v_readfirstlane_b32 s{TAG+1}, v{X+17}
    s_nop 3
    s_cmp_lg_u32 s{TAG}, 0
    s_cbranch_scc1 {dn}
    s_sleep 1
    buffer_load_dwordx2 v[{X+16}:{X+17}], v{X+19}, s[16:19], 0 offen sc0 sc1
    s_sub_u32 s39, s39, 1
    s_cmp_lg_u32 s39, 0
    s_cbranch_scc1 {lp}
    {dn}:
    """)
    srd_off(a, 20, P_WS, RS1_OFF, 32768)
    a(f"""
    v_mov_b32 v{s1}, s{TAG}
    v_mov_b32 v{q1}, s{TAG+1}
    v_and_b32 v{T+4}, 16, v1
    s_lshl_b32 s30, s33, 4
    v_mov_b32 v{T+5}, {ST_TAG}
    s_mov_b64 exec, 0x10001
    buffer_store_dwordx4 v[{T}:{T+3}], v{T+4}, s[20:23], s30 offen sc0 sc1
    ds_write_b64 v{T+5}, v[{s1}:{q1}]
    s_mov_b64 exec, -1
    s_waitcnt lgkmcnt(0)
    """)

def w2_kg(t):
    if OPT["sk"]:
        if t < 8: return 7 * t, 4
        if t < 12: return 14 * (t - 8) + 3, 7
        if t < 20: return 7 * (t - 12) + 1, 4
        return 7 * (t - 20) + 2, 4
    if t < 16: return 7 * t, 4
    if t < 24: return 14 * (t - 16) + 3, 7
    if t < 40: return 7 * (t - 24) + 1, 4
    return 7 * (t - 40) + 2, 4

def set_soff(a, c, st, A=True, B=True):
    if c.kind != "w2": return
    base, dh = w2_kg(st)
    off = base % 7
    hs = "s63" if dh == 4 else "s64"
    a(f"s_add_u32 s30, s66, {(base - off)*8192}")
    a(f"s_sub_u32 s31, s30, {112*8192}")
    a("s_cselect_b32 s30, s30, s31")
    a(f"s_add_u32 s30, s30, {hs}")
    if A: a(f"s_add_u32 s28, s30, {off*8192}")
    if B:
        a(f"s_add_u32 s29, s30, {off*8192}")
        a("s_lshl_b32 s29, s29, 3")

def pre_B(a, c):
    for st in range(c.S):
        set_soff(a, c, st, A=False)
        issueB(a, c, st % c.S, c.kind != "w2")

def gemm_producer(a, c, preB, gated=None, side=None, after_issue=None, unroll_to=None):
    n = c.n; S = c.S; L = 4 + c.NBW
    side = side or {}
    U = n if unroll_to is None else unroll_to
    ops = []
    w2 = c.kind == "w2"
    def iss(st):
        if gated and st < (8 if c.sk else 16): gate(a, st, gated == "wide")
        if st == 0: stamp(a, c.sid)
        doB = not (preB and st < S)
        set_soff(a, c, st, True, doB)
        issueA(a, c, st % S, not w2); ops.extend([st] * 4)
        if doB:
            issueB(a, c, st % S, not w2); ops.extend([st] * c.NBW)
        if after_issue: ops.extend([st] * after_issue(st))
    def wait(st):
        last = max(i for i, x in enumerate(ops) if x <= st)
        a(f"s_waitcnt vmcnt({min(63, len(ops) - 1 - last)})")
    def run_side(j, tag):
        for f in side.get(j, []): ops.extend([tag] * (f() or 0))
    if DIAG and OPT['steps']: a('s_mov_b32 s54, 0\nv_mov_b32 v252, 0')
    iss(0)
    run_side(-1, 1)
    iss(1); issued = 2
    wait(0)
    stamp(a, c.sid + 1)
    pbar(a)
    j = 0
    while j < n:
        allowed = j - 1 + S
        if issued >= U and issued < n: break
        cnt = 0
        while issued <= allowed and cnt < 2 and issued < U:
            iss(issued); issued += 1; cnt += 1
        if issued == n and cnt: stamp(a, c.sid + 2)
        run_side(j, max(issued - 1, j + 2))
        j += 1
        if j < n: wait(j)
        pbar(a)
    if j < n:
        assert issued == j - 1 + S
        a(f"s_mov_b32 s27, {c.ABASE + (issued % S)*16384}")
        a(f"s_mov_b32 s32, {c.BBASE + (issued % S)*c.BB}")
        for (t0, t1, stride) in c.rounds:
            if t0 == c.gate_all_at:
                a(f"s_waitcnt vmcnt({(c.gate_all_at - c.prepoll_at) * L})")
                a(f"v_cmp_eq_u64 s[56:57], s[{TAG}:{TAG+1}], v[{PV_POLL}:{PV_POLL+1}]")
                a("s_nop 3")
                gate(a, "all", False)
            if t0 == c.prepoll_at:
                gate_setup(a, c.seamB, False)
                a(f"buffer_load_dwordx2 v[{PV_POLL}:{PV_POLL+1}], v26, s[{FLS}:{FLS+3}], s33 offen sc0 sc1")
            if t0 in c.round_hook: c.round_hook[t0]()
            lp = a.label("p_loop")
            set_soff(a, c, t0, True, False)
            a(f"s_mov_b32 s26, {t1 - t0}")
            a(f"{lp}:")
            a("s_lshl_b32 s29, s28, 3")
            issueA(a, c, None, False); issueB(a, c, None, False)
            a(f"s_add_u32 s28, s28, {stride*8192}")
            a(f"s_sub_u32 s31, s28, {112*8192}")
            a("s_cselect_b32 s28, s28, s31")
            a(f"s_waitcnt vmcnt({(S-2)*L})")
            if DIAG and OPT["steps"]:
                pbar(a)
                a(f"s_sub_u32 s26, s26, 1\ns_cmp_lg_u32 s26, 0\ns_cbranch_scc1 {lp}")
            else:
                a(f"s_sub_u32 s26, s26, 1\ns_cmp_lg_u32 s26, 0\ns_barrier\ns_cbranch_scc1 {lp}")
        j = n - S + 1
        stamp(a, c.sid + 2)
        while j < n:
            j += 1
            if j < n: a(f"s_waitcnt vmcnt({(n-1-j)*L})")
            pbar(a)
    stamp(a, c.sid + 3)
    pbar_flush(a, {'qkv':0,'wo':1,'w1':2,'w2':3}[c.kind])

def touch(a, ptr, total_bytes, sr_=20):
    nl = total_bytes // 128 // 1024
    srd_off(a, sr_, ptr, 0, total_bytes)
    a(f"""
    s_lshl_b32 s30, s2, 2
    s_add_u32 s30, s30, s38
    s_mul_i32 s30, s30, {nl*128}
    v_lshlrev_b32 v2, 7, v1
    s_mov_b32 exec_lo, {hex(((1 << nl) - 1) & 0xffffffff)}
    s_mov_b32 exec_hi, {hex(((1 << nl) - 1) >> 32)}
    buffer_load_dword v253, v2, s[{sr_}:{sr_+3}], s30 offen
    s_mov_b64 exec, -1
    """)
    return 1

def xtouch_setup(a, ptr, nbytes, sr_, vreg):
    srd_off(a, sr_, ptr, 0, nbytes)
    a(f"""
    v_lshrrev_b32 v2, 2, v1
    v_lshlrev_b32 v2, 11, v2
    v_and_b32 v3, 3, v1
    v_lshl_add_u32 v2, v3, 7, v2
    s_and_b32 s30, s2, 3
    s_lshl_b32 s30, s30, 9
    s_lshl_b32 s31, s38, 14
    s_add_u32 s30, s30, s31
    v_add_u32 v2, s30, v2
    v_mov_b32 v3, 0x40000000
    v_cmp_gt_u32 vcc, 32, v1
    v_cndmask_b32 v{vreg}, v3, v2, vcc
    """)

def w2_xtouch(a, q):
    a(f"""
    s_lshr_b32 s30, s2, 4
    s_mul_i32 s30, s30, {7*65536}
    s_bfe_u32 s31, s2, 0x10003
    s_mul_i32 s31, s31, {4*65536 if q < 3 else 0x20000000}
    s_add_u32 s30, s30, s31
    s_add_u32 s30, s30, {q*65536}
    buffer_load_dword v253, v23, s[44:47], s30 offen
    """)
    return 1

def attention(a):
    SC = (32 ** -0.5) * LOG2E
    vF, vL, vQH = 2, 4, 5
    Q = 8; O = 16; SB = 32; F = 176; T = 248
    a(f"""
    v_bfe_u32 v6, v1, 4, 1
    v_lshlrev_b32 v{vF}, 10, v6
    v_lshrrev_b32 v6, 5, v1
    v_lshl_add_u32 v{vF}, v6, 8, v{vF}
    v_and_b32 v7, 15, v1
    v_lshl_add_u32 v{vF}, v7, 4, v{vF}
    v_and_b32 v7, 31, v1
    v_lshlrev_b32 v6, 2, v6
    v_sub_u32 v{vQH}, v7, v6
    s_lshr_b32 s34, s3, 2            ; hh
    s_and_b32 s35, s3, 3             ; qb
    s_mul_i32 s30, s34, {HEADW}
    s_lshl_b32 s31, s35, 11
    s_add_u32 s30, s30, s31
    v_add_u32 v{vL}, s30, v{vF}
    ds_read_b128 v[{Q}:{Q+3}], v{vL} offset:49152
    ds_read_b128 v[{Q+4}:{Q+7}], v{vL} offset:{49152+512}
    """)
    def fr(b, i): return F + b * 8 + i * 4
    rd = []
    for b in range(9):
        for i in range(2):
            rd.append(f"ds_read_b128 v[{fr(b,i)}:{fr(b,i)+3}], v{vL} offset:{b*2048 + i*512}")
    for x in rd[:8]: a(x)
    for r in range(16):
        cst = 8 * (r >> 2) + (r & 3)
        a(f"v_cmp_gt_i32 s[{40+2*r}:{41+2*r}], {cst}, v{vQH}")
    nissued = 8
    rv = []
    for b in range(9):
        for i in range(2):
            rv.append(f"ds_read_b128 v[{fr(b,i)}:{fr(b,i)+3}], v{vL} offset:{24576 + b*2048 + i*512}")
    for b in range(9):
        a(f"s_waitcnt lgkmcnt({nissued - (2*b+2)})")
        s = SB + 16 * b
        a(f"v_mfma_f32_32x32x16_bf16 v[{s}:{s+15}], v[{fr(b,0)}:{fr(b,0)+3}], v[{Q}:{Q+3}], 0")
        if nissued < 18: a(rd[nissued]); nissued += 1
        a(f"v_mfma_f32_32x32x16_bf16 v[{s}:{s+15}], v[{fr(b,1)}:{fr(b,1)+3}], v[{Q+4}:{Q+7}], v[{s}:{s+15}]")
        if nissued < 18: a(rd[nissued]); nissued += 1
    for x in rv[:14]: a(x)
    skip = a.label("at_valid")
    a(f"""
    s_lshl_b32 s30, s24, 2
    s_add_u32 s30, s30, s35
    s_cmp_ge_u32 s30, 8
    s_cbranch_scc1 {skip}
    """)
    for b in range(8):
        nb = a.label("at_nb")
        a(f"s_cmp_ge_u32 s30, {8-b}")
        a(f"s_cbranch_scc1 {nb}")
        for r in range(16):
            a(f"v_mov_b32 v{SB+16*b+r}, 0xff800000")
        a(f"{nb}:")
    a(f"{skip}:")
    mx = T; mx2 = T + 1; sm = T + 2
    a(f"v_max_f32 v{mx}, v{SB+16}, v{SB+17}")
    a(f"v_max_f32 v{mx2}, v{SB+18}, v{SB+19}")
    idx = list(range(20, 128))
    for k in range(0, len(idx), 2):
        m = mx if (k // 2) % 2 == 0 else mx2
        a(f"v_max3_f32 v{m}, v{SB+idx[k]}, v{SB+idx[k+1]}, v{m}")
    for r in range(16):
        a(f"v_cndmask_b32 v{SB+r}, v{SB+128+r}, v{SB+r}, s[{40+2*r}:{41+2*r}]")
    for k in range(0, 16, 2):
        m = mx if (k // 2) % 2 == 0 else mx2
        a(f"v_max3_f32 v{m}, v{SB+k}, v{SB+k+1}, v{m}")
    for x in rv[14:]: a(x)
    a(f"""
    v_max_f32 v{mx}, v{mx}, v{mx2}
    v_mov_b32 v{mx2}, v{mx}
    v_permlane32_swap_b32 v{mx}, v{mx2}
    v_max_f32 v{mx}, v{mx}, v{mx2}
    v_mov_b32 v{Q}, {f32(SC)}
    v_mul_f32 v{Q+1}, v{Q}, v{mx}
    v_mov_b32 v{sm}, 0
    v_mov_b32 v{sm+1}, 0
    s_waitcnt lgkmcnt(0)
    s_barrier
    """)
    sk = a.label("skip_x1")
    a(f"""
    s_cmp_lt_u32 s3, 4
    s_cbranch_scc1 {sk}
    s_mul_i32 s30, s24, {64*7168}
    s_mul_i32 s31, s38, 7168
    """)
    for i in range(7):
        if i % 4 == 0: a(f"s_add_u32 m0, s31, {XB1 + i*1024}")
        a(f"buffer_load_dwordx4 v{O+i}, s[20:23], s30 offen offset:{(i&3)*1024} lds")
    a(f"{sk}:")
    def pack(s):
        for d, r in [(0, 0), (1, 2), (2, 8), (3, 10), (4, 4), (5, 6), (6, 12), (7, 14)]:
            a(f"v_cvt_pk_bf16_f32 v{s+d}, v{s+r}, v{s+r+1}")
    first = [True]
    def pv(b, s):
        c0 = "0" if first[0] else f"v[{O}:{O+15}]"
        first[0] = False
        a(f"v_mfma_f32_32x32x16_bf16 v[{O}:{O+15}], v[{fr(b,0)}:{fr(b,0)+3}], v[{s}:{s+3}], {c0}")
        a(f"v_mfma_f32_32x32x16_bf16 v[{O}:{O+15}], v[{fr(b,1)}:{fr(b,1)+3}], v[{s+4}:{s+7}], v[{O}:{O+15}]")
    pending = None
    for b in [0, 1, 2, 3, 4, 5, 6, 7]:
        s = SB + 16 * b
        for r in range(0, 16, 2):
            a(f"v_pk_fma_f32 v[{s+r}:{s+r+1}], v[{s+r}:{s+r+1}], v[{Q}:{Q+1}], v[{Q}:{Q+1}] op_sel:[0,0,1] op_sel_hi:[1,0,1] neg_lo:[0,0,1] neg_hi:[0,0,1]")
        if pending is not None:
            for p in pending: pv(*p)
            pending = None
        for r in range(16):
            a(f"v_exp_f32 v{s+r}, v{s+r}")
        for r in range(0, 16, 2):
            a(f"v_pk_add_f32 v[{sm}:{sm+1}], v[{sm}:{sm+1}], v[{s+r}:{s+r+1}]")
        if b == 0:
            s8 = SB + 128
            for r in range(16):
                a(f"v_cndmask_b32 v{s8+r}, v{s+r}, 0, s[{40+2*r}:{41+2*r}]")
                a(f"v_cndmask_b32 v{s+r}, 0, v{s+r}, s[{40+2*r}:{41+2*r}]")
            pack(s); pack(s8)
            pending = [(0, s), (8, s8)]
        else:
            pack(s)
            pending = [(b, s)]
    for p in pending: pv(*p)
    srd_off(a, 16, P_WS, O_OFF, 4 * MB)
    a(f"""
    v_add_f32 v{sm}, v{sm}, v{sm+1}
    v_mov_b32 v{sm+1}, v{sm}
    v_permlane32_swap_b32 v{sm}, v{sm+1}
    v_add_f32 v{sm}, v{sm}, v{sm+1}
    v_rcp_f32 v{sm}, v{sm}
    s_lshl_b32 s30, s24, 18
    s_lshl_b32 s31, s25, 14
    s_add_u32 s30, s30, s31
    s_lshl_b32 s31, s34, 13
    s_add_u32 s30, s30, s31
    s_lshl_b32 s31, s35, 11
    s_add_u32 s30, s30, s31
    """)
    for r in range(0, 16, 2):
        a(f"v_pk_mul_f32 v[{O+r}:{O+r+1}], v[{O+r}:{O+r+1}], v[{sm}:{sm+1}] op_sel_hi:[1,0]")
    pack(O)
    a(f"""
    buffer_store_dwordx4 v[{O}:{O+3}], v{vF}, s[16:19], s30 offen sc0 sc1
    buffer_store_dwordx4 v[{O+4}:{O+7}], v{vF}, s[16:19], s30 offen offset:512 sc0 sc1
    """)
    stamp(a, 10)
    signal(a, 1, 3, SB)
    stamp(a, 11)

def build(header_src=None):
    a = Asm()
    C = {k: mk(k, **v) for k, v in CFG.items()}
    kernel_begin(a, KNAME)
    a(f"""
    s_cmp_ge_u32 s2, 256
    s_cbranch_scc1 L_end
    s_load_dwordx16 s[80:95], s[0:1], 0
    s_load_dwordx2 s[4:5], s[0:1], 64
    v_lshrrev_b32 v2, 6, v0
    v_and_b32 v1, 63, v0
    v_readfirstlane_b32 s3, v2
    s_getreg_b32 s74, hwreg(HW_REG_XCC_ID)
    s_and_b32 s74, s74, 15
    s_mov_b32 s{TAG}, 0
    s_mov_b32 s{TAG+1}, 0
    s_waitcnt lgkmcnt(0)
    """)
    srd_off(a, FLS, P_WS, FL_OFF, 131072)
    if DIAG: a(f"v_mov_b32 v{VS}, 0")
    stamp(a, 63)
    a("""
    s_cmp_ge_u32 s3, 4
    s_cbranch_scc1 L_prod
    """)
    a("""
    s_or_b32 s30, s2, s3
    s_cmp_lg_u32 s30, 0
    s_cbranch_scc1 L_notag
    """)
    srd_off(a, 16, P_DBG, 0, 256)
    a("""
    s_memrealtime s[30:31]
    v_mov_b32 v4, 0
    s_waitcnt lgkmcnt(0)
    s_or_b32 s30, s30, 1
    v_mov_b32 v2, s30
    v_mov_b32 v3, s31
    s_mov_b64 exec, 1
    buffer_store_dwordx2 v[2:3], v4, s[16:19], 0 offen sc0 sc1
    s_mov_b64 exec, -1
    L_notag:
    """)
    if OPT["cpf"]:
        a(f"""
        s_getpc_b64 s[30:31]
        L_pc:
        s_sub_u32 s16, s30, L_pc-{KNAME}
        s_subb_u32 s17, s31, 0
        s_mov_b32 s18, L_code_end-{KNAME}
        s_mov_b32 s19, 0x20000
        s_lshl_b32 s30, s3, 13
        v_lshlrev_b32 v2, 7, v1
        buffer_load_dword v253, v2, s[16:19], s30 offen
        s_add_u32 s30, s30, 32768
        buffer_load_dword v253, v2, s[16:19], s30 offen
        """)
    if OPT["prio"]: a(f"s_setprio {OPT['prio']}")
    gemm_consumer(a, C["qkv"])
    a("s_barrier")
    a("L_attn:")
    stamp(a, 9)
    attention(a)
    a("""
    s_barrier
    s_cmp_ge_u32 s3, 4
    s_cbranch_scc1 L_prod2
    """)
    colsum_tile(a, C["w1"], XB1, "s3", 1, 32)
    gemm_consumer(a, C["wo"])
    gemm_consumer(a, C["w1"])
    gemm_consumer(a, C["w2"])
    stamp_flush(a)
    a("s_endpgm")
    C["w2"].ool()
    a("L_prod:")
    a("s_sub_u32 s38, s3, 4")
    c = C["qkv"]
    prod_setup(a, c)
    cq = c
    def q_extra():
        a(f"s_mul_i32 s33, s24, {64*cq.ldb}")
        for i in range(cq.NBW):
            if i % 4 == 0: a(f"s_add_u32 m0, s35, {XB0 + i*1024}")
            a(f"buffer_load_dwordx4 v{PV_B+i}, s[12:15], s33 offen offset:{(i&3)*1024}{' nt' if OPT['qnt'] else ''} lds")
        return cq.NBW
    def q_colsum():
        a(f"""
        v_mov_b32 v2, {ST_TAG}
        ds_read_b64 v[{PV_RD}:{PV_RD+1}], v2
        s_waitcnt lgkmcnt(0)
        v_readfirstlane_b32 s{TAG}, v{PV_RD}
        v_readfirstlane_b32 s{TAG+1}, v{PV_RD+1}
        s_setprio 3
        """)
        colsum_tile(a, cq, XB0, "s38", 0, PV_RD)
        a("s_setprio 0")
        return 1
    def hi(f):
        def g():
            a("s_setprio 3"); r = f(); a("s_setprio 0"); return r
        return g
    side = {-1: [q_extra], 1: [q_colsum], 12: [lambda: gather_cs_setup(a, cq), lambda: gather_rs_setup(a, cq)],
            13: [lambda: gather_cs(a, 0, 16), lambda: gather_rs(a, cq)]}
    side[15] = [lambda: a("s_waitcnt vmcnt(0)"), hi(lambda: gather_finish_cs(a, cq)), hi(lambda: gather_finish_rs(a, cq))]
    spf = [0]
    def sprefetch(k):
        def f():
            for _ in range(k):
                if spf[0] < 112:
                    a(f"s_load_dword s{100 + (spf[0] & 1)}, s[68:69], {spf[0]*64}")
                    spf[0] += 1
            return 0
        return f
    def spf_setup():
        a(f"""
        s_lshl_b32 s30, s2, 2
        s_add_u32 s30, s30, s38
        s_mul_i32 s30, s30, 7168
        s_add_u32 s68, s{P_W2}, s30
        s_addc_u32 s69, s{P_W2+1}, 0
        """)
        return 0
    if OPT["pf"] == 3:
        side.setdefault(2, []).append(spf_setup)
        for k in range(3, 13): side.setdefault(k, []).append(sprefetch(5))
    gemm_producer(a, c, False, None, side)
    a(f"""
    s_sub_u32 s30, s24, 1
    s_max_i32 s30, s30, 0
    s_sub_u32 s31, s24, 2
    s_max_i32 s31, s31, 0
    s_sub_u32 s30, s30, s31
    s_lshl_b32 s30, s30, 11
    v_bfe_u32 v2, v1, 2, 1
    v_mul_lo_u32 v2, v2, s30
    v_and_b32 v3, 3, v1
    v_lshl_add_u32 v2, v3, 3, v2
    s_lshl_b32 s31, s31, 11
    s_lshl_b32 s30, s25, 7
    s_add_u32 s33, s30, s31
    s_add_u32 s33, s33, 65536
    """)
    a(f"""
    s_lshr_b32 s34, s38, 1
    s_and_b32 s35, s38, 1
    s_lshl_b32 s30, s25, 1
    s_add_u32 s30, s30, s34
    s_lshl_b32 s30, s30, 17
    s_lshl_b32 s31, s35, 22
    s_add_u32 s30, s30, s31
    s_add_u32 s30, s30, {K_OFF}
    """)
    srd_off(a, 8, P_WS, "s30", 131072)
    a(f"""
    s_lshl_b32 s30, s24, 13
    s_sub_u32 s30, s30, 16384
    v_lshlrev_b32 v4, 4, v1
    v_add_u32 v4, s30, v4
    s_mul_i32 s34, s34, {HEADW}
    s_mul_i32 s35, s35, 24576
    s_add_u32 s34, s34, s35
    """)
    a("v_mov_b32 v5, v2")
    b_setup(a, C["w1"], 16, 20)
    wait_flags(a, 5, "s33", False, PV_RD)
    stamp(a, 5)
    for q in range(4):
        a(f"s_add_u32 m0, s34, {q*4096}")
        for i in range(4):
            a(f"buffer_load_dwordx4 v4, s[8:11], 0 offen offset:{i*1024}{NBF[OPT['nbf']]} lds")
        if q < 3: a("v_add_u32 v4, 0x1000, v4")
    a("s_mov_b32 s98, s24\ns_mov_b32 s99, s25")
    c = C["wo"]
    prod_setup(a, c)
    a("s_mov_b32 s24, s98\ns_mov_b32 s25, s99")
    a("s_waitcnt vmcnt(0)")
    stamp(a, 6)
    a("s_barrier")
    pre_B(a, c)
    if OPT["xt"]:
        xtouch_setup(a, P_WO, 2 * MB, 16, 2)
        a("""
        s_lshr_b32 s30, s2, 3
        s_lshl_b32 s30, s30, 16
        buffer_load_dword v253, v2, s[16:19], s30 offen
        """)
    elif OPT["pf"]: touch(a, P_WO, 2 * MB, 16)
    a("s_branch L_attn")
    a("L_prod2:")
    c = C["wo"]
    prod_setup(a, c)
    a(f"s_add_u32 s29, s29, {c.S*64*c.ldb}")
    a(f"s_and_b32 s29, s29, {16*64*c.ldb - 1}")
    gate_setup(a, 1, True)
    gemm_producer(a, c, True, "wide")
    c = C["w1"]; c1 = c
    prod_setup(a, c)
    if OPT["wobar"]: a("s_barrier")
    pre_B(a, c)
    gather_cs_setup(a, c); gather_cs(a, 0, 16)
    gather_rs_setup(a, c)
    gate_setup(a, 2, False)
    a("s_waitcnt vmcnt(0)")
    gather_finish_cs(a, c)
    def w2hook(k):
        def f():
            sk = a.label("skip_pf")
            a(f"""
            s_lshr_b32 s30, s2, 3
            s_and_b32 s30, s30, 7
            s_cmp_lg_u32 s30, {k}
            s_cbranch_scc1 {sk}
            """)
            touch(a, P_W2, 7 * MB, 44)
            a(f"{sk}:")
            return 0
        return f
    side = {}
    if OPT["pf"] == 2:
        for k in range(8): side.setdefault(3 + k, []).append(w2hook(k))
    if OPT["pf"] == 3:
        spf_setup()
        for k in range(0, 13): side.setdefault(k, []).append(sprefetch(5))
    def rs_add(p0, p1):
        def f():
            for p in range(max(p0, 1), p1): a(f"v_add_f32 v{G_RS}, v{G_RS}, v{G_RS+p}")
        return f
    side.setdefault(8, []).append(hi(rs_add(0, 16)))
    side.setdefault(14, []).append(hi(rs_add(16, 28)))
    side[15] = [hi(rs_add(28, 32)), hi(lambda: gather_finish_rs(a, c1))]
    gemm_producer(a, c, True, "narrow", side, lambda st: gather_rs(a, c1, 2 * st, 2 * st + 2))
    c = C["w2"]
    c.rounds = [(16, OPT['prepoll'], 14), (OPT['prepoll'], 24, 14), (24, 40, 7), (40, 56, 7)]; c.prepoll_at = OPT['prepoll']; c.gate_all_at = 24; c.seamB = 3
    if c.sk:
        c.rounds = [(8, 10, 14), (10, 12, 14), (12, 20, 7), (20, 28, 7)]; c.prepoll_at = 10; c.gate_all_at = 12
    prod_setup(a, c)
    pre_B(a, c)
    side = {}
    c.round_hook = {}
    if OPT["xt"] and not c.sk:
        xtouch_setup(a, P_W2, 7 * MB, 44, 23)
        w2_xtouch(a, 0); w2_xtouch(a, 3)
        side = {4: [lambda: w2_xtouch(a, 1)]}
        c.round_hook = {24: lambda: w2_xtouch(a, 2)}
    a("s_barrier")
    a("s_barrier")
    gate_setup(a, 0, False)
    gemm_producer(a, c, True, "narrow", side, None, 8 if c.sk else 16)
    stamp_flush(a)
    a("L_end:")
    a("s_endpgm")
    a("L_code_end:")
    body, nins = hazard.fix(a.lines)
    hdr = []
    if header_src:
        for ln in open(header_src):
            if ln.startswith(";") and "@launch" not in ln:
                hdr.append(ln.rstrip("\n"))
            elif not ln.startswith(";"):
                break
    hdr.append(f"; @launch grid=(256,1,1) block=(512,1,1) lds=163840")
    hdr.append('.amdgcn_target "amdgcn-amd-amdhsa--gfx950"')
    hdr.append(".text")
    return "\n".join(hdr) + "\n" + "\n".join(body) + "\n" + kernel_desc(KNAME, 256, 102), nins

if __name__ == "__main__":
    if "--diag" in sys.argv:
        DIAG = True; sys.argv.remove("--diag")
    for arg in list(sys.argv[1:]):
        if "=" in arg:
            k_, v_ = arg.split("=", 1)
            if "." in k_:
                kk, f_ = k_.split(".")
                for kind_ in (CFG.keys() if kk == "all" else [kk]): CFG[kind_][f_] = int(v_)
            else: OPT[k_] = int(v_)
            sys.argv.remove(arg)
    out = sys.argv[1] if len(sys.argv) > 1 else "p1.s"
    txt, nins = build(header_src="sequential_preLN__sliding_block__dense_activation_silu__prompt.s.ref")
    open(out, "w").write(txt)
    print("wrote", out, len(txt), "bytes; nop states inserted:", nins)
```

```python
import sys, struct
from asmlib import *
import hazard

MB = 1 << 20
K_OFF = 8 * MB
V_OFF = 12 * MB
O_OFF = 16 * MB
H_OFF = 20 * MB
H1_OFF = 24 * MB
FL_OFF = 40 * MB
RS1_OFF = 41 * MB
CSG_OFF = 42 * MB
XP_OFF = 44 * MB
ST2_OFF = 43 * MB
DIAG_OFF = 64 * MB
LOG2E = 1.4426950408889634
KNAME = "sequential_preLN__sliding_block__dense_activation_silu__prompt_kernel"
P_X, P_WQKV, P_WO, P_W1, P_W2, P_OUT, P_DBG, P_WS = 80, 82, 84, 88, 90, 92, 94, 4
TAG = 72
FLS = 76
ST = 155648
ST_REC, ST_MEAN, ST_RSTD, ST_CS, ST_CSP = ST, ST + 2048, ST + 2560, ST + 3072, ST + 4096
HEADW = 57344
XB0 = 122880
XB1 = 81920
XCH = 147456
XST = 147456
ST_TAG = ST + 4096
HRES = 232
DEF = 200
VS = 254
DIAG = False
OPT = dict(eb2=1, sigA2=2, peel=8, cspl=1, xst=1, reslate=0, sent=0, pfg=1, help=4, snake=1, rot0=4, early0=0, dil=1, sk=1, skfull=0, pf=3, xt=1, prio=0, inv=0, nodma=0, steps=0, kvlocal=0, cpf=1, nbf=1, sigA=3, sigB=3, qnt=0, bar2=0, defer=0, dper=2, dstart=0, prepoll=21, wobar=0)

def f32(x):
    return "0x%08x" % struct.unpack("<I", struct.pack("<f", x))[0]

def srd_off(a, d, ptr, off, nrec):
    a(f"s_add_u32 s{d}, s{ptr}, {off}")
    a(f"s_addc_u32 s{d+1}, s{ptr+1}, 0")
    a(f"s_mov_b32 s{d+2}, {nrec}")
    a(f"s_mov_b32 s{d+3}, 0x20000")

def stamp(a, idx):
    if not DIAG: return
    a("s_memrealtime s[96:97]")
    a("s_waitcnt lgkmcnt(0)")
    a(f"v_writelane_b32 v{VS}, s96, {idx}")

def stamp_flush(a):
    if not DIAG: return
    srd_off(a, 16, P_WS, DIAG_OFF, 524288)
    a(f"""
    s_lshl_b32 s30, s2, 11
    s_lshl_b32 s31, s3, 8
    s_add_u32 s30, s30, s31
    v_lshlrev_b32 v{VS+1}, 2, v1
    buffer_store_dword v{VS}, v{VS+1}, s[16:19], s30 offen
    """)

def pbar(a):
    a("s_barrier")
    if DIAG and OPT["steps"]:
        a("s_memtime s[96:97]" if OPT["steps"] == 2 else "s_memrealtime s[96:97]")
        a("""
        s_waitcnt lgkmcnt(0)
        s_mov_b32 m0, s99
        s_nop 0
        v_writelane_b32 v252, s96, m0
        s_add_u32 s99, s99, 1
        """)

def pbar_flush(a, ph):
    if not (DIAG and OPT["steps"]): return
    srd_off(a, 16, P_WS, DIAG_OFF + 524288 * (1 + ph), 524288)
    a(f"""
    s_lshl_b32 s30, s2, 11
    s_lshl_b32 s31, s3, 8
    s_add_u32 s30, s30, s31
    v_lshlrev_b32 v2, 2, v1
    buffer_store_dword v252, v2, s[16:19], s30 offen
    """)

def wgmap(a, RX, CX):
    CT = 16 // CX; RB = 16 // RX
    lg = lambda x: x.bit_length() - 1
    a(f"""
    s_and_b32 s30, s2, 7
    s_lshr_b32 s31, s2, 3
    s_lshr_b32 s24, s30, {lg(CX)}
    s_lshl_b32 s24, s24, {lg(RB)}
    s_and_b32 s25, s30, {CX-1}
    s_lshl_b32 s25, s25, {lg(CT)}
    s_lshr_b32 s30, s31, {lg(CT)}
    s_add_u32 s24, s24, s30
    s_and_b32 s30, s31, {CT-1}
    s_add_u32 s25, s25, s30
    """)

def st2(a, text):
    if not OPT["kvlocal"]:
        a(text + " sc0 sc1"); return
    l1 = a.label("skip_s1"); l2 = a.label("skip_s2")
    a(f"""
    s_cmp_lg_u32 s55, 0
    s_cbranch_scc1 {l1}
    {text} sc0 sc1
    s_branch {l2}
    {l1}:
    {text}
    {l2}:
    """)

def signal(a, seam, slot_shift, t, local=False, cnt=0, plain0=False, rbj=('s24', 's25')):
    kv = seam == 0 and not plain0
    a(f"""
    s_lshl_b32 s40, {rbj[0]}, {11 if kv else 10}
    s_lshl_b32 s41, {rbj[1]}, {7 if kv else slot_shift+3}
    s_add_u32 s40, s40, s41
    s_lshl_b32 s41, s3, 3
    s_add_u32 s40, s40, s41
    s_add_u32 s40, s40, {65536 if kv else seam*16384}
    v_mov_b32 v{t}, s{TAG}
    v_mov_b32 v{t+1}, s{TAG+1}
    v_mov_b32 v{t+2}, 0
    s_waitcnt vmcnt({cnt})
    s_mov_b64 exec, 1
    """)
    txt = f"buffer_store_dwordx2 v[{t}:{t+1}], v{t+2}, s[{FLS}:{FLS+3}], s40 offen"
    if local: st2(a, txt)
    else: a(txt + " sc0 sc1")
    a("s_mov_b64 exec, -1")

def wait_flags(a, voff, soff, wide, t):
    lp = a.label("poll"); dn = a.label("polld")
    a(f"s_mov_b32 s39, 0x100000")
    if OPT["inv"] == 1: a("buffer_inv sc1")
    a(f"{lp}:")
    if wide:
        a(f"buffer_load_dwordx4 v[{t}:{t+3}], v{voff}, s[{FLS}:{FLS+3}], {soff} offen sc0 sc1")
    else:
        a(f"buffer_load_dwordx2 v[{t}:{t+1}], v{voff}, s[{FLS}:{FLS+3}], {soff} offen sc0 sc1")
    a("s_waitcnt vmcnt(0)")
    a(f"v_cmp_eq_u64 vcc, s[{TAG}:{TAG+1}], v[{t}:{t+1}]")
    if wide:
        a(f"v_cmp_eq_u64 s[36:37], s[{TAG}:{TAG+1}], v[{t+2}:{t+3}]")
        a("s_nop 3")
        a("s_and_b64 vcc, vcc, s[36:37]")
    else:
        a("s_nop 3")
    a(f"""
    s_cmp_eq_u64 vcc, -1
    s_cbranch_scc1 {dn}
    s_sleep 1
    s_sub_u32 s39, s39, 1
    s_cmp_lg_u32 s39, 0
    s_cbranch_scc1 {lp}
    {dn}:
    """)
    if OPT["inv"] == 2: a("buffer_inv sc1")

class G: pass
NBF = ['', ' sc1', ' sc0']

def mk(kind, **kw):
    c = G(); c.kind = kind; c.__dict__.update(kw)
    c.sk = 0
    c.pvb, c.sb, c.s35 = 8, 12, "s35"
    c.early = 0
    if kind == "wo" and OPT["xst"]: c.S = min(c.S, 4)
    if kind == "w2" and OPT["sk"]:
        c.sk = 1; c.BN = 128; c.NT = 4; c.S = 4; c.BBASE = 65536; c.full = OPT["skfull"]; c.rpg = 1; c.pstride = 512
        if OPT["eb2"]:
            c.early = 1; c.pvb, c.sb, c.s35 = 16, 52, "s41"; c.BBASE = 77824
    c.n = c.K // 64 // (2 if c.sk else 1)
    c.BB = c.BN * 128
    c.NBW = c.BB // 4096
    c.gmul = 4 if c.korder == "F" else 8
    c.rdrows = 16 if c.korder == "F" else 4
    c.RS = 128 if c.layout == "panel" else 448
    return c

CFG = dict(
    qkv=dict(K=1024, BN=192, NT=6, S=3, korder="N", layout="panel", wp=P_WQKV, ldb=6144, bcol=128, pstride=2048,
             a_off=None, normal_tiles=(4, 5), RX=2, CX=4, rpg=1, ABASE=0, BBASE=49152, ln=True, sid=0, lt=0, full=0, rot=0),
    wo=dict(K=1024, BN=64, NT=2, S=5, korder="F", layout="panel", wp=P_WO, ldb=2048, bcol=128, pstride=0,
            a_off=O_OFF, normal_tiles=(), RX=2, CX=4, rpg=2, ABASE=0, BBASE=114688, ln=False, sid=16, lt=0, full=1, rot=2),
    w1=dict(K=1024, BN=224, NT=7, S=3, korder="F", layout="w1", wp=P_W1, ldb=7168, bcol=448, pstride=0,
            a_off=H_OFF, normal_tiles=(), RX=2, CX=4, rpg=1, ABASE=0, BBASE=49152, ln=True, sid=24, lt=0, full=0, rot=2),
    w2=dict(K=3584, BN=64, NT=2, S=6, korder="F", layout="panel", wp=P_W2, ldb=2048, bcol=128, pstride=0,
            a_off=H1_OFF, normal_tiles=(), RX=2, CX=4, rpg=2, ABASE=0, BBASE=98304, ln=False, sid=32, lt=0, full=1, rot=0),
)

def gemm_consumer(a, c):
    kind = c.kind; n = c.n; S = c.S; NT = c.NT; RS = c.RS
    vA0, vA10, vB00, vB01, vB02, vA, vA1, vB0, vB1, vB2 = 2, 3, 4, 5, 6, 7, 8, 9, 10, 11
    vG = 12; vCH = 13
    t0, t1 = 14, 15
    ACC = 16
    FX = ACC + 16 * NT
    FSZ = 16 + 4 * NT
    if c.full: FSZ *= 2
    FY = FX + FSZ
    VTOP = FY + FSZ
    acc = lambda mt, nt: ACC + (nt * 4 + mt) * 4
    wgmap(a, c.RX, c.CX)
    T = FX
    if kind == "qkv": row_stats_issue(a, FY)
    a(f"""
    s_lshr_b32 s34, s3, 1
    s_and_b32 s35, s3, 1
    v_lshlrev_b32 v{vCH}, 4, v1
    s_lshl_b32 s30, s34, 12
    v_add_u32 v{vCH}, s30, v{vCH}
    v_lshrrev_b32 v{vG}, 4, v1
    v_bfe_u32 v{T}, v1, 2, 2
    v_and_b32 v{T+1}, 3, v1
    """)
    if c.a_off is None:
        a(f"""
        v_and_b32 v{t0}, 15, v1
        v_lshrrev_b32 v{t1}, 1, v{t0}
        v_xor_b32 v{t1}, v{t1}, v{vG}
        v_lshlrev_b32 v{t1}, 4, v{t1}
        v_lshl_add_u32 v{vA0}, v{t0}, 7, v{t1}
        s_lshl_b32 s30, s34, 13
        v_add_u32 v{vA0}, s30, v{vA0}
        v_xor_b32 v{vA10}, 64, v{vA0}
        """)
        aread = lambda mt, kg: ((vA, vA1)[kg], mt * 2048)
    else:
        a(f"v_mov_b32 v{vA0}, v{vCH}")
        aread = lambda mt, kg: (vA, kg * 8192 + mt * 1024)
    if c.layout == "panel":
        a(f"""
        v_mul_u32_u24 v{t0}, {c.gmul}, v{vG}
        v_add_u32 v{t0}, v{t0}, v{T}
        v_lshlrev_b32 v{t0}, 7, v{t0}
        v_lshl_add_u32 v{t0}, v{T+1}, 3, v{t0}
        v_lshrrev_b32 v{t1}, 1, v{T}
        v_and_b32 v{T+2}, 1, v{vG}
        v_lshl_or_b32 v{t1}, v{T+2}, 1, v{t1}
        s_lshl_b32 s30, s35, 1
        v_xor_b32 v{t1}, s30, v{t1}
        v_lshl_add_u32 v{vB00}, v{t1}, 5, v{t0}
        v_xor_b32 v{t1}, 1, v{t1}
        v_lshl_add_u32 v{vB01}, v{t1}, 5, v{t0}
        """)
        def bread(nt, kg, rd):
            return (vB0 if nt % 2 == 0 else vB1), (nt // 2) * 8192 + kg * 32 * RS + rd * c.rdrows * RS
    else:
        a(f"""
        v_mul_u32_u24 v{t0}, {c.gmul}, v{vG}
        v_add_u32 v{t0}, v{t0}, v{T}
        v_mul_u32_u24 v{t0}, {RS}, v{t0}
        v_lshl_add_u32 v{t0}, v{T+1}, 3, v{t0}
        v_and_b32 v{t1}, 1, v{vG}
        v_lshlrev_b32 v{T+2}, 5, v{t1}
        s_lshl_b32 s30, s35, 8
        v_add_u32 v{T+3}, s30, v{t0}
        v_add_u32 v{vB00}, v{T+3}, v{T+2}
        v_sub_u32 v{vB01}, v{T+3}, v{T+2}
        s_add_u32 s30, s35, 6
        v_xor_b32 v{t1}, s30, v{t1}
        v_lshl_add_u32 v{vB02}, v{t1}, 5, v{t0}
        """)
        def bread(nt, kg, rd):
            o = kg * 32 * RS + rd * c.rdrows * RS
            if nt == 6: return vB2, o
            return (vB0 if nt % 2 == 0 else vB1), o + nt * 32
    RES = VTOP
    if kind == "wo":
        srd_off(a, 20, P_X, 0, 4 * MB)
        a(f"""
        v_and_b32 v{t0}, 15, v1
        v_lshlrev_b32 v{t0}, 11, v{t0}
        v_lshl_add_u32 v{t0}, v{vG}, 3, v{t0}
        s_lshl_b32 s30, s24, 18
        s_lshl_b32 s31, s34, 17
        s_add_u32 s30, s30, s31
        s_lshl_b32 s31, s25, 7
        s_add_u32 s30, s30, s31
        s_lshl_b32 s31, s35, 6
        s_add_u32 s30, s30, s31
        """)
        def res_loads():
            for mt in range(4):
                for nt in range(2):
                    r = RES + mt * 4 + nt * 2
                    a(f"buffer_load_dwordx2 v[{r}:{r+1}], v{t0}, s[20:23], s30 offen offset:{nt*32}")
                a("s_add_u32 s30, s30, 32768")
        if not OPT["reslate"] and not OPT["xst"]: res_loads()
    if kind == "wo" and OPT["xst"]:
        a(f"""
        v_and_b32 v{t0}, 15, v1
        v_lshrrev_b32 v{t1}, 1, v{t0}
        v_lshrrev_b32 v{T}, 1, v{vG}
        s_lshl_b32 s30, s35, 2
        v_add_u32 v{T}, s30, v{T}
        v_xor_b32 v{t1}, v{t1}, v{T}
        v_lshlrev_b32 v{t1}, 4, v{t1}
        v_lshl_add_u32 v{t1}, v{t0}, 7, v{t1}
        v_and_b32 v{T}, 1, v{vG}
        v_lshl_add_u32 v{t1}, v{T}, 3, v{t1}
        s_lshl_b32 s30, s34, 13
        s_add_u32 s30, s30, {XST}
        v_add_u32 v{t1}, s30, v{t1}
        v_xor_b32 v{t0}, 32, v{t1}
        """)
        for mt in range(4):
            for nt in range(2):
                r = RES + mt * 4 + nt * 2
                a(f"ds_read_b64 v[{r}:{r+1}], v{t0 if nt else t1} offset:{mt*2048}")
    for i in range(16 * NT):
        a(f"v_mov_b32 v{ACC+i}, 0")
    abases = [(vA, vA0)] + ([(vA1, vA10)] if c.a_off is None else [])
    bbases = [(vB0, vB00), (vB1, vB01)] + ([(vB2, vB02)] if c.layout != "panel" else [])
    a(f"s_mov_b32 s27, {c.ABASE}")
    a(f"s_mov_b32 s32, {c.BBASE}")
    setb = [f"v_add_u32 v{x}, s27, v{y}" for x, y in abases] + [f"v_add_u32 v{x}, s32, v{y}" for x, y in bbases]
    for x in setb: a(x)
    a(f"s_mov_b32 s26, {n - 1 if (c.ln and OPT['peel']) else n}")
    def reads(F, kg):
        r = []
        for nt in range(NT):
            for rd in range(2):
                b, o = bread(nt, kg, rd)
                d = F + 16 + nt * 4 + rd * 2
                r.append(f"ds_read_b64_tr_b16 v[{d}:{d+1}], v{b} offset:{o}")
            if nt == 0:
                for mt in range(4):
                    d = F + mt * 4
                    b, o = aread(mt, kg)
                    r.append(f"ds_read_b128 v[{d}:{d+3}], v{b} offset:{o}")
        return r
    def mfmas(F):
        m = []
        for nt in range(NT):
            for mt in (range(4) if (nt % 2 == 0 or not OPT["snake"]) else range(3, -1, -1)):
                A = F + mt * 4; B = F + 16 + nt * 4; D = acc(mt, nt)
                if nt in c.normal_tiles:
                    m.append(f"v_mfma_f32_16x16x32_bf16 v[{D}:{D+3}], v[{A}:{A+3}], v[{B}:{B+3}], v[{D}:{D+3}]")
                else:
                    m.append(f"v_mfma_f32_16x16x32_bf16 v[{D}:{D+3}], v[{B}:{B+3}], v[{A}:{A+3}], v[{D}:{D+3}]")
        return m
    loop = a.label("c_loop")
    if kind == "qkv": row_stats_finish(a, FY, FX)
    stamp(a, c.sid)
    a("s_barrier")
    stamp(a, c.sid + 1)
    adv = [f"s_add_u32 s27, s27, 16384", f"s_add_u32 s32, s32, {c.BB}", f"s_cmp_eq_u32 s27, {c.ABASE + S*16384}",
           f"s_cselect_b32 s27, {c.ABASE}, s27", f"s_cselect_b32 s32, {c.BBASE}, s32"] + setb
    def epi_setup():
        b = Asm(); r = []
        if kind == "qkv":
            REC, CSQ, MV, RV, CSV = T, T + 16, VTOP, VTOP + 16, VTOP + 32
            b(f"""
            v_and_b32 v{t0}, 15, v1
            v_lshlrev_b32 v{vA}, 4, v{t0}
            s_lshl_b32 s30, s34, 10
            s_add_u32 s30, s30, {ST_REC}
            v_add_u32 v{vA}, s30, v{vA}
            v_lshlrev_b32 v{vA1}, 4, v{vG}
            s_lshl_b32 s30, s35, 7
            s_add_u32 s30, s30, {ST_CS}
            v_add_u32 v{vB0}, s30, v{vA1}
            v_lshlrev_b32 v{vB1}, 2, v{t0}
            v_add_u32 v{vB1}, s30, v{vB1}
            s_lshl_b32 s30, s34, 8
            s_add_u32 s30, s30, {ST_MEAN}
            v_add_u32 v{vA1}, s30, v{vA1}
            """)
            srd_off(b, 16, P_WS, K_OFF, 8 * MB)
            b(f"""
            s_lshl_b32 s30, s25, 1
            s_add_u32 s30, s30, s35
            s_lshl_b32 s30, s30, 17
            s_lshl_b32 s31, s24, 13
            s_add_u32 s30, s30, s31
            s_add_u32 s31, s30, {4*MB}
            s_mul_i32 s33, s35, {HEADW}
            v_add_u32 v{vB2}, s33, v{vCH}
            """)
            for mt in range(4):
                r.append(f"ds_read_b128 v[{REC+4*mt}:{REC+4*mt+3}], v{vA} offset:{mt*256}")
            for nt in range(4):
                r.append(f"ds_read_b128 v[{CSQ+4*nt}:{CSQ+4*nt+3}], v{vB0} offset:{(nt//2)*256 + (nt%2)*64}")
            for mt in range(4):
                r.append(f"ds_read_b128 v[{MV+4*mt}:{MV+4*mt+3}], v{vA1} offset:{mt*64}")
                r.append(f"ds_read_b128 v[{RV+4*mt}:{RV+4*mt+3}], v{vA1} offset:{512 + mt*64}")
            for dt in range(2):
                r.append(f"ds_read_b32 v{CSV+dt}, v{vB1} offset:{512 + dt*64}")
        else:
            CSR = T; REC = T + 28
            srd_off(b, 16, P_WS, H1_OFF, 14 * MB)
            b(f"""
            v_and_b32 v{t0}, 15, v1
            v_lshlrev_b32 v{vA}, 4, v{t0}
            s_lshl_b32 s30, s34, 10
            s_add_u32 s30, s30, {ST_REC}
            v_add_u32 v{vA}, s30, v{vA}
            v_lshlrev_b32 v{t1}, 4, v{vG}
            s_lshl_b32 s30, s35, 9
            s_add_u32 s30, s30, {ST_CS}
            v_add_u32 v{vB0}, s30, v{t1}
            s_lshl_b32 s30, s35, 6
            s_add_u32 s30, s30, {ST_CS}
            v_add_u32 v{vB1}, s30, v{t1}
            s_mul_i32 s30, s24, {112*8192}
            s_mul_i32 s31, s25, {7*8192}
            s_add_u32 s30, s30, s31
            s_add_u32 s36, s30, {3*8192}
            s_lshl_b32 s31, s35, 15
            s_add_u32 s30, s30, s31
            s_add_u32 s31, s30, 8192
            s_add_u32 s37, s30, 16384
            s_lshl_b32 s33, s35, 3
            s_add_u32 s33, s33, {XCH}
            v_add_u32 v{vB2}, s33, v{vCH}
            """)
            for mt in range(4):
                r.append(f"ds_read_b128 v[{REC+4*mt}:{REC+4*mt+3}], v{vA} offset:{mt*256}")
            r.append(f"ds_read_b128 v[{CSR+24}:{CSR+27}], v{vB1} offset:{6*64}")
            for nt in range(6):
                r.append(f"ds_read_b128 v[{CSR+4*nt}:{CSR+4*nt+3}], v{vB0} offset:{nt*64}")
        return [x.strip() for x in b.lines], r
    peel = c.ln and OPT["peel"]
    NI = n // 2 if c.full else n
    def w2hook_c():
        if kind == "wo" and OPT["reslate"]:
            back = a.label("woback"); late = a.label("wolate")
            a(f"s_cmp_eq_u32 s26, {OPT['reslate']}")
            a(f"s_cbranch_scc1 {late}")
            a(f"{back}:")
            def ool():
                a(f"{late}:")
                res_loads()
                a(f"s_branch {back}")
            c.ool = ool
        if kind == "w2":
            back = a.label("w2back"); early = a.label("w2early")
            a(f"s_cmp_ge_u32 s26, {NI - OPT['sigB']}")
            a(f"s_cbranch_scc1 {early}")
            a(f"{back}:")
            def ool():
                a(f"{early}:")
                nst = OPT["dper"]
                its = 8 // nst if OPT["defer"] else 0
                for it in range(its):
                    nx = a.label("skip_e")
                    a(f"s_cmp_lg_u32 s26, {NI - it - OPT['dstart']}")
                    a(f"s_cbranch_scc1 {nx}")
                    for k in range(it * nst, it * nst + nst):
                        r = DEF + k * 4
                        a(f"buffer_store_dwordx4 v[{r}:{r+3}], v{vCH}, s[16:19], {'s44' if k < 4 else 's45'} offen offset:{(k%4)*1024} sc0 sc1")
                    a(f"s_branch {back}")
                    a(f"{nx}:")
                a(f"s_cmp_lg_u32 s26, {NI - OPT['sigB']}")
                a(f"s_cbranch_scc1 {back}")
                signal(a, 3, 2, VTOP, rbj=("s42", "s43"))
                a(f"s_branch {back}")
            c.ool = ool

    if c.full:
        H = FSZ // 2
        rd2 = lambda F: reads(F, 0) + reads(F + H, 1)
        mf2 = lambda F: mfmas(F) + mfmas(F + H)
        a(f"s_mov_b32 s26, {n//2}")
        for r in rd2(FX): a(r)
        for x in adv: a(x)
        a(f"{loop}:")
        w2hook_c()
        a("s_waitcnt lgkmcnt(0)")
        a("s_barrier")
        for x in interleave(mf2(FX), rd2(FY) + adv, 0, 1, c.rpg): a(x)
        a("s_waitcnt lgkmcnt(0)")
        a("s_barrier")
        for x in interleave(mf2(FY), rd2(FX) + adv + ["s_sub_u32 s26, s26, 1", "s_cmp_lg_u32 s26, 0"], 0, 1, c.rpg): a(x)
        a(f"s_cbranch_scc1 {loop}")
        a("s_waitcnt lgkmcnt(0)")
    else:
        for r in reads(FX, 0): a(r)
        a(f"{loop}:")
        w2hook_c()
        a("s_waitcnt lgkmcnt(0)")
        for x in interleave(mfmas(FX), reads(FY, 1) + adv, 0, 1, c.rpg): a(x)
        a("s_waitcnt lgkmcnt(0)")
        a("s_barrier")
        for x in interleave(mfmas(FY), reads(FX, 0) + ["s_sub_u32 s26, s26, 1", "s_cmp_lg_u32 s26, 0"], 0, 1, c.rpg): a(x)
        a(f"s_cbranch_scc1 {loop}")
        a("s_waitcnt lgkmcnt(0)")
        if peel:
            for x in interleave(mfmas(FX), reads(FY, 1), 0, 1, c.rpg): a(x)
            a("s_waitcnt lgkmcnt(0)")
            alu, rds = epi_setup()
            m = mfmas(FY)
            if kind == "qkv": m = m[8:16] + m[16:] + m[:8]
            kb = len(m) - OPT["peel"]
            for x in interleave(m[:kb], alu, 0, 1, 2): a(x)
            a("s_barrier")
            for x in interleave(m[kb:], rds, 0, 1, 2): a(x)
    stamp(a, c.sid + 2)
    def pk4(t, p0, p1):
        a(f"v_cvt_pk_bf16_f32 v{t}, v{p0}, v{p0+1}")
        a(f"v_cvt_pk_bf16_f32 v{t+1}, v{p0+2}, v{p0+3}")
        a(f"v_cvt_pk_bf16_f32 v{t+2}, v{p1}, v{p1+1}")
        a(f"v_cvt_pk_bf16_f32 v{t+3}, v{p1+2}, v{p1+3}")
    if kind == "qkv":
        REC, CSQ, MV, RV, CSV = T, T + 16, VTOP, VTOP + 16, VTOP + 32
        if not peel:
            for x in sum(epi_setup(), []): a(x)
        a("s_waitcnt lgkmcnt(10)")
        def fold_sw(mt, nt):
            p = acc(mt, nt); m = REC + 4 * mt; cs = CSQ + 4 * nt
            for h in range(2):
                a(f"v_pk_fma_f32 v[{p+2*h}:{p+2*h+1}], v[{m}:{m+1}], v[{cs+2*h}:{cs+2*h+1}], v[{p+2*h}:{p+2*h+1}] op_sel_hi:[0,1,1] neg_lo:[1,0,0] neg_hi:[1,0,0]")
            for h in range(2):
                a(f"v_pk_mul_f32 v[{p+2*h}:{p+2*h+1}], v[{m}:{m+1}], v[{p+2*h}:{p+2*h+1}] op_sel:[1,0] op_sel_hi:[1,1]")
        for mt in range(4):
            fold_sw(mt, 2); fold_sw(mt, 3)
            t = acc(mt, 2); pk4(t, acc(mt, 2), acc(mt, 3))
            st2(a, f"buffer_store_dwordx4 v[{t}:{t+3}], v{vCH}, s[16:19], s30 offen offset:{mt*1024}")
            a(f"ds_write_b128 v{vB2}, v[{t}:{t+3}] offset:{16384 + mt*1024}")
        a("s_waitcnt lgkmcnt(4)")
        for mp in range(2):
            for dt in range(2):
                for mt in (2 * mp, 2 * mp + 1):
                    p = acc(mt, 4 + dt)
                    sel = "op_sel_hi:[1,0,1]" if dt == 0 else "op_sel:[0,1,0] op_sel_hi:[1,1,1]"
                    for h in range(2):
                        a(f"v_pk_fma_f32 v[{p+2*h}:{p+2*h+1}], v[{MV+4*mt+2*h}:{MV+4*mt+2*h+1}], v[{CSV}:{CSV+1}], v[{p+2*h}:{p+2*h+1}] {sel} neg_lo:[1,0,0] neg_hi:[1,0,0]")
                    for h in range(2):
                        a(f"v_pk_mul_f32 v[{p+2*h}:{p+2*h+1}], v[{RV+4*mt+2*h}:{RV+4*mt+2*h+1}], v[{p+2*h}:{p+2*h+1}]")
                t = acc(2 * mp, 4 + dt); pk4(t, acc(2 * mp, 4 + dt), acc(2 * mp + 1, 4 + dt))
                st2(a, f"buffer_store_dwordx4 v[{t}:{t+3}], v{vCH}, s[16:19], s31 offen offset:{(2*mp+dt)*1024}")
                a(f"ds_write_b128 v{vB2}, v[{t}:{t+3}] offset:{24576 + 16384 + (2*mp+dt)*1024}")
        for mt in range(4):
            fold_sw(mt, 0); fold_sw(mt, 1)
            t = acc(mt, 0); pk4(t, acc(mt, 0), acc(mt, 1))
            a(f"ds_write_b128 v{vB2}, v[{t}:{t+3}] offset:{49152 + mt*1024}")
        stamp(a, c.sid + 3)
        signal(a, 0, 2, T, True)
        stamp(a, c.sid + 4)
        a("s_waitcnt lgkmcnt(0)")
    elif kind == "wo":
        srd_off(a, 16, P_WS, H_OFF, 4 * MB)
        a(f"""
        s_lshl_b32 s30, s24, 18
        s_lshl_b32 s31, s25, 14
        s_add_u32 s30, s30, s31
        s_lshl_b32 s31, s35, 13
        s_add_u32 s30, s30, s31
        s_mov_b32 s36, 0xffff0000
        s_waitcnt vmcnt(0) lgkmcnt(0)
        """)
        for mt in range(4):
            for nt in range(2):
                r = RES + mt * 4 + nt * 2; p = acc(mt, nt)
                for d in range(2):
                    a(f"v_lshlrev_b32 v{T}, 16, v{r+d}")
                    a(f"v_and_b32 v{T+1}, s36, v{r+d}")
                    a(f"v_pk_add_f32 v[{p+2*d}:{p+2*d+1}], v[{p+2*d}:{p+2*d+1}], v[{T}:{T+1}]")
            t = HRES + mt * 4
            pk4(t, acc(mt, 0), acc(mt, 1))
            a(f"buffer_store_dwordx4 v[{t}:{t+3}], v{vCH}, s[16:19], s30 offen offset:{mt*1024} sc0 sc1")
        SS = T + 4
        for mt in range(4):
            p0 = acc(mt, 0); p1 = acc(mt, 1)
            s_, q_ = SS + 2 * mt, SS + 2 * mt + 1
            a(f"v_pk_add_f32 v[{T}:{T+1}], v[{p0}:{p0+1}], v[{p0+2}:{p0+3}]")
            a(f"v_pk_mul_f32 v[{T+2}:{T+3}], v[{p0}:{p0+1}], v[{p0}:{p0+1}]")
            a(f"v_pk_add_f32 v[{T}:{T+1}], v[{T}:{T+1}], v[{p1}:{p1+1}]")
            a(f"v_pk_fma_f32 v[{T+2}:{T+3}], v[{p0+2}:{p0+3}], v[{p0+2}:{p0+3}], v[{T+2}:{T+3}]")
            a(f"v_pk_add_f32 v[{T}:{T+1}], v[{T}:{T+1}], v[{p1+2}:{p1+3}]")
            a(f"v_pk_fma_f32 v[{T+2}:{T+3}], v[{p1}:{p1+1}], v[{p1}:{p1+1}], v[{T+2}:{T+3}]")
            a(f"v_pk_fma_f32 v[{T+2}:{T+3}], v[{p1+2}:{p1+3}], v[{p1+2}:{p1+3}], v[{T+2}:{T+3}]")
            a(f"v_add_f32 v{s_}, v{T}, v{T+1}")
            a(f"v_add_f32 v{q_}, v{T+2}, v{T+3}")
        for mt in range(4):
            s_, q_ = SS + 2 * mt, SS + 2 * mt + 1
            a(f"v_permlane32_swap_b32 v{s_}, v{q_}")
            a(f"v_add_f32 v{s_}, v{s_}, v{q_}")
        srd_off(a, 20, P_WS, ST2_OFF, 16 * 32768)
        a(f"""
        v_and_b32 v{t0}, 31, v1
        v_lshlrev_b32 v{t0}, 2, v{t0}
        v_lshrrev_b32 v{t1}, 5, v1
        v_lshl_add_u32 v{t0}, v{t1}, 9, v{t0}
        s_lshl_b32 s30, s24, 15
        s_lshl_b32 s31, s25, 11
        s_add_u32 s30, s30, s31
        s_lshl_b32 s31, s35, 10
        s_add_u32 s30, s30, s31
        s_lshl_b32 s31, s34, 8
        s_add_u32 s30, s30, s31
        """)
        for mp in range(2):
            x0 = SS + 4 * mp; x1 = SS + 4 * mp + 2
            a(f"v_permlane16_swap_b32 v{x0}, v{x1}")
            a(f"v_add_f32 v{x0}, v{x0}, v{x1}")
            a(f"buffer_store_dword v{x0}, v{t0}, s[20:23], s30 offen offset:{mp*128} sc0 sc1")
        stamp(a, c.sid + 3)
        if OPT["wobar"]: a("s_barrier")
        signal(a, 2, 2, T)
        stamp(a, c.sid + 4)
    elif kind == "w1":
        CSR = T; REC = T + 28; E = T + 44
        if not peel:
            for x in sum(epi_setup(), []): a(x)
        a("s_waitcnt lgkmcnt(0)")
        soffs = ["s30", "s31", "s37"]
        def silu(mt, nt, e):
            p = acc(mt, nt); m = REC + 4 * mt; cs = CSR + 4 * nt
            for h in range(2):
                a(f"v_pk_fma_f32 v[{p+2*h}:{p+2*h+1}], v[{m}:{m+1}], v[{cs+2*h}:{cs+2*h+1}], v[{p+2*h}:{p+2*h+1}] op_sel_hi:[0,1,1] neg_lo:[1,0,0] neg_hi:[1,0,0]")
            for h in range(2):
                a(f"v_pk_mul_f32 v[{e+2*h}:{e+2*h+1}], v[{m+2}:{m+3}], v[{p+2*h}:{p+2*h+1}] op_sel_hi:[0,1]")
            for r in range(4):
                a(f"v_exp_f32 v{e+r}, v{e+r}")
            for h in range(2):
                a(f"v_pk_fma_f32 v[{e+2*h}:{e+2*h+1}], v[{e+2*h}:{e+2*h+1}], v[{m+2}:{m+3}], v[{m+2}:{m+3}] op_sel:[0,1,1] op_sel_hi:[1,1,1]")
            for r in range(4):
                a(f"v_rcp_f32 v{e+r}, v{e+r}")
            for h in range(2):
                a(f"v_pk_mul_f32 v[{p+2*h}:{p+2*h+1}], v[{p+2*h}:{p+2*h+1}], v[{e+2*h}:{e+2*h+1}]")
        def pair(q, mt):
            silu(mt, 2 * q, E); silu(mt, 2 * q + 1, E + 4)
            p0 = acc(mt, 2 * q)
            pk4(p0, p0, acc(mt, 2 * q + 1))
            a(f"buffer_store_dwordx4 v[{p0}:{p0+3}], v{vCH}, s[16:19], {soffs[q]} offen offset:{mt*1024} sc0 sc1")
        for mt in range(4): pair(0, mt)
        stamp(a, 42)
        for mt in range(4):
            silu(mt, 6, E + (mt % 2) * 4)
            p = acc(mt, 6)
            a(f"v_cvt_pk_bf16_f32 v{p}, v{p}, v{p+1}")
            a(f"v_cvt_pk_bf16_f32 v{p+1}, v{p+2}, v{p+3}")
            a(f"ds_write_b64 v{vB2}, v[{p}:{p+1}] offset:{mt*1024}")
        a("s_waitcnt lgkmcnt(0)")
        stamp(a, 40)
        a("s_barrier")
        stamp(a, 41)
        a(f"""
        s_lshl_b32 s33, s35, 11
        v_add_u32 v{vB2}, s33, v{vCH}
        v_add_u32 v{vB1}, {XCH}, v{vB2}
        ds_read_b128 v[{acc(0,6)}:{acc(0,6)+3}], v{vB1}
        ds_read_b128 v[{acc(1,6)}:{acc(1,6)+3}], v{vB1} offset:1024
        """)
        pair(1, 0)
        a("s_waitcnt lgkmcnt(0)")
        a(f"buffer_store_dwordx4 v[{acc(0,6)}:{acc(0,6)+3}], v{vB2}, s[16:19], s36 offen sc0 sc1")
        a(f"buffer_store_dwordx4 v[{acc(1,6)}:{acc(1,6)+3}], v{vB2}, s[16:19], s36 offen offset:1024 sc0 sc1")
        for mt in range(1, 4): pair(1, mt)
        stamp(a, 43)
        k2 = OPT["sigA2"]
        for mt in range(k2): pair(2, mt)
        signal(a, 0, 2, acc(2, 6), False, 3 + k2, True)
        stamp(a, 45)
        if OPT["bar2"] == 0: a("s_barrier")
        stamp(a, 46)
        for mt in range(k2, 4): pair(2, mt)
        stamp(a, c.sid + 3)
        if OPT["bar2"] == 1: a("s_barrier")
        a("s_mov_b32 s42, s24\ns_mov_b32 s43, s25\ns_mov_b32 s44, s31\ns_mov_b32 s45, s37")
        stamp(a, c.sid + 4)
    elif kind == "w2":
        XR = T + 32
        if c.sk:
            srd_off(a, 20, P_WS, XP_OFF, 8 * MB)
            a(f"""
            s_lshl_b32 s30, s24, 19
            s_lshl_b32 s31, s3, 13
            s_add_u32 s30, s30, s31
            s_lshl_b32 s31, s25, 15
            s_add_u32 s33, s30, s31
            s_xor_b32 s31, s31, {4 << 15}
            s_add_u32 s37, s30, s31
            v_lshlrev_b32 v{vA}, 4, v1
            """)
            for mt in range(4):
                t = acc(mt, 2)
                pk4(t, acc(mt, 2), acc(mt, 3))
                if OPT["sent"]:
                    for i in range(4): a(f"v_min_u32 v{t+i}, -2, v{t+i}")
                a(f"buffer_store_dwordx4 v[{t}:{t+3}], v{vA}, s[20:23], s33 offen offset:{mt*1024} sc0 sc1")
            if not OPT["sent"]: signal(a, 6, 2, T)
            stamp(a, 47)
        srd_off(a, 16, P_OUT, 0, 4 * MB)
        a(f"""
        v_and_b32 v{t0}, 15, v1
        v_lshlrev_b32 v{t0}, 11, v{t0}
        v_and_b32 v{t1}, 1, v{vG}
        v_lshl_add_u32 v{t0}, v{t1}, 5, v{t0}
        v_lshrrev_b32 v{t1}, 1, v{vG}
        v_lshl_add_u32 v{t0}, v{t1}, 4, v{t0}
        s_lshl_b32 s30, s24, 18
        s_lshl_b32 s31, s34, 17
        s_add_u32 s30, s30, s31
        s_lshl_b32 s31, s25, 7
        s_add_u32 s30, s30, s31
        s_lshl_b32 s31, s35, 6
        s_add_u32 s30, s30, s31
        s_mov_b32 s36, 0xffff0000
        """)
        for mt in range(4):
            for nt in range(2):
                r = HRES + mt * 4 + nt * 2; p = acc(mt, nt)
                for d in range(2):
                    a(f"v_lshlrev_b32 v{T+16}, 16, v{r+d}")
                    a(f"v_and_b32 v{T+17}, s36, v{r+d}")
                    a(f"v_pk_add_f32 v[{p+2*d}:{p+2*d+1}], v[{p+2*d}:{p+2*d+1}], v[{T+16}:{T+17}]")
        if c.sk and OPT["sent"]:
            lp = a.label("xpoll"); dn = a.label("skip_xp")
            a("s_mov_b32 s39, 0x200000")
            a(f"{lp}:")
            for mt in range(4):
                a(f"buffer_load_dwordx4 v[{XR+4*mt}:{XR+4*mt+3}], v{vA}, s[20:23], s37 offen offset:{mt*1024} sc0 sc1")
            for mt in range(4):
                r = XR + 4 * mt
                a(f"s_waitcnt vmcnt({3-mt})")
                if mt == 0: a(f"v_max_u32 v{T+4}, v{r}, v{r+1}")
                else: a(f"v_max3_u32 v{T+4}, v{r}, v{r+1}, v{T+4}")
                a(f"v_max3_u32 v{T+4}, v{r+2}, v{r+3}, v{T+4}")
            a(f"""
            v_cmp_eq_u32 vcc, -1, v{T+4}
            s_nop 3
            s_cmp_eq_u64 vcc, 0
            s_cbranch_scc1 {dn}
            s_sub_u32 s39, s39, 1
            s_cbranch_scc0 {lp}
            {dn}:
            """)
            stamp(a, 48)
        elif c.sk:
            lp = a.label("xpoll"); dn = a.label("skip_xp")
            a(f"""
            s_xor_b32 s40, s40, {4 << 5}
            s_mov_b32 s39, 0x200000
            {lp}:
            buffer_load_dwordx2 v[{T+4}:{T+5}], v{T+2}, s[{FLS}:{FLS+3}], s40 offen sc0 sc1
            s_waitcnt vmcnt(0)
            v_cmp_eq_u64 vcc, s[{TAG}:{TAG+1}], v[{T+4}:{T+5}]
            s_nop 3
            s_cmp_eq_u64 vcc, -1
            s_cbranch_scc1 {dn}
            s_sub_u32 s39, s39, 1
            s_cbranch_scc0 {lp}
            {dn}:
            """)
            stamp(a, 48)
            for mt in range(4):
                a(f"buffer_load_dwordx4 v[{XR+4*mt}:{XR+4*mt+3}], v{vA}, s[20:23], s37 offen offset:{mt*1024} sc0 sc1")
        for mt in range(4):
            if c.sk:
                if not OPT["sent"]: a(f"s_waitcnt vmcnt(3)")
                for nt in range(2):
                    r = XR + mt * 4 + nt * 2; p = acc(mt, nt)
                    for d in range(2):
                        a(f"v_lshlrev_b32 v{T+16}, 16, v{r+d}")
                        a(f"v_and_b32 v{T+17}, s36, v{r+d}")
                        a(f"v_pk_add_f32 v[{p+2*d}:{p+2*d+1}], v[{p+2*d}:{p+2*d+1}], v[{T+16}:{T+17}]")
            t = T + mt * 4
            pk4(t, acc(mt, 0), acc(mt, 1))
            a(f"v_permlane16_swap_b32 v{t}, v{t+2}")
            a(f"v_permlane16_swap_b32 v{t+1}, v{t+3}")
            a(f"buffer_store_dwordx4 v[{t}:{t+3}], v{t0}, s[16:19], s30 offen")
            a("s_add_u32 s30, s30, 32768")
        stamp(a, c.sid + 3)
        if DIAG:
            a("s_waitcnt vmcnt(0)")
            stamp(a, c.sid + 4)

PV_A = 4
PV_B = 8
PV_SA = 16
PV_SB = 18
PV_RD = 32
PV_ACC = 80

def prod_setup(a, c):
    n = c.n
    wgmap(a, c.RX, c.CX)
    if c.a_off is None:
        a("s_lshl_b32 s30, s24, 18")
        srd_off(a, 8, P_X, "s30", 262144)
        for i in range(4):
            a(f"""
            v_lshrrev_b32 v2, 3, v1
            v_lshrrev_b32 v3, 4, v1
            v_add_u32 v3, {4*(i&1)}, v3
            v_and_b32 v{PV_A+i}, 7, v1
            v_xor_b32 v3, v3, v{PV_A+i}
            v_lshlrev_b32 v3, 4, v3
            v_lshl_add_u32 v3, v2, 11, v3
            s_lshl_b32 s30, s38, 16
            s_add_u32 s30, s30, {i*8*2048 - i*1024}
            v_add_u32 v{PV_A+i}, s30, v3
            """)
        c.astep = 128
    else:
        a(f"s_mul_i32 s30, s24, {c.K*256}")
        a(f"s_add_u32 s30, s30, {c.a_off}")
        srd_off(a, 8, P_WS, "s30", c.K * 256)
        a(f"""
        {"s_lshr_b32 s30, s38, 1" if c.sk else f"s_and_b32 s30, s38, {1 if c.kind == 'w2' else 3}"}
        s_lshl_b32 s30, s30, 12
        v_lshlrev_b32 v{PV_A}, 4, v1
        v_add_u32 v{PV_A}, s30, v{PV_A}
        """)
        c.astep = 16384
        if c.kind == "w2":
            a(f"""
            {"s_and_b32 s30, s38, 1" if c.sk else "s_lshr_b32 s30, s38, 1"}
            s_mul_i32 s63, s30, {4*8192}
            s_mul_i32 s64, s30, {7*8192}
            """)
    c.bstep = 64 * c.ldb
    CT = 16 // c.CX
    a(f"""
    s_and_b32 s65, s25, {CT-1}
    s_mul_i32 s65, s65, {(16 // CT) if c.rot else 0}
    """)
    if c.rot == 2: a(f"s_mov_b32 s65, {OPT['rot0']}")
    if c.sk: a("s_and_b32 s65, s25, 4\ns_lshl_b32 s65, s65, 1")
    a(f"""
    s_lshl_b32 s34, s38, 12
    s_mul_i32 s35, s38, {c.NBW*1024}
    """)
    if c.sk:
        a("""
        s_and_b32 s34, s38, 1
        s_lshl_b32 s34, s34, 13
        s_lshr_b32 s30, s38, 1
        s_lshl_b32 s30, s30, 12
        s_add_u32 s34, s34, s30
        """)
    if c.kind == "w2": a(f"s_mul_i32 s66, s65, {7*8192}")
    if not c.early: b_setup(a, c, PV_B, 12)
    a(f"""
    s_mov_b32 s27, {c.ABASE}
    s_mov_b32 s32, {c.BBASE}
    s_mul_i32 s28, s65, {c.astep}
    s_mul_i32 s29, s65, {c.bstep}
    """)

def b_setup(a, c, dst, sr_):
    if c.sk:
        a("s_andn2_b32 s30, s25, 4")
        a(f"s_mul_i32 s30, s30, {c.bcol}")
    else:
        a(f"s_mul_i32 s30, s25, {c.bcol}")
    a(f"s_sub_u32 s31, {c.K*c.ldb}, s30")
    srd_off(a, sr_, c.wp, "s30", "s31")
    a(f"""
    s_mul_i32 s30, s38, {c.NBW*64}
    s_mov_b32 s36, {c.ldb}
    """)
    for i in range(c.NBW):
        a(f"s_add_u32 s31, s30, {i*64}")
        a(f"v_add_u32 v3, s31, v1")
        d = dst + i
        if c.layout == "panel":
            a("v_bfe_u32 v2, v3, 3, 6")
            if c.korder == "F":
                a(f"v_bfe_u32 v{d}, v2, 1, 2")
            else:
                a(f"v_bfe_u32 v{d}, v2, 1, 1")
                a("v_bfe_u32 v15, v2, 3, 1")
                a(f"v_lshl_or_b32 v{d}, v15, 1, v{d}")
            a(f"""
            v_lshlrev_b32 v{d}, 1, v{d}
            v_and_b32 v15, 7, v3
            v_xor_b32 v{d}, v{d}, v15
            v_and_b32 v2, {31 if c.kind == "w2" else 63}, v2
            v_mul_lo_u32 v2, v2, s36
            v_lshl_add_u32 v{d}, v{d}, 4, v2
            """)
            if c.pstride:
                a(f"""
                v_lshrrev_b32 v3, 9, v3
                {"s_bfe_u32 s31, s25, 0x10002" if c.sk else ""}
                {"v_xor_b32 v3, s31, v3" if c.sk else ""}
                v_mul_u32_u24 v3, {c.pstride}, v3
                v_add_u32 v{d}, v{d}, v3
                """)
        else:
            a(f"""
            v_mul_u32_u24 v2, 2341, v3
            v_lshrrev_b32 v2, 16, v2
            v_mul_u32_u24 v15, 28, v2
            v_sub_u32 v3, v3, v15
            v_bfe_u32 v15, v2, 2, 1
            v_lshlrev_b32 v15, 1, v15
            v_xor_b32 v3, v3, v15
            v_mul_lo_u32 v2, v2, s36
            v_lshl_add_u32 v{d}, v3, 4, v2
            """)
        if i & 3: a(f"v_subrev_u32 v{d}, {(i&3)*1024}, v{d}")

def issueA(a, c, slot=None, adv=True):
    if slot is None: a("s_add_u32 m0, s27, s34")
    else: a(f"s_add_u32 m0, s34, {c.ABASE + slot*16384}")
    for i in range(4):
        v = PV_A + (i if c.a_off is None else 0)
        a(f"buffer_load_dwordx4 v{v}, s[8:11], s28 offen offset:{i*1024}{'' if c.a_off is None else ' sc1'} lds")
    if adv:
        a(f"s_add_u32 s28, s28, {c.astep}")
        if c.rot: a(f"s_and_b32 s28, s28, {16*c.astep - 1}")
    if slot is None:
        a(f"""
        s_add_u32 s27, s27, 16384
        s_cmp_eq_u32 s27, {c.ABASE + c.S*16384}
        s_cselect_b32 s27, {c.ABASE}, s27
        """)

def issueB(a, c, slot=None, adv=True):
    for i in range(c.NBW):
        if i % 4 == 0:
            if slot is None:
                a(f"s_add_u32 m0, s32, {c.s35}")
                if i: a(f"s_add_u32 m0, m0, {i*1024}")
            else:
                a(f"s_add_u32 m0, {c.s35}, {c.BBASE + slot*c.BB + i*1024}")
        a(f"buffer_load_dwordx4 v{c.pvb+i}, s[{c.sb}:{c.sb+3}], s29 offen offset:{(i&3)*1024}{' nt' if (c.kind == 'qkv' and OPT['qnt'] >= 2) else ''} lds")
    if adv:
        a(f"s_add_u32 s29, s29, {c.bstep}")
        if c.rot:
            a(f"s_cmp_eq_u32 s29, {16*c.bstep}")
            a("s_cselect_b32 s29, 0, s29")
    if slot is None:
        a(f"""
        s_add_u32 s32, s32, {c.BB}
        s_cmp_eq_u32 s32, {c.BBASE + c.S*c.BB}
        s_cselect_b32 s32, {c.BBASE}, s32
        """)

PV_POLL = 28
def poll_once(a, wide):
    t = PV_POLL
    if wide: a(f"buffer_load_dwordx4 v[{t}:{t+3}], v26, s[{FLS}:{FLS+3}], s33 offen sc0 sc1")
    else: a(f"buffer_load_dwordx2 v[{t}:{t+1}], v26, s[{FLS}:{FLS+3}], s33 offen sc0 sc1")
    a("s_waitcnt vmcnt(0)")
    a(f"v_cmp_eq_u64 s[56:57], s[{TAG}:{TAG+1}], v[{t}:{t+1}]")
    if wide:
        a(f"v_cmp_eq_u64 s[58:59], s[{TAG}:{TAG+1}], v[{t+2}:{t+3}]")
        a("s_nop 3")
        a("s_and_b64 s[56:57], s[56:57], s[58:59]")
    else:
        a("s_nop 3")

def gate(a, t, wide):
    lp = a.label("gate"); ok = a.label("skip_gate")
    a(f"{lp}:")
    if t == "all":
        a("s_cmp_eq_u32 s56, -1" if OPT["sk"] else "s_cmp_eq_u64 s[56:57], -1")
    else:
        a(f"s_bfe_u32 s30, s{56 + t // 8}, {hex((4 << 16) | (4 * (t % 8)))}")
        a("s_cmp_eq_u32 s30, 15")
    a(f"s_cbranch_scc1 {ok}")
    poll_once(a, wide)
    a("""
    s_sub_u32 s39, s39, 1
    s_cselect_b64 s[58:59], -1, 0
    s_cselect_b32 s39, 0, s39
    s_or_b64 s[56:57], s[56:57], s[58:59]
    """)
    a(f"s_branch {lp}")
    a(f"{ok}:")

def gate_setup(a, seam_id, wide):
    a(f"""
    s_lshl_b32 s30, s65, 2
    v_add_u32 v26, s30, v1
    v_and_b32 v26, 63, v26
    v_lshlrev_b32 v26, {4 if wide else 3}, v26
    s_lshl_b32 s33, s24, 10
    s_add_u32 s33, s33, {seam_id*16384}
    s_mov_b64 s[56:57], 0
    s_mov_b32 s39, 0x200000
    """)

def colsum_tile(a, c, lds_base, wsg, which, R, part=None):
    AD = R; ACCU = R + 4; D = R + 8; t = R + 40
    if part in (None, 0):
        a(f"""
        v_lshrrev_b32 v{t}, 4, v1
        v_bfe_u32 v{t+1}, v1, 2, 2
        v_mul_u32_u24 v{t+2}, {c.gmul}, v{t}
        v_add_u32 v{t+2}, v{t+2}, v{t+1}
        v_mul_u32_u24 v{t+2}, {c.RS}, v{t+2}
        v_and_b32 v{t+3}, 3, v1
        v_lshl_add_u32 v{t+2}, v{t+3}, 3, v{t+2}
        v_and_b32 v{t}, 1, v{t}
        s_lshl_b32 s71, {wsg}, {13 if c.layout == "panel" else 7}
        s_add_u32 s71, s71, {lds_base}
        v_add_u32 v{t+2}, s71, v{t+2}
        """)
        if c.layout == "panel":
            a(f"v_lshrrev_b32 v{t+1}, 1, v{t+1}")
            a(f"v_lshl_or_b32 v{t}, v{t}, 1, v{t+1}")
        for ts in range(4):
            a(f"v_xor_b32 v{t+3}, {ts}, v{t}")
            a(f"v_lshl_add_u32 v{AD+ts}, v{t+3}, 5, v{t+2}")
        for q in range(4):
            for ts in range(4):
                d = D + (q * 4 + ts) * 2
                a(f"ds_read_b64_tr_b16 v[{d}:{d+1}], v{AD+ts} offset:{((q>>1)*32 + (q&1)*c.rdrows) * c.RS}")
        for ts in range(4): a(f"v_mov_b32 v{ACCU+ts}, 0")
        srd_off(a, 16, P_WS, CSG_OFF + which * 524288, 524288)
        a(f"""
        s_mov_b32 s75, 0x3f803f80
        v_lshlrev_b32 v{t}, 3, v1
        """)
        if c.kind == "qkv" and OPT["dil"]:
            a(f"""
            s_lshl_b32 s71, s24, 15
            s_mul_i32 s31, s25, 1536
            s_add_u32 s71, s71, s31
            s_lshl_b32 s31, {wsg}, 9
            s_add_u32 s71, s71, s31
            s_cmp_eq_u32 {wsg}, 3
            s_cselect_b32 s71, 0x40000000, s71
            """)
        else:
            a(f"""
            s_lshl_b32 s71, s25, 15
            s_lshl_b32 s31, s24, 11
            s_add_u32 s71, s71, s31
            s_lshl_b32 s31, {wsg}, 9
            s_add_u32 s71, s71, s31
            """)
    for q in range(4):
        if part not in (None, 1 + q // 2): continue
        if part is None or q == 0: a(f"s_waitcnt lgkmcnt({12-4*q if part is None else 0})")
        for d in range(2):
            for ts in range(4):
                a(f"v_dot2c_f32_bf16 v{ACCU+ts}, s75, v{D+(q*4+ts)*2+d}")
    if part in (None, 3):
        t0, t1, t2, t3 = ACCU, ACCU + 1, ACCU + 2, ACCU + 3
        a(f"""
        v_permlane32_swap_b32 v{t0}, v{t2}
        v_permlane32_swap_b32 v{t1}, v{t3}
        v_add_f32 v{t0}, v{t0}, v{t2}
        v_add_f32 v{t1}, v{t1}, v{t3}
        v_permlane16_swap_b32 v{t0}, v{t1}
        v_add_f32 v{t0}, v{t0}, v{t1}
        v_mov_b32 v{t1}, s{TAG}
        """)
        if c.kind == "qkv":
            sk = a.label("skip_xi")
            a(f"""
            s_cmp_lg_u32 {wsg}, 3
            s_cbranch_scc1 {sk}
            v_cmp_eq_u32 vcc, s74, v1
            v_cndmask_b32 v{t0}, 0, 1.0, vcc
            {sk}:
            """)
        a(f"buffer_store_dwordx2 v[{t0}:{t1}], v{t}, s[16:19], s71 offen sc0 sc1")

G_CS = 32
G_RS = 64
def gather_cs_setup(a, c):
    which = 0 if c.kind == "qkv" else 1
    srd_off(a, 16, P_WS, CSG_OFF + which * 524288, 524288)
    if c.kind == "qkv" and OPT["dil"]:
        a(f"""
        s_min_u32 s31, s38, 2
        s_lshl_b32 s60, s31, 13
        s_lshl_b32 s31, s25, 9
        s_add_u32 s60, s60, s31
        s_mov_b32 s67, 32768
        """)
    else:
        a(f"""
        s_lshl_b32 s60, s25, 15
        s_lshl_b32 s31, s38, 9
        s_add_u32 s60, s60, s31
        s_mov_b32 s67, 2048
        """)
    a("v_lshlrev_b32 v24, 3, v1")
    return 0
def gather_cs(a, r0, r1):
    for r in range(r0, r1):
        a(f"buffer_load_dwordx2 v[{G_CS+2*r}:{G_CS+2*r+1}], v24, s[16:19], s60 offen sc0 sc1")
        a("s_add_u32 s60, s60, s67")
    return r1 - r0
def gather_rs_setup(a, c):
    if c.kind == "qkv":
        srd_off(a, 20, P_WS, RS1_OFF, 32768)
        a(f"""
        v_and_b32 v25, 31, v1
        v_lshlrev_b32 v25, 4, v25
        s_lshl_b32 s61, s24, 11
        s_lshl_b32 s31, s38, 9
        s_add_u32 s61, s61, s31
        """)
    else:
        srd_off(a, 20, P_WS, ST2_OFF, 16 * 32768)
        a(f"""
        v_and_b32 v25, 31, v1
        v_lshlrev_b32 v25, 2, v25
        v_lshrrev_b32 v15, 5, v1
        v_lshl_add_u32 v25, v15, 9, v25
        s_lshl_b32 s61, s24, 15
        s_lshl_b32 s31, s38, 7
        s_add_u32 s61, s61, s31
        """)
    return 0
def gather_rs(a, c, p0=0, p1=32):
    if c.kind == "qkv":
        a(f"buffer_load_dwordx4 v[{G_RS}:{G_RS+3}], v25, s[20:23], s61 offen sc0 sc1")
        return 1
    a(f"s_add_u32 s30, s65, {p0 // 2}")
    a("s_and_b32 s30, s30, 15")
    a("s_lshl_b32 s30, s30, 11")
    a("s_add_u32 s30, s30, s61")
    for p in range(p0, p1):
        a(f"buffer_load_dword v{G_RS+p}, v25, s[20:23], s30 offen offset:{(p&1)*1024} sc0 sc1")
    return p1 - p0

def gather_finish_cs(a, c):
    lp = a.label("gchk"); ok = a.label("skip_gok")
    a("s_mov_b32 s62, 0x40000")
    a(f"{lp}:")
    a(f"v_xor_b32 v15, s{TAG}, v{G_CS+1}")
    for r in range(1, 16):
        a(f"v_xor_b32 v27, s{TAG}, v{G_CS+2*r+1}")
        a("v_or_b32 v15, v15, v27")
    if c.kind == "qkv":
        a(f"v_xor_b32 v27, s{TAG}, v{G_RS+2}")
        a("v_or_b32 v15, v15, v27")
        a(f"v_xor_b32 v27, s{TAG+1}, v{G_RS+3}")
        a("v_or_b32 v15, v15, v27")
    a(f"""
    v_cmp_ne_u32 vcc, 0, v15
    s_nop 3
    s_cmp_eq_u64 vcc, 0
    s_cbranch_scc1 {ok}
    s_sub_u32 s62, s62, 1
    s_cbranch_scc1 {ok}
    s_sleep 2
    """)
    gather_cs_setup(a, c); gather_cs(a, 0, 16)
    if c.kind == "qkv": gather_rs(a, c)
    a("s_waitcnt vmcnt(0)")
    a(f"s_branch {lp}")
    a(f"{ok}:")
    for r in range(1, 16): a(f"v_add_f32 v{G_CS}, v{G_CS}, v{G_CS+2*r}")
    a(f"""
    v_lshlrev_b32 v2, 2, v1
    s_lshl_b32 s30, s38, 8
    s_add_u32 s30, s30, {ST_CS}
    v_add_u32 v2, s30, v2
    ds_write_b32 v2, v{G_CS}
    """)
    return 0

def gather_finish_rs(a, c):
    a(f"""
    v_and_b32 v3, 31, v1
    s_lshl_b32 s30, s38, 5
    v_add_u32 v3, s30, v3
    v_lshlrev_b32 v2, 4, v3
    v_add_u32 v2, {ST_REC}, v2
    """)
    R = G_RS
    if c.kind == "qkv":
        a(f"""
        v_lshlrev_b32 v3, 2, v3
        v_add_u32 v3, {ST_MEAN}, v3
        ds_write_b128 v2, v[{R}:{R+3}]
        ds_write_b32 v3, v{R}
        ds_write_b32 v3, v{R+1} offset:512
        """)
    else:
        a(f"""
        v_mov_b32 v{R+1}, v{R}
        v_permlane32_swap_b32 v{R}, v{R+1}
        v_mul_f32 v{R}, {f32(1.0/1024)}, v{R}
        v_mul_f32 v{R+1}, {f32(1.0/1024)}, v{R+1}
        v_fma_f32 v{R+1}, -v{R}, v{R}, v{R+1}
        v_max_f32 v{R+1}, 0, v{R+1}
        v_add_f32 v{R+4}, {f32(1e-5)}, v{R+1}
        v_rsq_f32 v{R+1}, v{R+4}
        v_sqrt_f32 v{R+3}, v{R+4}
        v_mul_f32 v{R+2}, {f32(-LOG2E)}, v{R+1}
        ds_write_b128 v2, v[{R}:{R+3}]
        """)
    a("s_waitcnt lgkmcnt(0)")
    return 0

def row_stats_issue(a, X):
    srd_off(a, 20, P_X, 0, 4 * MB)
    srd_off(a, 16, P_DBG, 0, 256)
    a(f"""
    s_lshl_b32 s30, s24, 7
    s_lshl_b32 s31, s25, 3
    s_add_u32 s30, s30, s31
    s_lshl_b32 s31, s3, 1
    s_add_u32 s33, s30, s31
    s_lshl_b32 s30, s33, 11
    v_lshlrev_b32 v{X+18}, 4, v1
    v_mov_b32 v{X+19}, 0
    """)
    for i in range(4):
        a(f"buffer_load_dwordx4 v[{X+4*i}:{X+4*i+3}], v{X+18}, s[20:23], s30 offen offset:{i*1024}")

def row_stats_finish(a, X, T):
    s0, q0, s1, q1 = T, T + 1, T + 2, T + 3
    a(f"buffer_load_dwordx2 v[{X+16}:{X+17}], v{X+19}, s[16:19], 0 offen sc0 sc1")
    a("s_mov_b32 s75, 0x3f803f80")
    for i in range(4): a(f"v_mov_b32 v{T+i}, 0")
    a("s_waitcnt vmcnt(1)")
    for d in range(8):
        for row in range(2):
            r = X + 8 * row + d
            a(f"v_dot2c_f32_bf16 v{T+2*row}, s75, v{r}")
            a(f"v_dot2c_f32_bf16 v{T+2*row+1}, v{r}, v{r}")
    a(f"""
    v_permlane32_swap_b32 v{s0}, v{q0}
    v_permlane32_swap_b32 v{s1}, v{q1}
    v_add_f32 v{s0}, v{s0}, v{q0}
    v_add_f32 v{s1}, v{s1}, v{q1}
    v_permlane16_swap_b32 v{s0}, v{s1}
    v_add_f32 v{s0}, v{s0}, v{s1}
    v_add_f32_dpp v{s0}, v{s0}, v{s0} quad_perm:[1,0,3,2] row_mask:0xf bank_mask:0xf
    v_add_f32_dpp v{s0}, v{s0}, v{s0} quad_perm:[2,3,0,1] row_mask:0xf bank_mask:0xf
    v_add_f32_dpp v{s0}, v{s0}, v{s0} row_half_mirror row_mask:0xf bank_mask:0xf
    v_add_f32_dpp v{s0}, v{s0}, v{s0} row_mirror row_mask:0xf bank_mask:0xf
    v_mov_b32 v{q0}, v{s0}
    v_permlane32_swap_b32 v{s0}, v{q0}
    v_mul_f32 v{s0}, {f32(1.0/1024)}, v{s0}
    v_mul_f32 v{q0}, {f32(1.0/1024)}, v{q0}
    v_fma_f32 v{q0}, -v{s0}, v{s0}, v{q0}
    v_max_f32 v{q0}, 0, v{q0}
    v_add_f32 v{q0}, {f32(1e-5)}, v{q0}
    v_rsq_f32 v{q0}, v{q0}
    """)
    lp = a.label("tagp"); dn = a.label("tagd")
    a(f"""
    s_mov_b32 s39, 0x100000
    {lp}:
    s_waitcnt vmcnt(0)
    v_readfirstlane_b32 s{TAG}, v{X+16}
    v_readfirstlane_b32 s{TAG+1}, v{X+17}
    s_nop 3
    s_cmp_lg_u32 s{TAG}, 0
    s_cbranch_scc1 {dn}
    s_sleep 1
    buffer_load_dwordx2 v[{X+16}:{X+17}], v{X+19}, s[16:19], 0 offen sc0 sc1
    s_sub_u32 s39, s39, 1
    s_cmp_lg_u32 s39, 0
    s_cbranch_scc1 {lp}
    {dn}:
    """)
    srd_off(a, 20, P_WS, RS1_OFF, 32768)
    a(f"""
    v_mov_b32 v{s1}, s{TAG}
    v_mov_b32 v{q1}, s{TAG+1}
    v_and_b32 v{T+4}, 16, v1
    s_lshl_b32 s30, s33, 4
    v_mov_b32 v{T+5}, {ST_TAG}
    s_mov_b64 exec, 0x10001
    buffer_store_dwordx4 v[{T}:{T+3}], v{T+4}, s[20:23], s30 offen sc0 sc1
    ds_write_b64 v{T+5}, v[{s1}:{q1}]
    s_mov_b64 exec, -1
    s_waitcnt lgkmcnt(0)
    """)

def w2_kg(t):
    if OPT["sk"]:
        if t < 8: return 7 * t, 4
        if t < 12: return 14 * (t - 8) + 3, 7
        if t < 20: return 7 * (t - 12) + 1, 4
        return 7 * (t - 20) + 2, 4
    if t < 16: return 7 * t, 4
    if t < 24: return 14 * (t - 16) + 3, 7
    if t < 40: return 7 * (t - 24) + 1, 4
    return 7 * (t - 40) + 2, 4

def set_soff(a, c, st, A=True, B=True):
    if c.kind != "w2": return
    base, dh = w2_kg(st)
    off = base % 7
    hs = "s63" if dh == 4 else "s64"
    a(f"s_add_u32 s30, s66, {(base - off)*8192}")
    a(f"s_sub_u32 s31, s30, {112*8192}")
    a("s_cselect_b32 s30, s30, s31")
    a(f"s_add_u32 s30, s30, {hs}")
    if A: a(f"s_add_u32 s28, s30, {off*8192}")
    if B:
        a(f"s_add_u32 s29, s30, {off*8192}")
        a("s_lshl_b32 s29, s29, 3")

def w2_early_setup(a, c):
    a(f"""
    s_mul_i32 s41, s38, {c.NBW*1024}
    s_and_b32 s30, s38, 1
    s_mul_i32 s63, s30, {4*8192}
    s_mul_i32 s64, s30, {7*8192}
    s_and_b32 s30, s25, 4
    s_mul_i32 s66, s30, {14*8192}
    """)
    c.bstep = 64 * c.ldb
    b_setup(a, c, c.pvb, c.sb)

def pre_B(a, c, st0=0, st1=None):
    for st in range(st0, c.S if st1 is None else st1):
        set_soff(a, c, st, A=False)
        issueB(a, c, st % c.S, c.kind != "w2")
    return (( c.S if st1 is None else st1) - st0) * c.NBW

def gemm_producer(a, c, preB, gated=None, side=None, after_issue=None, unroll_to=None):
    n = c.n; S = c.S; L = 4 + c.NBW
    side = side or {}
    U = n if unroll_to is None else unroll_to
    ops = []
    w2 = c.kind == "w2"
    def iss(st):
        if gated and st < (8 if c.sk else 16): gate(a, st, gated == "wide")
        if st == 0: stamp(a, c.sid)
        doB = not (preB and st < S)
        set_soff(a, c, st, True, doB)
        issueA(a, c, st % S, not w2); ops.extend([st] * 4)
        if doB:
            issueB(a, c, st % S, not w2); ops.extend([st] * c.NBW)
        if after_issue: ops.extend([st] * after_issue(st))
    def wait(st):
        last = max(i for i, x in enumerate(ops) if x <= st)
        a(f"s_waitcnt vmcnt({min(63, len(ops) - 1 - last)})")
    def run_side(j, tag):
        for f in side.get(j, []): ops.extend([tag] * (f() or 0))
    if DIAG and OPT['steps']: a('s_mov_b32 s99, 0\nv_mov_b32 v252, 0')
    iss(0); issued = 1
    if not (c.kind == "qkv" and OPT["early0"]):
        run_side(-1, 1)
        iss(1); issued = 2
    wait(0)
    stamp(a, c.sid + 1)
    pbar(a)
    j = 0
    while j < n:
        allowed = j - 1 + S
        if issued >= U and issued < n: break
        cnt = 0
        if c.kind == "qkv" and OPT["early0"] == 1 and j == 0: run_side(-1, 1)
        while issued <= allowed and cnt < 2 and issued < U:
            if c.kind == "qkv" and OPT["early0"] == 2 and issued == 2: run_side(-1, 2)
            iss(issued); issued += 1; cnt += 1
        run_side(j, max(issued - 1, j + 2))
        j += 1
        if j < n: wait(j)
        pbar(a)
    if j < n:
        assert issued == j - 1 + S
        a(f"s_mov_b32 s27, {c.ABASE + (issued % S)*16384}")
        a(f"s_mov_b32 s32, {c.BBASE + (issued % S)*c.BB}")
        for (t0, t1, stride) in c.rounds:
            if t0 == c.gate_all_at:
                a(f"s_waitcnt vmcnt({(c.gate_all_at - c.prepoll_at) * L})")
                a(f"v_cmp_eq_u64 s[56:57], s[{TAG}:{TAG+1}], v[{PV_POLL}:{PV_POLL+1}]")
                a("s_nop 3")
                gate(a, "all", False)
            if t0 == c.prepoll_at:
                gate_setup(a, c.seamB, False)
                a(f"buffer_load_dwordx2 v[{PV_POLL}:{PV_POLL+1}], v26, s[{FLS}:{FLS+3}], s33 offen sc0 sc1")
            if t0 in c.round_hook: c.round_hook[t0]()
            lp = a.label("p_loop")
            set_soff(a, c, t0, True, False)
            a(f"s_mov_b32 s26, {t1 - t0}")
            a(f"{lp}:")
            a("s_lshl_b32 s29, s28, 3")
            issueA(a, c, None, False); issueB(a, c, None, False)
            a(f"s_add_u32 s28, s28, {stride*8192}")
            a(f"s_sub_u32 s31, s28, {112*8192}")
            a("s_cselect_b32 s28, s28, s31")
            a(f"s_waitcnt vmcnt({(S-2)*L})")
            if DIAG and OPT["steps"]:
                pbar(a)
                a(f"s_sub_u32 s26, s26, 1\ns_cmp_lg_u32 s26, 0\ns_cbranch_scc1 {lp}")
            else:
                a(f"s_sub_u32 s26, s26, 1\ns_cmp_lg_u32 s26, 0\ns_barrier\ns_cbranch_scc1 {lp}")
        j = n - S + 1
        stamp(a, c.sid + 2)
        while j < n:
            j += 1
            if j < n: a(f"s_waitcnt vmcnt({(n-1-j)*L})")
            pbar(a)
    stamp(a, c.sid + 3)
    pbar_flush(a, {'qkv':0,'wo':1,'w1':2,'w2':3}[c.kind])

def touch(a, ptr, total_bytes, sr_=20):
    nl = total_bytes // 128 // 1024
    srd_off(a, sr_, ptr, 0, total_bytes)
    a(f"""
    s_lshl_b32 s30, s2, 2
    s_add_u32 s30, s30, s38
    s_mul_i32 s30, s30, {nl*128}
    v_lshlrev_b32 v2, 7, v1
    s_mov_b32 exec_lo, {hex(((1 << nl) - 1) & 0xffffffff)}
    s_mov_b32 exec_hi, {hex(((1 << nl) - 1) >> 32)}
    buffer_load_dword v253, v2, s[{sr_}:{sr_+3}], s30 offen
    s_mov_b64 exec, -1
    """)
    return 1

def xtouch_setup(a, ptr, nbytes, sr_, vreg):
    srd_off(a, sr_, ptr, 0, nbytes)
    a(f"""
    v_lshrrev_b32 v2, 2, v1
    v_lshlrev_b32 v2, 11, v2
    v_and_b32 v3, 3, v1
    v_lshl_add_u32 v2, v3, 7, v2
    s_and_b32 s30, s2, 3
    s_lshl_b32 s30, s30, 9
    s_lshl_b32 s31, s38, 14
    s_add_u32 s30, s30, s31
    v_add_u32 v2, s30, v2
    v_mov_b32 v3, 0x40000000
    v_cmp_gt_u32 vcc, 32, v1
    v_cndmask_b32 v{vreg}, v3, v2, vcc
    """)

def w2_xtouch(a, q):
    a(f"""
    s_lshr_b32 s30, s2, 4
    s_mul_i32 s30, s30, {7*65536}
    s_bfe_u32 s31, s2, 0x10003
    s_mul_i32 s31, s31, {4*65536 if q < 3 else 0x20000000}
    s_add_u32 s30, s30, s31
    s_add_u32 s30, s30, {q*65536}
    buffer_load_dword v253, v23, s[44:47], s30 offen
    """)
    return 1

def attention(a):
    SC = (32 ** -0.5) * LOG2E
    vF, vL, vQH = 2, 4, 5
    Q = 8; O = 16; SB = 32; F = 176; T = 248
    a(f"""
    v_bfe_u32 v6, v1, 4, 1
    v_lshlrev_b32 v{vF}, 10, v6
    v_lshrrev_b32 v6, 5, v1
    v_lshl_add_u32 v{vF}, v6, 8, v{vF}
    v_and_b32 v7, 15, v1
    v_lshl_add_u32 v{vF}, v7, 4, v{vF}
    v_and_b32 v7, 31, v1
    v_lshlrev_b32 v6, 2, v6
    v_sub_u32 v{vQH}, v7, v6
    s_lshr_b32 s34, s3, 2            ; hh
    s_and_b32 s35, s3, 3             ; qb
    s_mul_i32 s30, s34, {HEADW}
    s_lshl_b32 s31, s35, 11
    s_add_u32 s30, s30, s31
    v_add_u32 v{vL}, s30, v{vF}
    ds_read_b128 v[{Q}:{Q+3}], v{vL} offset:49152
    ds_read_b128 v[{Q+4}:{Q+7}], v{vL} offset:{49152+512}
    """)
    def fr(b, i): return F + b * 8 + i * 4
    rd = []
    for b in range(9):
        for i in range(2):
            rd.append(f"ds_read_b128 v[{fr(b,i)}:{fr(b,i)+3}], v{vL} offset:{b*2048 + i*512}")
    for x in rd[:8]: a(x)
    for r in range(16):
        cst = 8 * (r >> 2) + (r & 3)
        a(f"v_cmp_gt_i32 s[{40+2*r}:{41+2*r}], {cst}, v{vQH}")
    nissued = 8
    rv = []
    for b in range(9):
        for i in range(2):
            rv.append(f"ds_read_b128 v[{fr(b,i)}:{fr(b,i)+3}], v{vL} offset:{24576 + b*2048 + i*512}")
    for b in range(9):
        a(f"s_waitcnt lgkmcnt({nissued - (2*b+2)})")
        s = SB + 16 * b
        a(f"v_mfma_f32_32x32x16_bf16 v[{s}:{s+15}], v[{fr(b,0)}:{fr(b,0)+3}], v[{Q}:{Q+3}], 0")
        if nissued < 18: a(rd[nissued]); nissued += 1
        a(f"v_mfma_f32_32x32x16_bf16 v[{s}:{s+15}], v[{fr(b,1)}:{fr(b,1)+3}], v[{Q+4}:{Q+7}], v[{s}:{s+15}]")
        if nissued < 18: a(rd[nissued]); nissued += 1
    for x in rv[:14]: a(x)
    skip = a.label("at_valid")
    a(f"""
    s_lshl_b32 s30, s24, 2
    s_add_u32 s30, s30, s35
    s_cmp_ge_u32 s30, 8
    s_cbranch_scc1 {skip}
    """)
    for b in range(8):
        nb = a.label("at_nb")
        a(f"s_cmp_ge_u32 s30, {8-b}")
        a(f"s_cbranch_scc1 {nb}")
        for r in range(16):
            a(f"v_mov_b32 v{SB+16*b+r}, 0xff800000")
        a(f"{nb}:")
    a(f"{skip}:")
    mx = T; mx2 = T + 1; sm = T + 2
    a(f"v_max_f32 v{mx}, v{SB+16}, v{SB+17}")
    a(f"v_max_f32 v{mx2}, v{SB+18}, v{SB+19}")
    idx = list(range(20, 128))
    for k in range(0, len(idx), 2):
        m = mx if (k // 2) % 2 == 0 else mx2
        a(f"v_max3_f32 v{m}, v{SB+idx[k]}, v{SB+idx[k+1]}, v{m}")
    for r in range(16):
        a(f"v_cndmask_b32 v{SB+r}, v{SB+128+r}, v{SB+r}, s[{40+2*r}:{41+2*r}]")
    for k in range(0, 16, 2):
        m = mx if (k // 2) % 2 == 0 else mx2
        a(f"v_max3_f32 v{m}, v{SB+k}, v{SB+k+1}, v{m}")
    for x in rv[14:]: a(x)
    a(f"""
    v_max_f32 v{mx}, v{mx}, v{mx2}
    v_mov_b32 v{mx2}, v{mx}
    v_permlane32_swap_b32 v{mx}, v{mx2}
    v_max_f32 v{mx}, v{mx}, v{mx2}
    v_mov_b32 v{Q}, {f32(SC)}
    v_mul_f32 v{Q+1}, v{Q}, v{mx}
    v_mov_b32 v{sm}, 0
    v_mov_b32 v{sm+1}, 0
    s_waitcnt lgkmcnt(0)
    s_barrier
    """)
    sk = a.label("skip_x1")
    a(f"""
    s_cmp_lt_u32 s3, 4
    s_cbranch_scc1 {sk}
    s_mul_i32 s30, s24, {64*7168}
    s_mul_i32 s31, s38, 7168
    """)
    for i in range(7):
        if i % 4 == 0: a(f"s_add_u32 m0, s31, {XB1 + i*1024}")
        a(f"buffer_load_dwordx4 v{O+i}, s[20:23], s30 offen offset:{(i&3)*1024} lds")
    if OPT["sk"] and OPT["sent"] == 1:
        sk2 = a.label("skip_x2")
        a(f"s_branch {sk2}")
        a(f"{sk}:")
        srd_off(a, 20, P_WS, XP_OFF, 8 * MB)
        a(f"""
        s_lshl_b32 s30, s24, 19
        s_lshl_b32 s31, s3, 13
        s_add_u32 s30, s30, s31
        s_lshl_b32 s31, s25, 15
        s_add_u32 s30, s30, s31
        v_lshlrev_b32 v{O+4}, 4, v1
        """)
        for i in range(4): a(f"v_mov_b32 v{O+i}, -1")
        for mt in range(4):
            a(f"buffer_store_dwordx4 v[{O}:{O+3}], v{O+4}, s[20:23], s30 offen offset:{mt*1024} sc0 sc1")
        a(f"{sk2}:")
    else:
        a(f"{sk}:")
    def pack(s):
        for d, r in [(0, 0), (1, 2), (2, 8), (3, 10), (4, 4), (5, 6), (6, 12), (7, 14)]:
            a(f"v_cvt_pk_bf16_f32 v{s+d}, v{s+r}, v{s+r+1}")
    first = [True]
    def pv(b, s):
        c0 = "0" if first[0] else f"v[{O}:{O+15}]"
        first[0] = False
        a(f"v_mfma_f32_32x32x16_bf16 v[{O}:{O+15}], v[{fr(b,0)}:{fr(b,0)+3}], v[{s}:{s+3}], {c0}")
        a(f"v_mfma_f32_32x32x16_bf16 v[{O}:{O+15}], v[{fr(b,1)}:{fr(b,1)+3}], v[{s+4}:{s+7}], v[{O}:{O+15}]")
    pending = None
    for b in [0, 1, 2, 3, 4, 5, 6, 7]:
        s = SB + 16 * b
        for r in range(0, 16, 2):
            a(f"v_pk_fma_f32 v[{s+r}:{s+r+1}], v[{s+r}:{s+r+1}], v[{Q}:{Q+1}], v[{Q}:{Q+1}] op_sel:[0,0,1] op_sel_hi:[1,0,1] neg_lo:[0,0,1] neg_hi:[0,0,1]")
        if pending is not None:
            for p in pending: pv(*p)
            pending = None
        for r in range(16):
            a(f"v_exp_f32 v{s+r}, v{s+r}")
        for r in range(0, 16, 2):
            a(f"v_pk_add_f32 v[{sm}:{sm+1}], v[{sm}:{sm+1}], v[{s+r}:{s+r+1}]")
        if b == 0:
            s8 = SB + 128
            for r in range(16):
                a(f"v_cndmask_b32 v{s8+r}, v{s+r}, 0, s[{40+2*r}:{41+2*r}]")
                a(f"v_cndmask_b32 v{s+r}, 0, v{s+r}, s[{40+2*r}:{41+2*r}]")
            pack(s); pack(s8)
            pending = [(0, s), (8, s8)]
        else:
            pack(s)
            pending = [(b, s)]
    for p in pending: pv(*p)
    srd_off(a, 16, P_WS, O_OFF, 4 * MB)
    a(f"""
    v_add_f32 v{sm}, v{sm}, v{sm+1}
    v_mov_b32 v{sm+1}, v{sm}
    v_permlane32_swap_b32 v{sm}, v{sm+1}
    v_add_f32 v{sm}, v{sm}, v{sm+1}
    v_rcp_f32 v{sm}, v{sm}
    s_lshl_b32 s30, s24, 18
    s_lshl_b32 s31, s25, 14
    s_add_u32 s30, s30, s31
    s_lshl_b32 s31, s34, 13
    s_add_u32 s30, s30, s31
    s_lshl_b32 s31, s35, 11
    s_add_u32 s30, s30, s31
    """)
    for r in range(0, 16, 2):
        a(f"v_pk_mul_f32 v[{O+r}:{O+r+1}], v[{O+r}:{O+r+1}], v[{sm}:{sm+1}] op_sel_hi:[1,0]")
    pack(O)
    a(f"""
    buffer_store_dwordx4 v[{O}:{O+3}], v{vF}, s[16:19], s30 offen sc0 sc1
    buffer_store_dwordx4 v[{O+4}:{O+7}], v{vF}, s[16:19], s30 offen offset:512 sc0 sc1
    """)
    stamp(a, 10)
    signal(a, 1, 3, SB)
    stamp(a, 11)

def build(header_src=None):
    a = Asm()
    C = {k: mk(k, **v) for k, v in CFG.items()}
    kernel_begin(a, KNAME)
    a(f"""
    s_cmp_ge_u32 s2, 256
    s_cbranch_scc1 L_end
    s_load_dwordx16 s[80:95], s[0:1], 0
    s_load_dwordx2 s[4:5], s[0:1], 64
    v_lshrrev_b32 v2, 6, v0
    v_and_b32 v1, 63, v0
    v_readfirstlane_b32 s3, v2
    s_getreg_b32 s74, hwreg(HW_REG_XCC_ID)
    s_and_b32 s74, s74, 15
    s_mov_b32 s{TAG}, 0
    s_mov_b32 s{TAG+1}, 0
    s_waitcnt lgkmcnt(0)
    """)
    srd_off(a, FLS, P_WS, FL_OFF, 131072)
    if DIAG: a(f"v_mov_b32 v{VS}, 0")
    stamp(a, 63)
    a("""
    s_cmp_ge_u32 s3, 4
    s_cbranch_scc1 L_prod
    """)
    a("""
    s_or_b32 s30, s2, s3
    s_cmp_lg_u32 s30, 0
    s_cbranch_scc1 L_notag
    """)
    srd_off(a, 16, P_DBG, 0, 256)
    a("""
    s_memrealtime s[30:31]
    v_mov_b32 v4, 0
    s_waitcnt lgkmcnt(0)
    s_or_b32 s30, s30, 1
    v_mov_b32 v2, s30
    v_mov_b32 v3, s31
    s_mov_b64 exec, 1
    buffer_store_dwordx2 v[2:3], v4, s[16:19], 0 offen sc0 sc1
    s_mov_b64 exec, -1
    L_notag:
    """)
    if OPT["cpf"]:
        a(f"""
        s_getpc_b64 s[30:31]
        L_pc:
        s_sub_u32 s16, s30, L_pc-{KNAME}
        s_subb_u32 s17, s31, 0
        s_mov_b32 s18, L_code_end-{KNAME}
        s_mov_b32 s19, 0x20000
        s_lshr_b32 s30, s2, 3
        s_lshl_b32 s30, s30, 11
        s_lshl_b32 s31, s3, 9
        s_add_u32 s30, s30, s31
        v_lshlrev_b32 v2, 7, v1
        s_mov_b64 exec, 15
        buffer_load_dword v253, v2, s[16:19], s30 offen
        s_mov_b64 exec, -1
        """)
    if OPT["prio"]: a(f"s_setprio {OPT['prio']}")
    gemm_consumer(a, C["qkv"])
    a("s_barrier")
    a("L_attn:")
    stamp(a, 9)
    attention(a)
    a("""
    s_barrier
    s_cmp_ge_u32 s3, 4
    s_cbranch_scc1 L_prod2
    """)
    colsum_tile(a, C["w1"], XB1, "s3", 1, 32)
    gemm_consumer(a, C["wo"])
    gemm_consumer(a, C["w1"])
    gemm_consumer(a, C["w2"])
    stamp_flush(a)
    a("s_endpgm")
    C["w2"].ool()
    if OPT["reslate"]: C["wo"].ool()
    a("L_prod:")
    a("s_sub_u32 s38, s3, 4")
    c = C["qkv"]
    prod_setup(a, c)
    cq = c
    def q_extra():
        vb, sr_ = PV_B, 12
        if OPT["dil"]:
            cx = mk("qkv", **CFG["qkv"]); cx.pstride = 128; cx.bcol = 384
            vb, sr_ = 16, 20
            b_setup(a, cx, vb, sr_)
        a(f"s_mul_i32 s33, s24, {64*cq.ldb}")
        for i in range(cq.NBW):
            if i % 4 == 0: a(f"s_add_u32 m0, s35, {XB0 + i*1024}")
            a(f"buffer_load_dwordx4 v{vb+i}, s[{sr_}:{sr_+3}], s33 offen offset:{(i&3)*1024} lds")
        return cq.NBW
    def q_colsum(part=None):
        if part in (None, 0):
            a(f"""
            v_mov_b32 v2, {ST_TAG}
            ds_read_b64 v[{PV_RD}:{PV_RD+1}], v2
            s_waitcnt lgkmcnt(0)
            v_readfirstlane_b32 s{TAG}, v{PV_RD}
            v_readfirstlane_b32 s{TAG+1}, v{PV_RD+1}
            """)
        a("s_setprio 3")
        colsum_tile(a, cq, XB0, "s38", 0, PV_RD, part)
        a("s_setprio 0")
        return 1 if part in (None, 3) else 0
    def hi(f):
        def g():
            a("s_setprio 3"); r = f(); a("s_setprio 0"); return r
        return g
    side = {-1: [q_extra], (2 if OPT['early0'] == 2 else 1): [q_colsum], 12: [lambda: gather_cs_setup(a, cq), lambda: gather_rs_setup(a, cq)],
            14: [lambda: gather_rs(a, cq), lambda: gather_cs(a, 0, 16)]}
    side[15] = [lambda: a("s_waitcnt vmcnt(0)"), hi(lambda: gather_finish_cs(a, cq)), hi(lambda: gather_finish_rs(a, cq))]
    if OPT["cspl"]:
        del side[1]
        for k in range(4): side.setdefault(1 + k, []).append(lambda k=k: q_colsum(k))
    if OPT["help"]:
        def help_setup():
            srd_off(a, 44, P_WQKV, 0, 6 * MB)
            a(f"""
            s_and_b32 s30, s25, 3
            s_lshl_b32 s31, s30, 11
            s_or_b32 s70, s25, 3
            s_lshl_b32 s70, s70, 7
            s_add_u32 s31, s31, s70
            v_mov_b32 v2, 6144
            v_mul_lo_u32 v23, v1, v2
            v_add_u32 v23, s31, v23
            s_and_b32 s70, s24, 7
            s_cmp_eq_u32 s30, 3
            s_cselect_b32 s70, 99, s70
            s_and_b32 s30, s25, 4
            s_cselect_b32 s70, 99, s70
            s_cmp_lg_u32 s38, 0
            s_cselect_b32 s70, 99, s70
            """)
            return 0
        def helper(k):
            def f():
                sk = a.label("skip_help")
                a(f"""
                s_cmp_lg_u32 s70, {k & 7}
                s_cbranch_scc1 {sk}
                s_mov_b32 s30, {(k + OPT['help']) * 64 * 6144}
                buffer_load_dword v253, v23, s[44:47], s30 offen
                {sk}:
                """)
                return 0
            return f
        side[-1].append(help_setup)
        for k in range(0, 16 - OPT["help"]): side.setdefault(k, []).insert(0, helper(k))
    if OPT["sk"] and OPT["sent"] == 2:
        def prefill(k):
            def f():
                if k == 0:
                    srd_off(a, 16, P_WS, XP_OFF, 8 * MB)
                    a(f"""
                    s_lshl_b32 s62, s24, 19
                    s_lshl_b32 s31, s38, 13
                    s_add_u32 s62, s62, s31
                    s_lshl_b32 s31, s25, 15
                    s_add_u32 s62, s62, s31
                    v_lshlrev_b32 v27, 4, v1
                    """)
                    for i in range(4): a(f"v_mov_b32 v{28+i}, -1")
                a(f"buffer_store_dwordx4 v[28:31], v27, s[16:19], s62 offen offset:{k*1024} sc0 sc1")
                return 1
            return f
        for k in range(4): side.setdefault(5 + (k // OPT["pfg"]), []).append(prefill(k))
    spf = [0]
    def sprefetch(k):
        def f():
            for _ in range(k):
                if spf[0] < 112:
                    a(f"s_load_dword s{100 + (spf[0] & 1)}, s[68:69], {spf[0]*64}")
                    spf[0] += 1
            return 0
        return f
    def spf_setup():
        a(f"""
        s_lshl_b32 s30, s2, 2
        s_add_u32 s30, s30, s38
        s_mul_i32 s30, s30, 7168
        s_add_u32 s68, s{P_W2}, s30
        s_addc_u32 s69, s{P_W2+1}, 0
        """)
        return 0
    if OPT["pf"] == 3:
        side.setdefault(3, []).append(spf_setup)
        for k in range(3, 13): side.setdefault(k, []).append(sprefetch(5))
    gemm_producer(a, c, False, None, side)
    if OPT["xst"]:
        for i in range(4): a(f"v_mov_b32 v{28+i}, v{PV_A+i}")
        a("""
        s_mov_b32 s48, s8
        s_mov_b32 s49, s9
        s_mov_b32 s50, s10
        s_mov_b32 s51, 0x20000
        """)
    a(f"""
    s_sub_u32 s30, s24, 1
    s_max_i32 s30, s30, 0
    s_sub_u32 s31, s24, 2
    s_max_i32 s31, s31, 0
    s_sub_u32 s30, s30, s31
    s_lshl_b32 s30, s30, 11
    v_bfe_u32 v2, v1, 2, 1
    v_mul_lo_u32 v2, v2, s30
    v_and_b32 v3, 3, v1
    v_lshl_add_u32 v2, v3, 3, v2
    s_lshl_b32 s31, s31, 11
    s_lshl_b32 s30, s25, 7
    s_add_u32 s33, s30, s31
    s_add_u32 s33, s33, 65536
    """)
    a(f"""
    s_lshr_b32 s34, s38, 1
    s_and_b32 s35, s38, 1
    s_lshl_b32 s30, s25, 1
    s_add_u32 s30, s30, s34
    s_lshl_b32 s30, s30, 17
    s_lshl_b32 s31, s35, 22
    s_add_u32 s30, s30, s31
    s_add_u32 s30, s30, {K_OFF}
    """)
    srd_off(a, 8, P_WS, "s30", 131072)
    a(f"""
    s_lshl_b32 s30, s24, 13
    s_sub_u32 s30, s30, 16384
    v_lshlrev_b32 v4, 4, v1
    v_add_u32 v4, s30, v4
    s_mul_i32 s34, s34, {HEADW}
    s_mul_i32 s35, s35, 24576
    s_add_u32 s34, s34, s35
    """)
    a("v_mov_b32 v5, v2")
    b_setup(a, C["w1"], 16, 20)
    wait_flags(a, 5, "s33", False, PV_RD)
    stamp(a, 5)
    for q in range(4):
        a(f"s_add_u32 m0, s34, {q*4096}")
        for i in range(4):
            a(f"buffer_load_dwordx4 v4, s[8:11], 0 offen offset:{i*1024}{NBF[OPT['nbf']]} lds")
        if q < 3: a("v_add_u32 v4, 0x1000, v4")
    a("s_mov_b32 s98, s24\ns_mov_b32 s99, s25")
    c = C["wo"]
    prod_setup(a, c)
    a("s_mov_b32 s24, s98\ns_mov_b32 s25, s99")
    a("s_waitcnt vmcnt(0)")
    stamp(a, 6)
    a("s_barrier")
    if OPT["xst"]:
        a(f"s_add_u32 m0, s34, {XST}")
        a("s_lshl_b32 s30, s25, 7")
        for i in range(4):
            a(f"buffer_load_dwordx4 v{28+i}, s[48:51], s30 offen offset:{i*1024} lds")
    pre_B(a, c)
    if OPT["xt"]:
        xtouch_setup(a, P_WO, 2 * MB, 16, 2)
        a("""
        s_lshr_b32 s30, s2, 3
        s_lshl_b32 s30, s30, 16
        buffer_load_dword v253, v2, s[16:19], s30 offen
        """)
    elif OPT["pf"]: touch(a, P_WO, 2 * MB, 16)
    a("s_branch L_attn")
    a("L_prod2:")
    c = C["wo"]
    prod_setup(a, c)
    a(f"s_add_u32 s29, s29, {c.S*64*c.ldb}")
    a(f"s_and_b32 s29, s29, {16*64*c.ldb - 1}")
    gate_setup(a, 1, True)
    gemm_producer(a, c, True, "wide")
    c = C["w1"]; c1 = c
    prod_setup(a, c)
    if OPT["wobar"]: a("s_barrier")
    pre_B(a, c)
    gather_cs_setup(a, c)
    gather_rs_setup(a, c)
    if C["w2"].early: w2_early_setup(a, C["w2"])
    gate_setup(a, 2, False)
    def w2hook(k):
        def f():
            sk = a.label("skip_pf")
            a(f"""
            s_lshr_b32 s30, s2, 3
            s_and_b32 s30, s30, 7
            s_cmp_lg_u32 s30, {k}
            s_cbranch_scc1 {sk}
            """)
            touch(a, P_W2, 7 * MB, 44)
            a(f"{sk}:")
            return 0
        return f
    side = {}
    if OPT["pf"] == 2:
        for k in range(8): side.setdefault(3 + k, []).append(w2hook(k))
    if OPT["pf"] == 3:
        spf_setup()
        for k in range(0, 13): side.setdefault(k, []).append(sprefetch(5))
    def rs_add(p0, p1):
        def f():
            for p in range(max(p0, 1), p1): a(f"v_add_f32 v{G_RS}, v{G_RS}, v{G_RS+p}")
        return f
    side.setdefault(8, []).append(hi(rs_add(0, 16)))
    side.setdefault(13, []).append(hi(rs_add(16, 26)))
    side[14] = [lambda: gather_cs(a, 0, 16)]
    side[15] = [hi(rs_add(26, 32)), lambda: a("s_waitcnt vmcnt(0)"), hi(lambda: gather_finish_cs(a, c1)), hi(lambda: gather_finish_rs(a, c1))]
    if C["w2"].early:
        c2 = C["w2"]
        side[14].append(lambda: pre_B(a, c2, 0, 1))
        side[15] = [lambda: pre_B(a, c2, 1, 4), hi(rs_add(26, 32)), lambda: a("s_waitcnt vmcnt(16)"), hi(lambda: gather_finish_cs(a, c1)), hi(lambda: gather_finish_rs(a, c1))]
    gemm_producer(a, c, True, "narrow", side, lambda st: gather_rs(a, c1, 2 * st, 2 * st + 2))
    c = C["w2"]
    c.rounds = [(16, OPT['prepoll'], 14), (OPT['prepoll'], 24, 14), (24, 40, 7), (40, 56, 7)]; c.prepoll_at = OPT['prepoll']; c.gate_all_at = 24; c.seamB = 3
    if c.sk:
        c.rounds = [(8, 10, 14), (10, 12, 14), (12, 20, 7), (20, 28, 7)]; c.prepoll_at = 10; c.gate_all_at = 12
    prod_setup(a, c)
    if not c.early: pre_B(a, c)
    side = {}
    c.round_hook = {}
    if OPT["xt"] and not c.sk:
        xtouch_setup(a, P_W2, 7 * MB, 44, 23)
        w2_xtouch(a, 0); w2_xtouch(a, 3)
        side = {4: [lambda: w2_xtouch(a, 1)]}
        c.round_hook = {24: lambda: w2_xtouch(a, 2)}
    a("s_barrier")
    a("s_barrier")
    gate_setup(a, 0, False)
    gemm_producer(a, c, True, "narrow", side, None, 8 if c.sk else 16)
    stamp_flush(a)
    a("L_end:")
    a("s_endpgm")
    a("L_code_end:")
    body, nins = hazard.fix(a.lines)
    hdr = []
    if header_src:
        for ln in open(header_src):
            if ln.startswith(";") and "@launch" not in ln:
                hdr.append(ln.rstrip("\n"))
            elif not ln.startswith(";"):
                break
    hdr.append(f"; @launch grid=(256,1,1) block=(512,1,1) lds=163840")
    hdr.append('.amdgcn_target "amdgcn-amd-amdhsa--gfx950"')
    hdr.append(".text")
    return "\n".join(hdr) + "\n" + "\n".join(body) + "\n" + kernel_desc(KNAME, 256, 102), nins

if __name__ == "__main__":
    if "--diag" in sys.argv:
        DIAG = True; sys.argv.remove("--diag")
    for arg in list(sys.argv[1:]):
        if "=" in arg:
            k_, v_ = arg.split("=", 1)
            if "." in k_:
                kk, f_ = k_.split(".")
                for kind_ in (CFG.keys() if kk == "all" else [kk]): CFG[kind_][f_] = int(v_)
            else: OPT[k_] = int(v_)
            sys.argv.remove(arg)
    out = sys.argv[1] if len(sys.argv) > 1 else "p1.s"
    txt, nins = build(header_src="sequential_preLN__sliding_block__dense_activation_silu__prompt.s.ref")
    open(out, "w").write(txt)
    print("wrote", out, len(txt), "bytes; nop states inserted:", nins)
```

```python
import sys, struct
from asmlib import *
import hazard

MB = 1 << 20
K_OFF = 8 * MB
V_OFF = 12 * MB
O_OFF = 16 * MB
H_OFF = 20 * MB
H1_OFF = 24 * MB
FL_OFF = 40 * MB
RS1_OFF = 41 * MB
CSG_OFF = 42 * MB
XP_OFF = 44 * MB
ST2_OFF = 43 * MB
DIAG_OFF = 64 * MB
LOG2E = 1.4426950408889634
KNAME = "sequential_preLN__sliding_block__dense_activation_silu__prompt_kernel"
P_X, P_WQKV, P_WO, P_W1, P_W2, P_OUT, P_DBG, P_WS = 80, 82, 84, 88, 90, 92, 94, 4
TAG = 72
FLS = 76
ST = 155648
ST_REC, ST_MEAN, ST_RSTD, ST_CS, ST_CSP = ST, ST + 2048, ST + 2560, ST + 3072, ST + 4096
HEADW = 57344
XB0 = 122880
XB1 = 81920
XCH = 147456
XST = 147456
ST_TAG = ST + 4096
HRES = 232
DEF = 200
VS = 254
DIAG = False
OPT = dict(osf=1, t0=0, spin=0, eb2=1, sigA2=2, peel=8, cspl=1, xst=1, reslate=0, sent=0, pfg=1, help=4, snake=1, rot0=4, early0=0, dil=1, sk=1, skfull=0, pf=3, xt=1, prio=0, inv=0, nodma=0, steps=0, kvlocal=0, cpf=1, nbf=1, sigA=3, sigB=3, qnt=0, bar2=0, defer=0, dper=2, dstart=0, prepoll=21, wobar=0)

def f32(x):
    return "0x%08x" % struct.unpack("<I", struct.pack("<f", x))[0]

def srd_off(a, d, ptr, off, nrec):
    a(f"s_add_u32 s{d}, s{ptr}, {off}")
    a(f"s_addc_u32 s{d+1}, s{ptr+1}, 0")
    a(f"s_mov_b32 s{d+2}, {nrec}")
    a(f"s_mov_b32 s{d+3}, 0x20000")

def hold(a, key):
    if not OPT.get(key): return
    l = a.label("hold")
    a(f"""
    {l}:
    s_memrealtime s[96:97]
    s_waitcnt lgkmcnt(0)
    s_sub_u32 s96, s96, s{TAG}
    s_cmp_lt_u32 s96, {OPT[key]}
    s_cbranch_scc1 {l}
    """)

def stamp(a, idx):
    if not DIAG: return
    a("s_memrealtime s[96:97]")
    a("s_waitcnt lgkmcnt(0)")
    a(f"v_writelane_b32 v{VS}, s96, {idx}")

def stamp_flush(a):
    if not DIAG: return
    srd_off(a, 16, P_WS, DIAG_OFF, 524288)
    a(f"""
    s_lshl_b32 s30, s2, 11
    s_lshl_b32 s31, s3, 8
    s_add_u32 s30, s30, s31
    v_lshlrev_b32 v{VS+1}, 2, v1
    buffer_store_dword v{VS}, v{VS+1}, s[16:19], s30 offen
    """)

def pbar(a):
    a("s_barrier")
    if DIAG and OPT["steps"]:
        a("s_memtime s[96:97]" if OPT["steps"] == 2 else "s_memrealtime s[96:97]")
        a("""
        s_waitcnt lgkmcnt(0)
        s_mov_b32 m0, s99
        s_nop 0
        v_writelane_b32 v252, s96, m0
        s_add_u32 s99, s99, 1
        """)

def pbar_flush(a, ph):
    if not (DIAG and OPT["steps"]): return
    srd_off(a, 16, P_WS, DIAG_OFF + 524288 * (1 + ph), 524288)
    a(f"""
    s_lshl_b32 s30, s2, 11
    s_lshl_b32 s31, s3, 8
    s_add_u32 s30, s30, s31
    v_lshlrev_b32 v2, 2, v1
    buffer_store_dword v252, v2, s[16:19], s30 offen
    """)

def wgmap(a, RX, CX):
    CT = 16 // CX; RB = 16 // RX
    lg = lambda x: x.bit_length() - 1
    a(f"""
    s_and_b32 s30, s2, 7
    s_lshr_b32 s31, s2, 3
    s_lshr_b32 s24, s30, {lg(CX)}
    s_lshl_b32 s24, s24, {lg(RB)}
    s_and_b32 s25, s30, {CX-1}
    s_lshl_b32 s25, s25, {lg(CT)}
    s_lshr_b32 s30, s31, {lg(CT)}
    s_add_u32 s24, s24, s30
    s_and_b32 s30, s31, {CT-1}
    s_add_u32 s25, s25, s30
    """)

def st2(a, text):
    if not OPT["kvlocal"]:
        a(text + " sc0 sc1"); return
    l1 = a.label("skip_s1"); l2 = a.label("skip_s2")
    a(f"""
    s_cmp_lg_u32 s55, 0
    s_cbranch_scc1 {l1}
    {text} sc0 sc1
    s_branch {l2}
    {l1}:
    {text}
    {l2}:
    """)

def signal(a, seam, slot_shift, t, local=False, cnt=0, plain0=False, rbj=('s24', 's25')):
    kv = seam == 0 and not plain0
    a(f"""
    s_lshl_b32 s40, {rbj[0]}, {11 if kv else 10}
    s_lshl_b32 s41, {rbj[1]}, {7 if kv else slot_shift+3}
    s_add_u32 s40, s40, s41
    s_lshl_b32 s41, s3, 3
    s_add_u32 s40, s40, s41
    s_add_u32 s40, s40, {65536 if kv else seam*16384}
    v_mov_b32 v{t}, s{TAG}
    v_mov_b32 v{t+1}, s{TAG+1}
    v_mov_b32 v{t+2}, 0
    s_waitcnt vmcnt({cnt})
    s_mov_b64 exec, 1
    """)
    txt = f"buffer_store_dwordx2 v[{t}:{t+1}], v{t+2}, s[{FLS}:{FLS+3}], s40 offen"
    if local: st2(a, txt)
    else: a(txt + " sc0 sc1")
    a("s_mov_b64 exec, -1")

def wait_flags(a, voff, soff, wide, t):
    lp = a.label("poll"); dn = a.label("polld")
    a(f"s_mov_b32 s39, 0x100000")
    if OPT["inv"] == 1: a("buffer_inv sc1")
    a(f"{lp}:")
    if wide:
        a(f"buffer_load_dwordx4 v[{t}:{t+3}], v{voff}, s[{FLS}:{FLS+3}], {soff} offen sc0 sc1")
    else:
        a(f"buffer_load_dwordx2 v[{t}:{t+1}], v{voff}, s[{FLS}:{FLS+3}], {soff} offen sc0 sc1")
    a("s_waitcnt vmcnt(0)")
    a(f"v_cmp_eq_u64 vcc, s[{TAG}:{TAG+1}], v[{t}:{t+1}]")
    if wide:
        a(f"v_cmp_eq_u64 s[36:37], s[{TAG}:{TAG+1}], v[{t+2}:{t+3}]")
        a("s_nop 3")
        a("s_and_b64 vcc, vcc, s[36:37]")
    else:
        a("s_nop 3")
    a(f"""
    s_cmp_eq_u64 vcc, -1
    s_cbranch_scc1 {dn}
    s_sleep 1
    s_sub_u32 s39, s39, 1
    s_cmp_lg_u32 s39, 0
    s_cbranch_scc1 {lp}
    {dn}:
    """)
    if OPT["inv"] == 2: a("buffer_inv sc1")

class G: pass
NBF = ['', ' sc1', ' sc0']

def mk(kind, **kw):
    c = G(); c.kind = kind; c.__dict__.update(kw)
    c.sk = 0
    c.pvb, c.sb, c.s35 = 8, 12, "s35"
    c.early = 0
    if kind == "wo" and OPT["xst"]: c.S = min(c.S, 4)
    if kind == "w2" and OPT["sk"]:
        c.sk = 1; c.BN = 128; c.NT = 4; c.S = 4; c.BBASE = 65536; c.full = OPT["skfull"]; c.rpg = 1; c.pstride = 512
        if OPT["eb2"]:
            c.early = 1; c.pvb, c.sb, c.s35 = 16, 52, "s41"; c.BBASE = 77824
    c.n = c.K // 64 // (2 if c.sk else 1)
    c.BB = c.BN * 128
    c.NBW = c.BB // 4096
    c.gmul = 4 if c.korder == "F" else 8
    c.rdrows = 16 if c.korder == "F" else 4
    c.RS = 128 if c.layout == "panel" else 448
    return c

CFG = dict(
    qkv=dict(K=1024, BN=192, NT=6, S=3, korder="N", layout="panel", wp=P_WQKV, ldb=6144, bcol=128, pstride=2048,
             a_off=None, normal_tiles=(4, 5), RX=2, CX=4, rpg=1, ABASE=0, BBASE=49152, ln=True, sid=0, lt=0, full=0, rot=0),
    wo=dict(K=1024, BN=64, NT=2, S=5, korder="F", layout="panel", wp=P_WO, ldb=2048, bcol=128, pstride=0,
            a_off=O_OFF, normal_tiles=(), RX=2, CX=4, rpg=2, ABASE=0, BBASE=114688, ln=False, sid=16, lt=0, full=1, rot=2),
    w1=dict(K=1024, BN=224, NT=7, S=3, korder="F", layout="w1", wp=P_W1, ldb=7168, bcol=448, pstride=0,
            a_off=H_OFF, normal_tiles=(), RX=2, CX=4, rpg=1, ABASE=0, BBASE=49152, ln=True, sid=24, lt=0, full=0, rot=2),
    w2=dict(K=3584, BN=64, NT=2, S=6, korder="F", layout="panel", wp=P_W2, ldb=2048, bcol=128, pstride=0,
            a_off=H1_OFF, normal_tiles=(), RX=2, CX=4, rpg=2, ABASE=0, BBASE=98304, ln=False, sid=32, lt=0, full=1, rot=0),
)

def gemm_consumer(a, c):
    kind = c.kind; n = c.n; S = c.S; NT = c.NT; RS = c.RS
    vA0, vA10, vB00, vB01, vB02, vA, vA1, vB0, vB1, vB2 = 2, 3, 4, 5, 6, 7, 8, 9, 10, 11
    vG = 12; vCH = 13
    t0, t1 = 14, 15
    ACC = 16
    FX = ACC + 16 * NT
    FSZ = 16 + 4 * NT
    if c.full: FSZ *= 2
    FY = FX + FSZ
    VTOP = FY + FSZ
    acc = lambda mt, nt: ACC + (nt * 4 + mt) * 4
    wgmap(a, c.RX, c.CX)
    T = FX
    if kind == "qkv": row_stats_issue(a, FY)
    a(f"""
    s_lshr_b32 s34, s3, 1
    s_and_b32 s35, s3, 1
    v_lshlrev_b32 v{vCH}, 4, v1
    s_lshl_b32 s30, s34, 12
    v_add_u32 v{vCH}, s30, v{vCH}
    v_lshrrev_b32 v{vG}, 4, v1
    v_bfe_u32 v{T}, v1, 2, 2
    v_and_b32 v{T+1}, 3, v1
    """)
    if c.a_off is None:
        a(f"""
        v_and_b32 v{t0}, 15, v1
        v_lshrrev_b32 v{t1}, 1, v{t0}
        v_xor_b32 v{t1}, v{t1}, v{vG}
        v_lshlrev_b32 v{t1}, 4, v{t1}
        v_lshl_add_u32 v{vA0}, v{t0}, 7, v{t1}
        s_lshl_b32 s30, s34, 13
        v_add_u32 v{vA0}, s30, v{vA0}
        v_xor_b32 v{vA10}, 64, v{vA0}
        """)
        aread = lambda mt, kg: ((vA, vA1)[kg], mt * 2048)
    else:
        a(f"v_mov_b32 v{vA0}, v{vCH}")
        aread = lambda mt, kg: (vA, kg * 8192 + mt * 1024)
    if c.layout == "panel":
        a(f"""
        v_mul_u32_u24 v{t0}, {c.gmul}, v{vG}
        v_add_u32 v{t0}, v{t0}, v{T}
        v_lshlrev_b32 v{t0}, 7, v{t0}
        v_lshl_add_u32 v{t0}, v{T+1}, 3, v{t0}
        v_lshrrev_b32 v{t1}, 1, v{T}
        v_and_b32 v{T+2}, 1, v{vG}
        v_lshl_or_b32 v{t1}, v{T+2}, 1, v{t1}
        s_lshl_b32 s30, s35, 1
        v_xor_b32 v{t1}, s30, v{t1}
        v_lshl_add_u32 v{vB00}, v{t1}, 5, v{t0}
        v_xor_b32 v{t1}, 1, v{t1}
        v_lshl_add_u32 v{vB01}, v{t1}, 5, v{t0}
        """)
        def bread(nt, kg, rd):
            return (vB0 if nt % 2 == 0 else vB1), (nt // 2) * 8192 + kg * 32 * RS + rd * c.rdrows * RS
    else:
        a(f"""
        v_mul_u32_u24 v{t0}, {c.gmul}, v{vG}
        v_add_u32 v{t0}, v{t0}, v{T}
        v_mul_u32_u24 v{t0}, {RS}, v{t0}
        v_lshl_add_u32 v{t0}, v{T+1}, 3, v{t0}
        v_and_b32 v{t1}, 1, v{vG}
        v_lshlrev_b32 v{T+2}, 5, v{t1}
        s_lshl_b32 s30, s35, 8
        v_add_u32 v{T+3}, s30, v{t0}
        v_add_u32 v{vB00}, v{T+3}, v{T+2}
        v_sub_u32 v{vB01}, v{T+3}, v{T+2}
        s_add_u32 s30, s35, 6
        v_xor_b32 v{t1}, s30, v{t1}
        v_lshl_add_u32 v{vB02}, v{t1}, 5, v{t0}
        """)
        def bread(nt, kg, rd):
            o = kg * 32 * RS + rd * c.rdrows * RS
            if nt == 6: return vB2, o
            return (vB0 if nt % 2 == 0 else vB1), o + nt * 32
    RES = VTOP
    if kind == "wo":
        srd_off(a, 20, P_X, 0, 4 * MB)
        a(f"""
        v_and_b32 v{t0}, 15, v1
        v_lshlrev_b32 v{t0}, 11, v{t0}
        v_lshl_add_u32 v{t0}, v{vG}, 3, v{t0}
        s_lshl_b32 s30, s24, 18
        s_lshl_b32 s31, s34, 17
        s_add_u32 s30, s30, s31
        s_lshl_b32 s31, s25, 7
        s_add_u32 s30, s30, s31
        s_lshl_b32 s31, s35, 6
        s_add_u32 s30, s30, s31
        """)
        def res_loads():
            for mt in range(4):
                for nt in range(2):
                    r = RES + mt * 4 + nt * 2
                    a(f"buffer_load_dwordx2 v[{r}:{r+1}], v{t0}, s[20:23], s30 offen offset:{nt*32}")
                a("s_add_u32 s30, s30, 32768")
        if not OPT["reslate"] and not OPT["xst"]: res_loads()
    if kind == "wo" and OPT["xst"]:
        a(f"""
        v_and_b32 v{t0}, 15, v1
        v_lshrrev_b32 v{t1}, 1, v{t0}
        v_lshrrev_b32 v{T}, 1, v{vG}
        s_lshl_b32 s30, s35, 2
        v_add_u32 v{T}, s30, v{T}
        v_xor_b32 v{t1}, v{t1}, v{T}
        v_lshlrev_b32 v{t1}, 4, v{t1}
        v_lshl_add_u32 v{t1}, v{t0}, 7, v{t1}
        v_and_b32 v{T}, 1, v{vG}
        v_lshl_add_u32 v{t1}, v{T}, 3, v{t1}
        s_lshl_b32 s30, s34, 13
        s_add_u32 s30, s30, {XST}
        v_add_u32 v{t1}, s30, v{t1}
        v_xor_b32 v{t0}, 32, v{t1}
        """)
        for mt in range(4):
            for nt in range(2):
                r = RES + mt * 4 + nt * 2
                a(f"ds_read_b64 v[{r}:{r+1}], v{t0 if nt else t1} offset:{mt*2048}")
    for i in range(16 * NT):
        a(f"v_mov_b32 v{ACC+i}, 0")
    abases = [(vA, vA0)] + ([(vA1, vA10)] if c.a_off is None else [])
    bbases = [(vB0, vB00), (vB1, vB01)] + ([(vB2, vB02)] if c.layout != "panel" else [])
    a(f"s_mov_b32 s27, {c.ABASE}")
    a(f"s_mov_b32 s32, {c.BBASE}")
    setb = [f"v_add_u32 v{x}, s27, v{y}" for x, y in abases] + [f"v_add_u32 v{x}, s32, v{y}" for x, y in bbases]
    for x in setb: a(x)
    a(f"s_mov_b32 s26, {n - 1 if (c.ln and OPT['peel']) else n}")
    def reads(F, kg):
        r = []
        for nt in range(NT):
            for rd in range(2):
                b, o = bread(nt, kg, rd)
                d = F + 16 + nt * 4 + rd * 2
                r.append(f"ds_read_b64_tr_b16 v[{d}:{d+1}], v{b} offset:{o}")
            if nt == 0:
                for mt in range(4):
                    d = F + mt * 4
                    b, o = aread(mt, kg)
                    r.append(f"ds_read_b128 v[{d}:{d+3}], v{b} offset:{o}")
        return r
    def mfmas(F):
        m = []
        for nt in range(NT):
            for mt in (range(4) if (nt % 2 == 0 or not OPT["snake"]) else range(3, -1, -1)):
                A = F + mt * 4; B = F + 16 + nt * 4; D = acc(mt, nt)
                if nt in c.normal_tiles:
                    m.append(f"v_mfma_f32_16x16x32_bf16 v[{D}:{D+3}], v[{A}:{A+3}], v[{B}:{B+3}], v[{D}:{D+3}]")
                else:
                    m.append(f"v_mfma_f32_16x16x32_bf16 v[{D}:{D+3}], v[{B}:{B+3}], v[{A}:{A+3}], v[{D}:{D+3}]")
        return m
    loop = a.label("c_loop")
    if kind == "qkv": row_stats_finish(a, FY, FX)
    stamp(a, c.sid)
    a("s_barrier")
    hold(a, "h_" + kind)
    stamp(a, c.sid + 1)
    adv = [f"s_add_u32 s27, s27, 16384", f"s_add_u32 s32, s32, {c.BB}", f"s_cmp_eq_u32 s27, {c.ABASE + S*16384}",
           f"s_cselect_b32 s27, {c.ABASE}, s27", f"s_cselect_b32 s32, {c.BBASE}, s32"] + setb
    def epi_setup():
        b = Asm(); r = []
        if kind == "qkv":
            REC, CSQ, MV, RV, CSV = T, T + 16, VTOP, VTOP + 16, VTOP + 32
            b(f"""
            v_and_b32 v{t0}, 15, v1
            v_lshlrev_b32 v{vA}, 4, v{t0}
            s_lshl_b32 s30, s34, 10
            s_add_u32 s30, s30, {ST_REC}
            v_add_u32 v{vA}, s30, v{vA}
            v_lshlrev_b32 v{vA1}, 4, v{vG}
            s_lshl_b32 s30, s35, 7
            s_add_u32 s30, s30, {ST_CS}
            v_add_u32 v{vB0}, s30, v{vA1}
            v_lshlrev_b32 v{vB1}, 2, v{t0}
            v_add_u32 v{vB1}, s30, v{vB1}
            s_lshl_b32 s30, s34, 8
            s_add_u32 s30, s30, {ST_MEAN}
            v_add_u32 v{vA1}, s30, v{vA1}
            """)
            srd_off(b, 16, P_WS, K_OFF, 8 * MB)
            b(f"""
            s_lshl_b32 s30, s25, 1
            s_add_u32 s30, s30, s35
            s_lshl_b32 s30, s30, 17
            s_lshl_b32 s31, s24, 13
            s_add_u32 s30, s30, s31
            s_add_u32 s31, s30, {4*MB}
            s_mul_i32 s33, s35, {HEADW}
            v_add_u32 v{vB2}, s33, v{vCH}
            """)
            for mt in range(4):
                r.append(f"ds_read_b128 v[{REC+4*mt}:{REC+4*mt+3}], v{vA} offset:{mt*256}")
            for nt in range(4):
                r.append(f"ds_read_b128 v[{CSQ+4*nt}:{CSQ+4*nt+3}], v{vB0} offset:{(nt//2)*256 + (nt%2)*64}")
            for mt in range(4):
                r.append(f"ds_read_b128 v[{MV+4*mt}:{MV+4*mt+3}], v{vA1} offset:{mt*64}")
                r.append(f"ds_read_b128 v[{RV+4*mt}:{RV+4*mt+3}], v{vA1} offset:{512 + mt*64}")
            for dt in range(2):
                r.append(f"ds_read_b32 v{CSV+dt}, v{vB1} offset:{512 + dt*64}")
        else:
            CSR = T; REC = T + 28
            srd_off(b, 16, P_WS, H1_OFF, 14 * MB)
            b(f"""
            v_and_b32 v{t0}, 15, v1
            v_lshlrev_b32 v{vA}, 4, v{t0}
            s_lshl_b32 s30, s34, 10
            s_add_u32 s30, s30, {ST_REC}
            v_add_u32 v{vA}, s30, v{vA}
            v_lshlrev_b32 v{t1}, 4, v{vG}
            s_lshl_b32 s30, s35, 9
            s_add_u32 s30, s30, {ST_CS}
            v_add_u32 v{vB0}, s30, v{t1}
            s_lshl_b32 s30, s35, 6
            s_add_u32 s30, s30, {ST_CS}
            v_add_u32 v{vB1}, s30, v{t1}
            s_mul_i32 s30, s24, {112*8192}
            s_mul_i32 s31, s25, {7*8192}
            s_add_u32 s30, s30, s31
            s_add_u32 s36, s30, {3*8192}
            s_lshl_b32 s31, s35, 15
            s_add_u32 s30, s30, s31
            s_add_u32 s31, s30, 8192
            s_add_u32 s37, s30, 16384
            s_lshl_b32 s33, s35, 3
            s_add_u32 s33, s33, {XCH}
            v_add_u32 v{vB2}, s33, v{vCH}
            """)
            for mt in range(4):
                r.append(f"ds_read_b128 v[{REC+4*mt}:{REC+4*mt+3}], v{vA} offset:{mt*256}")
            r.append(f"ds_read_b128 v[{CSR+24}:{CSR+27}], v{vB1} offset:{6*64}")
            for nt in range(6):
                r.append(f"ds_read_b128 v[{CSR+4*nt}:{CSR+4*nt+3}], v{vB0} offset:{nt*64}")
        return [x.strip() for x in b.lines], r
    peel = c.ln and OPT["peel"]
    NI = n // 2 if c.full else n
    def w2hook_c():
        if kind == "wo" and OPT["reslate"]:
            back = a.label("woback"); late = a.label("wolate")
            a(f"s_cmp_eq_u32 s26, {OPT['reslate']}")
            a(f"s_cbranch_scc1 {late}")
            a(f"{back}:")
            def ool():
                a(f"{late}:")
                res_loads()
                a(f"s_branch {back}")
            c.ool = ool
        if kind == "w2":
            back = a.label("w2back"); early = a.label("w2early")
            a(f"s_cmp_ge_u32 s26, {NI - OPT['sigB']}")
            a(f"s_cbranch_scc1 {early}")
            a(f"{back}:")
            def ool():
                a(f"{early}:")
                nst = OPT["dper"]
                its = 8 // nst if OPT["defer"] else 0
                for it in range(its):
                    nx = a.label("skip_e")
                    a(f"s_cmp_lg_u32 s26, {NI - it - OPT['dstart']}")
                    a(f"s_cbranch_scc1 {nx}")
                    for k in range(it * nst, it * nst + nst):
                        r = DEF + k * 4
                        a(f"buffer_store_dwordx4 v[{r}:{r+3}], v{vCH}, s[16:19], {'s44' if k < 4 else 's45'} offen offset:{(k%4)*1024} sc0 sc1")
                    a(f"s_branch {back}")
                    a(f"{nx}:")
                a(f"s_cmp_lg_u32 s26, {NI - OPT['sigB']}")
                a(f"s_cbranch_scc1 {back}")
                signal(a, 3, 2, VTOP, rbj=("s42", "s43"))
                a(f"s_branch {back}")
            c.ool = ool

    if c.full:
        H = FSZ // 2
        rd2 = lambda F: reads(F, 0) + reads(F + H, 1)
        mf2 = lambda F: mfmas(F) + mfmas(F + H)
        a(f"s_mov_b32 s26, {n//2}")
        for r in rd2(FX): a(r)
        for x in adv: a(x)
        a(f"{loop}:")
        w2hook_c()
        a("s_waitcnt lgkmcnt(0)")
        a("s_barrier")
        for x in interleave(mf2(FX), rd2(FY) + adv, 0, 1, c.rpg): a(x)
        a("s_waitcnt lgkmcnt(0)")
        a("s_barrier")
        for x in interleave(mf2(FY), rd2(FX) + adv + ["s_sub_u32 s26, s26, 1", "s_cmp_lg_u32 s26, 0"], 0, 1, c.rpg): a(x)
        a(f"s_cbranch_scc1 {loop}")
        a("s_waitcnt lgkmcnt(0)")
    else:
        for r in reads(FX, 0): a(r)
        a(f"{loop}:")
        w2hook_c()
        a("s_waitcnt lgkmcnt(0)")
        for x in interleave(mfmas(FX), reads(FY, 1) + adv, 0, 1, c.rpg): a(x)
        a("s_waitcnt lgkmcnt(0)")
        a("s_barrier")
        for x in interleave(mfmas(FY), reads(FX, 0) + ["s_sub_u32 s26, s26, 1", "s_cmp_lg_u32 s26, 0"], 0, 1, c.rpg): a(x)
        a(f"s_cbranch_scc1 {loop}")
        a("s_waitcnt lgkmcnt(0)")
        if peel:
            for x in interleave(mfmas(FX), reads(FY, 1), 0, 1, c.rpg): a(x)
            a("s_waitcnt lgkmcnt(0)")
            alu, rds = epi_setup()
            m = mfmas(FY)
            if kind == "qkv": m = m[8:16] + m[16:] + m[:8]
            kb = len(m) - OPT["peel"]
            for x in interleave(m[:kb], alu, 0, 1, 2): a(x)
            a("s_barrier")
            for x in interleave(m[kb:], rds, 0, 1, 2): a(x)
    stamp(a, c.sid + 2)
    def pk4(t, p0, p1):
        a(f"v_cvt_pk_bf16_f32 v{t}, v{p0}, v{p0+1}")
        a(f"v_cvt_pk_bf16_f32 v{t+1}, v{p0+2}, v{p0+3}")
        a(f"v_cvt_pk_bf16_f32 v{t+2}, v{p1}, v{p1+1}")
        a(f"v_cvt_pk_bf16_f32 v{t+3}, v{p1+2}, v{p1+3}")
    if kind == "qkv":
        REC, CSQ, MV, RV, CSV = T, T + 16, VTOP, VTOP + 16, VTOP + 32
        if not peel:
            for x in sum(epi_setup(), []): a(x)
        a("s_waitcnt lgkmcnt(10)")
        def fold_sw(mt, nt):
            p = acc(mt, nt); m = REC + 4 * mt; cs = CSQ + 4 * nt
            for h in range(2):
                a(f"v_pk_fma_f32 v[{p+2*h}:{p+2*h+1}], v[{m}:{m+1}], v[{cs+2*h}:{cs+2*h+1}], v[{p+2*h}:{p+2*h+1}] op_sel_hi:[0,1,1] neg_lo:[1,0,0] neg_hi:[1,0,0]")
            for h in range(2):
                a(f"v_pk_mul_f32 v[{p+2*h}:{p+2*h+1}], v[{m}:{m+1}], v[{p+2*h}:{p+2*h+1}] op_sel:[1,0] op_sel_hi:[1,1]")
        for mt in range(4):
            fold_sw(mt, 2); fold_sw(mt, 3)
            t = acc(mt, 2); pk4(t, acc(mt, 2), acc(mt, 3))
            st2(a, f"buffer_store_dwordx4 v[{t}:{t+3}], v{vCH}, s[16:19], s30 offen offset:{mt*1024}")
            a(f"ds_write_b128 v{vB2}, v[{t}:{t+3}] offset:{16384 + mt*1024}")
        a("s_waitcnt lgkmcnt(4)")
        for mp in range(2):
            for dt in range(2):
                for mt in (2 * mp, 2 * mp + 1):
                    p = acc(mt, 4 + dt)
                    sel = "op_sel_hi:[1,0,1]" if dt == 0 else "op_sel:[0,1,0] op_sel_hi:[1,1,1]"
                    for h in range(2):
                        a(f"v_pk_fma_f32 v[{p+2*h}:{p+2*h+1}], v[{MV+4*mt+2*h}:{MV+4*mt+2*h+1}], v[{CSV}:{CSV+1}], v[{p+2*h}:{p+2*h+1}] {sel} neg_lo:[1,0,0] neg_hi:[1,0,0]")
                    for h in range(2):
                        a(f"v_pk_mul_f32 v[{p+2*h}:{p+2*h+1}], v[{RV+4*mt+2*h}:{RV+4*mt+2*h+1}], v[{p+2*h}:{p+2*h+1}]")
                t = acc(2 * mp, 4 + dt); pk4(t, acc(2 * mp, 4 + dt), acc(2 * mp + 1, 4 + dt))
                st2(a, f"buffer_store_dwordx4 v[{t}:{t+3}], v{vCH}, s[16:19], s31 offen offset:{(2*mp+dt)*1024}")
                a(f"ds_write_b128 v{vB2}, v[{t}:{t+3}] offset:{24576 + 16384 + (2*mp+dt)*1024}")
        for mt in range(4):
            fold_sw(mt, 0); fold_sw(mt, 1)
            t = acc(mt, 0); pk4(t, acc(mt, 0), acc(mt, 1))
            a(f"ds_write_b128 v{vB2}, v[{t}:{t+3}] offset:{49152 + mt*1024}")
        stamp(a, c.sid + 3)
        signal(a, 0, 2, T, True)
        stamp(a, c.sid + 4)
        a("s_waitcnt lgkmcnt(0)")
    elif kind == "wo":
        srd_off(a, 16, P_WS, H_OFF, 4 * MB)
        a(f"""
        s_lshl_b32 s30, s24, 18
        s_lshl_b32 s31, s25, 14
        s_add_u32 s30, s30, s31
        s_lshl_b32 s31, s35, 13
        s_add_u32 s30, s30, s31
        s_mov_b32 s36, 0xffff0000
        s_waitcnt vmcnt(0) lgkmcnt(0)
        """)
        for mt in range(4):
            for nt in range(2):
                r = RES + mt * 4 + nt * 2; p = acc(mt, nt)
                for d in range(2):
                    a(f"v_lshlrev_b32 v{T}, 16, v{r+d}")
                    a(f"v_and_b32 v{T+1}, s36, v{r+d}")
                    a(f"v_pk_add_f32 v[{p+2*d}:{p+2*d+1}], v[{p+2*d}:{p+2*d+1}], v[{T}:{T+1}]")
            t = HRES + mt * 4
            pk4(t, acc(mt, 0), acc(mt, 1))
            a(f"buffer_store_dwordx4 v[{t}:{t+3}], v{vCH}, s[16:19], s30 offen offset:{mt*1024} sc0 sc1")
        SS = T + 4
        for mt in range(4):
            p0 = acc(mt, 0); p1 = acc(mt, 1)
            s_, q_ = SS + 2 * mt, SS + 2 * mt + 1
            a(f"v_pk_add_f32 v[{T}:{T+1}], v[{p0}:{p0+1}], v[{p0+2}:{p0+3}]")
            a(f"v_pk_mul_f32 v[{T+2}:{T+3}], v[{p0}:{p0+1}], v[{p0}:{p0+1}]")
            a(f"v_pk_add_f32 v[{T}:{T+1}], v[{T}:{T+1}], v[{p1}:{p1+1}]")
            a(f"v_pk_fma_f32 v[{T+2}:{T+3}], v[{p0+2}:{p0+3}], v[{p0+2}:{p0+3}], v[{T+2}:{T+3}]")
            a(f"v_pk_add_f32 v[{T}:{T+1}], v[{T}:{T+1}], v[{p1+2}:{p1+3}]")
            a(f"v_pk_fma_f32 v[{T+2}:{T+3}], v[{p1}:{p1+1}], v[{p1}:{p1+1}], v[{T+2}:{T+3}]")
            a(f"v_pk_fma_f32 v[{T+2}:{T+3}], v[{p1+2}:{p1+3}], v[{p1+2}:{p1+3}], v[{T+2}:{T+3}]")
            a(f"v_add_f32 v{s_}, v{T}, v{T+1}")
            a(f"v_add_f32 v{q_}, v{T+2}, v{T+3}")
        for mt in range(4):
            s_, q_ = SS + 2 * mt, SS + 2 * mt + 1
            a(f"v_permlane32_swap_b32 v{s_}, v{q_}")
            a(f"v_add_f32 v{s_}, v{s_}, v{q_}")
        srd_off(a, 20, P_WS, ST2_OFF, 16 * 32768)
        a(f"""
        v_and_b32 v{t0}, 31, v1
        v_lshlrev_b32 v{t0}, 2, v{t0}
        v_lshrrev_b32 v{t1}, 5, v1
        v_lshl_add_u32 v{t0}, v{t1}, 9, v{t0}
        s_lshl_b32 s30, s24, 15
        s_lshl_b32 s31, s25, 11
        s_add_u32 s30, s30, s31
        s_lshl_b32 s31, s35, 10
        s_add_u32 s30, s30, s31
        s_lshl_b32 s31, s34, 8
        s_add_u32 s30, s30, s31
        """)
        for mp in range(2):
            x0 = SS + 4 * mp; x1 = SS + 4 * mp + 2
            a(f"v_permlane16_swap_b32 v{x0}, v{x1}")
            a(f"v_add_f32 v{x0}, v{x0}, v{x1}")
            a(f"buffer_store_dword v{x0}, v{t0}, s[20:23], s30 offen offset:{mp*128} sc0 sc1")
        stamp(a, c.sid + 3)
        if OPT["wobar"]: a("s_barrier")
        signal(a, 2, 2, T)
        stamp(a, c.sid + 4)
    elif kind == "w1":
        CSR = T; REC = T + 28; E = T + 44
        if not peel:
            for x in sum(epi_setup(), []): a(x)
        a("s_waitcnt lgkmcnt(0)")
        soffs = ["s30", "s31", "s37"]
        def silu(mt, nt, e):
            p = acc(mt, nt); m = REC + 4 * mt; cs = CSR + 4 * nt
            for h in range(2):
                a(f"v_pk_fma_f32 v[{p+2*h}:{p+2*h+1}], v[{m}:{m+1}], v[{cs+2*h}:{cs+2*h+1}], v[{p+2*h}:{p+2*h+1}] op_sel_hi:[0,1,1] neg_lo:[1,0,0] neg_hi:[1,0,0]")
            for h in range(2):
                a(f"v_pk_mul_f32 v[{e+2*h}:{e+2*h+1}], v[{m+2}:{m+3}], v[{p+2*h}:{p+2*h+1}] op_sel_hi:[0,1]")
            for r in range(4):
                a(f"v_exp_f32 v{e+r}, v{e+r}")
            for h in range(2):
                a(f"v_pk_fma_f32 v[{e+2*h}:{e+2*h+1}], v[{e+2*h}:{e+2*h+1}], v[{m+2}:{m+3}], v[{m+2}:{m+3}] op_sel:[0,1,1] op_sel_hi:[1,1,1]")
            for r in range(4):
                a(f"v_rcp_f32 v{e+r}, v{e+r}")
            for h in range(2):
                a(f"v_pk_mul_f32 v[{p+2*h}:{p+2*h+1}], v[{p+2*h}:{p+2*h+1}], v[{e+2*h}:{e+2*h+1}]")
        def pair(q, mt):
            silu(mt, 2 * q, E); silu(mt, 2 * q + 1, E + 4)
            p0 = acc(mt, 2 * q)
            pk4(p0, p0, acc(mt, 2 * q + 1))
            a(f"buffer_store_dwordx4 v[{p0}:{p0+3}], v{vCH}, s[16:19], {soffs[q]} offen offset:{mt*1024} sc0 sc1")
        for mt in range(4): pair(0, mt)
        stamp(a, 42)
        for mt in range(4):
            silu(mt, 6, E + (mt % 2) * 4)
            p = acc(mt, 6)
            a(f"v_cvt_pk_bf16_f32 v{p}, v{p}, v{p+1}")
            a(f"v_cvt_pk_bf16_f32 v{p+1}, v{p+2}, v{p+3}")
            a(f"ds_write_b64 v{vB2}, v[{p}:{p+1}] offset:{mt*1024}")
        a("s_waitcnt lgkmcnt(0)")
        stamp(a, 40)
        a("s_barrier")
        stamp(a, 41)
        a(f"""
        s_lshl_b32 s33, s35, 11
        v_add_u32 v{vB2}, s33, v{vCH}
        v_add_u32 v{vB1}, {XCH}, v{vB2}
        ds_read_b128 v[{acc(0,6)}:{acc(0,6)+3}], v{vB1}
        ds_read_b128 v[{acc(1,6)}:{acc(1,6)+3}], v{vB1} offset:1024
        """)
        pair(1, 0)
        a("s_waitcnt lgkmcnt(0)")
        a(f"buffer_store_dwordx4 v[{acc(0,6)}:{acc(0,6)+3}], v{vB2}, s[16:19], s36 offen sc0 sc1")
        a(f"buffer_store_dwordx4 v[{acc(1,6)}:{acc(1,6)+3}], v{vB2}, s[16:19], s36 offen offset:1024 sc0 sc1")
        for mt in range(1, 4): pair(1, mt)
        stamp(a, 43)
        k2 = OPT["sigA2"]
        for mt in range(k2): pair(2, mt)
        signal(a, 0, 2, acc(2, 6), False, 3 + k2, True)
        stamp(a, 45)
        if OPT["bar2"] == 0: a("s_barrier")
        stamp(a, 46)
        for mt in range(k2, 4): pair(2, mt)
        stamp(a, c.sid + 3)
        if OPT["bar2"] == 1: a("s_barrier")
        a("s_mov_b32 s42, s24\ns_mov_b32 s43, s25\ns_mov_b32 s44, s31\ns_mov_b32 s45, s37")
        stamp(a, c.sid + 4)
    elif kind == "w2":
        XR = T + 32
        if c.sk:
            srd_off(a, 20, P_WS, XP_OFF, 8 * MB)
            a(f"""
            s_lshl_b32 s30, s24, 19
            s_lshl_b32 s31, s3, 13
            s_add_u32 s30, s30, s31
            s_lshl_b32 s31, s25, 15
            s_add_u32 s33, s30, s31
            s_xor_b32 s31, s31, {4 << 15}
            s_add_u32 s37, s30, s31
            v_lshlrev_b32 v{vA}, 4, v1
            """)
            for mt in range(4):
                t = acc(mt, 2)
                pk4(t, acc(mt, 2), acc(mt, 3))
                if OPT["sent"]:
                    for i in range(4): a(f"v_min_u32 v{t+i}, -2, v{t+i}")
                a(f"buffer_store_dwordx4 v[{t}:{t+3}], v{vA}, s[20:23], s33 offen offset:{mt*1024} sc0 sc1")
            if not OPT["sent"]: signal(a, 6, 2, T)
            stamp(a, 47)
        srd_off(a, 16, P_OUT, 0, 4 * MB)
        a(f"""
        v_and_b32 v{t0}, 15, v1
        v_lshlrev_b32 v{t0}, 11, v{t0}
        v_and_b32 v{t1}, 1, v{vG}
        v_lshl_add_u32 v{t0}, v{t1}, 5, v{t0}
        v_lshrrev_b32 v{t1}, 1, v{vG}
        v_lshl_add_u32 v{t0}, v{t1}, 4, v{t0}
        s_lshl_b32 s30, s24, 18
        s_lshl_b32 s31, s34, 17
        s_add_u32 s30, s30, s31
        s_lshl_b32 s31, s25, 7
        s_add_u32 s30, s30, s31
        s_lshl_b32 s31, s35, 6
        s_add_u32 s30, s30, s31
        s_mov_b32 s36, 0xffff0000
        """)
        for mt in range(4):
            for nt in range(2):
                r = HRES + mt * 4 + nt * 2; p = acc(mt, nt)
                for d in range(2):
                    a(f"v_lshlrev_b32 v{T+16}, 16, v{r+d}")
                    a(f"v_and_b32 v{T+17}, s36, v{r+d}")
                    a(f"v_pk_add_f32 v[{p+2*d}:{p+2*d+1}], v[{p+2*d}:{p+2*d+1}], v[{T+16}:{T+17}]")
        if c.sk and OPT["sent"]:
            lp = a.label("xpoll"); dn = a.label("skip_xp")
            a("s_mov_b32 s39, 0x200000")
            a(f"{lp}:")
            for mt in range(4):
                a(f"buffer_load_dwordx4 v[{XR+4*mt}:{XR+4*mt+3}], v{vA}, s[20:23], s37 offen offset:{mt*1024} sc0 sc1")
            for mt in range(4):
                r = XR + 4 * mt
                a(f"s_waitcnt vmcnt({3-mt})")
                if mt == 0: a(f"v_max_u32 v{T+4}, v{r}, v{r+1}")
                else: a(f"v_max3_u32 v{T+4}, v{r}, v{r+1}, v{T+4}")
                a(f"v_max3_u32 v{T+4}, v{r+2}, v{r+3}, v{T+4}")
            a(f"""
            v_cmp_eq_u32 vcc, -1, v{T+4}
            s_nop 3
            s_cmp_eq_u64 vcc, 0
            s_cbranch_scc1 {dn}
            s_sub_u32 s39, s39, 1
            s_cbranch_scc0 {lp}
            {dn}:
            """)
            stamp(a, 48)
        elif c.sk:
            lp = a.label("xpoll"); dn = a.label("skip_xp")
            a(f"""
            s_xor_b32 s40, s40, {4 << 5}
            s_mov_b32 s39, 0x200000
            {lp}:
            buffer_load_dwordx2 v[{T+4}:{T+5}], v{T+2}, s[{FLS}:{FLS+3}], s40 offen sc0 sc1
            s_waitcnt vmcnt(0)
            v_cmp_eq_u64 vcc, s[{TAG}:{TAG+1}], v[{T+4}:{T+5}]
            s_nop 3
            s_cmp_eq_u64 vcc, -1
            s_cbranch_scc1 {dn}
            s_sub_u32 s39, s39, 1
            s_cbranch_scc0 {lp}
            {dn}:
            """)
            stamp(a, 48)
            for mt in range(4):
                a(f"buffer_load_dwordx4 v[{XR+4*mt}:{XR+4*mt+3}], v{vA}, s[20:23], s37 offen offset:{mt*1024} sc0 sc1")
        for mt in range(4):
            if c.sk:
                if not OPT["sent"]: a(f"s_waitcnt vmcnt(3)")
                for nt in range(2):
                    r = XR + mt * 4 + nt * 2; p = acc(mt, nt)
                    for d in range(2):
                        a(f"v_lshlrev_b32 v{T+16}, 16, v{r+d}")
                        a(f"v_and_b32 v{T+17}, s36, v{r+d}")
                        a(f"v_pk_add_f32 v[{p+2*d}:{p+2*d+1}], v[{p+2*d}:{p+2*d+1}], v[{T+16}:{T+17}]")
            t = T + mt * 4
            pk4(t, acc(mt, 0), acc(mt, 1))
            a(f"v_permlane16_swap_b32 v{t}, v{t+2}")
            a(f"v_permlane16_swap_b32 v{t+1}, v{t+3}")
            a(f"buffer_store_dwordx4 v[{t}:{t+3}], v{t0}, s[16:19], s30 offen{['', ' sc0 sc1', ' nt', ' sc1'][OPT['osf']]}")
            a("s_add_u32 s30, s30, 32768")
        stamp(a, c.sid + 3)
        if DIAG:
            a("s_waitcnt vmcnt(0)")
            stamp(a, c.sid + 4)

PV_A = 4
PV_B = 8
PV_SA = 16
PV_SB = 18
PV_RD = 32
PV_ACC = 80

def prod_setup(a, c):
    n = c.n
    wgmap(a, c.RX, c.CX)
    if c.a_off is None:
        a("s_lshl_b32 s30, s24, 18")
        srd_off(a, 8, P_X, "s30", 262144)
        for i in range(4):
            a(f"""
            v_lshrrev_b32 v2, 3, v1
            v_lshrrev_b32 v3, 4, v1
            v_add_u32 v3, {4*(i&1)}, v3
            v_and_b32 v{PV_A+i}, 7, v1
            v_xor_b32 v3, v3, v{PV_A+i}
            v_lshlrev_b32 v3, 4, v3
            v_lshl_add_u32 v3, v2, 11, v3
            s_lshl_b32 s30, s38, 16
            s_add_u32 s30, s30, {i*8*2048 - i*1024}
            v_add_u32 v{PV_A+i}, s30, v3
            """)
        c.astep = 128
    else:
        a(f"s_mul_i32 s30, s24, {c.K*256}")
        a(f"s_add_u32 s30, s30, {c.a_off}")
        srd_off(a, 8, P_WS, "s30", c.K * 256)
        a(f"""
        {"s_lshr_b32 s30, s38, 1" if c.sk else f"s_and_b32 s30, s38, {1 if c.kind == 'w2' else 3}"}
        s_lshl_b32 s30, s30, 12
        v_lshlrev_b32 v{PV_A}, 4, v1
        v_add_u32 v{PV_A}, s30, v{PV_A}
        """)
        c.astep = 16384
        if c.kind == "w2":
            a(f"""
            {"s_and_b32 s30, s38, 1" if c.sk else "s_lshr_b32 s30, s38, 1"}
            s_mul_i32 s63, s30, {4*8192}
            s_mul_i32 s64, s30, {7*8192}
            """)
    c.bstep = 64 * c.ldb
    CT = 16 // c.CX
    a(f"""
    s_and_b32 s65, s25, {CT-1}
    s_mul_i32 s65, s65, {(16 // CT) if c.rot else 0}
    """)
    if c.rot == 2: a(f"s_mov_b32 s65, {OPT['rot0']}")
    if c.sk: a("s_and_b32 s65, s25, 4\ns_lshl_b32 s65, s65, 1")
    a(f"""
    s_lshl_b32 s34, s38, 12
    s_mul_i32 s35, s38, {c.NBW*1024}
    """)
    if c.sk:
        a("""
        s_and_b32 s34, s38, 1
        s_lshl_b32 s34, s34, 13
        s_lshr_b32 s30, s38, 1
        s_lshl_b32 s30, s30, 12
        s_add_u32 s34, s34, s30
        """)
    if c.kind == "w2": a(f"s_mul_i32 s66, s65, {7*8192}")
    if not c.early: b_setup(a, c, PV_B, 12)
    a(f"""
    s_mov_b32 s27, {c.ABASE}
    s_mov_b32 s32, {c.BBASE}
    s_mul_i32 s28, s65, {c.astep}
    s_mul_i32 s29, s65, {c.bstep}
    """)

def b_setup(a, c, dst, sr_):
    if c.sk:
        a("s_andn2_b32 s30, s25, 4")
        a(f"s_mul_i32 s30, s30, {c.bcol}")
    else:
        a(f"s_mul_i32 s30, s25, {c.bcol}")
    a(f"s_sub_u32 s31, {c.K*c.ldb}, s30")
    srd_off(a, sr_, c.wp, "s30", "s31")
    a(f"""
    s_mul_i32 s30, s38, {c.NBW*64}
    s_mov_b32 s36, {c.ldb}
    """)
    for i in range(c.NBW):
        a(f"s_add_u32 s31, s30, {i*64}")
        a(f"v_add_u32 v3, s31, v1")
        d = dst + i
        if c.layout == "panel":
            a("v_bfe_u32 v2, v3, 3, 6")
            if c.korder == "F":
                a(f"v_bfe_u32 v{d}, v2, 1, 2")
            else:
                a(f"v_bfe_u32 v{d}, v2, 1, 1")
                a("v_bfe_u32 v15, v2, 3, 1")
                a(f"v_lshl_or_b32 v{d}, v15, 1, v{d}")
            a(f"""
            v_lshlrev_b32 v{d}, 1, v{d}
            v_and_b32 v15, 7, v3
            v_xor_b32 v{d}, v{d}, v15
            v_and_b32 v2, {31 if c.kind == "w2" else 63}, v2
            v_mul_lo_u32 v2, v2, s36
            v_lshl_add_u32 v{d}, v{d}, 4, v2
            """)
            if c.pstride:
                a(f"""
                v_lshrrev_b32 v3, 9, v3
                {"s_bfe_u32 s31, s25, 0x10002" if c.sk else ""}
                {"v_xor_b32 v3, s31, v3" if c.sk else ""}
                v_mul_u32_u24 v3, {c.pstride}, v3
                v_add_u32 v{d}, v{d}, v3
                """)
        else:
            a(f"""
            v_mul_u32_u24 v2, 2341, v3
            v_lshrrev_b32 v2, 16, v2
            v_mul_u32_u24 v15, 28, v2
            v_sub_u32 v3, v3, v15
            v_bfe_u32 v15, v2, 2, 1
            v_lshlrev_b32 v15, 1, v15
            v_xor_b32 v3, v3, v15
            v_mul_lo_u32 v2, v2, s36
            v_lshl_add_u32 v{d}, v3, 4, v2
            """)
        if i & 3: a(f"v_subrev_u32 v{d}, {(i&3)*1024}, v{d}")

def issueA(a, c, slot=None, adv=True):
    if slot is None: a("s_add_u32 m0, s27, s34")
    else: a(f"s_add_u32 m0, s34, {c.ABASE + slot*16384}")
    for i in range(4):
        v = PV_A + (i if c.a_off is None else 0)
        a(f"buffer_load_dwordx4 v{v}, s[8:11], s28 offen offset:{i*1024}{'' if c.a_off is None else ' sc1'} lds")
    if adv:
        a(f"s_add_u32 s28, s28, {c.astep}")
        if c.rot: a(f"s_and_b32 s28, s28, {16*c.astep - 1}")
    if slot is None:
        a(f"""
        s_add_u32 s27, s27, 16384
        s_cmp_eq_u32 s27, {c.ABASE + c.S*16384}
        s_cselect_b32 s27, {c.ABASE}, s27
        """)

def issueB(a, c, slot=None, adv=True):
    for i in range(c.NBW):
        if i % 4 == 0:
            if slot is None:
                a(f"s_add_u32 m0, s32, {c.s35}")
                if i: a(f"s_add_u32 m0, m0, {i*1024}")
            else:
                a(f"s_add_u32 m0, {c.s35}, {c.BBASE + slot*c.BB + i*1024}")
        a(f"buffer_load_dwordx4 v{c.pvb+i}, s[{c.sb}:{c.sb+3}], s29 offen offset:{(i&3)*1024}{' nt' if (c.kind == 'qkv' and OPT['qnt'] >= 2) else ''} lds")
    if adv:
        a(f"s_add_u32 s29, s29, {c.bstep}")
        if c.rot:
            a(f"s_cmp_eq_u32 s29, {16*c.bstep}")
            a("s_cselect_b32 s29, 0, s29")
    if slot is None:
        a(f"""
        s_add_u32 s32, s32, {c.BB}
        s_cmp_eq_u32 s32, {c.BBASE + c.S*c.BB}
        s_cselect_b32 s32, {c.BBASE}, s32
        """)

PV_POLL = 28
def poll_once(a, wide):
    t = PV_POLL
    if wide: a(f"buffer_load_dwordx4 v[{t}:{t+3}], v26, s[{FLS}:{FLS+3}], s33 offen sc0 sc1")
    else: a(f"buffer_load_dwordx2 v[{t}:{t+1}], v26, s[{FLS}:{FLS+3}], s33 offen sc0 sc1")
    a("s_waitcnt vmcnt(0)")
    a(f"v_cmp_eq_u64 s[56:57], s[{TAG}:{TAG+1}], v[{t}:{t+1}]")
    if wide:
        a(f"v_cmp_eq_u64 s[58:59], s[{TAG}:{TAG+1}], v[{t+2}:{t+3}]")
        a("s_nop 3")
        a("s_and_b64 s[56:57], s[56:57], s[58:59]")
    else:
        a("s_nop 3")

def gate(a, t, wide):
    lp = a.label("gate"); ok = a.label("skip_gate")
    a(f"{lp}:")
    if t == "all":
        a("s_cmp_eq_u32 s56, -1" if OPT["sk"] else "s_cmp_eq_u64 s[56:57], -1")
    else:
        a(f"s_bfe_u32 s30, s{56 + t // 8}, {hex((4 << 16) | (4 * (t % 8)))}")
        a("s_cmp_eq_u32 s30, 15")
    a(f"s_cbranch_scc1 {ok}")
    poll_once(a, wide)
    a("""
    s_sub_u32 s39, s39, 1
    s_cselect_b64 s[58:59], -1, 0
    s_cselect_b32 s39, 0, s39
    s_or_b64 s[56:57], s[56:57], s[58:59]
    """)
    a(f"s_branch {lp}")
    a(f"{ok}:")

def gate_setup(a, seam_id, wide):
    a(f"""
    s_lshl_b32 s30, s65, 2
    v_add_u32 v26, s30, v1
    v_and_b32 v26, 63, v26
    v_lshlrev_b32 v26, {4 if wide else 3}, v26
    s_lshl_b32 s33, s24, 10
    s_add_u32 s33, s33, {seam_id*16384}
    s_mov_b64 s[56:57], 0
    s_mov_b32 s39, 0x200000
    """)

def colsum_tile(a, c, lds_base, wsg, which, R, part=None):
    AD = R; ACCU = R + 4; D = R + 8; t = R + 40
    if part in (None, 0):
        a(f"""
        v_lshrrev_b32 v{t}, 4, v1
        v_bfe_u32 v{t+1}, v1, 2, 2
        v_mul_u32_u24 v{t+2}, {c.gmul}, v{t}
        v_add_u32 v{t+2}, v{t+2}, v{t+1}
        v_mul_u32_u24 v{t+2}, {c.RS}, v{t+2}
        v_and_b32 v{t+3}, 3, v1
        v_lshl_add_u32 v{t+2}, v{t+3}, 3, v{t+2}
        v_and_b32 v{t}, 1, v{t}
        s_lshl_b32 s71, {wsg}, {13 if c.layout == "panel" else 7}
        s_add_u32 s71, s71, {lds_base}
        v_add_u32 v{t+2}, s71, v{t+2}
        """)
        if c.layout == "panel":
            a(f"v_lshrrev_b32 v{t+1}, 1, v{t+1}")
            a(f"v_lshl_or_b32 v{t}, v{t}, 1, v{t+1}")
        for ts in range(4):
            a(f"v_xor_b32 v{t+3}, {ts}, v{t}")
            a(f"v_lshl_add_u32 v{AD+ts}, v{t+3}, 5, v{t+2}")
        for q in range(4):
            for ts in range(4):
                d = D + (q * 4 + ts) * 2
                a(f"ds_read_b64_tr_b16 v[{d}:{d+1}], v{AD+ts} offset:{((q>>1)*32 + (q&1)*c.rdrows) * c.RS}")
        for ts in range(4): a(f"v_mov_b32 v{ACCU+ts}, 0")
        srd_off(a, 16, P_WS, CSG_OFF + which * 524288, 524288)
        a(f"""
        s_mov_b32 s75, 0x3f803f80
        v_lshlrev_b32 v{t}, 3, v1
        """)
        if c.kind == "qkv" and OPT["dil"]:
            a(f"""
            s_lshl_b32 s71, s24, 15
            s_mul_i32 s31, s25, 1536
            s_add_u32 s71, s71, s31
            s_lshl_b32 s31, {wsg}, 9
            s_add_u32 s71, s71, s31
            s_cmp_eq_u32 {wsg}, 3
            s_cselect_b32 s71, 0x40000000, s71
            """)
        else:
            a(f"""
            s_lshl_b32 s71, s25, 15
            s_lshl_b32 s31, s24, 11
            s_add_u32 s71, s71, s31
            s_lshl_b32 s31, {wsg}, 9
            s_add_u32 s71, s71, s31
            """)
    for q in range(4):
        if part not in (None, 1 + q // 2): continue
        if part is None or q == 0: a(f"s_waitcnt lgkmcnt({12-4*q if part is None else 0})")
        for d in range(2):
            for ts in range(4):
                a(f"v_dot2c_f32_bf16 v{ACCU+ts}, s75, v{D+(q*4+ts)*2+d}")
    if part in (None, 3):
        t0, t1, t2, t3 = ACCU, ACCU + 1, ACCU + 2, ACCU + 3
        a(f"""
        v_permlane32_swap_b32 v{t0}, v{t2}
        v_permlane32_swap_b32 v{t1}, v{t3}
        v_add_f32 v{t0}, v{t0}, v{t2}
        v_add_f32 v{t1}, v{t1}, v{t3}
        v_permlane16_swap_b32 v{t0}, v{t1}
        v_add_f32 v{t0}, v{t0}, v{t1}
        v_mov_b32 v{t1}, s{TAG}
        """)
        if c.kind == "qkv":
            sk = a.label("skip_xi")
            a(f"""
            s_cmp_lg_u32 {wsg}, 3
            s_cbranch_scc1 {sk}
            v_cmp_eq_u32 vcc, s74, v1
            v_cndmask_b32 v{t0}, 0, 1.0, vcc
            {sk}:
            """)
        a(f"buffer_store_dwordx2 v[{t0}:{t1}], v{t}, s[16:19], s71 offen sc0 sc1")

G_CS = 32
G_RS = 64
def gather_cs_setup(a, c):
    which = 0 if c.kind == "qkv" else 1
    srd_off(a, 16, P_WS, CSG_OFF + which * 524288, 524288)
    if c.kind == "qkv" and OPT["dil"]:
        a(f"""
        s_min_u32 s31, s38, 2
        s_lshl_b32 s60, s31, 13
        s_lshl_b32 s31, s25, 9
        s_add_u32 s60, s60, s31
        s_mov_b32 s67, 32768
        """)
    else:
        a(f"""
        s_lshl_b32 s60, s25, 15
        s_lshl_b32 s31, s38, 9
        s_add_u32 s60, s60, s31
        s_mov_b32 s67, 2048
        """)
    a("v_lshlrev_b32 v24, 3, v1")
    return 0
def gather_cs(a, r0, r1):
    for r in range(r0, r1):
        a(f"buffer_load_dwordx2 v[{G_CS+2*r}:{G_CS+2*r+1}], v24, s[16:19], s60 offen sc0 sc1")
        a("s_add_u32 s60, s60, s67")
    return r1 - r0
def gather_rs_setup(a, c):
    if c.kind == "qkv":
        srd_off(a, 20, P_WS, RS1_OFF, 32768)
        a(f"""
        v_and_b32 v25, 31, v1
        v_lshlrev_b32 v25, 4, v25
        s_lshl_b32 s61, s24, 11
        s_lshl_b32 s31, s38, 9
        s_add_u32 s61, s61, s31
        """)
    else:
        srd_off(a, 20, P_WS, ST2_OFF, 16 * 32768)
        a(f"""
        v_and_b32 v25, 31, v1
        v_lshlrev_b32 v25, 2, v25
        v_lshrrev_b32 v15, 5, v1
        v_lshl_add_u32 v25, v15, 9, v25
        s_lshl_b32 s61, s24, 15
        s_lshl_b32 s31, s38, 7
        s_add_u32 s61, s61, s31
        """)
    return 0
def gather_rs(a, c, p0=0, p1=32):
    if c.kind == "qkv":
        a(f"buffer_load_dwordx4 v[{G_RS}:{G_RS+3}], v25, s[20:23], s61 offen sc0 sc1")
        return 1
    a(f"s_add_u32 s30, s65, {p0 // 2}")
    a("s_and_b32 s30, s30, 15")
    a("s_lshl_b32 s30, s30, 11")
    a("s_add_u32 s30, s30, s61")
    for p in range(p0, p1):
        a(f"buffer_load_dword v{G_RS+p}, v25, s[20:23], s30 offen offset:{(p&1)*1024} sc0 sc1")
    return p1 - p0

def gather_finish_cs(a, c):
    lp = a.label("gchk"); ok = a.label("skip_gok")
    a("s_mov_b32 s62, 0x40000")
    a(f"{lp}:")
    a(f"v_xor_b32 v15, s{TAG}, v{G_CS+1}")
    for r in range(1, 16):
        a(f"v_xor_b32 v27, s{TAG}, v{G_CS+2*r+1}")
        a("v_or_b32 v15, v15, v27")
    if c.kind == "qkv":
        a(f"v_xor_b32 v27, s{TAG}, v{G_RS+2}")
        a("v_or_b32 v15, v15, v27")
        a(f"v_xor_b32 v27, s{TAG+1}, v{G_RS+3}")
        a("v_or_b32 v15, v15, v27")
    a(f"""
    v_cmp_ne_u32 vcc, 0, v15
    s_nop 3
    s_cmp_eq_u64 vcc, 0
    s_cbranch_scc1 {ok}
    s_sub_u32 s62, s62, 1
    s_cbranch_scc1 {ok}
    s_sleep 2
    """)
    gather_cs_setup(a, c); gather_cs(a, 0, 16)
    if c.kind == "qkv": gather_rs(a, c)
    a("s_waitcnt vmcnt(0)")
    a(f"s_branch {lp}")
    a(f"{ok}:")
    for r in range(1, 16): a(f"v_add_f32 v{G_CS}, v{G_CS}, v{G_CS+2*r}")
    a(f"""
    v_lshlrev_b32 v2, 2, v1
    s_lshl_b32 s30, s38, 8
    s_add_u32 s30, s30, {ST_CS}
    v_add_u32 v2, s30, v2
    ds_write_b32 v2, v{G_CS}
    """)
    return 0

def gather_finish_rs(a, c):
    a(f"""
    v_and_b32 v3, 31, v1
    s_lshl_b32 s30, s38, 5
    v_add_u32 v3, s30, v3
    v_lshlrev_b32 v2, 4, v3
    v_add_u32 v2, {ST_REC}, v2
    """)
    R = G_RS
    if c.kind == "qkv":
        a(f"""
        v_lshlrev_b32 v3, 2, v3
        v_add_u32 v3, {ST_MEAN}, v3
        ds_write_b128 v2, v[{R}:{R+3}]
        ds_write_b32 v3, v{R}
        ds_write_b32 v3, v{R+1} offset:512
        """)
    else:
        a(f"""
        v_mov_b32 v{R+1}, v{R}
        v_permlane32_swap_b32 v{R}, v{R+1}
        v_mul_f32 v{R}, {f32(1.0/1024)}, v{R}
        v_mul_f32 v{R+1}, {f32(1.0/1024)}, v{R+1}
        v_fma_f32 v{R+1}, -v{R}, v{R}, v{R+1}
        v_max_f32 v{R+1}, 0, v{R+1}
        v_add_f32 v{R+4}, {f32(1e-5)}, v{R+1}
        v_rsq_f32 v{R+1}, v{R+4}
        v_sqrt_f32 v{R+3}, v{R+4}
        v_mul_f32 v{R+2}, {f32(-LOG2E)}, v{R+1}
        ds_write_b128 v2, v[{R}:{R+3}]
        """)
    a("s_waitcnt lgkmcnt(0)")
    return 0

def row_stats_issue(a, X):
    srd_off(a, 20, P_X, 0, 4 * MB)
    srd_off(a, 16, P_DBG, 0, 256)
    a(f"""
    s_lshl_b32 s30, s24, 7
    s_lshl_b32 s31, s25, 3
    s_add_u32 s30, s30, s31
    s_lshl_b32 s31, s3, 1
    s_add_u32 s33, s30, s31
    s_lshl_b32 s30, s33, 11
    v_lshlrev_b32 v{X+18}, 4, v1
    v_mov_b32 v{X+19}, 0
    """)
    for i in range(4):
        a(f"buffer_load_dwordx4 v[{X+4*i}:{X+4*i+3}], v{X+18}, s[20:23], s30 offen offset:{i*1024}")

def row_stats_finish(a, X, T):
    s0, q0, s1, q1 = T, T + 1, T + 2, T + 3
    a(f"buffer_load_dwordx2 v[{X+16}:{X+17}], v{X+19}, s[16:19], 0 offen sc0 sc1")
    a("s_mov_b32 s75, 0x3f803f80")
    for i in range(4): a(f"v_mov_b32 v{T+i}, 0")
    a("s_waitcnt vmcnt(1)")
    for d in range(8):
        for row in range(2):
            r = X + 8 * row + d
            a(f"v_dot2c_f32_bf16 v{T+2*row}, s75, v{r}")
            a(f"v_dot2c_f32_bf16 v{T+2*row+1}, v{r}, v{r}")
    a(f"""
    v_permlane32_swap_b32 v{s0}, v{q0}
    v_permlane32_swap_b32 v{s1}, v{q1}
    v_add_f32 v{s0}, v{s0}, v{q0}
    v_add_f32 v{s1}, v{s1}, v{q1}
    v_permlane16_swap_b32 v{s0}, v{s1}
    v_add_f32 v{s0}, v{s0}, v{s1}
    v_add_f32_dpp v{s0}, v{s0}, v{s0} quad_perm:[1,0,3,2] row_mask:0xf bank_mask:0xf
    v_add_f32_dpp v{s0}, v{s0}, v{s0} quad_perm:[2,3,0,1] row_mask:0xf bank_mask:0xf
    v_add_f32_dpp v{s0}, v{s0}, v{s0} row_half_mirror row_mask:0xf bank_mask:0xf
    v_add_f32_dpp v{s0}, v{s0}, v{s0} row_mirror row_mask:0xf bank_mask:0xf
    v_mov_b32 v{q0}, v{s0}
    v_permlane32_swap_b32 v{s0}, v{q0}
    v_mul_f32 v{s0}, {f32(1.0/1024)}, v{s0}
    v_mul_f32 v{q0}, {f32(1.0/1024)}, v{q0}
    v_fma_f32 v{q0}, -v{s0}, v{s0}, v{q0}
    v_max_f32 v{q0}, 0, v{q0}
    v_add_f32 v{q0}, {f32(1e-5)}, v{q0}
    v_rsq_f32 v{q0}, v{q0}
    """)
    lp = a.label("tagp"); dn = a.label("tagd")
    a(f"""
    s_mov_b32 s39, 0x100000
    {lp}:
    s_waitcnt vmcnt(0)
    v_readfirstlane_b32 s{TAG}, v{X+16}
    v_readfirstlane_b32 s{TAG+1}, v{X+17}
    s_nop 3
    s_cmp_lg_u32 s{TAG}, 0
    s_cbranch_scc1 {dn}
    s_sleep 1
    buffer_load_dwordx2 v[{X+16}:{X+17}], v{X+19}, s[16:19], 0 offen sc0 sc1
    s_sub_u32 s39, s39, 1
    s_cmp_lg_u32 s39, 0
    s_cbranch_scc1 {lp}
    {dn}:
    """)
    srd_off(a, 20, P_WS, RS1_OFF, 32768)
    a(f"""
    v_mov_b32 v{s1}, s{TAG}
    v_mov_b32 v{q1}, s{TAG+1}
    v_and_b32 v{T+4}, 16, v1
    s_lshl_b32 s30, s33, 4
    v_mov_b32 v{T+5}, {ST_TAG}
    s_mov_b64 exec, 0x10001
    buffer_store_dwordx4 v[{T}:{T+3}], v{T+4}, s[20:23], s30 offen sc0 sc1
    ds_write_b64 v{T+5}, v[{s1}:{q1}]
    s_mov_b64 exec, -1
    s_waitcnt lgkmcnt(0)
    """)

def w2_kg(t):
    if OPT["sk"]:
        if t < 8: return 7 * t, 4
        if t < 12: return 14 * (t - 8) + 3, 7
        if t < 20: return 7 * (t - 12) + 1, 4
        return 7 * (t - 20) + 2, 4
    if t < 16: return 7 * t, 4
    if t < 24: return 14 * (t - 16) + 3, 7
    if t < 40: return 7 * (t - 24) + 1, 4
    return 7 * (t - 40) + 2, 4

def set_soff(a, c, st, A=True, B=True):
    if c.kind != "w2": return
    base, dh = w2_kg(st)
    off = base % 7
    hs = "s63" if dh == 4 else "s64"
    a(f"s_add_u32 s30, s66, {(base - off)*8192}")
    a(f"s_sub_u32 s31, s30, {112*8192}")
    a("s_cselect_b32 s30, s30, s31")
    a(f"s_add_u32 s30, s30, {hs}")
    if A: a(f"s_add_u32 s28, s30, {off*8192}")
    if B:
        a(f"s_add_u32 s29, s30, {off*8192}")
        a("s_lshl_b32 s29, s29, 3")

def w2_early_setup(a, c):
    a(f"""
    s_mul_i32 s41, s38, {c.NBW*1024}
    s_and_b32 s30, s38, 1
    s_mul_i32 s63, s30, {4*8192}
    s_mul_i32 s64, s30, {7*8192}
    s_and_b32 s30, s25, 4
    s_mul_i32 s66, s30, {14*8192}
    """)
    c.bstep = 64 * c.ldb
    b_setup(a, c, c.pvb, c.sb)

def pre_B(a, c, st0=0, st1=None):
    for st in range(st0, c.S if st1 is None else st1):
        set_soff(a, c, st, A=False)
        issueB(a, c, st % c.S, c.kind != "w2")
    return (( c.S if st1 is None else st1) - st0) * c.NBW

def gemm_producer(a, c, preB, gated=None, side=None, after_issue=None, unroll_to=None):
    n = c.n; S = c.S; L = 4 + c.NBW
    side = side or {}
    U = n if unroll_to is None else unroll_to
    ops = []
    w2 = c.kind == "w2"
    def iss(st):
        if gated and st < (8 if c.sk else 16): gate(a, st, gated == "wide")
        if st == 0: stamp(a, c.sid)
        doB = not (preB and st < S)
        set_soff(a, c, st, True, doB)
        issueA(a, c, st % S, not w2); ops.extend([st] * 4)
        if doB:
            issueB(a, c, st % S, not w2); ops.extend([st] * c.NBW)
        if after_issue: ops.extend([st] * after_issue(st))
    def wait(st):
        last = max(i for i, x in enumerate(ops) if x <= st)
        a(f"s_waitcnt vmcnt({min(63, len(ops) - 1 - last)})")
    def run_side(j, tag):
        for f in side.get(j, []): ops.extend([tag] * (f() or 0))
    if DIAG and OPT['steps']: a('s_mov_b32 s99, 0\nv_mov_b32 v252, 0')
    iss(0); issued = 1
    if not (c.kind == "qkv" and OPT["early0"]):
        run_side(-1, 1)
        iss(1); issued = 2
    wait(0)
    stamp(a, c.sid + 1)
    pbar(a)
    j = 0
    while j < n:
        allowed = j - 1 + S
        if issued >= U and issued < n: break
        cnt = 0
        if c.kind == "qkv" and OPT["early0"] == 1 and j == 0: run_side(-1, 1)
        while issued <= allowed and cnt < 2 and issued < U:
            if c.kind == "qkv" and OPT["early0"] == 2 and issued == 2: run_side(-1, 2)
            iss(issued); issued += 1; cnt += 1
        run_side(j, max(issued - 1, j + 2))
        j += 1
        if j < n: wait(j)
        pbar(a)
    if j < n:
        assert issued == j - 1 + S
        a(f"s_mov_b32 s27, {c.ABASE + (issued % S)*16384}")
        a(f"s_mov_b32 s32, {c.BBASE + (issued % S)*c.BB}")
        for (t0, t1, stride) in c.rounds:
            if t0 == c.gate_all_at:
                a(f"s_waitcnt vmcnt({(c.gate_all_at - c.prepoll_at) * L})")
                a(f"v_cmp_eq_u64 s[56:57], s[{TAG}:{TAG+1}], v[{PV_POLL}:{PV_POLL+1}]")
                a("s_nop 3")
                gate(a, "all", False)
            if t0 == c.prepoll_at:
                gate_setup(a, c.seamB, False)
                a(f"buffer_load_dwordx2 v[{PV_POLL}:{PV_POLL+1}], v26, s[{FLS}:{FLS+3}], s33 offen sc0 sc1")
            if t0 in c.round_hook: c.round_hook[t0]()
            lp = a.label("p_loop")
            set_soff(a, c, t0, True, False)
            a(f"s_mov_b32 s26, {t1 - t0}")
            a(f"{lp}:")
            a("s_lshl_b32 s29, s28, 3")
            issueA(a, c, None, False); issueB(a, c, None, False)
            a(f"s_add_u32 s28, s28, {stride*8192}")
            a(f"s_sub_u32 s31, s28, {112*8192}")
            a("s_cselect_b32 s28, s28, s31")
            a(f"s_waitcnt vmcnt({(S-2)*L})")
            if DIAG and OPT["steps"]:
                pbar(a)
                a(f"s_sub_u32 s26, s26, 1\ns_cmp_lg_u32 s26, 0\ns_cbranch_scc1 {lp}")
            else:
                a(f"s_sub_u32 s26, s26, 1\ns_cmp_lg_u32 s26, 0\ns_barrier\ns_cbranch_scc1 {lp}")
        j = n - S + 1
        stamp(a, c.sid + 2)
        while j < n:
            j += 1
            if j < n: a(f"s_waitcnt vmcnt({(n-1-j)*L})")
            pbar(a)
    stamp(a, c.sid + 3)
    pbar_flush(a, {'qkv':0,'wo':1,'w1':2,'w2':3}[c.kind])

def touch(a, ptr, total_bytes, sr_=20):
    nl = total_bytes // 128 // 1024
    srd_off(a, sr_, ptr, 0, total_bytes)
    a(f"""
    s_lshl_b32 s30, s2, 2
    s_add_u32 s30, s30, s38
    s_mul_i32 s30, s30, {nl*128}
    v_lshlrev_b32 v2, 7, v1
    s_mov_b32 exec_lo, {hex(((1 << nl) - 1) & 0xffffffff)}
    s_mov_b32 exec_hi, {hex(((1 << nl) - 1) >> 32)}
    buffer_load_dword v253, v2, s[{sr_}:{sr_+3}], s30 offen
    s_mov_b64 exec, -1
    """)
    return 1

def xtouch_setup(a, ptr, nbytes, sr_, vreg):
    srd_off(a, sr_, ptr, 0, nbytes)
    a(f"""
    v_lshrrev_b32 v2, 2, v1
    v_lshlrev_b32 v2, 11, v2
    v_and_b32 v3, 3, v1
    v_lshl_add_u32 v2, v3, 7, v2
    s_and_b32 s30, s2, 3
    s_lshl_b32 s30, s30, 9
    s_lshl_b32 s31, s38, 14
    s_add_u32 s30, s30, s31
    v_add_u32 v2, s30, v2
    v_mov_b32 v3, 0x40000000
    v_cmp_gt_u32 vcc, 32, v1
    v_cndmask_b32 v{vreg}, v3, v2, vcc
    """)

def w2_xtouch(a, q):
    a(f"""
    s_lshr_b32 s30, s2, 4
    s_mul_i32 s30, s30, {7*65536}
    s_bfe_u32 s31, s2, 0x10003
    s_mul_i32 s31, s31, {4*65536 if q < 3 else 0x20000000}
    s_add_u32 s30, s30, s31
    s_add_u32 s30, s30, {q*65536}
    buffer_load_dword v253, v23, s[44:47], s30 offen
    """)
    return 1

def attention(a):
    SC = (32 ** -0.5) * LOG2E
    vF, vL, vQH = 2, 4, 5
    Q = 8; O = 16; SB = 32; F = 176; T = 248
    a(f"""
    v_bfe_u32 v6, v1, 4, 1
    v_lshlrev_b32 v{vF}, 10, v6
    v_lshrrev_b32 v6, 5, v1
    v_lshl_add_u32 v{vF}, v6, 8, v{vF}
    v_and_b32 v7, 15, v1
    v_lshl_add_u32 v{vF}, v7, 4, v{vF}
    v_and_b32 v7, 31, v1
    v_lshlrev_b32 v6, 2, v6
    v_sub_u32 v{vQH}, v7, v6
    s_lshr_b32 s34, s3, 2            ; hh
    s_and_b32 s35, s3, 3             ; qb
    s_mul_i32 s30, s34, {HEADW}
    s_lshl_b32 s31, s35, 11
    s_add_u32 s30, s30, s31
    v_add_u32 v{vL}, s30, v{vF}
    ds_read_b128 v[{Q}:{Q+3}], v{vL} offset:49152
    ds_read_b128 v[{Q+4}:{Q+7}], v{vL} offset:{49152+512}
    """)
    def fr(b, i): return F + b * 8 + i * 4
    rd = []
    for b in range(9):
        for i in range(2):
            rd.append(f"ds_read_b128 v[{fr(b,i)}:{fr(b,i)+3}], v{vL} offset:{b*2048 + i*512}")
    for x in rd[:8]: a(x)
    for r in range(16):
        cst = 8 * (r >> 2) + (r & 3)
        a(f"v_cmp_gt_i32 s[{40+2*r}:{41+2*r}], {cst}, v{vQH}")
    nissued = 8
    rv = []
    for b in range(9):
        for i in range(2):
            rv.append(f"ds_read_b128 v[{fr(b,i)}:{fr(b,i)+3}], v{vL} offset:{24576 + b*2048 + i*512}")
    for b in range(9):
        a(f"s_waitcnt lgkmcnt({nissued - (2*b+2)})")
        s = SB + 16 * b
        a(f"v_mfma_f32_32x32x16_bf16 v[{s}:{s+15}], v[{fr(b,0)}:{fr(b,0)+3}], v[{Q}:{Q+3}], 0")
        if nissued < 18: a(rd[nissued]); nissued += 1
        a(f"v_mfma_f32_32x32x16_bf16 v[{s}:{s+15}], v[{fr(b,1)}:{fr(b,1)+3}], v[{Q+4}:{Q+7}], v[{s}:{s+15}]")
        if nissued < 18: a(rd[nissued]); nissued += 1
    for x in rv[:14]: a(x)
    skip = a.label("at_valid")
    a(f"""
    s_lshl_b32 s30, s24, 2
    s_add_u32 s30, s30, s35
    s_cmp_ge_u32 s30, 8
    s_cbranch_scc1 {skip}
    """)
    for b in range(8):
        nb = a.label("at_nb")
        a(f"s_cmp_ge_u32 s30, {8-b}")
        a(f"s_cbranch_scc1 {nb}")
        for r in range(16):
            a(f"v_mov_b32 v{SB+16*b+r}, 0xff800000")
        a(f"{nb}:")
    a(f"{skip}:")
    mx = T; mx2 = T + 1; sm = T + 2
    a(f"v_max_f32 v{mx}, v{SB+16}, v{SB+17}")
    a(f"v_max_f32 v{mx2}, v{SB+18}, v{SB+19}")
    idx = list(range(20, 128))
    for k in range(0, len(idx), 2):
        m = mx if (k // 2) % 2 == 0 else mx2
        a(f"v_max3_f32 v{m}, v{SB+idx[k]}, v{SB+idx[k+1]}, v{m}")
    for r in range(16):
        a(f"v_cndmask_b32 v{SB+r}, v{SB+128+r}, v{SB+r}, s[{40+2*r}:{41+2*r}]")
    for k in range(0, 16, 2):
        m = mx if (k // 2) % 2 == 0 else mx2
        a(f"v_max3_f32 v{m}, v{SB+k}, v{SB+k+1}, v{m}")
    for x in rv[14:]: a(x)
    a(f"""
    v_max_f32 v{mx}, v{mx}, v{mx2}
    v_mov_b32 v{mx2}, v{mx}
    v_permlane32_swap_b32 v{mx}, v{mx2}
    v_max_f32 v{mx}, v{mx}, v{mx2}
    v_mov_b32 v{Q}, {f32(SC)}
    v_mul_f32 v{Q+1}, v{Q}, v{mx}
    v_mov_b32 v{sm}, 0
    v_mov_b32 v{sm+1}, 0
    s_waitcnt lgkmcnt(0)
    s_barrier
    """)
    sk = a.label("skip_x1")
    a(f"""
    s_cmp_lt_u32 s3, 4
    s_cbranch_scc1 {sk}
    s_mul_i32 s30, s24, {64*7168}
    s_mul_i32 s31, s38, 7168
    """)
    for i in range(7):
        if i % 4 == 0: a(f"s_add_u32 m0, s31, {XB1 + i*1024}")
        a(f"buffer_load_dwordx4 v{O+i}, s[20:23], s30 offen offset:{(i&3)*1024} lds")
    if OPT["sk"] and OPT["sent"] == 1:
        sk2 = a.label("skip_x2")
        a(f"s_branch {sk2}")
        a(f"{sk}:")
        srd_off(a, 20, P_WS, XP_OFF, 8 * MB)
        a(f"""
        s_lshl_b32 s30, s24, 19
        s_lshl_b32 s31, s3, 13
        s_add_u32 s30, s30, s31
        s_lshl_b32 s31, s25, 15
        s_add_u32 s30, s30, s31
        v_lshlrev_b32 v{O+4}, 4, v1
        """)
        for i in range(4): a(f"v_mov_b32 v{O+i}, -1")
        for mt in range(4):
            a(f"buffer_store_dwordx4 v[{O}:{O+3}], v{O+4}, s[20:23], s30 offen offset:{mt*1024} sc0 sc1")
        a(f"{sk2}:")
    else:
        a(f"{sk}:")
    def pack(s):
        for d, r in [(0, 0), (1, 2), (2, 8), (3, 10), (4, 4), (5, 6), (6, 12), (7, 14)]:
            a(f"v_cvt_pk_bf16_f32 v{s+d}, v{s+r}, v{s+r+1}")
    first = [True]
    def pv(b, s):
        c0 = "0" if first[0] else f"v[{O}:{O+15}]"
        first[0] = False
        a(f"v_mfma_f32_32x32x16_bf16 v[{O}:{O+15}], v[{fr(b,0)}:{fr(b,0)+3}], v[{s}:{s+3}], {c0}")
        a(f"v_mfma_f32_32x32x16_bf16 v[{O}:{O+15}], v[{fr(b,1)}:{fr(b,1)+3}], v[{s+4}:{s+7}], v[{O}:{O+15}]")
    pending = None
    for b in [0, 1, 2, 3, 4, 5, 6, 7]:
        s = SB + 16 * b
        for r in range(0, 16, 2):
            a(f"v_pk_fma_f32 v[{s+r}:{s+r+1}], v[{s+r}:{s+r+1}], v[{Q}:{Q+1}], v[{Q}:{Q+1}] op_sel:[0,0,1] op_sel_hi:[1,0,1] neg_lo:[0,0,1] neg_hi:[0,0,1]")
        if pending is not None:
            for p in pending: pv(*p)
            pending = None
        for r in range(16):
            a(f"v_exp_f32 v{s+r}, v{s+r}")
        for r in range(0, 16, 2):
            a(f"v_pk_add_f32 v[{sm}:{sm+1}], v[{sm}:{sm+1}], v[{s+r}:{s+r+1}]")
        if b == 0:
            s8 = SB + 128
            for r in range(16):
                a(f"v_cndmask_b32 v{s8+r}, v{s+r}, 0, s[{40+2*r}:{41+2*r}]")
                a(f"v_cndmask_b32 v{s+r}, 0, v{s+r}, s[{40+2*r}:{41+2*r}]")
            pack(s); pack(s8)
            pending = [(0, s), (8, s8)]
        else:
            pack(s)
            pending = [(b, s)]
    for p in pending: pv(*p)
    srd_off(a, 16, P_WS, O_OFF, 4 * MB)
    a(f"""
    v_add_f32 v{sm}, v{sm}, v{sm+1}
    v_mov_b32 v{sm+1}, v{sm}
    v_permlane32_swap_b32 v{sm}, v{sm+1}
    v_add_f32 v{sm}, v{sm}, v{sm+1}
    v_rcp_f32 v{sm}, v{sm}
    s_lshl_b32 s30, s24, 18
    s_lshl_b32 s31, s25, 14
    s_add_u32 s30, s30, s31
    s_lshl_b32 s31, s34, 13
    s_add_u32 s30, s30, s31
    s_lshl_b32 s31, s35, 11
    s_add_u32 s30, s30, s31
    """)
    for r in range(0, 16, 2):
        a(f"v_pk_mul_f32 v[{O+r}:{O+r+1}], v[{O+r}:{O+r+1}], v[{sm}:{sm+1}] op_sel_hi:[1,0]")
    pack(O)
    a(f"""
    buffer_store_dwordx4 v[{O}:{O+3}], v{vF}, s[16:19], s30 offen sc0 sc1
    buffer_store_dwordx4 v[{O+4}:{O+7}], v{vF}, s[16:19], s30 offen offset:512 sc0 sc1
    """)
    stamp(a, 10)
    signal(a, 1, 3, SB)
    stamp(a, 11)

def build(header_src=None):
    a = Asm()
    C = {k: mk(k, **v) for k, v in CFG.items()}
    kernel_begin(a, KNAME)
    if OPT["t0"]: a("s_memrealtime s[96:97]")
    a(f"""
    s_cmp_ge_u32 s2, 256
    s_cbranch_scc1 L_end
    s_load_dwordx16 s[80:95], s[0:1], 0
    s_load_dwordx2 s[4:5], s[0:1], 64
    v_lshrrev_b32 v2, 6, v0
    v_and_b32 v1, 63, v0
    v_readfirstlane_b32 s3, v2
    s_getreg_b32 s74, hwreg(HW_REG_XCC_ID)
    s_and_b32 s74, s74, 15
    s_mov_b32 s{TAG}, 0
    s_mov_b32 s{TAG+1}, 0
    s_waitcnt lgkmcnt(0)
    """)
    srd_off(a, FLS, P_WS, FL_OFF, 131072)
    if DIAG: a(f"v_mov_b32 v{VS}, 0")
    stamp(a, 63)
    a("""
    s_cmp_ge_u32 s3, 4
    s_cbranch_scc1 L_prod
    """)
    a("""
    s_or_b32 s30, s2, s3
    s_cmp_lg_u32 s30, 0
    s_cbranch_scc1 L_notag
    """)
    srd_off(a, 16, P_DBG, 0, 256)
    a("""
    """)
    a("s_mov_b64 s[30:31], s[96:97]" if OPT["t0"] else "s_memrealtime s[30:31]")
    a("""
    v_mov_b32 v4, 0
    s_waitcnt lgkmcnt(0)
    s_or_b32 s30, s30, 1
    v_mov_b32 v2, s30
    v_mov_b32 v3, s31
    s_mov_b64 exec, 1
    buffer_store_dwordx2 v[2:3], v4, s[16:19], 0 offen sc0 sc1
    s_mov_b64 exec, -1
    L_notag:
    """)
    if OPT["cpf"]:
        a(f"""
        s_getpc_b64 s[30:31]
        L_pc:
        s_sub_u32 s16, s30, L_pc-{KNAME}
        s_subb_u32 s17, s31, 0
        s_mov_b32 s18, L_code_end-{KNAME}
        s_mov_b32 s19, 0x20000
        s_lshr_b32 s30, s2, 3
        s_lshl_b32 s30, s30, 11
        s_lshl_b32 s31, s3, 9
        s_add_u32 s30, s30, s31
        v_lshlrev_b32 v2, 7, v1
        s_mov_b64 exec, 15
        buffer_load_dword v253, v2, s[16:19], s30 offen
        s_mov_b64 exec, -1
        """)
    if OPT["prio"]: a(f"s_setprio {OPT['prio']}")
    gemm_consumer(a, C["qkv"])
    a("s_barrier")
    a("L_attn:")
    stamp(a, 9)
    attention(a)
    a("""
    s_barrier
    s_cmp_ge_u32 s3, 4
    s_cbranch_scc1 L_prod2
    """)
    colsum_tile(a, C["w1"], XB1, "s3", 1, 32)
    gemm_consumer(a, C["wo"])
    gemm_consumer(a, C["w1"])
    gemm_consumer(a, C["w2"])
    if OPT["spin"]:
        a(f"""
        s_waitcnt vmcnt(0)
        L_spin:
        s_memrealtime s[96:97]
        s_waitcnt lgkmcnt(0)
        s_sub_u32 s96, s96, s{TAG}
        s_cmp_lt_u32 s96, {OPT["spin"]}
        s_cbranch_scc1 L_spin
        """)
    stamp_flush(a)
    a("s_endpgm")
    C["w2"].ool()
    if OPT["reslate"]: C["wo"].ool()
    a("L_prod:")
    a("s_sub_u32 s38, s3, 4")
    c = C["qkv"]
    prod_setup(a, c)
    cq = c
    def q_extra():
        vb, sr_ = PV_B, 12
        if OPT["dil"]:
            cx = mk("qkv", **CFG["qkv"]); cx.pstride = 128; cx.bcol = 384
            vb, sr_ = 16, 20
            b_setup(a, cx, vb, sr_)
        a(f"s_mul_i32 s33, s24, {64*cq.ldb}")
        for i in range(cq.NBW):
            if i % 4 == 0: a(f"s_add_u32 m0, s35, {XB0 + i*1024}")
            a(f"buffer_load_dwordx4 v{vb+i}, s[{sr_}:{sr_+3}], s33 offen offset:{(i&3)*1024} lds")
        return cq.NBW
    def q_colsum(part=None):
        if part in (None, 0):
            a(f"""
            v_mov_b32 v2, {ST_TAG}
            ds_read_b64 v[{PV_RD}:{PV_RD+1}], v2
            s_waitcnt lgkmcnt(0)
            v_readfirstlane_b32 s{TAG}, v{PV_RD}
            v_readfirstlane_b32 s{TAG+1}, v{PV_RD+1}
            """)
        a("s_setprio 3")
        colsum_tile(a, cq, XB0, "s38", 0, PV_RD, part)
        a("s_setprio 0")
        return 1 if part in (None, 3) else 0
    def hi(f):
        def g():
            a("s_setprio 3"); r = f(); a("s_setprio 0"); return r
        return g
    side = {-1: [q_extra], (2 if OPT['early0'] == 2 else 1): [q_colsum], 12: [lambda: gather_cs_setup(a, cq), lambda: gather_rs_setup(a, cq)],
            14: [lambda: gather_rs(a, cq), lambda: gather_cs(a, 0, 16)]}
    side[15] = [lambda: a("s_waitcnt vmcnt(0)"), hi(lambda: gather_finish_cs(a, cq)), hi(lambda: gather_finish_rs(a, cq))]
    if OPT["cspl"]:
        del side[1]
        for k in range(4): side.setdefault(1 + k, []).append(lambda k=k: q_colsum(k))
    if OPT["help"]:
        def help_setup():
            srd_off(a, 44, P_WQKV, 0, 6 * MB)
            a(f"""
            s_and_b32 s30, s25, 3
            s_lshl_b32 s31, s30, 11
            s_or_b32 s70, s25, 3
            s_lshl_b32 s70, s70, 7
            s_add_u32 s31, s31, s70
            v_mov_b32 v2, 6144
            v_mul_lo_u32 v23, v1, v2
            v_add_u32 v23, s31, v23
            s_and_b32 s70, s24, 7
            s_cmp_eq_u32 s30, 3
            s_cselect_b32 s70, 99, s70
            s_and_b32 s30, s25, 4
            s_cselect_b32 s70, 99, s70
            s_cmp_lg_u32 s38, 0
            s_cselect_b32 s70, 99, s70
            """)
            return 0
        def helper(k):
            def f():
                sk = a.label("skip_help")
                a(f"""
                s_cmp_lg_u32 s70, {k & 7}
                s_cbranch_scc1 {sk}
                s_mov_b32 s30, {(k + OPT['help']) * 64 * 6144}
                buffer_load_dword v253, v23, s[44:47], s30 offen
                {sk}:
                """)
                return 0
            return f
        side[-1].append(help_setup)
        for k in range(0, 16 - OPT["help"]): side.setdefault(k, []).insert(0, helper(k))
    if OPT["sk"] and OPT["sent"] == 2:
        def prefill(k):
            def f():
                if k == 0:
                    srd_off(a, 16, P_WS, XP_OFF, 8 * MB)
                    a(f"""
                    s_lshl_b32 s62, s24, 19
                    s_lshl_b32 s31, s38, 13
                    s_add_u32 s62, s62, s31
                    s_lshl_b32 s31, s25, 15
                    s_add_u32 s62, s62, s31
                    v_lshlrev_b32 v27, 4, v1
                    """)
                    for i in range(4): a(f"v_mov_b32 v{28+i}, -1")
                a(f"buffer_store_dwordx4 v[28:31], v27, s[16:19], s62 offen offset:{k*1024} sc0 sc1")
                return 1
            return f
        for k in range(4): side.setdefault(5 + (k // OPT["pfg"]), []).append(prefill(k))
    spf = [0]
    def sprefetch(k):
        def f():
            for _ in range(k):
                if spf[0] < 112:
                    a(f"s_load_dword s{100 + (spf[0] & 1)}, s[68:69], {spf[0]*64}")
                    spf[0] += 1
            return 0
        return f
    def spf_setup():
        a(f"""
        s_lshl_b32 s30, s2, 2
        s_add_u32 s30, s30, s38
        s_mul_i32 s30, s30, 7168
        s_add_u32 s68, s{P_W2}, s30
        s_addc_u32 s69, s{P_W2+1}, 0
        """)
        return 0
    if OPT["pf"] == 3:
        side.setdefault(3, []).append(spf_setup)
        for k in range(3, 13): side.setdefault(k, []).append(sprefetch(5))
    gemm_producer(a, c, False, None, side)
    if OPT["xst"]:
        for i in range(4): a(f"v_mov_b32 v{28+i}, v{PV_A+i}")
        a("""
        s_mov_b32 s48, s8
        s_mov_b32 s49, s9
        s_mov_b32 s50, s10
        s_mov_b32 s51, 0x20000
        """)
    a(f"""
    s_sub_u32 s30, s24, 1
    s_max_i32 s30, s30, 0
    s_sub_u32 s31, s24, 2
    s_max_i32 s31, s31, 0
    s_sub_u32 s30, s30, s31
    s_lshl_b32 s30, s30, 11
    v_bfe_u32 v2, v1, 2, 1
    v_mul_lo_u32 v2, v2, s30
    v_and_b32 v3, 3, v1
    v_lshl_add_u32 v2, v3, 3, v2
    s_lshl_b32 s31, s31, 11
    s_lshl_b32 s30, s25, 7
    s_add_u32 s33, s30, s31
    s_add_u32 s33, s33, 65536
    """)
    a(f"""
    s_lshr_b32 s34, s38, 1
    s_and_b32 s35, s38, 1
    s_lshl_b32 s30, s25, 1
    s_add_u32 s30, s30, s34
    s_lshl_b32 s30, s30, 17
    s_lshl_b32 s31, s35, 22
    s_add_u32 s30, s30, s31
    s_add_u32 s30, s30, {K_OFF}
    """)
    srd_off(a, 8, P_WS, "s30", 131072)
    a(f"""
    s_lshl_b32 s30, s24, 13
    s_sub_u32 s30, s30, 16384
    v_lshlrev_b32 v4, 4, v1
    v_add_u32 v4, s30, v4
    s_mul_i32 s34, s34, {HEADW}
    s_mul_i32 s35, s35, 24576
    s_add_u32 s34, s34, s35
    """)
    a("v_mov_b32 v5, v2")
    b_setup(a, C["w1"], 16, 20)
    wait_flags(a, 5, "s33", False, PV_RD)
    stamp(a, 5)
    for q in range(4):
        a(f"s_add_u32 m0, s34, {q*4096}")
        for i in range(4):
            a(f"buffer_load_dwordx4 v4, s[8:11], 0 offen offset:{i*1024}{NBF[OPT['nbf']]} lds")
        if q < 3: a("v_add_u32 v4, 0x1000, v4")
    a("s_mov_b32 s98, s24\ns_mov_b32 s99, s25")
    c = C["wo"]
    prod_setup(a, c)
    a("s_mov_b32 s24, s98\ns_mov_b32 s25, s99")
    a("s_waitcnt vmcnt(0)")
    stamp(a, 6)
    a("s_barrier")
    if OPT["xst"]:
        a(f"s_add_u32 m0, s34, {XST}")
        a("s_lshl_b32 s30, s25, 7")
        for i in range(4):
            a(f"buffer_load_dwordx4 v{28+i}, s[48:51], s30 offen offset:{i*1024} lds")
    pre_B(a, c)
    if OPT["xt"]:
        xtouch_setup(a, P_WO, 2 * MB, 16, 2)
        a("""
        s_lshr_b32 s30, s2, 3
        s_lshl_b32 s30, s30, 16
        buffer_load_dword v253, v2, s[16:19], s30 offen
        """)
    elif OPT["pf"]: touch(a, P_WO, 2 * MB, 16)
    a("s_branch L_attn")
    a("L_prod2:")
    c = C["wo"]
    prod_setup(a, c)
    a(f"s_add_u32 s29, s29, {c.S*64*c.ldb}")
    a(f"s_and_b32 s29, s29, {16*64*c.ldb - 1}")
    gate_setup(a, 1, True)
    gemm_producer(a, c, True, "wide")
    c = C["w1"]; c1 = c
    prod_setup(a, c)
    if OPT["wobar"]: a("s_barrier")
    pre_B(a, c)
    gather_cs_setup(a, c)
    gather_rs_setup(a, c)
    if C["w2"].early: w2_early_setup(a, C["w2"])
    gate_setup(a, 2, False)
    def w2hook(k):
        def f():
            sk = a.label("skip_pf")
            a(f"""
            s_lshr_b32 s30, s2, 3
            s_and_b32 s30, s30, 7
            s_cmp_lg_u32 s30, {k}
            s_cbranch_scc1 {sk}
            """)
            touch(a, P_W2, 7 * MB, 44)
            a(f"{sk}:")
            return 0
        return f
    side = {}
    if OPT["pf"] == 2:
        for k in range(8): side.setdefault(3 + k, []).append(w2hook(k))
    if OPT["pf"] == 3:
        spf_setup()
        for k in range(0, 13): side.setdefault(k, []).append(sprefetch(5))
    def rs_add(p0, p1):
        def f():
            for p in range(max(p0, 1), p1): a(f"v_add_f32 v{G_RS}, v{G_RS}, v{G_RS+p}")
        return f
    side.setdefault(8, []).append(hi(rs_add(0, 16)))
    side.setdefault(13, []).append(hi(rs_add(16, 26)))
    side[14] = [lambda: gather_cs(a, 0, 16)]
    side[15] = [hi(rs_add(26, 32)), lambda: a("s_waitcnt vmcnt(0)"), hi(lambda: gather_finish_cs(a, c1)), hi(lambda: gather_finish_rs(a, c1))]
    if C["w2"].early:
        c2 = C["w2"]
        side[14].append(lambda: pre_B(a, c2, 0, 1))
        side[15] = [lambda: pre_B(a, c2, 1, 4), hi(rs_add(26, 32)), lambda: a("s_waitcnt vmcnt(16)"), hi(lambda: gather_finish_cs(a, c1)), hi(lambda: gather_finish_rs(a, c1))]
    gemm_producer(a, c, True, "narrow", side, lambda st: gather_rs(a, c1, 2 * st, 2 * st + 2))
    c = C["w2"]
    c.rounds = [(16, OPT['prepoll'], 14), (OPT['prepoll'], 24, 14), (24, 40, 7), (40, 56, 7)]; c.prepoll_at = OPT['prepoll']; c.gate_all_at = 24; c.seamB = 3
    if c.sk:
        c.rounds = [(8, 10, 14), (10, 12, 14), (12, 20, 7), (20, 28, 7)]; c.prepoll_at = 10; c.gate_all_at = 12
    prod_setup(a, c)
    if not c.early: pre_B(a, c)
    side = {}
    c.round_hook = {}
    if OPT["xt"] and not c.sk:
        xtouch_setup(a, P_W2, 7 * MB, 44, 23)
        w2_xtouch(a, 0); w2_xtouch(a, 3)
        side = {4: [lambda: w2_xtouch(a, 1)]}
        c.round_hook = {24: lambda: w2_xtouch(a, 2)}
    a("s_barrier")
    a("s_barrier")
    gate_setup(a, 0, False)
    gemm_producer(a, c, True, "narrow", side, None, 8 if c.sk else 16)
    stamp_flush(a)
    a("L_end:")
    a("s_endpgm")
    a("L_code_end:")
    body, nins = hazard.fix(a.lines)
    hdr = []
    if header_src:
        for ln in open(header_src):
            if ln.startswith(";") and "@launch" not in ln:
                hdr.append(ln.rstrip("\n"))
            elif not ln.startswith(";"):
                break
    hdr.append(f"; @launch grid=(256,1,1) block=(512,1,1) lds=163840")
    hdr.append('.amdgcn_target "amdgcn-amd-amdhsa--gfx950"')
    hdr.append(".text")
    return "\n".join(hdr) + "\n" + "\n".join(body) + "\n" + kernel_desc(KNAME, 256, 102), nins

if __name__ == "__main__":
    if "--diag" in sys.argv:
        DIAG = True; sys.argv.remove("--diag")
    for arg in list(sys.argv[1:]):
        if "=" in arg:
            k_, v_ = arg.split("=", 1)
            if "." in k_:
                kk, f_ = k_.split(".")
                for kind_ in (CFG.keys() if kk == "all" else [kk]): CFG[kind_][f_] = int(v_)
            else: OPT[k_] = int(v_)
            sys.argv.remove(arg)
    out = sys.argv[1] if len(sys.argv) > 1 else "p1.s"
    txt, nins = build(header_src="sequential_preLN__sliding_block__dense_activation_silu__prompt.s.ref")
    open(out, "w").write(txt)
    print("wrote", out, len(txt), "bytes; nop states inserted:", nins)
```

```python
import sys, struct
from asmlib import *
import hazard

MB = 1 << 20
K_OFF = 8 * MB
V_OFF = 12 * MB
O_OFF = 16 * MB
H_OFF = 20 * MB
H1_OFF = 24 * MB
FL_OFF = 40 * MB
RS1_OFF = 41 * MB
CSG_OFF = 42 * MB
XP_OFF = 44 * MB
ST2_OFF = 43 * MB
DIAG_OFF = 64 * MB
LOG2E = 1.4426950408889634
KNAME = "sequential_preLN__sliding_block__dense_activation_silu__prompt_kernel"
P_X, P_WQKV, P_WO, P_W1, P_W2, P_OUT, P_DBG, P_WS = 80, 82, 84, 88, 90, 92, 94, 4
TAG = 72
FLS = 76
ST = 155648
ST_REC, ST_MEAN, ST_RSTD, ST_CS, ST_CSP = ST, ST + 2048, ST + 2560, ST + 3072, ST + 4096
HEADW = 57344
XB0 = 122880
XB1 = 81920
XCH = 147456
XST = 147456
ST_TAG = ST + 4096
HRES = 232
DEF = 200
VS = 254
DIAG = False
OPT = dict(bis=5, att2=1, attbar=1, osf=1, t0=0, spin=0, eb2=1, sigA2=2, peel=8, cspl=1, xst=1, reslate=0, sent=0, pfg=1, help=4, snake=1, rot0=4, early0=0, dil=1, sk=1, skfull=0, pf=3, xt=1, prio=0, inv=0, nodma=0, steps=0, kvlocal=0, cpf=1, nbf=1, sigA=3, sigB=3, qnt=0, bar2=0, defer=0, dper=2, dstart=0, prepoll=21, wobar=0)

def f32(x):
    return "0x%08x" % struct.unpack("<I", struct.pack("<f", x))[0]

def srd_off(a, d, ptr, off, nrec):
    a(f"s_add_u32 s{d}, s{ptr}, {off}")
    a(f"s_addc_u32 s{d+1}, s{ptr+1}, 0")
    a(f"s_mov_b32 s{d+2}, {nrec}")
    a(f"s_mov_b32 s{d+3}, 0x20000")

def hold(a, key):
    if not OPT.get(key): return
    l = a.label("hold")
    a(f"""
    {l}:
    s_memrealtime s[96:97]
    s_waitcnt lgkmcnt(0)
    s_sub_u32 s96, s96, s{TAG}
    s_cmp_lt_u32 s96, {OPT[key]}
    s_cbranch_scc1 {l}
    """)

def stamp(a, idx):
    if not DIAG: return
    a("s_memrealtime s[96:97]")
    a("s_waitcnt lgkmcnt(0)")
    a(f"v_writelane_b32 v{VS}, s96, {idx}")

def stamp_flush(a):
    if not DIAG: return
    srd_off(a, 16, P_WS, DIAG_OFF, 524288)
    a(f"""
    s_lshl_b32 s30, s2, 11
    s_lshl_b32 s31, s3, 8
    s_add_u32 s30, s30, s31
    v_lshlrev_b32 v{VS+1}, 2, v1
    buffer_store_dword v{VS}, v{VS+1}, s[16:19], s30 offen
    """)

def pbar(a):
    a("s_barrier")
    if DIAG and OPT["steps"]:
        a("s_memtime s[96:97]" if OPT["steps"] == 2 else "s_memrealtime s[96:97]")
        a("""
        s_waitcnt lgkmcnt(0)
        s_mov_b32 m0, s99
        s_nop 0
        v_writelane_b32 v252, s96, m0
        s_add_u32 s99, s99, 1
        """)

def pbar_flush(a, ph):
    if not (DIAG and OPT["steps"]): return
    srd_off(a, 16, P_WS, DIAG_OFF + 524288 * (1 + ph), 524288)
    a(f"""
    s_lshl_b32 s30, s2, 11
    s_lshl_b32 s31, s3, 8
    s_add_u32 s30, s30, s31
    v_lshlrev_b32 v2, 2, v1
    buffer_store_dword v252, v2, s[16:19], s30 offen
    """)

def wgmap(a, RX, CX):
    CT = 16 // CX; RB = 16 // RX
    lg = lambda x: x.bit_length() - 1
    a(f"""
    s_and_b32 s30, s2, 7
    s_lshr_b32 s31, s2, 3
    s_lshr_b32 s24, s30, {lg(CX)}
    s_lshl_b32 s24, s24, {lg(RB)}
    s_and_b32 s25, s30, {CX-1}
    s_lshl_b32 s25, s25, {lg(CT)}
    s_lshr_b32 s30, s31, {lg(CT)}
    s_add_u32 s24, s24, s30
    s_and_b32 s30, s31, {CT-1}
    s_add_u32 s25, s25, s30
    """)

def st2(a, text):
    if not OPT["kvlocal"]:
        a(text + " sc0 sc1"); return
    l1 = a.label("skip_s1"); l2 = a.label("skip_s2")
    a(f"""
    s_cmp_lg_u32 s55, 0
    s_cbranch_scc1 {l1}
    {text} sc0 sc1
    s_branch {l2}
    {l1}:
    {text}
    {l2}:
    """)

def signal(a, seam, slot_shift, t, local=False, cnt=0, plain0=False, rbj=('s24', 's25')):
    kv = seam == 0 and not plain0
    a(f"""
    s_lshl_b32 s40, {rbj[0]}, {11 if kv else 10}
    s_lshl_b32 s41, {rbj[1]}, {7 if kv else slot_shift+3}
    s_add_u32 s40, s40, s41
    s_lshl_b32 s41, s3, 3
    s_add_u32 s40, s40, s41
    s_add_u32 s40, s40, {65536 if kv else seam*16384}
    v_mov_b32 v{t}, s{TAG}
    v_mov_b32 v{t+1}, s{TAG+1}
    v_mov_b32 v{t+2}, 0
    s_waitcnt vmcnt({cnt})
    s_mov_b64 exec, 1
    """)
    txt = f"buffer_store_dwordx2 v[{t}:{t+1}], v{t+2}, s[{FLS}:{FLS+3}], s40 offen"
    if local: st2(a, txt)
    else: a(txt + " sc0 sc1")
    a("s_mov_b64 exec, -1")

def wait_flags(a, voff, soff, wide, t):
    lp = a.label("poll"); dn = a.label("polld")
    a(f"s_mov_b32 s39, 0x100000")
    if OPT["inv"] == 1: a("buffer_inv sc1")
    a(f"{lp}:")
    if wide:
        a(f"buffer_load_dwordx4 v[{t}:{t+3}], v{voff}, s[{FLS}:{FLS+3}], {soff} offen sc0 sc1")
    else:
        a(f"buffer_load_dwordx2 v[{t}:{t+1}], v{voff}, s[{FLS}:{FLS+3}], {soff} offen sc0 sc1")
    a("s_waitcnt vmcnt(0)")
    a(f"v_cmp_eq_u64 vcc, s[{TAG}:{TAG+1}], v[{t}:{t+1}]")
    if wide:
        a(f"v_cmp_eq_u64 s[36:37], s[{TAG}:{TAG+1}], v[{t+2}:{t+3}]")
        a("s_nop 3")
        a("s_and_b64 vcc, vcc, s[36:37]")
    else:
        a("s_nop 3")
    a(f"""
    s_cmp_eq_u64 vcc, -1
    s_cbranch_scc1 {dn}
    s_sleep 1
    s_sub_u32 s39, s39, 1
    s_cmp_lg_u32 s39, 0
    s_cbranch_scc1 {lp}
    {dn}:
    """)
    if OPT["inv"] == 2: a("buffer_inv sc1")

class G: pass
NBF = ['', ' sc1', ' sc0']

def mk(kind, **kw):
    c = G(); c.kind = kind; c.__dict__.update(kw)
    c.sk = 0
    c.pvb, c.sb, c.s35 = 8, 12, "s35"
    c.early = 0
    if kind == "wo" and OPT["xst"]: c.S = min(c.S, 4)
    if kind == "w2" and OPT["sk"]:
        c.sk = 1; c.BN = 128; c.NT = 4; c.S = 4; c.BBASE = 65536; c.full = OPT["skfull"]; c.rpg = 1; c.pstride = 512
        if OPT["eb2"]:
            c.early = 1; c.pvb, c.sb, c.s35 = 16, 52, "s41"; c.BBASE = 77824
    c.n = c.K // 64 // (2 if c.sk else 1)
    c.BB = c.BN * 128
    c.NBW = c.BB // 4096
    c.gmul = 4 if c.korder == "F" else 8
    c.rdrows = 16 if c.korder == "F" else 4
    c.RS = 128 if c.layout == "panel" else 448
    return c

CFG = dict(
    qkv=dict(K=1024, BN=192, NT=6, S=3, korder="N", layout="panel", wp=P_WQKV, ldb=6144, bcol=128, pstride=2048,
             a_off=None, normal_tiles=(4, 5), RX=2, CX=4, rpg=1, ABASE=0, BBASE=49152, ln=True, sid=0, lt=0, full=0, rot=0),
    wo=dict(K=1024, BN=64, NT=2, S=5, korder="F", layout="panel", wp=P_WO, ldb=2048, bcol=128, pstride=0,
            a_off=O_OFF, normal_tiles=(), RX=2, CX=4, rpg=2, ABASE=0, BBASE=114688, ln=False, sid=16, lt=0, full=1, rot=2),
    w1=dict(K=1024, BN=224, NT=7, S=3, korder="F", layout="w1", wp=P_W1, ldb=7168, bcol=448, pstride=0,
            a_off=H_OFF, normal_tiles=(), RX=2, CX=4, rpg=1, ABASE=0, BBASE=49152, ln=True, sid=24, lt=0, full=0, rot=2),
    w2=dict(K=3584, BN=64, NT=2, S=6, korder="F", layout="panel", wp=P_W2, ldb=2048, bcol=128, pstride=0,
            a_off=H1_OFF, normal_tiles=(), RX=2, CX=4, rpg=2, ABASE=0, BBASE=98304, ln=False, sid=32, lt=0, full=1, rot=0),
)

def gemm_consumer(a, c):
    kind = c.kind; n = c.n; S = c.S; NT = c.NT; RS = c.RS
    vA0, vA10, vB00, vB01, vB02, vA, vA1, vB0, vB1, vB2 = 2, 3, 4, 5, 6, 7, 8, 9, 10, 11
    vG = 12; vCH = 13
    t0, t1 = 14, 15
    ACC = 16
    FX = ACC + 16 * NT
    FSZ = 16 + 4 * NT
    if c.full: FSZ *= 2
    FY = FX + FSZ
    VTOP = FY + FSZ
    acc = lambda mt, nt: ACC + (nt * 4 + mt) * 4
    wgmap(a, c.RX, c.CX)
    T = FX
    if kind == "qkv": row_stats_issue(a, FY)
    a(f"""
    s_lshr_b32 s34, s3, 1
    s_and_b32 s35, s3, 1
    v_lshlrev_b32 v{vCH}, 4, v1
    s_lshl_b32 s30, s34, 12
    v_add_u32 v{vCH}, s30, v{vCH}
    v_lshrrev_b32 v{vG}, 4, v1
    v_bfe_u32 v{T}, v1, 2, 2
    v_and_b32 v{T+1}, 3, v1
    """)
    if c.a_off is None:
        a(f"""
        v_and_b32 v{t0}, 15, v1
        v_lshrrev_b32 v{t1}, 1, v{t0}
        v_xor_b32 v{t1}, v{t1}, v{vG}
        v_lshlrev_b32 v{t1}, 4, v{t1}
        v_lshl_add_u32 v{vA0}, v{t0}, 7, v{t1}
        s_lshl_b32 s30, s34, 13
        v_add_u32 v{vA0}, s30, v{vA0}
        v_xor_b32 v{vA10}, 64, v{vA0}
        """)
        aread = lambda mt, kg: ((vA, vA1)[kg], mt * 2048)
    else:
        a(f"v_mov_b32 v{vA0}, v{vCH}")
        aread = lambda mt, kg: (vA, kg * 8192 + mt * 1024)
    if c.layout == "panel":
        a(f"""
        v_mul_u32_u24 v{t0}, {c.gmul}, v{vG}
        v_add_u32 v{t0}, v{t0}, v{T}
        v_lshlrev_b32 v{t0}, 7, v{t0}
        v_lshl_add_u32 v{t0}, v{T+1}, 3, v{t0}
        v_lshrrev_b32 v{t1}, 1, v{T}
        v_and_b32 v{T+2}, 1, v{vG}
        v_lshl_or_b32 v{t1}, v{T+2}, 1, v{t1}
        s_lshl_b32 s30, s35, 1
        v_xor_b32 v{t1}, s30, v{t1}
        v_lshl_add_u32 v{vB00}, v{t1}, 5, v{t0}
        v_xor_b32 v{t1}, 1, v{t1}
        v_lshl_add_u32 v{vB01}, v{t1}, 5, v{t0}
        """)
        def bread(nt, kg, rd):
            return (vB0 if nt % 2 == 0 else vB1), (nt // 2) * 8192 + kg * 32 * RS + rd * c.rdrows * RS
    else:
        a(f"""
        v_mul_u32_u24 v{t0}, {c.gmul}, v{vG}
        v_add_u32 v{t0}, v{t0}, v{T}
        v_mul_u32_u24 v{t0}, {RS}, v{t0}
        v_lshl_add_u32 v{t0}, v{T+1}, 3, v{t0}
        v_and_b32 v{t1}, 1, v{vG}
        v_lshlrev_b32 v{T+2}, 5, v{t1}
        s_lshl_b32 s30, s35, 8
        v_add_u32 v{T+3}, s30, v{t0}
        v_add_u32 v{vB00}, v{T+3}, v{T+2}
        v_sub_u32 v{vB01}, v{T+3}, v{T+2}
        s_add_u32 s30, s35, 6
        v_xor_b32 v{t1}, s30, v{t1}
        v_lshl_add_u32 v{vB02}, v{t1}, 5, v{t0}
        """)
        def bread(nt, kg, rd):
            o = kg * 32 * RS + rd * c.rdrows * RS
            if nt == 6: return vB2, o
            return (vB0 if nt % 2 == 0 else vB1), o + nt * 32
    RES = VTOP
    if kind == "wo":
        srd_off(a, 20, P_X, 0, 4 * MB)
        a(f"""
        v_and_b32 v{t0}, 15, v1
        v_lshlrev_b32 v{t0}, 11, v{t0}
        v_lshl_add_u32 v{t0}, v{vG}, 3, v{t0}
        s_lshl_b32 s30, s24, 18
        s_lshl_b32 s31, s34, 17
        s_add_u32 s30, s30, s31
        s_lshl_b32 s31, s25, 7
        s_add_u32 s30, s30, s31
        s_lshl_b32 s31, s35, 6
        s_add_u32 s30, s30, s31
        """)
        def res_loads():
            for mt in range(4):
                for nt in range(2):
                    r = RES + mt * 4 + nt * 2
                    a(f"buffer_load_dwordx2 v[{r}:{r+1}], v{t0}, s[20:23], s30 offen offset:{nt*32}")
                a("s_add_u32 s30, s30, 32768")
        if not OPT["reslate"] and not OPT["xst"]: res_loads()
    if kind == "wo" and OPT["xst"]:
        a(f"""
        v_and_b32 v{t0}, 15, v1
        v_lshrrev_b32 v{t1}, 1, v{t0}
        v_lshrrev_b32 v{T}, 1, v{vG}
        s_lshl_b32 s30, s35, 2
        v_add_u32 v{T}, s30, v{T}
        v_xor_b32 v{t1}, v{t1}, v{T}
        v_lshlrev_b32 v{t1}, 4, v{t1}
        v_lshl_add_u32 v{t1}, v{t0}, 7, v{t1}
        v_and_b32 v{T}, 1, v{vG}
        v_lshl_add_u32 v{t1}, v{T}, 3, v{t1}
        s_lshl_b32 s30, s34, 13
        s_add_u32 s30, s30, {XST}
        v_add_u32 v{t1}, s30, v{t1}
        v_xor_b32 v{t0}, 32, v{t1}
        """)
        for mt in range(4):
            for nt in range(2):
                r = RES + mt * 4 + nt * 2
                a(f"ds_read_b64 v[{r}:{r+1}], v{t0 if nt else t1} offset:{mt*2048}")
    for i in range(16 * NT):
        a(f"v_mov_b32 v{ACC+i}, 0")
    abases = [(vA, vA0)] + ([(vA1, vA10)] if c.a_off is None else [])
    bbases = [(vB0, vB00), (vB1, vB01)] + ([(vB2, vB02)] if c.layout != "panel" else [])
    a(f"s_mov_b32 s27, {c.ABASE}")
    a(f"s_mov_b32 s32, {c.BBASE}")
    setb = [f"v_add_u32 v{x}, s27, v{y}" for x, y in abases] + [f"v_add_u32 v{x}, s32, v{y}" for x, y in bbases]
    for x in setb: a(x)
    a(f"s_mov_b32 s26, {n - 1 if (c.ln and OPT['peel']) else n}")
    def reads(F, kg):
        r = []
        for nt in range(NT):
            for rd in range(2):
                b, o = bread(nt, kg, rd)
                d = F + 16 + nt * 4 + rd * 2
                r.append(f"ds_read_b64_tr_b16 v[{d}:{d+1}], v{b} offset:{o}")
            if nt == 0:
                for mt in range(4):
                    d = F + mt * 4
                    b, o = aread(mt, kg)
                    r.append(f"ds_read_b128 v[{d}:{d+3}], v{b} offset:{o}")
        return r
    def mfmas(F):
        m = []
        for nt in range(NT):
            for mt in (range(4) if (nt % 2 == 0 or not OPT["snake"]) else range(3, -1, -1)):
                A = F + mt * 4; B = F + 16 + nt * 4; D = acc(mt, nt)
                if nt in c.normal_tiles:
                    m.append(f"v_mfma_f32_16x16x32_bf16 v[{D}:{D+3}], v[{A}:{A+3}], v[{B}:{B+3}], v[{D}:{D+3}]")
                else:
                    m.append(f"v_mfma_f32_16x16x32_bf16 v[{D}:{D+3}], v[{B}:{B+3}], v[{A}:{A+3}], v[{D}:{D+3}]")
        return m
    loop = a.label("c_loop")
    if kind == "qkv": row_stats_finish(a, FY, FX)
    stamp(a, c.sid)
    a("s_barrier")
    hold(a, "h_" + kind)
    stamp(a, c.sid + 1)
    adv = [f"s_add_u32 s27, s27, 16384", f"s_add_u32 s32, s32, {c.BB}", f"s_cmp_eq_u32 s27, {c.ABASE + S*16384}",
           f"s_cselect_b32 s27, {c.ABASE}, s27", f"s_cselect_b32 s32, {c.BBASE}, s32"] + setb
    def epi_setup():
        b = Asm(); r = []
        if kind == "qkv":
            REC, CSQ, MV, RV, CSV = T, T + 16, VTOP, VTOP + 16, VTOP + 32
            b(f"""
            v_and_b32 v{t0}, 15, v1
            v_lshlrev_b32 v{vA}, 4, v{t0}
            s_lshl_b32 s30, s34, 10
            s_add_u32 s30, s30, {ST_REC}
            v_add_u32 v{vA}, s30, v{vA}
            v_lshlrev_b32 v{vA1}, 4, v{vG}
            s_lshl_b32 s30, s35, 7
            s_add_u32 s30, s30, {ST_CS}
            v_add_u32 v{vB0}, s30, v{vA1}
            v_lshlrev_b32 v{vB1}, 2, v{t0}
            v_add_u32 v{vB1}, s30, v{vB1}
            s_lshl_b32 s30, s34, 8
            s_add_u32 s30, s30, {ST_MEAN}
            v_add_u32 v{vA1}, s30, v{vA1}
            """)
            srd_off(b, 16, P_WS, K_OFF, 8 * MB)
            b(f"""
            s_lshl_b32 s30, s25, 1
            s_add_u32 s30, s30, s35
            s_lshl_b32 s30, s30, 17
            s_lshl_b32 s31, s24, 13
            s_add_u32 s30, s30, s31
            s_add_u32 s31, s30, {4*MB}
            s_mul_i32 s33, s35, {HEADW}
            v_add_u32 v{vB2}, s33, v{vCH}
            """)
            for mt in range(4):
                r.append(f"ds_read_b128 v[{REC+4*mt}:{REC+4*mt+3}], v{vA} offset:{mt*256}")
            for nt in range(4):
                r.append(f"ds_read_b128 v[{CSQ+4*nt}:{CSQ+4*nt+3}], v{vB0} offset:{(nt//2)*256 + (nt%2)*64}")
            for mt in range(4):
                r.append(f"ds_read_b128 v[{MV+4*mt}:{MV+4*mt+3}], v{vA1} offset:{mt*64}")
                r.append(f"ds_read_b128 v[{RV+4*mt}:{RV+4*mt+3}], v{vA1} offset:{512 + mt*64}")
            for dt in range(2):
                r.append(f"ds_read_b32 v{CSV+2*dt}, v{vB1} offset:{512 + dt*64}")
        else:
            CSR = T; REC = T + 28
            srd_off(b, 16, P_WS, H1_OFF, 14 * MB)
            b(f"""
            v_and_b32 v{t0}, 15, v1
            v_lshlrev_b32 v{vA}, 4, v{t0}
            s_lshl_b32 s30, s34, 10
            s_add_u32 s30, s30, {ST_REC}
            v_add_u32 v{vA}, s30, v{vA}
            v_lshlrev_b32 v{t1}, 4, v{vG}
            s_lshl_b32 s30, s35, 9
            s_add_u32 s30, s30, {ST_CS}
            v_add_u32 v{vB0}, s30, v{t1}
            s_lshl_b32 s30, s35, 6
            s_add_u32 s30, s30, {ST_CS}
            v_add_u32 v{vB1}, s30, v{t1}
            s_mul_i32 s30, s24, {112*8192}
            s_mul_i32 s31, s25, {7*8192}
            s_add_u32 s30, s30, s31
            s_add_u32 s36, s30, {3*8192}
            s_lshl_b32 s31, s35, 15
            s_add_u32 s30, s30, s31
            s_add_u32 s31, s30, 8192
            s_add_u32 s37, s30, 16384
            s_lshl_b32 s33, s35, 3
            s_add_u32 s33, s33, {XCH}
            v_add_u32 v{vB2}, s33, v{vCH}
            """)
            for mt in range(4):
                r.append(f"ds_read_b128 v[{REC+4*mt}:{REC+4*mt+3}], v{vA} offset:{mt*256}")
            r.append(f"ds_read_b128 v[{CSR+24}:{CSR+27}], v{vB1} offset:{6*64}")
            for nt in range(6):
                r.append(f"ds_read_b128 v[{CSR+4*nt}:{CSR+4*nt+3}], v{vB0} offset:{nt*64}")
        return [x.strip() for x in b.lines], r
    peel = c.ln and OPT["peel"]
    NI = n // 2 if c.full else n
    def w2hook_c():
        if kind == "wo" and OPT["reslate"]:
            back = a.label("woback"); late = a.label("wolate")
            a(f"s_cmp_eq_u32 s26, {OPT['reslate']}")
            a(f"s_cbranch_scc1 {late}")
            a(f"{back}:")
            def ool():
                a(f"{late}:")
                res_loads()
                a(f"s_branch {back}")
            c.ool = ool
        if kind == "w2":
            back = a.label("w2back"); early = a.label("w2early")
            a(f"s_cmp_ge_u32 s26, {NI - OPT['sigB']}")
            a(f"s_cbranch_scc1 {early}")
            a(f"{back}:")
            def ool():
                a(f"{early}:")
                nst = OPT["dper"]
                its = 8 // nst if OPT["defer"] else 0
                for it in range(its):
                    nx = a.label("skip_e")
                    a(f"s_cmp_lg_u32 s26, {NI - it - OPT['dstart']}")
                    a(f"s_cbranch_scc1 {nx}")
                    for k in range(it * nst, it * nst + nst):
                        r = DEF + k * 4
                        a(f"buffer_store_dwordx4 v[{r}:{r+3}], v{vCH}, s[16:19], {'s44' if k < 4 else 's45'} offen offset:{(k%4)*1024} sc0 sc1")
                    a(f"s_branch {back}")
                    a(f"{nx}:")
                a(f"s_cmp_lg_u32 s26, {NI - OPT['sigB']}")
                a(f"s_cbranch_scc1 {back}")
                signal(a, 3, 2, VTOP, rbj=("s42", "s43"))
                a(f"s_branch {back}")
            c.ool = ool

    if c.full:
        H = FSZ // 2
        rd2 = lambda F: reads(F, 0) + reads(F + H, 1)
        mf2 = lambda F: mfmas(F) + mfmas(F + H)
        a(f"s_mov_b32 s26, {n//2}")
        for r in rd2(FX): a(r)
        for x in adv: a(x)
        a(f"{loop}:")
        w2hook_c()
        a("s_waitcnt lgkmcnt(0)")
        a("s_barrier")
        for x in interleave(mf2(FX), rd2(FY) + adv, 0, 1, c.rpg): a(x)
        a("s_waitcnt lgkmcnt(0)")
        a("s_barrier")
        for x in interleave(mf2(FY), rd2(FX) + adv + ["s_sub_u32 s26, s26, 1", "s_cmp_lg_u32 s26, 0"], 0, 1, c.rpg): a(x)
        a(f"s_cbranch_scc1 {loop}")
        a("s_waitcnt lgkmcnt(0)")
    else:
        for r in reads(FX, 0): a(r)
        a(f"{loop}:")
        w2hook_c()
        a("s_waitcnt lgkmcnt(0)")
        for x in interleave(mfmas(FX), reads(FY, 1) + adv, 0, 1, c.rpg): a(x)
        a("s_waitcnt lgkmcnt(0)")
        a("s_barrier")
        for x in interleave(mfmas(FY), reads(FX, 0) + ["s_sub_u32 s26, s26, 1", "s_cmp_lg_u32 s26, 0"], 0, 1, c.rpg): a(x)
        a(f"s_cbranch_scc1 {loop}")
        a("s_waitcnt lgkmcnt(0)")
        if peel:
            for x in interleave(mfmas(FX), reads(FY, 1), 0, 1, c.rpg): a(x)
            a("s_waitcnt lgkmcnt(0)")
            alu, rds = epi_setup()
            m = mfmas(FY)
            if kind == "qkv": m = m[8:16] + m[16:] + m[:8]
            kb = len(m) - OPT["peel"]
            for x in interleave(m[:kb], alu, 0, 1, 2): a(x)
            a("s_barrier")
            for x in interleave(m[kb:], rds, 0, 1, 2): a(x)
    stamp(a, c.sid + 2)
    def pk4(t, p0, p1):
        a(f"v_cvt_pk_bf16_f32 v{t}, v{p0}, v{p0+1}")
        a(f"v_cvt_pk_bf16_f32 v{t+1}, v{p0+2}, v{p0+3}")
        a(f"v_cvt_pk_bf16_f32 v{t+2}, v{p1}, v{p1+1}")
        a(f"v_cvt_pk_bf16_f32 v{t+3}, v{p1+2}, v{p1+3}")
    if kind == "qkv":
        REC, CSQ, MV, RV, CSV = T, T + 16, VTOP, VTOP + 16, VTOP + 32
        if not peel:
            for x in sum(epi_setup(), []): a(x)
        a("s_waitcnt lgkmcnt(10)")
        def fold_sw(mt, nt):
            p = acc(mt, nt); m = REC + 4 * mt; cs = CSQ + 4 * nt
            for h in range(2):
                a(f"v_pk_fma_f32 v[{p+2*h}:{p+2*h+1}], v[{m}:{m+1}], v[{cs+2*h}:{cs+2*h+1}], v[{p+2*h}:{p+2*h+1}] op_sel_hi:[0,1,1] neg_lo:[1,0,0] neg_hi:[1,0,0]")
            for h in range(2):
                a(f"v_pk_mul_f32 v[{p+2*h}:{p+2*h+1}], v[{m}:{m+1}], v[{p+2*h}:{p+2*h+1}] op_sel:[1,0] op_sel_hi:[1,1]")
        for mt in range(4):
            fold_sw(mt, 2); fold_sw(mt, 3)
            t = acc(mt, 2); pk4(t, acc(mt, 2), acc(mt, 3))
            st2(a, f"buffer_store_dwordx4 v[{t}:{t+3}], v{vCH}, s[16:19], s30 offen offset:{mt*1024}")
            a(f"ds_write_b128 v{vB2}, v[{t}:{t+3}] offset:{16384 + mt*1024}")
        a("s_waitcnt lgkmcnt(4)")
        for mp in range(2):
            for dt in range(2):
                for mt in (2 * mp, 2 * mp + 1):
                    p = acc(mt, 4 + dt)
                    sel = "op_sel_hi:[1,0,1]"
                    for h in range(2):
                        a(f"v_pk_fma_f32 v[{p+2*h}:{p+2*h+1}], v[{MV+4*mt+2*h}:{MV+4*mt+2*h+1}], v[{CSV+2*dt}:{CSV+2*dt+1}], v[{p+2*h}:{p+2*h+1}] {sel} neg_lo:[1,0,0] neg_hi:[1,0,0]")
                    for h in range(2):
                        a(f"v_pk_mul_f32 v[{p+2*h}:{p+2*h+1}], v[{RV+4*mt+2*h}:{RV+4*mt+2*h+1}], v[{p+2*h}:{p+2*h+1}]")
                t = acc(2 * mp, 4 + dt); pk4(t, acc(2 * mp, 4 + dt), acc(2 * mp + 1, 4 + dt))
                st2(a, f"buffer_store_dwordx4 v[{t}:{t+3}], v{vCH}, s[16:19], s31 offen offset:{(2*mp+dt)*1024}")
                a(f"ds_write_b128 v{vB2}, v[{t}:{t+3}] offset:{24576 + 16384 + (2*mp+dt)*1024}")
        for mt in range(4):
            fold_sw(mt, 0); fold_sw(mt, 1)
            t = acc(mt, 0); pk4(t, acc(mt, 0), acc(mt, 1))
            a(f"ds_write_b128 v{vB2}, v[{t}:{t+3}] offset:{49152 + mt*1024}")
        stamp(a, c.sid + 3)
        signal(a, 0, 2, T, True)
        stamp(a, c.sid + 4)
        a("s_waitcnt lgkmcnt(0)")
    elif kind == "wo":
        srd_off(a, 16, P_WS, H_OFF, 4 * MB)
        a(f"""
        s_lshl_b32 s30, s24, 18
        s_lshl_b32 s31, s25, 14
        s_add_u32 s30, s30, s31
        s_lshl_b32 s31, s35, 13
        s_add_u32 s30, s30, s31
        s_mov_b32 s36, 0xffff0000
        s_waitcnt vmcnt(0) lgkmcnt(0)
        """)
        for mt in range(4):
            for nt in range(2):
                r = RES + mt * 4 + nt * 2; p = acc(mt, nt)
                for d in range(2):
                    a(f"v_lshlrev_b32 v{T}, 16, v{r+d}")
                    a(f"v_and_b32 v{T+1}, s36, v{r+d}")
                    a(f"v_pk_add_f32 v[{p+2*d}:{p+2*d+1}], v[{p+2*d}:{p+2*d+1}], v[{T}:{T+1}]")
            t = HRES + mt * 4
            pk4(t, acc(mt, 0), acc(mt, 1))
            a(f"buffer_store_dwordx4 v[{t}:{t+3}], v{vCH}, s[16:19], s30 offen offset:{mt*1024} sc0 sc1")
        SS = T + 4
        for mt in range(4):
            p0 = acc(mt, 0); p1 = acc(mt, 1)
            s_, q_ = SS + 2 * mt, SS + 2 * mt + 1
            a(f"v_pk_add_f32 v[{T}:{T+1}], v[{p0}:{p0+1}], v[{p0+2}:{p0+3}]")
            a(f"v_pk_mul_f32 v[{T+2}:{T+3}], v[{p0}:{p0+1}], v[{p0}:{p0+1}]")
            a(f"v_pk_add_f32 v[{T}:{T+1}], v[{T}:{T+1}], v[{p1}:{p1+1}]")
            a(f"v_pk_fma_f32 v[{T+2}:{T+3}], v[{p0+2}:{p0+3}], v[{p0+2}:{p0+3}], v[{T+2}:{T+3}]")
            a(f"v_pk_add_f32 v[{T}:{T+1}], v[{T}:{T+1}], v[{p1+2}:{p1+3}]")
            a(f"v_pk_fma_f32 v[{T+2}:{T+3}], v[{p1}:{p1+1}], v[{p1}:{p1+1}], v[{T+2}:{T+3}]")
            a(f"v_pk_fma_f32 v[{T+2}:{T+3}], v[{p1+2}:{p1+3}], v[{p1+2}:{p1+3}], v[{T+2}:{T+3}]")
            a(f"v_add_f32 v{s_}, v{T}, v{T+1}")
            a(f"v_add_f32 v{q_}, v{T+2}, v{T+3}")
        for mt in range(4):
            s_, q_ = SS + 2 * mt, SS + 2 * mt + 1
            a(f"v_permlane32_swap_b32 v{s_}, v{q_}")
            a(f"v_add_f32 v{s_}, v{s_}, v{q_}")
        srd_off(a, 20, P_WS, ST2_OFF, 16 * 32768)
        a(f"""
        v_and_b32 v{t0}, 31, v1
        v_lshlrev_b32 v{t0}, 2, v{t0}
        v_lshrrev_b32 v{t1}, 5, v1
        v_lshl_add_u32 v{t0}, v{t1}, 9, v{t0}
        s_lshl_b32 s30, s24, 15
        s_lshl_b32 s31, s25, 11
        s_add_u32 s30, s30, s31
        s_lshl_b32 s31, s35, 10
        s_add_u32 s30, s30, s31
        s_lshl_b32 s31, s34, 8
        s_add_u32 s30, s30, s31
        """)
        for mp in range(2):
            x0 = SS + 4 * mp; x1 = SS + 4 * mp + 2
            a(f"v_permlane16_swap_b32 v{x0}, v{x1}")
            a(f"v_add_f32 v{x0}, v{x0}, v{x1}")
            a(f"buffer_store_dword v{x0}, v{t0}, s[20:23], s30 offen offset:{mp*128} sc0 sc1")
        stamp(a, c.sid + 3)
        if OPT["wobar"]: a("s_barrier")
        signal(a, 2, 2, T)
        stamp(a, c.sid + 4)
    elif kind == "w1":
        CSR = T; REC = T + 28; E = T + 44
        if not peel:
            for x in sum(epi_setup(), []): a(x)
        a("s_waitcnt lgkmcnt(0)")
        soffs = ["s30", "s31", "s37"]
        def silu(mt, nt, e):
            p = acc(mt, nt); m = REC + 4 * mt; cs = CSR + 4 * nt
            for h in range(2):
                a(f"v_pk_fma_f32 v[{p+2*h}:{p+2*h+1}], v[{m}:{m+1}], v[{cs+2*h}:{cs+2*h+1}], v[{p+2*h}:{p+2*h+1}] op_sel_hi:[0,1,1] neg_lo:[1,0,0] neg_hi:[1,0,0]")
            for h in range(2):
                a(f"v_pk_mul_f32 v[{e+2*h}:{e+2*h+1}], v[{m}:{m+1}], v[{p+2*h}:{p+2*h+1}] op_sel:[1,0] op_sel_hi:[1,1]")
            for r in range(4):
                a(f"v_exp_f32 v{e+r}, v{e+r}")
            for h in range(2):
                a(f"v_pk_fma_f32 v[{e+2*h}:{e+2*h+1}], v[{e+2*h}:{e+2*h+1}], v[{m+2}:{m+3}], v[{m+2}:{m+3}]")
            for r in range(4):
                a(f"v_rcp_f32 v{e+r}, v{e+r}")
            for h in range(2):
                a(f"v_pk_mul_f32 v[{p+2*h}:{p+2*h+1}], v[{p+2*h}:{p+2*h+1}], v[{e+2*h}:{e+2*h+1}]")
        def pair(q, mt):
            silu(mt, 2 * q, E); silu(mt, 2 * q + 1, E + 4)
            p0 = acc(mt, 2 * q)
            pk4(p0, p0, acc(mt, 2 * q + 1))
            a(f"buffer_store_dwordx4 v[{p0}:{p0+3}], v{vCH}, s[16:19], {soffs[q]} offen offset:{mt*1024} sc0 sc1")
        for mt in range(4): pair(0, mt)
        stamp(a, 42)
        for mt in range(4):
            silu(mt, 6, E + (mt % 2) * 4)
            p = acc(mt, 6)
            a(f"v_cvt_pk_bf16_f32 v{p}, v{p}, v{p+1}")
            a(f"v_cvt_pk_bf16_f32 v{p+1}, v{p+2}, v{p+3}")
            a(f"ds_write_b64 v{vB2}, v[{p}:{p+1}] offset:{mt*1024}")
        a("s_waitcnt lgkmcnt(0)")
        stamp(a, 40)
        a("s_barrier")
        stamp(a, 41)
        a(f"""
        s_lshl_b32 s33, s35, 11
        v_add_u32 v{vB2}, s33, v{vCH}
        v_add_u32 v{vB1}, {XCH}, v{vB2}
        ds_read_b128 v[{acc(0,6)}:{acc(0,6)+3}], v{vB1}
        ds_read_b128 v[{acc(1,6)}:{acc(1,6)+3}], v{vB1} offset:1024
        """)
        pair(1, 0)
        a("s_waitcnt lgkmcnt(0)")
        a(f"buffer_store_dwordx4 v[{acc(0,6)}:{acc(0,6)+3}], v{vB2}, s[16:19], s36 offen sc0 sc1")
        a(f"buffer_store_dwordx4 v[{acc(1,6)}:{acc(1,6)+3}], v{vB2}, s[16:19], s36 offen offset:1024 sc0 sc1")
        for mt in range(1, 4): pair(1, mt)
        stamp(a, 43)
        k2 = OPT["sigA2"]
        for mt in range(k2): pair(2, mt)
        signal(a, 0, 2, acc(2, 6), False, 3 + k2, True)
        stamp(a, 45)
        if OPT["bar2"] == 0: a("s_barrier")
        stamp(a, 46)
        for mt in range(k2, 4): pair(2, mt)
        stamp(a, c.sid + 3)
        if OPT["bar2"] == 1: a("s_barrier")
        a("s_mov_b32 s42, s24\ns_mov_b32 s43, s25\ns_mov_b32 s44, s31\ns_mov_b32 s45, s37")
        stamp(a, c.sid + 4)
    elif kind == "w2":
        XR = T + 32
        if c.sk:
            srd_off(a, 20, P_WS, XP_OFF, 8 * MB)
            a(f"""
            s_lshl_b32 s30, s24, 19
            s_lshl_b32 s31, s3, 13
            s_add_u32 s30, s30, s31
            s_lshl_b32 s31, s25, 15
            s_add_u32 s33, s30, s31
            s_xor_b32 s31, s31, {4 << 15}
            s_add_u32 s37, s30, s31
            v_lshlrev_b32 v{vA}, 4, v1
            """)
            for mt in range(4):
                t = acc(mt, 2)
                pk4(t, acc(mt, 2), acc(mt, 3))
                if OPT["sent"]:
                    for i in range(4): a(f"v_min_u32 v{t+i}, -2, v{t+i}")
                a(f"buffer_store_dwordx4 v[{t}:{t+3}], v{vA}, s[20:23], s33 offen offset:{mt*1024} sc0 sc1")
            if not OPT["sent"]: signal(a, 6, 2, T)
            stamp(a, 47)
        srd_off(a, 16, P_OUT, 0, 4 * MB)
        a(f"""
        v_and_b32 v{t0}, 15, v1
        v_lshlrev_b32 v{t0}, 11, v{t0}
        v_and_b32 v{t1}, 1, v{vG}
        v_lshl_add_u32 v{t0}, v{t1}, 5, v{t0}
        v_lshrrev_b32 v{t1}, 1, v{vG}
        v_lshl_add_u32 v{t0}, v{t1}, 4, v{t0}
        s_lshl_b32 s30, s24, 18
        s_lshl_b32 s31, s34, 17
        s_add_u32 s30, s30, s31
        s_lshl_b32 s31, s25, 7
        s_add_u32 s30, s30, s31
        s_lshl_b32 s31, s35, 6
        s_add_u32 s30, s30, s31
        s_mov_b32 s36, 0xffff0000
        """)
        for mt in range(4):
            for nt in range(2):
                r = HRES + mt * 4 + nt * 2; p = acc(mt, nt)
                for d in range(2):
                    a(f"v_lshlrev_b32 v{T+16}, 16, v{r+d}")
                    a(f"v_and_b32 v{T+17}, s36, v{r+d}")
                    a(f"v_pk_add_f32 v[{p+2*d}:{p+2*d+1}], v[{p+2*d}:{p+2*d+1}], v[{T+16}:{T+17}]")
        if c.sk and OPT["sent"]:
            lp = a.label("xpoll"); dn = a.label("skip_xp")
            a("s_mov_b32 s39, 0x200000")
            a(f"{lp}:")
            for mt in range(4):
                a(f"buffer_load_dwordx4 v[{XR+4*mt}:{XR+4*mt+3}], v{vA}, s[20:23], s37 offen offset:{mt*1024} sc0 sc1")
            for mt in range(4):
                r = XR + 4 * mt
                a(f"s_waitcnt vmcnt({3-mt})")
                if mt == 0: a(f"v_max_u32 v{T+4}, v{r}, v{r+1}")
                else: a(f"v_max3_u32 v{T+4}, v{r}, v{r+1}, v{T+4}")
                a(f"v_max3_u32 v{T+4}, v{r+2}, v{r+3}, v{T+4}")
            a(f"""
            v_cmp_eq_u32 vcc, -1, v{T+4}
            s_nop 3
            s_cmp_eq_u64 vcc, 0
            s_cbranch_scc1 {dn}
            s_sub_u32 s39, s39, 1
            s_cbranch_scc0 {lp}
            {dn}:
            """)
            stamp(a, 48)
        elif c.sk:
            lp = a.label("xpoll"); dn = a.label("skip_xp")
            a(f"""
            s_xor_b32 s40, s40, {4 << 5}
            s_mov_b32 s39, 0x200000
            {lp}:
            buffer_load_dwordx2 v[{T+4}:{T+5}], v{T+2}, s[{FLS}:{FLS+3}], s40 offen sc0 sc1
            s_waitcnt vmcnt(0)
            v_cmp_eq_u64 vcc, s[{TAG}:{TAG+1}], v[{T+4}:{T+5}]
            s_nop 3
            s_cmp_eq_u64 vcc, -1
            s_cbranch_scc1 {dn}
            s_sub_u32 s39, s39, 1
            s_cbranch_scc0 {lp}
            {dn}:
            """)
            stamp(a, 48)
            for mt in range(4):
                a(f"buffer_load_dwordx4 v[{XR+4*mt}:{XR+4*mt+3}], v{vA}, s[20:23], s37 offen offset:{mt*1024} sc0 sc1")
        for mt in range(4):
            if c.sk:
                if not OPT["sent"]: a(f"s_waitcnt vmcnt(3)")
                for nt in range(2):
                    r = XR + mt * 4 + nt * 2; p = acc(mt, nt)
                    for d in range(2):
                        a(f"v_lshlrev_b32 v{T+16}, 16, v{r+d}")
                        a(f"v_and_b32 v{T+17}, s36, v{r+d}")
                        a(f"v_pk_add_f32 v[{p+2*d}:{p+2*d+1}], v[{p+2*d}:{p+2*d+1}], v[{T+16}:{T+17}]")
            t = T + mt * 4
            pk4(t, acc(mt, 0), acc(mt, 1))
            a(f"v_permlane16_swap_b32 v{t}, v{t+2}")
            a(f"v_permlane16_swap_b32 v{t+1}, v{t+3}")
            a(f"buffer_store_dwordx4 v[{t}:{t+3}], v{t0}, s[16:19], s30 offen{['', ' sc0 sc1', ' nt', ' sc1'][OPT['osf']]}")
            a("s_add_u32 s30, s30, 32768")
        stamp(a, c.sid + 3)
        if DIAG:
            a("s_waitcnt vmcnt(0)")
            stamp(a, c.sid + 4)

PV_A = 4
PV_B = 8
PV_SA = 16
PV_SB = 18
PV_RD = 32
PV_ACC = 80

def prod_setup(a, c):
    n = c.n
    wgmap(a, c.RX, c.CX)
    if c.a_off is None:
        a("s_lshl_b32 s30, s24, 18")
        srd_off(a, 8, P_X, "s30", 262144)
        for i in range(4):
            a(f"""
            v_lshrrev_b32 v2, 3, v1
            v_lshrrev_b32 v3, 4, v1
            v_add_u32 v3, {4*(i&1)}, v3
            v_and_b32 v{PV_A+i}, 7, v1
            v_xor_b32 v3, v3, v{PV_A+i}
            v_lshlrev_b32 v3, 4, v3
            v_lshl_add_u32 v3, v2, 11, v3
            s_lshl_b32 s30, s38, 16
            s_add_u32 s30, s30, {i*8*2048 - i*1024}
            v_add_u32 v{PV_A+i}, s30, v3
            """)
        c.astep = 128
    else:
        a(f"s_mul_i32 s30, s24, {c.K*256}")
        a(f"s_add_u32 s30, s30, {c.a_off}")
        srd_off(a, 8, P_WS, "s30", c.K * 256)
        a(f"""
        {"s_lshr_b32 s30, s38, 1" if c.sk else f"s_and_b32 s30, s38, {1 if c.kind == 'w2' else 3}"}
        s_lshl_b32 s30, s30, 12
        v_lshlrev_b32 v{PV_A}, 4, v1
        v_add_u32 v{PV_A}, s30, v{PV_A}
        """)
        c.astep = 16384
        if c.kind == "w2":
            a(f"""
            {"s_and_b32 s30, s38, 1" if c.sk else "s_lshr_b32 s30, s38, 1"}
            s_mul_i32 s63, s30, {4*8192}
            s_mul_i32 s64, s30, {7*8192}
            """)
    c.bstep = 64 * c.ldb
    CT = 16 // c.CX
    a(f"""
    s_and_b32 s65, s25, {CT-1}
    s_mul_i32 s65, s65, {(16 // CT) if c.rot else 0}
    """)
    if c.rot == 2: a(f"s_mov_b32 s65, {OPT['rot0']}")
    if c.sk: a("s_and_b32 s65, s25, 4\ns_lshl_b32 s65, s65, 1")
    a(f"""
    s_lshl_b32 s34, s38, 12
    s_mul_i32 s35, s38, {c.NBW*1024}
    """)
    if c.sk:
        a("""
        s_and_b32 s34, s38, 1
        s_lshl_b32 s34, s34, 13
        s_lshr_b32 s30, s38, 1
        s_lshl_b32 s30, s30, 12
        s_add_u32 s34, s34, s30
        """)
    if c.kind == "w2": a(f"s_mul_i32 s66, s65, {7*8192}")
    if not c.early: b_setup(a, c, PV_B, 12)
    a(f"""
    s_mov_b32 s27, {c.ABASE}
    s_mov_b32 s32, {c.BBASE}
    s_mul_i32 s28, s65, {c.astep}
    s_mul_i32 s29, s65, {c.bstep}
    """)

def b_setup(a, c, dst, sr_):
    if c.sk:
        a("s_andn2_b32 s30, s25, 4")
        a(f"s_mul_i32 s30, s30, {c.bcol}")
    else:
        a(f"s_mul_i32 s30, s25, {c.bcol}")
    a(f"s_sub_u32 s31, {c.K*c.ldb}, s30")
    srd_off(a, sr_, c.wp, "s30", "s31")
    a(f"""
    s_mul_i32 s30, s38, {c.NBW*64}
    s_mov_b32 s36, {c.ldb}
    """)
    for i in range(c.NBW):
        a(f"s_add_u32 s31, s30, {i*64}")
        a(f"v_add_u32 v3, s31, v1")
        d = dst + i
        if c.layout == "panel":
            a("v_bfe_u32 v2, v3, 3, 6")
            if c.korder == "F":
                a(f"v_bfe_u32 v{d}, v2, 1, 2")
            else:
                a(f"v_bfe_u32 v{d}, v2, 1, 1")
                a("v_bfe_u32 v15, v2, 3, 1")
                a(f"v_lshl_or_b32 v{d}, v15, 1, v{d}")
            a(f"""
            v_lshlrev_b32 v{d}, 1, v{d}
            v_and_b32 v15, 7, v3
            v_xor_b32 v{d}, v{d}, v15
            v_and_b32 v2, {31 if c.kind == "w2" else 63}, v2
            v_mul_lo_u32 v2, v2, s36
            v_lshl_add_u32 v{d}, v{d}, 4, v2
            """)
            if c.pstride:
                a(f"""
                v_lshrrev_b32 v3, 9, v3
                {"s_bfe_u32 s31, s25, 0x10002" if c.sk else ""}
                {"v_xor_b32 v3, s31, v3" if c.sk else ""}
                v_mul_u32_u24 v3, {c.pstride}, v3
                v_add_u32 v{d}, v{d}, v3
                """)
        else:
            a(f"""
            v_mul_u32_u24 v2, 2341, v3
            v_lshrrev_b32 v2, 16, v2
            v_mul_u32_u24 v15, 28, v2
            v_sub_u32 v3, v3, v15
            v_bfe_u32 v15, v2, 2, 1
            v_lshlrev_b32 v15, 1, v15
            v_xor_b32 v3, v3, v15
            v_mul_lo_u32 v2, v2, s36
            v_lshl_add_u32 v{d}, v3, 4, v2
            """)
        if i & 3: a(f"v_subrev_u32 v{d}, {(i&3)*1024}, v{d}")

def issueA(a, c, slot=None, adv=True):
    if slot is None: a("s_add_u32 m0, s27, s34")
    else: a(f"s_add_u32 m0, s34, {c.ABASE + slot*16384}")
    for i in range(4):
        v = PV_A + (i if c.a_off is None else 0)
        a(f"buffer_load_dwordx4 v{v}, s[8:11], s28 offen offset:{i*1024}{'' if c.a_off is None else ' sc1'} lds")
    if adv:
        a(f"s_add_u32 s28, s28, {c.astep}")
        if c.rot: a(f"s_and_b32 s28, s28, {16*c.astep - 1}")
    if slot is None:
        a(f"""
        s_add_u32 s27, s27, 16384
        s_cmp_eq_u32 s27, {c.ABASE + c.S*16384}
        s_cselect_b32 s27, {c.ABASE}, s27
        """)

def issueB(a, c, slot=None, adv=True):
    for i in range(c.NBW):
        if i % 4 == 0:
            if slot is None:
                a(f"s_add_u32 m0, s32, {c.s35}")
                if i: a(f"s_add_u32 m0, m0, {i*1024}")
            else:
                a(f"s_add_u32 m0, {c.s35}, {c.BBASE + slot*c.BB + i*1024}")
        a(f"buffer_load_dwordx4 v{c.pvb+i}, s[{c.sb}:{c.sb+3}], s29 offen offset:{(i&3)*1024}{' nt' if (c.kind == 'qkv' and OPT['qnt'] >= 2) else ''} lds")
    if adv:
        a(f"s_add_u32 s29, s29, {c.bstep}")
        if c.rot:
            a(f"s_cmp_eq_u32 s29, {16*c.bstep}")
            a("s_cselect_b32 s29, 0, s29")
    if slot is None:
        a(f"""
        s_add_u32 s32, s32, {c.BB}
        s_cmp_eq_u32 s32, {c.BBASE + c.S*c.BB}
        s_cselect_b32 s32, {c.BBASE}, s32
        """)

PV_POLL = 28
def poll_once(a, wide):
    t = PV_POLL
    if wide: a(f"buffer_load_dwordx4 v[{t}:{t+3}], v26, s[{FLS}:{FLS+3}], s33 offen sc0 sc1")
    else: a(f"buffer_load_dwordx2 v[{t}:{t+1}], v26, s[{FLS}:{FLS+3}], s33 offen sc0 sc1")
    a("s_waitcnt vmcnt(0)")
    a(f"v_cmp_eq_u64 s[56:57], s[{TAG}:{TAG+1}], v[{t}:{t+1}]")
    if wide:
        a(f"v_cmp_eq_u64 s[58:59], s[{TAG}:{TAG+1}], v[{t+2}:{t+3}]")
        a("s_nop 3")
        a("s_and_b64 s[56:57], s[56:57], s[58:59]")
    else:
        a("s_nop 3")

def gate(a, t, wide):
    lp = a.label("gate"); ok = a.label("skip_gate")
    a(f"{lp}:")
    if t == "all":
        a("s_cmp_eq_u32 s56, -1" if OPT["sk"] else "s_cmp_eq_u64 s[56:57], -1")
    else:
        a(f"s_bfe_u32 s30, s{56 + t // 8}, {hex((4 << 16) | (4 * (t % 8)))}")
        a("s_cmp_eq_u32 s30, 15")
    a(f"s_cbranch_scc1 {ok}")
    poll_once(a, wide)
    a("""
    s_sub_u32 s39, s39, 1
    s_cselect_b64 s[58:59], -1, 0
    s_cselect_b32 s39, 0, s39
    s_or_b64 s[56:57], s[56:57], s[58:59]
    """)
    a(f"s_branch {lp}")
    a(f"{ok}:")

def gate_setup(a, seam_id, wide):
    a(f"""
    s_lshl_b32 s30, s65, 2
    v_add_u32 v26, s30, v1
    v_and_b32 v26, 63, v26
    v_lshlrev_b32 v26, {4 if wide else 3}, v26
    s_lshl_b32 s33, s24, 10
    s_add_u32 s33, s33, {seam_id*16384}
    s_mov_b64 s[56:57], 0
    s_mov_b32 s39, 0x200000
    """)

def colsum_tile(a, c, lds_base, wsg, which, R, part=None):
    AD = R; ACCU = R + 4; D = R + 8; t = R + 40
    if part in (None, 0):
        a(f"""
        v_lshrrev_b32 v{t}, 4, v1
        v_bfe_u32 v{t+1}, v1, 2, 2
        v_mul_u32_u24 v{t+2}, {c.gmul}, v{t}
        v_add_u32 v{t+2}, v{t+2}, v{t+1}
        v_mul_u32_u24 v{t+2}, {c.RS}, v{t+2}
        v_and_b32 v{t+3}, 3, v1
        v_lshl_add_u32 v{t+2}, v{t+3}, 3, v{t+2}
        v_and_b32 v{t}, 1, v{t}
        s_lshl_b32 s71, {wsg}, {13 if c.layout == "panel" else 7}
        s_add_u32 s71, s71, {lds_base}
        v_add_u32 v{t+2}, s71, v{t+2}
        """)
        if c.layout == "panel":
            a(f"v_lshrrev_b32 v{t+1}, 1, v{t+1}")
            a(f"v_lshl_or_b32 v{t}, v{t}, 1, v{t+1}")
        for ts in range(4):
            a(f"v_xor_b32 v{t+3}, {ts}, v{t}")
            a(f"v_lshl_add_u32 v{AD+ts}, v{t+3}, 5, v{t+2}")
        for q in range(4):
            for ts in range(4):
                d = D + (q * 4 + ts) * 2
                a(f"ds_read_b64_tr_b16 v[{d}:{d+1}], v{AD+ts} offset:{((q>>1)*32 + (q&1)*c.rdrows) * c.RS}")
        for ts in range(4): a(f"v_mov_b32 v{ACCU+ts}, 0")
        srd_off(a, 16, P_WS, CSG_OFF + which * 524288, 524288)
        a(f"""
        s_mov_b32 s75, 0x3f803f80
        v_lshlrev_b32 v{t}, 3, v1
        """)
        if c.kind == "qkv" and OPT["dil"]:
            a(f"""
            s_lshl_b32 s71, s24, 15
            s_mul_i32 s31, s25, 1536
            s_add_u32 s71, s71, s31
            s_lshl_b32 s31, {wsg}, 9
            s_add_u32 s71, s71, s31
            s_cmp_eq_u32 {wsg}, 3
            s_cselect_b32 s71, 0x40000000, s71
            """)
        else:
            a(f"""
            s_lshl_b32 s71, s25, 15
            s_lshl_b32 s31, s24, 11
            s_add_u32 s71, s71, s31
            s_lshl_b32 s31, {wsg}, 9
            s_add_u32 s71, s71, s31
            """)
    for q in range(4):
        if part not in (None, 1 + q // 2): continue
        if part is None or q == 0: a(f"s_waitcnt lgkmcnt({12-4*q if part is None else 0})")
        for d in range(2):
            for ts in range(4):
                a(f"v_dot2c_f32_bf16 v{ACCU+ts}, s75, v{D+(q*4+ts)*2+d}")
    if part in (None, 3):
        t0, t1, t2, t3 = ACCU, ACCU + 1, ACCU + 2, ACCU + 3
        a(f"""
        v_permlane32_swap_b32 v{t0}, v{t2}
        v_permlane32_swap_b32 v{t1}, v{t3}
        v_add_f32 v{t0}, v{t0}, v{t2}
        v_add_f32 v{t1}, v{t1}, v{t3}
        v_permlane16_swap_b32 v{t0}, v{t1}
        v_add_f32 v{t0}, v{t0}, v{t1}
        v_mov_b32 v{t1}, s{TAG}
        """)
        if c.kind == "qkv":
            sk = a.label("skip_xi")
            a(f"""
            s_cmp_lg_u32 {wsg}, 3
            s_cbranch_scc1 {sk}
            v_cmp_eq_u32 vcc, s74, v1
            v_cndmask_b32 v{t0}, 0, 1.0, vcc
            {sk}:
            """)
        a(f"buffer_store_dwordx2 v[{t0}:{t1}], v{t}, s[16:19], s71 offen sc0 sc1")

G_CS = 32
G_RS = 64
def gather_cs_setup(a, c):
    which = 0 if c.kind == "qkv" else 1
    srd_off(a, 16, P_WS, CSG_OFF + which * 524288, 524288)
    if c.kind == "qkv" and OPT["dil"]:
        a(f"""
        s_min_u32 s31, s38, 2
        s_lshl_b32 s60, s31, 13
        s_lshl_b32 s31, s25, 9
        s_add_u32 s60, s60, s31
        s_mov_b32 s67, 32768
        """)
    else:
        a(f"""
        s_lshl_b32 s60, s25, 15
        s_lshl_b32 s31, s38, 9
        s_add_u32 s60, s60, s31
        s_mov_b32 s67, 2048
        """)
    a("v_lshlrev_b32 v24, 3, v1")
    return 0
def gather_cs(a, r0, r1):
    for r in range(r0, r1):
        a(f"buffer_load_dwordx2 v[{G_CS+2*r}:{G_CS+2*r+1}], v24, s[16:19], s60 offen sc0 sc1")
        a("s_add_u32 s60, s60, s67")
    return r1 - r0
def gather_rs_setup(a, c):
    if c.kind == "qkv":
        srd_off(a, 20, P_WS, RS1_OFF, 32768)
        a(f"""
        v_and_b32 v25, 31, v1
        v_lshlrev_b32 v25, 4, v25
        s_lshl_b32 s61, s24, 11
        s_lshl_b32 s31, s38, 9
        s_add_u32 s61, s61, s31
        """)
    else:
        srd_off(a, 20, P_WS, ST2_OFF, 16 * 32768)
        a(f"""
        v_and_b32 v25, 31, v1
        v_lshlrev_b32 v25, 2, v25
        v_lshrrev_b32 v15, 5, v1
        v_lshl_add_u32 v25, v15, 9, v25
        s_lshl_b32 s61, s24, 15
        s_lshl_b32 s31, s38, 7
        s_add_u32 s61, s61, s31
        """)
    return 0
def gather_rs(a, c, p0=0, p1=32):
    if c.kind == "qkv":
        a(f"buffer_load_dwordx4 v[{G_RS}:{G_RS+3}], v25, s[20:23], s61 offen sc0 sc1")
        return 1
    a(f"s_add_u32 s30, s65, {p0 // 2}")
    a("s_and_b32 s30, s30, 15")
    a("s_lshl_b32 s30, s30, 11")
    a("s_add_u32 s30, s30, s61")
    for p in range(p0, p1):
        a(f"buffer_load_dword v{G_RS+p}, v25, s[20:23], s30 offen offset:{(p&1)*1024} sc0 sc1")
    return p1 - p0

def gather_finish_cs(a, c):
    lp = a.label("gchk"); ok = a.label("skip_gok")
    a("s_mov_b32 s62, 0x40000")
    a(f"{lp}:")
    a(f"v_xor_b32 v15, s{TAG}, v{G_CS+1}")
    for r in range(1, 16):
        a(f"v_xor_b32 v27, s{TAG}, v{G_CS+2*r+1}")
        a("v_or_b32 v15, v15, v27")
    if c.kind == "qkv":
        a(f"v_xor_b32 v27, s{TAG}, v{G_RS+2}")
        a("v_or_b32 v15, v15, v27")
        a(f"v_xor_b32 v27, s{TAG+1}, v{G_RS+3}")
        a("v_or_b32 v15, v15, v27")
    a(f"""
    v_cmp_ne_u32 vcc, 0, v15
    s_nop 3
    s_cmp_eq_u64 vcc, 0
    s_cbranch_scc1 {ok}
    s_sub_u32 s62, s62, 1
    s_cbranch_scc1 {ok}
    s_sleep 2
    """)
    gather_cs_setup(a, c); gather_cs(a, 0, 16)
    if c.kind == "qkv": gather_rs(a, c)
    a("s_waitcnt vmcnt(0)")
    a(f"s_branch {lp}")
    a(f"{ok}:")
    for r in range(1, 16): a(f"v_add_f32 v{G_CS}, v{G_CS}, v{G_CS+2*r}")
    a(f"""
    v_lshlrev_b32 v2, 2, v1
    s_lshl_b32 s30, s38, 8
    s_add_u32 s30, s30, {ST_CS}
    v_add_u32 v2, s30, v2
    ds_write_b32 v2, v{G_CS}
    """)
    return 0

def gather_finish_rs(a, c):
    a(f"""
    v_and_b32 v3, 31, v1
    s_lshl_b32 s30, s38, 5
    v_add_u32 v3, s30, v3
    v_lshlrev_b32 v2, 4, v3
    v_add_u32 v2, {ST_REC}, v2
    """)
    R = G_RS
    if c.kind == "qkv":
        a(f"""
        v_lshlrev_b32 v3, 2, v3
        v_add_u32 v3, {ST_MEAN}, v3
        ds_write_b128 v2, v[{R}:{R+3}]
        ds_write_b32 v3, v{R}
        ds_write_b32 v3, v{R+1} offset:512
        """)
    else:
        a(f"""
        v_mov_b32 v{R+1}, v{R}
        v_permlane32_swap_b32 v{R}, v{R+1}
        v_mul_f32 v{R}, {f32(1.0/1024)}, v{R}
        v_mul_f32 v{R+1}, {f32(1.0/1024)}, v{R+1}
        v_fma_f32 v{R+1}, -v{R}, v{R}, v{R+1}
        v_max_f32 v{R+1}, 0, v{R+1}
        v_add_f32 v{R+4}, {f32(1e-5)}, v{R+1}
        v_rsq_f32 v{R+1}, v{R+4}
        v_sqrt_f32 v{R+3}, v{R+4}
        v_sqrt_f32 v{R+2}, v{R+4}
        v_mul_f32 v{R+1}, {f32(-LOG2E)}, v{R+1}
        ds_write_b128 v2, v[{R}:{R+3}]
        """)
    a("s_waitcnt lgkmcnt(0)")
    return 0

def row_stats_issue(a, X):
    srd_off(a, 20, P_X, 0, 4 * MB)
    srd_off(a, 16, P_DBG, 0, 256)
    a(f"""
    s_lshl_b32 s30, s24, 7
    s_lshl_b32 s31, s25, 3
    s_add_u32 s30, s30, s31
    s_lshl_b32 s31, s3, 1
    s_add_u32 s33, s30, s31
    s_lshl_b32 s30, s33, 11
    v_lshlrev_b32 v{X+18}, 4, v1
    v_mov_b32 v{X+19}, 0
    """)
    for i in range(4):
        a(f"buffer_load_dwordx4 v[{X+4*i}:{X+4*i+3}], v{X+18}, s[20:23], s30 offen offset:{i*1024}")

def row_stats_finish(a, X, T):
    s0, q0, s1, q1 = T, T + 1, T + 2, T + 3
    a(f"buffer_load_dwordx2 v[{X+16}:{X+17}], v{X+19}, s[16:19], 0 offen sc0 sc1")
    a("s_mov_b32 s75, 0x3f803f80")
    for i in range(4): a(f"v_mov_b32 v{T+i}, 0")
    a("s_waitcnt vmcnt(1)")
    for d in range(8):
        for row in range(2):
            r = X + 8 * row + d
            a(f"v_dot2c_f32_bf16 v{T+2*row}, s75, v{r}")
            a(f"v_dot2c_f32_bf16 v{T+2*row+1}, v{r}, v{r}")
    a(f"""
    v_permlane32_swap_b32 v{s0}, v{q0}
    v_permlane32_swap_b32 v{s1}, v{q1}
    v_add_f32 v{s0}, v{s0}, v{q0}
    v_add_f32 v{s1}, v{s1}, v{q1}
    v_permlane16_swap_b32 v{s0}, v{s1}
    v_add_f32 v{s0}, v{s0}, v{s1}
    v_add_f32_dpp v{s0}, v{s0}, v{s0} quad_perm:[1,0,3,2] row_mask:0xf bank_mask:0xf
    v_add_f32_dpp v{s0}, v{s0}, v{s0} quad_perm:[2,3,0,1] row_mask:0xf bank_mask:0xf
    v_add_f32_dpp v{s0}, v{s0}, v{s0} row_half_mirror row_mask:0xf bank_mask:0xf
    v_add_f32_dpp v{s0}, v{s0}, v{s0} row_mirror row_mask:0xf bank_mask:0xf
    v_mov_b32 v{q0}, v{s0}
    v_permlane32_swap_b32 v{s0}, v{q0}
    v_mul_f32 v{s0}, {f32(1.0/1024)}, v{s0}
    v_mul_f32 v{q0}, {f32(1.0/1024)}, v{q0}
    v_fma_f32 v{q0}, -v{s0}, v{s0}, v{q0}
    v_max_f32 v{q0}, 0, v{q0}
    v_add_f32 v{q0}, {f32(1e-5)}, v{q0}
    v_rsq_f32 v{q0}, v{q0}
    """)
    lp = a.label("tagp"); dn = a.label("tagd")
    a(f"""
    s_mov_b32 s39, 0x100000
    {lp}:
    s_waitcnt vmcnt(0)
    v_readfirstlane_b32 s{TAG}, v{X+16}
    v_readfirstlane_b32 s{TAG+1}, v{X+17}
    s_nop 3
    s_cmp_lg_u32 s{TAG}, 0
    s_cbranch_scc1 {dn}
    s_sleep 1
    buffer_load_dwordx2 v[{X+16}:{X+17}], v{X+19}, s[16:19], 0 offen sc0 sc1
    s_sub_u32 s39, s39, 1
    s_cmp_lg_u32 s39, 0
    s_cbranch_scc1 {lp}
    {dn}:
    """)
    srd_off(a, 20, P_WS, RS1_OFF, 32768)
    a(f"""
    v_mov_b32 v{s1}, s{TAG}
    v_mov_b32 v{q1}, s{TAG+1}
    v_and_b32 v{T+4}, 16, v1
    s_lshl_b32 s30, s33, 4
    v_mov_b32 v{T+5}, {ST_TAG}
    s_mov_b64 exec, 0x10001
    buffer_store_dwordx4 v[{T}:{T+3}], v{T+4}, s[20:23], s30 offen sc0 sc1
    ds_write_b64 v{T+5}, v[{s1}:{q1}]
    s_mov_b64 exec, -1
    s_waitcnt lgkmcnt(0)
    """)

def w2_kg(t):
    if OPT["sk"]:
        if t < 8: return 7 * t, 4
        if t < 12: return 14 * (t - 8) + 3, 7
        if t < 20: return 7 * (t - 12) + 1, 4
        return 7 * (t - 20) + 2, 4
    if t < 16: return 7 * t, 4
    if t < 24: return 14 * (t - 16) + 3, 7
    if t < 40: return 7 * (t - 24) + 1, 4
    return 7 * (t - 40) + 2, 4

def set_soff(a, c, st, A=True, B=True):
    if c.kind != "w2": return
    base, dh = w2_kg(st)
    off = base % 7
    hs = "s63" if dh == 4 else "s64"
    a(f"s_add_u32 s30, s66, {(base - off)*8192}")
    a(f"s_sub_u32 s31, s30, {112*8192}")
    a("s_cselect_b32 s30, s30, s31")
    a(f"s_add_u32 s30, s30, {hs}")
    if A: a(f"s_add_u32 s28, s30, {off*8192}")
    if B:
        a(f"s_add_u32 s29, s30, {off*8192}")
        a("s_lshl_b32 s29, s29, 3")

def w2_early_setup(a, c):
    a(f"""
    s_mul_i32 s41, s38, {c.NBW*1024}
    s_and_b32 s30, s38, 1
    s_mul_i32 s63, s30, {4*8192}
    s_mul_i32 s64, s30, {7*8192}
    s_and_b32 s30, s25, 4
    s_mul_i32 s66, s30, {14*8192}
    """)
    c.bstep = 64 * c.ldb
    b_setup(a, c, c.pvb, c.sb)

def pre_B(a, c, st0=0, st1=None):
    for st in range(st0, c.S if st1 is None else st1):
        set_soff(a, c, st, A=False)
        issueB(a, c, st % c.S, c.kind != "w2")
    return (( c.S if st1 is None else st1) - st0) * c.NBW

def gemm_producer(a, c, preB, gated=None, side=None, after_issue=None, unroll_to=None):
    n = c.n; S = c.S; L = 4 + c.NBW
    side = side or {}
    U = n if unroll_to is None else unroll_to
    ops = []
    w2 = c.kind == "w2"
    def iss(st):
        if gated and st < (8 if c.sk else 16): gate(a, st, gated == "wide")
        if st == 0: stamp(a, c.sid)
        doB = not (preB and st < S)
        set_soff(a, c, st, True, doB)
        issueA(a, c, st % S, not w2); ops.extend([st] * 4)
        if doB:
            issueB(a, c, st % S, not w2); ops.extend([st] * c.NBW)
        if after_issue: ops.extend([st] * after_issue(st))
    def wait(st):
        last = max(i for i, x in enumerate(ops) if x <= st)
        a(f"s_waitcnt vmcnt({min(63, len(ops) - 1 - last)})")
    def run_side(j, tag):
        for f in side.get(j, []): ops.extend([tag] * (f() or 0))
    if DIAG and OPT['steps']: a('s_mov_b32 s99, 0\nv_mov_b32 v252, 0')
    iss(0); issued = 1
    if not (c.kind == "qkv" and OPT["early0"]):
        run_side(-1, 1)
        iss(1); issued = 2
    wait(0)
    stamp(a, c.sid + 1)
    pbar(a)
    j = 0
    while j < n:
        allowed = j - 1 + S
        if issued >= U and issued < n: break
        cnt = 0
        if c.kind == "qkv" and OPT["early0"] == 1 and j == 0: run_side(-1, 1)
        while issued <= allowed and cnt < 2 and issued < U:
            if c.kind == "qkv" and OPT["early0"] == 2 and issued == 2: run_side(-1, 2)
            iss(issued); issued += 1; cnt += 1
        run_side(j, max(issued - 1, j + 2))
        j += 1
        if j < n: wait(j)
        pbar(a)
    if j < n:
        assert issued == j - 1 + S
        a(f"s_mov_b32 s27, {c.ABASE + (issued % S)*16384}")
        a(f"s_mov_b32 s32, {c.BBASE + (issued % S)*c.BB}")
        for (t0, t1, stride) in c.rounds:
            if t0 == c.gate_all_at:
                a(f"s_waitcnt vmcnt({(c.gate_all_at - c.prepoll_at) * L})")
                a(f"v_cmp_eq_u64 s[56:57], s[{TAG}:{TAG+1}], v[{PV_POLL}:{PV_POLL+1}]")
                a("s_nop 3")
                gate(a, "all", False)
            if t0 == c.prepoll_at:
                gate_setup(a, c.seamB, False)
                a(f"buffer_load_dwordx2 v[{PV_POLL}:{PV_POLL+1}], v26, s[{FLS}:{FLS+3}], s33 offen sc0 sc1")
            if t0 in c.round_hook: c.round_hook[t0]()
            lp = a.label("p_loop")
            set_soff(a, c, t0, True, False)
            a(f"s_mov_b32 s26, {t1 - t0}")
            a(f"{lp}:")
            a("s_lshl_b32 s29, s28, 3")
            issueA(a, c, None, False); issueB(a, c, None, False)
            a(f"s_add_u32 s28, s28, {stride*8192}")
            a(f"s_sub_u32 s31, s28, {112*8192}")
            a("s_cselect_b32 s28, s28, s31")
            a(f"s_waitcnt vmcnt({(S-2)*L})")
            if DIAG and OPT["steps"]:
                pbar(a)
                a(f"s_sub_u32 s26, s26, 1\ns_cmp_lg_u32 s26, 0\ns_cbranch_scc1 {lp}")
            else:
                a(f"s_sub_u32 s26, s26, 1\ns_cmp_lg_u32 s26, 0\ns_barrier\ns_cbranch_scc1 {lp}")
        j = n - S + 1
        stamp(a, c.sid + 2)
        while j < n:
            j += 1
            if j < n: a(f"s_waitcnt vmcnt({(n-1-j)*L})")
            pbar(a)
    stamp(a, c.sid + 3)
    pbar_flush(a, {'qkv':0,'wo':1,'w1':2,'w2':3}[c.kind])

def touch(a, ptr, total_bytes, sr_=20):
    nl = total_bytes // 128 // 1024
    srd_off(a, sr_, ptr, 0, total_bytes)
    a(f"""
    s_lshl_b32 s30, s2, 2
    s_add_u32 s30, s30, s38
    s_mul_i32 s30, s30, {nl*128}
    v_lshlrev_b32 v2, 7, v1
    s_mov_b32 exec_lo, {hex(((1 << nl) - 1) & 0xffffffff)}
    s_mov_b32 exec_hi, {hex(((1 << nl) - 1) >> 32)}
    buffer_load_dword v253, v2, s[{sr_}:{sr_+3}], s30 offen
    s_mov_b64 exec, -1
    """)
    return 1

def xtouch_setup(a, ptr, nbytes, sr_, vreg):
    srd_off(a, sr_, ptr, 0, nbytes)
    a(f"""
    v_lshrrev_b32 v2, 2, v1
    v_lshlrev_b32 v2, 11, v2
    v_and_b32 v3, 3, v1
    v_lshl_add_u32 v2, v3, 7, v2
    s_and_b32 s30, s2, 3
    s_lshl_b32 s30, s30, 9
    s_lshl_b32 s31, s38, 14
    s_add_u32 s30, s30, s31
    v_add_u32 v2, s30, v2
    v_mov_b32 v3, 0x40000000
    v_cmp_gt_u32 vcc, 32, v1
    v_cndmask_b32 v{vreg}, v3, v2, vcc
    """)

def w2_xtouch(a, q):
    a(f"""
    s_lshr_b32 s30, s2, 4
    s_mul_i32 s30, s30, {7*65536}
    s_bfe_u32 s31, s2, 0x10003
    s_mul_i32 s31, s31, {4*65536 if q < 3 else 0x20000000}
    s_add_u32 s30, s30, s31
    s_add_u32 s30, s30, {q*65536}
    buffer_load_dword v253, v23, s[44:47], s30 offen
    """)
    return 1

def attention_v1(a):
    SC = (32 ** -0.5) * LOG2E
    vF, vL, vQH = 2, 4, 5
    Q = 8; O = 16; SB = 32; F = 176; T = 248
    a(f"""
    v_bfe_u32 v6, v1, 4, 1
    v_lshlrev_b32 v{vF}, 10, v6
    v_lshrrev_b32 v6, 5, v1
    v_lshl_add_u32 v{vF}, v6, 8, v{vF}
    v_and_b32 v7, 15, v1
    v_lshl_add_u32 v{vF}, v7, 4, v{vF}
    v_and_b32 v7, 31, v1
    v_lshlrev_b32 v6, 2, v6
    v_sub_u32 v{vQH}, v7, v6
    s_lshr_b32 s34, s3, 2            ; hh
    s_and_b32 s35, s3, 3             ; qb
    s_mul_i32 s30, s34, {HEADW}
    s_lshl_b32 s31, s35, 11
    s_add_u32 s30, s30, s31
    v_add_u32 v{vL}, s30, v{vF}
    ds_read_b128 v[{Q}:{Q+3}], v{vL} offset:49152
    ds_read_b128 v[{Q+4}:{Q+7}], v{vL} offset:{49152+512}
    """)
    def fr(b, i): return F + b * 8 + i * 4
    rd = []
    for b in range(9):
        for i in range(2):
            rd.append(f"ds_read_b128 v[{fr(b,i)}:{fr(b,i)+3}], v{vL} offset:{b*2048 + i*512}")
    for x in rd[:8]: a(x)
    for r in range(16):
        cst = 8 * (r >> 2) + (r & 3)
        a(f"v_cmp_gt_i32 s[{40+2*r}:{41+2*r}], {cst}, v{vQH}")
    nissued = 8
    rv = []
    for b in range(9):
        for i in range(2):
            rv.append(f"ds_read_b128 v[{fr(b,i)}:{fr(b,i)+3}], v{vL} offset:{24576 + b*2048 + i*512}")
    for b in range(9):
        a(f"s_waitcnt lgkmcnt({nissued - (2*b+2)})")
        s = SB + 16 * b
        a(f"v_mfma_f32_32x32x16_bf16 v[{s}:{s+15}], v[{fr(b,0)}:{fr(b,0)+3}], v[{Q}:{Q+3}], 0")
        if nissued < 18: a(rd[nissued]); nissued += 1
        a(f"v_mfma_f32_32x32x16_bf16 v[{s}:{s+15}], v[{fr(b,1)}:{fr(b,1)+3}], v[{Q+4}:{Q+7}], v[{s}:{s+15}]")
        if nissued < 18: a(rd[nissued]); nissued += 1
    for x in rv[:14]: a(x)
    skip = a.label("at_valid")
    a(f"""
    s_lshl_b32 s30, s24, 2
    s_add_u32 s30, s30, s35
    s_cmp_ge_u32 s30, 8
    s_cbranch_scc1 {skip}
    """)
    for b in range(8):
        nb = a.label("at_nb")
        a(f"s_cmp_ge_u32 s30, {8-b}")
        a(f"s_cbranch_scc1 {nb}")
        for r in range(16):
            a(f"v_mov_b32 v{SB+16*b+r}, 0xff800000")
        a(f"{nb}:")
    a(f"{skip}:")
    mx = T; mx2 = T + 1; sm = T + 2
    a(f"v_max_f32 v{mx}, v{SB+16}, v{SB+17}")
    a(f"v_max_f32 v{mx2}, v{SB+18}, v{SB+19}")
    idx = list(range(20, 128))
    for k in range(0, len(idx), 2):
        m = mx if (k // 2) % 2 == 0 else mx2
        a(f"v_max3_f32 v{m}, v{SB+idx[k]}, v{SB+idx[k+1]}, v{m}")
    for r in range(16):
        a(f"v_cndmask_b32 v{SB+r}, v{SB+128+r}, v{SB+r}, s[{40+2*r}:{41+2*r}]")
    for k in range(0, 16, 2):
        m = mx if (k // 2) % 2 == 0 else mx2
        a(f"v_max3_f32 v{m}, v{SB+k}, v{SB+k+1}, v{m}")
    for x in rv[14:]: a(x)
    a(f"""
    v_max_f32 v{mx}, v{mx}, v{mx2}
    v_mov_b32 v{mx2}, v{mx}
    v_permlane32_swap_b32 v{mx}, v{mx2}
    v_max_f32 v{mx}, v{mx}, v{mx2}
    v_mov_b32 v{Q}, {f32(SC)}
    v_mov_b32 v{Q+1}, {f32(SC)}
    v_mul_f32 v{Q+2}, {f32(-SC)}, v{mx}
    v_mul_f32 v{Q+3}, {f32(-SC)}, v{mx}
    v_mov_b32 v{sm}, 0
    v_mov_b32 v{sm+1}, 0
    s_waitcnt lgkmcnt(0)
    s_barrier
    """)
    sk = a.label("skip_x1")
    a(f"""
    s_cmp_lt_u32 s3, 4
    s_cbranch_scc1 {sk}
    s_mul_i32 s30, s24, {64*7168}
    s_mul_i32 s31, s38, 7168
    """)
    for i in range(7):
        if i % 4 == 0: a(f"s_add_u32 m0, s31, {XB1 + i*1024}")
        a(f"buffer_load_dwordx4 v{O+i}, s[20:23], s30 offen offset:{(i&3)*1024} lds")
    if OPT["sk"] and OPT["sent"] == 1:
        sk2 = a.label("skip_x2")
        a(f"s_branch {sk2}")
        a(f"{sk}:")
        srd_off(a, 20, P_WS, XP_OFF, 8 * MB)
        a(f"""
        s_lshl_b32 s30, s24, 19
        s_lshl_b32 s31, s3, 13
        s_add_u32 s30, s30, s31
        s_lshl_b32 s31, s25, 15
        s_add_u32 s30, s30, s31
        v_lshlrev_b32 v{O+4}, 4, v1
        """)
        for i in range(4): a(f"v_mov_b32 v{O+i}, -1")
        for mt in range(4):
            a(f"buffer_store_dwordx4 v[{O}:{O+3}], v{O+4}, s[20:23], s30 offen offset:{mt*1024} sc0 sc1")
        a(f"{sk2}:")
    else:
        a(f"{sk}:")
    def pack(s):
        for d, r in [(0, 0), (1, 2), (2, 8), (3, 10), (4, 4), (5, 6), (6, 12), (7, 14)]:
            a(f"v_cvt_pk_bf16_f32 v{s+d}, v{s+r}, v{s+r+1}")
    first = [True]
    def pv(b, s):
        c0 = "0" if first[0] else f"v[{O}:{O+15}]"
        first[0] = False
        a(f"v_mfma_f32_32x32x16_bf16 v[{O}:{O+15}], v[{fr(b,0)}:{fr(b,0)+3}], v[{s}:{s+3}], {c0}")
        a(f"v_mfma_f32_32x32x16_bf16 v[{O}:{O+15}], v[{fr(b,1)}:{fr(b,1)+3}], v[{s+4}:{s+7}], v[{O}:{O+15}]")
    pending = None
    for b in [0, 1, 2, 3, 4, 5, 6, 7]:
        s = SB + 16 * b
        for r in range(0, 16, 2):
            a(f"v_pk_fma_f32 v[{s+r}:{s+r+1}], v[{s+r}:{s+r+1}], v[{Q}:{Q+1}], v[{Q+2}:{Q+3}]")
        if pending is not None:
            for p in pending: pv(*p)
            pending = None
        for r in range(16):
            a(f"v_exp_f32 v{s+r}, v{s+r}")
        for r in range(0, 16, 2):
            a(f"v_pk_add_f32 v[{sm}:{sm+1}], v[{sm}:{sm+1}], v[{s+r}:{s+r+1}]")
        if b == 0:
            s8 = SB + 128
            for r in range(16):
                a(f"v_cndmask_b32 v{s8+r}, v{s+r}, 0, s[{40+2*r}:{41+2*r}]")
                a(f"v_cndmask_b32 v{s+r}, 0, v{s+r}, s[{40+2*r}:{41+2*r}]")
            pack(s); pack(s8)
            pending = [(0, s), (8, s8)]
        else:
            pack(s)
            pending = [(b, s)]
    for p in pending: pv(*p)
    srd_off(a, 16, P_WS, O_OFF, 4 * MB)
    a(f"""
    v_add_f32 v{sm}, v{sm}, v{sm+1}
    v_mov_b32 v{sm+1}, v{sm}
    v_permlane32_swap_b32 v{sm}, v{sm+1}
    v_add_f32 v{sm}, v{sm}, v{sm+1}
    v_rcp_f32 v{sm+1}, v{sm}
    v_rcp_f32 v{sm}, v{sm}
    s_lshl_b32 s30, s24, 18
    s_lshl_b32 s31, s25, 14
    s_add_u32 s30, s30, s31
    s_lshl_b32 s31, s34, 13
    s_add_u32 s30, s30, s31
    s_lshl_b32 s31, s35, 11
    s_add_u32 s30, s30, s31
    """)
    for r in range(0, 16, 2):
        a(f"v_pk_mul_f32 v[{O+r}:{O+r+1}], v[{O+r}:{O+r+1}], v[{sm}:{sm+1}]")
    pack(O)
    a(f"""
    buffer_store_dwordx4 v[{O}:{O+3}], v{vF}, s[16:19], s30 offen sc0 sc1
    buffer_store_dwordx4 v[{O+4}:{O+7}], v{vF}, s[16:19], s30 offen offset:512 sc0 sc1
    """)
    stamp(a, 10)
    signal(a, 1, 3, SB)
    stamp(a, 11)

def attention(a):
    if not OPT["att2"]: return attention_v1(a)
    SC = (32 ** -0.5) * LOG2E
    vF, vL, vQH = 2, 4, 5
    Q = 8; O = 16; SB = 32; F = 176; T = 248
    MK = O + 8
    ONES = Q + 4
    LS = SB + 128
    mx = T; mx2 = T + 1
    a(f"""
    v_bfe_u32 v6, v1, 4, 1
    v_lshlrev_b32 v{vF}, 10, v6
    v_lshrrev_b32 v6, 5, v1
    v_lshl_add_u32 v{vF}, v6, 8, v{vF}
    v_and_b32 v7, 15, v1
    v_lshl_add_u32 v{vF}, v7, 4, v{vF}
    s_lshr_b32 s34, s3, 2
    s_and_b32 s35, s3, 3
    s_mul_i32 s30, s34, {HEADW}
    s_lshl_b32 s31, s35, 11
    s_add_u32 s30, s30, s31
    v_add_u32 v{vL}, s30, v{vF}
    ds_read_b128 v[{Q}:{Q+3}], v{vL} offset:49152
    ds_read_b128 v[{Q+4}:{Q+7}], v{vL} offset:{49152+512}
    """)
    def fr(b, i): return F + b * 8 + i * 4
    order = [0, 8, 1, 2, 3, 4, 5, 6, 7]
    rd = [f"ds_read_b128 v[{fr(b,i)}:{fr(b,i)+3}], v{vL} offset:{b*2048 + i*512}" for b in order for i in range(2)]
    rv = [f"ds_read_b128 v[{fr(b,i)}:{fr(b,i)+3}], v{vL} offset:{24576 + b*2048 + i*512}" for b in order for i in range(2)]
    for x in rd[:8]: a(x)
    a(f"""
    v_and_b32 v7, 31, v1
    v_lshlrev_b32 v6, 2, v6
    v_sub_u32 v{vQH}, v7, v6
    v_mov_b32 v6, 0xffff0000
    """)
    msk = lambda r: f"s[{40+2*r}:{41+2*r}]"
    for r in range(16):
        a(f"v_cmp_gt_i32 {msk(r)}, {8 * (r >> 2) + (r & 3)}, v{vQH}")
    PK = [(0, 0), (1, 2), (2, 8), (3, 10), (4, 4), (5, 6), (6, 12), (7, 14)]
    fill = {k: [] for k in range(9)}
    for d, r in PK:
        fill[d // 4].append(f"v_cndmask_b32 v{MK+d}, 0, v6, {msk(r+1)}")
        fill[d // 4].append(f"v_cndmask_b32 v{MK+d}, v{MK+d}, -1, {msk(r)}")
    def merge(): return [f"v_cndmask_b32 v{SB+r}, v{SB+128+r}, v{SB+r}, {msk(r)}" for r in range(16)]
    def maxblk(b, first=False):
        o = []; s_ = SB + 16 * b
        for k in range(0, 16, 2):
            m = mx if (k // 2) % 2 == 0 else mx2
            if first and k < 4: o.append(f"v_max_f32 v{m}, v{s_+k}, v{s_+k+1}")
            else: o.append(f"v_max3_f32 v{m}, v{s_+k}, v{s_+k+1}, v{m}")
        return o
    mg = merge()
    fill[3] += mg[:8]; fill[4] += mg[8:] + maxblk(1, True)[:4]
    fill[5] += maxblk(1, True)[4:] + maxblk(0); fill[6] += maxblk(2) + maxblk(3)[:4]
    fill[7] += maxblk(3)[4:] + maxblk(4); fill[8] += maxblk(5)
    nissued = 8
    late = []
    for k, b in enumerate(order):
        a(f"s_waitcnt lgkmcnt({nissued - (2*k+2)})")
        s_ = SB + 16 * b
        fl = fill[k]; h = len(fl) // 2
        if OPT["bis"] == 1: h = 0
        if OPT["bis"] == 2: late += fl; fl = []
        a(f"v_mfma_f32_32x32x16_bf16 v[{s_}:{s_+15}], v[{fr(b,0)}:{fr(b,0)+3}], v[{Q}:{Q+3}], 0")
        if nissued < 18: a(rd[nissued]); nissued += 1
        for x in fl[:h]: a(x)
        a(f"v_mfma_f32_32x32x16_bf16 v[{s_}:{s_+15}], v[{fr(b,1)}:{fr(b,1)+3}], v[{Q+4}:{Q+7}], v[{s_}:{s_+15}]")
        if nissued < 18: a(rd[nissued]); nissued += 1
        for x in fl[h:]: a(x)
    for x in rv[:12]: a(x)
    for x in late + maxblk(6) + maxblk(7): a(x)
    skip = a.label("at_valid")
    a(f"""
    s_lshl_b32 s30, s24, 2
    s_add_u32 s30, s30, s35
    s_cmp_ge_u32 s30, 8
    s_cbranch_scc1 {skip}
    v_mov_b32 v7, 0xff800000
    """)
    for r in range(16):
        a(f"v_cndmask_b32 v{SB+r}, v{SB+r}, v7, {msk(r)}")
    for b in range(1, 8):
        nb = a.label("at_nb")
        a(f"s_cmp_ge_u32 s30, {8-b}")
        a(f"s_cbranch_scc1 {nb}")
        for r in range(16):
            a(f"v_mov_b32 v{SB+16*b+r}, v7")
        a(f"{nb}:")
    for b in range(8):
        for x in maxblk(b, b == 0): a(x)
    a(f"{skip}:")
    for x in rv[12:]: a(x)
    a(f"""
    v_max_f32 v{mx}, v{mx}, v{mx2}
    v_mov_b32 v{Q}, {f32(SC)}
    v_mov_b32 v{Q+1}, {f32(SC)}
    v_mov_b32 v{mx2}, v{mx}
    """)
    for i in range(4): a(f"v_mov_b32 v{ONES+i}, 0x3f803f80")
    a(f"""
    v_permlane32_swap_b32 v{mx}, v{mx2}
    v_max_f32 v{mx}, v{mx}, v{mx2}
    v_mul_f32 v{Q+2}, {f32(-SC)}, v{mx}
    v_mul_f32 v{Q+3}, {f32(-SC)}, v{mx}
    """)
    def free_lds():
        a("s_waitcnt lgkmcnt(0)")
        a("s_barrier")
        sk = a.label("skip_x1")
        a(f"""
        s_cmp_lt_u32 s3, 4
        s_cbranch_scc1 {sk}
        s_mul_i32 s30, s24, {64*7168}
        s_mul_i32 s31, s38, 7168
        """)
        for i in range(7):
            if i % 4 == 0: a(f"s_add_u32 m0, s31, {XB1 + i*1024}")
            a(f"buffer_load_dwordx4 v{O+i}, s[20:23], s30 offen offset:{(i&3)*1024} lds")
        a(f"{sk}:")
    def pack(s_):
        return [f"v_cvt_pk_bf16_f32 v{s_+d}, v{s_+r}, v{s_+r+1}" for d, r in PK]
    fo = [True]; fl_ = [True]
    def pv(b, s_):
        o = []
        for i in range(2):
            c0 = "0" if fo[0] else f"v[{O}:{O+15}]"; fo[0] = False
            o.append(f"v_mfma_f32_32x32x16_bf16 v[{O}:{O+15}], v[{fr(b,i)}:{fr(b,i)+3}], v[{s_+4*i}:{s_+4*i+3}], {c0}")
        return o
    def rsum(s_):
        o = []
        for i in range(2):
            c0 = "0" if fl_[0] else f"v[{LS}:{LS+15}]"; fl_[0] = False
            o.append(f"v_mfma_f32_32x32x16_bf16 v[{LS}:{LS+15}], v[{ONES}:{ONES+3}], v[{s_+4*i}:{s_+4*i+3}], {c0}")
        return o
    pend = []
    BARB = OPT["attbar"]
    held = []
    for b in range(8):
        s_ = SB + 16 * b
        if b == BARB:
            free_lds(); pend += [x for bb, ss in held for x in pv(bb, ss)]; held = []
        work = [f"v_pk_fma_f32 v[{s_+r}:{s_+r+1}], v[{s_+r}:{s_+r+1}], v[{Q}:{Q+1}], v[{Q+2}:{Q+3}]" for r in range(0, 16, 2)]
        work += [f"v_exp_f32 v{s_+r}, v{s_+r}" for r in range(16)]
        work += pack(s_)
        take = pend[:6]; pend = pend[6:]
        for x in {3: interleave(work, take, 7, 1, 6), 5: interleave(work, take, 7, 3, 1), 6: interleave(work, take, 1, 1, 1), 7: interleave(work, take, 7, 8, 2), 8: interleave(work, take, 23, 1, 1)}.get(OPT["bis"], interleave(work, take, 2, 4, 1)): a(x)
        if b == 0:
            for d in range(8): a(f"v_and_b32 v{s_+8+d}, v{MK+d}, v{s_+d}")
            for d in range(8): a(f"v_xor_b32 v{s_+d}, v{s_+8+d}, v{s_+d}")
            pend += rsum(s_ + 8) + rsum(s_)
            blocks = [(0, s_ + 8), (8, s_)]
        else:
            pend += rsum(s_)
            blocks = [(b, s_)]
        if b < BARB: held += blocks
        else: pend += [x for bb, ss in blocks for x in pv(bb, ss)]
    for x in pend: a(x)
    srd_off(a, 16, P_WS, O_OFF, 4 * MB)
    a(f"""
    s_lshl_b32 s30, s24, 18
    s_lshl_b32 s31, s25, 14
    s_add_u32 s30, s30, s31
    s_lshl_b32 s31, s34, 13
    s_add_u32 s30, s30, s31
    s_lshl_b32 s31, s35, 11
    s_add_u32 s30, s30, s31
    """)
    if OPT["bis"] == 4: a("s_nop 15\ns_nop 15")
    a(f"v_rcp_f32 v{mx}, v{LS}")
    a(f"v_rcp_f32 v{mx+1}, v{LS}")
    for r in range(0, 16, 2):
        a(f"v_pk_mul_f32 v[{O+r}:{O+r+1}], v[{O+r}:{O+r+1}], v[{mx}:{mx+1}]")
    for x in pack(O): a(x)
    a(f"""
    buffer_store_dwordx4 v[{O}:{O+3}], v{vF}, s[16:19], s30 offen sc0 sc1
    buffer_store_dwordx4 v[{O+4}:{O+7}], v{vF}, s[16:19], s30 offen offset:512 sc0 sc1
    """)
    stamp(a, 10)
    signal(a, 1, 3, SB)
    stamp(a, 11)

def build(header_src=None):
    a = Asm()
    C = {k: mk(k, **v) for k, v in CFG.items()}
    kernel_begin(a, KNAME)
    if OPT["t0"]: a("s_memrealtime s[96:97]")
    a(f"""
    s_cmp_ge_u32 s2, 256
    s_cbranch_scc1 L_end
    s_load_dwordx16 s[80:95], s[0:1], 0
    s_load_dwordx2 s[4:5], s[0:1], 64
    v_lshrrev_b32 v2, 6, v0
    v_and_b32 v1, 63, v0
    v_readfirstlane_b32 s3, v2
    s_getreg_b32 s74, hwreg(HW_REG_XCC_ID)
    s_and_b32 s74, s74, 15
    s_mov_b32 s{TAG}, 0
    s_mov_b32 s{TAG+1}, 0
    s_waitcnt lgkmcnt(0)
    """)
    srd_off(a, FLS, P_WS, FL_OFF, 131072)
    if DIAG: a(f"v_mov_b32 v{VS}, 0")
    stamp(a, 63)
    a("""
    s_cmp_ge_u32 s3, 4
    s_cbranch_scc1 L_prod
    """)
    a("""
    s_or_b32 s30, s2, s3
    s_cmp_lg_u32 s30, 0
    s_cbranch_scc1 L_notag
    """)
    srd_off(a, 16, P_DBG, 0, 256)
    a("""
    """)
    a("s_mov_b64 s[30:31], s[96:97]" if OPT["t0"] else "s_memrealtime s[30:31]")
    a("""
    v_mov_b32 v4, 0
    s_waitcnt lgkmcnt(0)
    s_or_b32 s30, s30, 1
    v_mov_b32 v2, s30
    v_mov_b32 v3, s31
    s_mov_b64 exec, 1
    buffer_store_dwordx2 v[2:3], v4, s[16:19], 0 offen sc0 sc1
    s_mov_b64 exec, -1
    L_notag:
    """)
    if OPT["cpf"]:
        a(f"""
        s_getpc_b64 s[30:31]
        L_pc:
        s_sub_u32 s16, s30, L_pc-{KNAME}
        s_subb_u32 s17, s31, 0
        s_mov_b32 s18, L_code_end-{KNAME}
        s_mov_b32 s19, 0x20000
        s_lshr_b32 s30, s2, 3
        s_lshl_b32 s30, s30, 11
        s_lshl_b32 s31, s3, 9
        s_add_u32 s30, s30, s31
        v_lshlrev_b32 v2, 7, v1
        s_mov_b64 exec, 15
        buffer_load_dword v253, v2, s[16:19], s30 offen
        s_mov_b64 exec, -1
        """)
    if OPT["prio"]: a(f"s_setprio {OPT['prio']}")
    gemm_consumer(a, C["qkv"])
    a("s_barrier")
    a("L_attn:")
    stamp(a, 9)
    attention(a)
    a("""
    s_barrier
    s_cmp_ge_u32 s3, 4
    s_cbranch_scc1 L_prod2
    """)
    colsum_tile(a, C["w1"], XB1, "s3", 1, 32)
    gemm_consumer(a, C["wo"])
    gemm_consumer(a, C["w1"])
    gemm_consumer(a, C["w2"])
    if OPT["spin"]:
        a(f"""
        s_waitcnt vmcnt(0)
        L_spin:
        s_memrealtime s[96:97]
        s_waitcnt lgkmcnt(0)
        s_sub_u32 s96, s96, s{TAG}
        s_cmp_lt_u32 s96, {OPT["spin"]}
        s_cbranch_scc1 L_spin
        """)
    stamp_flush(a)
    a("s_endpgm")
    C["w2"].ool()
    if OPT["reslate"]: C["wo"].ool()
    a("L_prod:")
    a("s_sub_u32 s38, s3, 4")
    c = C["qkv"]
    prod_setup(a, c)
    cq = c
    def q_extra():
        vb, sr_ = PV_B, 12
        if OPT["dil"]:
            cx = mk("qkv", **CFG["qkv"]); cx.pstride = 128; cx.bcol = 384
            vb, sr_ = 16, 20
            b_setup(a, cx, vb, sr_)
        a(f"s_mul_i32 s33, s24, {64*cq.ldb}")
        for i in range(cq.NBW):
            if i % 4 == 0: a(f"s_add_u32 m0, s35, {XB0 + i*1024}")
            a(f"buffer_load_dwordx4 v{vb+i}, s[{sr_}:{sr_+3}], s33 offen offset:{(i&3)*1024} lds")
        return cq.NBW
    def q_colsum(part=None):
        if part in (None, 0):
            a(f"""
            v_mov_b32 v2, {ST_TAG}
            ds_read_b64 v[{PV_RD}:{PV_RD+1}], v2
            s_waitcnt lgkmcnt(0)
            v_readfirstlane_b32 s{TAG}, v{PV_RD}
            v_readfirstlane_b32 s{TAG+1}, v{PV_RD+1}
            """)
        a("s_setprio 3")
        colsum_tile(a, cq, XB0, "s38", 0, PV_RD, part)
        a("s_setprio 0")
        return 1 if part in (None, 3) else 0
    def hi(f):
        def g():
            a("s_setprio 3"); r = f(); a("s_setprio 0"); return r
        return g
    side = {-1: [q_extra], (2 if OPT['early0'] == 2 else 1): [q_colsum], 12: [lambda: gather_cs_setup(a, cq), lambda: gather_rs_setup(a, cq)],
            14: [lambda: gather_rs(a, cq), lambda: gather_cs(a, 0, 16)]}
    side[15] = [lambda: a("s_waitcnt vmcnt(0)"), hi(lambda: gather_finish_cs(a, cq)), hi(lambda: gather_finish_rs(a, cq))]
    if OPT["cspl"]:
        del side[1]
        for k in range(4): side.setdefault(1 + k, []).append(lambda k=k: q_colsum(k))
    if OPT["help"]:
        def help_setup():
            srd_off(a, 44, P_WQKV, 0, 6 * MB)
            a(f"""
            s_and_b32 s30, s25, 3
            s_lshl_b32 s31, s30, 11
            s_or_b32 s70, s25, 3
            s_lshl_b32 s70, s70, 7
            s_add_u32 s31, s31, s70
            v_mov_b32 v2, 6144
            v_mul_lo_u32 v23, v1, v2
            v_add_u32 v23, s31, v23
            s_and_b32 s70, s24, 7
            s_cmp_eq_u32 s30, 3
            s_cselect_b32 s70, 99, s70
            s_and_b32 s30, s25, 4
            s_cselect_b32 s70, 99, s70
            s_cmp_lg_u32 s38, 0
            s_cselect_b32 s70, 99, s70
            """)
            return 0
        def helper(k):
            def f():
                sk = a.label("skip_help")
                a(f"""
                s_cmp_lg_u32 s70, {k & 7}
                s_cbranch_scc1 {sk}
                s_mov_b32 s30, {(k + OPT['help']) * 64 * 6144}
                buffer_load_dword v253, v23, s[44:47], s30 offen
                {sk}:
                """)
                return 0
            return f
        side[-1].append(help_setup)
        for k in range(0, 16 - OPT["help"]): side.setdefault(k, []).insert(0, helper(k))
    if OPT["sk"] and OPT["sent"] == 2:
        def prefill(k):
            def f():
                if k == 0:
                    srd_off(a, 16, P_WS, XP_OFF, 8 * MB)
                    a(f"""
                    s_lshl_b32 s62, s24, 19
                    s_lshl_b32 s31, s38, 13
                    s_add_u32 s62, s62, s31
                    s_lshl_b32 s31, s25, 15
                    s_add_u32 s62, s62, s31
                    v_lshlrev_b32 v27, 4, v1
                    """)
                    for i in range(4): a(f"v_mov_b32 v{28+i}, -1")
                a(f"buffer_store_dwordx4 v[28:31], v27, s[16:19], s62 offen offset:{k*1024} sc0 sc1")
                return 1
            return f
        for k in range(4): side.setdefault(5 + (k // OPT["pfg"]), []).append(prefill(k))
    spf = [0]
    def sprefetch(k):
        def f():
            for _ in range(k):
                if spf[0] < 112:
                    a(f"s_load_dword s{100 + (spf[0] & 1)}, s[68:69], {spf[0]*64}")
                    spf[0] += 1
            return 0
        return f
    def spf_setup():
        a(f"""
        s_lshl_b32 s30, s2, 2
        s_add_u32 s30, s30, s38
        s_mul_i32 s30, s30, 7168
        s_add_u32 s68, s{P_W2}, s30
        s_addc_u32 s69, s{P_W2+1}, 0
        """)
        return 0
    if OPT["pf"] == 3:
        side.setdefault(3, []).append(spf_setup)
        for k in range(3, 13): side.setdefault(k, []).append(sprefetch(5))
    gemm_producer(a, c, False, None, side)
    if OPT["xst"]:
        for i in range(4): a(f"v_mov_b32 v{28+i}, v{PV_A+i}")
        a("""
        s_mov_b32 s48, s8
        s_mov_b32 s49, s9
        s_mov_b32 s50, s10
        s_mov_b32 s51, 0x20000
        """)
    a(f"""
    s_sub_u32 s30, s24, 1
    s_max_i32 s30, s30, 0
    s_sub_u32 s31, s24, 2
    s_max_i32 s31, s31, 0
    s_sub_u32 s30, s30, s31
    s_lshl_b32 s30, s30, 11
    v_bfe_u32 v2, v1, 2, 1
    v_mul_lo_u32 v2, v2, s30
    v_and_b32 v3, 3, v1
    v_lshl_add_u32 v2, v3, 3, v2
    s_lshl_b32 s31, s31, 11
    s_lshl_b32 s30, s25, 7
    s_add_u32 s33, s30, s31
    s_add_u32 s33, s33, 65536
    """)
    a(f"""
    s_lshr_b32 s34, s38, 1
    s_and_b32 s35, s38, 1
    s_lshl_b32 s30, s25, 1
    s_add_u32 s30, s30, s34
    s_lshl_b32 s30, s30, 17
    s_lshl_b32 s31, s35, 22
    s_add_u32 s30, s30, s31
    s_add_u32 s30, s30, {K_OFF}
    """)
    srd_off(a, 8, P_WS, "s30", 131072)
    a(f"""
    s_lshl_b32 s30, s24, 13
    s_sub_u32 s30, s30, 16384
    v_lshlrev_b32 v4, 4, v1
    v_add_u32 v4, s30, v4
    s_mul_i32 s34, s34, {HEADW}
    s_mul_i32 s35, s35, 24576
    s_add_u32 s34, s34, s35
    """)
    a("v_mov_b32 v5, v2")
    b_setup(a, C["w1"], 16, 20)
    wait_flags(a, 5, "s33", False, PV_RD)
    stamp(a, 5)
    for q in range(4):
        a(f"s_add_u32 m0, s34, {q*4096}")
        for i in range(4):
            a(f"buffer_load_dwordx4 v4, s[8:11], 0 offen offset:{i*1024}{NBF[OPT['nbf']]} lds")
        if q < 3: a("v_add_u32 v4, 0x1000, v4")
    a("s_mov_b32 s98, s24\ns_mov_b32 s99, s25")
    c = C["wo"]
    prod_setup(a, c)
    a("s_mov_b32 s24, s98\ns_mov_b32 s25, s99")
    a("s_waitcnt vmcnt(0)")
    stamp(a, 6)
    a("s_barrier")
    if OPT["xst"]:
        a(f"s_add_u32 m0, s34, {XST}")
        a("s_lshl_b32 s30, s25, 7")
        for i in range(4):
            a(f"buffer_load_dwordx4 v{28+i}, s[48:51], s30 offen offset:{i*1024} lds")
    pre_B(a, c)
    if OPT["xt"]:
        xtouch_setup(a, P_WO, 2 * MB, 16, 2)
        a("""
        s_lshr_b32 s30, s2, 3
        s_lshl_b32 s30, s30, 16
        buffer_load_dword v253, v2, s[16:19], s30 offen
        """)
    elif OPT["pf"]: touch(a, P_WO, 2 * MB, 16)
    a("s_branch L_attn")
    a("L_prod2:")
    c = C["wo"]
    prod_setup(a, c)
    a(f"s_add_u32 s29, s29, {c.S*64*c.ldb}")
    a(f"s_and_b32 s29, s29, {16*64*c.ldb - 1}")
    gate_setup(a, 1, True)
    gemm_producer(a, c, True, "wide")
    c = C["w1"]; c1 = c
    prod_setup(a, c)
    if OPT["wobar"]: a("s_barrier")
    pre_B(a, c)
    gather_cs_setup(a, c)
    gather_rs_setup(a, c)
    if C["w2"].early: w2_early_setup(a, C["w2"])
    gate_setup(a, 2, False)
    def w2hook(k):
        def f():
            sk = a.label("skip_pf")
            a(f"""
            s_lshr_b32 s30, s2, 3
            s_and_b32 s30, s30, 7
            s_cmp_lg_u32 s30, {k}
            s_cbranch_scc1 {sk}
            """)
            touch(a, P_W2, 7 * MB, 44)
            a(f"{sk}:")
            return 0
        return f
    side = {}
    if OPT["pf"] == 2:
        for k in range(8): side.setdefault(3 + k, []).append(w2hook(k))
    if OPT["pf"] == 3:
        spf_setup()
        for k in range(0, 13): side.setdefault(k, []).append(sprefetch(5))
    def rs_add(p0, p1):
        def f():
            for p in range(max(p0, 1), p1): a(f"v_add_f32 v{G_RS}, v{G_RS}, v{G_RS+p}")
        return f
    side.setdefault(8, []).append(hi(rs_add(0, 16)))
    side.setdefault(13, []).append(hi(rs_add(16, 26)))
    side[14] = [lambda: gather_cs(a, 0, 16)]
    side[15] = [hi(rs_add(26, 32)), lambda: a("s_waitcnt vmcnt(0)"), hi(lambda: gather_finish_cs(a, c1)), hi(lambda: gather_finish_rs(a, c1))]
    if C["w2"].early:
        c2 = C["w2"]
        side[14].append(lambda: pre_B(a, c2, 0, 1))
        side[15] = [lambda: pre_B(a, c2, 1, 4), hi(rs_add(26, 32)), lambda: a("s_waitcnt vmcnt(16)"), hi(lambda: gather_finish_cs(a, c1)), hi(lambda: gather_finish_rs(a, c1))]
    gemm_producer(a, c, True, "narrow", side, lambda st: gather_rs(a, c1, 2 * st, 2 * st + 2))
    c = C["w2"]
    c.rounds = [(16, OPT['prepoll'], 14), (OPT['prepoll'], 24, 14), (24, 40, 7), (40, 56, 7)]; c.prepoll_at = OPT['prepoll']; c.gate_all_at = 24; c.seamB = 3
    if c.sk:
        c.rounds = [(8, 10, 14), (10, 12, 14), (12, 20, 7), (20, 28, 7)]; c.prepoll_at = 10; c.gate_all_at = 12
    prod_setup(a, c)
    if not c.early: pre_B(a, c)
    side = {}
    c.round_hook = {}
    if OPT["xt"] and not c.sk:
        xtouch_setup(a, P_W2, 7 * MB, 44, 23)
        w2_xtouch(a, 0); w2_xtouch(a, 3)
        side = {4: [lambda: w2_xtouch(a, 1)]}
        c.round_hook = {24: lambda: w2_xtouch(a, 2)}
    a("s_barrier")
    a("s_barrier")
    gate_setup(a, 0, False)
    gemm_producer(a, c, True, "narrow", side, None, 8 if c.sk else 16)
    stamp_flush(a)
    a("L_end:")
    a("s_endpgm")
    a("L_code_end:")
    body, nins = hazard.fix(a.lines)
    hdr = []
    if header_src:
        for ln in open(header_src):
            if ln.startswith(";") and "@launch" not in ln:
                hdr.append(ln.rstrip("\n"))
            elif not ln.startswith(";"):
                break
    hdr.append(f"; @launch grid=(256,1,1) block=(512,1,1) lds=163840")
    hdr.append('.amdgcn_target "amdgcn-amd-amdhsa--gfx950"')
    hdr.append(".text")
    return "\n".join(hdr) + "\n" + "\n".join(body) + "\n" + kernel_desc(KNAME, 256, 102), nins

if __name__ == "__main__":
    if "--diag" in sys.argv:
        DIAG = True; sys.argv.remove("--diag")
    for arg in list(sys.argv[1:]):
        if "=" in arg:
            k_, v_ = arg.split("=", 1)
            if "." in k_:
                kk, f_ = k_.split(".")
                for kind_ in (CFG.keys() if kk == "all" else [kk]): CFG[kind_][f_] = int(v_)
            else: OPT[k_] = int(v_)
            sys.argv.remove(arg)
    out = sys.argv[1] if len(sys.argv) > 1 else "p1.s"
    txt, nins = build(header_src="sequential_preLN__sliding_block__dense_activation_silu__prompt.s.ref")
    open(out, "w").write(txt)
    print("wrote", out, len(txt), "bytes; nop states inserted:", nins)
```

```python
import sys, struct
from asmlib import *
import hazard

MB = 1 << 20
K_OFF = 8 * MB
V_OFF = 12 * MB
O_OFF = 16 * MB
H_OFF = 20 * MB
H1_OFF = 24 * MB
FL_OFF = 40 * MB
RS1_OFF = 41 * MB
CSG_OFF = 42 * MB
XP_OFF = 44 * MB
ST2_OFF = 43 * MB
DIAG_OFF = 64 * MB
LOG2E = 1.4426950408889634
KNAME = "sequential_preLN__sliding_block__dense_activation_silu__prompt_kernel"
P_X, P_WQKV, P_WO, P_W1, P_W2, P_OUT, P_DBG, P_WS = 80, 82, 84, 88, 90, 92, 94, 4
TAG = 72
FLS = 76
ST = 155648
ST_REC, ST_MEAN, ST_RSTD, ST_CS, ST_CSP = ST, ST + 2048, ST + 2560, ST + 3072, ST + 4096
HEADW = 57344
XB0 = 122880
XB1 = 81920
XCH = 147456
XST = 147456
ST_TAG = ST + 4096
HRES = 232
DEF = 200
VS = 254
DIAG = False
OPT = dict(own1=4, ownm=1, own=1, sktail=3, sksig=4, deepb=0, tlb=0, align=0, skrpg=1, bis=5, att2=1, attbar=1, osf=1, t0=0, spin=0, eb2=1, sigA2=2, peel=8, cspl=0, xst=1, reslate=0, sent=0, pfg=1, help=4, snake=1, rot0=4, early0=3, dil=1, sk=1, skfull=0, pf=3, xt=1, prio=0, inv=0, nodma=0, steps=0, kvlocal=0, cpf=1, nbf=1, sigA=3, sigB=3, qnt=0, bar2=0, defer=0, dper=2, dstart=0, prepoll=21, wobar=0)

def xb1(): return 0 if OPT['deepb'] else XB1

def f32(x):
    return "0x%08x" % struct.unpack("<I", struct.pack("<f", x))[0]

def srd_off(a, d, ptr, off, nrec):
    a(f"s_add_u32 s{d}, s{ptr}, {off}")
    a(f"s_addc_u32 s{d+1}, s{ptr+1}, 0")
    a(f"s_mov_b32 s{d+2}, {nrec}")
    a(f"s_mov_b32 s{d+3}, 0x20000")

def hold(a, key):
    if not OPT.get(key): return
    l = a.label("hold")
    a(f"""
    {l}:
    s_memrealtime s[96:97]
    s_waitcnt lgkmcnt(0)
    s_sub_u32 s96, s96, s{TAG}
    s_cmp_lt_u32 s96, {OPT[key]}
    s_cbranch_scc1 {l}
    """)

def stamp(a, idx):
    if not DIAG: return
    a("s_memrealtime s[96:97]")
    a("s_waitcnt lgkmcnt(0)")
    a(f"v_writelane_b32 v{VS}, s96, {idx}")

def stamp_flush(a):
    if not DIAG: return
    srd_off(a, 16, P_WS, DIAG_OFF, 524288)
    a(f"""
    s_lshl_b32 s30, s2, 11
    s_lshl_b32 s31, s3, 8
    s_add_u32 s30, s30, s31
    v_lshlrev_b32 v{VS+1}, 2, v1
    buffer_store_dword v{VS}, v{VS+1}, s[16:19], s30 offen
    """)

def pbar(a):
    a("s_barrier")
    if DIAG and OPT["steps"]:
        a("s_memtime s[96:97]" if OPT["steps"] == 2 else "s_memrealtime s[96:97]")
        a("""
        s_waitcnt lgkmcnt(0)
        s_mov_b32 m0, s99
        s_nop 0
        v_writelane_b32 v252, s96, m0
        s_add_u32 s99, s99, 1
        """)

def pbar_flush(a, ph):
    if not (DIAG and OPT["steps"]): return
    srd_off(a, 16, P_WS, DIAG_OFF + 524288 * (1 + ph), 524288)
    a(f"""
    s_lshl_b32 s30, s2, 11
    s_lshl_b32 s31, s3, 8
    s_add_u32 s30, s30, s31
    v_lshlrev_b32 v2, 2, v1
    buffer_store_dword v252, v2, s[16:19], s30 offen
    """)

def wgmap(a, RX, CX):
    CT = 16 // CX; RB = 16 // RX
    lg = lambda x: x.bit_length() - 1
    a(f"""
    s_and_b32 s30, s2, 7
    s_lshr_b32 s31, s2, 3
    s_lshr_b32 s24, s30, {lg(CX)}
    s_lshl_b32 s24, s24, {lg(RB)}
    s_and_b32 s25, s30, {CX-1}
    s_lshl_b32 s25, s25, {lg(CT)}
    s_lshr_b32 s30, s31, {lg(CT)}
    s_add_u32 s24, s24, s30
    s_and_b32 s30, s31, {CT-1}
    s_add_u32 s25, s25, s30
    """)

def st2(a, text):
    if not OPT["kvlocal"]:
        a(text + " sc0 sc1"); return
    l1 = a.label("skip_s1"); l2 = a.label("skip_s2")
    a(f"""
    s_cmp_lg_u32 s55, 0
    s_cbranch_scc1 {l1}
    {text} sc0 sc1
    s_branch {l2}
    {l1}:
    {text}
    {l2}:
    """)

def signal(a, seam, slot_shift, t, local=False, cnt=0, plain0=False, rbj=('s24', 's25')):
    kv = seam == 0 and not plain0
    a(f"""
    s_lshl_b32 s40, {rbj[0]}, {11 if kv else 10}
    s_lshl_b32 s41, {rbj[1]}, {7 if kv else slot_shift+3}
    s_add_u32 s40, s40, s41
    s_lshl_b32 s41, s3, 3
    s_add_u32 s40, s40, s41
    s_add_u32 s40, s40, {65536 if kv else seam*16384}
    v_mov_b32 v{t}, s{TAG}
    v_mov_b32 v{t+1}, s{TAG+1}
    v_mov_b32 v{t+2}, 0
    s_waitcnt vmcnt({cnt})
    s_mov_b64 exec, 1
    """)
    txt = f"buffer_store_dwordx2 v[{t}:{t+1}], v{t+2}, s[{FLS}:{FLS+3}], s40 offen"
    if local: st2(a, txt)
    else: a(txt + " sc0 sc1")
    a("s_mov_b64 exec, -1")

def wait_flags(a, voff, soff, wide, t):
    lp = a.label("poll"); dn = a.label("polld")
    a(f"s_mov_b32 s39, 0x100000")
    if OPT["inv"] == 1: a("buffer_inv sc1")
    a(f"{lp}:")
    if wide:
        a(f"buffer_load_dwordx4 v[{t}:{t+3}], v{voff}, s[{FLS}:{FLS+3}], {soff} offen sc0 sc1")
    else:
        a(f"buffer_load_dwordx2 v[{t}:{t+1}], v{voff}, s[{FLS}:{FLS+3}], {soff} offen sc0 sc1")
    a("s_waitcnt vmcnt(0)")
    a(f"v_cmp_eq_u64 vcc, s[{TAG}:{TAG+1}], v[{t}:{t+1}]")
    if wide:
        a(f"v_cmp_eq_u64 s[36:37], s[{TAG}:{TAG+1}], v[{t+2}:{t+3}]")
        a("s_nop 3")
        a("s_and_b64 vcc, vcc, s[36:37]")
    else:
        a("s_nop 3")
    a(f"""
    s_cmp_eq_u64 vcc, -1
    s_cbranch_scc1 {dn}
    s_sleep 1
    s_sub_u32 s39, s39, 1
    s_cmp_lg_u32 s39, 0
    s_cbranch_scc1 {lp}
    {dn}:
    """)
    if OPT["inv"] == 2: a("buffer_inv sc1")

class G: pass
NBF = ['', ' sc1', ' sc0']

def mk(kind, **kw):
    c = G(); c.kind = kind; c.__dict__.update(kw)
    c.sk = 0
    c.pvb, c.sb, c.s35 = 8, 12, "s35"
    c.early = 0
    if kind == "wo" and OPT["xst"]: c.S = min(c.S, 4)
    if kind == "w2" and OPT["sk"]:
        c.sk = 1; c.BN = 128; c.NT = 4; c.S = 4; c.BBASE = 65536; c.full = OPT["skfull"]; c.rpg = OPT["skrpg"]; c.pstride = 512
        if OPT["eb2"]:
            c.early = 1; c.pvb, c.sb, c.s35 = 16, 52, "s41"; c.BBASE = 77824
    c.SB = c.S; c.bs0 = 0
    if kind == "wo" and OPT["deepb"]:
        c.S = 3; c.SB = 12; c.bs0 = 8; c.BBASE = 49152
    c.n = c.K // 64 // (2 if c.sk else 1)
    c.BB = c.BN * 128
    c.NBW = c.BB // 4096
    c.gmul = 4 if c.korder == "F" else 8
    c.rdrows = 16 if c.korder == "F" else 4
    c.RS = 128 if c.layout == "panel" else 448
    return c

CFG = dict(
    qkv=dict(K=1024, BN=192, NT=6, S=3, korder="N", layout="panel", wp=P_WQKV, ldb=6144, bcol=128, pstride=2048,
             a_off=None, normal_tiles=(4, 5), RX=2, CX=4, rpg=1, ABASE=0, BBASE=49152, ln=True, sid=0, lt=0, full=0, rot=0),
    wo=dict(K=1024, BN=64, NT=2, S=5, korder="F", layout="panel", wp=P_WO, ldb=2048, bcol=128, pstride=0,
            a_off=O_OFF, normal_tiles=(), RX=2, CX=4, rpg=2, ABASE=0, BBASE=114688, ln=False, sid=16, lt=0, full=1, rot=2),
    w1=dict(K=1024, BN=224, NT=7, S=3, korder="F", layout="w1", wp=P_W1, ldb=7168, bcol=448, pstride=0,
            a_off=H_OFF, normal_tiles=(), RX=2, CX=4, rpg=1, ABASE=0, BBASE=49152, ln=True, sid=24, lt=0, full=0, rot=2),
    w2=dict(K=3584, BN=64, NT=2, S=6, korder="F", layout="panel", wp=P_W2, ldb=2048, bcol=128, pstride=0,
            a_off=H1_OFF, normal_tiles=(), RX=2, CX=4, rpg=2, ABASE=0, BBASE=98304, ln=False, sid=32, lt=0, full=1, rot=0),
)

def gemm_consumer(a, c):
    kind = c.kind; n = c.n; S = c.S; NT = c.NT; RS = c.RS
    vA0, vA10, vB00, vB01, vB02, vA, vA1, vB0, vB1, vB2 = 2, 3, 4, 5, 6, 7, 8, 9, 10, 11
    vG = 12; vCH = 13
    t0, t1 = 14, 15
    ACC = 16
    FX = ACC + 16 * NT
    FSZ = 16 + 4 * NT
    if c.full: FSZ *= 2
    FY = FX + FSZ
    VTOP = FY + FSZ
    acc = lambda mt, nt: ACC + (nt * 4 + mt) * 4
    wgmap(a, c.RX, c.CX)
    T = FX
    if kind == "qkv": row_stats_issue(a, FY)
    a(f"""
    s_lshr_b32 s34, s3, 1
    s_and_b32 s35, s3, 1
    v_lshlrev_b32 v{vCH}, 4, v1
    s_lshl_b32 s30, s34, 12
    v_add_u32 v{vCH}, s30, v{vCH}
    v_lshrrev_b32 v{vG}, 4, v1
    v_bfe_u32 v{T}, v1, 2, 2
    v_and_b32 v{T+1}, 3, v1
    """)
    if c.a_off is None:
        a(f"""
        v_and_b32 v{t0}, 15, v1
        v_lshrrev_b32 v{t1}, 1, v{t0}
        v_xor_b32 v{t1}, v{t1}, v{vG}
        v_lshlrev_b32 v{t1}, 4, v{t1}
        v_lshl_add_u32 v{vA0}, v{t0}, 7, v{t1}
        s_lshl_b32 s30, s34, 13
        v_add_u32 v{vA0}, s30, v{vA0}
        v_xor_b32 v{vA10}, 64, v{vA0}
        """)
        aread = lambda mt, kg: ((vA, vA1)[kg], mt * 2048)
    else:
        a(f"v_mov_b32 v{vA0}, v{vCH}")
        aread = lambda mt, kg: (vA, kg * 8192 + mt * 1024)
    if c.layout == "panel":
        a(f"""
        v_mul_u32_u24 v{t0}, {c.gmul}, v{vG}
        v_add_u32 v{t0}, v{t0}, v{T}
        v_lshlrev_b32 v{t0}, 7, v{t0}
        v_lshl_add_u32 v{t0}, v{T+1}, 3, v{t0}
        v_lshrrev_b32 v{t1}, 1, v{T}
        v_and_b32 v{T+2}, 1, v{vG}
        v_lshl_or_b32 v{t1}, v{T+2}, 1, v{t1}
        s_lshl_b32 s30, s35, 1
        v_xor_b32 v{t1}, s30, v{t1}
        v_lshl_add_u32 v{vB00}, v{t1}, 5, v{t0}
        v_xor_b32 v{t1}, 1, v{t1}
        v_lshl_add_u32 v{vB01}, v{t1}, 5, v{t0}
        """)
        def bread(nt, kg, rd):
            return (vB0 if nt % 2 == 0 else vB1), (nt // 2) * 8192 + kg * 32 * RS + rd * c.rdrows * RS
    else:
        a(f"""
        v_mul_u32_u24 v{t0}, {c.gmul}, v{vG}
        v_add_u32 v{t0}, v{t0}, v{T}
        v_mul_u32_u24 v{t0}, {RS}, v{t0}
        v_lshl_add_u32 v{t0}, v{T+1}, 3, v{t0}
        v_and_b32 v{t1}, 1, v{vG}
        v_lshlrev_b32 v{T+2}, 5, v{t1}
        s_lshl_b32 s30, s35, 8
        v_add_u32 v{T+3}, s30, v{t0}
        v_add_u32 v{vB00}, v{T+3}, v{T+2}
        v_sub_u32 v{vB01}, v{T+3}, v{T+2}
        s_add_u32 s30, s35, 6
        v_xor_b32 v{t1}, s30, v{t1}
        v_lshl_add_u32 v{vB02}, v{t1}, 5, v{t0}
        """)
        def bread(nt, kg, rd):
            o = kg * 32 * RS + rd * c.rdrows * RS
            if nt == 6: return vB2, o
            return (vB0 if nt % 2 == 0 else vB1), o + nt * 32
    RES = VTOP
    if kind == "wo":
        srd_off(a, 20, P_X, 0, 4 * MB)
        a(f"""
        v_and_b32 v{t0}, 15, v1
        v_lshlrev_b32 v{t0}, 11, v{t0}
        v_lshl_add_u32 v{t0}, v{vG}, 3, v{t0}
        s_lshl_b32 s30, s24, 18
        s_lshl_b32 s31, s34, 17
        s_add_u32 s30, s30, s31
        s_lshl_b32 s31, s25, 7
        s_add_u32 s30, s30, s31
        s_lshl_b32 s31, s35, 6
        s_add_u32 s30, s30, s31
        """)
        def res_loads():
            for mt in range(4):
                for nt in range(2):
                    r = RES + mt * 4 + nt * 2
                    a(f"buffer_load_dwordx2 v[{r}:{r+1}], v{t0}, s[20:23], s30 offen offset:{nt*32}")
                a("s_add_u32 s30, s30, 32768")
        if not OPT["reslate"] and not OPT["xst"]: res_loads()
    if kind == "wo" and OPT["xst"]:
        a(f"""
        v_and_b32 v{t0}, 15, v1
        v_lshrrev_b32 v{t1}, 1, v{t0}
        v_lshrrev_b32 v{T}, 1, v{vG}
        s_lshl_b32 s30, s35, 2
        v_add_u32 v{T}, s30, v{T}
        v_xor_b32 v{t1}, v{t1}, v{T}
        v_lshlrev_b32 v{t1}, 4, v{t1}
        v_lshl_add_u32 v{t1}, v{t0}, 7, v{t1}
        v_and_b32 v{T}, 1, v{vG}
        v_lshl_add_u32 v{t1}, v{T}, 3, v{t1}
        s_lshl_b32 s30, s34, 13
        s_add_u32 s30, s30, {XST}
        v_add_u32 v{t1}, s30, v{t1}
        v_xor_b32 v{t0}, 32, v{t1}
        """)
        for mt in range(4):
            for nt in range(2):
                r = RES + mt * 4 + nt * 2
                a(f"ds_read_b64 v[{r}:{r+1}], v{t0 if nt else t1} offset:{mt*2048}")
    for i in range(16 * NT):
        a(f"v_mov_b32 v{ACC+i}, 0")
    abases = [(vA, vA0)] + ([(vA1, vA10)] if c.a_off is None else [])
    bbases = [(vB0, vB00), (vB1, vB01)] + ([(vB2, vB02)] if c.layout != "panel" else [])
    a(f"s_mov_b32 s27, {c.ABASE}")
    a(f"s_mov_b32 s32, {c.BBASE + c.bs0*c.BB}")
    setb = [f"v_add_u32 v{x}, s27, v{y}" for x, y in abases] + [f"v_add_u32 v{x}, s32, v{y}" for x, y in bbases]
    for x in setb: a(x)
    RT = OPT["sktail"] if (c.sk and not c.full) else 0
    a(f"s_mov_b32 s26, {n - 1 if (c.ln and OPT['peel']) else n - RT}")
    def reads(F, kg, tiles=None):
        r = []
        tiles = list(range(NT)) if tiles is None else tiles
        for nt in tiles:
            for rd in range(2):
                b, o = bread(nt, kg, rd)
                d = F + 16 + nt * 4 + rd * 2
                r.append(f"ds_read_b64_tr_b16 v[{d}:{d+1}], v{b} offset:{o}")
            if nt == tiles[0]:
                for mt in range(4):
                    d = F + mt * 4
                    b, o = aread(mt, kg)
                    r.append(f"ds_read_b128 v[{d}:{d+3}], v{b} offset:{o}")
        return r
    def mfmas(F, tiles=None):
        m = []
        for nt in (range(NT) if tiles is None else tiles):
            for mt in (range(4) if (nt % 2 == 0 or not OPT["snake"]) else range(3, -1, -1)):
                A = F + mt * 4; B = F + 16 + nt * 4; D = acc(mt, nt)
                if nt in c.normal_tiles:
                    m.append(f"v_mfma_f32_16x16x32_bf16 v[{D}:{D+3}], v[{A}:{A+3}], v[{B}:{B+3}], v[{D}:{D+3}]")
                else:
                    m.append(f"v_mfma_f32_16x16x32_bf16 v[{D}:{D+3}], v[{B}:{B+3}], v[{A}:{A+3}], v[{D}:{D+3}]")
        return m
    loop = a.label("c_loop")
    if kind == "qkv": row_stats_finish(a, FY, FX)
    stamp(a, c.sid)
    a("s_barrier")
    hold(a, "h_" + kind)
    stamp(a, c.sid + 1)
    adv = [f"s_add_u32 s27, s27, 16384", f"s_add_u32 s32, s32, {c.BB}", f"s_cmp_eq_u32 s27, {c.ABASE + S*16384}",
           f"s_cselect_b32 s27, {c.ABASE}, s27"] + ([f"s_cmp_eq_u32 s32, {c.BBASE + c.SB*c.BB}"] if c.SB != S else []) + [f"s_cselect_b32 s32, {c.BBASE}, s32"] + setb
    def pk4(t, p0, p1):
        a(f"v_cvt_pk_bf16_f32 v{t}, v{p0}, v{p0+1}")
        a(f"v_cvt_pk_bf16_f32 v{t+1}, v{p0+2}, v{p0+3}")
        a(f"v_cvt_pk_bf16_f32 v{t+2}, v{p1}, v{p1+1}")
        a(f"v_cvt_pk_bf16_f32 v{t+3}, v{p1+2}, v{p1+3}")
    vX = VTOP + 4
    def sk_send():
        srd_off(a, 20, P_WS, XP_OFF, 8 * MB)
        a(f"""
        s_lshl_b32 s30, s24, 19
        s_lshl_b32 s31, s3, 13
        s_add_u32 s30, s30, s31
        s_lshl_b32 s31, s25, 15
        s_add_u32 s33, s30, s31
        s_xor_b32 s31, s31, {4 << 15}
        s_add_u32 s37, s30, s31
        v_lshlrev_b32 v{vX}, 4, v1
        """)
        for mt in range(4):
            t = acc(mt, 2)
            pk4(t, acc(mt, 2), acc(mt, 3))
            a(f"buffer_store_dwordx4 v[{t}:{t+3}], v{vX}, s[20:23], s33 offen offset:{mt*1024} sc0 sc1")
    def epi_setup():
        b = Asm(); r = []
        if kind == "qkv":
            REC, CSQ, MV, RV, CSV = T, T + 16, VTOP, VTOP + 16, VTOP + 32
            b(f"""
            v_and_b32 v{t0}, 15, v1
            v_lshlrev_b32 v{vA}, 4, v{t0}
            s_lshl_b32 s30, s34, 10
            s_add_u32 s30, s30, {ST_REC}
            v_add_u32 v{vA}, s30, v{vA}
            v_lshlrev_b32 v{vA1}, 4, v{vG}
            s_lshl_b32 s30, s35, 7
            s_add_u32 s30, s30, {ST_CS}
            v_add_u32 v{vB0}, s30, v{vA1}
            v_lshlrev_b32 v{vB1}, 2, v{t0}
            v_add_u32 v{vB1}, s30, v{vB1}
            s_lshl_b32 s30, s34, 8
            s_add_u32 s30, s30, {ST_MEAN}
            v_add_u32 v{vA1}, s30, v{vA1}
            """)
            srd_off(b, 16, P_WS, K_OFF, 8 * MB)
            b(f"""
            s_lshl_b32 s30, s25, 1
            s_add_u32 s30, s30, s35
            s_lshl_b32 s30, s30, 17
            s_lshl_b32 s31, s24, 13
            s_add_u32 s30, s30, s31
            s_add_u32 s31, s30, {4*MB}
            s_mul_i32 s33, s35, {HEADW}
            v_add_u32 v{vB2}, s33, v{vCH}
            """)
            for mt in range(4):
                r.append(f"ds_read_b128 v[{REC+4*mt}:{REC+4*mt+3}], v{vA} offset:{mt*256}")
            for nt in range(4):
                r.append(f"ds_read_b128 v[{CSQ+4*nt}:{CSQ+4*nt+3}], v{vB0} offset:{(nt//2)*256 + (nt%2)*64}")
            for mt in range(4):
                r.append(f"ds_read_b128 v[{MV+4*mt}:{MV+4*mt+3}], v{vA1} offset:{mt*64}")
                r.append(f"ds_read_b128 v[{RV+4*mt}:{RV+4*mt+3}], v{vA1} offset:{512 + mt*64}")
            for dt in range(2):
                r.append(f"ds_read_b32 v{CSV+2*dt}, v{vB1} offset:{512 + dt*64}")
        else:
            CSR = T; REC = T + 28
            srd_off(b, 16, P_WS, H1_OFF, 14 * MB)
            b(f"""
            v_and_b32 v{t0}, 15, v1
            v_lshlrev_b32 v{vA}, 4, v{t0}
            s_lshl_b32 s30, s34, 10
            s_add_u32 s30, s30, {ST_REC}
            v_add_u32 v{vA}, s30, v{vA}
            v_lshlrev_b32 v{t1}, 4, v{vG}
            s_lshl_b32 s30, s35, 9
            s_add_u32 s30, s30, {ST_CS}
            v_add_u32 v{vB0}, s30, v{t1}
            s_lshl_b32 s30, s35, 6
            s_add_u32 s30, s30, {ST_CS}
            v_add_u32 v{vB1}, s30, v{t1}
            s_mul_i32 s30, s24, {112*8192}
            s_mul_i32 s31, s25, {7*8192}
            s_add_u32 s30, s30, s31
            s_add_u32 s36, s30, {3*8192}
            s_lshl_b32 s31, s35, 15
            s_add_u32 s30, s30, s31
            s_add_u32 s31, s30, 8192
            s_add_u32 s37, s30, 16384
            s_lshl_b32 s33, s35, 3
            s_add_u32 s33, s33, {XCH}
            v_add_u32 v{vB2}, s33, v{vCH}
            """)
            for mt in range(4):
                r.append(f"ds_read_b128 v[{REC+4*mt}:{REC+4*mt+3}], v{vA} offset:{mt*256}")
            r.append(f"ds_read_b128 v[{CSR+24}:{CSR+27}], v{vB1} offset:{6*64}")
            for nt in range(6):
                r.append(f"ds_read_b128 v[{CSR+4*nt}:{CSR+4*nt+3}], v{vB0} offset:{nt*64}")
        return [x.strip() for x in b.lines], r
    peel = c.ln and OPT["peel"]
    NI = n // 2 if c.full else n - RT
    def w2hook_c():
        if kind == "wo" and OPT["reslate"]:
            back = a.label("woback"); late = a.label("wolate")
            a(f"s_cmp_eq_u32 s26, {OPT['reslate']}")
            a(f"s_cbranch_scc1 {late}")
            a(f"{back}:")
            def ool():
                a(f"{late}:")
                res_loads()
                a(f"s_branch {back}")
            c.ool = ool
        if kind == "w2":
            back = a.label("w2back"); early = a.label("w2early")
            a(f"s_cmp_ge_u32 s26, {NI - OPT['sigB']}")
            a(f"s_cbranch_scc1 {early}")
            a(f"{back}:")
            def ool():
                a(f"{early}:")
                nst = OPT["dper"]
                its = 8 // nst if OPT["defer"] else 0
                for it in range(its):
                    nx = a.label("skip_e")
                    a(f"s_cmp_lg_u32 s26, {NI - it - OPT['dstart']}")
                    a(f"s_cbranch_scc1 {nx}")
                    for k in range(it * nst, it * nst + nst):
                        r = DEF + k * 4
                        a(f"buffer_store_dwordx4 v[{r}:{r+3}], v{vCH}, s[16:19], {'s44' if k < 4 else 's45'} offen offset:{(k%4)*1024} sc0 sc1")
                    a(f"s_branch {back}")
                    a(f"{nx}:")
                a(f"s_cmp_lg_u32 s26, {NI - OPT['sigB']}")
                a(f"s_cbranch_scc1 {back}")
                signal(a, 3, 2, VTOP, rbj=("s42", "s43"))
                a(f"s_branch {back}")
            c.ool = ool

    if c.full:
        H = FSZ // 2
        rd2 = lambda F: reads(F, 0) + reads(F + H, 1)
        mf2 = lambda F: mfmas(F) + mfmas(F + H)
        a(f"s_mov_b32 s26, {n//2}")
        for r in rd2(FX): a(r)
        for x in adv: a(x)
        if OPT["align"]: a(f".p2align {OPT['align']}")
        a(f"{loop}:")
        w2hook_c()
        a("s_waitcnt lgkmcnt(0)")
        a("s_barrier")
        for x in interleave(mf2(FX), rd2(FY) + adv, 0, 1, c.rpg): a(x)
        a("s_waitcnt lgkmcnt(0)")
        a("s_barrier")
        for x in interleave(mf2(FY), rd2(FX) + adv + ["s_sub_u32 s26, s26, 1", "s_cmp_lg_u32 s26, 0"], 0, 1, c.rpg): a(x)
        a(f"s_cbranch_scc1 {loop}")
        a("s_waitcnt lgkmcnt(0)")
    else:
        for r in reads(FX, 0): a(r)
        if kind == "w1" and OPT["own1"]:
            a("s_waitcnt lgkmcnt(0)")
            for x in interleave(mfmas(FX), reads(FY, 1) + adv, 0, 1, c.rpg): a(x)
            a("s_waitcnt lgkmcnt(0)")
            m_ = mfmas(FY); kb_ = len(m_) - OPT["own1"]
            for x in m_[:kb_]: a(x)
            a("s_barrier")
            for x in interleave(m_[kb_:], reads(FX, 0), 0, 1, 2): a(x)
            a("s_sub_u32 s26, s26, 1")
        if OPT["align"]: a(f".p2align {OPT['align']}")
        a(f"{loop}:")
        w2hook_c()
        a("s_waitcnt lgkmcnt(0)")
        for x in interleave(mfmas(FX), reads(FY, 1) + adv, 0, 1, c.rpg): a(x)
        a("s_waitcnt lgkmcnt(0)")
        a("s_barrier")
        for x in interleave(mfmas(FY), reads(FX, 0) + ["s_sub_u32 s26, s26, 1", "s_cmp_lg_u32 s26, 0"], 0, 1, c.rpg): a(x)
        a(f"s_cbranch_scc1 {loop}")
        a("s_waitcnt lgkmcnt(0)")
        if RT:
            def setst(st):
                return [f"v_add_u32 v{x}, {c.ABASE + (st % S)*16384}, v{y}" for x, y in abases] + [f"v_add_u32 v{x}, {c.BBASE + (st % S)*c.BB}, v{y}" for x, y in bbases]
            items = [(st, kg, [2, 3]) for st in range(n - RT, n) for kg in range(2)] + [(st, kg, [0, 1]) for st in range(n - RT, n) for kg in range(2)]
            sets = [FX, FY]
            for i, (st, kg, tl) in enumerate(items):
                cur = sets[i % 2]; nxt = sets[(i + 1) % 2]
                fill_ = []
                if i + 1 < len(items):
                    st2_, kg2, tl2 = items[i + 1]
                    if st2_ != st:
                        for x in setst(st2_): a(x)
                        if i + 1 < 2 * RT: a("s_barrier")
                    fill_ = reads(nxt, kg2, tl2)
                for x in interleave(mfmas(cur, tl), fill_, 0, 1, 1): a(x)
                if i == 2 * RT - 1:
                    stamp(a, c.sid + 2)
                    a("s_barrier")
                    sk_send()
                if i == 2 * RT + OPT["sksig"]:
                    signal(a, 6, 2, VTOP)
                    stamp(a, 47)
                a("s_waitcnt lgkmcnt(0)")
        if peel:
            for x in interleave(mfmas(FX), reads(FY, 1), 0, 1, c.rpg): a(x)
            a("s_waitcnt lgkmcnt(0)")
            alu, rds = epi_setup()
            m = mfmas(FY)
            if kind == "qkv": m = m[8:16] + m[16:] + m[:8]
            kb = len(m) - OPT["peel"]
            for x in interleave(m[:kb], alu, 0, 1, 2): a(x)
            a("s_barrier")
            for x in interleave(m[kb:], rds, 0, 1, 2): a(x)
    if not RT: stamp(a, c.sid + 2)
    def pk4_unused(t, p0, p1):
        a(f"v_cvt_pk_bf16_f32 v{t}, v{p0}, v{p0+1}")
        a(f"v_cvt_pk_bf16_f32 v{t+1}, v{p0+2}, v{p0+3}")
        a(f"v_cvt_pk_bf16_f32 v{t+2}, v{p1}, v{p1+1}")
        a(f"v_cvt_pk_bf16_f32 v{t+3}, v{p1+2}, v{p1+3}")
    if kind == "qkv":
        REC, CSQ, MV, RV, CSV = T, T + 16, VTOP, VTOP + 16, VTOP + 32
        if not peel:
            for x in sum(epi_setup(), []): a(x)
        a("s_waitcnt lgkmcnt(10)")
        def fold_sw(mt, nt):
            p = acc(mt, nt); m = REC + 4 * mt; cs = CSQ + 4 * nt
            for h in range(2):
                a(f"v_pk_fma_f32 v[{p+2*h}:{p+2*h+1}], v[{m}:{m+1}], v[{cs+2*h}:{cs+2*h+1}], v[{p+2*h}:{p+2*h+1}] op_sel_hi:[0,1,1] neg_lo:[1,0,0] neg_hi:[1,0,0]")
            for h in range(2):
                a(f"v_pk_mul_f32 v[{p+2*h}:{p+2*h+1}], v[{m}:{m+1}], v[{p+2*h}:{p+2*h+1}] op_sel:[1,0] op_sel_hi:[1,1]")
        for mt in range(4):
            fold_sw(mt, 2); fold_sw(mt, 3)
            t = acc(mt, 2); pk4(t, acc(mt, 2), acc(mt, 3))
            st2(a, f"buffer_store_dwordx4 v[{t}:{t+3}], v{vCH}, s[16:19], s30 offen offset:{mt*1024}")
            a(f"ds_write_b128 v{vB2}, v[{t}:{t+3}] offset:{16384 + mt*1024}")
        a("s_waitcnt lgkmcnt(4)")
        for mp in range(2):
            for dt in range(2):
                for mt in (2 * mp, 2 * mp + 1):
                    p = acc(mt, 4 + dt)
                    sel = "op_sel_hi:[1,0,1]"
                    for h in range(2):
                        a(f"v_pk_fma_f32 v[{p+2*h}:{p+2*h+1}], v[{MV+4*mt+2*h}:{MV+4*mt+2*h+1}], v[{CSV+2*dt}:{CSV+2*dt+1}], v[{p+2*h}:{p+2*h+1}] {sel} neg_lo:[1,0,0] neg_hi:[1,0,0]")
                    for h in range(2):
                        a(f"v_pk_mul_f32 v[{p+2*h}:{p+2*h+1}], v[{RV+4*mt+2*h}:{RV+4*mt+2*h+1}], v[{p+2*h}:{p+2*h+1}]")
                t = acc(2 * mp, 4 + dt); pk4(t, acc(2 * mp, 4 + dt), acc(2 * mp + 1, 4 + dt))
                st2(a, f"buffer_store_dwordx4 v[{t}:{t+3}], v{vCH}, s[16:19], s31 offen offset:{(2*mp+dt)*1024}")
                a(f"ds_write_b128 v{vB2}, v[{t}:{t+3}] offset:{24576 + 16384 + (2*mp+dt)*1024}")
        for mt in range(4):
            fold_sw(mt, 0); fold_sw(mt, 1)
            t = acc(mt, 0); pk4(t, acc(mt, 0), acc(mt, 1))
            a(f"ds_write_b128 v{vB2}, v[{t}:{t+3}] offset:{49152 + mt*1024}")
        stamp(a, c.sid + 3)
        signal(a, 0, 2, T, True)
        stamp(a, c.sid + 4)
        a("s_waitcnt lgkmcnt(0)")
    elif kind == "wo":
        srd_off(a, 16, P_WS, H_OFF, 4 * MB)
        a(f"""
        s_lshl_b32 s30, s24, 18
        s_lshl_b32 s31, s25, 14
        s_add_u32 s30, s30, s31
        s_lshl_b32 s31, s35, 13
        s_add_u32 s30, s30, s31
        s_mov_b32 s36, 0xffff0000
        s_waitcnt vmcnt(0) lgkmcnt(0)
        """)
        for mt in range(4):
            for nt in range(2):
                r = RES + mt * 4 + nt * 2; p = acc(mt, nt)
                for d in range(2):
                    a(f"v_lshlrev_b32 v{T}, 16, v{r+d}")
                    a(f"v_and_b32 v{T+1}, s36, v{r+d}")
                    a(f"v_pk_add_f32 v[{p+2*d}:{p+2*d+1}], v[{p+2*d}:{p+2*d+1}], v[{T}:{T+1}]")
            t = HRES + mt * 4
            pk4(t, acc(mt, 0), acc(mt, 1))
            a(f"buffer_store_dwordx4 v[{t}:{t+3}], v{vCH}, s[16:19], s30 offen offset:{mt*1024} sc0 sc1")
            if OPT["own1"]:
                if mt == 0: a(f"s_lshl_b32 s33, s35, 13\nv_add_u32 v{vA}, s33, v{vCH}")
                a(f"ds_write_b128 v{vA}, v[{t}:{t+3}] offset:{mt*1024}")
        SS = T + 4
        for mt in range(4):
            p0 = acc(mt, 0); p1 = acc(mt, 1)
            s_, q_ = SS + 2 * mt, SS + 2 * mt + 1
            a(f"v_pk_add_f32 v[{T}:{T+1}], v[{p0}:{p0+1}], v[{p0+2}:{p0+3}]")
            a(f"v_pk_mul_f32 v[{T+2}:{T+3}], v[{p0}:{p0+1}], v[{p0}:{p0+1}]")
            a(f"v_pk_add_f32 v[{T}:{T+1}], v[{T}:{T+1}], v[{p1}:{p1+1}]")
            a(f"v_pk_fma_f32 v[{T+2}:{T+3}], v[{p0+2}:{p0+3}], v[{p0+2}:{p0+3}], v[{T+2}:{T+3}]")
            a(f"v_pk_add_f32 v[{T}:{T+1}], v[{T}:{T+1}], v[{p1+2}:{p1+3}]")
            a(f"v_pk_fma_f32 v[{T+2}:{T+3}], v[{p1}:{p1+1}], v[{p1}:{p1+1}], v[{T+2}:{T+3}]")
            a(f"v_pk_fma_f32 v[{T+2}:{T+3}], v[{p1+2}:{p1+3}], v[{p1+2}:{p1+3}], v[{T+2}:{T+3}]")
            a(f"v_add_f32 v{s_}, v{T}, v{T+1}")
            a(f"v_add_f32 v{q_}, v{T+2}, v{T+3}")
        for mt in range(4):
            s_, q_ = SS + 2 * mt, SS + 2 * mt + 1
            a(f"v_permlane32_swap_b32 v{s_}, v{q_}")
            a(f"v_add_f32 v{s_}, v{s_}, v{q_}")
        srd_off(a, 20, P_WS, ST2_OFF, 16 * 32768)
        a(f"""
        v_and_b32 v{t0}, 31, v1
        v_lshlrev_b32 v{t0}, 2, v{t0}
        v_lshrrev_b32 v{t1}, 5, v1
        v_lshl_add_u32 v{t0}, v{t1}, 9, v{t0}
        s_lshl_b32 s30, s24, 15
        s_lshl_b32 s31, s25, 11
        s_add_u32 s30, s30, s31
        s_lshl_b32 s31, s35, 10
        s_add_u32 s30, s30, s31
        s_lshl_b32 s31, s34, 8
        s_add_u32 s30, s30, s31
        """)
        for mp in range(2):
            x0 = SS + 4 * mp; x1 = SS + 4 * mp + 2
            a(f"v_permlane16_swap_b32 v{x0}, v{x1}")
            a(f"v_add_f32 v{x0}, v{x0}, v{x1}")
            a(f"buffer_store_dword v{x0}, v{t0}, s[20:23], s30 offen offset:{mp*128} sc0 sc1")
        stamp(a, c.sid + 3)
        if OPT["wobar"]: a("s_barrier")
        signal(a, 2, 2, T)
        a("s_waitcnt lgkmcnt(0)")
        stamp(a, c.sid + 4)
    elif kind == "w1":
        CSR = T; REC = T + 28; E = T + 44
        if not peel:
            for x in sum(epi_setup(), []): a(x)
        a("s_waitcnt lgkmcnt(0)")
        soffs = ["s30", "s31", "s37"]
        def silu(mt, nt, e):
            p = acc(mt, nt); m = REC + 4 * mt; cs = CSR + 4 * nt
            for h in range(2):
                a(f"v_pk_fma_f32 v[{p+2*h}:{p+2*h+1}], v[{m}:{m+1}], v[{cs+2*h}:{cs+2*h+1}], v[{p+2*h}:{p+2*h+1}] op_sel_hi:[0,1,1] neg_lo:[1,0,0] neg_hi:[1,0,0]")
            for h in range(2):
                a(f"v_pk_mul_f32 v[{e+2*h}:{e+2*h+1}], v[{m}:{m+1}], v[{p+2*h}:{p+2*h+1}] op_sel:[1,0] op_sel_hi:[1,1]")
            for r in range(4):
                a(f"v_exp_f32 v{e+r}, v{e+r}")
            for h in range(2):
                a(f"v_pk_fma_f32 v[{e+2*h}:{e+2*h+1}], v[{e+2*h}:{e+2*h+1}], v[{m+2}:{m+3}], v[{m+2}:{m+3}]")
            for r in range(4):
                a(f"v_rcp_f32 v{e+r}, v{e+r}")
            for h in range(2):
                a(f"v_pk_mul_f32 v[{p+2*h}:{p+2*h+1}], v[{p+2*h}:{p+2*h+1}], v[{e+2*h}:{e+2*h+1}]")
        def pair(q, mt):
            silu(mt, 2 * q, E); silu(mt, 2 * q + 1, E + 4)
            p0 = acc(mt, 2 * q)
            pk4(p0, p0, acc(mt, 2 * q + 1))
            a(f"buffer_store_dwordx4 v[{p0}:{p0+3}], v{vCH}, s[16:19], {soffs[q]} offen offset:{mt*1024} sc0 sc1")
            if OPT["own"]: a(f"ds_write_b128 v{vA}, v[{p0}:{p0+3}] offset:{q*16384 + mt*1024}")
        if OPT["own"]:
            a(f"s_lshl_b32 s33, s35, 13")
            a(f"v_add_u32 v{vA}, s33, v{vCH}")
        for mt in range(4): pair(0, mt)
        stamp(a, 42)
        for mt in range(4):
            silu(mt, 6, E + (mt % 2) * 4)
            p = acc(mt, 6)
            a(f"v_cvt_pk_bf16_f32 v{p}, v{p}, v{p+1}")
            a(f"v_cvt_pk_bf16_f32 v{p+1}, v{p+2}, v{p+3}")
            a(f"ds_write_b64 v{vB2}, v[{p}:{p+1}] offset:{mt*1024}")
        a("s_waitcnt lgkmcnt(0)")
        stamp(a, 40)
        a("s_barrier")
        stamp(a, 41)
        a(f"""
        s_lshl_b32 s33, s35, 11
        v_add_u32 v{vB2}, s33, v{vCH}
        v_add_u32 v{vB1}, {XCH}, v{vB2}
        ds_read_b128 v[{acc(0,6)}:{acc(0,6)+3}], v{vB1}
        ds_read_b128 v[{acc(1,6)}:{acc(1,6)+3}], v{vB1} offset:1024
        """)
        pair(1, 0)
        a("s_waitcnt lgkmcnt(0)")
        a(f"buffer_store_dwordx4 v[{acc(0,6)}:{acc(0,6)+3}], v{vB2}, s[16:19], s36 offen sc0 sc1")
        a(f"buffer_store_dwordx4 v[{acc(1,6)}:{acc(1,6)+3}], v{vB2}, s[16:19], s36 offen offset:1024 sc0 sc1")
        for mt in range(1, 4): pair(1, mt)
        stamp(a, 43)
        k2 = OPT["sigA2"]
        for mt in range(k2): pair(2, mt)
        signal(a, 0, 2, acc(2, 6), False, 3 + k2, True)
        stamp(a, 45)
        if OPT["bar2"] == 0: a("s_barrier")
        stamp(a, 46)
        for mt in range(k2, 4): pair(2, mt)
        stamp(a, c.sid + 3)
        if OPT["bar2"] == 1: a("s_barrier")
        if OPT["own"]: a("s_waitcnt lgkmcnt(0)")
        a("s_mov_b32 s42, s24\ns_mov_b32 s43, s25\ns_mov_b32 s44, s31\ns_mov_b32 s45, s37")
        stamp(a, c.sid + 4)
    elif kind == "w2":
        XR = T + 32
        if c.sk and not RT:
            sk_send()
            signal(a, 6, 2, T)
            stamp(a, 47)
        srd_off(a, 16, P_OUT, 0, 4 * MB)
        a(f"""
        v_and_b32 v{t0}, 15, v1
        v_lshlrev_b32 v{t0}, 11, v{t0}
        v_and_b32 v{t1}, 1, v{vG}
        v_lshl_add_u32 v{t0}, v{t1}, 5, v{t0}
        v_lshrrev_b32 v{t1}, 1, v{vG}
        v_lshl_add_u32 v{t0}, v{t1}, 4, v{t0}
        s_lshl_b32 s30, s24, 18
        s_lshl_b32 s31, s34, 17
        s_add_u32 s30, s30, s31
        s_lshl_b32 s31, s25, 7
        s_add_u32 s30, s30, s31
        s_lshl_b32 s31, s35, 6
        s_add_u32 s30, s30, s31
        s_mov_b32 s36, 0xffff0000
        """)
        for mt in range(4):
            for nt in range(2):
                r = HRES + mt * 4 + nt * 2; p = acc(mt, nt)
                for d in range(2):
                    a(f"v_lshlrev_b32 v{T+16}, 16, v{r+d}")
                    a(f"v_and_b32 v{T+17}, s36, v{r+d}")
                    a(f"v_pk_add_f32 v[{p+2*d}:{p+2*d+1}], v[{p+2*d}:{p+2*d+1}], v[{T+16}:{T+17}]")
        if c.sk and OPT["sent"]:
            lp = a.label("xpoll"); dn = a.label("skip_xp")
            a("s_mov_b32 s39, 0x200000")
            a(f"{lp}:")
            for mt in range(4):
                a(f"buffer_load_dwordx4 v[{XR+4*mt}:{XR+4*mt+3}], v{vX}, s[20:23], s37 offen offset:{mt*1024} sc0 sc1")
            for mt in range(4):
                r = XR + 4 * mt
                a(f"s_waitcnt vmcnt({3-mt})")
                if mt == 0: a(f"v_max_u32 v{T+4}, v{r}, v{r+1}")
                else: a(f"v_max3_u32 v{T+4}, v{r}, v{r+1}, v{T+4}")
                a(f"v_max3_u32 v{T+4}, v{r+2}, v{r+3}, v{T+4}")
            a(f"""
            v_cmp_eq_u32 vcc, -1, v{T+4}
            s_nop 3
            s_cmp_eq_u64 vcc, 0
            s_cbranch_scc1 {dn}
            s_sub_u32 s39, s39, 1
            s_cbranch_scc0 {lp}
            {dn}:
            """)
            stamp(a, 48)
        elif c.sk:
            lp = a.label("xpoll"); dn = a.label("skip_xp")
            a(f"""
            s_xor_b32 s40, s40, {4 << 5}
            s_mov_b32 s39, 0x200000
            {lp}:
            buffer_load_dwordx2 v[{T+4}:{T+5}], v{(VTOP if RT else T)+2}, s[{FLS}:{FLS+3}], s40 offen sc0 sc1
            s_waitcnt vmcnt(0)
            v_cmp_eq_u64 vcc, s[{TAG}:{TAG+1}], v[{T+4}:{T+5}]
            s_nop 3
            s_cmp_eq_u64 vcc, -1
            s_cbranch_scc1 {dn}
            s_sub_u32 s39, s39, 1
            s_cbranch_scc0 {lp}
            {dn}:
            """)
            stamp(a, 48)
            for mt in range(4):
                a(f"buffer_load_dwordx4 v[{XR+4*mt}:{XR+4*mt+3}], v{vX}, s[20:23], s37 offen offset:{mt*1024} sc0 sc1")
        for mt in range(4):
            if c.sk:
                if not OPT["sent"]: a(f"s_waitcnt vmcnt(3)")
                for nt in range(2):
                    r = XR + mt * 4 + nt * 2; p = acc(mt, nt)
                    for d in range(2):
                        a(f"v_lshlrev_b32 v{T+16}, 16, v{r+d}")
                        a(f"v_and_b32 v{T+17}, s36, v{r+d}")
                        a(f"v_pk_add_f32 v[{p+2*d}:{p+2*d+1}], v[{p+2*d}:{p+2*d+1}], v[{T+16}:{T+17}]")
            t = T + mt * 4
            pk4(t, acc(mt, 0), acc(mt, 1))
            a(f"v_permlane16_swap_b32 v{t}, v{t+2}")
            a(f"v_permlane16_swap_b32 v{t+1}, v{t+3}")
            a(f"buffer_store_dwordx4 v[{t}:{t+3}], v{t0}, s[16:19], s30 offen{['', ' sc0 sc1', ' nt', ' sc1'][OPT['osf']]}")
            a("s_add_u32 s30, s30, 32768")
        stamp(a, c.sid + 3)
        if DIAG:
            a("s_waitcnt vmcnt(0)")
            stamp(a, c.sid + 4)

PV_A = 4
PV_B = 8
PV_SA = 16
PV_SB = 18
PV_RD = 32
PV_ACC = 80

def prod_setup(a, c):
    n = c.n
    wgmap(a, c.RX, c.CX)
    if c.a_off is None:
        a("s_lshl_b32 s30, s24, 18")
        srd_off(a, 8, P_X, "s30", 262144)
        for i in range(4):
            a(f"""
            v_lshrrev_b32 v2, 3, v1
            v_lshrrev_b32 v3, 4, v1
            v_add_u32 v3, {4*(i&1)}, v3
            v_and_b32 v{PV_A+i}, 7, v1
            v_xor_b32 v3, v3, v{PV_A+i}
            v_lshlrev_b32 v3, 4, v3
            v_lshl_add_u32 v3, v2, 11, v3
            s_lshl_b32 s30, s38, 16
            s_add_u32 s30, s30, {i*8*2048 - i*1024}
            v_add_u32 v{PV_A+i}, s30, v3
            """)
        c.astep = 128
    else:
        a(f"s_mul_i32 s30, s24, {c.K*256}")
        a(f"s_add_u32 s30, s30, {c.a_off}")
        srd_off(a, 8, P_WS, "s30", c.K * 256)
        a(f"""
        {"s_lshr_b32 s30, s38, 1" if c.sk else f"s_and_b32 s30, s38, {1 if c.kind == 'w2' else 3}"}
        s_lshl_b32 s30, s30, 12
        v_lshlrev_b32 v{PV_A}, 4, v1
        v_add_u32 v{PV_A}, s30, v{PV_A}
        """)
        c.astep = 16384
        if c.kind == "w2":
            a(f"""
            {"s_and_b32 s30, s38, 1" if c.sk else "s_lshr_b32 s30, s38, 1"}
            s_mul_i32 s63, s30, {4*8192}
            s_mul_i32 s64, s30, {7*8192}
            """)
    c.bstep = 64 * c.ldb
    CT = 16 // c.CX
    a(f"""
    s_and_b32 s65, s25, {CT-1}
    s_mul_i32 s65, s65, {(16 // CT) if c.rot else 0}
    """)
    if c.rot == 2: a(f"s_mov_b32 s65, {OPT['rot0']}")
    if c.kind == "w1" and OPT["own1"]: a("s_mov_b32 s65, s25")
    if c.sk: a("s_and_b32 s65, s25, 4\ns_lshl_b32 s65, s65, 1")
    a(f"""
    s_lshl_b32 s34, s38, 12
    s_mul_i32 s35, s38, {c.NBW*1024}
    """)
    if c.sk:
        a("""
        s_and_b32 s34, s38, 1
        s_lshl_b32 s34, s34, 13
        s_lshr_b32 s30, s38, 1
        s_lshl_b32 s30, s30, 12
        s_add_u32 s34, s34, s30
        """)
    if c.kind == "w2" and not OPT["own"]: a(f"s_mul_i32 s66, s65, {7*8192}")
    if not c.early: b_setup(a, c, PV_B, 12)
    a(f"""
    s_mov_b32 s27, {c.ABASE}
    s_mov_b32 s32, {c.BBASE}
    s_mul_i32 s28, s65, {c.astep}
    s_mul_i32 s29, s65, {c.bstep}
    """)

def b_setup(a, c, dst, sr_):
    if c.sk:
        a("s_andn2_b32 s30, s25, 4")
        a(f"s_mul_i32 s30, s30, {c.bcol}")
    else:
        a(f"s_mul_i32 s30, s25, {c.bcol}")
    a(f"s_sub_u32 s31, {c.K*c.ldb}, s30")
    srd_off(a, sr_, c.wp, "s30", "s31")
    a(f"""
    s_mul_i32 s30, s38, {c.NBW*64}
    s_mov_b32 s36, {c.ldb}
    """)
    for i in range(c.NBW):
        a(f"s_add_u32 s31, s30, {i*64}")
        a(f"v_add_u32 v3, s31, v1")
        d = dst + i
        if c.layout == "panel":
            a("v_bfe_u32 v2, v3, 3, 6")
            if c.korder == "F":
                a(f"v_bfe_u32 v{d}, v2, 1, 2")
            else:
                a(f"v_bfe_u32 v{d}, v2, 1, 1")
                a("v_bfe_u32 v15, v2, 3, 1")
                a(f"v_lshl_or_b32 v{d}, v15, 1, v{d}")
            a(f"""
            v_lshlrev_b32 v{d}, 1, v{d}
            v_and_b32 v15, 7, v3
            v_xor_b32 v{d}, v{d}, v15
            v_and_b32 v2, {31 if c.kind == "w2" else 63}, v2
            v_mul_lo_u32 v2, v2, s36
            v_lshl_add_u32 v{d}, v{d}, 4, v2
            """)
            if c.pstride:
                a(f"""
                v_lshrrev_b32 v3, 9, v3
                {"s_bfe_u32 s31, s25, 0x10002" if c.sk else ""}
                {"v_xor_b32 v3, s31, v3" if c.sk else ""}
                v_mul_u32_u24 v3, {c.pstride}, v3
                v_add_u32 v{d}, v{d}, v3
                """)
        else:
            a(f"""
            v_mul_u32_u24 v2, 2341, v3
            v_lshrrev_b32 v2, 16, v2
            v_mul_u32_u24 v15, 28, v2
            v_sub_u32 v3, v3, v15
            v_bfe_u32 v15, v2, 2, 1
            v_lshlrev_b32 v15, 1, v15
            v_xor_b32 v3, v3, v15
            v_mul_lo_u32 v2, v2, s36
            v_lshl_add_u32 v{d}, v3, 4, v2
            """)
        if i & 3: a(f"v_subrev_u32 v{d}, {(i&3)*1024}, v{d}")

def issueA(a, c, slot=None, adv=True):
    if slot is None: a("s_add_u32 m0, s27, s34")
    else: a(f"s_add_u32 m0, s34, {c.ABASE + slot*16384}")
    for i in range(4):
        v = PV_A + (i if c.a_off is None else 0)
        a(f"buffer_load_dwordx4 v{v}, s[8:11], s28 offen offset:{i*1024}{'' if c.a_off is None else ' sc1'} lds")
    if adv:
        a(f"s_add_u32 s28, s28, {c.astep}")
        if c.rot: a(f"s_and_b32 s28, s28, {16*c.astep - 1}")
    if slot is None:
        a(f"""
        s_add_u32 s27, s27, 16384
        s_cmp_eq_u32 s27, {c.ABASE + c.S*16384}
        s_cselect_b32 s27, {c.ABASE}, s27
        """)

def issueB(a, c, slot=None, adv=True):
    for i in range(c.NBW):
        if i % 4 == 0:
            if slot is None:
                a(f"s_add_u32 m0, s32, {c.s35}")
                if i: a(f"s_add_u32 m0, m0, {i*1024}")
            else:
                a(f"s_add_u32 m0, {c.s35}, {c.BBASE + slot*c.BB + i*1024}")
        a(f"buffer_load_dwordx4 v{c.pvb+i}, s[{c.sb}:{c.sb+3}], s29 offen offset:{(i&3)*1024}{' nt' if (c.kind == 'qkv' and OPT['qnt'] >= 2) else ''} lds")
    if adv:
        a(f"s_add_u32 s29, s29, {c.bstep}")
        if c.rot:
            a(f"s_cmp_eq_u32 s29, {16*c.bstep}")
            a("s_cselect_b32 s29, 0, s29")
    if slot is None:
        a(f"""
        s_add_u32 s32, s32, {c.BB}
        s_cmp_eq_u32 s32, {c.BBASE + c.S*c.BB}
        s_cselect_b32 s32, {c.BBASE}, s32
        """)

PV_POLL = 28
def poll_once(a, wide):
    t = PV_POLL
    if wide: a(f"buffer_load_dwordx4 v[{t}:{t+3}], v26, s[{FLS}:{FLS+3}], s33 offen sc0 sc1")
    else: a(f"buffer_load_dwordx2 v[{t}:{t+1}], v26, s[{FLS}:{FLS+3}], s33 offen sc0 sc1")
    a("s_waitcnt vmcnt(0)")
    a(f"v_cmp_eq_u64 s[56:57], s[{TAG}:{TAG+1}], v[{t}:{t+1}]")
    if wide:
        a(f"v_cmp_eq_u64 s[58:59], s[{TAG}:{TAG+1}], v[{t+2}:{t+3}]")
        a("s_nop 3")
        a("s_and_b64 s[56:57], s[56:57], s[58:59]")
    else:
        a("s_nop 3")

def gate(a, t, wide):
    lp = a.label("gate"); ok = a.label("skip_gate")
    a(f"{lp}:")
    if t == "all":
        a("s_cmp_eq_u32 s56, -1" if OPT["sk"] else "s_cmp_eq_u64 s[56:57], -1")
    else:
        a(f"s_bfe_u32 s30, s{56 + t // 8}, {hex((4 << 16) | (4 * (t % 8)))}")
        a("s_cmp_eq_u32 s30, 15")
    a(f"s_cbranch_scc1 {ok}")
    poll_once(a, wide)
    a("""
    s_sub_u32 s39, s39, 1
    s_cselect_b64 s[58:59], -1, 0
    s_cselect_b32 s39, 0, s39
    s_or_b64 s[56:57], s[56:57], s[58:59]
    """)
    a(f"s_branch {lp}")
    a(f"{ok}:")

def gate_setup(a, seam_id, wide):
    a(f"""
    s_lshl_b32 s30, s65, 2
    v_add_u32 v26, s30, v1
    v_and_b32 v26, 63, v26
    v_lshlrev_b32 v26, {4 if wide else 3}, v26
    s_lshl_b32 s33, s24, 10
    s_add_u32 s33, s33, {seam_id*16384}
    s_mov_b64 s[56:57], 0
    s_mov_b32 s39, 0x200000
    """)

def colsum_tile(a, c, lds_base, wsg, which, R, part=None):
    AD = R; ACCU = R + 4; D = R + 8; t = R + 40
    if part in (None, 0):
        a(f"""
        v_lshrrev_b32 v{t}, 4, v1
        v_bfe_u32 v{t+1}, v1, 2, 2
        v_mul_u32_u24 v{t+2}, {c.gmul}, v{t}
        v_add_u32 v{t+2}, v{t+2}, v{t+1}
        v_mul_u32_u24 v{t+2}, {c.RS}, v{t+2}
        v_and_b32 v{t+3}, 3, v1
        v_lshl_add_u32 v{t+2}, v{t+3}, 3, v{t+2}
        v_and_b32 v{t}, 1, v{t}
        s_lshl_b32 s71, {wsg}, {13 if c.layout == "panel" else 7}
        s_add_u32 s71, s71, {lds_base}
        v_add_u32 v{t+2}, s71, v{t+2}
        """)
        if c.layout == "panel":
            a(f"v_lshrrev_b32 v{t+1}, 1, v{t+1}")
            a(f"v_lshl_or_b32 v{t}, v{t}, 1, v{t+1}")
        for ts in range(4):
            a(f"v_xor_b32 v{t+3}, {ts}, v{t}")
            a(f"v_lshl_add_u32 v{AD+ts}, v{t+3}, 5, v{t+2}")
        for q in range(4):
            for ts in range(4):
                d = D + (q * 4 + ts) * 2
                a(f"ds_read_b64_tr_b16 v[{d}:{d+1}], v{AD+ts} offset:{((q>>1)*32 + (q&1)*c.rdrows) * c.RS}")
        for ts in range(4): a(f"v_mov_b32 v{ACCU+ts}, 0")
        srd_off(a, 16, P_WS, CSG_OFF + which * 524288, 524288)
        a(f"""
        s_mov_b32 s75, 0x3f803f80
        v_lshlrev_b32 v{t}, 3, v1
        """)
        if c.kind == "qkv" and OPT["dil"]:
            a(f"""
            s_lshl_b32 s71, s24, 15
            s_mul_i32 s31, s25, 1536
            s_add_u32 s71, s71, s31
            s_lshl_b32 s31, {wsg}, 9
            s_add_u32 s71, s71, s31
            s_cmp_eq_u32 {wsg}, 3
            s_cselect_b32 s71, 0x40000000, s71
            """)
        else:
            a(f"""
            s_lshl_b32 s71, s25, 15
            s_lshl_b32 s31, s24, 11
            s_add_u32 s71, s71, s31
            s_lshl_b32 s31, {wsg}, 9
            s_add_u32 s71, s71, s31
            """)
    for q in range(4):
        if part not in (None, 1 + q // 2): continue
        if part is None or q == 0: a(f"s_waitcnt lgkmcnt({12-4*q if part is None else 0})")
        for d in range(2):
            for ts in range(4):
                a(f"v_dot2c_f32_bf16 v{ACCU+ts}, s75, v{D+(q*4+ts)*2+d}")
    if part in (None, 3):
        t0, t1, t2, t3 = ACCU, ACCU + 1, ACCU + 2, ACCU + 3
        a(f"""
        v_permlane32_swap_b32 v{t0}, v{t2}
        v_permlane32_swap_b32 v{t1}, v{t3}
        v_add_f32 v{t0}, v{t0}, v{t2}
        v_add_f32 v{t1}, v{t1}, v{t3}
        v_permlane16_swap_b32 v{t0}, v{t1}
        v_add_f32 v{t0}, v{t0}, v{t1}
        v_mov_b32 v{t1}, s{TAG}
        """)
        if c.kind == "qkv":
            sk = a.label("skip_xi")
            a(f"""
            s_cmp_lg_u32 {wsg}, 3
            s_cbranch_scc1 {sk}
            v_cmp_eq_u32 vcc, s74, v1
            v_cndmask_b32 v{t0}, 0, 1.0, vcc
            {sk}:
            """)
        a(f"buffer_store_dwordx2 v[{t0}:{t1}], v{t}, s[16:19], s71 offen sc0 sc1")

G_CS = 32
G_RS = 64
def gather_cs_setup(a, c):
    which = 0 if c.kind == "qkv" else 1
    srd_off(a, 16, P_WS, CSG_OFF + which * 524288, 524288)
    if c.kind == "qkv" and OPT["dil"]:
        a(f"""
        s_min_u32 s31, s38, 2
        s_lshl_b32 s60, s31, 13
        s_lshl_b32 s31, s25, 9
        s_add_u32 s60, s60, s31
        s_mov_b32 s67, 32768
        """)
    else:
        a(f"""
        s_lshl_b32 s60, s25, 15
        s_lshl_b32 s31, s38, 9
        s_add_u32 s60, s60, s31
        s_mov_b32 s67, 2048
        """)
    a("v_lshlrev_b32 v24, 3, v1")
    return 0
def gather_cs(a, r0, r1):
    for r in range(r0, r1):
        a(f"buffer_load_dwordx2 v[{G_CS+2*r}:{G_CS+2*r+1}], v24, s[16:19], s60 offen sc0 sc1")
        a("s_add_u32 s60, s60, s67")
    return r1 - r0
def gather_rs_setup(a, c):
    if c.kind == "qkv":
        srd_off(a, 20, P_WS, RS1_OFF, 32768)
        a(f"""
        v_and_b32 v25, 31, v1
        v_lshlrev_b32 v25, 4, v25
        s_lshl_b32 s61, s24, 11
        s_lshl_b32 s31, s38, 9
        s_add_u32 s61, s61, s31
        """)
    else:
        srd_off(a, 20, P_WS, ST2_OFF, 16 * 32768)
        a(f"""
        v_and_b32 v25, 31, v1
        v_lshlrev_b32 v25, 2, v25
        v_lshrrev_b32 v15, 5, v1
        v_lshl_add_u32 v25, v15, 9, v25
        s_lshl_b32 s61, s24, 15
        s_lshl_b32 s31, s38, 7
        s_add_u32 s61, s61, s31
        """)
    return 0
def gather_rs(a, c, p0=0, p1=32):
    if c.kind == "qkv":
        a(f"buffer_load_dwordx4 v[{G_RS}:{G_RS+3}], v25, s[20:23], s61 offen sc0 sc1")
        return 1
    a(f"s_add_u32 s30, s65, {p0 // 2}")
    a("s_and_b32 s30, s30, 15")
    a("s_lshl_b32 s30, s30, 11")
    a("s_add_u32 s30, s30, s61")
    for p in range(p0, p1):
        a(f"buffer_load_dword v{G_RS+p}, v25, s[20:23], s30 offen offset:{(p&1)*1024} sc0 sc1")
    return p1 - p0

def gather_finish_cs(a, c):
    lp = a.label("gchk"); ok = a.label("skip_gok")
    a("s_mov_b32 s62, 0x40000")
    a(f"{lp}:")
    a(f"v_xor_b32 v15, s{TAG}, v{G_CS+1}")
    for r in range(1, 16):
        a(f"v_xor_b32 v27, s{TAG}, v{G_CS+2*r+1}")
        a("v_or_b32 v15, v15, v27")
    if c.kind == "qkv":
        a(f"v_xor_b32 v27, s{TAG}, v{G_RS+2}")
        a("v_or_b32 v15, v15, v27")
        a(f"v_xor_b32 v27, s{TAG+1}, v{G_RS+3}")
        a("v_or_b32 v15, v15, v27")
    a(f"""
    v_cmp_ne_u32 vcc, 0, v15
    s_nop 3
    s_cmp_eq_u64 vcc, 0
    s_cbranch_scc1 {ok}
    s_sub_u32 s62, s62, 1
    s_cbranch_scc1 {ok}
    s_sleep 2
    """)
    gather_cs_setup(a, c); gather_cs(a, 0, 16)
    if c.kind == "qkv": gather_rs(a, c)
    a("s_waitcnt vmcnt(0)")
    a(f"s_branch {lp}")
    a(f"{ok}:")
    for r in range(1, 16): a(f"v_add_f32 v{G_CS}, v{G_CS}, v{G_CS+2*r}")
    a(f"""
    v_lshlrev_b32 v2, 2, v1
    s_lshl_b32 s30, s38, 8
    s_add_u32 s30, s30, {ST_CS}
    v_add_u32 v2, s30, v2
    ds_write_b32 v2, v{G_CS}
    """)
    return 0

def gather_finish_rs(a, c):
    a(f"""
    v_and_b32 v3, 31, v1
    s_lshl_b32 s30, s38, 5
    v_add_u32 v3, s30, v3
    v_lshlrev_b32 v2, 4, v3
    v_add_u32 v2, {ST_REC}, v2
    """)
    R = G_RS
    if c.kind == "qkv":
        a(f"""
        v_lshlrev_b32 v3, 2, v3
        v_add_u32 v3, {ST_MEAN}, v3
        ds_write_b128 v2, v[{R}:{R+3}]
        ds_write_b32 v3, v{R}
        ds_write_b32 v3, v{R+1} offset:512
        """)
    else:
        a(f"""
        v_mov_b32 v{R+1}, v{R}
        v_permlane32_swap_b32 v{R}, v{R+1}
        v_mul_f32 v{R}, {f32(1.0/1024)}, v{R}
        v_mul_f32 v{R+1}, {f32(1.0/1024)}, v{R+1}
        v_fma_f32 v{R+1}, -v{R}, v{R}, v{R+1}
        v_max_f32 v{R+1}, 0, v{R+1}
        v_add_f32 v{R+4}, {f32(1e-5)}, v{R+1}
        v_rsq_f32 v{R+1}, v{R+4}
        v_sqrt_f32 v{R+3}, v{R+4}
        v_sqrt_f32 v{R+2}, v{R+4}
        v_mul_f32 v{R+1}, {f32(-LOG2E)}, v{R+1}
        ds_write_b128 v2, v[{R}:{R+3}]
        """)
    a("s_waitcnt lgkmcnt(0)")
    return 0

def row_stats_issue(a, X):
    srd_off(a, 20, P_X, 0, 4 * MB)
    srd_off(a, 16, P_DBG, 0, 256)
    a(f"""
    s_lshl_b32 s30, s24, 7
    s_lshl_b32 s31, s25, 3
    s_add_u32 s30, s30, s31
    s_lshl_b32 s31, s3, 1
    s_add_u32 s33, s30, s31
    s_lshl_b32 s30, s33, 11
    v_lshlrev_b32 v{X+18}, 4, v1
    v_mov_b32 v{X+19}, 0
    """)
    for i in range(4):
        a(f"buffer_load_dwordx4 v[{X+4*i}:{X+4*i+3}], v{X+18}, s[20:23], s30 offen offset:{i*1024}")

def row_stats_finish(a, X, T):
    s0, q0, s1, q1 = T, T + 1, T + 2, T + 3
    a(f"buffer_load_dwordx2 v[{X+16}:{X+17}], v{X+19}, s[16:19], 0 offen sc0 sc1")
    a("s_mov_b32 s75, 0x3f803f80")
    for i in range(4): a(f"v_mov_b32 v{T+i}, 0")
    a("s_waitcnt vmcnt(1)")
    for d in range(8):
        for row in range(2):
            r = X + 8 * row + d
            a(f"v_dot2c_f32_bf16 v{T+2*row}, s75, v{r}")
            a(f"v_dot2c_f32_bf16 v{T+2*row+1}, v{r}, v{r}")
    a(f"""
    v_permlane32_swap_b32 v{s0}, v{q0}
    v_permlane32_swap_b32 v{s1}, v{q1}
    v_add_f32 v{s0}, v{s0}, v{q0}
    v_add_f32 v{s1}, v{s1}, v{q1}
    v_permlane16_swap_b32 v{s0}, v{s1}
    v_add_f32 v{s0}, v{s0}, v{s1}
    v_add_f32_dpp v{s0}, v{s0}, v{s0} quad_perm:[1,0,3,2] row_mask:0xf bank_mask:0xf
    v_add_f32_dpp v{s0}, v{s0}, v{s0} quad_perm:[2,3,0,1] row_mask:0xf bank_mask:0xf
    v_add_f32_dpp v{s0}, v{s0}, v{s0} row_half_mirror row_mask:0xf bank_mask:0xf
    v_add_f32_dpp v{s0}, v{s0}, v{s0} row_mirror row_mask:0xf bank_mask:0xf
    v_mov_b32 v{q0}, v{s0}
    v_permlane32_swap_b32 v{s0}, v{q0}
    v_mul_f32 v{s0}, {f32(1.0/1024)}, v{s0}
    v_mul_f32 v{q0}, {f32(1.0/1024)}, v{q0}
    v_fma_f32 v{q0}, -v{s0}, v{s0}, v{q0}
    v_max_f32 v{q0}, 0, v{q0}
    v_add_f32 v{q0}, {f32(1e-5)}, v{q0}
    v_rsq_f32 v{q0}, v{q0}
    """)
    lp = a.label("tagp"); dn = a.label("tagd")
    a(f"""
    s_mov_b32 s39, 0x100000
    {lp}:
    s_waitcnt vmcnt(0)
    v_readfirstlane_b32 s{TAG}, v{X+16}
    v_readfirstlane_b32 s{TAG+1}, v{X+17}
    s_nop 3
    s_cmp_lg_u32 s{TAG}, 0
    s_cbranch_scc1 {dn}
    s_sleep 1
    buffer_load_dwordx2 v[{X+16}:{X+17}], v{X+19}, s[16:19], 0 offen sc0 sc1
    s_sub_u32 s39, s39, 1
    s_cmp_lg_u32 s39, 0
    s_cbranch_scc1 {lp}
    {dn}:
    """)
    srd_off(a, 20, P_WS, RS1_OFF, 32768)
    a(f"""
    v_mov_b32 v{s1}, s{TAG}
    v_mov_b32 v{q1}, s{TAG+1}
    v_and_b32 v{T+4}, 16, v1
    s_lshl_b32 s30, s33, 4
    v_mov_b32 v{T+5}, {ST_TAG}
    s_mov_b64 exec, 0x10001
    buffer_store_dwordx4 v[{T}:{T+3}], v{T+4}, s[20:23], s30 offen sc0 sc1
    ds_write_b64 v{T+5}, v[{s1}:{q1}]
    s_mov_b64 exec, -1
    s_waitcnt lgkmcnt(0)
    """)

def w2_kg(t):
    if OPT["sk"]:
        if t < 8: return 7 * t, 4
        if t < 12: return 14 * (t - 8) + 3, 7
        if t < 20: return 7 * (t - 12) + 1, 4
        return 7 * (t - 20) + 2, 4
    if t < 16: return 7 * t, 4
    if t < 24: return 14 * (t - 16) + 3, 7
    if t < 40: return 7 * (t - 24) + 1, 4
    return 7 * (t - 40) + 2, 4

def set_soff(a, c, st, A=True, B=True):
    if c.kind != "w2": return
    if OPT["own"]:
        if st < 3:
            a(f"s_add_u32 s30, s43, s63"); off = st
        elif 10 <= st < 14:
            m = st - 10; i = 2 * m
            a(f"s_add_u32 s30, s66, s64"); off = 7 * (i + (i & 4)) + 3
        else:
            t, off = (st - 3, 0) if st < 10 else ((st - 14, 1) if st < 21 else (st - 21, 2))
            a(f"""
            s_add_u32 s30, s42, {t + 1}
            s_and_b32 s30, s30, 7
            s_and_b32 s31, s30, 4
            s_add_u32 s30, s30, s31
            s_mul_i32 s30, s30, {7*8192}
            s_add_u32 s30, s30, s66
            s_add_u32 s30, s30, s63
            """)
        if A: a(f"s_add_u32 s28, s30, {off*8192}")
        if B:
            a(f"s_add_u32 s29, s30, {off*8192}")
            a("s_lshl_b32 s29, s29, 3")
        return
    base, dh = w2_kg(st)
    off = base % 7
    hs = "s63" if dh == 4 else "s64"
    a(f"s_add_u32 s30, s66, {(base - off)*8192}")
    a(f"s_sub_u32 s31, s30, {112*8192}")
    a("s_cselect_b32 s30, s30, s31")
    a(f"s_add_u32 s30, s30, {hs}")
    if A: a(f"s_add_u32 s28, s30, {off*8192}")
    if B:
        a(f"s_add_u32 s29, s30, {off*8192}")
        a("s_lshl_b32 s29, s29, 3")

def w2_early_setup(a, c):
    a(f"""
    s_mul_i32 s41, s38, {c.NBW*1024}
    s_and_b32 s30, s38, 1
    s_mul_i32 s63, s30, {4*8192}
    s_mul_i32 s64, s30, {7*8192}
    s_and_b32 s30, s25, 4
    s_mul_i32 s66, s30, {(7 if OPT["own"] else 14)*8192}
    s_and_b32 s42, s25, 3
    s_lshr_b32 s30, s25, 3
    s_lshl_b32 s30, s30, 2
    s_add_u32 s42, s42, s30
    s_mul_i32 s43, s25, {7*8192}
    """)
    c.bstep = 64 * c.ldb
    b_setup(a, c, c.pvb, c.sb)

def pre_B(a, c, st0=0, st1=None):
    for st in range(st0, c.S if st1 is None else st1):
        set_soff(a, c, st, A=False)
        issueB(a, c, (st + c.bs0) % c.SB, c.kind != "w2")
    return (( c.S if st1 is None else st1) - st0) * c.NBW

def gemm_producer(a, c, preB, gated=None, side=None, after_issue=None, unroll_to=None):
    n = c.n; S = c.S; L = 4 + c.NBW
    side = side or {}
    U = n if unroll_to is None else unroll_to
    ops = []
    w2 = c.kind == "w2"
    def iss(st):
        if gated and st < (8 if c.sk else 16): gate(a, st, gated == "wide")
        if st == (1 if (c.kind == "w1" and OPT["own1"]) else 0): stamp(a, c.sid)
        doB = not (preB and st < c.SB)
        set_soff(a, c, st, True, doB)
        issueA(a, c, st % S, not w2); ops.extend([st] * 4)
        if doB:
            issueB(a, c, (st + c.bs0) % c.SB, not w2); ops.extend([st] * c.NBW)
        if after_issue:
            if st == 1 and c.kind == "w1" and OPT["own1"]: ops.extend([st] * after_issue(0))
            ops.extend([st] * after_issue(st))
    def wait(st):
        last = max(i for i, x in enumerate(ops) if x <= st)
        a(f"s_waitcnt vmcnt({min(63, len(ops) - 1 - last)})")
    def run_side(j, tag):
        for f in side.get(j, []): ops.extend([tag] * (f() or 0))
    if DIAG and OPT['steps']: a('s_mov_b32 s99, 0\nv_mov_b32 v252, 0')
    own0 = c.kind == "w1" and OPT["own1"]
    if own0:
        a(f"s_add_u32 s28, s28, {c.astep}")
        a(f"s_and_b32 s28, s28, {16*c.astep - 1}")
        a(f"s_waitcnt vmcnt({(S-1)*c.NBW})")
        issued = 1
    else:
        iss(0); issued = 1
        if not (c.kind == "qkv" and OPT["early0"]):
            run_side(-1, 1)
            iss(1); issued = 2
        wait(0)
    stamp(a, c.sid + 1)
    pbar(a)
    j = 0
    while j < n:
        allowed = j - 1 + S
        if issued >= U and issued < n: break
        cnt = 0
        if c.kind == "qkv" and OPT["early0"] == 1 and j == 0: run_side(-1, 1)
        while issued <= allowed and cnt < 2 and issued < U:
            if c.kind == "qkv" and OPT["early0"] >= 2 and issued == OPT["early0"]: run_side(-1, OPT["early0"])
            iss(issued); issued += 1; cnt += 1
        run_side(j, max(issued - 1, j + 2))
        j += 1
        if j < n: wait(j)
        pbar(a)
    if j < n:
        assert issued == j - 1 + S
        a(f"s_mov_b32 s27, {c.ABASE + (issued % S)*16384}")
        a(f"s_mov_b32 s32, {c.BBASE + (issued % S)*c.BB}")
        for (t0, t1, stride) in c.rounds:
            if t0 == c.gate_all_at:
                a(f"s_waitcnt vmcnt({(c.gate_all_at - c.prepoll_at) * L})")
                a(f"v_cmp_eq_u64 s[56:57], s[{TAG}:{TAG+1}], v[{PV_POLL}:{PV_POLL+1}]")
                a("s_nop 3")
                gate(a, "all", False)
            if t0 == c.prepoll_at:
                gate_setup(a, c.seamB, False)
                a(f"buffer_load_dwordx2 v[{PV_POLL}:{PV_POLL+1}], v26, s[{FLS}:{FLS+3}], s33 offen sc0 sc1")
            if t0 in c.round_hook: c.round_hook[t0]()
            lp = a.label("p_loop")
            set_soff(a, c, t0, True, False)
            a(f"s_mov_b32 s26, {t1 - t0}")
            a(f"{lp}:")
            a("s_lshl_b32 s29, s28, 3")
            issueA(a, c, None, False); issueB(a, c, None, False)
            a(f"s_add_u32 s28, s28, {stride*8192}")
            a(f"s_sub_u32 s31, s28, {112*8192}")
            a("s_cselect_b32 s28, s28, s31")
            a(f"s_waitcnt vmcnt({(S-2)*L})")
            if DIAG and OPT["steps"]:
                pbar(a)
                a(f"s_sub_u32 s26, s26, 1\ns_cmp_lg_u32 s26, 0\ns_cbranch_scc1 {lp}")
            else:
                a(f"s_sub_u32 s26, s26, 1\ns_cmp_lg_u32 s26, 0\ns_barrier\ns_cbranch_scc1 {lp}")
        j = n - S + 1
        stamp(a, c.sid + 2)
        while j < n:
            j += 1
            if j < n: a(f"s_waitcnt vmcnt({(n-1-j)*L})")
            pbar(a)
    stamp(a, c.sid + 3)
    pbar_flush(a, {'qkv':0,'wo':1,'w1':2,'w2':3}[c.kind])

def own_gate_setup(a, seam_id):
    a(f"""
    v_lshrrev_b32 v2, 2, v1
    s_add_u32 s30, s42, 1
    v_add_u32 v2, s30, v2
    v_and_b32 v2, 7, v2
    v_and_b32 v3, 4, v2
    v_add_u32 v2, v2, v3
    s_and_b32 s30, s25, 4
    v_add_u32 v2, s30, v2
    v_and_b32 v3, 3, v1
    v_lshl_add_u32 v2, v2, 2, v3
    v_lshlrev_b32 v26, 3, v2
    s_lshl_b32 s33, s24, 10
    s_add_u32 s33, s33, {seam_id*16384}
    s_mov_b64 s[56:57], 0
    s_mov_b32 s39, 0x200000
    """)

def w2_producer(a, c):
    n = c.n; S = c.S
    ops = []
    def A(st):
        if 3 <= st < 10: gate(a, st - 3, False)
        if st == 3: stamp(a, c.sid)
        if st == 14:
            last = max(i for i, x in enumerate(ops) if x == -7)
            a(f"s_waitcnt vmcnt({len(ops) - 1 - last})")
            a(f"v_cmp_eq_u64 s[56:57], s[{TAG}:{TAG+1}], v[{PV_POLL}:{PV_POLL+1}]")
            a("s_nop 3")
            gate(a, "all", False)
        set_soff(a, c, st, True, False)
        issueA(a, c, st % S, False); ops.extend([st] * 4)
    def B(st, same=False):
        if same: a("s_lshl_b32 s29, s28, 3")
        else: set_soff(a, c, st, False, True)
        issueB(a, c, st % S, False); ops.extend([st] * c.NBW)
    def wait(st):
        last = max(i for i, x in enumerate(ops) if 0 <= x <= st)
        a(f"s_waitcnt vmcnt({min(63, len(ops) - 1 - last)})")
    if DIAG and OPT['steps']: a('s_mov_b32 s99, 0\nv_mov_b32 v252, 0')
    own_gate_setup(a, 0)
    a("s_waitcnt vmcnt(0)")
    pbar(a)
    apoll = f"buffer_load_dwordx2 v[{PV_POLL}:{PV_POLL+1}], v26, s[{FLS}:{FLS+3}], s33 offen sc0 sc1"
    def acheck(cnt):
        a(f"s_waitcnt vmcnt({cnt})")
        a(f"v_cmp_eq_u64 s[56:57], s[{TAG}:{TAG+1}], v[{PV_POLL}:{PV_POLL+1}]")
        a("s_nop 3")
    om = OPT["ownm"]
    pbar(a)
    if om == 1: a(apoll)
    B(4)
    pbar(a)
    if om == 1:
        acheck(4); A(3); B(5); A(4); A(5)
    elif om == 2:
        a(apoll); B(5); acheck(4); A(3); A(4); A(5)
    elif om == 3:
        A(3); B(5); A(4); A(5)
    else:
        B(5); A(3); A(4); A(5)
    wait(3)
    stamp(a, c.sid + 1)
    pbar(a)
    for j in range(3, n):
        st = j - 1 + S
        if st < n:
            if st == 12:
                own_gate_setup(a, 3)
                a(f"buffer_load_dwordx2 v[{PV_POLL}:{PV_POLL+1}], v26, s[{FLS}:{FLS+3}], s33 offen sc0 sc1")
                ops.append(-7)
            A(st); B(st, True)
        if j + 1 < n: wait(j + 1)
        pbar(a)
    stamp(a, c.sid + 3)
    pbar_flush(a, 3)

def touch(a, ptr, total_bytes, sr_=20):
    nl = total_bytes // 128 // 1024
    srd_off(a, sr_, ptr, 0, total_bytes)
    a(f"""
    s_lshl_b32 s30, s2, 2
    s_add_u32 s30, s30, s38
    s_mul_i32 s30, s30, {nl*128}
    v_lshlrev_b32 v2, 7, v1
    s_mov_b32 exec_lo, {hex(((1 << nl) - 1) & 0xffffffff)}
    s_mov_b32 exec_hi, {hex(((1 << nl) - 1) >> 32)}
    buffer_load_dword v253, v2, s[{sr_}:{sr_+3}], s30 offen
    s_mov_b64 exec, -1
    """)
    return 1

def xtouch_setup(a, ptr, nbytes, sr_, vreg):
    srd_off(a, sr_, ptr, 0, nbytes)
    a(f"""
    v_lshrrev_b32 v2, 2, v1
    v_lshlrev_b32 v2, 11, v2
    v_and_b32 v3, 3, v1
    v_lshl_add_u32 v2, v3, 7, v2
    s_and_b32 s30, s2, 3
    s_lshl_b32 s30, s30, 9
    s_lshl_b32 s31, s38, 14
    s_add_u32 s30, s30, s31
    v_add_u32 v2, s30, v2
    v_mov_b32 v3, 0x40000000
    v_cmp_gt_u32 vcc, 32, v1
    v_cndmask_b32 v{vreg}, v3, v2, vcc
    """)

def w2_xtouch(a, q):
    a(f"""
    s_lshr_b32 s30, s2, 4
    s_mul_i32 s30, s30, {7*65536}
    s_bfe_u32 s31, s2, 0x10003
    s_mul_i32 s31, s31, {4*65536 if q < 3 else 0x20000000}
    s_add_u32 s30, s30, s31
    s_add_u32 s30, s30, {q*65536}
    buffer_load_dword v253, v23, s[44:47], s30 offen
    """)
    return 1

def attention_v1(a):
    SC = (32 ** -0.5) * LOG2E
    vF, vL, vQH = 2, 4, 5
    Q = 8; O = 16; SB = 32; F = 176; T = 248
    a(f"""
    v_bfe_u32 v6, v1, 4, 1
    v_lshlrev_b32 v{vF}, 10, v6
    v_lshrrev_b32 v6, 5, v1
    v_lshl_add_u32 v{vF}, v6, 8, v{vF}
    v_and_b32 v7, 15, v1
    v_lshl_add_u32 v{vF}, v7, 4, v{vF}
    v_and_b32 v7, 31, v1
    v_lshlrev_b32 v6, 2, v6
    v_sub_u32 v{vQH}, v7, v6
    s_lshr_b32 s34, s3, 2            ; hh
    s_and_b32 s35, s3, 3             ; qb
    s_mul_i32 s30, s34, {HEADW}
    s_lshl_b32 s31, s35, 11
    s_add_u32 s30, s30, s31
    v_add_u32 v{vL}, s30, v{vF}
    ds_read_b128 v[{Q}:{Q+3}], v{vL} offset:49152
    ds_read_b128 v[{Q+4}:{Q+7}], v{vL} offset:{49152+512}
    """)
    def fr(b, i): return F + b * 8 + i * 4
    rd = []
    for b in range(9):
        for i in range(2):
            rd.append(f"ds_read_b128 v[{fr(b,i)}:{fr(b,i)+3}], v{vL} offset:{b*2048 + i*512}")
    for x in rd[:8]: a(x)
    for r in range(16):
        cst = 8 * (r >> 2) + (r & 3)
        a(f"v_cmp_gt_i32 s[{40+2*r}:{41+2*r}], {cst}, v{vQH}")
    nissued = 8
    rv = []
    for b in range(9):
        for i in range(2):
            rv.append(f"ds_read_b128 v[{fr(b,i)}:{fr(b,i)+3}], v{vL} offset:{24576 + b*2048 + i*512}")
    for b in range(9):
        a(f"s_waitcnt lgkmcnt({nissued - (2*b+2)})")
        s = SB + 16 * b
        a(f"v_mfma_f32_32x32x16_bf16 v[{s}:{s+15}], v[{fr(b,0)}:{fr(b,0)+3}], v[{Q}:{Q+3}], 0")
        if nissued < 18: a(rd[nissued]); nissued += 1
        a(f"v_mfma_f32_32x32x16_bf16 v[{s}:{s+15}], v[{fr(b,1)}:{fr(b,1)+3}], v[{Q+4}:{Q+7}], v[{s}:{s+15}]")
        if nissued < 18: a(rd[nissued]); nissued += 1
    for x in rv[:14]: a(x)
    skip = a.label("at_valid")
    a(f"""
    s_lshl_b32 s30, s24, 2
    s_add_u32 s30, s30, s35
    s_cmp_ge_u32 s30, 8
    s_cbranch_scc1 {skip}
    """)
    for b in range(8):
        nb = a.label("at_nb")
        a(f"s_cmp_ge_u32 s30, {8-b}")
        a(f"s_cbranch_scc1 {nb}")
        for r in range(16):
            a(f"v_mov_b32 v{SB+16*b+r}, 0xff800000")
        a(f"{nb}:")
    a(f"{skip}:")
    mx = T; mx2 = T + 1; sm = T + 2
    a(f"v_max_f32 v{mx}, v{SB+16}, v{SB+17}")
    a(f"v_max_f32 v{mx2}, v{SB+18}, v{SB+19}")
    idx = list(range(20, 128))
    for k in range(0, len(idx), 2):
        m = mx if (k // 2) % 2 == 0 else mx2
        a(f"v_max3_f32 v{m}, v{SB+idx[k]}, v{SB+idx[k+1]}, v{m}")
    for r in range(16):
        a(f"v_cndmask_b32 v{SB+r}, v{SB+128+r}, v{SB+r}, s[{40+2*r}:{41+2*r}]")
    for k in range(0, 16, 2):
        m = mx if (k // 2) % 2 == 0 else mx2
        a(f"v_max3_f32 v{m}, v{SB+k}, v{SB+k+1}, v{m}")
    for x in rv[14:]: a(x)
    a(f"""
    v_max_f32 v{mx}, v{mx}, v{mx2}
    v_mov_b32 v{mx2}, v{mx}
    v_permlane32_swap_b32 v{mx}, v{mx2}
    v_max_f32 v{mx}, v{mx}, v{mx2}
    v_mov_b32 v{Q}, {f32(SC)}
    v_mov_b32 v{Q+1}, {f32(SC)}
    v_mul_f32 v{Q+2}, {f32(-SC)}, v{mx}
    v_mul_f32 v{Q+3}, {f32(-SC)}, v{mx}
    v_mov_b32 v{sm}, 0
    v_mov_b32 v{sm+1}, 0
    s_waitcnt lgkmcnt(0)
    s_barrier
    """)
    sk = a.label("skip_x1")
    a(f"""
    s_cmp_lt_u32 s3, 4
    s_cbranch_scc1 {sk}
    s_mul_i32 s30, s24, {64*7168}
    s_mul_i32 s31, s38, 7168
    """)
    for i in range(7):
        if i % 4 == 0: a(f"s_add_u32 m0, s31, {XB1 + i*1024}")
        a(f"buffer_load_dwordx4 v{O+i}, s[20:23], s30 offen offset:{(i&3)*1024} lds")
    if OPT["sk"] and OPT["sent"] == 1:
        sk2 = a.label("skip_x2")
        a(f"s_branch {sk2}")
        a(f"{sk}:")
        srd_off(a, 20, P_WS, XP_OFF, 8 * MB)
        a(f"""
        s_lshl_b32 s30, s24, 19
        s_lshl_b32 s31, s3, 13
        s_add_u32 s30, s30, s31
        s_lshl_b32 s31, s25, 15
        s_add_u32 s30, s30, s31
        v_lshlrev_b32 v{O+4}, 4, v1
        """)
        for i in range(4): a(f"v_mov_b32 v{O+i}, -1")
        for mt in range(4):
            a(f"buffer_store_dwordx4 v[{O}:{O+3}], v{O+4}, s[20:23], s30 offen offset:{mt*1024} sc0 sc1")
        a(f"{sk2}:")
    else:
        a(f"{sk}:")
    def pack(s):
        for d, r in [(0, 0), (1, 2), (2, 8), (3, 10), (4, 4), (5, 6), (6, 12), (7, 14)]:
            a(f"v_cvt_pk_bf16_f32 v{s+d}, v{s+r}, v{s+r+1}")
    first = [True]
    def pv(b, s):
        c0 = "0" if first[0] else f"v[{O}:{O+15}]"
        first[0] = False
        a(f"v_mfma_f32_32x32x16_bf16 v[{O}:{O+15}], v[{fr(b,0)}:{fr(b,0)+3}], v[{s}:{s+3}], {c0}")
        a(f"v_mfma_f32_32x32x16_bf16 v[{O}:{O+15}], v[{fr(b,1)}:{fr(b,1)+3}], v[{s+4}:{s+7}], v[{O}:{O+15}]")
    pending = None
    for b in [0, 1, 2, 3, 4, 5, 6, 7]:
        s = SB + 16 * b
        for r in range(0, 16, 2):
            a(f"v_pk_fma_f32 v[{s+r}:{s+r+1}], v[{s+r}:{s+r+1}], v[{Q}:{Q+1}], v[{Q+2}:{Q+3}]")
        if pending is not None:
            for p in pending: pv(*p)
            pending = None
        for r in range(16):
            a(f"v_exp_f32 v{s+r}, v{s+r}")
        for r in range(0, 16, 2):
            a(f"v_pk_add_f32 v[{sm}:{sm+1}], v[{sm}:{sm+1}], v[{s+r}:{s+r+1}]")
        if b == 0:
            s8 = SB + 128
            for r in range(16):
                a(f"v_cndmask_b32 v{s8+r}, v{s+r}, 0, s[{40+2*r}:{41+2*r}]")
                a(f"v_cndmask_b32 v{s+r}, 0, v{s+r}, s[{40+2*r}:{41+2*r}]")
            pack(s); pack(s8)
            pending = [(0, s), (8, s8)]
        else:
            pack(s)
            pending = [(b, s)]
    for p in pending: pv(*p)
    srd_off(a, 16, P_WS, O_OFF, 4 * MB)
    a(f"""
    v_add_f32 v{sm}, v{sm}, v{sm+1}
    v_mov_b32 v{sm+1}, v{sm}
    v_permlane32_swap_b32 v{sm}, v{sm+1}
    v_add_f32 v{sm}, v{sm}, v{sm+1}
    v_rcp_f32 v{sm+1}, v{sm}
    v_rcp_f32 v{sm}, v{sm}
    s_lshl_b32 s30, s24, 18
    s_lshl_b32 s31, s25, 14
    s_add_u32 s30, s30, s31
    s_lshl_b32 s31, s34, 13
    s_add_u32 s30, s30, s31
    s_lshl_b32 s31, s35, 11
    s_add_u32 s30, s30, s31
    """)
    for r in range(0, 16, 2):
        a(f"v_pk_mul_f32 v[{O+r}:{O+r+1}], v[{O+r}:{O+r+1}], v[{sm}:{sm+1}]")
    pack(O)
    a(f"""
    buffer_store_dwordx4 v[{O}:{O+3}], v{vF}, s[16:19], s30 offen sc0 sc1
    buffer_store_dwordx4 v[{O+4}:{O+7}], v{vF}, s[16:19], s30 offen offset:512 sc0 sc1
    """)
    stamp(a, 10)
    signal(a, 1, 3, SB)
    stamp(a, 11)

def attention(a):
    if not OPT["att2"]: return attention_v1(a)
    SC = (32 ** -0.5) * LOG2E
    vF, vL, vQH = 2, 4, 5
    Q = 8; O = 16; SB = 32; F = 176; T = 248
    MK = O + 8
    ONES = Q + 4
    LS = SB + 128
    mx = T; mx2 = T + 1
    a(f"""
    v_bfe_u32 v6, v1, 4, 1
    v_lshlrev_b32 v{vF}, 10, v6
    v_lshrrev_b32 v6, 5, v1
    v_lshl_add_u32 v{vF}, v6, 8, v{vF}
    v_and_b32 v7, 15, v1
    v_lshl_add_u32 v{vF}, v7, 4, v{vF}
    s_lshr_b32 s34, s3, 2
    s_and_b32 s35, s3, 3
    s_mul_i32 s30, s34, {HEADW}
    s_lshl_b32 s31, s35, 11
    s_add_u32 s30, s30, s31
    v_add_u32 v{vL}, s30, v{vF}
    ds_read_b128 v[{Q}:{Q+3}], v{vL} offset:49152
    ds_read_b128 v[{Q+4}:{Q+7}], v{vL} offset:{49152+512}
    """)
    def fr(b, i): return F + b * 8 + i * 4
    order = [0, 8, 1, 2, 3, 4, 5, 6, 7]
    rd = [f"ds_read_b128 v[{fr(b,i)}:{fr(b,i)+3}], v{vL} offset:{b*2048 + i*512}" for b in order for i in range(2)]
    rv = [f"ds_read_b128 v[{fr(b,i)}:{fr(b,i)+3}], v{vL} offset:{24576 + b*2048 + i*512}" for b in order for i in range(2)]
    for x in rd[:8]: a(x)
    a(f"""
    v_and_b32 v7, 31, v1
    v_lshlrev_b32 v6, 2, v6
    v_sub_u32 v{vQH}, v7, v6
    v_mov_b32 v6, 0xffff0000
    """)
    msk = lambda r: f"s[{40+2*r}:{41+2*r}]"
    for r in range(16):
        a(f"v_cmp_gt_i32 {msk(r)}, {8 * (r >> 2) + (r & 3)}, v{vQH}")
    PK = [(0, 0), (1, 2), (2, 8), (3, 10), (4, 4), (5, 6), (6, 12), (7, 14)]
    fill = {k: [] for k in range(9)}
    for d, r in PK:
        fill[d // 4].append(f"v_cndmask_b32 v{MK+d}, 0, v6, {msk(r+1)}")
        fill[d // 4].append(f"v_cndmask_b32 v{MK+d}, v{MK+d}, -1, {msk(r)}")
    def merge(): return [f"v_cndmask_b32 v{SB+r}, v{SB+128+r}, v{SB+r}, {msk(r)}" for r in range(16)]
    def maxblk(b, first=False):
        o = []; s_ = SB + 16 * b
        for k in range(0, 16, 2):
            m = mx if (k // 2) % 2 == 0 else mx2
            if first and k < 4: o.append(f"v_max_f32 v{m}, v{s_+k}, v{s_+k+1}")
            else: o.append(f"v_max3_f32 v{m}, v{s_+k}, v{s_+k+1}, v{m}")
        return o
    mg = merge()
    fill[3] += mg[:8]; fill[4] += mg[8:] + maxblk(1, True)[:4]
    fill[5] += maxblk(1, True)[4:] + maxblk(0); fill[6] += maxblk(2) + maxblk(3)[:4]
    fill[7] += maxblk(3)[4:] + maxblk(4); fill[8] += maxblk(5)
    nissued = 8
    late = []
    for k, b in enumerate(order):
        a(f"s_waitcnt lgkmcnt({nissued - (2*k+2)})")
        s_ = SB + 16 * b
        fl = fill[k]; h = len(fl) // 2
        if OPT["bis"] == 1: h = 0
        if OPT["bis"] == 2: late += fl; fl = []
        a(f"v_mfma_f32_32x32x16_bf16 v[{s_}:{s_+15}], v[{fr(b,0)}:{fr(b,0)+3}], v[{Q}:{Q+3}], 0")
        if nissued < 18: a(rd[nissued]); nissued += 1
        for x in fl[:h]: a(x)
        a(f"v_mfma_f32_32x32x16_bf16 v[{s_}:{s_+15}], v[{fr(b,1)}:{fr(b,1)+3}], v[{Q+4}:{Q+7}], v[{s_}:{s_+15}]")
        if nissued < 18: a(rd[nissued]); nissued += 1
        for x in fl[h:]: a(x)
    for x in rv[:12]: a(x)
    for x in late + maxblk(6) + maxblk(7): a(x)
    skip = a.label("at_valid")
    a(f"""
    s_lshl_b32 s30, s24, 2
    s_add_u32 s30, s30, s35
    s_cmp_ge_u32 s30, 8
    s_cbranch_scc1 {skip}
    v_mov_b32 v7, 0xff800000
    """)
    for r in range(16):
        a(f"v_cndmask_b32 v{SB+r}, v{SB+r}, v7, {msk(r)}")
    for b in range(1, 8):
        nb = a.label("at_nb")
        a(f"s_cmp_ge_u32 s30, {8-b}")
        a(f"s_cbranch_scc1 {nb}")
        for r in range(16):
            a(f"v_mov_b32 v{SB+16*b+r}, v7")
        a(f"{nb}:")
    for b in range(8):
        for x in maxblk(b, b == 0): a(x)
    a(f"{skip}:")
    for x in rv[12:]: a(x)
    a(f"""
    v_max_f32 v{mx}, v{mx}, v{mx2}
    v_mov_b32 v{Q}, {f32(SC)}
    v_mov_b32 v{Q+1}, {f32(SC)}
    v_mov_b32 v{mx2}, v{mx}
    """)
    for i in range(4): a(f"v_mov_b32 v{ONES+i}, 0x3f803f80")
    a(f"""
    v_permlane32_swap_b32 v{mx}, v{mx2}
    v_max_f32 v{mx}, v{mx}, v{mx2}
    v_mul_f32 v{Q+2}, {f32(-SC)}, v{mx}
    v_mul_f32 v{Q+3}, {f32(-SC)}, v{mx}
    """)
    def free_lds():
        a("s_waitcnt lgkmcnt(0)")
        a("s_barrier")
        sk = a.label("skip_x1")
        a(f"""
        s_cmp_lt_u32 s3, 4
        s_cbranch_scc1 {sk}
        """)
        if OPT["deepb"]:
            cw = mk("wo", **CFG["wo"]); cw.bstep = 64 * cw.ldb; cw.pvb = 250; cw.s35 = "s33"
            a("s_lshl_b32 s33, s38, 11")
            pre_B(a, cw, 4, 12)
        a(f"""
        s_mul_i32 s30, s24, {64*7168}
        s_mul_i32 s31, s38, 7168
        """)
        for i in range(7):
            if i % 4 == 0: a(f"s_add_u32 m0, s31, {xb1() + i*1024}")
            a(f"buffer_load_dwordx4 v{O+i}, s[20:23], s30 offen offset:{(i&3)*1024} lds")
        a(f"{sk}:")
    def pack(s_):
        return [f"v_cvt_pk_bf16_f32 v{s_+d}, v{s_+r}, v{s_+r+1}" for d, r in PK]
    fo = [True]; fl_ = [True]
    def pv(b, s_):
        o = []
        for i in range(2):
            c0 = "0" if fo[0] else f"v[{O}:{O+15}]"; fo[0] = False
            o.append(f"v_mfma_f32_32x32x16_bf16 v[{O}:{O+15}], v[{fr(b,i)}:{fr(b,i)+3}], v[{s_+4*i}:{s_+4*i+3}], {c0}")
        return o
    def rsum(s_):
        o = []
        for i in range(2):
            c0 = "0" if fl_[0] else f"v[{LS}:{LS+15}]"; fl_[0] = False
            o.append(f"v_mfma_f32_32x32x16_bf16 v[{LS}:{LS+15}], v[{ONES}:{ONES+3}], v[{s_+4*i}:{s_+4*i+3}], {c0}")
        return o
    pend = []
    BARB = OPT["attbar"]
    held = []
    for b in range(8):
        s_ = SB + 16 * b
        if b == BARB:
            free_lds(); pend += [x for bb, ss in held for x in pv(bb, ss)]; held = []
        work = [f"v_pk_fma_f32 v[{s_+r}:{s_+r+1}], v[{s_+r}:{s_+r+1}], v[{Q}:{Q+1}], v[{Q+2}:{Q+3}]" for r in range(0, 16, 2)]
        work += [f"v_exp_f32 v{s_+r}, v{s_+r}" for r in range(16)]
        work += pack(s_)
        take = pend[:6]; pend = pend[6:]
        for x in {3: interleave(work, take, 7, 1, 6), 5: interleave(work, take, 7, 3, 1), 6: interleave(work, take, 1, 1, 1), 7: interleave(work, take, 7, 8, 2), 8: interleave(work, take, 23, 1, 1)}.get(OPT["bis"], interleave(work, take, 2, 4, 1)): a(x)
        if b == 0:
            for d in range(8): a(f"v_and_b32 v{s_+8+d}, v{MK+d}, v{s_+d}")
            for d in range(8): a(f"v_xor_b32 v{s_+d}, v{s_+8+d}, v{s_+d}")
            pend += rsum(s_ + 8) + rsum(s_)
            blocks = [(0, s_ + 8), (8, s_)]
        else:
            pend += rsum(s_)
            blocks = [(b, s_)]
        if b < BARB: held += blocks
        else: pend += [x for bb, ss in blocks for x in pv(bb, ss)]
    for x in pend: a(x)
    srd_off(a, 16, P_WS, O_OFF, 4 * MB)
    a(f"""
    s_lshl_b32 s30, s24, 18
    s_lshl_b32 s31, s25, 14
    s_add_u32 s30, s30, s31
    s_lshl_b32 s31, s34, 13
    s_add_u32 s30, s30, s31
    s_lshl_b32 s31, s35, 11
    s_add_u32 s30, s30, s31
    """)
    if OPT["bis"] == 4: a("s_nop 15\ns_nop 15")
    a(f"v_rcp_f32 v{mx}, v{LS}")
    a(f"v_rcp_f32 v{mx+1}, v{LS}")
    for r in range(0, 16, 2):
        a(f"v_pk_mul_f32 v[{O+r}:{O+r+1}], v[{O+r}:{O+r+1}], v[{mx}:{mx+1}]")
    for x in pack(O): a(x)
    a(f"""
    buffer_store_dwordx4 v[{O}:{O+3}], v{vF}, s[16:19], s30 offen sc0 sc1
    buffer_store_dwordx4 v[{O+4}:{O+7}], v{vF}, s[16:19], s30 offen offset:512 sc0 sc1
    """)
    stamp(a, 10)
    signal(a, 1, 3, SB)
    stamp(a, 11)

def build(header_src=None):
    a = Asm()
    C = {k: mk(k, **v) for k, v in CFG.items()}
    kernel_begin(a, KNAME)
    if OPT["t0"]: a("s_memrealtime s[96:97]")
    a(f"""
    s_cmp_ge_u32 s2, 256
    s_cbranch_scc1 L_end
    s_load_dwordx16 s[80:95], s[0:1], 0
    s_load_dwordx2 s[4:5], s[0:1], 64
    v_lshrrev_b32 v2, 6, v0
    v_and_b32 v1, 63, v0
    v_readfirstlane_b32 s3, v2
    s_getreg_b32 s74, hwreg(HW_REG_XCC_ID)
    s_and_b32 s74, s74, 15
    s_mov_b32 s{TAG}, 0
    s_mov_b32 s{TAG+1}, 0
    s_waitcnt lgkmcnt(0)
    """)
    srd_off(a, FLS, P_WS, FL_OFF, 131072)
    if DIAG: a(f"v_mov_b32 v{VS}, 0")
    stamp(a, 63)
    a("""
    s_cmp_ge_u32 s3, 4
    s_cbranch_scc1 L_prod
    """)
    a("""
    s_or_b32 s30, s2, s3
    s_cmp_lg_u32 s30, 0
    s_cbranch_scc1 L_notag
    """)
    srd_off(a, 16, P_DBG, 0, 256)
    a("""
    """)
    a("s_mov_b64 s[30:31], s[96:97]" if OPT["t0"] else "s_memrealtime s[30:31]")
    a("""
    v_mov_b32 v4, 0
    s_waitcnt lgkmcnt(0)
    s_or_b32 s30, s30, 1
    v_mov_b32 v2, s30
    v_mov_b32 v3, s31
    s_mov_b64 exec, 1
    buffer_store_dwordx2 v[2:3], v4, s[16:19], 0 offen sc0 sc1
    s_mov_b64 exec, -1
    L_notag:
    """)
    if OPT["cpf"]:
        a(f"""
        s_getpc_b64 s[30:31]
        L_pc:
        s_sub_u32 s16, s30, L_pc-{KNAME}
        s_subb_u32 s17, s31, 0
        s_mov_b32 s18, L_code_end-{KNAME}
        s_mov_b32 s19, 0x20000
        s_lshr_b32 s30, s2, 3
        s_lshl_b32 s30, s30, 11
        s_lshl_b32 s31, s3, 9
        s_add_u32 s30, s30, s31
        v_lshlrev_b32 v2, 7, v1
        s_mov_b64 exec, 15
        buffer_load_dword v253, v2, s[16:19], s30 offen
        s_mov_b64 exec, -1
        """)
    if OPT["prio"]: a(f"s_setprio {OPT['prio']}")
    gemm_consumer(a, C["qkv"])
    a("s_barrier")
    a("L_attn:")
    stamp(a, 9)
    attention(a)
    a("""
    s_barrier
    s_cmp_ge_u32 s3, 4
    s_cbranch_scc1 L_prod2
    """)
    colsum_tile(a, C["w1"], xb1(), "s3", 1, 32)
    if OPT["deepb"]: a("s_barrier")
    gemm_consumer(a, C["wo"])
    gemm_consumer(a, C["w1"])
    gemm_consumer(a, C["w2"])
    if OPT["spin"]:
        a(f"""
        s_waitcnt vmcnt(0)
        L_spin:
        s_memrealtime s[96:97]
        s_waitcnt lgkmcnt(0)
        s_sub_u32 s96, s96, s{TAG}
        s_cmp_lt_u32 s96, {OPT["spin"]}
        s_cbranch_scc1 L_spin
        """)
    stamp_flush(a)
    a("s_endpgm")
    C["w2"].ool()
    if OPT["reslate"]: C["wo"].ool()
    a("L_prod:")
    a("s_sub_u32 s38, s3, 4")
    c = C["qkv"]
    prod_setup(a, c)
    cq = c
    def q_extra():
        vb, sr_ = PV_B, 12
        if OPT["dil"]:
            cx = mk("qkv", **CFG["qkv"]); cx.pstride = 128; cx.bcol = 384
            vb, sr_ = 16, 20
            b_setup(a, cx, vb, sr_)
        a(f"s_mul_i32 s33, s24, {64*cq.ldb}")
        for i in range(cq.NBW):
            if i % 4 == 0: a(f"s_add_u32 m0, s35, {XB0 + i*1024}")
            a(f"buffer_load_dwordx4 v{vb+i}, s[{sr_}:{sr_+3}], s33 offen offset:{(i&3)*1024} lds")
        return cq.NBW
    def q_colsum(part=None):
        if part in (None, 0):
            a(f"""
            v_mov_b32 v2, {ST_TAG}
            ds_read_b64 v[{PV_RD}:{PV_RD+1}], v2
            s_waitcnt lgkmcnt(0)
            v_readfirstlane_b32 s{TAG}, v{PV_RD}
            v_readfirstlane_b32 s{TAG+1}, v{PV_RD+1}
            """)
        a("s_setprio 3")
        colsum_tile(a, cq, XB0, "s38", 0, PV_RD, part)
        a("s_setprio 0")
        return 1 if part in (None, 3) else 0
    def hi(f):
        def g():
            a("s_setprio 3"); r = f(); a("s_setprio 0"); return r
        return g
    side = {-1: [q_extra], max(OPT['early0'], 1): [q_colsum], 12: [lambda: gather_cs_setup(a, cq), lambda: gather_rs_setup(a, cq)],
            14: [lambda: gather_rs(a, cq), lambda: gather_cs(a, 0, 16)]}
    side[15] = [lambda: a("s_waitcnt vmcnt(0)"), hi(lambda: gather_finish_cs(a, cq)), hi(lambda: gather_finish_rs(a, cq))]
    if OPT["cspl"]:
        cb = max(OPT["early0"], 1)
        del side[cb]
        for k in range(4): side.setdefault(cb + k, []).append(lambda k=k: q_colsum(k))
    if OPT["help"]:
        def help_setup():
            srd_off(a, 44, P_WQKV, 0, 6 * MB)
            a(f"""
            s_and_b32 s30, s25, 3
            s_lshl_b32 s31, s30, 11
            s_or_b32 s70, s25, 3
            s_lshl_b32 s70, s70, 7
            s_add_u32 s31, s31, s70
            v_mov_b32 v2, 6144
            v_mul_lo_u32 v23, v1, v2
            v_add_u32 v23, s31, v23
            s_and_b32 s70, s24, 7
            s_cmp_eq_u32 s30, 3
            s_cselect_b32 s70, 99, s70
            s_and_b32 s30, s25, 4
            s_cselect_b32 s70, 99, s70
            s_cmp_lg_u32 s38, 0
            s_cselect_b32 s70, 99, s70
            """)
            return 0
        def helper(k):
            def f():
                sk = a.label("skip_help")
                a(f"""
                s_cmp_lg_u32 s70, {k & 7}
                s_cbranch_scc1 {sk}
                s_mov_b32 s30, {(k + OPT['help']) * 64 * 6144}
                buffer_load_dword v253, v23, s[44:47], s30 offen
                {sk}:
                """)
                return 0
            return f
        help_setup()
        for k in range(0, 16 - OPT["help"]): side.setdefault(k, []).insert(0, helper(k))
    if OPT["sk"] and OPT["sent"] == 2:
        def prefill(k):
            def f():
                if k == 0:
                    srd_off(a, 16, P_WS, XP_OFF, 8 * MB)
                    a(f"""
                    s_lshl_b32 s62, s24, 19
                    s_lshl_b32 s31, s38, 13
                    s_add_u32 s62, s62, s31
                    s_lshl_b32 s31, s25, 15
                    s_add_u32 s62, s62, s31
                    v_lshlrev_b32 v27, 4, v1
                    """)
                    for i in range(4): a(f"v_mov_b32 v{28+i}, -1")
                a(f"buffer_store_dwordx4 v[28:31], v27, s[16:19], s62 offen offset:{k*1024} sc0 sc1")
                return 1
            return f
        for k in range(4): side.setdefault(5 + (k // OPT["pfg"]), []).append(prefill(k))
    if OPT["tlb"]:
        def tlbwarm():
            G = OPT["tlb"] * MB // 2 if OPT["tlb"] > 1 else 2 * MB
            a(f"s_mul_i32 s30, s38, {12*MB}")
            a(f"s_add_u32 s30, s30, {8*MB}")
            a(f"s_add_u32 s98, s{P_WS}, s30")
            a(f"s_addc_u32 s99, s{P_WS+1}, 0")
            for k in range(6):
                a(f"s_load_dword s100, s[98:99], 0")
                a(f"s_add_u32 s98, s98, {2*MB}")
                a(f"s_addc_u32 s99, s99, 0")
            a(f"s_lshl_b32 s30, s38, 21")
            for ptr, npg in ((P_W1, 4), (P_OUT, 2), (P_WO, 1)):
                a(f"s_min_u32 s31, s30, {(npg-1)*2*MB}")
                a(f"s_add_u32 s98, s{ptr}, s31")
                a(f"s_addc_u32 s99, s{ptr+1}, 0")
                a(f"s_load_dword s101, s[98:99], 0")
            return 0
        side.setdefault(5, []).insert(0, tlbwarm)
    spf = [0]
    def sprefetch(k):
        def f():
            for _ in range(k):
                if spf[0] < 112:
                    a(f"s_load_dword s{100 + (spf[0] & 1)}, s[68:69], {spf[0]*64}")
                    spf[0] += 1
            return 0
        return f
    def spf_setup():
        a(f"""
        s_lshl_b32 s30, s2, 2
        s_add_u32 s30, s30, s38
        s_mul_i32 s30, s30, 7168
        s_add_u32 s68, s{P_W2}, s30
        s_addc_u32 s69, s{P_W2+1}, 0
        """)
        return 0
    if OPT["pf"] == 3:
        side.setdefault(5, []).append(spf_setup)
        for k in range(5, 13): side.setdefault(k, []).append(sprefetch(6))
    gemm_producer(a, c, False, None, side)
    if OPT["xst"]:
        for i in range(4): a(f"v_mov_b32 v{28+i}, v{PV_A+i}")
        a("""
        s_mov_b32 s48, s8
        s_mov_b32 s49, s9
        s_mov_b32 s50, s10
        s_mov_b32 s51, 0x20000
        """)
    a(f"""
    s_sub_u32 s30, s24, 1
    s_max_i32 s30, s30, 0
    s_sub_u32 s31, s24, 2
    s_max_i32 s31, s31, 0
    s_sub_u32 s30, s30, s31
    s_lshl_b32 s30, s30, 11
    v_bfe_u32 v2, v1, 2, 1
    v_mul_lo_u32 v2, v2, s30
    v_and_b32 v3, 3, v1
    v_lshl_add_u32 v2, v3, 3, v2
    s_lshl_b32 s31, s31, 11
    s_lshl_b32 s30, s25, 7
    s_add_u32 s33, s30, s31
    s_add_u32 s33, s33, 65536
    """)
    a(f"""
    s_lshr_b32 s34, s38, 1
    s_and_b32 s35, s38, 1
    s_lshl_b32 s30, s25, 1
    s_add_u32 s30, s30, s34
    s_lshl_b32 s30, s30, 17
    s_lshl_b32 s31, s35, 22
    s_add_u32 s30, s30, s31
    s_add_u32 s30, s30, {K_OFF}
    """)
    srd_off(a, 8, P_WS, "s30", 131072)
    a(f"""
    s_lshl_b32 s30, s24, 13
    s_sub_u32 s30, s30, 16384
    v_lshlrev_b32 v4, 4, v1
    v_add_u32 v4, s30, v4
    s_mul_i32 s34, s34, {HEADW}
    s_mul_i32 s35, s35, 24576
    s_add_u32 s34, s34, s35
    """)
    a("v_mov_b32 v5, v2")
    b_setup(a, C["w1"], 16, 20)
    wait_flags(a, 5, "s33", False, PV_RD)
    stamp(a, 5)
    for q in range(4):
        a(f"s_add_u32 m0, s34, {q*4096}")
        for i in range(4):
            a(f"buffer_load_dwordx4 v4, s[8:11], 0 offen offset:{i*1024}{NBF[OPT['nbf']]} lds")
        if q < 3: a("v_add_u32 v4, 0x1000, v4")
    a("s_mov_b32 s98, s24\ns_mov_b32 s99, s25")
    c = C["wo"]
    prod_setup(a, c)
    a("s_mov_b32 s24, s98\ns_mov_b32 s25, s99")
    a("s_waitcnt vmcnt(0)")
    stamp(a, 6)
    a("s_barrier")
    if OPT["xst"]:
        a(f"s_add_u32 m0, s34, {XST}")
        a("s_lshl_b32 s30, s25, 7")
        for i in range(4):
            a(f"buffer_load_dwordx4 v{28+i}, s[48:51], s30 offen offset:{i*1024} lds")
    pre_B(a, c, 0, 4 if OPT["deepb"] else None)
    if OPT["xt"]:
        xtouch_setup(a, P_WO, 2 * MB, 16, 2)
        a("""
        s_lshr_b32 s30, s2, 3
        s_lshl_b32 s30, s30, 16
        buffer_load_dword v253, v2, s[16:19], s30 offen
        """)
    elif OPT["pf"]: touch(a, P_WO, 2 * MB, 16)
    if OPT["deepb"]: a("v_mov_b32 v250, v8\nv_mov_b32 v251, v9")
    a("s_branch L_attn")
    a("L_prod2:")
    c = C["wo"]
    prod_setup(a, c)
    a(f"s_add_u32 s29, s29, {c.SB*64*c.ldb}")
    a(f"s_and_b32 s29, s29, {16*64*c.ldb - 1}")
    gate_setup(a, 1, True)
    if OPT["deepb"]: a("s_barrier")
    gemm_producer(a, c, True, "wide")
    c = C["w1"]; c1 = c
    prod_setup(a, c)
    if OPT["wobar"]: a("s_barrier")
    pre_B(a, c)
    gather_cs_setup(a, c)
    gather_rs_setup(a, c)
    if C["w2"].early: w2_early_setup(a, C["w2"])
    gate_setup(a, 2, False)
    def w2hook(k):
        def f():
            sk = a.label("skip_pf")
            a(f"""
            s_lshr_b32 s30, s2, 3
            s_and_b32 s30, s30, 7
            s_cmp_lg_u32 s30, {k}
            s_cbranch_scc1 {sk}
            """)
            touch(a, P_W2, 7 * MB, 44)
            a(f"{sk}:")
            return 0
        return f
    side = {}
    if OPT["pf"] == 2:
        for k in range(8): side.setdefault(3 + k, []).append(w2hook(k))
    if OPT["pf"] == 3:
        spf_setup()
        for k in range(0, 13): side.setdefault(k, []).append(sprefetch(5))
    def rs_add(p0, p1):
        def f():
            for p in range(max(p0, 1), p1): a(f"v_add_f32 v{G_RS}, v{G_RS}, v{G_RS+p}")
        return f
    side.setdefault(8, []).append(hi(rs_add(0, 16)))
    side.setdefault(13, []).append(hi(rs_add(16, 26)))
    side[14] = [lambda: gather_cs(a, 0, 16)]
    side[15] = [hi(rs_add(26, 32)), lambda: a("s_waitcnt vmcnt(0)"), hi(lambda: gather_finish_cs(a, c1)), hi(lambda: gather_finish_rs(a, c1))]
    if C["w2"].early:
        c2 = C["w2"]
        side[14].append(lambda: pre_B(a, c2, 0, 1))
        side[15] = [lambda: pre_B(a, c2, 1, 4), hi(rs_add(26, 32)), lambda: a("s_waitcnt vmcnt(16)"), hi(lambda: gather_finish_cs(a, c1)), hi(lambda: gather_finish_rs(a, c1))]
    gemm_producer(a, c, True, "narrow", side, lambda st: gather_rs(a, c1, 2 * st, 2 * st + 2))
    c = C["w2"]
    c.rounds = [(16, OPT['prepoll'], 14), (OPT['prepoll'], 24, 14), (24, 40, 7), (40, 56, 7)]; c.prepoll_at = OPT['prepoll']; c.gate_all_at = 24; c.seamB = 3
    if c.sk:
        c.rounds = [(8, 10, 14), (10, 12, 14), (12, 20, 7), (20, 28, 7)]; c.prepoll_at = 10; c.gate_all_at = 12
    prod_setup(a, c)
    if not c.early: pre_B(a, c)
    side = {}
    c.round_hook = {}
    if OPT["xt"] and not c.sk:
        xtouch_setup(a, P_W2, 7 * MB, 44, 23)
        w2_xtouch(a, 0); w2_xtouch(a, 3)
        side = {4: [lambda: w2_xtouch(a, 1)]}
        c.round_hook = {24: lambda: w2_xtouch(a, 2)}
    a("s_barrier")
    a("s_barrier")
    if OPT["own"]:
        w2_producer(a, c)
    else:
        gate_setup(a, 0, False)
        gemm_producer(a, c, True, "narrow", side, None, 8 if c.sk else 16)
    stamp_flush(a)
    a("L_end:")
    a("s_endpgm")
    a("L_code_end:")
    body, nins = hazard.fix(a.lines)
    hdr = []
    if header_src:
        for ln in open(header_src):
            if ln.startswith(";") and "@launch" not in ln:
                hdr.append(ln.rstrip("\n"))
            elif not ln.startswith(";"):
                break
    hdr.append(f"; @launch grid=(256,1,1) block=(512,1,1) lds=163840")
    hdr.append('.amdgcn_target "amdgcn-amd-amdhsa--gfx950"')
    hdr.append(".text")
    return "\n".join(hdr) + "\n" + "\n".join(body) + "\n" + kernel_desc(KNAME, 256, 102), nins

if __name__ == "__main__":
    if "--diag" in sys.argv:
        DIAG = True; sys.argv.remove("--diag")
    for arg in list(sys.argv[1:]):
        if "=" in arg:
            k_, v_ = arg.split("=", 1)
            if "." in k_:
                kk, f_ = k_.split(".")
                for kind_ in (CFG.keys() if kk == "all" else [kk]): CFG[kind_][f_] = int(v_)
            else: OPT[k_] = int(v_)
            sys.argv.remove(arg)
    out = sys.argv[1] if len(sys.argv) > 1 else "p1.s"
    txt, nins = build(header_src="sequential_preLN__sliding_block__dense_activation_silu__prompt.s.ref")
    open(out, "w").write(txt)
    print("wrote", out, len(txt), "bytes; nop states inserted:", nins)
```

```python
import sys, struct
from asmlib import *
import hazard

MB = 1 << 20
K_OFF = 8 * MB
V_OFF = 12 * MB
O_OFF = 16 * MB
H_OFF = 20 * MB
H1_OFF = 24 * MB
FL_OFF = 40 * MB
RS1_OFF = 41 * MB
CSG_OFF = 42 * MB
FIN_OFF = 41 * MB + 524288
XP_OFF = 44 * MB
ST2_OFF = 43 * MB
DIAG_OFF = 64 * MB
LOG2E = 1.4426950408889634
KNAME = "sequential_preLN__sliding_block__dense_activation_silu__prompt_kernel"
P_X, P_WQKV, P_WO, P_W1, P_W2, P_OUT, P_DBG, P_WS = 80, 82, 84, 88, 90, 92, 94, 4
TAG = 72
FLS = 76
ST = 155648
ST_REC, ST_MEAN, ST_RSTD, ST_CS, ST_CSP = ST, ST + 2048, ST + 2560, ST + 3072, ST + 4096
HEADW = 57344
XB0 = 122880
XB1 = 81920
XCH = 147456
XST = 147456
ST_TAG = ST + 4096
HRES = 232
DEF = 200
VS = 254
DIAG = False
OPT = dict(two=2, q2=8, own1=4, ownm=1, own=1, sktail=3, sksig=4, deepb=0, tlb=0, align=0, skrpg=1, bis=5, att2=1, attbar=1, osf=1, t0=0, spin=0, eb2=1, sigA2=2, peel=8, cspl=0, xst=1, reslate=0, sent=0, pfg=1, help=4, snake=1, rot0=4, early0=3, dil=1, sk=1, skfull=0, pf=3, xt=1, prio=0, inv=0, nodma=0, steps=0, kvlocal=0, cpf=1, nbf=1, sigA=3, sigB=3, qnt=0, bar2=0, defer=0, dper=2, dstart=0, prepoll=21, wobar=0)

def xb1(): return 0 if OPT['deepb'] else XB1

def f32(x):
    return "0x%08x" % struct.unpack("<I", struct.pack("<f", x))[0]

def srd_off(a, d, ptr, off, nrec):
    a(f"s_add_u32 s{d}, s{ptr}, {off}")
    a(f"s_addc_u32 s{d+1}, s{ptr+1}, 0")
    a(f"s_mov_b32 s{d+2}, {nrec}")
    a(f"s_mov_b32 s{d+3}, 0x20000")

def hold(a, key):
    if not OPT.get(key): return
    l = a.label("hold")
    a(f"""
    {l}:
    s_memrealtime s[96:97]
    s_waitcnt lgkmcnt(0)
    s_sub_u32 s96, s96, s{TAG}
    s_cmp_lt_u32 s96, {OPT[key]}
    s_cbranch_scc1 {l}
    """)

def stamp(a, idx):
    if not DIAG: return
    a("s_memrealtime s[96:97]")
    a("s_waitcnt lgkmcnt(0)")
    a(f"v_writelane_b32 v{VS}, s96, {idx}")

def stamp_flush(a):
    if not DIAG: return
    srd_off(a, 16, P_WS, DIAG_OFF, 524288)
    a(f"""
    s_lshl_b32 s30, s2, 11
    s_lshl_b32 s31, s3, 8
    s_add_u32 s30, s30, s31
    v_lshlrev_b32 v{VS+1}, 2, v1
    buffer_store_dword v{VS}, v{VS+1}, s[16:19], s30 offen
    """)

def pbar(a):
    a("s_barrier")
    if DIAG and OPT["steps"]:
        a("s_memtime s[96:97]" if OPT["steps"] == 2 else "s_memrealtime s[96:97]")
        a("""
        s_waitcnt lgkmcnt(0)
        s_mov_b32 m0, s99
        s_nop 0
        v_writelane_b32 v252, s96, m0
        s_add_u32 s99, s99, 1
        """)

def pbar_flush(a, ph):
    if not (DIAG and OPT["steps"]): return
    srd_off(a, 16, P_WS, DIAG_OFF + 524288 * (1 + ph), 524288)
    a(f"""
    s_lshl_b32 s30, s2, 11
    s_lshl_b32 s31, s3, 8
    s_add_u32 s30, s30, s31
    v_lshlrev_b32 v2, 2, v1
    buffer_store_dword v252, v2, s[16:19], s30 offen
    """)

def wgmap(a, RX, CX):
    CT = 16 // CX; RB = 16 // RX
    lg = lambda x: x.bit_length() - 1
    a(f"""
    s_and_b32 s30, s2, 7
    s_lshr_b32 s31, s2, 3
    s_lshr_b32 s24, s30, {lg(CX)}
    s_lshl_b32 s24, s24, {lg(RB)}
    s_and_b32 s25, s30, {CX-1}
    s_lshl_b32 s25, s25, {lg(CT)}
    s_lshr_b32 s30, s31, {lg(CT)}
    s_add_u32 s24, s24, s30
    s_and_b32 s30, s31, {CT-1}
    s_add_u32 s25, s25, s30
    """)

def st2(a, text):
    if not OPT["kvlocal"]:
        a(text + " sc0 sc1"); return
    l1 = a.label("skip_s1"); l2 = a.label("skip_s2")
    a(f"""
    s_cmp_lg_u32 s55, 0
    s_cbranch_scc1 {l1}
    {text} sc0 sc1
    s_branch {l2}
    {l1}:
    {text}
    {l2}:
    """)

def signal(a, seam, slot_shift, t, local=False, cnt=0, plain0=False, rbj=('s24', 's25')):
    kv = seam == 0 and not plain0
    a(f"""
    s_lshl_b32 s40, {rbj[0]}, {11 if kv else 10}
    s_lshl_b32 s41, {rbj[1]}, {7 if kv else slot_shift+3}
    s_add_u32 s40, s40, s41
    s_lshl_b32 s41, s3, 3
    s_add_u32 s40, s40, s41
    s_add_u32 s40, s40, {65536 if kv else seam*16384}
    v_mov_b32 v{t}, s{TAG}
    v_mov_b32 v{t+1}, s{TAG+1}
    v_mov_b32 v{t+2}, 0
    s_waitcnt vmcnt({cnt})
    s_mov_b64 exec, 1
    """)
    txt = f"buffer_store_dwordx2 v[{t}:{t+1}], v{t+2}, s[{FLS}:{FLS+3}], s40 offen"
    if local: st2(a, txt)
    else: a(txt + " sc0 sc1")
    a("s_mov_b64 exec, -1")

def wait_flags(a, voff, soff, wide, t):
    lp = a.label("poll"); dn = a.label("polld")
    a(f"s_mov_b32 s39, 0x100000")
    if OPT["inv"] == 1: a("buffer_inv sc1")
    a(f"{lp}:")
    if wide:
        a(f"buffer_load_dwordx4 v[{t}:{t+3}], v{voff}, s[{FLS}:{FLS+3}], {soff} offen sc0 sc1")
    else:
        a(f"buffer_load_dwordx2 v[{t}:{t+1}], v{voff}, s[{FLS}:{FLS+3}], {soff} offen sc0 sc1")
    a("s_waitcnt vmcnt(0)")
    a(f"v_cmp_eq_u64 vcc, s[{TAG}:{TAG+1}], v[{t}:{t+1}]")
    if wide:
        a(f"v_cmp_eq_u64 s[36:37], s[{TAG}:{TAG+1}], v[{t+2}:{t+3}]")
        a("s_nop 3")
        a("s_and_b64 vcc, vcc, s[36:37]")
    else:
        a("s_nop 3")
    a(f"""
    s_cmp_eq_u64 vcc, -1
    s_cbranch_scc1 {dn}
    s_sleep 1
    s_sub_u32 s39, s39, 1
    s_cmp_lg_u32 s39, 0
    s_cbranch_scc1 {lp}
    {dn}:
    """)
    if OPT["inv"] == 2: a("buffer_inv sc1")

class G: pass
NBF = ['', ' sc1', ' sc0']

def mk(kind, **kw):
    c = G(); c.kind = kind; c.__dict__.update(kw)
    c.sk = 0
    c.pvb, c.sb, c.s35 = 8, 12, "s35"
    c.early = 0
    if kind == "wo" and OPT["xst"]: c.S = min(c.S, 4)
    if kind == "w2" and OPT["sk"]:
        c.sk = 1; c.BN = 128; c.NT = 4; c.S = 4; c.BBASE = 65536; c.full = OPT["skfull"]; c.rpg = OPT["skrpg"]; c.pstride = 512
        if OPT["eb2"]:
            c.early = 1; c.pvb, c.sb, c.s35 = 16, 52, "s41"; c.BBASE = 77824
    c.SB = c.S; c.bs0 = 0
    if kind == "wo" and OPT["deepb"]:
        c.S = 3; c.SB = 12; c.bs0 = 8; c.BBASE = 49152
    c.n = c.K // 64 // (2 if c.sk else 1)
    c.BB = c.BN * 128
    c.NBW = c.BB // 4096
    c.gmul = 4 if c.korder == "F" else 8
    c.rdrows = 16 if c.korder == "F" else 4
    c.RS = 128 if c.layout == "panel" else 448
    return c

CFG = dict(
    qkv=dict(K=1024, BN=192, NT=6, S=3, korder="N", layout="panel", wp=P_WQKV, ldb=6144, bcol=128, pstride=2048,
             a_off=None, normal_tiles=(4, 5), RX=2, CX=4, rpg=1, ABASE=0, BBASE=49152, ln=True, sid=0, lt=0, full=0, rot=0),
    wo=dict(K=1024, BN=64, NT=2, S=5, korder="F", layout="panel", wp=P_WO, ldb=2048, bcol=128, pstride=0,
            a_off=O_OFF, normal_tiles=(), RX=2, CX=4, rpg=2, ABASE=0, BBASE=114688, ln=False, sid=16, lt=0, full=1, rot=2),
    w1=dict(K=1024, BN=224, NT=7, S=3, korder="F", layout="w1", wp=P_W1, ldb=7168, bcol=448, pstride=0,
            a_off=H_OFF, normal_tiles=(), RX=2, CX=4, rpg=1, ABASE=0, BBASE=49152, ln=True, sid=24, lt=0, full=0, rot=2),
    w2=dict(K=3584, BN=64, NT=2, S=6, korder="F", layout="panel", wp=P_W2, ldb=2048, bcol=128, pstride=0,
            a_off=H1_OFF, normal_tiles=(), RX=2, CX=4, rpg=2, ABASE=0, BBASE=98304, ln=False, sid=32, lt=0, full=1, rot=0),
)

def gemm_consumer(a, c):
    kind = c.kind; n = c.n; S = c.S; NT = c.NT; RS = c.RS
    vA0, vA10, vB00, vB01, vB02, vA, vA1, vB0, vB1, vB2 = 2, 3, 4, 5, 6, 7, 8, 9, 10, 11
    vG = 12; vCH = 13
    t0, t1 = 14, 15
    ACC = 16
    FX = ACC + 16 * NT
    FSZ = 16 + 4 * NT
    if c.full: FSZ *= 2
    FY = FX + FSZ
    VTOP = FY + FSZ
    acc = lambda mt, nt: ACC + (nt * 4 + mt) * 4
    wgmap(a, c.RX, c.CX)
    T = FX
    if kind == "qkv": row_stats_issue(a, FY)
    a(f"""
    s_lshr_b32 s34, s3, 1
    s_and_b32 s35, s3, 1
    v_lshlrev_b32 v{vCH}, 4, v1
    s_lshl_b32 s30, s34, 12
    v_add_u32 v{vCH}, s30, v{vCH}
    v_lshrrev_b32 v{vG}, 4, v1
    v_bfe_u32 v{T}, v1, 2, 2
    v_and_b32 v{T+1}, 3, v1
    """)
    if c.a_off is None:
        a(f"""
        v_and_b32 v{t0}, 15, v1
        v_lshrrev_b32 v{t1}, 1, v{t0}
        v_xor_b32 v{t1}, v{t1}, v{vG}
        v_lshlrev_b32 v{t1}, 4, v{t1}
        v_lshl_add_u32 v{vA0}, v{t0}, 7, v{t1}
        s_lshl_b32 s30, s34, 13
        v_add_u32 v{vA0}, s30, v{vA0}
        v_xor_b32 v{vA10}, 64, v{vA0}
        """)
        aread = lambda mt, kg: ((vA, vA1)[kg], mt * 2048)
    else:
        a(f"v_mov_b32 v{vA0}, v{vCH}")
        aread = lambda mt, kg: (vA, kg * 8192 + mt * 1024)
    if c.layout == "panel":
        a(f"""
        v_mul_u32_u24 v{t0}, {c.gmul}, v{vG}
        v_add_u32 v{t0}, v{t0}, v{T}
        v_lshlrev_b32 v{t0}, 7, v{t0}
        v_lshl_add_u32 v{t0}, v{T+1}, 3, v{t0}
        v_lshrrev_b32 v{t1}, 1, v{T}
        v_and_b32 v{T+2}, 1, v{vG}
        v_lshl_or_b32 v{t1}, v{T+2}, 1, v{t1}
        s_lshl_b32 s30, s35, 1
        v_xor_b32 v{t1}, s30, v{t1}
        v_lshl_add_u32 v{vB00}, v{t1}, 5, v{t0}
        v_xor_b32 v{t1}, 1, v{t1}
        v_lshl_add_u32 v{vB01}, v{t1}, 5, v{t0}
        """)
        def bread(nt, kg, rd):
            return (vB0 if nt % 2 == 0 else vB1), (nt // 2) * 8192 + kg * 32 * RS + rd * c.rdrows * RS
    else:
        a(f"""
        v_mul_u32_u24 v{t0}, {c.gmul}, v{vG}
        v_add_u32 v{t0}, v{t0}, v{T}
        v_mul_u32_u24 v{t0}, {RS}, v{t0}
        v_lshl_add_u32 v{t0}, v{T+1}, 3, v{t0}
        v_and_b32 v{t1}, 1, v{vG}
        v_lshlrev_b32 v{T+2}, 5, v{t1}
        s_lshl_b32 s30, s35, 8
        v_add_u32 v{T+3}, s30, v{t0}
        v_add_u32 v{vB00}, v{T+3}, v{T+2}
        v_sub_u32 v{vB01}, v{T+3}, v{T+2}
        s_add_u32 s30, s35, 6
        v_xor_b32 v{t1}, s30, v{t1}
        v_lshl_add_u32 v{vB02}, v{t1}, 5, v{t0}
        """)
        def bread(nt, kg, rd):
            o = kg * 32 * RS + rd * c.rdrows * RS
            if nt == 6: return vB2, o
            return (vB0 if nt % 2 == 0 else vB1), o + nt * 32
    RES = VTOP
    if kind == "wo":
        srd_off(a, 20, P_X, 0, 4 * MB)
        a(f"""
        v_and_b32 v{t0}, 15, v1
        v_lshlrev_b32 v{t0}, 11, v{t0}
        v_lshl_add_u32 v{t0}, v{vG}, 3, v{t0}
        s_lshl_b32 s30, s24, 18
        s_lshl_b32 s31, s34, 17
        s_add_u32 s30, s30, s31
        s_lshl_b32 s31, s25, 7
        s_add_u32 s30, s30, s31
        s_lshl_b32 s31, s35, 6
        s_add_u32 s30, s30, s31
        """)
        def res_loads():
            for mt in range(4):
                for nt in range(2):
                    r = RES + mt * 4 + nt * 2
                    a(f"buffer_load_dwordx2 v[{r}:{r+1}], v{t0}, s[20:23], s30 offen offset:{nt*32}")
                a("s_add_u32 s30, s30, 32768")
        if not OPT["reslate"] and not OPT["xst"]: res_loads()
    if kind == "wo" and OPT["xst"]:
        a(f"""
        v_and_b32 v{t0}, 15, v1
        v_lshrrev_b32 v{t1}, 1, v{t0}
        v_lshrrev_b32 v{T}, 1, v{vG}
        s_lshl_b32 s30, s35, 2
        v_add_u32 v{T}, s30, v{T}
        v_xor_b32 v{t1}, v{t1}, v{T}
        v_lshlrev_b32 v{t1}, 4, v{t1}
        v_lshl_add_u32 v{t1}, v{t0}, 7, v{t1}
        v_and_b32 v{T}, 1, v{vG}
        v_lshl_add_u32 v{t1}, v{T}, 3, v{t1}
        s_lshl_b32 s30, s34, 13
        s_add_u32 s30, s30, {XST}
        v_add_u32 v{t1}, s30, v{t1}
        v_xor_b32 v{t0}, 32, v{t1}
        """)
        for mt in range(4):
            for nt in range(2):
                r = RES + mt * 4 + nt * 2
                a(f"ds_read_b64 v[{r}:{r+1}], v{t0 if nt else t1} offset:{mt*2048}")
    for i in range(16 * NT):
        a(f"v_mov_b32 v{ACC+i}, 0")
    abases = [(vA, vA0)] + ([(vA1, vA10)] if c.a_off is None else [])
    bbases = [(vB0, vB00), (vB1, vB01)] + ([(vB2, vB02)] if c.layout != "panel" else [])
    a(f"s_mov_b32 s27, {c.ABASE}")
    a(f"s_mov_b32 s32, {c.BBASE + c.bs0*c.BB}")
    setb = [f"v_add_u32 v{x}, s27, v{y}" for x, y in abases] + [f"v_add_u32 v{x}, s32, v{y}" for x, y in bbases]
    for x in setb: a(x)
    RT = OPT["sktail"] if (c.sk and not c.full) else 0
    a(f"s_mov_b32 s26, {n - 1 if (c.ln and OPT['peel']) else n - RT}")
    def reads(F, kg, tiles=None):
        r = []
        tiles = list(range(NT)) if tiles is None else tiles
        for nt in tiles:
            for rd in range(2):
                b, o = bread(nt, kg, rd)
                d = F + 16 + nt * 4 + rd * 2
                r.append(f"ds_read_b64_tr_b16 v[{d}:{d+1}], v{b} offset:{o}")
            if nt == tiles[0]:
                for mt in range(4):
                    d = F + mt * 4
                    b, o = aread(mt, kg)
                    r.append(f"ds_read_b128 v[{d}:{d+3}], v{b} offset:{o}")
        return r
    def mfmas(F, tiles=None):
        m = []
        for nt in (range(NT) if tiles is None else tiles):
            for mt in (range(4) if (nt % 2 == 0 or not OPT["snake"]) else range(3, -1, -1)):
                A = F + mt * 4; B = F + 16 + nt * 4; D = acc(mt, nt)
                if nt in c.normal_tiles:
                    m.append(f"v_mfma_f32_16x16x32_bf16 v[{D}:{D+3}], v[{A}:{A+3}], v[{B}:{B+3}], v[{D}:{D+3}]")
                else:
                    m.append(f"v_mfma_f32_16x16x32_bf16 v[{D}:{D+3}], v[{B}:{B+3}], v[{A}:{A+3}], v[{D}:{D+3}]")
        return m
    loop = a.label("c_loop")
    if kind == "qkv": row_stats_finish(a, FY, FX)
    stamp(a, c.sid)
    a("s_barrier")
    hold(a, "h_" + kind)
    stamp(a, c.sid + 1)
    adv = [f"s_add_u32 s27, s27, 16384", f"s_add_u32 s32, s32, {c.BB}", f"s_cmp_eq_u32 s27, {c.ABASE + S*16384}",
           f"s_cselect_b32 s27, {c.ABASE}, s27"] + ([f"s_cmp_eq_u32 s32, {c.BBASE + c.SB*c.BB}"] if c.SB != S else []) + [f"s_cselect_b32 s32, {c.BBASE}, s32"] + setb
    def pk4(t, p0, p1):
        a(f"v_cvt_pk_bf16_f32 v{t}, v{p0}, v{p0+1}")
        a(f"v_cvt_pk_bf16_f32 v{t+1}, v{p0+2}, v{p0+3}")
        a(f"v_cvt_pk_bf16_f32 v{t+2}, v{p1}, v{p1+1}")
        a(f"v_cvt_pk_bf16_f32 v{t+3}, v{p1+2}, v{p1+3}")
    vX = VTOP + 4
    def sk_send():
        srd_off(a, 20, P_WS, XP_OFF, 8 * MB)
        a(f"""
        s_lshl_b32 s30, s24, 19
        s_lshl_b32 s31, s3, 13
        s_add_u32 s30, s30, s31
        s_lshl_b32 s31, s25, 15
        s_add_u32 s33, s30, s31
        s_xor_b32 s31, s31, {4 << 15}
        s_add_u32 s37, s30, s31
        v_lshlrev_b32 v{vX}, 4, v1
        """)
        for mt in range(4):
            t = acc(mt, 2)
            pk4(t, acc(mt, 2), acc(mt, 3))
            a(f"buffer_store_dwordx4 v[{t}:{t+3}], v{vX}, s[20:23], s33 offen offset:{mt*1024} sc0 sc1")
    def epi_setup():
        b = Asm(); r = []
        if kind == "qkv":
            REC, CSQ, MV, RV, CSV = T, T + 16, VTOP, VTOP + 16, VTOP + 32
            b(f"""
            v_and_b32 v{t0}, 15, v1
            v_lshlrev_b32 v{vA}, 4, v{t0}
            s_lshl_b32 s30, s34, 10
            s_add_u32 s30, s30, {ST_REC}
            v_add_u32 v{vA}, s30, v{vA}
            v_lshlrev_b32 v{vA1}, 4, v{vG}
            s_lshl_b32 s30, s35, 7
            s_add_u32 s30, s30, {ST_CS}
            v_add_u32 v{vB0}, s30, v{vA1}
            v_lshlrev_b32 v{vB1}, 2, v{t0}
            v_add_u32 v{vB1}, s30, v{vB1}
            s_lshl_b32 s30, s34, 8
            s_add_u32 s30, s30, {ST_MEAN}
            v_add_u32 v{vA1}, s30, v{vA1}
            """)
            srd_off(b, 16, P_WS, K_OFF, 8 * MB)
            b(f"""
            s_lshl_b32 s30, s25, 1
            s_add_u32 s30, s30, s35
            s_lshl_b32 s30, s30, 17
            s_lshl_b32 s31, s24, 13
            s_add_u32 s30, s30, s31
            s_add_u32 s31, s30, {4*MB}
            s_mul_i32 s33, s35, {HEADW}
            v_add_u32 v{vB2}, s33, v{vCH}
            """)
            for mt in range(4):
                r.append(f"ds_read_b128 v[{REC+4*mt}:{REC+4*mt+3}], v{vA} offset:{mt*256}")
            for nt in range(4):
                r.append(f"ds_read_b128 v[{CSQ+4*nt}:{CSQ+4*nt+3}], v{vB0} offset:{(nt//2)*256 + (nt%2)*64}")
            for mt in range(4):
                r.append(f"ds_read_b128 v[{MV+4*mt}:{MV+4*mt+3}], v{vA1} offset:{mt*64}")
                r.append(f"ds_read_b128 v[{RV+4*mt}:{RV+4*mt+3}], v{vA1} offset:{512 + mt*64}")
            for dt in range(2):
                r.append(f"ds_read_b32 v{CSV+2*dt}, v{vB1} offset:{512 + dt*64}")
        else:
            CSR = T; REC = T + 28
            srd_off(b, 16, P_WS, H1_OFF, 14 * MB)
            b(f"""
            v_and_b32 v{t0}, 15, v1
            v_lshlrev_b32 v{vA}, 4, v{t0}
            s_lshl_b32 s30, s34, 10
            s_add_u32 s30, s30, {ST_REC}
            v_add_u32 v{vA}, s30, v{vA}
            v_lshlrev_b32 v{t1}, 4, v{vG}
            s_lshl_b32 s30, s35, 9
            s_add_u32 s30, s30, {ST_CS}
            v_add_u32 v{vB0}, s30, v{t1}
            s_lshl_b32 s30, s35, 6
            s_add_u32 s30, s30, {ST_CS}
            v_add_u32 v{vB1}, s30, v{t1}
            s_mul_i32 s30, s24, {112*8192}
            s_mul_i32 s31, s25, {7*8192}
            s_add_u32 s30, s30, s31
            s_add_u32 s36, s30, {3*8192}
            s_lshl_b32 s31, s35, 15
            s_add_u32 s30, s30, s31
            s_add_u32 s31, s30, 8192
            s_add_u32 s37, s30, 16384
            s_lshl_b32 s33, s35, 3
            s_add_u32 s33, s33, {XCH}
            v_add_u32 v{vB2}, s33, v{vCH}
            """)
            for mt in range(4):
                r.append(f"ds_read_b128 v[{REC+4*mt}:{REC+4*mt+3}], v{vA} offset:{mt*256}")
            r.append(f"ds_read_b128 v[{CSR+24}:{CSR+27}], v{vB1} offset:{6*64}")
            for nt in range(6):
                r.append(f"ds_read_b128 v[{CSR+4*nt}:{CSR+4*nt+3}], v{vB0} offset:{nt*64}")
        return [x.strip() for x in b.lines], r
    peel = c.ln and OPT["peel"]
    NI = n // 2 if c.full else n - RT
    def w2hook_c():
        if kind == "wo" and OPT["reslate"]:
            back = a.label("woback"); late = a.label("wolate")
            a(f"s_cmp_eq_u32 s26, {OPT['reslate']}")
            a(f"s_cbranch_scc1 {late}")
            a(f"{back}:")
            def ool():
                a(f"{late}:")
                res_loads()
                a(f"s_branch {back}")
            c.ool = ool
        if kind == "w2":
            back = a.label("w2back"); early = a.label("w2early")
            a(f"s_cmp_ge_u32 s26, {NI - OPT['sigB']}")
            a(f"s_cbranch_scc1 {early}")
            a(f"{back}:")
            def ool():
                a(f"{early}:")
                nst = OPT["dper"]
                its = 8 // nst if OPT["defer"] else 0
                for it in range(its):
                    nx = a.label("skip_e")
                    a(f"s_cmp_lg_u32 s26, {NI - it - OPT['dstart']}")
                    a(f"s_cbranch_scc1 {nx}")
                    for k in range(it * nst, it * nst + nst):
                        r = DEF + k * 4
                        a(f"buffer_store_dwordx4 v[{r}:{r+3}], v{vCH}, s[16:19], {'s44' if k < 4 else 's45'} offen offset:{(k%4)*1024} sc0 sc1")
                    a(f"s_branch {back}")
                    a(f"{nx}:")
                a(f"s_cmp_lg_u32 s26, {NI - OPT['sigB']}")
                a(f"s_cbranch_scc1 {back}")
                signal(a, 3, 2, VTOP, rbj=("s42", "s43"))
                a(f"s_branch {back}")
            c.ool = ool

    if c.full:
        H = FSZ // 2
        rd2 = lambda F: reads(F, 0) + reads(F + H, 1)
        mf2 = lambda F: mfmas(F) + mfmas(F + H)
        a(f"s_mov_b32 s26, {n//2}")
        for r in rd2(FX): a(r)
        for x in adv: a(x)
        if OPT["align"]: a(f".p2align {OPT['align']}")
        a(f"{loop}:")
        w2hook_c()
        a("s_waitcnt lgkmcnt(0)")
        a("s_barrier")
        for x in interleave(mf2(FX), rd2(FY) + adv, 0, 1, c.rpg): a(x)
        a("s_waitcnt lgkmcnt(0)")
        a("s_barrier")
        for x in interleave(mf2(FY), rd2(FX) + adv + ["s_sub_u32 s26, s26, 1", "s_cmp_lg_u32 s26, 0"], 0, 1, c.rpg): a(x)
        a(f"s_cbranch_scc1 {loop}")
        a("s_waitcnt lgkmcnt(0)")
    else:
        for r in reads(FX, 0): a(r)
        if kind == "w1" and OPT["own1"]:
            a("s_waitcnt lgkmcnt(0)")
            for x in interleave(mfmas(FX), reads(FY, 1) + adv, 0, 1, c.rpg): a(x)
            a("s_waitcnt lgkmcnt(0)")
            m_ = mfmas(FY); kb_ = len(m_) - OPT["own1"]
            for x in m_[:kb_]: a(x)
            a("s_barrier")
            for x in interleave(m_[kb_:], reads(FX, 0), 0, 1, 2): a(x)
            a("s_sub_u32 s26, s26, 1")
        if OPT["align"]: a(f".p2align {OPT['align']}")
        a(f"{loop}:")
        w2hook_c()
        a("s_waitcnt lgkmcnt(0)")
        for x in interleave(mfmas(FX), reads(FY, 1) + adv, 0, 1, c.rpg): a(x)
        a("s_waitcnt lgkmcnt(0)")
        a("s_barrier")
        for x in interleave(mfmas(FY), reads(FX, 0) + ["s_sub_u32 s26, s26, 1", "s_cmp_lg_u32 s26, 0"], 0, 1, c.rpg): a(x)
        a(f"s_cbranch_scc1 {loop}")
        a("s_waitcnt lgkmcnt(0)")
        if RT:
            def setst(st):
                return [f"v_add_u32 v{x}, {c.ABASE + (st % S)*16384}, v{y}" for x, y in abases] + [f"v_add_u32 v{x}, {c.BBASE + (st % S)*c.BB}, v{y}" for x, y in bbases]
            items = [(st, kg, [2, 3]) for st in range(n - RT, n) for kg in range(2)] + [(st, kg, [0, 1]) for st in range(n - RT, n) for kg in range(2)]
            sets = [FX, FY]
            for i, (st, kg, tl) in enumerate(items):
                cur = sets[i % 2]; nxt = sets[(i + 1) % 2]
                fill_ = []
                if i + 1 < len(items):
                    st2_, kg2, tl2 = items[i + 1]
                    if st2_ != st:
                        for x in setst(st2_): a(x)
                        if i + 1 < 2 * RT: a("s_barrier")
                    fill_ = reads(nxt, kg2, tl2)
                for x in interleave(mfmas(cur, tl), fill_, 0, 1, 1): a(x)
                if i == 2 * RT - 1:
                    stamp(a, c.sid + 2)
                    a("s_barrier")
                    sk_send()
                if i == 2 * RT + OPT["sksig"]:
                    signal(a, 6, 2, VTOP)
                    stamp(a, 47)
                a("s_waitcnt lgkmcnt(0)")
        if peel:
            for x in interleave(mfmas(FX), reads(FY, 1), 0, 1, c.rpg): a(x)
            a("s_waitcnt lgkmcnt(0)")
            alu, rds = epi_setup()
            m = mfmas(FY)
            if kind == "qkv": m = m[8:16] + m[16:] + m[:8]
            kb = len(m) - OPT["peel"]
            for x in interleave(m[:kb], alu, 0, 1, 2): a(x)
            a("s_barrier")
            for x in interleave(m[kb:], rds, 0, 1, 2): a(x)
    if not RT: stamp(a, c.sid + 2)
    def pk4_unused(t, p0, p1):
        a(f"v_cvt_pk_bf16_f32 v{t}, v{p0}, v{p0+1}")
        a(f"v_cvt_pk_bf16_f32 v{t+1}, v{p0+2}, v{p0+3}")
        a(f"v_cvt_pk_bf16_f32 v{t+2}, v{p1}, v{p1+1}")
        a(f"v_cvt_pk_bf16_f32 v{t+3}, v{p1+2}, v{p1+3}")
    if kind == "qkv":
        REC, CSQ, MV, RV, CSV = T, T + 16, VTOP, VTOP + 16, VTOP + 32
        if not peel:
            for x in sum(epi_setup(), []): a(x)
        a("s_waitcnt lgkmcnt(10)")
        def fold_sw(mt, nt):
            p = acc(mt, nt); m = REC + 4 * mt; cs = CSQ + 4 * nt
            for h in range(2):
                a(f"v_pk_fma_f32 v[{p+2*h}:{p+2*h+1}], v[{m}:{m+1}], v[{cs+2*h}:{cs+2*h+1}], v[{p+2*h}:{p+2*h+1}] op_sel_hi:[0,1,1] neg_lo:[1,0,0] neg_hi:[1,0,0]")
            for h in range(2):
                a(f"v_pk_mul_f32 v[{p+2*h}:{p+2*h+1}], v[{m}:{m+1}], v[{p+2*h}:{p+2*h+1}] op_sel:[1,0] op_sel_hi:[1,1]")
        for mt in range(4):
            fold_sw(mt, 2); fold_sw(mt, 3)
            t = acc(mt, 2); pk4(t, acc(mt, 2), acc(mt, 3))
            st2(a, f"buffer_store_dwordx4 v[{t}:{t+3}], v{vCH}, s[16:19], s30 offen offset:{mt*1024}")
            a(f"ds_write_b128 v{vB2}, v[{t}:{t+3}] offset:{16384 + mt*1024}")
        a("s_waitcnt lgkmcnt(4)")
        for mp in range(2):
            for dt in range(2):
                for mt in (2 * mp, 2 * mp + 1):
                    p = acc(mt, 4 + dt)
                    sel = "op_sel_hi:[1,0,1]"
                    for h in range(2):
                        a(f"v_pk_fma_f32 v[{p+2*h}:{p+2*h+1}], v[{MV+4*mt+2*h}:{MV+4*mt+2*h+1}], v[{CSV+2*dt}:{CSV+2*dt+1}], v[{p+2*h}:{p+2*h+1}] {sel} neg_lo:[1,0,0] neg_hi:[1,0,0]")
                    for h in range(2):
                        a(f"v_pk_mul_f32 v[{p+2*h}:{p+2*h+1}], v[{RV+4*mt+2*h}:{RV+4*mt+2*h+1}], v[{p+2*h}:{p+2*h+1}]")
                t = acc(2 * mp, 4 + dt); pk4(t, acc(2 * mp, 4 + dt), acc(2 * mp + 1, 4 + dt))
                st2(a, f"buffer_store_dwordx4 v[{t}:{t+3}], v{vCH}, s[16:19], s31 offen offset:{(2*mp+dt)*1024}")
                a(f"ds_write_b128 v{vB2}, v[{t}:{t+3}] offset:{24576 + 16384 + (2*mp+dt)*1024}")
        for mt in range(4):
            fold_sw(mt, 0); fold_sw(mt, 1)
            t = acc(mt, 0); pk4(t, acc(mt, 0), acc(mt, 1))
            a(f"ds_write_b128 v{vB2}, v[{t}:{t+3}] offset:{49152 + mt*1024}")
        stamp(a, c.sid + 3)
        signal(a, 0, 2, T, True)
        stamp(a, c.sid + 4)
        a("s_waitcnt lgkmcnt(0)")
    elif kind == "wo":
        srd_off(a, 16, P_WS, H_OFF, 4 * MB)
        a(f"""
        s_lshl_b32 s30, s24, 18
        s_lshl_b32 s31, s25, 14
        s_add_u32 s30, s30, s31
        s_lshl_b32 s31, s35, 13
        s_add_u32 s30, s30, s31
        s_mov_b32 s36, 0xffff0000
        s_waitcnt vmcnt(0) lgkmcnt(0)
        """)
        for mt in range(4):
            for nt in range(2):
                r = RES + mt * 4 + nt * 2; p = acc(mt, nt)
                for d in range(2):
                    a(f"v_lshlrev_b32 v{T}, 16, v{r+d}")
                    a(f"v_and_b32 v{T+1}, s36, v{r+d}")
                    a(f"v_pk_add_f32 v[{p+2*d}:{p+2*d+1}], v[{p+2*d}:{p+2*d+1}], v[{T}:{T+1}]")
            t = HRES + mt * 4
            pk4(t, acc(mt, 0), acc(mt, 1))
            a(f"buffer_store_dwordx4 v[{t}:{t+3}], v{vCH}, s[16:19], s30 offen offset:{mt*1024} sc0 sc1")
            if OPT["own1"]:
                if mt == 0: a(f"s_lshl_b32 s33, s35, 13\nv_add_u32 v{vA}, s33, v{vCH}")
                a(f"ds_write_b128 v{vA}, v[{t}:{t+3}] offset:{mt*1024}")
        SS = T + 4
        for mt in range(4):
            p0 = acc(mt, 0); p1 = acc(mt, 1)
            s_, q_ = SS + 2 * mt, SS + 2 * mt + 1
            a(f"v_pk_add_f32 v[{T}:{T+1}], v[{p0}:{p0+1}], v[{p0+2}:{p0+3}]")
            a(f"v_pk_mul_f32 v[{T+2}:{T+3}], v[{p0}:{p0+1}], v[{p0}:{p0+1}]")
            a(f"v_pk_add_f32 v[{T}:{T+1}], v[{T}:{T+1}], v[{p1}:{p1+1}]")
            a(f"v_pk_fma_f32 v[{T+2}:{T+3}], v[{p0+2}:{p0+3}], v[{p0+2}:{p0+3}], v[{T+2}:{T+3}]")
            a(f"v_pk_add_f32 v[{T}:{T+1}], v[{T}:{T+1}], v[{p1+2}:{p1+3}]")
            a(f"v_pk_fma_f32 v[{T+2}:{T+3}], v[{p1}:{p1+1}], v[{p1}:{p1+1}], v[{T+2}:{T+3}]")
            a(f"v_pk_fma_f32 v[{T+2}:{T+3}], v[{p1+2}:{p1+3}], v[{p1+2}:{p1+3}], v[{T+2}:{T+3}]")
            a(f"v_add_f32 v{s_}, v{T}, v{T+1}")
            a(f"v_add_f32 v{q_}, v{T+2}, v{T+3}")
        for mt in range(4):
            s_, q_ = SS + 2 * mt, SS + 2 * mt + 1
            a(f"v_permlane32_swap_b32 v{s_}, v{q_}")
            a(f"v_add_f32 v{s_}, v{s_}, v{q_}")
        srd_off(a, 20, P_WS, ST2_OFF, 16 * 32768)
        a(f"""
        v_and_b32 v{t0}, 31, v1
        v_lshlrev_b32 v{t0}, 2, v{t0}
        v_lshrrev_b32 v{t1}, 5, v1
        v_lshl_add_u32 v{t0}, v{t1}, 9, v{t0}
        s_lshl_b32 s30, s24, 15
        s_lshl_b32 s31, s25, 11
        s_add_u32 s30, s30, s31
        s_lshl_b32 s31, s35, 10
        s_add_u32 s30, s30, s31
        s_lshl_b32 s31, s34, 8
        s_add_u32 s30, s30, s31
        """)
        for mp in range(2):
            x0 = SS + 4 * mp; x1 = SS + 4 * mp + 2
            a(f"v_permlane16_swap_b32 v{x0}, v{x1}")
            a(f"v_add_f32 v{x0}, v{x0}, v{x1}")
            a(f"buffer_store_dword v{x0}, v{t0}, s[20:23], s30 offen offset:{mp*128} sc0 sc1")
        stamp(a, c.sid + 3)
        if OPT["wobar"]: a("s_barrier")
        signal(a, 2, 2, T)
        a("s_waitcnt lgkmcnt(0)")
        stamp(a, c.sid + 4)
    elif kind == "w1":
        CSR = T; REC = T + 28; E = T + 44
        if not peel:
            for x in sum(epi_setup(), []): a(x)
        a("s_waitcnt lgkmcnt(0)")
        soffs = ["s30", "s31", "s37"]
        def silu(mt, nt, e):
            p = acc(mt, nt); m = REC + 4 * mt; cs = CSR + 4 * nt
            for h in range(2):
                a(f"v_pk_fma_f32 v[{p+2*h}:{p+2*h+1}], v[{m}:{m+1}], v[{cs+2*h}:{cs+2*h+1}], v[{p+2*h}:{p+2*h+1}] op_sel_hi:[0,1,1] neg_lo:[1,0,0] neg_hi:[1,0,0]")
            for h in range(2):
                a(f"v_pk_mul_f32 v[{e+2*h}:{e+2*h+1}], v[{m}:{m+1}], v[{p+2*h}:{p+2*h+1}] op_sel:[1,0] op_sel_hi:[1,1]")
            for r in range(4):
                a(f"v_exp_f32 v{e+r}, v{e+r}")
            for h in range(2):
                a(f"v_pk_fma_f32 v[{e+2*h}:{e+2*h+1}], v[{e+2*h}:{e+2*h+1}], v[{m+2}:{m+3}], v[{m+2}:{m+3}]")
            for r in range(4):
                a(f"v_rcp_f32 v{e+r}, v{e+r}")
            for h in range(2):
                a(f"v_pk_mul_f32 v[{p+2*h}:{p+2*h+1}], v[{p+2*h}:{p+2*h+1}], v[{e+2*h}:{e+2*h+1}]")
        def pair(q, mt):
            silu(mt, 2 * q, E); silu(mt, 2 * q + 1, E + 4)
            p0 = acc(mt, 2 * q)
            pk4(p0, p0, acc(mt, 2 * q + 1))
            a(f"buffer_store_dwordx4 v[{p0}:{p0+3}], v{vCH}, s[16:19], {soffs[q]} offen offset:{mt*1024} sc0 sc1")
            if OPT["own"]: a(f"ds_write_b128 v{vA}, v[{p0}:{p0+3}] offset:{q*16384 + mt*1024}")
        if OPT["own"]:
            a(f"s_lshl_b32 s33, s35, 13")
            a(f"v_add_u32 v{vA}, s33, v{vCH}")
        for mt in range(4): pair(0, mt)
        stamp(a, 42)
        for mt in range(4):
            silu(mt, 6, E + (mt % 2) * 4)
            p = acc(mt, 6)
            a(f"v_cvt_pk_bf16_f32 v{p}, v{p}, v{p+1}")
            a(f"v_cvt_pk_bf16_f32 v{p+1}, v{p+2}, v{p+3}")
            a(f"ds_write_b64 v{vB2}, v[{p}:{p+1}] offset:{mt*1024}")
        a("s_waitcnt lgkmcnt(0)")
        stamp(a, 40)
        a("s_barrier")
        stamp(a, 41)
        a(f"""
        s_lshl_b32 s33, s35, 11
        v_add_u32 v{vB2}, s33, v{vCH}
        v_add_u32 v{vB1}, {XCH}, v{vB2}
        ds_read_b128 v[{acc(0,6)}:{acc(0,6)+3}], v{vB1}
        ds_read_b128 v[{acc(1,6)}:{acc(1,6)+3}], v{vB1} offset:1024
        """)
        pair(1, 0)
        a("s_waitcnt lgkmcnt(0)")
        a(f"buffer_store_dwordx4 v[{acc(0,6)}:{acc(0,6)+3}], v{vB2}, s[16:19], s36 offen sc0 sc1")
        a(f"buffer_store_dwordx4 v[{acc(1,6)}:{acc(1,6)+3}], v{vB2}, s[16:19], s36 offen offset:1024 sc0 sc1")
        for mt in range(1, 4): pair(1, mt)
        stamp(a, 43)
        k2 = OPT["sigA2"]
        for mt in range(k2): pair(2, mt)
        signal(a, 0, 2, acc(2, 6), False, 3 + k2, True)
        stamp(a, 45)
        if OPT["bar2"] == 0: a("s_barrier")
        stamp(a, 46)
        for mt in range(k2, 4): pair(2, mt)
        stamp(a, c.sid + 3)
        if OPT["bar2"] == 1: a("s_barrier")
        if OPT["own"]: a("s_waitcnt lgkmcnt(0)")
        a("s_mov_b32 s42, s24\ns_mov_b32 s43, s25\ns_mov_b32 s44, s31\ns_mov_b32 s45, s37")
        stamp(a, c.sid + 4)
    elif kind == "w2":
        XR = T + 32
        if c.sk and not RT:
            sk_send()
            signal(a, 6, 2, T)
            stamp(a, 47)
        srd_off(a, 16, P_OUT, 0, 4 * MB)
        a(f"""
        v_and_b32 v{t0}, 15, v1
        v_lshlrev_b32 v{t0}, 11, v{t0}
        v_and_b32 v{t1}, 1, v{vG}
        v_lshl_add_u32 v{t0}, v{t1}, 5, v{t0}
        v_lshrrev_b32 v{t1}, 1, v{vG}
        v_lshl_add_u32 v{t0}, v{t1}, 4, v{t0}
        s_lshl_b32 s30, s24, 18
        s_lshl_b32 s31, s34, 17
        s_add_u32 s30, s30, s31
        s_lshl_b32 s31, s25, 7
        s_add_u32 s30, s30, s31
        s_lshl_b32 s31, s35, 6
        s_add_u32 s30, s30, s31
        s_mov_b32 s36, 0xffff0000
        """)
        for mt in range(4):
            for nt in range(2):
                r = HRES + mt * 4 + nt * 2; p = acc(mt, nt)
                for d in range(2):
                    a(f"v_lshlrev_b32 v{T+16}, 16, v{r+d}")
                    a(f"v_and_b32 v{T+17}, s36, v{r+d}")
                    a(f"v_pk_add_f32 v[{p+2*d}:{p+2*d+1}], v[{p+2*d}:{p+2*d+1}], v[{T+16}:{T+17}]")
        if c.sk and OPT["sent"]:
            lp = a.label("xpoll"); dn = a.label("skip_xp")
            a("s_mov_b32 s39, 0x200000")
            a(f"{lp}:")
            for mt in range(4):
                a(f"buffer_load_dwordx4 v[{XR+4*mt}:{XR+4*mt+3}], v{vX}, s[20:23], s37 offen offset:{mt*1024} sc0 sc1")
            for mt in range(4):
                r = XR + 4 * mt
                a(f"s_waitcnt vmcnt({3-mt})")
                if mt == 0: a(f"v_max_u32 v{T+4}, v{r}, v{r+1}")
                else: a(f"v_max3_u32 v{T+4}, v{r}, v{r+1}, v{T+4}")
                a(f"v_max3_u32 v{T+4}, v{r+2}, v{r+3}, v{T+4}")
            a(f"""
            v_cmp_eq_u32 vcc, -1, v{T+4}
            s_nop 3
            s_cmp_eq_u64 vcc, 0
            s_cbranch_scc1 {dn}
            s_sub_u32 s39, s39, 1
            s_cbranch_scc0 {lp}
            {dn}:
            """)
            stamp(a, 48)
        elif c.sk:
            lp = a.label("xpoll"); dn = a.label("skip_xp")
            a(f"""
            s_xor_b32 s40, s40, {4 << 5}
            s_mov_b32 s39, 0x200000
            {lp}:
            buffer_load_dwordx2 v[{T+4}:{T+5}], v{(VTOP if RT else T)+2}, s[{FLS}:{FLS+3}], s40 offen sc0 sc1
            s_waitcnt vmcnt(0)
            v_cmp_eq_u64 vcc, s[{TAG}:{TAG+1}], v[{T+4}:{T+5}]
            s_nop 3
            s_cmp_eq_u64 vcc, -1
            s_cbranch_scc1 {dn}
            s_sub_u32 s39, s39, 1
            s_cbranch_scc0 {lp}
            {dn}:
            """)
            stamp(a, 48)
            for mt in range(4):
                a(f"buffer_load_dwordx4 v[{XR+4*mt}:{XR+4*mt+3}], v{vX}, s[20:23], s37 offen offset:{mt*1024} sc0 sc1")
        for mt in range(4):
            if c.sk:
                if not OPT["sent"]: a(f"s_waitcnt vmcnt(3)")
                for nt in range(2):
                    r = XR + mt * 4 + nt * 2; p = acc(mt, nt)
                    for d in range(2):
                        a(f"v_lshlrev_b32 v{T+16}, 16, v{r+d}")
                        a(f"v_and_b32 v{T+17}, s36, v{r+d}")
                        a(f"v_pk_add_f32 v[{p+2*d}:{p+2*d+1}], v[{p+2*d}:{p+2*d+1}], v[{T+16}:{T+17}]")
            t = T + mt * 4
            pk4(t, acc(mt, 0), acc(mt, 1))
            a(f"v_permlane16_swap_b32 v{t}, v{t+2}")
            a(f"v_permlane16_swap_b32 v{t+1}, v{t+3}")
            a(f"buffer_store_dwordx4 v[{t}:{t+3}], v{t0}, s[16:19], s30 offen{['', ' sc0 sc1', ' nt', ' sc1'][OPT['osf']]}")
            a("s_add_u32 s30, s30, 32768")
        stamp(a, c.sid + 3)
        if DIAG:
            a("s_waitcnt vmcnt(0)")
            stamp(a, c.sid + 4)

PV_A = 4
PV_B = 8
PV_SA = 16
PV_SB = 18
PV_RD = 32
PV_ACC = 80

def prod_setup(a, c):
    n = c.n
    wgmap(a, c.RX, c.CX)
    if c.a_off is None:
        a("s_lshl_b32 s30, s24, 18")
        srd_off(a, 8, P_X, "s30", 262144)
        for i in range(4):
            a(f"""
            v_lshrrev_b32 v2, 3, v1
            v_lshrrev_b32 v3, 4, v1
            v_add_u32 v3, {4*(i&1)}, v3
            v_and_b32 v{PV_A+i}, 7, v1
            v_xor_b32 v3, v3, v{PV_A+i}
            v_lshlrev_b32 v3, 4, v3
            v_lshl_add_u32 v3, v2, 11, v3
            s_lshl_b32 s30, s38, 16
            s_add_u32 s30, s30, {i*8*2048 - i*1024}
            v_add_u32 v{PV_A+i}, s30, v3
            """)
        c.astep = 128
    else:
        a(f"s_mul_i32 s30, s24, {c.K*256}")
        a(f"s_add_u32 s30, s30, {c.a_off}")
        srd_off(a, 8, P_WS, "s30", c.K * 256)
        a(f"""
        {"s_lshr_b32 s30, s38, 1" if c.sk else f"s_and_b32 s30, s38, {1 if c.kind == 'w2' else 3}"}
        s_lshl_b32 s30, s30, 12
        v_lshlrev_b32 v{PV_A}, 4, v1
        v_add_u32 v{PV_A}, s30, v{PV_A}
        """)
        c.astep = 16384
        if c.kind == "w2":
            a(f"""
            {"s_and_b32 s30, s38, 1" if c.sk else "s_lshr_b32 s30, s38, 1"}
            s_mul_i32 s63, s30, {4*8192}
            s_mul_i32 s64, s30, {7*8192}
            """)
    c.bstep = 64 * c.ldb
    CT = 16 // c.CX
    a(f"""
    s_and_b32 s65, s25, {CT-1}
    s_mul_i32 s65, s65, {(16 // CT) if c.rot else 0}
    """)
    if c.rot == 2: a(f"s_mov_b32 s65, {OPT['rot0']}")
    if c.kind == "w1" and OPT["own1"]: a("s_mov_b32 s65, s25")
    if c.sk: a("s_and_b32 s65, s25, 4\ns_lshl_b32 s65, s65, 1")
    a(f"""
    s_lshl_b32 s34, s38, 12
    s_mul_i32 s35, s38, {c.NBW*1024}
    """)
    if c.sk:
        a("""
        s_and_b32 s34, s38, 1
        s_lshl_b32 s34, s34, 13
        s_lshr_b32 s30, s38, 1
        s_lshl_b32 s30, s30, 12
        s_add_u32 s34, s34, s30
        """)
    if c.kind == "w2" and not OPT["own"]: a(f"s_mul_i32 s66, s65, {7*8192}")
    if not c.early: b_setup(a, c, PV_B, 12)
    a(f"""
    s_mov_b32 s27, {c.ABASE}
    s_mov_b32 s32, {c.BBASE}
    s_mul_i32 s28, s65, {c.astep}
    s_mul_i32 s29, s65, {c.bstep}
    """)

def b_setup(a, c, dst, sr_):
    if c.sk:
        a("s_andn2_b32 s30, s25, 4")
        a(f"s_mul_i32 s30, s30, {c.bcol}")
    else:
        a(f"s_mul_i32 s30, s25, {c.bcol}")
    a(f"s_sub_u32 s31, {c.K*c.ldb}, s30")
    srd_off(a, sr_, c.wp, "s30", "s31")
    a(f"""
    s_mul_i32 s30, s38, {c.NBW*64}
    s_mov_b32 s36, {c.ldb}
    """)
    for i in range(c.NBW):
        a(f"s_add_u32 s31, s30, {i*64}")
        a(f"v_add_u32 v3, s31, v1")
        d = dst + i
        if c.layout == "panel":
            a("v_bfe_u32 v2, v3, 3, 6")
            if c.korder == "F":
                a(f"v_bfe_u32 v{d}, v2, 1, 2")
            else:
                a(f"v_bfe_u32 v{d}, v2, 1, 1")
                a("v_bfe_u32 v15, v2, 3, 1")
                a(f"v_lshl_or_b32 v{d}, v15, 1, v{d}")
            a(f"""
            v_lshlrev_b32 v{d}, 1, v{d}
            v_and_b32 v15, 7, v3
            v_xor_b32 v{d}, v{d}, v15
            v_and_b32 v2, {31 if c.kind == "w2" else 63}, v2
            v_mul_lo_u32 v2, v2, s36
            v_lshl_add_u32 v{d}, v{d}, 4, v2
            """)
            if c.pstride:
                a(f"""
                v_lshrrev_b32 v3, 9, v3
                {"s_bfe_u32 s31, s25, 0x10002" if c.sk else ""}
                {"v_xor_b32 v3, s31, v3" if c.sk else ""}
                v_mul_u32_u24 v3, {c.pstride}, v3
                v_add_u32 v{d}, v{d}, v3
                """)
        else:
            a(f"""
            v_mul_u32_u24 v2, 2341, v3
            v_lshrrev_b32 v2, 16, v2
            v_mul_u32_u24 v15, 28, v2
            v_sub_u32 v3, v3, v15
            v_bfe_u32 v15, v2, 2, 1
            v_lshlrev_b32 v15, 1, v15
            v_xor_b32 v3, v3, v15
            v_mul_lo_u32 v2, v2, s36
            v_lshl_add_u32 v{d}, v3, 4, v2
            """)
        if i & 3: a(f"v_subrev_u32 v{d}, {(i&3)*1024}, v{d}")

def issueA(a, c, slot=None, adv=True):
    if slot is None: a("s_add_u32 m0, s27, s34")
    else: a(f"s_add_u32 m0, s34, {c.ABASE + slot*16384}")
    for i in range(4):
        v = PV_A + (i if c.a_off is None else 0)
        a(f"buffer_load_dwordx4 v{v}, s[8:11], s28 offen offset:{i*1024}{'' if c.a_off is None else ' sc1'} lds")
    if adv:
        a(f"s_add_u32 s28, s28, {c.astep}")
        if c.rot: a(f"s_and_b32 s28, s28, {16*c.astep - 1}")
    if slot is None:
        a(f"""
        s_add_u32 s27, s27, 16384
        s_cmp_eq_u32 s27, {c.ABASE + c.S*16384}
        s_cselect_b32 s27, {c.ABASE}, s27
        """)

def issueB(a, c, slot=None, adv=True):
    for i in range(c.NBW):
        if i % 4 == 0:
            if slot is None:
                a(f"s_add_u32 m0, s32, {c.s35}")
                if i: a(f"s_add_u32 m0, m0, {i*1024}")
            else:
                a(f"s_add_u32 m0, {c.s35}, {c.BBASE + slot*c.BB + i*1024}")
        a(f"buffer_load_dwordx4 v{c.pvb+i}, s[{c.sb}:{c.sb+3}], s29 offen offset:{(i&3)*1024}{' nt' if (c.kind == 'qkv' and OPT['qnt'] >= 2) else ''} lds")
    if adv:
        a(f"s_add_u32 s29, s29, {c.bstep}")
        if c.rot:
            a(f"s_cmp_eq_u32 s29, {16*c.bstep}")
            a("s_cselect_b32 s29, 0, s29")
    if slot is None:
        a(f"""
        s_add_u32 s32, s32, {c.BB}
        s_cmp_eq_u32 s32, {c.BBASE + c.S*c.BB}
        s_cselect_b32 s32, {c.BBASE}, s32
        """)

PV_POLL = 28
def poll_once(a, wide):
    t = PV_POLL
    if wide: a(f"buffer_load_dwordx4 v[{t}:{t+3}], v26, s[{FLS}:{FLS+3}], s33 offen sc0 sc1")
    else: a(f"buffer_load_dwordx2 v[{t}:{t+1}], v26, s[{FLS}:{FLS+3}], s33 offen sc0 sc1")
    a("s_waitcnt vmcnt(0)")
    a(f"v_cmp_eq_u64 s[56:57], s[{TAG}:{TAG+1}], v[{t}:{t+1}]")
    if wide:
        a(f"v_cmp_eq_u64 s[58:59], s[{TAG}:{TAG+1}], v[{t+2}:{t+3}]")
        a("s_nop 3")
        a("s_and_b64 s[56:57], s[56:57], s[58:59]")
    else:
        a("s_nop 3")

def gate(a, t, wide):
    lp = a.label("gate"); ok = a.label("skip_gate")
    a(f"{lp}:")
    if t == "all":
        a("s_cmp_eq_u32 s56, -1" if OPT["sk"] else "s_cmp_eq_u64 s[56:57], -1")
    else:
        a(f"s_bfe_u32 s30, s{56 + t // 8}, {hex((4 << 16) | (4 * (t % 8)))}")
        a("s_cmp_eq_u32 s30, 15")
    a(f"s_cbranch_scc1 {ok}")
    poll_once(a, wide)
    a("""
    s_sub_u32 s39, s39, 1
    s_cselect_b64 s[58:59], -1, 0
    s_cselect_b32 s39, 0, s39
    s_or_b64 s[56:57], s[56:57], s[58:59]
    """)
    a(f"s_branch {lp}")
    a(f"{ok}:")

def gate_setup(a, seam_id, wide):
    a(f"""
    s_lshl_b32 s30, s65, 2
    v_add_u32 v26, s30, v1
    v_and_b32 v26, 63, v26
    v_lshlrev_b32 v26, {4 if wide else 3}, v26
    s_lshl_b32 s33, s24, 10
    s_add_u32 s33, s33, {seam_id*16384}
    s_mov_b64 s[56:57], 0
    s_mov_b32 s39, 0x200000
    """)

def colsum_tile(a, c, lds_base, wsg, which, R, part=None):
    AD = R; ACCU = R + 4; D = R + 8; t = R + 40
    if part in (None, 0):
        a(f"""
        v_lshrrev_b32 v{t}, 4, v1
        v_bfe_u32 v{t+1}, v1, 2, 2
        v_mul_u32_u24 v{t+2}, {c.gmul}, v{t}
        v_add_u32 v{t+2}, v{t+2}, v{t+1}
        v_mul_u32_u24 v{t+2}, {c.RS}, v{t+2}
        v_and_b32 v{t+3}, 3, v1
        v_lshl_add_u32 v{t+2}, v{t+3}, 3, v{t+2}
        v_and_b32 v{t}, 1, v{t}
        s_lshl_b32 s71, {wsg}, {13 if c.layout == "panel" else 7}
        s_add_u32 s71, s71, {lds_base}
        v_add_u32 v{t+2}, s71, v{t+2}
        """)
        if c.layout == "panel":
            a(f"v_lshrrev_b32 v{t+1}, 1, v{t+1}")
            a(f"v_lshl_or_b32 v{t}, v{t}, 1, v{t+1}")
        for ts in range(4):
            a(f"v_xor_b32 v{t+3}, {ts}, v{t}")
            a(f"v_lshl_add_u32 v{AD+ts}, v{t+3}, 5, v{t+2}")
        for q in range(4):
            for ts in range(4):
                d = D + (q * 4 + ts) * 2
                a(f"ds_read_b64_tr_b16 v[{d}:{d+1}], v{AD+ts} offset:{((q>>1)*32 + (q&1)*c.rdrows) * c.RS}")
        for ts in range(4): a(f"v_mov_b32 v{ACCU+ts}, 0")
        srd_off(a, 16, P_WS, CSG_OFF + which * 524288, 524288)
        a(f"""
        s_mov_b32 s75, 0x3f803f80
        v_lshlrev_b32 v{t}, 3, v1
        """)
        if c.kind == "qkv" and OPT["dil"]:
            a(f"""
            s_lshl_b32 s71, s24, 15
            s_mul_i32 s31, s25, 1536
            s_add_u32 s71, s71, s31
            s_lshl_b32 s31, {wsg}, 9
            s_add_u32 s71, s71, s31
            s_cmp_eq_u32 {wsg}, 3
            s_cselect_b32 s71, 0x40000000, s71
            """)
        else:
            a(f"""
            s_lshl_b32 s71, s25, 15
            s_lshl_b32 s31, s24, 11
            s_add_u32 s71, s71, s31
            s_lshl_b32 s31, {wsg}, 9
            s_add_u32 s71, s71, s31
            """)
    for q in range(4):
        if part not in (None, 1 + q // 2): continue
        if part is None or q == 0: a(f"s_waitcnt lgkmcnt({12-4*q if part is None else 0})")
        for d in range(2):
            for ts in range(4):
                a(f"v_dot2c_f32_bf16 v{ACCU+ts}, s75, v{D+(q*4+ts)*2+d}")
    if part in (None, 3):
        t0, t1, t2, t3 = ACCU, ACCU + 1, ACCU + 2, ACCU + 3
        a(f"""
        v_permlane32_swap_b32 v{t0}, v{t2}
        v_permlane32_swap_b32 v{t1}, v{t3}
        v_add_f32 v{t0}, v{t0}, v{t2}
        v_add_f32 v{t1}, v{t1}, v{t3}
        v_permlane16_swap_b32 v{t0}, v{t1}
        v_add_f32 v{t0}, v{t0}, v{t1}
        v_mov_b32 v{t1}, s{TAG}
        """)
        if c.kind == "qkv":
            sk = a.label("skip_xi")
            a(f"""
            s_cmp_lg_u32 {wsg}, 3
            s_cbranch_scc1 {sk}
            v_cmp_eq_u32 vcc, s74, v1
            v_cndmask_b32 v{t0}, 0, 1.0, vcc
            {sk}:
            """)
        a(f"buffer_store_dwordx2 v[{t0}:{t1}], v{t}, s[16:19], s71 offen sc0 sc1")

G_CS = 32
G_RS = 64
def gather_cs_setup(a, c):
    which = 0 if c.kind == "qkv" else 1
    srd_off(a, 16, P_WS, CSG_OFF + which * 524288, 524288)
    if c.kind == "qkv" and OPT["dil"]:
        a(f"""
        s_min_u32 s31, s38, 2
        s_lshl_b32 s60, s31, 13
        s_lshl_b32 s31, s25, 9
        s_add_u32 s60, s60, s31
        s_mov_b32 s67, 32768
        """)
    else:
        a(f"""
        s_lshl_b32 s60, s25, 15
        s_lshl_b32 s31, s38, 9
        s_add_u32 s60, s60, s31
        s_mov_b32 s67, 2048
        """)
    a("v_lshlrev_b32 v24, 3, v1")
    return 0
def gather_cs(a, r0, r1):
    for r in range(r0, r1):
        a(f"buffer_load_dwordx2 v[{G_CS+2*r}:{G_CS+2*r+1}], v24, s[16:19], s60 offen sc0 sc1")
        a("s_add_u32 s60, s60, s67")
    return r1 - r0
def gather_rs_setup(a, c):
    if c.kind == "qkv":
        srd_off(a, 20, P_WS, RS1_OFF, 32768)
        a(f"""
        v_and_b32 v25, 31, v1
        v_lshlrev_b32 v25, 4, v25
        s_lshl_b32 s61, s24, 11
        s_lshl_b32 s31, s38, 9
        s_add_u32 s61, s61, s31
        """)
    else:
        srd_off(a, 20, P_WS, ST2_OFF, 16 * 32768)
        a(f"""
        v_and_b32 v25, 31, v1
        v_lshlrev_b32 v25, 2, v25
        v_lshrrev_b32 v15, 5, v1
        v_lshl_add_u32 v25, v15, 9, v25
        s_lshl_b32 s61, s24, 15
        s_lshl_b32 s31, s38, 7
        s_add_u32 s61, s61, s31
        """)
    return 0
def gather_rs(a, c, p0=0, p1=32):
    if c.kind == "qkv":
        a(f"buffer_load_dwordx4 v[{G_RS}:{G_RS+3}], v25, s[20:23], s61 offen sc0 sc1")
        return 1
    a(f"s_add_u32 s30, s65, {p0 // 2}")
    a("s_and_b32 s30, s30, 15")
    a("s_lshl_b32 s30, s30, 11")
    a("s_add_u32 s30, s30, s61")
    for p in range(p0, p1):
        a(f"buffer_load_dword v{G_RS+p}, v25, s[20:23], s30 offen offset:{(p&1)*1024} sc0 sc1")
    return p1 - p0

def gather_finish_cs(a, c):
    lp = a.label("gchk"); ok = a.label("skip_gok")
    a("s_mov_b32 s62, 0x40000")
    a(f"{lp}:")
    a(f"v_xor_b32 v15, s{TAG}, v{G_CS+1}")
    for r in range(1, 16):
        a(f"v_xor_b32 v27, s{TAG}, v{G_CS+2*r+1}")
        a("v_or_b32 v15, v15, v27")
    if c.kind == "qkv":
        a(f"v_xor_b32 v27, s{TAG}, v{G_RS+2}")
        a("v_or_b32 v15, v15, v27")
        a(f"v_xor_b32 v27, s{TAG+1}, v{G_RS+3}")
        a("v_or_b32 v15, v15, v27")
    a(f"""
    v_cmp_ne_u32 vcc, 0, v15
    s_nop 3
    s_cmp_eq_u64 vcc, 0
    s_cbranch_scc1 {ok}
    s_sub_u32 s62, s62, 1
    s_cbranch_scc1 {ok}
    s_sleep 2
    """)
    gather_cs_setup(a, c); gather_cs(a, 0, 16)
    if c.kind == "qkv": gather_rs(a, c)
    a("s_waitcnt vmcnt(0)")
    a(f"s_branch {lp}")
    a(f"{ok}:")
    for r in range(1, 16): a(f"v_add_f32 v{G_CS}, v{G_CS}, v{G_CS+2*r}")
    a(f"""
    v_lshlrev_b32 v2, 2, v1
    s_lshl_b32 s30, s38, 8
    s_add_u32 s30, s30, {ST_CS}
    v_add_u32 v2, s30, v2
    ds_write_b32 v2, v{G_CS}
    """)
    return 0

def l2_issue(a, c):
    which = 0 if c.kind == "qkv" else 1
    srd_off(a, 16, P_WS, CSG_OFF + which * 524288, 524288)
    a(f"""
    s_lshl_b32 s60, s2, 2
    s_add_u32 s60, s60, s38
    v_lshrrev_b32 v24, 2, v1
    v_lshlrev_b32 v24, {15 if which == 0 else 11}, v24
    v_and_b32 v27, 3, v1
    v_lshl_add_u32 v24, v27, 3, v24
    """)
    if which == 0:
        a("s_min_u32 s60, s60, 767")
        a("s_lshl_b32 s67, s60, 5")
    else:
        a("""
        s_lshr_b32 s67, s60, 6
        s_lshl_b32 s67, s67, 15
        s_and_b32 s31, s60, 63
        s_lshl_b32 s31, s31, 5
        s_add_u32 s67, s67, s31
        """)
    a(f"buffer_load_dwordx2 v[{G_CS}:{G_CS+1}], v24, s[16:19], s67 offen sc0 sc1")
    return 1

def tagcheck(a, regs, retry):
    lp = a.label("gchk"); ok = a.label("skip_gok")
    a("s_mov_b32 s62, 0x80000")
    a(f"{lp}:")
    for k, (r, sg) in enumerate(regs):
        a(f"v_xor_b32 v{15 if k == 0 else 27}, s{sg}, v{r}")
        if k: a("v_or_b32 v15, v15, v27")
    a(f"""
    v_cmp_ne_u32 vcc, 0, v15
    s_nop 3
    s_cmp_eq_u64 vcc, 0
    s_cbranch_scc1 {ok}
    s_sub_u32 s62, s62, 1
    s_cbranch_scc1 {ok}
    """)
    retry()
    a("s_waitcnt vmcnt(0)")
    a(f"s_branch {lp}")
    a(f"{ok}:")

def l2_finish(a, c):
    which = 0 if c.kind == "qkv" else 1
    v = G_CS
    tagcheck(a, [(v + 1, TAG)], lambda: a(f"buffer_load_dwordx2 v[{v}:{v+1}], v24, s[16:19], s67 offen sc0 sc1"))
    srd_off(a, 16, P_WS, FIN_OFF + which * 32768, 32768)
    a(f"""
    v_add_f32_dpp v{v}, v{v}, v{v} row_ror:4 row_mask:0xf bank_mask:0xf
    v_add_f32_dpp v{v}, v{v}, v{v} row_ror:8 row_mask:0xf bank_mask:0xf
    v_mov_b32 v{v+2}, v{v}
    v_permlane16_swap_b32 v{v}, v{v+2}
    v_add_f32 v{v}, v{v}, v{v+2}
    v_mov_b32 v{v+2}, v{v}
    v_permlane32_swap_b32 v{v}, v{v+2}
    v_add_f32 v{v}, v{v}, v{v+2}
    v_lshlrev_b32 v24, 3, v1
    s_lshl_b32 s60, s60, 5
    s_mov_b64 exec, 15
    buffer_store_dwordx2 v[{v}:{v+1}], v24, s[16:19], s60 offen sc0 sc1
    s_mov_b64 exec, -1
    """)
    return 1

def fin_issue(a, c):
    if c.kind == "qkv":
        a("""
        s_min_u32 s31, s38, 2
        s_lshl_b32 s60, s31, 13
        s_lshl_b32 s31, s25, 9
        s_add_u32 s60, s60, s31
        """)
    else:
        a("""
        s_lshl_b32 s60, s25, 11
        s_lshl_b32 s31, s38, 9
        s_add_u32 s60, s60, s31
        """)
    a(f"buffer_load_dwordx2 v[{G_CS}:{G_CS+1}], v24, s[16:19], s60 offen sc0 sc1")
    return 1

def fin_finish(a, c):
    regs = [(G_CS + 1, TAG)] + ([(G_RS + 2, TAG), (G_RS + 3, TAG + 1)] if c.kind == "qkv" else [])
    def retry():
        a(f"buffer_load_dwordx2 v[{G_CS}:{G_CS+1}], v24, s[16:19], s60 offen sc0 sc1")
        if c.kind == "qkv": gather_rs(a, c)
    tagcheck(a, regs, retry)
    a(f"""
    v_lshlrev_b32 v2, 2, v1
    s_lshl_b32 s30, s38, 8
    s_add_u32 s30, s30, {ST_CS}
    v_add_u32 v2, s30, v2
    ds_write_b32 v2, v{G_CS}
    """)
    return 0

def gather_finish_rs(a, c):
    a(f"""
    v_and_b32 v3, 31, v1
    s_lshl_b32 s30, s38, 5
    v_add_u32 v3, s30, v3
    v_lshlrev_b32 v2, 4, v3
    v_add_u32 v2, {ST_REC}, v2
    """)
    R = G_RS
    if c.kind == "qkv":
        a(f"""
        v_lshlrev_b32 v3, 2, v3
        v_add_u32 v3, {ST_MEAN}, v3
        ds_write_b128 v2, v[{R}:{R+3}]
        ds_write_b32 v3, v{R}
        ds_write_b32 v3, v{R+1} offset:512
        """)
    else:
        a(f"""
        v_mov_b32 v{R+1}, v{R}
        v_permlane32_swap_b32 v{R}, v{R+1}
        v_mul_f32 v{R}, {f32(1.0/1024)}, v{R}
        v_mul_f32 v{R+1}, {f32(1.0/1024)}, v{R+1}
        v_fma_f32 v{R+1}, -v{R}, v{R}, v{R+1}
        v_max_f32 v{R+1}, 0, v{R+1}
        v_add_f32 v{R+4}, {f32(1e-5)}, v{R+1}
        v_rsq_f32 v{R+1}, v{R+4}
        v_sqrt_f32 v{R+3}, v{R+4}
        v_sqrt_f32 v{R+2}, v{R+4}
        v_mul_f32 v{R+1}, {f32(-LOG2E)}, v{R+1}
        ds_write_b128 v2, v[{R}:{R+3}]
        """)
    a("s_waitcnt lgkmcnt(0)")
    return 0

def row_stats_issue(a, X):
    srd_off(a, 20, P_X, 0, 4 * MB)
    srd_off(a, 16, P_DBG, 0, 256)
    a(f"""
    s_lshl_b32 s30, s24, 7
    s_lshl_b32 s31, s25, 3
    s_add_u32 s30, s30, s31
    s_lshl_b32 s31, s3, 1
    s_add_u32 s33, s30, s31
    s_lshl_b32 s30, s33, 11
    v_lshlrev_b32 v{X+18}, 4, v1
    v_mov_b32 v{X+19}, 0
    """)
    for i in range(4):
        a(f"buffer_load_dwordx4 v[{X+4*i}:{X+4*i+3}], v{X+18}, s[20:23], s30 offen offset:{i*1024}")

def row_stats_finish(a, X, T):
    s0, q0, s1, q1 = T, T + 1, T + 2, T + 3
    a(f"buffer_load_dwordx2 v[{X+16}:{X+17}], v{X+19}, s[16:19], 0 offen sc0 sc1")
    a("s_mov_b32 s75, 0x3f803f80")
    for i in range(4): a(f"v_mov_b32 v{T+i}, 0")
    a("s_waitcnt vmcnt(1)")
    for d in range(8):
        for row in range(2):
            r = X + 8 * row + d
            a(f"v_dot2c_f32_bf16 v{T+2*row}, s75, v{r}")
            a(f"v_dot2c_f32_bf16 v{T+2*row+1}, v{r}, v{r}")
    a(f"""
    v_permlane32_swap_b32 v{s0}, v{q0}
    v_permlane32_swap_b32 v{s1}, v{q1}
    v_add_f32 v{s0}, v{s0}, v{q0}
    v_add_f32 v{s1}, v{s1}, v{q1}
    v_permlane16_swap_b32 v{s0}, v{s1}
    v_add_f32 v{s0}, v{s0}, v{s1}
    v_add_f32_dpp v{s0}, v{s0}, v{s0} quad_perm:[1,0,3,2] row_mask:0xf bank_mask:0xf
    v_add_f32_dpp v{s0}, v{s0}, v{s0} quad_perm:[2,3,0,1] row_mask:0xf bank_mask:0xf
    v_add_f32_dpp v{s0}, v{s0}, v{s0} row_half_mirror row_mask:0xf bank_mask:0xf
    v_add_f32_dpp v{s0}, v{s0}, v{s0} row_mirror row_mask:0xf bank_mask:0xf
    v_mov_b32 v{q0}, v{s0}
    v_permlane32_swap_b32 v{s0}, v{q0}
    v_mul_f32 v{s0}, {f32(1.0/1024)}, v{s0}
    v_mul_f32 v{q0}, {f32(1.0/1024)}, v{q0}
    v_fma_f32 v{q0}, -v{s0}, v{s0}, v{q0}
    v_max_f32 v{q0}, 0, v{q0}
    v_add_f32 v{q0}, {f32(1e-5)}, v{q0}
    v_rsq_f32 v{q0}, v{q0}
    """)
    lp = a.label("tagp"); dn = a.label("tagd")
    a(f"""
    s_mov_b32 s39, 0x100000
    {lp}:
    s_waitcnt vmcnt(0)
    v_readfirstlane_b32 s{TAG}, v{X+16}
    v_readfirstlane_b32 s{TAG+1}, v{X+17}
    s_nop 3
    s_cmp_lg_u32 s{TAG}, 0
    s_cbranch_scc1 {dn}
    s_sleep 1
    buffer_load_dwordx2 v[{X+16}:{X+17}], v{X+19}, s[16:19], 0 offen sc0 sc1
    s_sub_u32 s39, s39, 1
    s_cmp_lg_u32 s39, 0
    s_cbranch_scc1 {lp}
    {dn}:
    """)
    srd_off(a, 20, P_WS, RS1_OFF, 32768)
    a(f"""
    v_mov_b32 v{s1}, s{TAG}
    v_mov_b32 v{q1}, s{TAG+1}
    v_and_b32 v{T+4}, 16, v1
    s_lshl_b32 s30, s33, 4
    v_mov_b32 v{T+5}, {ST_TAG}
    s_mov_b64 exec, 0x10001
    buffer_store_dwordx4 v[{T}:{T+3}], v{T+4}, s[20:23], s30 offen sc0 sc1
    ds_write_b64 v{T+5}, v[{s1}:{q1}]
    s_mov_b64 exec, -1
    s_waitcnt lgkmcnt(0)
    """)

def w2_kg(t):
    if OPT["sk"]:
        if t < 8: return 7 * t, 4
        if t < 12: return 14 * (t - 8) + 3, 7
        if t < 20: return 7 * (t - 12) + 1, 4
        return 7 * (t - 20) + 2, 4
    if t < 16: return 7 * t, 4
    if t < 24: return 14 * (t - 16) + 3, 7
    if t < 40: return 7 * (t - 24) + 1, 4
    return 7 * (t - 40) + 2, 4

def set_soff(a, c, st, A=True, B=True):
    if c.kind != "w2": return
    if OPT["own"]:
        if st < 3:
            a(f"s_add_u32 s30, s43, s63"); off = st
        elif 10 <= st < 14:
            m = st - 10; i = 2 * m
            a(f"s_add_u32 s30, s66, s64"); off = 7 * (i + (i & 4)) + 3
        else:
            t, off = (st - 3, 0) if st < 10 else ((st - 14, 1) if st < 21 else (st - 21, 2))
            a(f"""
            s_add_u32 s30, s42, {t + 1}
            s_and_b32 s30, s30, 7
            s_and_b32 s31, s30, 4
            s_add_u32 s30, s30, s31
            s_mul_i32 s30, s30, {7*8192}
            s_add_u32 s30, s30, s66
            s_add_u32 s30, s30, s63
            """)
        if A: a(f"s_add_u32 s28, s30, {off*8192}")
        if B:
            a(f"s_add_u32 s29, s30, {off*8192}")
            a("s_lshl_b32 s29, s29, 3")
        return
    base, dh = w2_kg(st)
    off = base % 7
    hs = "s63" if dh == 4 else "s64"
    a(f"s_add_u32 s30, s66, {(base - off)*8192}")
    a(f"s_sub_u32 s31, s30, {112*8192}")
    a("s_cselect_b32 s30, s30, s31")
    a(f"s_add_u32 s30, s30, {hs}")
    if A: a(f"s_add_u32 s28, s30, {off*8192}")
    if B:
        a(f"s_add_u32 s29, s30, {off*8192}")
        a("s_lshl_b32 s29, s29, 3")

def w2_early_setup(a, c):
    a(f"""
    s_mul_i32 s41, s38, {c.NBW*1024}
    s_and_b32 s30, s38, 1
    s_mul_i32 s63, s30, {4*8192}
    s_mul_i32 s64, s30, {7*8192}
    s_and_b32 s30, s25, 4
    s_mul_i32 s66, s30, {(7 if OPT["own"] else 14)*8192}
    s_and_b32 s42, s25, 3
    s_lshr_b32 s30, s25, 3
    s_lshl_b32 s30, s30, 2
    s_add_u32 s42, s42, s30
    s_mul_i32 s43, s25, {7*8192}
    """)
    c.bstep = 64 * c.ldb
    b_setup(a, c, c.pvb, c.sb)

def pre_B(a, c, st0=0, st1=None):
    for st in range(st0, c.S if st1 is None else st1):
        set_soff(a, c, st, A=False)
        issueB(a, c, (st + c.bs0) % c.SB, c.kind != "w2")
    return (( c.S if st1 is None else st1) - st0) * c.NBW

def gemm_producer(a, c, preB, gated=None, side=None, after_issue=None, unroll_to=None):
    n = c.n; S = c.S; L = 4 + c.NBW
    side = side or {}
    U = n if unroll_to is None else unroll_to
    ops = []
    w2 = c.kind == "w2"
    def iss(st):
        if gated and st < (8 if c.sk else 16): gate(a, st, gated == "wide")
        if st == (1 if (c.kind == "w1" and OPT["own1"]) else 0): stamp(a, c.sid)
        doB = not (preB and st < c.SB)
        set_soff(a, c, st, True, doB)
        issueA(a, c, st % S, not w2); ops.extend([st] * 4)
        if doB:
            issueB(a, c, (st + c.bs0) % c.SB, not w2); ops.extend([st] * c.NBW)
        if after_issue:
            if st == 1 and c.kind == "w1" and OPT["own1"]: ops.extend([st] * after_issue(0))
            ops.extend([st] * after_issue(st))
    def wait(st):
        last = max(i for i, x in enumerate(ops) if x <= st)
        a(f"s_waitcnt vmcnt({min(63, len(ops) - 1 - last)})")
    def run_side(j, tag):
        for f in side.get(j, []): ops.extend([tag] * (f() or 0))
    if DIAG and OPT['steps']: a('s_mov_b32 s99, 0\nv_mov_b32 v252, 0')
    own0 = c.kind == "w1" and OPT["own1"]
    if own0:
        a(f"s_add_u32 s28, s28, {c.astep}")
        a(f"s_and_b32 s28, s28, {16*c.astep - 1}")
        a(f"s_waitcnt vmcnt({(S-1)*c.NBW})")
        issued = 1
    else:
        iss(0); issued = 1
        if not (c.kind == "qkv" and OPT["early0"]):
            run_side(-1, 1)
            iss(1); issued = 2
        wait(0)
    stamp(a, c.sid + 1)
    pbar(a)
    j = 0
    while j < n:
        allowed = j - 1 + S
        if issued >= U and issued < n: break
        cnt = 0
        if c.kind == "qkv" and OPT["early0"] == 1 and j == 0: run_side(-1, 1)
        while issued <= allowed and cnt < 2 and issued < U:
            if c.kind == "qkv" and OPT["early0"] >= 2 and issued == OPT["early0"]: run_side(-1, OPT["early0"])
            iss(issued); issued += 1; cnt += 1
        run_side(j, max(issued - 1, j + 2))
        j += 1
        if j < n: wait(j)
        pbar(a)
    if j < n:
        assert issued == j - 1 + S
        a(f"s_mov_b32 s27, {c.ABASE + (issued % S)*16384}")
        a(f"s_mov_b32 s32, {c.BBASE + (issued % S)*c.BB}")
        for (t0, t1, stride) in c.rounds:
            if t0 == c.gate_all_at:
                a(f"s_waitcnt vmcnt({(c.gate_all_at - c.prepoll_at) * L})")
                a(f"v_cmp_eq_u64 s[56:57], s[{TAG}:{TAG+1}], v[{PV_POLL}:{PV_POLL+1}]")
                a("s_nop 3")
                gate(a, "all", False)
            if t0 == c.prepoll_at:
                gate_setup(a, c.seamB, False)
                a(f"buffer_load_dwordx2 v[{PV_POLL}:{PV_POLL+1}], v26, s[{FLS}:{FLS+3}], s33 offen sc0 sc1")
            if t0 in c.round_hook: c.round_hook[t0]()
            lp = a.label("p_loop")
            set_soff(a, c, t0, True, False)
            a(f"s_mov_b32 s26, {t1 - t0}")
            a(f"{lp}:")
            a("s_lshl_b32 s29, s28, 3")
            issueA(a, c, None, False); issueB(a, c, None, False)
            a(f"s_add_u32 s28, s28, {stride*8192}")
            a(f"s_sub_u32 s31, s28, {112*8192}")
            a("s_cselect_b32 s28, s28, s31")
            a(f"s_waitcnt vmcnt({(S-2)*L})")
            if DIAG and OPT["steps"]:
                pbar(a)
                a(f"s_sub_u32 s26, s26, 1\ns_cmp_lg_u32 s26, 0\ns_cbranch_scc1 {lp}")
            else:
                a(f"s_sub_u32 s26, s26, 1\ns_cmp_lg_u32 s26, 0\ns_barrier\ns_cbranch_scc1 {lp}")
        j = n - S + 1
        stamp(a, c.sid + 2)
        while j < n:
            j += 1
            if j < n: a(f"s_waitcnt vmcnt({(n-1-j)*L})")
            pbar(a)
    stamp(a, c.sid + 3)
    pbar_flush(a, {'qkv':0,'wo':1,'w1':2,'w2':3}[c.kind])

def own_gate_setup(a, seam_id):
    a(f"""
    v_lshrrev_b32 v2, 2, v1
    s_add_u32 s30, s42, 1
    v_add_u32 v2, s30, v2
    v_and_b32 v2, 7, v2
    v_and_b32 v3, 4, v2
    v_add_u32 v2, v2, v3
    s_and_b32 s30, s25, 4
    v_add_u32 v2, s30, v2
    v_and_b32 v3, 3, v1
    v_lshl_add_u32 v2, v2, 2, v3
    v_lshlrev_b32 v26, 3, v2
    s_lshl_b32 s33, s24, 10
    s_add_u32 s33, s33, {seam_id*16384}
    s_mov_b64 s[56:57], 0
    s_mov_b32 s39, 0x200000
    """)

def w2_producer(a, c):
    n = c.n; S = c.S
    ops = []
    def A(st):
        if 3 <= st < 10: gate(a, st - 3, False)
        if st == 3: stamp(a, c.sid)
        if st == 14:
            last = max(i for i, x in enumerate(ops) if x == -7)
            a(f"s_waitcnt vmcnt({len(ops) - 1 - last})")
            a(f"v_cmp_eq_u64 s[56:57], s[{TAG}:{TAG+1}], v[{PV_POLL}:{PV_POLL+1}]")
            a("s_nop 3")
            gate(a, "all", False)
        set_soff(a, c, st, True, False)
        issueA(a, c, st % S, False); ops.extend([st] * 4)
    def B(st, same=False):
        if same: a("s_lshl_b32 s29, s28, 3")
        else: set_soff(a, c, st, False, True)
        issueB(a, c, st % S, False); ops.extend([st] * c.NBW)
    def wait(st):
        last = max(i for i, x in enumerate(ops) if 0 <= x <= st)
        a(f"s_waitcnt vmcnt({min(63, len(ops) - 1 - last)})")
    if DIAG and OPT['steps']: a('s_mov_b32 s99, 0\nv_mov_b32 v252, 0')
    own_gate_setup(a, 0)
    a("s_waitcnt vmcnt(0)")
    pbar(a)
    apoll = f"buffer_load_dwordx2 v[{PV_POLL}:{PV_POLL+1}], v26, s[{FLS}:{FLS+3}], s33 offen sc0 sc1"
    def acheck(cnt):
        a(f"s_waitcnt vmcnt({cnt})")
        a(f"v_cmp_eq_u64 s[56:57], s[{TAG}:{TAG+1}], v[{PV_POLL}:{PV_POLL+1}]")
        a("s_nop 3")
    om = OPT["ownm"]
    pbar(a)
    if om == 1: a(apoll)
    B(4)
    pbar(a)
    if om == 1:
        acheck(4); A(3); B(5); A(4); A(5)
    elif om == 2:
        a(apoll); B(5); acheck(4); A(3); A(4); A(5)
    elif om == 3:
        A(3); B(5); A(4); A(5)
    else:
        B(5); A(3); A(4); A(5)
    wait(3)
    stamp(a, c.sid + 1)
    pbar(a)
    for j in range(3, n):
        st = j - 1 + S
        if st < n:
            if st == 12:
                own_gate_setup(a, 3)
                a(f"buffer_load_dwordx2 v[{PV_POLL}:{PV_POLL+1}], v26, s[{FLS}:{FLS+3}], s33 offen sc0 sc1")
                ops.append(-7)
            A(st); B(st, True)
        if j + 1 < n: wait(j + 1)
        pbar(a)
    stamp(a, c.sid + 3)
    pbar_flush(a, 3)

def touch(a, ptr, total_bytes, sr_=20):
    nl = total_bytes // 128 // 1024
    srd_off(a, sr_, ptr, 0, total_bytes)
    a(f"""
    s_lshl_b32 s30, s2, 2
    s_add_u32 s30, s30, s38
    s_mul_i32 s30, s30, {nl*128}
    v_lshlrev_b32 v2, 7, v1
    s_mov_b32 exec_lo, {hex(((1 << nl) - 1) & 0xffffffff)}
    s_mov_b32 exec_hi, {hex(((1 << nl) - 1) >> 32)}
    buffer_load_dword v253, v2, s[{sr_}:{sr_+3}], s30 offen
    s_mov_b64 exec, -1
    """)
    return 1

def xtouch_setup(a, ptr, nbytes, sr_, vreg):
    srd_off(a, sr_, ptr, 0, nbytes)
    a(f"""
    v_lshrrev_b32 v2, 2, v1
    v_lshlrev_b32 v2, 11, v2
    v_and_b32 v3, 3, v1
    v_lshl_add_u32 v2, v3, 7, v2
    s_and_b32 s30, s2, 3
    s_lshl_b32 s30, s30, 9
    s_lshl_b32 s31, s38, 14
    s_add_u32 s30, s30, s31
    v_add_u32 v2, s30, v2
    v_mov_b32 v3, 0x40000000
    v_cmp_gt_u32 vcc, 32, v1
    v_cndmask_b32 v{vreg}, v3, v2, vcc
    """)

def w2_xtouch(a, q):
    a(f"""
    s_lshr_b32 s30, s2, 4
    s_mul_i32 s30, s30, {7*65536}
    s_bfe_u32 s31, s2, 0x10003
    s_mul_i32 s31, s31, {4*65536 if q < 3 else 0x20000000}
    s_add_u32 s30, s30, s31
    s_add_u32 s30, s30, {q*65536}
    buffer_load_dword v253, v23, s[44:47], s30 offen
    """)
    return 1

def attention_v1(a):
    SC = (32 ** -0.5) * LOG2E
    vF, vL, vQH = 2, 4, 5
    Q = 8; O = 16; SB = 32; F = 176; T = 248
    a(f"""
    v_bfe_u32 v6, v1, 4, 1
    v_lshlrev_b32 v{vF}, 10, v6
    v_lshrrev_b32 v6, 5, v1
    v_lshl_add_u32 v{vF}, v6, 8, v{vF}
    v_and_b32 v7, 15, v1
    v_lshl_add_u32 v{vF}, v7, 4, v{vF}
    v_and_b32 v7, 31, v1
    v_lshlrev_b32 v6, 2, v6
    v_sub_u32 v{vQH}, v7, v6
    s_lshr_b32 s34, s3, 2            ; hh
    s_and_b32 s35, s3, 3             ; qb
    s_mul_i32 s30, s34, {HEADW}
    s_lshl_b32 s31, s35, 11
    s_add_u32 s30, s30, s31
    v_add_u32 v{vL}, s30, v{vF}
    ds_read_b128 v[{Q}:{Q+3}], v{vL} offset:49152
    ds_read_b128 v[{Q+4}:{Q+7}], v{vL} offset:{49152+512}
    """)
    def fr(b, i): return F + b * 8 + i * 4
    rd = []
    for b in range(9):
        for i in range(2):
            rd.append(f"ds_read_b128 v[{fr(b,i)}:{fr(b,i)+3}], v{vL} offset:{b*2048 + i*512}")
    for x in rd[:8]: a(x)
    for r in range(16):
        cst = 8 * (r >> 2) + (r & 3)
        a(f"v_cmp_gt_i32 s[{40+2*r}:{41+2*r}], {cst}, v{vQH}")
    nissued = 8
    rv = []
    for b in range(9):
        for i in range(2):
            rv.append(f"ds_read_b128 v[{fr(b,i)}:{fr(b,i)+3}], v{vL} offset:{24576 + b*2048 + i*512}")
    for b in range(9):
        a(f"s_waitcnt lgkmcnt({nissued - (2*b+2)})")
        s = SB + 16 * b
        a(f"v_mfma_f32_32x32x16_bf16 v[{s}:{s+15}], v[{fr(b,0)}:{fr(b,0)+3}], v[{Q}:{Q+3}], 0")
        if nissued < 18: a(rd[nissued]); nissued += 1
        a(f"v_mfma_f32_32x32x16_bf16 v[{s}:{s+15}], v[{fr(b,1)}:{fr(b,1)+3}], v[{Q+4}:{Q+7}], v[{s}:{s+15}]")
        if nissued < 18: a(rd[nissued]); nissued += 1
    for x in rv[:14]: a(x)
    skip = a.label("at_valid")
    a(f"""
    s_lshl_b32 s30, s24, 2
    s_add_u32 s30, s30, s35
    s_cmp_ge_u32 s30, 8
    s_cbranch_scc1 {skip}
    """)
    for b in range(8):
        nb = a.label("at_nb")
        a(f"s_cmp_ge_u32 s30, {8-b}")
        a(f"s_cbranch_scc1 {nb}")
        for r in range(16):
            a(f"v_mov_b32 v{SB+16*b+r}, 0xff800000")
        a(f"{nb}:")
    a(f"{skip}:")
    mx = T; mx2 = T + 1; sm = T + 2
    a(f"v_max_f32 v{mx}, v{SB+16}, v{SB+17}")
    a(f"v_max_f32 v{mx2}, v{SB+18}, v{SB+19}")
    idx = list(range(20, 128))
    for k in range(0, len(idx), 2):
        m = mx if (k // 2) % 2 == 0 else mx2
        a(f"v_max3_f32 v{m}, v{SB+idx[k]}, v{SB+idx[k+1]}, v{m}")
    for r in range(16):
        a(f"v_cndmask_b32 v{SB+r}, v{SB+128+r}, v{SB+r}, s[{40+2*r}:{41+2*r}]")
    for k in range(0, 16, 2):
        m = mx if (k // 2) % 2 == 0 else mx2
        a(f"v_max3_f32 v{m}, v{SB+k}, v{SB+k+1}, v{m}")
    for x in rv[14:]: a(x)
    a(f"""
    v_max_f32 v{mx}, v{mx}, v{mx2}
    v_mov_b32 v{mx2}, v{mx}
    v_permlane32_swap_b32 v{mx}, v{mx2}
    v_max_f32 v{mx}, v{mx}, v{mx2}
    v_mov_b32 v{Q}, {f32(SC)}
    v_mov_b32 v{Q+1}, {f32(SC)}
    v_mul_f32 v{Q+2}, {f32(-SC)}, v{mx}
    v_mul_f32 v{Q+3}, {f32(-SC)}, v{mx}
    v_mov_b32 v{sm}, 0
    v_mov_b32 v{sm+1}, 0
    s_waitcnt lgkmcnt(0)
    s_barrier
    """)
    sk = a.label("skip_x1")
    a(f"""
    s_cmp_lt_u32 s3, 4
    s_cbranch_scc1 {sk}
    s_mul_i32 s30, s24, {64*7168}
    s_mul_i32 s31, s38, 7168
    """)
    for i in range(7):
        if i % 4 == 0: a(f"s_add_u32 m0, s31, {XB1 + i*1024}")
        a(f"buffer_load_dwordx4 v{O+i}, s[20:23], s30 offen offset:{(i&3)*1024} lds")
    if OPT["sk"] and OPT["sent"] == 1:
        sk2 = a.label("skip_x2")
        a(f"s_branch {sk2}")
        a(f"{sk}:")
        srd_off(a, 20, P_WS, XP_OFF, 8 * MB)
        a(f"""
        s_lshl_b32 s30, s24, 19
        s_lshl_b32 s31, s3, 13
        s_add_u32 s30, s30, s31
        s_lshl_b32 s31, s25, 15
        s_add_u32 s30, s30, s31
        v_lshlrev_b32 v{O+4}, 4, v1
        """)
        for i in range(4): a(f"v_mov_b32 v{O+i}, -1")
        for mt in range(4):
            a(f"buffer_store_dwordx4 v[{O}:{O+3}], v{O+4}, s[20:23], s30 offen offset:{mt*1024} sc0 sc1")
        a(f"{sk2}:")
    else:
        a(f"{sk}:")
    def pack(s):
        for d, r in [(0, 0), (1, 2), (2, 8), (3, 10), (4, 4), (5, 6), (6, 12), (7, 14)]:
            a(f"v_cvt_pk_bf16_f32 v{s+d}, v{s+r}, v{s+r+1}")
    first = [True]
    def pv(b, s):
        c0 = "0" if first[0] else f"v[{O}:{O+15}]"
        first[0] = False
        a(f"v_mfma_f32_32x32x16_bf16 v[{O}:{O+15}], v[{fr(b,0)}:{fr(b,0)+3}], v[{s}:{s+3}], {c0}")
        a(f"v_mfma_f32_32x32x16_bf16 v[{O}:{O+15}], v[{fr(b,1)}:{fr(b,1)+3}], v[{s+4}:{s+7}], v[{O}:{O+15}]")
    pending = None
    for b in [0, 1, 2, 3, 4, 5, 6, 7]:
        s = SB + 16 * b
        for r in range(0, 16, 2):
            a(f"v_pk_fma_f32 v[{s+r}:{s+r+1}], v[{s+r}:{s+r+1}], v[{Q}:{Q+1}], v[{Q+2}:{Q+3}]")
        if pending is not None:
            for p in pending: pv(*p)
            pending = None
        for r in range(16):
            a(f"v_exp_f32 v{s+r}, v{s+r}")
        for r in range(0, 16, 2):
            a(f"v_pk_add_f32 v[{sm}:{sm+1}], v[{sm}:{sm+1}], v[{s+r}:{s+r+1}]")
        if b == 0:
            s8 = SB + 128
            for r in range(16):
                a(f"v_cndmask_b32 v{s8+r}, v{s+r}, 0, s[{40+2*r}:{41+2*r}]")
                a(f"v_cndmask_b32 v{s+r}, 0, v{s+r}, s[{40+2*r}:{41+2*r}]")
            pack(s); pack(s8)
            pending = [(0, s), (8, s8)]
        else:
            pack(s)
            pending = [(b, s)]
    for p in pending: pv(*p)
    srd_off(a, 16, P_WS, O_OFF, 4 * MB)
    a(f"""
    v_add_f32 v{sm}, v{sm}, v{sm+1}
    v_mov_b32 v{sm+1}, v{sm}
    v_permlane32_swap_b32 v{sm}, v{sm+1}
    v_add_f32 v{sm}, v{sm}, v{sm+1}
    v_rcp_f32 v{sm+1}, v{sm}
    v_rcp_f32 v{sm}, v{sm}
    s_lshl_b32 s30, s24, 18
    s_lshl_b32 s31, s25, 14
    s_add_u32 s30, s30, s31
    s_lshl_b32 s31, s34, 13
    s_add_u32 s30, s30, s31
    s_lshl_b32 s31, s35, 11
    s_add_u32 s30, s30, s31
    """)
    for r in range(0, 16, 2):
        a(f"v_pk_mul_f32 v[{O+r}:{O+r+1}], v[{O+r}:{O+r+1}], v[{sm}:{sm+1}]")
    pack(O)
    a(f"""
    buffer_store_dwordx4 v[{O}:{O+3}], v{vF}, s[16:19], s30 offen sc0 sc1
    buffer_store_dwordx4 v[{O+4}:{O+7}], v{vF}, s[16:19], s30 offen offset:512 sc0 sc1
    """)
    stamp(a, 10)
    signal(a, 1, 3, SB)
    stamp(a, 11)

def attention(a):
    if not OPT["att2"]: return attention_v1(a)
    SC = (32 ** -0.5) * LOG2E
    vF, vL, vQH = 2, 4, 5
    Q = 8; O = 16; SB = 32; F = 176; T = 248
    MK = O + 8
    ONES = Q + 4
    LS = SB + 128
    mx = T; mx2 = T + 1
    a(f"""
    v_bfe_u32 v6, v1, 4, 1
    v_lshlrev_b32 v{vF}, 10, v6
    v_lshrrev_b32 v6, 5, v1
    v_lshl_add_u32 v{vF}, v6, 8, v{vF}
    v_and_b32 v7, 15, v1
    v_lshl_add_u32 v{vF}, v7, 4, v{vF}
    s_lshr_b32 s34, s3, 2
    s_and_b32 s35, s3, 3
    s_mul_i32 s30, s34, {HEADW}
    s_lshl_b32 s31, s35, 11
    s_add_u32 s30, s30, s31
    v_add_u32 v{vL}, s30, v{vF}
    ds_read_b128 v[{Q}:{Q+3}], v{vL} offset:49152
    ds_read_b128 v[{Q+4}:{Q+7}], v{vL} offset:{49152+512}
    """)
    def fr(b, i): return F + b * 8 + i * 4
    order = [0, 8, 1, 2, 3, 4, 5, 6, 7]
    rd = [f"ds_read_b128 v[{fr(b,i)}:{fr(b,i)+3}], v{vL} offset:{b*2048 + i*512}" for b in order for i in range(2)]
    rv = [f"ds_read_b128 v[{fr(b,i)}:{fr(b,i)+3}], v{vL} offset:{24576 + b*2048 + i*512}" for b in order for i in range(2)]
    for x in rd[:8]: a(x)
    a(f"""
    v_and_b32 v7, 31, v1
    v_lshlrev_b32 v6, 2, v6
    v_sub_u32 v{vQH}, v7, v6
    v_mov_b32 v6, 0xffff0000
    """)
    msk = lambda r: f"s[{40+2*r}:{41+2*r}]"
    for r in range(16):
        a(f"v_cmp_gt_i32 {msk(r)}, {8 * (r >> 2) + (r & 3)}, v{vQH}")
    PK = [(0, 0), (1, 2), (2, 8), (3, 10), (4, 4), (5, 6), (6, 12), (7, 14)]
    fill = {k: [] for k in range(9)}
    for d, r in PK:
        fill[d // 4].append(f"v_cndmask_b32 v{MK+d}, 0, v6, {msk(r+1)}")
        fill[d // 4].append(f"v_cndmask_b32 v{MK+d}, v{MK+d}, -1, {msk(r)}")
    def merge(): return [f"v_cndmask_b32 v{SB+r}, v{SB+128+r}, v{SB+r}, {msk(r)}" for r in range(16)]
    def maxblk(b, first=False):
        o = []; s_ = SB + 16 * b
        for k in range(0, 16, 2):
            m = mx if (k // 2) % 2 == 0 else mx2
            if first and k < 4: o.append(f"v_max_f32 v{m}, v{s_+k}, v{s_+k+1}")
            else: o.append(f"v_max3_f32 v{m}, v{s_+k}, v{s_+k+1}, v{m}")
        return o
    mg = merge()
    fill[3] += mg[:8]; fill[4] += mg[8:] + maxblk(1, True)[:4]
    fill[5] += maxblk(1, True)[4:] + maxblk(0); fill[6] += maxblk(2) + maxblk(3)[:4]
    fill[7] += maxblk(3)[4:] + maxblk(4); fill[8] += maxblk(5)
    nissued = 8
    late = []
    for k, b in enumerate(order):
        a(f"s_waitcnt lgkmcnt({nissued - (2*k+2)})")
        s_ = SB + 16 * b
        fl = fill[k]; h = len(fl) // 2
        if OPT["bis"] == 1: h = 0
        if OPT["bis"] == 2: late += fl; fl = []
        a(f"v_mfma_f32_32x32x16_bf16 v[{s_}:{s_+15}], v[{fr(b,0)}:{fr(b,0)+3}], v[{Q}:{Q+3}], 0")
        if nissued < 18: a(rd[nissued]); nissued += 1
        for x in fl[:h]: a(x)
        a(f"v_mfma_f32_32x32x16_bf16 v[{s_}:{s_+15}], v[{fr(b,1)}:{fr(b,1)+3}], v[{Q+4}:{Q+7}], v[{s_}:{s_+15}]")
        if nissued < 18: a(rd[nissued]); nissued += 1
        for x in fl[h:]: a(x)
    for x in rv[:12]: a(x)
    for x in late + maxblk(6) + maxblk(7): a(x)
    skip = a.label("at_valid")
    a(f"""
    s_lshl_b32 s30, s24, 2
    s_add_u32 s30, s30, s35
    s_cmp_ge_u32 s30, 8
    s_cbranch_scc1 {skip}
    v_mov_b32 v7, 0xff800000
    """)
    for r in range(16):
        a(f"v_cndmask_b32 v{SB+r}, v{SB+r}, v7, {msk(r)}")
    for b in range(1, 8):
        nb = a.label("at_nb")
        a(f"s_cmp_ge_u32 s30, {8-b}")
        a(f"s_cbranch_scc1 {nb}")
        for r in range(16):
            a(f"v_mov_b32 v{SB+16*b+r}, v7")
        a(f"{nb}:")
    for b in range(8):
        for x in maxblk(b, b == 0): a(x)
    a(f"{skip}:")
    for x in rv[12:]: a(x)
    a(f"""
    v_max_f32 v{mx}, v{mx}, v{mx2}
    v_mov_b32 v{Q}, {f32(SC)}
    v_mov_b32 v{Q+1}, {f32(SC)}
    v_mov_b32 v{mx2}, v{mx}
    """)
    for i in range(4): a(f"v_mov_b32 v{ONES+i}, 0x3f803f80")
    a(f"""
    v_permlane32_swap_b32 v{mx}, v{mx2}
    v_max_f32 v{mx}, v{mx}, v{mx2}
    v_mul_f32 v{Q+2}, {f32(-SC)}, v{mx}
    v_mul_f32 v{Q+3}, {f32(-SC)}, v{mx}
    """)
    def free_lds():
        a("s_waitcnt lgkmcnt(0)")
        a("s_barrier")
        sk = a.label("skip_x1")
        a(f"""
        s_cmp_lt_u32 s3, 4
        s_cbranch_scc1 {sk}
        """)
        if OPT["deepb"]:
            cw = mk("wo", **CFG["wo"]); cw.bstep = 64 * cw.ldb; cw.pvb = 250; cw.s35 = "s33"
            a("s_lshl_b32 s33, s38, 11")
            pre_B(a, cw, 4, 12)
        a(f"""
        s_mul_i32 s30, s24, {64*7168}
        s_mul_i32 s31, s38, 7168
        """)
        for i in range(7):
            if i % 4 == 0: a(f"s_add_u32 m0, s31, {xb1() + i*1024}")
            a(f"buffer_load_dwordx4 v{O+i}, s[20:23], s30 offen offset:{(i&3)*1024} lds")
        a(f"{sk}:")
    def pack(s_):
        return [f"v_cvt_pk_bf16_f32 v{s_+d}, v{s_+r}, v{s_+r+1}" for d, r in PK]
    fo = [True]; fl_ = [True]
    def pv(b, s_):
        o = []
        for i in range(2):
            c0 = "0" if fo[0] else f"v[{O}:{O+15}]"; fo[0] = False
            o.append(f"v_mfma_f32_32x32x16_bf16 v[{O}:{O+15}], v[{fr(b,i)}:{fr(b,i)+3}], v[{s_+4*i}:{s_+4*i+3}], {c0}")
        return o
    def rsum(s_):
        o = []
        for i in range(2):
            c0 = "0" if fl_[0] else f"v[{LS}:{LS+15}]"; fl_[0] = False
            o.append(f"v_mfma_f32_32x32x16_bf16 v[{LS}:{LS+15}], v[{ONES}:{ONES+3}], v[{s_+4*i}:{s_+4*i+3}], {c0}")
        return o
    pend = []
    BARB = OPT["attbar"]
    held = []
    for b in range(8):
        s_ = SB + 16 * b
        if b == BARB:
            free_lds(); pend += [x for bb, ss in held for x in pv(bb, ss)]; held = []
        work = [f"v_pk_fma_f32 v[{s_+r}:{s_+r+1}], v[{s_+r}:{s_+r+1}], v[{Q}:{Q+1}], v[{Q+2}:{Q+3}]" for r in range(0, 16, 2)]
        work += [f"v_exp_f32 v{s_+r}, v{s_+r}" for r in range(16)]
        work += pack(s_)
        take = pend[:6]; pend = pend[6:]
        for x in {3: interleave(work, take, 7, 1, 6), 5: interleave(work, take, 7, 3, 1), 6: interleave(work, take, 1, 1, 1), 7: interleave(work, take, 7, 8, 2), 8: interleave(work, take, 23, 1, 1)}.get(OPT["bis"], interleave(work, take, 2, 4, 1)): a(x)
        if b == 0:
            for d in range(8): a(f"v_and_b32 v{s_+8+d}, v{MK+d}, v{s_+d}")
            for d in range(8): a(f"v_xor_b32 v{s_+d}, v{s_+8+d}, v{s_+d}")
            pend += rsum(s_ + 8) + rsum(s_)
            blocks = [(0, s_ + 8), (8, s_)]
        else:
            pend += rsum(s_)
            blocks = [(b, s_)]
        if b < BARB: held += blocks
        else: pend += [x for bb, ss in blocks for x in pv(bb, ss)]
    for x in pend: a(x)
    srd_off(a, 16, P_WS, O_OFF, 4 * MB)
    a(f"""
    s_lshl_b32 s30, s24, 18
    s_lshl_b32 s31, s25, 14
    s_add_u32 s30, s30, s31
    s_lshl_b32 s31, s34, 13
    s_add_u32 s30, s30, s31
    s_lshl_b32 s31, s35, 11
    s_add_u32 s30, s30, s31
    """)
    if OPT["bis"] == 4: a("s_nop 15\ns_nop 15")
    a(f"v_rcp_f32 v{mx}, v{LS}")
    a(f"v_rcp_f32 v{mx+1}, v{LS}")
    for r in range(0, 16, 2):
        a(f"v_pk_mul_f32 v[{O+r}:{O+r+1}], v[{O+r}:{O+r+1}], v[{mx}:{mx+1}]")
    for x in pack(O): a(x)
    a(f"""
    buffer_store_dwordx4 v[{O}:{O+3}], v{vF}, s[16:19], s30 offen sc0 sc1
    buffer_store_dwordx4 v[{O+4}:{O+7}], v{vF}, s[16:19], s30 offen offset:512 sc0 sc1
    """)
    stamp(a, 10)
    signal(a, 1, 3, SB)
    stamp(a, 11)

def build(header_src=None):
    a = Asm()
    C = {k: mk(k, **v) for k, v in CFG.items()}
    kernel_begin(a, KNAME)
    if OPT["t0"]: a("s_memrealtime s[96:97]")
    a(f"""
    s_cmp_ge_u32 s2, 256
    s_cbranch_scc1 L_end
    s_load_dwordx16 s[80:95], s[0:1], 0
    s_load_dwordx2 s[4:5], s[0:1], 64
    v_lshrrev_b32 v2, 6, v0
    v_and_b32 v1, 63, v0
    v_readfirstlane_b32 s3, v2
    s_getreg_b32 s74, hwreg(HW_REG_XCC_ID)
    s_and_b32 s74, s74, 15
    s_mov_b32 s{TAG}, 0
    s_mov_b32 s{TAG+1}, 0
    s_waitcnt lgkmcnt(0)
    """)
    srd_off(a, FLS, P_WS, FL_OFF, 131072)
    if DIAG: a(f"v_mov_b32 v{VS}, 0")
    stamp(a, 63)
    a("""
    s_cmp_ge_u32 s3, 4
    s_cbranch_scc1 L_prod
    """)
    a("""
    s_or_b32 s30, s2, s3
    s_cmp_lg_u32 s30, 0
    s_cbranch_scc1 L_notag
    """)
    srd_off(a, 16, P_DBG, 0, 256)
    a("""
    """)
    a("s_mov_b64 s[30:31], s[96:97]" if OPT["t0"] else "s_memrealtime s[30:31]")
    a("""
    v_mov_b32 v4, 0
    s_waitcnt lgkmcnt(0)
    s_or_b32 s30, s30, 1
    v_mov_b32 v2, s30
    v_mov_b32 v3, s31
    s_mov_b64 exec, 1
    buffer_store_dwordx2 v[2:3], v4, s[16:19], 0 offen sc0 sc1
    s_mov_b64 exec, -1
    L_notag:
    """)
    if OPT["cpf"]:
        a(f"""
        s_getpc_b64 s[30:31]
        L_pc:
        s_sub_u32 s16, s30, L_pc-{KNAME}
        s_subb_u32 s17, s31, 0
        s_mov_b32 s18, L_code_end-{KNAME}
        s_mov_b32 s19, 0x20000
        s_lshr_b32 s30, s2, 3
        s_lshl_b32 s30, s30, 11
        s_lshl_b32 s31, s3, 9
        s_add_u32 s30, s30, s31
        v_lshlrev_b32 v2, 7, v1
        s_mov_b64 exec, 15
        buffer_load_dword v253, v2, s[16:19], s30 offen
        s_mov_b64 exec, -1
        """)
    if OPT["prio"]: a(f"s_setprio {OPT['prio']}")
    gemm_consumer(a, C["qkv"])
    a("s_barrier")
    a("L_attn:")
    stamp(a, 9)
    attention(a)
    a("""
    s_barrier
    s_cmp_ge_u32 s3, 4
    s_cbranch_scc1 L_prod2
    """)
    colsum_tile(a, C["w1"], xb1(), "s3", 1, 32)
    if OPT["deepb"]: a("s_barrier")
    gemm_consumer(a, C["wo"])
    gemm_consumer(a, C["w1"])
    gemm_consumer(a, C["w2"])
    if OPT["spin"]:
        a(f"""
        s_waitcnt vmcnt(0)
        L_spin:
        s_memrealtime s[96:97]
        s_waitcnt lgkmcnt(0)
        s_sub_u32 s96, s96, s{TAG}
        s_cmp_lt_u32 s96, {OPT["spin"]}
        s_cbranch_scc1 L_spin
        """)
    stamp_flush(a)
    a("s_endpgm")
    C["w2"].ool()
    if OPT["reslate"]: C["wo"].ool()
    a("L_prod:")
    a("s_sub_u32 s38, s3, 4")
    c = C["qkv"]
    prod_setup(a, c)
    cq = c
    def q_extra():
        vb, sr_ = PV_B, 12
        if OPT["dil"]:
            cx = mk("qkv", **CFG["qkv"]); cx.pstride = 128; cx.bcol = 384
            vb, sr_ = 16, 20
            b_setup(a, cx, vb, sr_)
        a(f"s_mul_i32 s33, s24, {64*cq.ldb}")
        for i in range(cq.NBW):
            if i % 4 == 0: a(f"s_add_u32 m0, s35, {XB0 + i*1024}")
            a(f"buffer_load_dwordx4 v{vb+i}, s[{sr_}:{sr_+3}], s33 offen offset:{(i&3)*1024} lds")
        return cq.NBW
    def q_colsum(part=None):
        if part in (None, 0):
            a(f"""
            v_mov_b32 v2, {ST_TAG}
            ds_read_b64 v[{PV_RD}:{PV_RD+1}], v2
            s_waitcnt lgkmcnt(0)
            v_readfirstlane_b32 s{TAG}, v{PV_RD}
            v_readfirstlane_b32 s{TAG+1}, v{PV_RD+1}
            """)
        a("s_setprio 3")
        colsum_tile(a, cq, XB0, "s38", 0, PV_RD, part)
        a("s_setprio 0")
        return 1 if part in (None, 3) else 0
    def hi(f):
        def g():
            a("s_setprio 3"); r = f(); a("s_setprio 0"); return r
        return g
    side = {-1: [q_extra], max(OPT['early0'], 1): [q_colsum], 12: [lambda: gather_cs_setup(a, cq), lambda: gather_rs_setup(a, cq)],
            14: [lambda: gather_rs(a, cq), lambda: gather_cs(a, 0, 16)]}
    side[15] = [lambda: a("s_waitcnt vmcnt(0)"), hi(lambda: gather_finish_cs(a, cq)), hi(lambda: gather_finish_rs(a, cq))]
    if OPT["two"] & 1:
        q2 = OPT["q2"]
        side[12] = [lambda: gather_rs_setup(a, cq)]
        side[q2] = [hi(lambda: l2_issue(a, cq))]
        side[q2 + 2] = [hi(lambda: l2_finish(a, cq))]
        side[14] = [lambda: gather_rs(a, cq), lambda: fin_issue(a, cq)]
        side[15] = [lambda: a("s_waitcnt vmcnt(0)"), hi(lambda: fin_finish(a, cq)), hi(lambda: gather_finish_rs(a, cq))]
    if OPT["cspl"]:
        cb = max(OPT["early0"], 1)
        del side[cb]
        for k in range(4): side.setdefault(cb + k, []).append(lambda k=k: q_colsum(k))
    if OPT["help"]:
        def help_setup():
            srd_off(a, 44, P_WQKV, 0, 6 * MB)
            a(f"""
            s_and_b32 s30, s25, 3
            s_lshl_b32 s31, s30, 11
            s_or_b32 s70, s25, 3
            s_lshl_b32 s70, s70, 7
            s_add_u32 s31, s31, s70
            v_mov_b32 v2, 6144
            v_mul_lo_u32 v23, v1, v2
            v_add_u32 v23, s31, v23
            s_and_b32 s70, s24, 7
            s_cmp_eq_u32 s30, 3
            s_cselect_b32 s70, 99, s70
            s_and_b32 s30, s25, 4
            s_cselect_b32 s70, 99, s70
            s_cmp_lg_u32 s38, 0
            s_cselect_b32 s70, 99, s70
            """)
            return 0
        def helper(k):
            def f():
                sk = a.label("skip_help")
                a(f"""
                s_cmp_lg_u32 s70, {k & 7}
                s_cbranch_scc1 {sk}
                s_mov_b32 s30, {(k + OPT['help']) * 64 * 6144}
                buffer_load_dword v253, v23, s[44:47], s30 offen
                {sk}:
                """)
                return 0
            return f
        help_setup()
        for k in range(0, 16 - OPT["help"]): side.setdefault(k, []).insert(0, helper(k))
    if OPT["sk"] and OPT["sent"] == 2:
        def prefill(k):
            def f():
                if k == 0:
                    srd_off(a, 16, P_WS, XP_OFF, 8 * MB)
                    a(f"""
                    s_lshl_b32 s62, s24, 19
                    s_lshl_b32 s31, s38, 13
                    s_add_u32 s62, s62, s31
                    s_lshl_b32 s31, s25, 15
                    s_add_u32 s62, s62, s31
                    v_lshlrev_b32 v27, 4, v1
                    """)
                    for i in range(4): a(f"v_mov_b32 v{28+i}, -1")
                a(f"buffer_store_dwordx4 v[28:31], v27, s[16:19], s62 offen offset:{k*1024} sc0 sc1")
                return 1
            return f
        for k in range(4): side.setdefault(5 + (k // OPT["pfg"]), []).append(prefill(k))
    if OPT["tlb"]:
        def tlbwarm():
            G = OPT["tlb"] * MB // 2 if OPT["tlb"] > 1 else 2 * MB
            a(f"s_mul_i32 s30, s38, {12*MB}")
            a(f"s_add_u32 s30, s30, {8*MB}")
            a(f"s_add_u32 s98, s{P_WS}, s30")
            a(f"s_addc_u32 s99, s{P_WS+1}, 0")
            for k in range(6):
                a(f"s_load_dword s100, s[98:99], 0")
                a(f"s_add_u32 s98, s98, {2*MB}")
                a(f"s_addc_u32 s99, s99, 0")
            a(f"s_lshl_b32 s30, s38, 21")
            for ptr, npg in ((P_W1, 4), (P_OUT, 2), (P_WO, 1)):
                a(f"s_min_u32 s31, s30, {(npg-1)*2*MB}")
                a(f"s_add_u32 s98, s{ptr}, s31")
                a(f"s_addc_u32 s99, s{ptr+1}, 0")
                a(f"s_load_dword s101, s[98:99], 0")
            return 0
        side.setdefault(5, []).insert(0, tlbwarm)
    spf = [0]
    def sprefetch(k):
        def f():
            for _ in range(k):
                if spf[0] < 112:
                    a(f"s_load_dword s{100 + (spf[0] & 1)}, s[68:69], {spf[0]*64}")
                    spf[0] += 1
            return 0
        return f
    def spf_setup():
        a(f"""
        s_lshl_b32 s30, s2, 2
        s_add_u32 s30, s30, s38
        s_mul_i32 s30, s30, 7168
        s_add_u32 s68, s{P_W2}, s30
        s_addc_u32 s69, s{P_W2+1}, 0
        """)
        return 0
    if OPT["pf"] == 3:
        side.setdefault(5, []).append(spf_setup)
        for k in range(5, 13): side.setdefault(k, []).append(sprefetch(6))
    gemm_producer(a, c, False, None, side)
    if OPT["xst"]:
        for i in range(4): a(f"v_mov_b32 v{28+i}, v{PV_A+i}")
        a("""
        s_mov_b32 s48, s8
        s_mov_b32 s49, s9
        s_mov_b32 s50, s10
        s_mov_b32 s51, 0x20000
        """)
    a(f"""
    s_sub_u32 s30, s24, 1
    s_max_i32 s30, s30, 0
    s_sub_u32 s31, s24, 2
    s_max_i32 s31, s31, 0
    s_sub_u32 s30, s30, s31
    s_lshl_b32 s30, s30, 11
    v_bfe_u32 v2, v1, 2, 1
    v_mul_lo_u32 v2, v2, s30
    v_and_b32 v3, 3, v1
    v_lshl_add_u32 v2, v3, 3, v2
    s_lshl_b32 s31, s31, 11
    s_lshl_b32 s30, s25, 7
    s_add_u32 s33, s30, s31
    s_add_u32 s33, s33, 65536
    """)
    a(f"""
    s_lshr_b32 s34, s38, 1
    s_and_b32 s35, s38, 1
    s_lshl_b32 s30, s25, 1
    s_add_u32 s30, s30, s34
    s_lshl_b32 s30, s30, 17
    s_lshl_b32 s31, s35, 22
    s_add_u32 s30, s30, s31
    s_add_u32 s30, s30, {K_OFF}
    """)
    srd_off(a, 8, P_WS, "s30", 131072)
    a(f"""
    s_lshl_b32 s30, s24, 13
    s_sub_u32 s30, s30, 16384
    v_lshlrev_b32 v4, 4, v1
    v_add_u32 v4, s30, v4
    s_mul_i32 s34, s34, {HEADW}
    s_mul_i32 s35, s35, 24576
    s_add_u32 s34, s34, s35
    """)
    a("v_mov_b32 v5, v2")
    b_setup(a, C["w1"], 16, 20)
    wait_flags(a, 5, "s33", False, PV_RD)
    stamp(a, 5)
    for q in range(4):
        a(f"s_add_u32 m0, s34, {q*4096}")
        for i in range(4):
            a(f"buffer_load_dwordx4 v4, s[8:11], 0 offen offset:{i*1024}{NBF[OPT['nbf']]} lds")
        if q < 3: a("v_add_u32 v4, 0x1000, v4")
    a("s_mov_b32 s98, s24\ns_mov_b32 s99, s25")
    c = C["wo"]
    prod_setup(a, c)
    a("s_mov_b32 s24, s98\ns_mov_b32 s25, s99")
    a("s_waitcnt vmcnt(0)")
    stamp(a, 6)
    a("s_barrier")
    if OPT["xst"]:
        a(f"s_add_u32 m0, s34, {XST}")
        a("s_lshl_b32 s30, s25, 7")
        for i in range(4):
            a(f"buffer_load_dwordx4 v{28+i}, s[48:51], s30 offen offset:{i*1024} lds")
    pre_B(a, c, 0, 4 if OPT["deepb"] else None)
    if OPT["xt"]:
        xtouch_setup(a, P_WO, 2 * MB, 16, 2)
        a("""
        s_lshr_b32 s30, s2, 3
        s_lshl_b32 s30, s30, 16
        buffer_load_dword v253, v2, s[16:19], s30 offen
        """)
    elif OPT["pf"]: touch(a, P_WO, 2 * MB, 16)
    if OPT["deepb"]: a("v_mov_b32 v250, v8\nv_mov_b32 v251, v9")
    a("s_branch L_attn")
    a("L_prod2:")
    c = C["wo"]
    prod_setup(a, c)
    a(f"s_add_u32 s29, s29, {c.SB*64*c.ldb}")
    a(f"s_and_b32 s29, s29, {16*64*c.ldb - 1}")
    gate_setup(a, 1, True)
    if OPT["deepb"]: a("s_barrier")
    gemm_producer(a, c, True, "wide")
    c = C["w1"]; c1 = c
    prod_setup(a, c)
    if OPT["wobar"]: a("s_barrier")
    pre_B(a, c)
    gather_cs_setup(a, c)
    gather_rs_setup(a, c)
    if C["w2"].early: w2_early_setup(a, C["w2"])
    gate_setup(a, 2, False)
    def w2hook(k):
        def f():
            sk = a.label("skip_pf")
            a(f"""
            s_lshr_b32 s30, s2, 3
            s_and_b32 s30, s30, 7
            s_cmp_lg_u32 s30, {k}
            s_cbranch_scc1 {sk}
            """)
            touch(a, P_W2, 7 * MB, 44)
            a(f"{sk}:")
            return 0
        return f
    side = {}
    if OPT["pf"] == 2:
        for k in range(8): side.setdefault(3 + k, []).append(w2hook(k))
    if OPT["pf"] == 3:
        spf_setup()
        for k in range(0, 13): side.setdefault(k, []).append(sprefetch(5))
    def rs_add(p0, p1):
        def f():
            for p in range(max(p0, 1), p1): a(f"v_add_f32 v{G_RS}, v{G_RS}, v{G_RS+p}")
        return f
    side.setdefault(8, []).append(hi(rs_add(0, 16)))
    side.setdefault(13, []).append(hi(rs_add(16, 26)))
    side[14] = [lambda: gather_cs(a, 0, 16)]
    side[15] = [hi(rs_add(26, 32)), lambda: a("s_waitcnt vmcnt(0)"), hi(lambda: gather_finish_cs(a, c1)), hi(lambda: gather_finish_rs(a, c1))]
    if C["w2"].early:
        c2 = C["w2"]
        side[14].append(lambda: pre_B(a, c2, 0, 1))
        side[15] = [lambda: pre_B(a, c2, 1, 4), hi(rs_add(26, 32)), lambda: a("s_waitcnt vmcnt(16)"), hi(lambda: gather_finish_cs(a, c1)), hi(lambda: gather_finish_rs(a, c1))]
    if OPT["two"] & 2:
        side.setdefault(2, []).append(hi(lambda: l2_issue(a, c1)))
        side.setdefault(4, []).append(hi(lambda: l2_finish(a, c1)))
        side[14] = [lambda: fin_issue(a, c1), lambda: pre_B(a, c2, 0, 1)]
        side[15] = [lambda: pre_B(a, c2, 1, 4), hi(rs_add(26, 32)), lambda: a("s_waitcnt vmcnt(16)"), hi(lambda: fin_finish(a, c1)), hi(lambda: gather_finish_rs(a, c1))]
    gemm_producer(a, c, True, "narrow", side, lambda st: gather_rs(a, c1, 2 * st, 2 * st + 2))
    c = C["w2"]
    c.rounds = [(16, OPT['prepoll'], 14), (OPT['prepoll'], 24, 14), (24, 40, 7), (40, 56, 7)]; c.prepoll_at = OPT['prepoll']; c.gate_all_at = 24; c.seamB = 3
    if c.sk:
        c.rounds = [(8, 10, 14), (10, 12, 14), (12, 20, 7), (20, 28, 7)]; c.prepoll_at = 10; c.gate_all_at = 12
    prod_setup(a, c)
    if not c.early: pre_B(a, c)
    side = {}
    c.round_hook = {}
    if OPT["xt"] and not c.sk:
        xtouch_setup(a, P_W2, 7 * MB, 44, 23)
        w2_xtouch(a, 0); w2_xtouch(a, 3)
        side = {4: [lambda: w2_xtouch(a, 1)]}
        c.round_hook = {24: lambda: w2_xtouch(a, 2)}
    a("s_barrier")
    a("s_barrier")
    if OPT["own"]:
        w2_producer(a, c)
    else:
        gate_setup(a, 0, False)
        gemm_producer(a, c, True, "narrow", side, None, 8 if c.sk else 16)
    stamp_flush(a)
    a("L_end:")
    a("s_endpgm")
    a("L_code_end:")
    body, nins = hazard.fix(a.lines)
    hdr = []
    if header_src:
        for ln in open(header_src):
            if ln.startswith(";") and "@launch" not in ln:
                hdr.append(ln.rstrip("\n"))
            elif not ln.startswith(";"):
                break
    hdr.append(f"; @launch grid=(256,1,1) block=(512,1,1) lds=163840")
    hdr.append('.amdgcn_target "amdgcn-amd-amdhsa--gfx950"')
    hdr.append(".text")
    return "\n".join(hdr) + "\n" + "\n".join(body) + "\n" + kernel_desc(KNAME, 256, 102), nins

if __name__ == "__main__":
    if "--diag" in sys.argv:
        DIAG = True; sys.argv.remove("--diag")
    for arg in list(sys.argv[1:]):
        if "=" in arg:
            k_, v_ = arg.split("=", 1)
            if "." in k_:
                kk, f_ = k_.split(".")
                for kind_ in (CFG.keys() if kk == "all" else [kk]): CFG[kind_][f_] = int(v_)
            else: OPT[k_] = int(v_)
            sys.argv.remove(arg)
    out = sys.argv[1] if len(sys.argv) > 1 else "p1.s"
    txt, nins = build(header_src="sequential_preLN__sliding_block__dense_activation_silu__prompt.s.ref")
    open(out, "w").write(txt)
    print("wrote", out, len(txt), "bytes; nop states inserted:", nins)
```

```python
import sys, struct
from asmlib import *
import hazard

MB = 1 << 20
K_OFF = 8 * MB
V_OFF = 12 * MB
O_OFF = 16 * MB
H_OFF = 20 * MB
H1_OFF = 24 * MB
FL_OFF = 40 * MB
RS1_OFF = 41 * MB
CSG_OFF = 42 * MB
FIN_OFF = 41 * MB + 524288
XP_OFF = 44 * MB
ST2_OFF = 43 * MB
DIAG_OFF = 64 * MB
LOG2E = 1.4426950408889634
KNAME = "sequential_preLN__sliding_block__dense_activation_silu__prompt_kernel"
P_X, P_WQKV, P_WO, P_W1, P_W2, P_OUT, P_DBG, P_WS = 80, 82, 84, 88, 90, 92, 94, 4
TAG = 72
FLS = 76
ST = 155648
ST_REC, ST_MEAN, ST_RSTD, ST_CS, ST_CSP = ST, ST + 2048, ST + 2560, ST + 3072, ST + 4096
HEADW = 57344
XB0 = 122880
XB1 = 81920
XCH = 147456
XST = 147456
ST_TAG = ST + 4096
HRES = 232
DEF = 200
VS = 254
DIAG = False
OPT = dict(w1t=0, pb=9, two=2, q2=8, own1=4, ownm=1, own=1, sktail=3, sksig=4, deepb=0, tlb=0, align=0, skrpg=1, bis=5, att2=1, attbar=1, osf=1, t0=0, spin=0, eb2=1, sigA2=2, peel=8, cspl=0, xst=1, reslate=0, sent=0, pfg=1, help=4, snake=1, rot0=4, early0=0, dil=1, sk=1, skfull=0, pf=3, xt=1, prio=0, inv=0, nodma=0, steps=0, kvlocal=0, cpf=1, nbf=1, sigA=3, sigB=3, qnt=0, bar2=0, defer=0, dper=2, dstart=0, prepoll=21, wobar=0)

def xb1(): return 0 if OPT['deepb'] else XB1

def f32(x):
    return "0x%08x" % struct.unpack("<I", struct.pack("<f", x))[0]

def srd_off(a, d, ptr, off, nrec):
    a(f"s_add_u32 s{d}, s{ptr}, {off}")
    a(f"s_addc_u32 s{d+1}, s{ptr+1}, 0")
    a(f"s_mov_b32 s{d+2}, {nrec}")
    a(f"s_mov_b32 s{d+3}, 0x20000")

def hold(a, key):
    if not OPT.get(key): return
    l = a.label("hold")
    a(f"""
    {l}:
    s_memrealtime s[96:97]
    s_waitcnt lgkmcnt(0)
    s_sub_u32 s96, s96, s{TAG}
    s_cmp_lt_u32 s96, {OPT[key]}
    s_cbranch_scc1 {l}
    """)

def stamp(a, idx):
    if not DIAG: return
    a("s_memrealtime s[96:97]")
    a("s_waitcnt lgkmcnt(0)")
    a(f"v_writelane_b32 v{VS}, s96, {idx}")

def stamp_flush(a):
    if not DIAG: return
    srd_off(a, 16, P_WS, DIAG_OFF, 524288)
    a(f"""
    s_lshl_b32 s30, s2, 11
    s_lshl_b32 s31, s3, 8
    s_add_u32 s30, s30, s31
    v_lshlrev_b32 v{VS+1}, 2, v1
    buffer_store_dword v{VS}, v{VS+1}, s[16:19], s30 offen
    """)

def pbar(a):
    a("s_barrier")
    if DIAG and OPT["steps"]:
        a("s_memtime s[96:97]" if OPT["steps"] == 2 else "s_memrealtime s[96:97]")
        a("""
        s_waitcnt lgkmcnt(0)
        s_mov_b32 m0, s99
        s_nop 0
        v_writelane_b32 v252, s96, m0
        s_add_u32 s99, s99, 1
        """)

def pbar_flush(a, ph):
    if not (DIAG and OPT["steps"]): return
    srd_off(a, 16, P_WS, DIAG_OFF + 524288 * (1 + ph), 524288)
    a(f"""
    s_lshl_b32 s30, s2, 11
    s_lshl_b32 s31, s3, 8
    s_add_u32 s30, s30, s31
    v_lshlrev_b32 v2, 2, v1
    buffer_store_dword v252, v2, s[16:19], s30 offen
    """)

def wgmap(a, RX, CX):
    CT = 16 // CX; RB = 16 // RX
    lg = lambda x: x.bit_length() - 1
    a(f"""
    s_and_b32 s30, s2, 7
    s_lshr_b32 s31, s2, 3
    s_lshr_b32 s24, s30, {lg(CX)}
    s_lshl_b32 s24, s24, {lg(RB)}
    s_and_b32 s25, s30, {CX-1}
    s_lshl_b32 s25, s25, {lg(CT)}
    s_lshr_b32 s30, s31, {lg(CT)}
    s_add_u32 s24, s24, s30
    s_and_b32 s30, s31, {CT-1}
    s_add_u32 s25, s25, s30
    """)

def st2(a, text):
    if not OPT["kvlocal"]:
        a(text + " sc0 sc1"); return
    l1 = a.label("skip_s1"); l2 = a.label("skip_s2")
    a(f"""
    s_cmp_lg_u32 s55, 0
    s_cbranch_scc1 {l1}
    {text} sc0 sc1
    s_branch {l2}
    {l1}:
    {text}
    {l2}:
    """)

def signal(a, seam, slot_shift, t, local=False, cnt=0, plain0=False, rbj=('s24', 's25')):
    kv = seam == 0 and not plain0
    a(f"""
    s_lshl_b32 s40, {rbj[0]}, {11 if kv else 10}
    s_lshl_b32 s41, {rbj[1]}, {7 if kv else slot_shift+3}
    s_add_u32 s40, s40, s41
    s_lshl_b32 s41, s3, 3
    s_add_u32 s40, s40, s41
    s_add_u32 s40, s40, {65536 if kv else seam*16384}
    v_mov_b32 v{t}, s{TAG}
    v_mov_b32 v{t+1}, s{TAG+1}
    v_mov_b32 v{t+2}, 0
    s_waitcnt vmcnt({cnt})
    s_mov_b64 exec, 1
    """)
    txt = f"buffer_store_dwordx2 v[{t}:{t+1}], v{t+2}, s[{FLS}:{FLS+3}], s40 offen"
    if local: st2(a, txt)
    else: a(txt + " sc0 sc1")
    a("s_mov_b64 exec, -1")

def wait_flags(a, voff, soff, wide, t):
    lp = a.label("poll"); dn = a.label("polld")
    a(f"s_mov_b32 s39, 0x100000")
    if OPT["inv"] == 1: a("buffer_inv sc1")
    a(f"{lp}:")
    if wide:
        a(f"buffer_load_dwordx4 v[{t}:{t+3}], v{voff}, s[{FLS}:{FLS+3}], {soff} offen sc0 sc1")
    else:
        a(f"buffer_load_dwordx2 v[{t}:{t+1}], v{voff}, s[{FLS}:{FLS+3}], {soff} offen sc0 sc1")
    a("s_waitcnt vmcnt(0)")
    a(f"v_cmp_eq_u64 vcc, s[{TAG}:{TAG+1}], v[{t}:{t+1}]")
    if wide:
        a(f"v_cmp_eq_u64 s[36:37], s[{TAG}:{TAG+1}], v[{t+2}:{t+3}]")
        a("s_nop 3")
        a("s_and_b64 vcc, vcc, s[36:37]")
    else:
        a("s_nop 3")
    a(f"""
    s_cmp_eq_u64 vcc, -1
    s_cbranch_scc1 {dn}
    s_sleep 1
    s_sub_u32 s39, s39, 1
    s_cmp_lg_u32 s39, 0
    s_cbranch_scc1 {lp}
    {dn}:
    """)
    if OPT["inv"] == 2: a("buffer_inv sc1")

class G: pass
NBF = ['', ' sc1', ' sc0']

def mk(kind, **kw):
    c = G(); c.kind = kind; c.__dict__.update(kw)
    c.sk = 0
    c.pvb, c.sb, c.s35 = 8, 12, "s35"
    c.early = 0
    if kind == "wo" and OPT["xst"]: c.S = min(c.S, 4)
    if kind == "w2" and OPT["sk"]:
        c.sk = 1; c.BN = 128; c.NT = 4; c.S = 4; c.BBASE = 65536; c.full = OPT["skfull"]; c.rpg = OPT["skrpg"]; c.pstride = 512
        if OPT["eb2"]:
            c.early = 1; c.pvb, c.sb, c.s35 = 16, 52, "s41"; c.BBASE = 77824
    c.SB = c.S; c.bs0 = 0
    if kind == "wo" and OPT["deepb"]:
        c.S = 3; c.SB = 12; c.bs0 = 8; c.BBASE = 49152
    c.n = c.K // 64 // (2 if c.sk else 1)
    c.BB = c.BN * 128
    c.NBW = c.BB // 4096
    c.gmul = 4 if c.korder == "F" else 8
    c.rdrows = 16 if c.korder == "F" else 4
    c.RS = 128 if c.layout == "panel" else 448
    return c

CFG = dict(
    qkv=dict(K=1024, BN=192, NT=6, S=3, korder="N", layout="panel", wp=P_WQKV, ldb=6144, bcol=128, pstride=2048,
             a_off=None, normal_tiles=(4, 5), RX=2, CX=4, rpg=1, ABASE=0, BBASE=49152, ln=True, sid=0, lt=0, full=0, rot=0),
    wo=dict(K=1024, BN=64, NT=2, S=5, korder="F", layout="panel", wp=P_WO, ldb=2048, bcol=128, pstride=0,
            a_off=O_OFF, normal_tiles=(), RX=2, CX=4, rpg=2, ABASE=0, BBASE=114688, ln=False, sid=16, lt=0, full=1, rot=2),
    w1=dict(K=1024, BN=224, NT=7, S=3, korder="F", layout="w1", wp=P_W1, ldb=7168, bcol=448, pstride=0,
            a_off=H_OFF, normal_tiles=(), RX=2, CX=4, rpg=1, ABASE=0, BBASE=49152, ln=True, sid=24, lt=0, full=0, rot=2),
    w2=dict(K=3584, BN=64, NT=2, S=6, korder="F", layout="panel", wp=P_W2, ldb=2048, bcol=128, pstride=0,
            a_off=H1_OFF, normal_tiles=(), RX=2, CX=4, rpg=2, ABASE=0, BBASE=98304, ln=False, sid=32, lt=0, full=1, rot=0),
)

def gemm_consumer(a, c):
    kind = c.kind; n = c.n; S = c.S; NT = c.NT; RS = c.RS
    vA0, vA10, vB00, vB01, vB02, vA, vA1, vB0, vB1, vB2 = 2, 3, 4, 5, 6, 7, 8, 9, 10, 11
    vG = 12; vCH = 13
    t0, t1 = 14, 15
    ACC = 16
    FX = ACC + 16 * NT
    FSZ = 16 + 4 * NT
    if c.full: FSZ *= 2
    FY = FX + FSZ
    VTOP = FY + FSZ
    acc = lambda mt, nt: ACC + (nt * 4 + mt) * 4
    wgmap(a, c.RX, c.CX)
    T = FX
    if kind == "qkv": row_stats_issue(a, FY)
    a(f"""
    s_lshr_b32 s34, s3, 1
    s_and_b32 s35, s3, 1
    v_lshlrev_b32 v{vCH}, 4, v1
    s_lshl_b32 s30, s34, 12
    v_add_u32 v{vCH}, s30, v{vCH}
    v_lshrrev_b32 v{vG}, 4, v1
    v_bfe_u32 v{T}, v1, 2, 2
    v_and_b32 v{T+1}, 3, v1
    """)
    if c.a_off is None:
        a(f"""
        v_and_b32 v{t0}, 15, v1
        v_lshrrev_b32 v{t1}, 1, v{t0}
        v_xor_b32 v{t1}, v{t1}, v{vG}
        v_lshlrev_b32 v{t1}, 4, v{t1}
        v_lshl_add_u32 v{vA0}, v{t0}, 7, v{t1}
        s_lshl_b32 s30, s34, 13
        v_add_u32 v{vA0}, s30, v{vA0}
        v_xor_b32 v{vA10}, 64, v{vA0}
        """)
        aread = lambda mt, kg: ((vA, vA1)[kg], mt * 2048)
    else:
        a(f"v_mov_b32 v{vA0}, v{vCH}")
        aread = lambda mt, kg: (vA, kg * 8192 + mt * 1024)
    if c.layout == "panel":
        a(f"""
        v_mul_u32_u24 v{t0}, {c.gmul}, v{vG}
        v_add_u32 v{t0}, v{t0}, v{T}
        v_lshlrev_b32 v{t0}, 7, v{t0}
        v_lshl_add_u32 v{t0}, v{T+1}, 3, v{t0}
        v_lshrrev_b32 v{t1}, 1, v{T}
        v_and_b32 v{T+2}, 1, v{vG}
        v_lshl_or_b32 v{t1}, v{T+2}, 1, v{t1}
        s_lshl_b32 s30, s35, 1
        v_xor_b32 v{t1}, s30, v{t1}
        v_lshl_add_u32 v{vB00}, v{t1}, 5, v{t0}
        v_xor_b32 v{t1}, 1, v{t1}
        v_lshl_add_u32 v{vB01}, v{t1}, 5, v{t0}
        """)
        def bread(nt, kg, rd):
            return (vB0 if nt % 2 == 0 else vB1), (nt // 2) * 8192 + kg * 32 * RS + rd * c.rdrows * RS
    else:
        a(f"""
        v_mul_u32_u24 v{t0}, {c.gmul}, v{vG}
        v_add_u32 v{t0}, v{t0}, v{T}
        v_mul_u32_u24 v{t0}, {RS}, v{t0}
        v_lshl_add_u32 v{t0}, v{T+1}, 3, v{t0}
        v_and_b32 v{t1}, 1, v{vG}
        v_lshlrev_b32 v{T+2}, 5, v{t1}
        s_lshl_b32 s30, s35, 8
        v_add_u32 v{T+3}, s30, v{t0}
        v_add_u32 v{vB00}, v{T+3}, v{T+2}
        v_sub_u32 v{vB01}, v{T+3}, v{T+2}
        s_add_u32 s30, s35, 6
        v_xor_b32 v{t1}, s30, v{t1}
        v_lshl_add_u32 v{vB02}, v{t1}, 5, v{t0}
        """)
        def bread(nt, kg, rd):
            o = kg * 32 * RS + rd * c.rdrows * RS
            if nt == 6: return vB2, o
            return (vB0 if nt % 2 == 0 else vB1), o + nt * 32
    RES = VTOP
    if kind == "wo":
        srd_off(a, 20, P_X, 0, 4 * MB)
        a(f"""
        v_and_b32 v{t0}, 15, v1
        v_lshlrev_b32 v{t0}, 11, v{t0}
        v_lshl_add_u32 v{t0}, v{vG}, 3, v{t0}
        s_lshl_b32 s30, s24, 18
        s_lshl_b32 s31, s34, 17
        s_add_u32 s30, s30, s31
        s_lshl_b32 s31, s25, 7
        s_add_u32 s30, s30, s31
        s_lshl_b32 s31, s35, 6
        s_add_u32 s30, s30, s31
        """)
        def res_loads():
            for mt in range(4):
                for nt in range(2):
                    r = RES + mt * 4 + nt * 2
                    a(f"buffer_load_dwordx2 v[{r}:{r+1}], v{t0}, s[20:23], s30 offen offset:{nt*32}")
                a("s_add_u32 s30, s30, 32768")
        if not OPT["reslate"] and not OPT["xst"]: res_loads()
    if kind == "wo" and OPT["xst"]:
        a(f"""
        v_and_b32 v{t0}, 15, v1
        v_lshrrev_b32 v{t1}, 1, v{t0}
        v_lshrrev_b32 v{T}, 1, v{vG}
        s_lshl_b32 s30, s35, 2
        v_add_u32 v{T}, s30, v{T}
        v_xor_b32 v{t1}, v{t1}, v{T}
        v_lshlrev_b32 v{t1}, 4, v{t1}
        v_lshl_add_u32 v{t1}, v{t0}, 7, v{t1}
        v_and_b32 v{T}, 1, v{vG}
        v_lshl_add_u32 v{t1}, v{T}, 3, v{t1}
        s_lshl_b32 s30, s34, 13
        s_add_u32 s30, s30, {XST}
        v_add_u32 v{t1}, s30, v{t1}
        v_xor_b32 v{t0}, 32, v{t1}
        """)
        for mt in range(4):
            for nt in range(2):
                r = RES + mt * 4 + nt * 2
                a(f"ds_read_b64 v[{r}:{r+1}], v{t0 if nt else t1} offset:{mt*2048}")
    for i in range(16 * NT):
        a(f"v_mov_b32 v{ACC+i}, 0")
    abases = [(vA, vA0)] + ([(vA1, vA10)] if c.a_off is None else [])
    bbases = [(vB0, vB00), (vB1, vB01)] + ([(vB2, vB02)] if c.layout != "panel" else [])
    a(f"s_mov_b32 s27, {c.ABASE}")
    a(f"s_mov_b32 s32, {c.BBASE + c.bs0*c.BB}")
    setb = [f"v_add_u32 v{x}, s27, v{y}" for x, y in abases] + [f"v_add_u32 v{x}, s32, v{y}" for x, y in bbases]
    for x in setb: a(x)
    RT = OPT["sktail"] if (c.sk and not c.full) else 0
    W1T = kind == "w1" and OPT["w1t"]
    a(f"s_mov_b32 s26, {n - 2 if W1T else (n - 1 if (c.ln and OPT['peel']) else n - RT)}")
    def reads(F, kg, tiles=None):
        r = []
        tiles = list(range(NT)) if tiles is None else tiles
        for nt in tiles:
            for rd in range(2):
                b, o = bread(nt, kg, rd)
                d = F + 16 + nt * 4 + rd * 2
                r.append(f"ds_read_b64_tr_b16 v[{d}:{d+1}], v{b} offset:{o}")
            if nt == tiles[0]:
                for mt in range(4):
                    d = F + mt * 4
                    b, o = aread(mt, kg)
                    r.append(f"ds_read_b128 v[{d}:{d+3}], v{b} offset:{o}")
        return r
    def mfmas(F, tiles=None):
        m = []
        for nt in (range(NT) if tiles is None else tiles):
            for mt in (range(4) if (nt % 2 == 0 or not OPT["snake"]) else range(3, -1, -1)):
                A = F + mt * 4; B = F + 16 + nt * 4; D = acc(mt, nt)
                if nt in c.normal_tiles:
                    m.append(f"v_mfma_f32_16x16x32_bf16 v[{D}:{D+3}], v[{A}:{A+3}], v[{B}:{B+3}], v[{D}:{D+3}]")
                else:
                    m.append(f"v_mfma_f32_16x16x32_bf16 v[{D}:{D+3}], v[{B}:{B+3}], v[{A}:{A+3}], v[{D}:{D+3}]")
        return m
    loop = a.label("c_loop")
    if kind == "qkv": row_stats_finish(a, FY, FX)
    stamp(a, c.sid)
    a("s_barrier")
    hold(a, "h_" + kind)
    stamp(a, c.sid + 1)
    adv = [f"s_add_u32 s27, s27, 16384", f"s_add_u32 s32, s32, {c.BB}", f"s_cmp_eq_u32 s27, {c.ABASE + S*16384}",
           f"s_cselect_b32 s27, {c.ABASE}, s27"] + ([f"s_cmp_eq_u32 s32, {c.BBASE + c.SB*c.BB}"] if c.SB != S else []) + [f"s_cselect_b32 s32, {c.BBASE}, s32"] + setb
    def pk4(t, p0, p1):
        a(f"v_cvt_pk_bf16_f32 v{t}, v{p0}, v{p0+1}")
        a(f"v_cvt_pk_bf16_f32 v{t+1}, v{p0+2}, v{p0+3}")
        a(f"v_cvt_pk_bf16_f32 v{t+2}, v{p1}, v{p1+1}")
        a(f"v_cvt_pk_bf16_f32 v{t+3}, v{p1+2}, v{p1+3}")
    vX = VTOP + 4
    def sk_send():
        srd_off(a, 20, P_WS, XP_OFF, 8 * MB)
        a(f"""
        s_lshl_b32 s30, s24, 19
        s_lshl_b32 s31, s3, 13
        s_add_u32 s30, s30, s31
        s_lshl_b32 s31, s25, 15
        s_add_u32 s33, s30, s31
        s_xor_b32 s31, s31, {4 << 15}
        s_add_u32 s37, s30, s31
        v_lshlrev_b32 v{vX}, 4, v1
        """)
        for mt in range(4):
            t = acc(mt, 2)
            pk4(t, acc(mt, 2), acc(mt, 3))
            a(f"buffer_store_dwordx4 v[{t}:{t+3}], v{vX}, s[20:23], s33 offen offset:{mt*1024} sc0 sc1")
    def epi_setup():
        b = Asm(); r = []
        if kind == "qkv":
            REC, CSQ, MV, RV, CSV = T, T + 16, VTOP, VTOP + 16, VTOP + 32
            b(f"""
            v_and_b32 v{t0}, 15, v1
            v_lshlrev_b32 v{vA}, 4, v{t0}
            s_lshl_b32 s30, s34, 10
            s_add_u32 s30, s30, {ST_REC}
            v_add_u32 v{vA}, s30, v{vA}
            v_lshlrev_b32 v{vA1}, 4, v{vG}
            s_lshl_b32 s30, s35, 7
            s_add_u32 s30, s30, {ST_CS}
            v_add_u32 v{vB0}, s30, v{vA1}
            v_lshlrev_b32 v{vB1}, 2, v{t0}
            v_add_u32 v{vB1}, s30, v{vB1}
            s_lshl_b32 s30, s34, 8
            s_add_u32 s30, s30, {ST_MEAN}
            v_add_u32 v{vA1}, s30, v{vA1}
            """)
            srd_off(b, 16, P_WS, K_OFF, 8 * MB)
            b(f"""
            s_lshl_b32 s30, s25, 1
            s_add_u32 s30, s30, s35
            s_lshl_b32 s30, s30, 17
            s_lshl_b32 s31, s24, 13
            s_add_u32 s30, s30, s31
            s_add_u32 s31, s30, {4*MB}
            s_mul_i32 s33, s35, {HEADW}
            v_add_u32 v{vB2}, s33, v{vCH}
            """)
            for mt in range(4):
                r.append(f"ds_read_b128 v[{REC+4*mt}:{REC+4*mt+3}], v{vA} offset:{mt*256}")
            for nt in range(4):
                r.append(f"ds_read_b128 v[{CSQ+4*nt}:{CSQ+4*nt+3}], v{vB0} offset:{(nt//2)*256 + (nt%2)*64}")
            for mt in range(4):
                r.append(f"ds_read_b128 v[{MV+4*mt}:{MV+4*mt+3}], v{vA1} offset:{mt*64}")
                r.append(f"ds_read_b128 v[{RV+4*mt}:{RV+4*mt+3}], v{vA1} offset:{512 + mt*64}")
            for dt in range(2):
                r.append(f"ds_read_b32 v{CSV+2*dt}, v{vB1} offset:{512 + dt*64}")
        else:
            CSR = T; REC = T + 28
            srd_off(b, 16, P_WS, H1_OFF, 14 * MB)
            b(f"""
            v_and_b32 v{t0}, 15, v1
            v_lshlrev_b32 v{vA}, 4, v{t0}
            s_lshl_b32 s30, s34, 10
            s_add_u32 s30, s30, {ST_REC}
            v_add_u32 v{vA}, s30, v{vA}
            v_lshlrev_b32 v{t1}, 4, v{vG}
            s_lshl_b32 s30, s35, 9
            s_add_u32 s30, s30, {ST_CS}
            v_add_u32 v{vB0}, s30, v{t1}
            s_lshl_b32 s30, s35, 6
            s_add_u32 s30, s30, {ST_CS}
            v_add_u32 v{vB1}, s30, v{t1}
            s_mul_i32 s30, s24, {112*8192}
            s_mul_i32 s31, s25, {7*8192}
            s_add_u32 s30, s30, s31
            s_add_u32 s36, s30, {3*8192}
            s_lshl_b32 s31, s35, 15
            s_add_u32 s30, s30, s31
            s_add_u32 s31, s30, 8192
            s_add_u32 s37, s30, 16384
            s_lshl_b32 s33, s35, 3
            s_add_u32 s33, s33, {XCH}
            v_add_u32 v{vB2}, s33, v{vCH}
            """)
            for mt in range(4):
                r.append(f"ds_read_b128 v[{REC+4*mt}:{REC+4*mt+3}], v{vA} offset:{mt*256}")
            r.append(f"ds_read_b128 v[{CSR+24}:{CSR+27}], v{vB1} offset:{6*64}")
            for nt in range(6):
                r.append(f"ds_read_b128 v[{CSR+4*nt}:{CSR+4*nt+3}], v{vB0} offset:{nt*64}")
        return [x.strip() for x in b.lines], r
    peel = c.ln and OPT["peel"] and not W1T
    def silu_l(mt, nt, e, m, cs):
        p = acc(mt, nt); o = []
        for h in range(2):
            o.append(f"v_pk_fma_f32 v[{p+2*h}:{p+2*h+1}], v[{m}:{m+1}], v[{cs+2*h}:{cs+2*h+1}], v[{p+2*h}:{p+2*h+1}] op_sel_hi:[0,1,1] neg_lo:[1,0,0] neg_hi:[1,0,0]")
        for h in range(2):
            o.append(f"v_pk_mul_f32 v[{e+2*h}:{e+2*h+1}], v[{m}:{m+1}], v[{p+2*h}:{p+2*h+1}] op_sel:[1,0] op_sel_hi:[1,1]")
        for r in range(4): o.append(f"v_exp_f32 v{e+r}, v{e+r}")
        for h in range(2):
            o.append(f"v_pk_fma_f32 v[{e+2*h}:{e+2*h+1}], v[{e+2*h}:{e+2*h+1}], v[{m+2}:{m+3}], v[{m+2}:{m+3}]")
        for r in range(4): o.append(f"v_rcp_f32 v{e+r}, v{e+r}")
        for h in range(2):
            o.append(f"v_pk_mul_f32 v[{p+2*h}:{p+2*h+1}], v[{p+2*h}:{p+2*h+1}], v[{e+2*h}:{e+2*h+1}]")
        return o
    NI = n // 2 if c.full else n - RT
    def w2hook_c():
        if kind == "wo" and OPT["reslate"]:
            back = a.label("woback"); late = a.label("wolate")
            a(f"s_cmp_eq_u32 s26, {OPT['reslate']}")
            a(f"s_cbranch_scc1 {late}")
            a(f"{back}:")
            def ool():
                a(f"{late}:")
                res_loads()
                a(f"s_branch {back}")
            c.ool = ool
        if kind == "w2":
            back = a.label("w2back"); early = a.label("w2early")
            a(f"s_cmp_ge_u32 s26, {NI - OPT['sigB']}")
            a(f"s_cbranch_scc1 {early}")
            a(f"{back}:")
            def ool():
                a(f"{early}:")
                nst = OPT["dper"]
                its = 8 // nst if OPT["defer"] else 0
                for it in range(its):
                    nx = a.label("skip_e")
                    a(f"s_cmp_lg_u32 s26, {NI - it - OPT['dstart']}")
                    a(f"s_cbranch_scc1 {nx}")
                    for k in range(it * nst, it * nst + nst):
                        r = DEF + k * 4
                        a(f"buffer_store_dwordx4 v[{r}:{r+3}], v{vCH}, s[16:19], {'s44' if k < 4 else 's45'} offen offset:{(k%4)*1024} sc0 sc1")
                    a(f"s_branch {back}")
                    a(f"{nx}:")
                a(f"s_cmp_lg_u32 s26, {NI - OPT['sigB']}")
                a(f"s_cbranch_scc1 {back}")
                signal(a, 3, 2, VTOP, rbj=("s42", "s43"))
                a(f"s_branch {back}")
            c.ool = ool

    if c.full:
        H = FSZ // 2
        rd2 = lambda F: reads(F, 0) + reads(F + H, 1)
        mf2 = lambda F: mfmas(F) + mfmas(F + H)
        a(f"s_mov_b32 s26, {n//2}")
        for r in rd2(FX): a(r)
        for x in adv: a(x)
        if OPT["align"]: a(f".p2align {OPT['align']}")
        a(f"{loop}:")
        w2hook_c()
        a("s_waitcnt lgkmcnt(0)")
        a("s_barrier")
        for x in interleave(mf2(FX), rd2(FY) + adv, 0, 1, c.rpg): a(x)
        a("s_waitcnt lgkmcnt(0)")
        a("s_barrier")
        for x in interleave(mf2(FY), rd2(FX) + adv + ["s_sub_u32 s26, s26, 1", "s_cmp_lg_u32 s26, 0"], 0, 1, c.rpg): a(x)
        a(f"s_cbranch_scc1 {loop}")
        a("s_waitcnt lgkmcnt(0)")
    else:
        for r in reads(FX, 0): a(r)
        if kind == "w1" and OPT["own1"]:
            a("s_waitcnt lgkmcnt(0)")
            for x in interleave(mfmas(FX), reads(FY, 1) + adv, 0, 1, c.rpg): a(x)
            a("s_waitcnt lgkmcnt(0)")
            m_ = mfmas(FY); kb_ = len(m_) - OPT["own1"]
            for x in m_[:kb_]: a(x)
            a("s_barrier")
            for x in interleave(m_[kb_:], reads(FX, 0), 0, 1, 2): a(x)
            a("s_sub_u32 s26, s26, 1")
        if OPT["align"]: a(f".p2align {OPT['align']}")
        a(f"{loop}:")
        w2hook_c()
        a("s_waitcnt lgkmcnt(0)")
        for x in interleave(mfmas(FX), reads(FY, 1) + adv, 0, 1, c.rpg): a(x)
        a("s_waitcnt lgkmcnt(0)")
        a("s_barrier")
        for x in interleave(mfmas(FY), reads(FX, 0) + ["s_sub_u32 s26, s26, 1", "s_cmp_lg_u32 s26, 0"], 0, 1, c.rpg): a(x)
        a(f"s_cbranch_scc1 {loop}")
        a("s_waitcnt lgkmcnt(0)")
        if W1T:
            RECT = 216
            def setst1(st):
                return [f"v_add_u32 v{x}, {c.ABASE + (st % S)*16384}, v{y}" for x, y in abases] + [f"v_add_u32 v{x}, {c.BBASE + (st % S)*c.BB}, v{y}" for x, y in bbases]
            G1 = [0, 1]; G2 = [2, 3, 4, 5, 6]
            b_ = Asm()
            srd_off(b_, 16, P_WS, H1_OFF, 14 * MB)
            b_(f"""
            v_and_b32 v{t0}, 15, v1
            v_lshlrev_b32 v{vA1}, 4, v{t0}
            s_lshl_b32 s30, s34, 10
            s_add_u32 s30, s30, {ST_REC}
            v_add_u32 v{vA1}, s30, v{vA1}
            v_lshlrev_b32 v{t1}, 4, v{vG}
            s_lshl_b32 s30, s35, 9
            s_add_u32 s30, s30, {ST_CS}
            v_add_u32 v{vA10}, s30, v{t1}
            s_lshl_b32 s30, s35, 6
            s_add_u32 s30, s30, {ST_CS}
            v_add_u32 v{t1}, s30, v{t1}
            s_mul_i32 s30, s24, {112*8192}
            s_mul_i32 s31, s25, {7*8192}
            s_add_u32 s30, s30, s31
            s_add_u32 s36, s30, {3*8192}
            s_lshl_b32 s31, s35, 15
            s_add_u32 s30, s30, s31
            s_add_u32 s31, s30, 8192
            s_add_u32 s37, s30, 16384
            """)
            alu = [x.strip() for x in b_.lines]
            for x in interleave(mfmas(FX), reads(FY, 1, G1) + alu, 0, 1, 1): a(x)
            a("s_waitcnt lgkmcnt(0)")
            for x in setst1(15): a(x)
            a("s_barrier")
            for x in interleave(mfmas(FY, G1), reads(FX, 0, G1), 0, 1, 1): a(x)
            a("s_waitcnt lgkmcnt(0)")
            for x in interleave(mfmas(FX, G1), reads(FY, 1, G1), 0, 1, 1): a(x)
            a("s_waitcnt lgkmcnt(0)")
            a("s_barrier")
            rX = [r for r in reads(FX, 0, G2) if "tr_b16" in r]
            st_ = [f"ds_read_b128 v[{RECT+4*mt}:{RECT+4*mt+3}], v{vA1} offset:{mt*256}" for mt in range(4)]
            st_ += [f"ds_read_b128 v[{FX+16+4*nt}:{FX+19+4*nt}], v{vA10} offset:{nt*64}" for nt in range(2)]
            for x in interleave(mfmas(FY, G1), rX + st_, 0, 1, 2): a(x)
            a("s_waitcnt lgkmcnt(0)")
            stamp(a, 50)
            ep = []
            for mt in range(4):
                ep += silu_l(mt, 0, FY + 16, RECT + 4 * mt, FX + 16) + silu_l(mt, 1, FY + 20, RECT + 4 * mt, FX + 20)
                p0 = acc(mt, 0); p1 = acc(mt, 1)
                ep += [f"v_cvt_pk_bf16_f32 v{p0}, v{p0}, v{p0+1}", f"v_cvt_pk_bf16_f32 v{p0+1}, v{p0+2}, v{p0+3}",
                       f"v_cvt_pk_bf16_f32 v{p0+2}, v{p1}, v{p1+1}", f"v_cvt_pk_bf16_f32 v{p0+3}, v{p1+2}, v{p1+3}",
                       f"buffer_store_dwordx4 v[{p0}:{p0+3}], v{vCH}, s[16:19], s30 offen offset:{mt*1024} sc0 sc1"]
            k3 = len(ep) // 3
            rY = [r for r in reads(FY, 1, G2) if "tr_b16" in r]
            def mix(m, rd_, e_):
                out = []; ne = len(e_); nm = len(m); ei = 0
                for i, x in enumerate(m):
                    out.append(x)
                    if i < len(rd_): out.append(rd_[i])
                    tgt = (ne * (i + 1)) // nm
                    while ei < tgt: out.append(e_[ei]); ei += 1
                return out + rd_[nm:]
            for x in mix(mfmas(FX, G2), rY, ["s_nop 3"] + ep[:k3]): a(x)
            a("s_waitcnt lgkmcnt(0)")
            for x in setst1(14): a(x)
            for x in mix(mfmas(FY, G2), reads(FX, 1, G2), ep[k3:2*k3]): a(x)
            a("s_waitcnt lgkmcnt(0)")
            cs_ = [f"ds_read_b128 v[{FY+4*(nt-2)}:{FY+4*(nt-2)+3}], v{vA10} offset:{nt*64}" for nt in range(2, 6)]
            cs_.append(f"ds_read_b128 v[{FY+24}:{FY+27}], v{t1} offset:{6*64}")
            for x in mix(mfmas(FX, G2), ["s_nop 0"] * 2 + cs_, ep[2*k3:]): a(x)
        if RT:
            def setst(st):
                return [f"v_add_u32 v{x}, {c.ABASE + (st % S)*16384}, v{y}" for x, y in abases] + [f"v_add_u32 v{x}, {c.BBASE + (st % S)*c.BB}, v{y}" for x, y in bbases]
            items = [(st, kg, [2, 3]) for st in range(n - RT, n) for kg in range(2)] + [(st, kg, [0, 1]) for st in range(n - RT, n) for kg in range(2)]
            sets = [FX, FY]
            for i, (st, kg, tl) in enumerate(items):
                cur = sets[i % 2]; nxt = sets[(i + 1) % 2]
                fill_ = []
                if i + 1 < len(items):
                    st2_, kg2, tl2 = items[i + 1]
                    if st2_ != st:
                        for x in setst(st2_): a(x)
                        if i + 1 < 2 * RT: a("s_barrier")
                    fill_ = reads(nxt, kg2, tl2)
                for x in interleave(mfmas(cur, tl), fill_, 0, 1, 1): a(x)
                if i == 2 * RT - 1:
                    stamp(a, c.sid + 2)
                    a("s_barrier")
                    sk_send()
                if i == 2 * RT + OPT["sksig"]:
                    signal(a, 6, 2, VTOP)
                    stamp(a, 47)
                a("s_waitcnt lgkmcnt(0)")
        if peel:
            for x in interleave(mfmas(FX), reads(FY, 1), 0, 1, c.rpg): a(x)
            a("s_waitcnt lgkmcnt(0)")
            alu, rds = epi_setup()
            m = mfmas(FY)
            if kind == "qkv": m = m[8:16] + m[16:] + m[:8]
            kb = len(m) - OPT["peel"]
            for x in interleave(m[:kb], alu, 0, 1, 2): a(x)
            a("s_barrier")
            for x in interleave(m[kb:], rds, 0, 1, 2): a(x)
    if not RT: stamp(a, c.sid + 2)
    def pk4_unused(t, p0, p1):
        a(f"v_cvt_pk_bf16_f32 v{t}, v{p0}, v{p0+1}")
        a(f"v_cvt_pk_bf16_f32 v{t+1}, v{p0+2}, v{p0+3}")
        a(f"v_cvt_pk_bf16_f32 v{t+2}, v{p1}, v{p1+1}")
        a(f"v_cvt_pk_bf16_f32 v{t+3}, v{p1+2}, v{p1+3}")
    if kind == "qkv":
        REC, CSQ, MV, RV, CSV = T, T + 16, VTOP, VTOP + 16, VTOP + 32
        if not peel:
            for x in sum(epi_setup(), []): a(x)
        a("s_waitcnt lgkmcnt(10)")
        def fold_sw(mt, nt):
            p = acc(mt, nt); m = REC + 4 * mt; cs = CSQ + 4 * nt
            for h in range(2):
                a(f"v_pk_fma_f32 v[{p+2*h}:{p+2*h+1}], v[{m}:{m+1}], v[{cs+2*h}:{cs+2*h+1}], v[{p+2*h}:{p+2*h+1}] op_sel_hi:[0,1,1] neg_lo:[1,0,0] neg_hi:[1,0,0]")
            for h in range(2):
                a(f"v_pk_mul_f32 v[{p+2*h}:{p+2*h+1}], v[{m}:{m+1}], v[{p+2*h}:{p+2*h+1}] op_sel:[1,0] op_sel_hi:[1,1]")
        for mt in range(4):
            fold_sw(mt, 2); fold_sw(mt, 3)
            t = acc(mt, 2); pk4(t, acc(mt, 2), acc(mt, 3))
            st2(a, f"buffer_store_dwordx4 v[{t}:{t+3}], v{vCH}, s[16:19], s30 offen offset:{mt*1024}")
            a(f"ds_write_b128 v{vB2}, v[{t}:{t+3}] offset:{16384 + mt*1024}")
        a("s_waitcnt lgkmcnt(4)")
        for mp in range(2):
            for dt in range(2):
                for mt in (2 * mp, 2 * mp + 1):
                    p = acc(mt, 4 + dt)
                    sel = "op_sel_hi:[1,0,1]"
                    for h in range(2):
                        a(f"v_pk_fma_f32 v[{p+2*h}:{p+2*h+1}], v[{MV+4*mt+2*h}:{MV+4*mt+2*h+1}], v[{CSV+2*dt}:{CSV+2*dt+1}], v[{p+2*h}:{p+2*h+1}] {sel} neg_lo:[1,0,0] neg_hi:[1,0,0]")
                    for h in range(2):
                        a(f"v_pk_mul_f32 v[{p+2*h}:{p+2*h+1}], v[{RV+4*mt+2*h}:{RV+4*mt+2*h+1}], v[{p+2*h}:{p+2*h+1}]")
                t = acc(2 * mp, 4 + dt); pk4(t, acc(2 * mp, 4 + dt), acc(2 * mp + 1, 4 + dt))
                st2(a, f"buffer_store_dwordx4 v[{t}:{t+3}], v{vCH}, s[16:19], s31 offen offset:{(2*mp+dt)*1024}")
                a(f"ds_write_b128 v{vB2}, v[{t}:{t+3}] offset:{24576 + 16384 + (2*mp+dt)*1024}")
        for mt in range(4):
            fold_sw(mt, 0); fold_sw(mt, 1)
            t = acc(mt, 0); pk4(t, acc(mt, 0), acc(mt, 1))
            a(f"ds_write_b128 v{vB2}, v[{t}:{t+3}] offset:{49152 + mt*1024}")
        stamp(a, c.sid + 3)
        signal(a, 0, 2, T, True)
        stamp(a, c.sid + 4)
        a("s_waitcnt lgkmcnt(0)")
    elif kind == "wo":
        srd_off(a, 16, P_WS, H_OFF, 4 * MB)
        a(f"""
        s_lshl_b32 s30, s24, 18
        s_lshl_b32 s31, s25, 14
        s_add_u32 s30, s30, s31
        s_lshl_b32 s31, s35, 13
        s_add_u32 s30, s30, s31
        s_mov_b32 s36, 0xffff0000
        s_waitcnt vmcnt(0) lgkmcnt(0)
        """)
        for mt in range(4):
            for nt in range(2):
                r = RES + mt * 4 + nt * 2; p = acc(mt, nt)
                for d in range(2):
                    a(f"v_lshlrev_b32 v{T}, 16, v{r+d}")
                    a(f"v_and_b32 v{T+1}, s36, v{r+d}")
                    a(f"v_pk_add_f32 v[{p+2*d}:{p+2*d+1}], v[{p+2*d}:{p+2*d+1}], v[{T}:{T+1}]")
            t = HRES + mt * 4
            pk4(t, acc(mt, 0), acc(mt, 1))
            a(f"buffer_store_dwordx4 v[{t}:{t+3}], v{vCH}, s[16:19], s30 offen offset:{mt*1024} sc0 sc1")
            if OPT["own1"]:
                if mt == 0: a(f"s_lshl_b32 s33, s35, 13\nv_add_u32 v{vA}, s33, v{vCH}")
                a(f"ds_write_b128 v{vA}, v[{t}:{t+3}] offset:{mt*1024}")
        SS = T + 4
        for mt in range(4):
            p0 = acc(mt, 0); p1 = acc(mt, 1)
            s_, q_ = SS + 2 * mt, SS + 2 * mt + 1
            a(f"v_pk_add_f32 v[{T}:{T+1}], v[{p0}:{p0+1}], v[{p0+2}:{p0+3}]")
            a(f"v_pk_mul_f32 v[{T+2}:{T+3}], v[{p0}:{p0+1}], v[{p0}:{p0+1}]")
            a(f"v_pk_add_f32 v[{T}:{T+1}], v[{T}:{T+1}], v[{p1}:{p1+1}]")
            a(f"v_pk_fma_f32 v[{T+2}:{T+3}], v[{p0+2}:{p0+3}], v[{p0+2}:{p0+3}], v[{T+2}:{T+3}]")
            a(f"v_pk_add_f32 v[{T}:{T+1}], v[{T}:{T+1}], v[{p1+2}:{p1+3}]")
            a(f"v_pk_fma_f32 v[{T+2}:{T+3}], v[{p1}:{p1+1}], v[{p1}:{p1+1}], v[{T+2}:{T+3}]")
            a(f"v_pk_fma_f32 v[{T+2}:{T+3}], v[{p1+2}:{p1+3}], v[{p1+2}:{p1+3}], v[{T+2}:{T+3}]")
            a(f"v_add_f32 v{s_}, v{T}, v{T+1}")
            a(f"v_add_f32 v{q_}, v{T+2}, v{T+3}")
        for mt in range(4):
            s_, q_ = SS + 2 * mt, SS + 2 * mt + 1
            a(f"v_permlane32_swap_b32 v{s_}, v{q_}")
            a(f"v_add_f32 v{s_}, v{s_}, v{q_}")
        srd_off(a, 20, P_WS, ST2_OFF, 16 * 32768)
        a(f"""
        v_and_b32 v{t0}, 31, v1
        v_lshlrev_b32 v{t0}, 2, v{t0}
        v_lshrrev_b32 v{t1}, 5, v1
        v_lshl_add_u32 v{t0}, v{t1}, 9, v{t0}
        s_lshl_b32 s30, s24, 15
        s_lshl_b32 s31, s25, 11
        s_add_u32 s30, s30, s31
        s_lshl_b32 s31, s35, 10
        s_add_u32 s30, s30, s31
        s_lshl_b32 s31, s34, 8
        s_add_u32 s30, s30, s31
        """)
        for mp in range(2):
            x0 = SS + 4 * mp; x1 = SS + 4 * mp + 2
            a(f"v_permlane16_swap_b32 v{x0}, v{x1}")
            a(f"v_add_f32 v{x0}, v{x0}, v{x1}")
            a(f"buffer_store_dword v{x0}, v{t0}, s[20:23], s30 offen offset:{mp*128} sc0 sc1")
        stamp(a, c.sid + 3)
        if OPT["wobar"]: a("s_barrier")
        signal(a, 2, 2, T)
        a("s_waitcnt lgkmcnt(0)")
        stamp(a, c.sid + 4)
    elif kind == "w1" and W1T:
        RECT = 216; E = FY + 16
        csr = lambda nt: (FY + 24) if nt == 6 else FY + 4 * (nt - 2)
        soffs = ["s30", "s31", "s37"]
        signal(a, 0, 2, FX, False, 0, True)
        stamp(a, 45)
        a("s_waitcnt lgkmcnt(0)")
        a("s_barrier")
        stamp(a, 46)
        a(f"""
        s_lshl_b32 s33, s35, 13
        v_add_u32 v{vA}, s33, v{vCH}
        s_lshl_b32 s33, s35, 3
        s_add_u32 s33, s33, {XCH}
        v_add_u32 v{vB2}, s33, v{vCH}
        """)
        for mt in range(4):
            p0 = acc(mt, 0)
            a(f"ds_write_b128 v{vA}, v[{p0}:{p0+3}] offset:{mt*1024}")
        def pair(q, mt):
            for x in silu_l(mt, 2 * q, E, RECT + 4 * mt, csr(2 * q)) + silu_l(mt, 2 * q + 1, E + 4, RECT + 4 * mt, csr(2 * q + 1)): a(x)
            p0 = acc(mt, 2 * q)
            pk4(p0, p0, acc(mt, 2 * q + 1))
            a(f"buffer_store_dwordx4 v[{p0}:{p0+3}], v{vCH}, s[16:19], {soffs[q]} offen offset:{mt*1024} sc0 sc1")
            a(f"ds_write_b128 v{vA}, v[{p0}:{p0+3}] offset:{q*16384 + mt*1024}")
        for mt in range(4): pair(1, mt)
        stamp(a, 42)
        for mt in range(4):
            for x in silu_l(mt, 6, E + (mt % 2) * 4, RECT + 4 * mt, csr(6)): a(x)
            p = acc(mt, 6)
            a(f"v_cvt_pk_bf16_f32 v{p}, v{p}, v{p+1}")
            a(f"v_cvt_pk_bf16_f32 v{p+1}, v{p+2}, v{p+3}")
            a(f"ds_write_b64 v{vB2}, v[{p}:{p+1}] offset:{mt*1024}")
        a("s_waitcnt lgkmcnt(0)")
        stamp(a, 40)
        a("s_barrier")
        stamp(a, 41)
        a(f"""
        s_lshl_b32 s33, s35, 11
        v_add_u32 v{vB2}, s33, v{vCH}
        v_add_u32 v{vB1}, {XCH}, v{vB2}
        ds_read_b128 v[{acc(0,6)}:{acc(0,6)+3}], v{vB1}
        ds_read_b128 v[{acc(1,6)}:{acc(1,6)+3}], v{vB1} offset:1024
        """)
        pair(2, 0)
        a("s_waitcnt lgkmcnt(0)")
        a(f"buffer_store_dwordx4 v[{acc(0,6)}:{acc(0,6)+3}], v{vB2}, s[16:19], s36 offen sc0 sc1")
        a(f"buffer_store_dwordx4 v[{acc(1,6)}:{acc(1,6)+3}], v{vB2}, s[16:19], s36 offen offset:1024 sc0 sc1")
        for mt in range(1, 4): pair(2, mt)
        stamp(a, 43)
        stamp(a, c.sid + 3)
        a("s_waitcnt lgkmcnt(0)")
        a("s_mov_b32 s42, s24\ns_mov_b32 s43, s25")
        stamp(a, c.sid + 4)
    elif kind == "w1":
        CSR = T; REC = T + 28; E = T + 44
        if not peel:
            for x in sum(epi_setup(), []): a(x)
        a("s_waitcnt lgkmcnt(0)")
        soffs = ["s30", "s31", "s37"]
        def silu(mt, nt, e):
            p = acc(mt, nt); m = REC + 4 * mt; cs = CSR + 4 * nt
            for h in range(2):
                a(f"v_pk_fma_f32 v[{p+2*h}:{p+2*h+1}], v[{m}:{m+1}], v[{cs+2*h}:{cs+2*h+1}], v[{p+2*h}:{p+2*h+1}] op_sel_hi:[0,1,1] neg_lo:[1,0,0] neg_hi:[1,0,0]")
            for h in range(2):
                a(f"v_pk_mul_f32 v[{e+2*h}:{e+2*h+1}], v[{m}:{m+1}], v[{p+2*h}:{p+2*h+1}] op_sel:[1,0] op_sel_hi:[1,1]")
            for r in range(4):
                a(f"v_exp_f32 v{e+r}, v{e+r}")
            for h in range(2):
                a(f"v_pk_fma_f32 v[{e+2*h}:{e+2*h+1}], v[{e+2*h}:{e+2*h+1}], v[{m+2}:{m+3}], v[{m+2}:{m+3}]")
            for r in range(4):
                a(f"v_rcp_f32 v{e+r}, v{e+r}")
            for h in range(2):
                a(f"v_pk_mul_f32 v[{p+2*h}:{p+2*h+1}], v[{p+2*h}:{p+2*h+1}], v[{e+2*h}:{e+2*h+1}]")
        def pair(q, mt):
            silu(mt, 2 * q, E); silu(mt, 2 * q + 1, E + 4)
            p0 = acc(mt, 2 * q)
            pk4(p0, p0, acc(mt, 2 * q + 1))
            a(f"buffer_store_dwordx4 v[{p0}:{p0+3}], v{vCH}, s[16:19], {soffs[q]} offen offset:{mt*1024} sc0 sc1")
            if OPT["own"]: a(f"ds_write_b128 v{vA}, v[{p0}:{p0+3}] offset:{q*16384 + mt*1024}")
        if OPT["own"]:
            a(f"s_lshl_b32 s33, s35, 13")
            a(f"v_add_u32 v{vA}, s33, v{vCH}")
        for mt in range(4): pair(0, mt)
        stamp(a, 42)
        for mt in range(4):
            silu(mt, 6, E + (mt % 2) * 4)
            p = acc(mt, 6)
            a(f"v_cvt_pk_bf16_f32 v{p}, v{p}, v{p+1}")
            a(f"v_cvt_pk_bf16_f32 v{p+1}, v{p+2}, v{p+3}")
            a(f"ds_write_b64 v{vB2}, v[{p}:{p+1}] offset:{mt*1024}")
        a("s_waitcnt lgkmcnt(0)")
        stamp(a, 40)
        a("s_barrier")
        stamp(a, 41)
        a(f"""
        s_lshl_b32 s33, s35, 11
        v_add_u32 v{vB2}, s33, v{vCH}
        v_add_u32 v{vB1}, {XCH}, v{vB2}
        ds_read_b128 v[{acc(0,6)}:{acc(0,6)+3}], v{vB1}
        ds_read_b128 v[{acc(1,6)}:{acc(1,6)+3}], v{vB1} offset:1024
        """)
        pair(1, 0)
        a("s_waitcnt lgkmcnt(0)")
        a(f"buffer_store_dwordx4 v[{acc(0,6)}:{acc(0,6)+3}], v{vB2}, s[16:19], s36 offen sc0 sc1")
        a(f"buffer_store_dwordx4 v[{acc(1,6)}:{acc(1,6)+3}], v{vB2}, s[16:19], s36 offen offset:1024 sc0 sc1")
        for mt in range(1, 4): pair(1, mt)
        stamp(a, 43)
        k2 = OPT["sigA2"]
        for mt in range(k2): pair(2, mt)
        signal(a, 0, 2, acc(2, 6), False, 3 + k2, True)
        stamp(a, 45)
        if OPT["bar2"] == 0: a("s_barrier")
        stamp(a, 46)
        for mt in range(k2, 4): pair(2, mt)
        stamp(a, c.sid + 3)
        if OPT["bar2"] == 1: a("s_barrier")
        if OPT["own"]: a("s_waitcnt lgkmcnt(0)")
        a("s_mov_b32 s42, s24\ns_mov_b32 s43, s25\ns_mov_b32 s44, s31\ns_mov_b32 s45, s37")
        stamp(a, c.sid + 4)
    elif kind == "w2":
        XR = T + 32
        if c.sk and not RT:
            sk_send()
            signal(a, 6, 2, T)
            stamp(a, 47)
        srd_off(a, 16, P_OUT, 0, 4 * MB)
        a(f"""
        v_and_b32 v{t0}, 15, v1
        v_lshlrev_b32 v{t0}, 11, v{t0}
        v_and_b32 v{t1}, 1, v{vG}
        v_lshl_add_u32 v{t0}, v{t1}, 5, v{t0}
        v_lshrrev_b32 v{t1}, 1, v{vG}
        v_lshl_add_u32 v{t0}, v{t1}, 4, v{t0}
        s_lshl_b32 s30, s24, 18
        s_lshl_b32 s31, s34, 17
        s_add_u32 s30, s30, s31
        s_lshl_b32 s31, s25, 7
        s_add_u32 s30, s30, s31
        s_lshl_b32 s31, s35, 6
        s_add_u32 s30, s30, s31
        s_mov_b32 s36, 0xffff0000
        """)
        for mt in range(4):
            for nt in range(2):
                r = HRES + mt * 4 + nt * 2; p = acc(mt, nt)
                for d in range(2):
                    a(f"v_lshlrev_b32 v{T+16}, 16, v{r+d}")
                    a(f"v_and_b32 v{T+17}, s36, v{r+d}")
                    a(f"v_pk_add_f32 v[{p+2*d}:{p+2*d+1}], v[{p+2*d}:{p+2*d+1}], v[{T+16}:{T+17}]")
        if c.sk and OPT["sent"]:
            lp = a.label("xpoll"); dn = a.label("skip_xp")
            a("s_mov_b32 s39, 0x200000")
            a(f"{lp}:")
            for mt in range(4):
                a(f"buffer_load_dwordx4 v[{XR+4*mt}:{XR+4*mt+3}], v{vX}, s[20:23], s37 offen offset:{mt*1024} sc0 sc1")
            for mt in range(4):
                r = XR + 4 * mt
                a(f"s_waitcnt vmcnt({3-mt})")
                if mt == 0: a(f"v_max_u32 v{T+4}, v{r}, v{r+1}")
                else: a(f"v_max3_u32 v{T+4}, v{r}, v{r+1}, v{T+4}")
                a(f"v_max3_u32 v{T+4}, v{r+2}, v{r+3}, v{T+4}")
            a(f"""
            v_cmp_eq_u32 vcc, -1, v{T+4}
            s_nop 3
            s_cmp_eq_u64 vcc, 0
            s_cbranch_scc1 {dn}
            s_sub_u32 s39, s39, 1
            s_cbranch_scc0 {lp}
            {dn}:
            """)
            stamp(a, 48)
        elif c.sk:
            lp = a.label("xpoll"); dn = a.label("skip_xp")
            a(f"""
            s_xor_b32 s40, s40, {4 << 5}
            s_mov_b32 s39, 0x200000
            {lp}:
            buffer_load_dwordx2 v[{T+4}:{T+5}], v{(VTOP if RT else T)+2}, s[{FLS}:{FLS+3}], s40 offen sc0 sc1
            s_waitcnt vmcnt(0)
            v_cmp_eq_u64 vcc, s[{TAG}:{TAG+1}], v[{T+4}:{T+5}]
            s_nop 3
            s_cmp_eq_u64 vcc, -1
            s_cbranch_scc1 {dn}
            s_sub_u32 s39, s39, 1
            s_cbranch_scc0 {lp}
            {dn}:
            """)
            stamp(a, 48)
            for mt in range(4):
                a(f"buffer_load_dwordx4 v[{XR+4*mt}:{XR+4*mt+3}], v{vX}, s[20:23], s37 offen offset:{mt*1024} sc0 sc1")
        for mt in range(4):
            if c.sk:
                if not OPT["sent"]: a(f"s_waitcnt vmcnt(3)")
                for nt in range(2):
                    r = XR + mt * 4 + nt * 2; p = acc(mt, nt)
                    for d in range(2):
                        a(f"v_lshlrev_b32 v{T+16}, 16, v{r+d}")
                        a(f"v_and_b32 v{T+17}, s36, v{r+d}")
                        a(f"v_pk_add_f32 v[{p+2*d}:{p+2*d+1}], v[{p+2*d}:{p+2*d+1}], v[{T+16}:{T+17}]")
            t = T + mt * 4
            pk4(t, acc(mt, 0), acc(mt, 1))
            a(f"v_permlane16_swap_b32 v{t}, v{t+2}")
            a(f"v_permlane16_swap_b32 v{t+1}, v{t+3}")
            a(f"buffer_store_dwordx4 v[{t}:{t+3}], v{t0}, s[16:19], s30 offen{['', ' sc0 sc1', ' nt', ' sc1'][OPT['osf']]}")
            a("s_add_u32 s30, s30, 32768")
        stamp(a, c.sid + 3)
        if DIAG:
            a("s_waitcnt vmcnt(0)")
            stamp(a, c.sid + 4)

PV_A = 4
PV_B = 8
PV_SA = 16
PV_SB = 18
PV_RD = 32
PV_ACC = 80

def prod_setup(a, c):
    n = c.n
    wgmap(a, c.RX, c.CX)
    if c.a_off is None:
        a("s_lshl_b32 s30, s24, 18")
        srd_off(a, 8, P_X, "s30", 262144)
        for i in range(4):
            a(f"""
            v_lshrrev_b32 v2, 3, v1
            v_lshrrev_b32 v3, 4, v1
            v_add_u32 v3, {4*(i&1)}, v3
            v_and_b32 v{PV_A+i}, 7, v1
            v_xor_b32 v3, v3, v{PV_A+i}
            v_lshlrev_b32 v3, 4, v3
            v_lshl_add_u32 v3, v2, 11, v3
            s_lshl_b32 s30, s38, 16
            s_add_u32 s30, s30, {i*8*2048 - i*1024}
            v_add_u32 v{PV_A+i}, s30, v3
            """)
        c.astep = 128
    else:
        a(f"s_mul_i32 s30, s24, {c.K*256}")
        a(f"s_add_u32 s30, s30, {c.a_off}")
        srd_off(a, 8, P_WS, "s30", c.K * 256)
        a(f"""
        {"s_lshr_b32 s30, s38, 1" if c.sk else f"s_and_b32 s30, s38, {1 if c.kind == 'w2' else 3}"}
        s_lshl_b32 s30, s30, 12
        v_lshlrev_b32 v{PV_A}, 4, v1
        v_add_u32 v{PV_A}, s30, v{PV_A}
        """)
        c.astep = 16384
        if c.kind == "w2":
            a(f"""
            {"s_and_b32 s30, s38, 1" if c.sk else "s_lshr_b32 s30, s38, 1"}
            s_mul_i32 s63, s30, {4*8192}
            s_mul_i32 s64, s30, {7*8192}
            """)
    c.bstep = 64 * c.ldb
    CT = 16 // c.CX
    a(f"""
    s_and_b32 s65, s25, {CT-1}
    s_mul_i32 s65, s65, {(16 // CT) if c.rot else 0}
    """)
    if c.rot == 2: a(f"s_mov_b32 s65, {OPT['rot0']}")
    if c.kind == "w1" and OPT["own1"]: a("s_mov_b32 s65, s25")
    if c.sk: a("s_and_b32 s65, s25, 4\ns_lshl_b32 s65, s65, 1")
    a(f"""
    s_lshl_b32 s34, s38, 12
    s_mul_i32 s35, s38, {c.NBW*1024}
    """)
    if c.sk:
        a("""
        s_and_b32 s34, s38, 1
        s_lshl_b32 s34, s34, 13
        s_lshr_b32 s30, s38, 1
        s_lshl_b32 s30, s30, 12
        s_add_u32 s34, s34, s30
        """)
    if c.kind == "w2" and not OPT["own"]: a(f"s_mul_i32 s66, s65, {7*8192}")
    if not c.early: b_setup(a, c, PV_B, 12)
    a(f"""
    s_mov_b32 s27, {c.ABASE}
    s_mov_b32 s32, {c.BBASE}
    s_mul_i32 s28, s65, {c.astep}
    s_mul_i32 s29, s65, {c.bstep}
    """)

def b_setup(a, c, dst, sr_):
    if c.sk:
        a("s_andn2_b32 s30, s25, 4")
        a(f"s_mul_i32 s30, s30, {c.bcol}")
    else:
        a(f"s_mul_i32 s30, s25, {c.bcol}")
    a(f"s_sub_u32 s31, {c.K*c.ldb}, s30")
    srd_off(a, sr_, c.wp, "s30", "s31")
    a(f"""
    s_mul_i32 s30, s38, {c.NBW*64}
    s_mov_b32 s36, {c.ldb}
    """)
    for i in range(c.NBW):
        a(f"s_add_u32 s31, s30, {i*64}")
        a(f"v_add_u32 v3, s31, v1")
        d = dst + i
        if c.layout == "panel":
            a("v_bfe_u32 v2, v3, 3, 6")
            if c.korder == "F":
                a(f"v_bfe_u32 v{d}, v2, 1, 2")
            else:
                a(f"v_bfe_u32 v{d}, v2, 1, 1")
                a("v_bfe_u32 v15, v2, 3, 1")
                a(f"v_lshl_or_b32 v{d}, v15, 1, v{d}")
            a(f"""
            v_lshlrev_b32 v{d}, 1, v{d}
            v_and_b32 v15, 7, v3
            v_xor_b32 v{d}, v{d}, v15
            v_and_b32 v2, {31 if c.kind == "w2" else 63}, v2
            v_mul_lo_u32 v2, v2, s36
            v_lshl_add_u32 v{d}, v{d}, 4, v2
            """)
            if c.pstride:
                a(f"""
                v_lshrrev_b32 v3, 9, v3
                {"s_bfe_u32 s31, s25, 0x10002" if c.sk else ""}
                {"v_xor_b32 v3, s31, v3" if c.sk else ""}
                v_mul_u32_u24 v3, {c.pstride}, v3
                v_add_u32 v{d}, v{d}, v3
                """)
        else:
            a(f"""
            v_mul_u32_u24 v2, 2341, v3
            v_lshrrev_b32 v2, 16, v2
            v_mul_u32_u24 v15, 28, v2
            v_sub_u32 v3, v3, v15
            v_bfe_u32 v15, v2, 2, 1
            v_lshlrev_b32 v15, 1, v15
            v_xor_b32 v3, v3, v15
            v_mul_lo_u32 v2, v2, s36
            v_lshl_add_u32 v{d}, v3, 4, v2
            """)
        if i & 3: a(f"v_subrev_u32 v{d}, {(i&3)*1024}, v{d}")

def issueA(a, c, slot=None, adv=True):
    if slot is None: a("s_add_u32 m0, s27, s34")
    else: a(f"s_add_u32 m0, s34, {c.ABASE + slot*16384}")
    for i in range(4):
        v = PV_A + (i if c.a_off is None else 0)
        a(f"buffer_load_dwordx4 v{v}, s[8:11], s28 offen offset:{i*1024}{'' if c.a_off is None else ' sc1'} lds")
    if adv:
        a(f"s_add_u32 s28, s28, {c.astep}")
        if c.rot: a(f"s_and_b32 s28, s28, {16*c.astep - 1}")
    if slot is None:
        a(f"""
        s_add_u32 s27, s27, 16384
        s_cmp_eq_u32 s27, {c.ABASE + c.S*16384}
        s_cselect_b32 s27, {c.ABASE}, s27
        """)

def issueB(a, c, slot=None, adv=True):
    for i in range(c.NBW):
        if i % 4 == 0:
            if slot is None:
                a(f"s_add_u32 m0, s32, {c.s35}")
                if i: a(f"s_add_u32 m0, m0, {i*1024}")
            else:
                a(f"s_add_u32 m0, {c.s35}, {c.BBASE + slot*c.BB + i*1024}")
        a(f"buffer_load_dwordx4 v{c.pvb+i}, s[{c.sb}:{c.sb+3}], s29 offen offset:{(i&3)*1024}{' nt' if (c.kind == 'qkv' and OPT['qnt'] >= 2) else ''} lds")
    if adv:
        a(f"s_add_u32 s29, s29, {c.bstep}")
        if c.rot:
            a(f"s_cmp_eq_u32 s29, {16*c.bstep}")
            a("s_cselect_b32 s29, 0, s29")
    if slot is None:
        a(f"""
        s_add_u32 s32, s32, {c.BB}
        s_cmp_eq_u32 s32, {c.BBASE + c.S*c.BB}
        s_cselect_b32 s32, {c.BBASE}, s32
        """)

PV_POLL = 28
def poll_once(a, wide):
    t = PV_POLL
    if wide: a(f"buffer_load_dwordx4 v[{t}:{t+3}], v26, s[{FLS}:{FLS+3}], s33 offen sc0 sc1")
    else: a(f"buffer_load_dwordx2 v[{t}:{t+1}], v26, s[{FLS}:{FLS+3}], s33 offen sc0 sc1")
    a("s_waitcnt vmcnt(0)")
    a(f"v_cmp_eq_u64 s[56:57], s[{TAG}:{TAG+1}], v[{t}:{t+1}]")
    if wide:
        a(f"v_cmp_eq_u64 s[58:59], s[{TAG}:{TAG+1}], v[{t+2}:{t+3}]")
        a("s_nop 3")
        a("s_and_b64 s[56:57], s[56:57], s[58:59]")
    else:
        a("s_nop 3")

def gate(a, t, wide):
    lp = a.label("gate"); ok = a.label("skip_gate")
    a(f"{lp}:")
    if t == "all":
        a("s_cmp_eq_u32 s56, -1" if OPT["sk"] else "s_cmp_eq_u64 s[56:57], -1")
    else:
        a(f"s_bfe_u32 s30, s{56 + t // 8}, {hex((4 << 16) | (4 * (t % 8)))}")
        a("s_cmp_eq_u32 s30, 15")
    a(f"s_cbranch_scc1 {ok}")
    poll_once(a, wide)
    a("""
    s_sub_u32 s39, s39, 1
    s_cselect_b64 s[58:59], -1, 0
    s_cselect_b32 s39, 0, s39
    s_or_b64 s[56:57], s[56:57], s[58:59]
    """)
    a(f"s_branch {lp}")
    a(f"{ok}:")

def gate_setup(a, seam_id, wide):
    a(f"""
    s_lshl_b32 s30, s65, 2
    v_add_u32 v26, s30, v1
    v_and_b32 v26, 63, v26
    v_lshlrev_b32 v26, {4 if wide else 3}, v26
    s_lshl_b32 s33, s24, 10
    s_add_u32 s33, s33, {seam_id*16384}
    s_mov_b64 s[56:57], 0
    s_mov_b32 s39, 0x200000
    """)

def colsum_tile(a, c, lds_base, wsg, which, R, part=None):
    AD = R; ACCU = R + 4; D = R + 8; t = R + 40
    if part in (None, 0):
        a(f"""
        v_lshrrev_b32 v{t}, 4, v1
        v_bfe_u32 v{t+1}, v1, 2, 2
        v_mul_u32_u24 v{t+2}, {c.gmul}, v{t}
        v_add_u32 v{t+2}, v{t+2}, v{t+1}
        v_mul_u32_u24 v{t+2}, {c.RS}, v{t+2}
        v_and_b32 v{t+3}, 3, v1
        v_lshl_add_u32 v{t+2}, v{t+3}, 3, v{t+2}
        v_and_b32 v{t}, 1, v{t}
        s_lshl_b32 s71, {wsg}, {13 if c.layout == "panel" else 7}
        s_add_u32 s71, s71, {lds_base}
        v_add_u32 v{t+2}, s71, v{t+2}
        """)
        if c.layout == "panel":
            a(f"v_lshrrev_b32 v{t+1}, 1, v{t+1}")
            a(f"v_lshl_or_b32 v{t}, v{t}, 1, v{t+1}")
        for ts in range(4):
            a(f"v_xor_b32 v{t+3}, {ts}, v{t}")
            a(f"v_lshl_add_u32 v{AD+ts}, v{t+3}, 5, v{t+2}")
        for q in range(4):
            for ts in range(4):
                d = D + (q * 4 + ts) * 2
                a(f"ds_read_b64_tr_b16 v[{d}:{d+1}], v{AD+ts} offset:{((q>>1)*32 + (q&1)*c.rdrows) * c.RS}")
        for ts in range(4): a(f"v_mov_b32 v{ACCU+ts}, 0")
        srd_off(a, 16, P_WS, CSG_OFF + which * 524288, 524288)
        a(f"""
        s_mov_b32 s75, 0x3f803f80
        v_lshlrev_b32 v{t}, 3, v1
        """)
        if c.kind == "qkv" and OPT["dil"]:
            a(f"""
            s_lshl_b32 s71, s24, 15
            s_mul_i32 s31, s25, 1536
            s_add_u32 s71, s71, s31
            s_lshl_b32 s31, {wsg}, 9
            s_add_u32 s71, s71, s31
            s_cmp_eq_u32 {wsg}, 3
            s_cselect_b32 s71, 0x40000000, s71
            """)
        else:
            a(f"""
            s_lshl_b32 s71, s25, 15
            s_lshl_b32 s31, s24, 11
            s_add_u32 s71, s71, s31
            s_lshl_b32 s31, {wsg}, 9
            s_add_u32 s71, s71, s31
            """)
    for q in range(4):
        if part not in (None, 1 + q // 2): continue
        if part is None or q == 0: a(f"s_waitcnt lgkmcnt({12-4*q if part is None else 0})")
        for d in range(2):
            for ts in range(4):
                a(f"v_dot2c_f32_bf16 v{ACCU+ts}, s75, v{D+(q*4+ts)*2+d}")
    if part in (None, 3):
        t0, t1, t2, t3 = ACCU, ACCU + 1, ACCU + 2, ACCU + 3
        a(f"""
        v_permlane32_swap_b32 v{t0}, v{t2}
        v_permlane32_swap_b32 v{t1}, v{t3}
        v_add_f32 v{t0}, v{t0}, v{t2}
        v_add_f32 v{t1}, v{t1}, v{t3}
        v_permlane16_swap_b32 v{t0}, v{t1}
        v_add_f32 v{t0}, v{t0}, v{t1}
        v_mov_b32 v{t1}, s{TAG}
        """)
        if c.kind == "qkv":
            sk = a.label("skip_xi")
            a(f"""
            s_cmp_lg_u32 {wsg}, 3
            s_cbranch_scc1 {sk}
            v_cmp_eq_u32 vcc, s74, v1
            v_cndmask_b32 v{t0}, 0, 1.0, vcc
            {sk}:
            """)
        a(f"buffer_store_dwordx2 v[{t0}:{t1}], v{t}, s[16:19], s71 offen sc0 sc1")

G_CS = 32
G_RS = 64
def gather_cs_setup(a, c):
    which = 0 if c.kind == "qkv" else 1
    srd_off(a, 16, P_WS, CSG_OFF + which * 524288, 524288)
    if c.kind == "qkv" and OPT["dil"]:
        a(f"""
        s_min_u32 s31, s38, 2
        s_lshl_b32 s60, s31, 13
        s_lshl_b32 s31, s25, 9
        s_add_u32 s60, s60, s31
        s_mov_b32 s67, 32768
        """)
    else:
        a(f"""
        s_lshl_b32 s60, s25, 15
        s_lshl_b32 s31, s38, 9
        s_add_u32 s60, s60, s31
        s_mov_b32 s67, 2048
        """)
    a("v_lshlrev_b32 v24, 3, v1")
    return 0
def gather_cs(a, r0, r1):
    for r in range(r0, r1):
        a(f"buffer_load_dwordx2 v[{G_CS+2*r}:{G_CS+2*r+1}], v24, s[16:19], s60 offen sc0 sc1")
        a("s_add_u32 s60, s60, s67")
    return r1 - r0
def gather_rs_setup(a, c):
    if c.kind == "qkv":
        srd_off(a, 20, P_WS, RS1_OFF, 32768)
        a(f"""
        v_and_b32 v25, 31, v1
        v_lshlrev_b32 v25, 4, v25
        s_lshl_b32 s61, s24, 11
        s_lshl_b32 s31, s38, 9
        s_add_u32 s61, s61, s31
        """)
    else:
        srd_off(a, 20, P_WS, ST2_OFF, 16 * 32768)
        a(f"""
        v_and_b32 v25, 31, v1
        v_lshlrev_b32 v25, 2, v25
        v_lshrrev_b32 v15, 5, v1
        v_lshl_add_u32 v25, v15, 9, v25
        s_lshl_b32 s61, s24, 15
        s_lshl_b32 s31, s38, 7
        s_add_u32 s61, s61, s31
        """)
    return 0
def gather_rs(a, c, p0=0, p1=32):
    if c.kind == "qkv":
        a(f"buffer_load_dwordx4 v[{G_RS}:{G_RS+3}], v25, s[20:23], s61 offen sc0 sc1")
        return 1
    a(f"s_add_u32 s30, s65, {p0 // 2}")
    a("s_and_b32 s30, s30, 15")
    a("s_lshl_b32 s30, s30, 11")
    a("s_add_u32 s30, s30, s61")
    for p in range(p0, p1):
        a(f"buffer_load_dword v{G_RS+p}, v25, s[20:23], s30 offen offset:{(p&1)*1024} sc0 sc1")
    return p1 - p0

def gather_finish_cs(a, c):
    lp = a.label("gchk"); ok = a.label("skip_gok")
    a("s_mov_b32 s62, 0x40000")
    a(f"{lp}:")
    a(f"v_xor_b32 v15, s{TAG}, v{G_CS+1}")
    for r in range(1, 16):
        a(f"v_xor_b32 v27, s{TAG}, v{G_CS+2*r+1}")
        a("v_or_b32 v15, v15, v27")
    if c.kind == "qkv":
        a(f"v_xor_b32 v27, s{TAG}, v{G_RS+2}")
        a("v_or_b32 v15, v15, v27")
        a(f"v_xor_b32 v27, s{TAG+1}, v{G_RS+3}")
        a("v_or_b32 v15, v15, v27")
    a(f"""
    v_cmp_ne_u32 vcc, 0, v15
    s_nop 3
    s_cmp_eq_u64 vcc, 0
    s_cbranch_scc1 {ok}
    s_sub_u32 s62, s62, 1
    s_cbranch_scc1 {ok}
    s_sleep 2
    """)
    gather_cs_setup(a, c); gather_cs(a, 0, 16)
    if c.kind == "qkv": gather_rs(a, c)
    a("s_waitcnt vmcnt(0)")
    a(f"s_branch {lp}")
    a(f"{ok}:")
    for r in range(1, 16): a(f"v_add_f32 v{G_CS}, v{G_CS}, v{G_CS+2*r}")
    a(f"""
    v_lshlrev_b32 v2, 2, v1
    s_lshl_b32 s30, s38, 8
    s_add_u32 s30, s30, {ST_CS}
    v_add_u32 v2, s30, v2
    ds_write_b32 v2, v{G_CS}
    """)
    return 0

def l2_issue(a, c):
    which = 0 if c.kind == "qkv" else 1
    srd_off(a, 16, P_WS, CSG_OFF + which * 524288, 524288)
    a(f"""
    s_lshl_b32 s60, s2, 2
    s_add_u32 s60, s60, s38
    v_lshrrev_b32 v24, 2, v1
    v_lshlrev_b32 v24, {15 if which == 0 else 11}, v24
    v_and_b32 v27, 3, v1
    v_lshl_add_u32 v24, v27, 3, v24
    """)
    if which == 0:
        a("s_min_u32 s60, s60, 767")
        a("s_lshl_b32 s67, s60, 5")
    else:
        a("""
        s_lshr_b32 s67, s60, 6
        s_lshl_b32 s67, s67, 15
        s_and_b32 s31, s60, 63
        s_lshl_b32 s31, s31, 5
        s_add_u32 s67, s67, s31
        """)
    a(f"buffer_load_dwordx2 v[{G_CS}:{G_CS+1}], v24, s[16:19], s67 offen sc0 sc1")
    return 1

def tagcheck(a, regs, retry):
    lp = a.label("gchk"); ok = a.label("skip_gok")
    a("s_mov_b32 s62, 0x80000")
    a(f"{lp}:")
    for k, (r, sg) in enumerate(regs):
        a(f"v_xor_b32 v{15 if k == 0 else 27}, s{sg}, v{r}")
        if k: a("v_or_b32 v15, v15, v27")
    a(f"""
    v_cmp_ne_u32 vcc, 0, v15
    s_nop 3
    s_cmp_eq_u64 vcc, 0
    s_cbranch_scc1 {ok}
    s_sub_u32 s62, s62, 1
    s_cbranch_scc1 {ok}
    """)
    retry()
    a("s_waitcnt vmcnt(0)")
    a(f"s_branch {lp}")
    a(f"{ok}:")

def l2_finish(a, c):
    which = 0 if c.kind == "qkv" else 1
    v = G_CS
    tagcheck(a, [(v + 1, TAG)], lambda: a(f"buffer_load_dwordx2 v[{v}:{v+1}], v24, s[16:19], s67 offen sc0 sc1"))
    srd_off(a, 16, P_WS, FIN_OFF + which * 32768, 32768)
    a(f"""
    v_add_f32_dpp v{v}, v{v}, v{v} row_ror:4 row_mask:0xf bank_mask:0xf
    v_add_f32_dpp v{v}, v{v}, v{v} row_ror:8 row_mask:0xf bank_mask:0xf
    v_mov_b32 v{v+2}, v{v}
    v_permlane16_swap_b32 v{v}, v{v+2}
    v_add_f32 v{v}, v{v}, v{v+2}
    v_mov_b32 v{v+2}, v{v}
    v_permlane32_swap_b32 v{v}, v{v+2}
    v_add_f32 v{v}, v{v}, v{v+2}
    v_lshlrev_b32 v24, 3, v1
    s_lshl_b32 s60, s60, 5
    s_mov_b64 exec, 15
    buffer_store_dwordx2 v[{v}:{v+1}], v24, s[16:19], s60 offen sc0 sc1
    s_mov_b64 exec, -1
    """)
    return 1

def fin_issue(a, c):
    if c.kind == "qkv":
        a("""
        s_min_u32 s31, s38, 2
        s_lshl_b32 s60, s31, 13
        s_lshl_b32 s31, s25, 9
        s_add_u32 s60, s60, s31
        """)
    else:
        a("""
        s_lshl_b32 s60, s25, 11
        s_lshl_b32 s31, s38, 9
        s_add_u32 s60, s60, s31
        """)
    a(f"buffer_load_dwordx2 v[{G_CS}:{G_CS+1}], v24, s[16:19], s60 offen sc0 sc1")
    return 1

def fin_finish(a, c):
    regs = [(G_CS + 1, TAG)] + ([(G_RS + 2, TAG), (G_RS + 3, TAG + 1)] if c.kind == "qkv" else [])
    def retry():
        a(f"buffer_load_dwordx2 v[{G_CS}:{G_CS+1}], v24, s[16:19], s60 offen sc0 sc1")
        if c.kind == "qkv": gather_rs(a, c)
    tagcheck(a, regs, retry)
    a(f"""
    v_lshlrev_b32 v2, 2, v1
    s_lshl_b32 s30, s38, 8
    s_add_u32 s30, s30, {ST_CS}
    v_add_u32 v2, s30, v2
    ds_write_b32 v2, v{G_CS}
    """)
    return 0

def gather_finish_rs(a, c):
    a(f"""
    v_and_b32 v3, 31, v1
    s_lshl_b32 s30, s38, 5
    v_add_u32 v3, s30, v3
    v_lshlrev_b32 v2, 4, v3
    v_add_u32 v2, {ST_REC}, v2
    """)
    R = G_RS
    if c.kind == "qkv":
        a(f"""
        v_lshlrev_b32 v3, 2, v3
        v_add_u32 v3, {ST_MEAN}, v3
        ds_write_b128 v2, v[{R}:{R+3}]
        ds_write_b32 v3, v{R}
        ds_write_b32 v3, v{R+1} offset:512
        """)
    else:
        a(f"""
        v_mov_b32 v{R+1}, v{R}
        v_permlane32_swap_b32 v{R}, v{R+1}
        v_mul_f32 v{R}, {f32(1.0/1024)}, v{R}
        v_mul_f32 v{R+1}, {f32(1.0/1024)}, v{R+1}
        v_fma_f32 v{R+1}, -v{R}, v{R}, v{R+1}
        v_max_f32 v{R+1}, 0, v{R+1}
        v_add_f32 v{R+4}, {f32(1e-5)}, v{R+1}
        v_rsq_f32 v{R+1}, v{R+4}
        v_sqrt_f32 v{R+3}, v{R+4}
        v_sqrt_f32 v{R+2}, v{R+4}
        v_mul_f32 v{R+1}, {f32(-LOG2E)}, v{R+1}
        ds_write_b128 v2, v[{R}:{R+3}]
        """)
    a("s_waitcnt lgkmcnt(0)")
    return 0

def row_stats_issue(a, X):
    srd_off(a, 20, P_X, 0, 4 * MB)
    srd_off(a, 16, P_DBG, 0, 256)
    a(f"""
    s_lshl_b32 s30, s24, 7
    s_lshl_b32 s31, s25, 3
    s_add_u32 s30, s30, s31
    s_lshl_b32 s31, s3, 1
    s_add_u32 s33, s30, s31
    s_lshl_b32 s30, s33, 11
    v_lshlrev_b32 v{X+18}, 4, v1
    v_mov_b32 v{X+19}, 0
    """)
    for i in range(4):
        a(f"buffer_load_dwordx4 v[{X+4*i}:{X+4*i+3}], v{X+18}, s[20:23], s30 offen offset:{i*1024}")

def row_stats_finish(a, X, T):
    s0, q0, s1, q1 = T, T + 1, T + 2, T + 3
    a(f"buffer_load_dwordx2 v[{X+16}:{X+17}], v{X+19}, s[16:19], 0 offen sc0 sc1")
    a("s_mov_b32 s75, 0x3f803f80")
    for i in range(4): a(f"v_mov_b32 v{T+i}, 0")
    a("s_waitcnt vmcnt(1)")
    for d in range(8):
        for row in range(2):
            r = X + 8 * row + d
            a(f"v_dot2c_f32_bf16 v{T+2*row}, s75, v{r}")
            a(f"v_dot2c_f32_bf16 v{T+2*row+1}, v{r}, v{r}")
    a(f"""
    v_permlane32_swap_b32 v{s0}, v{q0}
    v_permlane32_swap_b32 v{s1}, v{q1}
    v_add_f32 v{s0}, v{s0}, v{q0}
    v_add_f32 v{s1}, v{s1}, v{q1}
    v_permlane16_swap_b32 v{s0}, v{s1}
    v_add_f32 v{s0}, v{s0}, v{s1}
    v_add_f32_dpp v{s0}, v{s0}, v{s0} quad_perm:[1,0,3,2] row_mask:0xf bank_mask:0xf
    v_add_f32_dpp v{s0}, v{s0}, v{s0} quad_perm:[2,3,0,1] row_mask:0xf bank_mask:0xf
    v_add_f32_dpp v{s0}, v{s0}, v{s0} row_half_mirror row_mask:0xf bank_mask:0xf
    v_add_f32_dpp v{s0}, v{s0}, v{s0} row_mirror row_mask:0xf bank_mask:0xf
    v_mov_b32 v{q0}, v{s0}
    v_permlane32_swap_b32 v{s0}, v{q0}
    v_mul_f32 v{s0}, {f32(1.0/1024)}, v{s0}
    v_mul_f32 v{q0}, {f32(1.0/1024)}, v{q0}
    v_fma_f32 v{q0}, -v{s0}, v{s0}, v{q0}
    v_max_f32 v{q0}, 0, v{q0}
    v_add_f32 v{q0}, {f32(1e-5)}, v{q0}
    v_rsq_f32 v{q0}, v{q0}
    """)
    lp = a.label("tagp"); dn = a.label("tagd")
    a(f"""
    s_mov_b32 s39, 0x100000
    {lp}:
    s_waitcnt vmcnt(0)
    v_readfirstlane_b32 s{TAG}, v{X+16}
    v_readfirstlane_b32 s{TAG+1}, v{X+17}
    s_nop 3
    s_cmp_lg_u32 s{TAG}, 0
    s_cbranch_scc1 {dn}
    s_sleep 1
    buffer_load_dwordx2 v[{X+16}:{X+17}], v{X+19}, s[16:19], 0 offen sc0 sc1
    s_sub_u32 s39, s39, 1
    s_cmp_lg_u32 s39, 0
    s_cbranch_scc1 {lp}
    {dn}:
    """)
    srd_off(a, 20, P_WS, RS1_OFF, 32768)
    a(f"""
    v_mov_b32 v{s1}, s{TAG}
    v_mov_b32 v{q1}, s{TAG+1}
    v_and_b32 v{T+4}, 16, v1
    s_lshl_b32 s30, s33, 4
    v_mov_b32 v{T+5}, {ST_TAG}
    s_mov_b64 exec, 0x10001
    buffer_store_dwordx4 v[{T}:{T+3}], v{T+4}, s[20:23], s30 offen sc0 sc1
    ds_write_b64 v{T+5}, v[{s1}:{q1}]
    s_mov_b64 exec, -1
    s_waitcnt lgkmcnt(0)
    """)

def w2_kg(t):
    if OPT["sk"]:
        if t < 8: return 7 * t, 4
        if t < 12: return 14 * (t - 8) + 3, 7
        if t < 20: return 7 * (t - 12) + 1, 4
        return 7 * (t - 20) + 2, 4
    if t < 16: return 7 * t, 4
    if t < 24: return 14 * (t - 16) + 3, 7
    if t < 40: return 7 * (t - 24) + 1, 4
    return 7 * (t - 40) + 2, 4

def set_soff(a, c, st, A=True, B=True):
    if c.kind != "w2": return
    if OPT["own"]:
        if st < 3:
            a(f"s_add_u32 s30, s43, s63"); off = st
        elif 10 <= st < 14:
            m = st - 10; i = 2 * m
            a(f"s_add_u32 s30, s66, s64"); off = 7 * (i + (i & 4)) + 3
        else:
            t, off = (st - 3, 0) if st < 10 else ((st - 14, 1) if st < 21 else (st - 21, 2))
            a(f"""
            s_add_u32 s30, s42, {t + 1}
            s_and_b32 s30, s30, 7
            s_and_b32 s31, s30, 4
            s_add_u32 s30, s30, s31
            s_mul_i32 s30, s30, {7*8192}
            s_add_u32 s30, s30, s66
            s_add_u32 s30, s30, s63
            """)
        if A: a(f"s_add_u32 s28, s30, {off*8192}")
        if B:
            a(f"s_add_u32 s29, s30, {off*8192}")
            a("s_lshl_b32 s29, s29, 3")
        return
    base, dh = w2_kg(st)
    off = base % 7
    hs = "s63" if dh == 4 else "s64"
    a(f"s_add_u32 s30, s66, {(base - off)*8192}")
    a(f"s_sub_u32 s31, s30, {112*8192}")
    a("s_cselect_b32 s30, s30, s31")
    a(f"s_add_u32 s30, s30, {hs}")
    if A: a(f"s_add_u32 s28, s30, {off*8192}")
    if B:
        a(f"s_add_u32 s29, s30, {off*8192}")
        a("s_lshl_b32 s29, s29, 3")

def w2_early_setup(a, c):
    a(f"""
    s_mul_i32 s41, s38, {c.NBW*1024}
    s_and_b32 s30, s38, 1
    s_mul_i32 s63, s30, {4*8192}
    s_mul_i32 s64, s30, {7*8192}
    s_and_b32 s30, s25, 4
    s_mul_i32 s66, s30, {(7 if OPT["own"] else 14)*8192}
    s_and_b32 s42, s25, 3
    s_lshr_b32 s30, s25, 3
    s_lshl_b32 s30, s30, 2
    s_add_u32 s42, s42, s30
    s_mul_i32 s43, s25, {7*8192}
    """)
    c.bstep = 64 * c.ldb
    b_setup(a, c, c.pvb, c.sb)

def pre_B(a, c, st0=0, st1=None):
    for st in range(st0, c.S if st1 is None else st1):
        set_soff(a, c, st, A=False)
        issueB(a, c, (st + c.bs0) % c.SB, c.kind != "w2")
    return (( c.S if st1 is None else st1) - st0) * c.NBW

def gemm_producer(a, c, preB, gated=None, side=None, after_issue=None, unroll_to=None):
    n = c.n; S = c.S; L = 4 + c.NBW
    side = side or {}
    U = n if unroll_to is None else unroll_to
    ops = []
    w2 = c.kind == "w2"
    def iss(st):
        if gated and st < (8 if c.sk else 16): gate(a, st, gated == "wide")
        if st == (1 if (c.kind == "w1" and OPT["own1"]) else 0): stamp(a, c.sid)
        doB = not (preB and st < c.SB)
        set_soff(a, c, st, True, doB)
        issueA(a, c, st % S, not w2); ops.extend([st] * 4)
        if doB:
            issueB(a, c, (st + c.bs0) % c.SB, not w2); ops.extend([st] * c.NBW)
        if after_issue:
            if st == 1 and c.kind == "w1" and OPT["own1"]: ops.extend([st] * after_issue(0))
            ops.extend([st] * after_issue(st))
    def wait(st):
        last = max(i for i, x in enumerate(ops) if x <= st)
        a(f"s_waitcnt vmcnt({min(63, len(ops) - 1 - last)})")
    def run_side(j, tag):
        for f in side.get(j, []): ops.extend([tag] * (f() or 0))
    if DIAG and OPT['steps']: a('s_mov_b32 s99, 0\nv_mov_b32 v252, 0')
    own0 = c.kind == "w1" and OPT["own1"]
    if own0:
        a(f"s_add_u32 s28, s28, {c.astep}")
        a(f"s_and_b32 s28, s28, {16*c.astep - 1}")
        a(f"s_waitcnt vmcnt({(S-1)*c.NBW})")
        issued = 1
    else:
        iss(0); issued = 1
        if not (c.kind == "qkv" and OPT["early0"]):
            run_side(-1, 1)
            iss(1); issued = 2
        wait(0)
    stamp(a, c.sid + 1)
    pbar(a)
    j = 0
    while j < n:
        allowed = j - 1 + S
        if issued >= U and issued < n: break
        cnt = 0
        if c.kind == "qkv" and OPT["early0"] == 1 and j == 0: run_side(-1, 1)
        while issued <= allowed and cnt < 2 and issued < U:
            if c.kind == "qkv" and OPT["early0"] >= 2 and issued == OPT["early0"]: run_side(-1, OPT["early0"])
            iss(issued); issued += 1; cnt += 1
        run_side(j, max(issued - 1, j + 2))
        j += 1
        if j < n: wait(j)
        pbar(a)
    if j < n:
        assert issued == j - 1 + S
        a(f"s_mov_b32 s27, {c.ABASE + (issued % S)*16384}")
        a(f"s_mov_b32 s32, {c.BBASE + (issued % S)*c.BB}")
        for (t0, t1, stride) in c.rounds:
            if t0 == c.gate_all_at:
                a(f"s_waitcnt vmcnt({(c.gate_all_at - c.prepoll_at) * L})")
                a(f"v_cmp_eq_u64 s[56:57], s[{TAG}:{TAG+1}], v[{PV_POLL}:{PV_POLL+1}]")
                a("s_nop 3")
                gate(a, "all", False)
            if t0 == c.prepoll_at:
                gate_setup(a, c.seamB, False)
                a(f"buffer_load_dwordx2 v[{PV_POLL}:{PV_POLL+1}], v26, s[{FLS}:{FLS+3}], s33 offen sc0 sc1")
            if t0 in c.round_hook: c.round_hook[t0]()
            lp = a.label("p_loop")
            set_soff(a, c, t0, True, False)
            a(f"s_mov_b32 s26, {t1 - t0}")
            a(f"{lp}:")
            a("s_lshl_b32 s29, s28, 3")
            issueA(a, c, None, False); issueB(a, c, None, False)
            a(f"s_add_u32 s28, s28, {stride*8192}")
            a(f"s_sub_u32 s31, s28, {112*8192}")
            a("s_cselect_b32 s28, s28, s31")
            a(f"s_waitcnt vmcnt({(S-2)*L})")
            if DIAG and OPT["steps"]:
                pbar(a)
                a(f"s_sub_u32 s26, s26, 1\ns_cmp_lg_u32 s26, 0\ns_cbranch_scc1 {lp}")
            else:
                a(f"s_sub_u32 s26, s26, 1\ns_cmp_lg_u32 s26, 0\ns_barrier\ns_cbranch_scc1 {lp}")
        j = n - S + 1
        stamp(a, c.sid + 2)
        while j < n:
            j += 1
            if j < n: a(f"s_waitcnt vmcnt({(n-1-j)*L})")
            pbar(a)
    stamp(a, c.sid + 3)
    pbar_flush(a, {'qkv':0,'wo':1,'w1':2,'w2':3}[c.kind])

def own_gate_setup(a, seam_id):
    a(f"""
    v_lshrrev_b32 v2, 2, v1
    s_add_u32 s30, s42, 1
    v_add_u32 v2, s30, v2
    v_and_b32 v2, 7, v2
    v_and_b32 v3, 4, v2
    v_add_u32 v2, v2, v3
    s_and_b32 s30, s25, 4
    v_add_u32 v2, s30, v2
    v_and_b32 v3, 3, v1
    v_lshl_add_u32 v2, v2, 2, v3
    v_lshlrev_b32 v26, 3, v2
    s_lshl_b32 s33, s24, 10
    s_add_u32 s33, s33, {seam_id*16384}
    s_mov_b64 s[56:57], 0
    s_mov_b32 s39, 0x200000
    """)

def w2_producer(a, c):
    n = c.n; S = c.S
    ops = []
    def A(st):
        if 3 <= st < 10: gate(a, st - 3, False)
        if st == 3: stamp(a, c.sid)
        if st == (10 if OPT["w1t"] else 14):
            last = max(i for i, x in enumerate(ops) if x == -7)
            a(f"s_waitcnt vmcnt({len(ops) - 1 - last})")
            a(f"v_cmp_eq_u64 s[56:57], s[{TAG}:{TAG+1}], v[{PV_POLL+2}:{PV_POLL+3}]")
            a("s_mov_b32 s33, s37")
            a("s_nop 3")
            gate(a, "all", False)
        set_soff(a, c, st, True, False)
        issueA(a, c, st % S, False); ops.extend([st] * 4)
    def B(st, same=False):
        if same: a("s_lshl_b32 s29, s28, 3")
        else: set_soff(a, c, st, False, True)
        issueB(a, c, st % S, False); ops.extend([st] * c.NBW)
    def wait(st):
        last = max(i for i, x in enumerate(ops) if 0 <= x <= st)
        a(f"s_waitcnt vmcnt({min(63, len(ops) - 1 - last)})")
    if DIAG and OPT['steps']: a('s_mov_b32 s99, 0\nv_mov_b32 v252, 0')
    own_gate_setup(a, 0)
    apoll = f"buffer_load_dwordx2 v[{PV_POLL}:{PV_POLL+1}], v26, s[{FLS}:{FLS+3}], s33 offen sc0 sc1"
    def acheck(cnt):
        a(f"s_waitcnt vmcnt({cnt})")
        a(f"v_cmp_eq_u64 s[56:57], s[{TAG}:{TAG+1}], v[{PV_POLL}:{PV_POLL+1}]")
        a("s_nop 3")
    if OPT["w1t"]:
        a("s_barrier")
        pre_B(a, c, 1, 4)
        a("s_barrier")
        a(apoll)
        acheck(0)
        sk = a.label("skip_a3"); sk2 = a.label("skip_a3b")
        a(f"""
        s_mov_b32 s40, 0
        s_and_b32 s30, s56, 15
        s_cmp_lg_u32 s30, 15
        s_cbranch_scc1 {sk}
        s_mov_b32 s40, 1
        """)
        set_soff(a, c, 3, True, False)
        issueA(a, c, 3, False)
        a(f"{sk}:")
        pbar(a)
        pbar(a)
        B(4)
        a(f"s_cmp_lg_u32 s40, 0")
        a(f"s_cbranch_scc1 {sk2}")
        A(3)
        a(f"{sk2}:")
        A(4)
        pbar(a)
        A(5); B(5, True)
    else:
        a("s_waitcnt vmcnt(0)")
        pbar(a)
        om = OPT["ownm"]
        pbar(a)
        if om == 1: a(apoll)
        B(4)
        pbar(a)
        if om == 1:
            acheck(4); A(3); B(5); A(4); A(5)
        else:
            B(5); A(3); A(4); A(5)
    wait(3)
    stamp(a, c.sid + 1)
    pbar(a)
    for j in range(3, n):
        st = j - 1 + S
        if st < n:
            if st == (OPT["pb"] if OPT["w1t"] else 12):
                a(f"s_add_u32 s37, s33, {3*16384}")
                a(f"buffer_load_dwordx2 v[{PV_POLL+2}:{PV_POLL+3}], v26, s[{FLS}:{FLS+3}], s37 offen sc0 sc1")
                ops.append(-7)
            A(st); B(st, True)
        if j + 1 < n: wait(j + 1)
        pbar(a)
    stamp(a, c.sid + 3)
    pbar_flush(a, 3)

def touch(a, ptr, total_bytes, sr_=20):
    nl = total_bytes // 128 // 1024
    srd_off(a, sr_, ptr, 0, total_bytes)
    a(f"""
    s_lshl_b32 s30, s2, 2
    s_add_u32 s30, s30, s38
    s_mul_i32 s30, s30, {nl*128}
    v_lshlrev_b32 v2, 7, v1
    s_mov_b32 exec_lo, {hex(((1 << nl) - 1) & 0xffffffff)}
    s_mov_b32 exec_hi, {hex(((1 << nl) - 1) >> 32)}
    buffer_load_dword v253, v2, s[{sr_}:{sr_+3}], s30 offen
    s_mov_b64 exec, -1
    """)
    return 1

def xtouch_setup(a, ptr, nbytes, sr_, vreg):
    srd_off(a, sr_, ptr, 0, nbytes)
    a(f"""
    v_lshrrev_b32 v2, 2, v1
    v_lshlrev_b32 v2, 11, v2
    v_and_b32 v3, 3, v1
    v_lshl_add_u32 v2, v3, 7, v2
    s_and_b32 s30, s2, 3
    s_lshl_b32 s30, s30, 9
    s_lshl_b32 s31, s38, 14
    s_add_u32 s30, s30, s31
    v_add_u32 v2, s30, v2
    v_mov_b32 v3, 0x40000000
    v_cmp_gt_u32 vcc, 32, v1
    v_cndmask_b32 v{vreg}, v3, v2, vcc
    """)

def w2_xtouch(a, q):
    a(f"""
    s_lshr_b32 s30, s2, 4
    s_mul_i32 s30, s30, {7*65536}
    s_bfe_u32 s31, s2, 0x10003
    s_mul_i32 s31, s31, {4*65536 if q < 3 else 0x20000000}
    s_add_u32 s30, s30, s31
    s_add_u32 s30, s30, {q*65536}
    buffer_load_dword v253, v23, s[44:47], s30 offen
    """)
    return 1

def attention_v1(a):
    SC = (32 ** -0.5) * LOG2E
    vF, vL, vQH = 2, 4, 5
    Q = 8; O = 16; SB = 32; F = 176; T = 248
    a(f"""
    v_bfe_u32 v6, v1, 4, 1
    v_lshlrev_b32 v{vF}, 10, v6
    v_lshrrev_b32 v6, 5, v1
    v_lshl_add_u32 v{vF}, v6, 8, v{vF}
    v_and_b32 v7, 15, v1
    v_lshl_add_u32 v{vF}, v7, 4, v{vF}
    v_and_b32 v7, 31, v1
    v_lshlrev_b32 v6, 2, v6
    v_sub_u32 v{vQH}, v7, v6
    s_lshr_b32 s34, s3, 2            ; hh
    s_and_b32 s35, s3, 3             ; qb
    s_mul_i32 s30, s34, {HEADW}
    s_lshl_b32 s31, s35, 11
    s_add_u32 s30, s30, s31
    v_add_u32 v{vL}, s30, v{vF}
    ds_read_b128 v[{Q}:{Q+3}], v{vL} offset:49152
    ds_read_b128 v[{Q+4}:{Q+7}], v{vL} offset:{49152+512}
    """)
    def fr(b, i): return F + b * 8 + i * 4
    rd = []
    for b in range(9):
        for i in range(2):
            rd.append(f"ds_read_b128 v[{fr(b,i)}:{fr(b,i)+3}], v{vL} offset:{b*2048 + i*512}")
    for x in rd[:8]: a(x)
    for r in range(16):
        cst = 8 * (r >> 2) + (r & 3)
        a(f"v_cmp_gt_i32 s[{40+2*r}:{41+2*r}], {cst}, v{vQH}")
    nissued = 8
    rv = []
    for b in range(9):
        for i in range(2):
            rv.append(f"ds_read_b128 v[{fr(b,i)}:{fr(b,i)+3}], v{vL} offset:{24576 + b*2048 + i*512}")
    for b in range(9):
        a(f"s_waitcnt lgkmcnt({nissued - (2*b+2)})")
        s = SB + 16 * b
        a(f"v_mfma_f32_32x32x16_bf16 v[{s}:{s+15}], v[{fr(b,0)}:{fr(b,0)+3}], v[{Q}:{Q+3}], 0")
        if nissued < 18: a(rd[nissued]); nissued += 1
        a(f"v_mfma_f32_32x32x16_bf16 v[{s}:{s+15}], v[{fr(b,1)}:{fr(b,1)+3}], v[{Q+4}:{Q+7}], v[{s}:{s+15}]")
        if nissued < 18: a(rd[nissued]); nissued += 1
    for x in rv[:14]: a(x)
    skip = a.label("at_valid")
    a(f"""
    s_lshl_b32 s30, s24, 2
    s_add_u32 s30, s30, s35
    s_cmp_ge_u32 s30, 8
    s_cbranch_scc1 {skip}
    """)
    for b in range(8):
        nb = a.label("at_nb")
        a(f"s_cmp_ge_u32 s30, {8-b}")
        a(f"s_cbranch_scc1 {nb}")
        for r in range(16):
            a(f"v_mov_b32 v{SB+16*b+r}, 0xff800000")
        a(f"{nb}:")
    a(f"{skip}:")
    mx = T; mx2 = T + 1; sm = T + 2
    a(f"v_max_f32 v{mx}, v{SB+16}, v{SB+17}")
    a(f"v_max_f32 v{mx2}, v{SB+18}, v{SB+19}")
    idx = list(range(20, 128))
    for k in range(0, len(idx), 2):
        m = mx if (k // 2) % 2 == 0 else mx2
        a(f"v_max3_f32 v{m}, v{SB+idx[k]}, v{SB+idx[k+1]}, v{m}")
    for r in range(16):
        a(f"v_cndmask_b32 v{SB+r}, v{SB+128+r}, v{SB+r}, s[{40+2*r}:{41+2*r}]")
    for k in range(0, 16, 2):
        m = mx if (k // 2) % 2 == 0 else mx2
        a(f"v_max3_f32 v{m}, v{SB+k}, v{SB+k+1}, v{m}")
    for x in rv[14:]: a(x)
    a(f"""
    v_max_f32 v{mx}, v{mx}, v{mx2}
    v_mov_b32 v{mx2}, v{mx}
    v_permlane32_swap_b32 v{mx}, v{mx2}
    v_max_f32 v{mx}, v{mx}, v{mx2}
    v_mov_b32 v{Q}, {f32(SC)}
    v_mov_b32 v{Q+1}, {f32(SC)}
    v_mul_f32 v{Q+2}, {f32(-SC)}, v{mx}
    v_mul_f32 v{Q+3}, {f32(-SC)}, v{mx}
    v_mov_b32 v{sm}, 0
    v_mov_b32 v{sm+1}, 0
    s_waitcnt lgkmcnt(0)
    s_barrier
    """)
    sk = a.label("skip_x1")
    a(f"""
    s_cmp_lt_u32 s3, 4
    s_cbranch_scc1 {sk}
    s_mul_i32 s30, s24, {64*7168}
    s_mul_i32 s31, s38, 7168
    """)
    for i in range(7):
        if i % 4 == 0: a(f"s_add_u32 m0, s31, {XB1 + i*1024}")
        a(f"buffer_load_dwordx4 v{O+i}, s[20:23], s30 offen offset:{(i&3)*1024} lds")
    if OPT["sk"] and OPT["sent"] == 1:
        sk2 = a.label("skip_x2")
        a(f"s_branch {sk2}")
        a(f"{sk}:")
        srd_off(a, 20, P_WS, XP_OFF, 8 * MB)
        a(f"""
        s_lshl_b32 s30, s24, 19
        s_lshl_b32 s31, s3, 13
        s_add_u32 s30, s30, s31
        s_lshl_b32 s31, s25, 15
        s_add_u32 s30, s30, s31
        v_lshlrev_b32 v{O+4}, 4, v1
        """)
        for i in range(4): a(f"v_mov_b32 v{O+i}, -1")
        for mt in range(4):
            a(f"buffer_store_dwordx4 v[{O}:{O+3}], v{O+4}, s[20:23], s30 offen offset:{mt*1024} sc0 sc1")
        a(f"{sk2}:")
    else:
        a(f"{sk}:")
    def pack(s):
        for d, r in [(0, 0), (1, 2), (2, 8), (3, 10), (4, 4), (5, 6), (6, 12), (7, 14)]:
            a(f"v_cvt_pk_bf16_f32 v{s+d}, v{s+r}, v{s+r+1}")
    first = [True]
    def pv(b, s):
        c0 = "0" if first[0] else f"v[{O}:{O+15}]"
        first[0] = False
        a(f"v_mfma_f32_32x32x16_bf16 v[{O}:{O+15}], v[{fr(b,0)}:{fr(b,0)+3}], v[{s}:{s+3}], {c0}")
        a(f"v_mfma_f32_32x32x16_bf16 v[{O}:{O+15}], v[{fr(b,1)}:{fr(b,1)+3}], v[{s+4}:{s+7}], v[{O}:{O+15}]")
    pending = None
    for b in [0, 1, 2, 3, 4, 5, 6, 7]:
        s = SB + 16 * b
        for r in range(0, 16, 2):
            a(f"v_pk_fma_f32 v[{s+r}:{s+r+1}], v[{s+r}:{s+r+1}], v[{Q}:{Q+1}], v[{Q+2}:{Q+3}]")
        if pending is not None:
            for p in pending: pv(*p)
            pending = None
        for r in range(16):
            a(f"v_exp_f32 v{s+r}, v{s+r}")
        for r in range(0, 16, 2):
            a(f"v_pk_add_f32 v[{sm}:{sm+1}], v[{sm}:{sm+1}], v[{s+r}:{s+r+1}]")
        if b == 0:
            s8 = SB + 128
            for r in range(16):
                a(f"v_cndmask_b32 v{s8+r}, v{s+r}, 0, s[{40+2*r}:{41+2*r}]")
                a(f"v_cndmask_b32 v{s+r}, 0, v{s+r}, s[{40+2*r}:{41+2*r}]")
            pack(s); pack(s8)
            pending = [(0, s), (8, s8)]
        else:
            pack(s)
            pending = [(b, s)]
    for p in pending: pv(*p)
    srd_off(a, 16, P_WS, O_OFF, 4 * MB)
    a(f"""
    v_add_f32 v{sm}, v{sm}, v{sm+1}
    v_mov_b32 v{sm+1}, v{sm}
    v_permlane32_swap_b32 v{sm}, v{sm+1}
    v_add_f32 v{sm}, v{sm}, v{sm+1}
    v_rcp_f32 v{sm+1}, v{sm}
    v_rcp_f32 v{sm}, v{sm}
    s_lshl_b32 s30, s24, 18
    s_lshl_b32 s31, s25, 14
    s_add_u32 s30, s30, s31
    s_lshl_b32 s31, s34, 13
    s_add_u32 s30, s30, s31
    s_lshl_b32 s31, s35, 11
    s_add_u32 s30, s30, s31
    """)
    for r in range(0, 16, 2):
        a(f"v_pk_mul_f32 v[{O+r}:{O+r+1}], v[{O+r}:{O+r+1}], v[{sm}:{sm+1}]")
    pack(O)
    a(f"""
    buffer_store_dwordx4 v[{O}:{O+3}], v{vF}, s[16:19], s30 offen sc0 sc1
    buffer_store_dwordx4 v[{O+4}:{O+7}], v{vF}, s[16:19], s30 offen offset:512 sc0 sc1
    """)
    stamp(a, 10)
    signal(a, 1, 3, SB)
    stamp(a, 11)

def attention(a):
    if not OPT["att2"]: return attention_v1(a)
    SC = (32 ** -0.5) * LOG2E
    vF, vL, vQH = 2, 4, 5
    Q = 8; O = 16; SB = 32; F = 176; T = 248
    MK = O + 8
    ONES = Q + 4
    LS = SB + 128
    mx = T; mx2 = T + 1
    a(f"""
    v_bfe_u32 v6, v1, 4, 1
    v_lshlrev_b32 v{vF}, 10, v6
    v_lshrrev_b32 v6, 5, v1
    v_lshl_add_u32 v{vF}, v6, 8, v{vF}
    v_and_b32 v7, 15, v1
    v_lshl_add_u32 v{vF}, v7, 4, v{vF}
    s_lshr_b32 s34, s3, 2
    s_and_b32 s35, s3, 3
    s_mul_i32 s30, s34, {HEADW}
    s_lshl_b32 s31, s35, 11
    s_add_u32 s30, s30, s31
    v_add_u32 v{vL}, s30, v{vF}
    ds_read_b128 v[{Q}:{Q+3}], v{vL} offset:49152
    ds_read_b128 v[{Q+4}:{Q+7}], v{vL} offset:{49152+512}
    """)
    def fr(b, i): return F + b * 8 + i * 4
    order = [0, 8, 1, 2, 3, 4, 5, 6, 7]
    rd = [f"ds_read_b128 v[{fr(b,i)}:{fr(b,i)+3}], v{vL} offset:{b*2048 + i*512}" for b in order for i in range(2)]
    rv = [f"ds_read_b128 v[{fr(b,i)}:{fr(b,i)+3}], v{vL} offset:{24576 + b*2048 + i*512}" for b in order for i in range(2)]
    for x in rd[:8]: a(x)
    a(f"""
    v_and_b32 v7, 31, v1
    v_lshlrev_b32 v6, 2, v6
    v_sub_u32 v{vQH}, v7, v6
    v_mov_b32 v6, 0xffff0000
    """)
    msk = lambda r: f"s[{40+2*r}:{41+2*r}]"
    for r in range(16):
        a(f"v_cmp_gt_i32 {msk(r)}, {8 * (r >> 2) + (r & 3)}, v{vQH}")
    PK = [(0, 0), (1, 2), (2, 8), (3, 10), (4, 4), (5, 6), (6, 12), (7, 14)]
    fill = {k: [] for k in range(9)}
    for d, r in PK:
        fill[d // 4].append(f"v_cndmask_b32 v{MK+d}, 0, v6, {msk(r+1)}")
        fill[d // 4].append(f"v_cndmask_b32 v{MK+d}, v{MK+d}, -1, {msk(r)}")
    def merge(): return [f"v_cndmask_b32 v{SB+r}, v{SB+128+r}, v{SB+r}, {msk(r)}" for r in range(16)]
    def maxblk(b, first=False):
        o = []; s_ = SB + 16 * b
        for k in range(0, 16, 2):
            m = mx if (k // 2) % 2 == 0 else mx2
            if first and k < 4: o.append(f"v_max_f32 v{m}, v{s_+k}, v{s_+k+1}")
            else: o.append(f"v_max3_f32 v{m}, v{s_+k}, v{s_+k+1}, v{m}")
        return o
    mg = merge()
    fill[3] += mg[:8]; fill[4] += mg[8:] + maxblk(1, True)[:4]
    fill[5] += maxblk(1, True)[4:] + maxblk(0); fill[6] += maxblk(2) + maxblk(3)[:4]
    fill[7] += maxblk(3)[4:] + maxblk(4); fill[8] += maxblk(5)
    nissued = 8
    late = []
    for k, b in enumerate(order):
        a(f"s_waitcnt lgkmcnt({nissued - (2*k+2)})")
        s_ = SB + 16 * b
        fl = fill[k]; h = len(fl) // 2
        if OPT["bis"] == 1: h = 0
        if OPT["bis"] == 2: late += fl; fl = []
        a(f"v_mfma_f32_32x32x16_bf16 v[{s_}:{s_+15}], v[{fr(b,0)}:{fr(b,0)+3}], v[{Q}:{Q+3}], 0")
        if nissued < 18: a(rd[nissued]); nissued += 1
        for x in fl[:h]: a(x)
        a(f"v_mfma_f32_32x32x16_bf16 v[{s_}:{s_+15}], v[{fr(b,1)}:{fr(b,1)+3}], v[{Q+4}:{Q+7}], v[{s_}:{s_+15}]")
        if nissued < 18: a(rd[nissued]); nissued += 1
        for x in fl[h:]: a(x)
    for x in rv[:12]: a(x)
    for x in late + maxblk(6) + maxblk(7): a(x)
    skip = a.label("at_valid")
    a(f"""
    s_lshl_b32 s30, s24, 2
    s_add_u32 s30, s30, s35
    s_cmp_ge_u32 s30, 8
    s_cbranch_scc1 {skip}
    v_mov_b32 v7, 0xff800000
    """)
    for r in range(16):
        a(f"v_cndmask_b32 v{SB+r}, v{SB+r}, v7, {msk(r)}")
    for b in range(1, 8):
        nb = a.label("at_nb")
        a(f"s_cmp_ge_u32 s30, {8-b}")
        a(f"s_cbranch_scc1 {nb}")
        for r in range(16):
            a(f"v_mov_b32 v{SB+16*b+r}, v7")
        a(f"{nb}:")
    for b in range(8):
        for x in maxblk(b, b == 0): a(x)
    a(f"{skip}:")
    for x in rv[12:]: a(x)
    a(f"""
    v_max_f32 v{mx}, v{mx}, v{mx2}
    v_mov_b32 v{Q}, {f32(SC)}
    v_mov_b32 v{Q+1}, {f32(SC)}
    v_mov_b32 v{mx2}, v{mx}
    """)
    for i in range(4): a(f"v_mov_b32 v{ONES+i}, 0x3f803f80")
    a(f"""
    v_permlane32_swap_b32 v{mx}, v{mx2}
    v_max_f32 v{mx}, v{mx}, v{mx2}
    v_mul_f32 v{Q+2}, {f32(-SC)}, v{mx}
    v_mul_f32 v{Q+3}, {f32(-SC)}, v{mx}
    """)
    def free_lds():
        a("s_waitcnt lgkmcnt(0)")
        a("s_barrier")
        sk = a.label("skip_x1")
        a(f"""
        s_cmp_lt_u32 s3, 4
        s_cbranch_scc1 {sk}
        """)
        if OPT["deepb"]:
            cw = mk("wo", **CFG["wo"]); cw.bstep = 64 * cw.ldb; cw.pvb = 250; cw.s35 = "s33"
            a("s_lshl_b32 s33, s38, 11")
            pre_B(a, cw, 4, 12)
        a(f"""
        s_mul_i32 s30, s24, {64*7168}
        s_mul_i32 s31, s38, 7168
        """)
        for i in range(7):
            if i % 4 == 0: a(f"s_add_u32 m0, s31, {xb1() + i*1024}")
            a(f"buffer_load_dwordx4 v{O+i}, s[20:23], s30 offen offset:{(i&3)*1024} lds")
        a(f"{sk}:")
    def pack(s_):
        return [f"v_cvt_pk_bf16_f32 v{s_+d}, v{s_+r}, v{s_+r+1}" for d, r in PK]
    fo = [True]; fl_ = [True]
    def pv(b, s_):
        o = []
        for i in range(2):
            c0 = "0" if fo[0] else f"v[{O}:{O+15}]"; fo[0] = False
            o.append(f"v_mfma_f32_32x32x16_bf16 v[{O}:{O+15}], v[{fr(b,i)}:{fr(b,i)+3}], v[{s_+4*i}:{s_+4*i+3}], {c0}")
        return o
    def rsum(s_):
        o = []
        for i in range(2):
            c0 = "0" if fl_[0] else f"v[{LS}:{LS+15}]"; fl_[0] = False
            o.append(f"v_mfma_f32_32x32x16_bf16 v[{LS}:{LS+15}], v[{ONES}:{ONES+3}], v[{s_+4*i}:{s_+4*i+3}], {c0}")
        return o
    pend = []
    BARB = OPT["attbar"]
    held = []
    for b in range(8):
        s_ = SB + 16 * b
        if b == BARB:
            free_lds(); pend += [x for bb, ss in held for x in pv(bb, ss)]; held = []
        work = [f"v_pk_fma_f32 v[{s_+r}:{s_+r+1}], v[{s_+r}:{s_+r+1}], v[{Q}:{Q+1}], v[{Q+2}:{Q+3}]" for r in range(0, 16, 2)]
        work += [f"v_exp_f32 v{s_+r}, v{s_+r}" for r in range(16)]
        work += pack(s_)
        take = pend[:6]; pend = pend[6:]
        for x in {3: interleave(work, take, 7, 1, 6), 5: interleave(work, take, 7, 3, 1), 6: interleave(work, take, 1, 1, 1), 7: interleave(work, take, 7, 8, 2), 8: interleave(work, take, 23, 1, 1)}.get(OPT["bis"], interleave(work, take, 2, 4, 1)): a(x)
        if b == 0:
            for d in range(8): a(f"v_and_b32 v{s_+8+d}, v{MK+d}, v{s_+d}")
            for d in range(8): a(f"v_xor_b32 v{s_+d}, v{s_+8+d}, v{s_+d}")
            pend += rsum(s_ + 8) + rsum(s_)
            blocks = [(0, s_ + 8), (8, s_)]
        else:
            pend += rsum(s_)
            blocks = [(b, s_)]
        if b < BARB: held += blocks
        else: pend += [x for bb, ss in blocks for x in pv(bb, ss)]
    for x in pend: a(x)
    srd_off(a, 16, P_WS, O_OFF, 4 * MB)
    a(f"""
    s_lshl_b32 s30, s24, 18
    s_lshl_b32 s31, s25, 14
    s_add_u32 s30, s30, s31
    s_lshl_b32 s31, s34, 13
    s_add_u32 s30, s30, s31
    s_lshl_b32 s31, s35, 11
    s_add_u32 s30, s30, s31
    """)
    if OPT["bis"] == 4: a("s_nop 15\ns_nop 15")
    a(f"v_rcp_f32 v{mx}, v{LS}")
    a(f"v_rcp_f32 v{mx+1}, v{LS}")
    for r in range(0, 16, 2):
        a(f"v_pk_mul_f32 v[{O+r}:{O+r+1}], v[{O+r}:{O+r+1}], v[{mx}:{mx+1}]")
    for x in pack(O): a(x)
    a(f"""
    buffer_store_dwordx4 v[{O}:{O+3}], v{vF}, s[16:19], s30 offen sc0 sc1
    buffer_store_dwordx4 v[{O+4}:{O+7}], v{vF}, s[16:19], s30 offen offset:512 sc0 sc1
    """)
    stamp(a, 10)
    signal(a, 1, 3, SB)
    stamp(a, 11)

def build(header_src=None):
    a = Asm()
    C = {k: mk(k, **v) for k, v in CFG.items()}
    kernel_begin(a, KNAME)
    if OPT["t0"]: a("s_memrealtime s[96:97]")
    a(f"""
    s_cmp_ge_u32 s2, 256
    s_cbranch_scc1 L_end
    s_load_dwordx16 s[80:95], s[0:1], 0
    s_load_dwordx2 s[4:5], s[0:1], 64
    v_lshrrev_b32 v2, 6, v0
    v_and_b32 v1, 63, v0
    v_readfirstlane_b32 s3, v2
    s_getreg_b32 s74, hwreg(HW_REG_XCC_ID)
    s_and_b32 s74, s74, 15
    s_mov_b32 s{TAG}, 0
    s_mov_b32 s{TAG+1}, 0
    s_waitcnt lgkmcnt(0)
    """)
    srd_off(a, FLS, P_WS, FL_OFF, 131072)
    if DIAG: a(f"v_mov_b32 v{VS}, 0")
    stamp(a, 63)
    a("""
    s_cmp_ge_u32 s3, 4
    s_cbranch_scc1 L_prod
    """)
    a("""
    s_or_b32 s30, s2, s3
    s_cmp_lg_u32 s30, 0
    s_cbranch_scc1 L_notag
    """)
    srd_off(a, 16, P_DBG, 0, 256)
    a("""
    """)
    a("s_mov_b64 s[30:31], s[96:97]" if OPT["t0"] else "s_memrealtime s[30:31]")
    a("""
    v_mov_b32 v4, 0
    s_waitcnt lgkmcnt(0)
    s_or_b32 s30, s30, 1
    v_mov_b32 v2, s30
    v_mov_b32 v3, s31
    s_mov_b64 exec, 1
    buffer_store_dwordx2 v[2:3], v4, s[16:19], 0 offen sc0 sc1
    s_mov_b64 exec, -1
    L_notag:
    """)
    if OPT["cpf"]:
        a(f"""
        s_getpc_b64 s[30:31]
        L_pc:
        s_sub_u32 s16, s30, L_pc-{KNAME}
        s_subb_u32 s17, s31, 0
        s_mov_b32 s18, L_code_end-{KNAME}
        s_mov_b32 s19, 0x20000
        s_lshr_b32 s30, s2, 3
        s_lshl_b32 s30, s30, 11
        s_lshl_b32 s31, s3, 9
        s_add_u32 s30, s30, s31
        v_lshlrev_b32 v2, 7, v1
        s_mov_b64 exec, 15
        buffer_load_dword v253, v2, s[16:19], s30 offen
        s_mov_b64 exec, -1
        """)
    if OPT["prio"]: a(f"s_setprio {OPT['prio']}")
    gemm_consumer(a, C["qkv"])
    a("s_barrier")
    a("L_attn:")
    stamp(a, 9)
    attention(a)
    a("""
    s_barrier
    s_cmp_ge_u32 s3, 4
    s_cbranch_scc1 L_prod2
    """)
    colsum_tile(a, C["w1"], xb1(), "s3", 1, 32)
    if OPT["deepb"]: a("s_barrier")
    gemm_consumer(a, C["wo"])
    gemm_consumer(a, C["w1"])
    gemm_consumer(a, C["w2"])
    if OPT["spin"]:
        a(f"""
        s_waitcnt vmcnt(0)
        L_spin:
        s_memrealtime s[96:97]
        s_waitcnt lgkmcnt(0)
        s_sub_u32 s96, s96, s{TAG}
        s_cmp_lt_u32 s96, {OPT["spin"]}
        s_cbranch_scc1 L_spin
        """)
    stamp_flush(a)
    a("s_endpgm")
    C["w2"].ool()
    if OPT["reslate"]: C["wo"].ool()
    a("L_prod:")
    a("s_sub_u32 s38, s3, 4")
    c = C["qkv"]
    prod_setup(a, c)
    cq = c
    def q_extra():
        vb, sr_ = PV_B, 12
        if OPT["dil"]:
            cx = mk("qkv", **CFG["qkv"]); cx.pstride = 128; cx.bcol = 384
            vb, sr_ = 16, 20
            b_setup(a, cx, vb, sr_)
        a(f"s_mul_i32 s33, s24, {64*cq.ldb}")
        for i in range(cq.NBW):
            if i % 4 == 0: a(f"s_add_u32 m0, s35, {XB0 + i*1024}")
            a(f"buffer_load_dwordx4 v{vb+i}, s[{sr_}:{sr_+3}], s33 offen offset:{(i&3)*1024} lds")
        return cq.NBW
    def q_colsum(part=None):
        if part in (None, 0):
            a(f"""
            v_mov_b32 v2, {ST_TAG}
            ds_read_b64 v[{PV_RD}:{PV_RD+1}], v2
            s_waitcnt lgkmcnt(0)
            v_readfirstlane_b32 s{TAG}, v{PV_RD}
            v_readfirstlane_b32 s{TAG+1}, v{PV_RD+1}
            """)
        a("s_setprio 3")
        colsum_tile(a, cq, XB0, "s38", 0, PV_RD, part)
        a("s_setprio 0")
        return 1 if part in (None, 3) else 0
    def hi(f):
        def g():
            a("s_setprio 3"); r = f(); a("s_setprio 0"); return r
        return g
    side = {-1: [q_extra], max(OPT['early0'], 1): [q_colsum], 12: [lambda: gather_cs_setup(a, cq), lambda: gather_rs_setup(a, cq)],
            14: [lambda: gather_rs(a, cq), lambda: gather_cs(a, 0, 16)]}
    side[15] = [lambda: a("s_waitcnt vmcnt(0)"), hi(lambda: gather_finish_cs(a, cq)), hi(lambda: gather_finish_rs(a, cq))]
    if OPT["two"] & 1:
        q2 = OPT["q2"]
        side[12] = [lambda: gather_rs_setup(a, cq)]
        side[q2] = [hi(lambda: l2_issue(a, cq))]
        side[q2 + 2] = [hi(lambda: l2_finish(a, cq))]
        side[14] = [lambda: gather_rs(a, cq), lambda: fin_issue(a, cq)]
        side[15] = [lambda: a("s_waitcnt vmcnt(0)"), hi(lambda: fin_finish(a, cq)), hi(lambda: gather_finish_rs(a, cq))]
    if OPT["cspl"]:
        cb = max(OPT["early0"], 1)
        del side[cb]
        for k in range(4): side.setdefault(cb + k, []).append(lambda k=k: q_colsum(k))
    if OPT["help"]:
        def help_setup():
            srd_off(a, 44, P_WQKV, 0, 6 * MB)
            a(f"""
            s_and_b32 s30, s25, 3
            s_lshl_b32 s31, s30, 11
            s_or_b32 s70, s25, 3
            s_lshl_b32 s70, s70, 7
            s_add_u32 s31, s31, s70
            v_mov_b32 v2, 6144
            v_mul_lo_u32 v23, v1, v2
            v_add_u32 v23, s31, v23
            s_and_b32 s70, s24, 7
            s_cmp_eq_u32 s30, 3
            s_cselect_b32 s70, 99, s70
            s_and_b32 s30, s25, 4
            s_cselect_b32 s70, 99, s70
            s_cmp_lg_u32 s38, 0
            s_cselect_b32 s70, 99, s70
            """)
            return 0
        def helper(k):
            def f():
                sk = a.label("skip_help")
                a(f"""
                s_cmp_lg_u32 s70, {k & 7}
                s_cbranch_scc1 {sk}
                s_mov_b32 s30, {(k + OPT['help']) * 64 * 6144}
                buffer_load_dword v253, v23, s[44:47], s30 offen
                {sk}:
                """)
                return 0
            return f
        help_setup()
        for k in range(0, 16 - OPT["help"]): side.setdefault(k, []).insert(0, helper(k))
    if OPT["sk"] and OPT["sent"] == 2:
        def prefill(k):
            def f():
                if k == 0:
                    srd_off(a, 16, P_WS, XP_OFF, 8 * MB)
                    a(f"""
                    s_lshl_b32 s62, s24, 19
                    s_lshl_b32 s31, s38, 13
                    s_add_u32 s62, s62, s31
                    s_lshl_b32 s31, s25, 15
                    s_add_u32 s62, s62, s31
                    v_lshlrev_b32 v27, 4, v1
                    """)
                    for i in range(4): a(f"v_mov_b32 v{28+i}, -1")
                a(f"buffer_store_dwordx4 v[28:31], v27, s[16:19], s62 offen offset:{k*1024} sc0 sc1")
                return 1
            return f
        for k in range(4): side.setdefault(5 + (k // OPT["pfg"]), []).append(prefill(k))
    if OPT["tlb"]:
        def tlbwarm():
            G = OPT["tlb"] * MB // 2 if OPT["tlb"] > 1 else 2 * MB
            a(f"s_mul_i32 s30, s38, {12*MB}")
            a(f"s_add_u32 s30, s30, {8*MB}")
            a(f"s_add_u32 s98, s{P_WS}, s30")
            a(f"s_addc_u32 s99, s{P_WS+1}, 0")
            for k in range(6):
                a(f"s_load_dword s100, s[98:99], 0")
                a(f"s_add_u32 s98, s98, {2*MB}")
                a(f"s_addc_u32 s99, s99, 0")
            a(f"s_lshl_b32 s30, s38, 21")
            for ptr, npg in ((P_W1, 4), (P_OUT, 2), (P_WO, 1)):
                a(f"s_min_u32 s31, s30, {(npg-1)*2*MB}")
                a(f"s_add_u32 s98, s{ptr}, s31")
                a(f"s_addc_u32 s99, s{ptr+1}, 0")
                a(f"s_load_dword s101, s[98:99], 0")
            return 0
        side.setdefault(5, []).insert(0, tlbwarm)
    spf = [0]
    def sprefetch(k):
        def f():
            for _ in range(k):
                if spf[0] < 112:
                    a(f"s_load_dword s{100 + (spf[0] & 1)}, s[68:69], {spf[0]*64}")
                    spf[0] += 1
            return 0
        return f
    def spf_setup():
        a(f"""
        s_lshl_b32 s30, s2, 2
        s_add_u32 s30, s30, s38
        s_mul_i32 s30, s30, 7168
        s_add_u32 s68, s{P_W2}, s30
        s_addc_u32 s69, s{P_W2+1}, 0
        """)
        return 0
    if OPT["pf"] == 3:
        side.setdefault(5, []).append(spf_setup)
        for k in range(5, 13): side.setdefault(k, []).append(sprefetch(6))
    gemm_producer(a, c, False, None, side)
    if OPT["xst"]:
        for i in range(4): a(f"v_mov_b32 v{28+i}, v{PV_A+i}")
        a("""
        s_mov_b32 s48, s8
        s_mov_b32 s49, s9
        s_mov_b32 s50, s10
        s_mov_b32 s51, 0x20000
        """)
    a(f"""
    s_sub_u32 s30, s24, 1
    s_max_i32 s30, s30, 0
    s_sub_u32 s31, s24, 2
    s_max_i32 s31, s31, 0
    s_sub_u32 s30, s30, s31
    s_lshl_b32 s30, s30, 11
    v_bfe_u32 v2, v1, 2, 1
    v_mul_lo_u32 v2, v2, s30
    v_and_b32 v3, 3, v1
    v_lshl_add_u32 v2, v3, 3, v2
    s_lshl_b32 s31, s31, 11
    s_lshl_b32 s30, s25, 7
    s_add_u32 s33, s30, s31
    s_add_u32 s33, s33, 65536
    """)
    a(f"""
    s_lshr_b32 s34, s38, 1
    s_and_b32 s35, s38, 1
    s_lshl_b32 s30, s25, 1
    s_add_u32 s30, s30, s34
    s_lshl_b32 s30, s30, 17
    s_lshl_b32 s31, s35, 22
    s_add_u32 s30, s30, s31
    s_add_u32 s30, s30, {K_OFF}
    """)
    srd_off(a, 8, P_WS, "s30", 131072)
    a(f"""
    s_lshl_b32 s30, s24, 13
    s_sub_u32 s30, s30, 16384
    v_lshlrev_b32 v4, 4, v1
    v_add_u32 v4, s30, v4
    s_mul_i32 s34, s34, {HEADW}
    s_mul_i32 s35, s35, 24576
    s_add_u32 s34, s34, s35
    """)
    a("v_mov_b32 v5, v2")
    b_setup(a, C["w1"], 16, 20)
    wait_flags(a, 5, "s33", False, PV_RD)
    stamp(a, 5)
    for q in range(4):
        a(f"s_add_u32 m0, s34, {q*4096}")
        for i in range(4):
            a(f"buffer_load_dwordx4 v4, s[8:11], 0 offen offset:{i*1024}{NBF[OPT['nbf']]} lds")
        if q < 3: a("v_add_u32 v4, 0x1000, v4")
    a("s_mov_b32 s98, s24\ns_mov_b32 s99, s25")
    c = C["wo"]
    prod_setup(a, c)
    a("s_mov_b32 s24, s98\ns_mov_b32 s25, s99")
    a("s_waitcnt vmcnt(0)")
    stamp(a, 6)
    a("s_barrier")
    if OPT["xst"]:
        a(f"s_add_u32 m0, s34, {XST}")
        a("s_lshl_b32 s30, s25, 7")
        for i in range(4):
            a(f"buffer_load_dwordx4 v{28+i}, s[48:51], s30 offen offset:{i*1024} lds")
    pre_B(a, c, 0, 4 if OPT["deepb"] else None)
    if OPT["xt"]:
        xtouch_setup(a, P_WO, 2 * MB, 16, 2)
        a("""
        s_lshr_b32 s30, s2, 3
        s_lshl_b32 s30, s30, 16
        buffer_load_dword v253, v2, s[16:19], s30 offen
        """)
    elif OPT["pf"]: touch(a, P_WO, 2 * MB, 16)
    if OPT["deepb"]: a("v_mov_b32 v250, v8\nv_mov_b32 v251, v9")
    a("s_branch L_attn")
    a("L_prod2:")
    c = C["wo"]
    prod_setup(a, c)
    a(f"s_add_u32 s29, s29, {c.SB*64*c.ldb}")
    a(f"s_and_b32 s29, s29, {16*64*c.ldb - 1}")
    gate_setup(a, 1, True)
    if OPT["deepb"]: a("s_barrier")
    gemm_producer(a, c, True, "wide")
    c = C["w1"]; c1 = c
    prod_setup(a, c)
    if OPT["wobar"]: a("s_barrier")
    pre_B(a, c)
    gather_cs_setup(a, c)
    gather_rs_setup(a, c)
    if C["w2"].early: w2_early_setup(a, C["w2"])
    gate_setup(a, 2, False)
    def w2hook(k):
        def f():
            sk = a.label("skip_pf")
            a(f"""
            s_lshr_b32 s30, s2, 3
            s_and_b32 s30, s30, 7
            s_cmp_lg_u32 s30, {k}
            s_cbranch_scc1 {sk}
            """)
            touch(a, P_W2, 7 * MB, 44)
            a(f"{sk}:")
            return 0
        return f
    side = {}
    if OPT["pf"] == 2:
        for k in range(8): side.setdefault(3 + k, []).append(w2hook(k))
    if OPT["pf"] == 3:
        spf_setup()
        for k in range(0, 13): side.setdefault(k, []).append(sprefetch(5))
    def rs_add(p0, p1):
        def f():
            for p in range(max(p0, 1), p1): a(f"v_add_f32 v{G_RS}, v{G_RS}, v{G_RS+p}")
        return f
    side.setdefault(8, []).append(hi(rs_add(0, 16)))
    side.setdefault(13, []).append(hi(rs_add(16, 26)))
    side[14] = [lambda: gather_cs(a, 0, 16)]
    side[15] = [hi(rs_add(26, 32)), lambda: a("s_waitcnt vmcnt(0)"), hi(lambda: gather_finish_cs(a, c1)), hi(lambda: gather_finish_rs(a, c1))]
    if C["w2"].early:
        c2 = C["w2"]
        side[14].append(lambda: pre_B(a, c2, 0, 1))
        side[15] = [lambda: pre_B(a, c2, 1, 4), hi(rs_add(26, 32)), lambda: a("s_waitcnt vmcnt(16)"), hi(lambda: gather_finish_cs(a, c1)), hi(lambda: gather_finish_rs(a, c1))]
    if OPT["two"] & 2:
        side.setdefault(2, []).append(hi(lambda: l2_issue(a, c1)))
        side.setdefault(4, []).append(hi(lambda: l2_finish(a, c1)))
        side[14] = [lambda: fin_issue(a, c1), lambda: pre_B(a, c2, 0, 1)]
        side[15] = [lambda: pre_B(a, c2, 1, 4), hi(rs_add(26, 32)), lambda: a("s_waitcnt vmcnt(16)"), hi(lambda: fin_finish(a, c1)), hi(lambda: gather_finish_rs(a, c1))]
    if OPT["w1t"]:
        side[13].append(lambda: fin_issue(a, c1))
        side[14] = [lambda: pre_B(a, c2, 0, 1), hi(rs_add(26, 30))]
        side[15] = [hi(rs_add(30, 32)), hi(lambda: fin_finish(a, c1)), hi(lambda: gather_finish_rs(a, c1))]
    gemm_producer(a, c, True, "narrow", side, lambda st: gather_rs(a, c1, 2 * st, 2 * st + 2))
    c = C["w2"]
    c.rounds = [(16, OPT['prepoll'], 14), (OPT['prepoll'], 24, 14), (24, 40, 7), (40, 56, 7)]; c.prepoll_at = OPT['prepoll']; c.gate_all_at = 24; c.seamB = 3
    if c.sk:
        c.rounds = [(8, 10, 14), (10, 12, 14), (12, 20, 7), (20, 28, 7)]; c.prepoll_at = 10; c.gate_all_at = 12
    prod_setup(a, c)
    if not c.early: pre_B(a, c)
    side = {}
    c.round_hook = {}
    if OPT["xt"] and not c.sk:
        xtouch_setup(a, P_W2, 7 * MB, 44, 23)
        w2_xtouch(a, 0); w2_xtouch(a, 3)
        side = {4: [lambda: w2_xtouch(a, 1)]}
        c.round_hook = {24: lambda: w2_xtouch(a, 2)}
    if not OPT["w1t"]:
        a("s_barrier")
        a("s_barrier")
    if OPT["own"]:
        w2_producer(a, c)
    else:
        gate_setup(a, 0, False)
        gemm_producer(a, c, True, "narrow", side, None, 8 if c.sk else 16)
    stamp_flush(a)
    a("L_end:")
    a("s_endpgm")
    a("L_code_end:")
    body, nins = hazard.fix(a.lines)
    hdr = []
    if header_src:
        for ln in open(header_src):
            if ln.startswith(";") and "@launch" not in ln:
                hdr.append(ln.rstrip("\n"))
            elif not ln.startswith(";"):
                break
    hdr.append(f"; @launch grid=(256,1,1) block=(512,1,1) lds=163840")
    hdr.append('.amdgcn_target "amdgcn-amd-amdhsa--gfx950"')
    hdr.append(".text")
    return "\n".join(hdr) + "\n" + "\n".join(body) + "\n" + kernel_desc(KNAME, 256, 102), nins

if __name__ == "__main__":
    if "--diag" in sys.argv:
        DIAG = True; sys.argv.remove("--diag")
    for arg in list(sys.argv[1:]):
        if "=" in arg:
            k_, v_ = arg.split("=", 1)
            if "." in k_:
                kk, f_ = k_.split(".")
                for kind_ in (CFG.keys() if kk == "all" else [kk]): CFG[kind_][f_] = int(v_)
            else: OPT[k_] = int(v_)
            sys.argv.remove(arg)
    out = sys.argv[1] if len(sys.argv) > 1 else "p1.s"
    txt, nins = build(header_src="sequential_preLN__sliding_block__dense_activation_silu__prompt.s.ref")
    open(out, "w").write(txt)
    print("wrote", out, len(txt), "bytes; nop states inserted:", nins)
```

```python
import sys, struct
from asmlib import *
import hazard

MB = 1 << 20
K_OFF = 8 * MB
V_OFF = 12 * MB
O_OFF = 16 * MB
H_OFF = 20 * MB
H1_OFF = 24 * MB
FL_OFF = 40 * MB
RS1_OFF = 41 * MB
CSG_OFF = 42 * MB
FIN_OFF = 41 * MB + 524288
XP_OFF = 44 * MB
ST2_OFF = 43 * MB
DIAG_OFF = 64 * MB
LOG2E = 1.4426950408889634
KNAME = "sequential_preLN__sliding_block__dense_activation_silu__prompt_kernel"
P_X, P_WQKV, P_WO, P_W1, P_W2, P_OUT, P_DBG, P_WS = 80, 82, 84, 88, 90, 92, 94, 4
TAG = 72
FLS = 76
ST = 155648
ST_REC, ST_MEAN, ST_RSTD, ST_CS, ST_CSP = ST, ST + 2048, ST + 2560, ST + 3072, ST + 4096
HEADW = 57344
XB0 = 122880
XB1 = 81920
XCH = 147456
XST = 147456
ST_TAG = ST + 4096
HRES = 232
DEF = 200
VS = 254
DIAG = False
OPT = dict(w1t=0, pb=9, two=2, q2=8, own1=4, ownm=1, own=1, sktail=3, sksig=4, deepb=0, tlb=0, align=0, skrpg=1, bis=5, att2=1, attbar=1, osf=1, t0=0, spin=0, eb2=1, sigA2=2, peel=8, cspl=0, xst=1, reslate=0, sent=0, pfg=1, help=4, snake=1, rot0=4, early0=0, dil=1, sk=1, skfull=0, pf=3, xt=1, prio=0, inv=0, nodma=0, steps=0, kvlocal=0, cpf=1, nbf=1, sigA=3, sigB=3, qnt=0, bar2=0, defer=0, dper=2, dstart=0, prepoll=21, wobar=0)

def xb1(): return 0 if OPT['deepb'] else XB1

def f32(x):
    return "0x%08x" % struct.unpack("<I", struct.pack("<f", x))[0]

def srd_off(a, d, ptr, off, nrec):
    a(f"s_add_u32 s{d}, s{ptr}, {off}")
    a(f"s_addc_u32 s{d+1}, s{ptr+1}, 0")
    a(f"s_mov_b32 s{d+2}, {nrec}")
    a(f"s_mov_b32 s{d+3}, 0x20000")

def hold(a, key):
    if not OPT.get(key): return
    l = a.label("hold")
    a(f"""
    {l}:
    s_memrealtime s[96:97]
    s_waitcnt lgkmcnt(0)
    s_sub_u32 s96, s96, s{TAG}
    s_cmp_lt_u32 s96, {OPT[key]}
    s_cbranch_scc1 {l}
    """)

def stamp(a, idx):
    if not DIAG: return
    a("s_memrealtime s[96:97]")
    a("s_waitcnt lgkmcnt(0)")
    a(f"v_writelane_b32 v{VS}, s96, {idx}")

def stamp_flush(a):
    if not DIAG: return
    srd_off(a, 16, P_WS, DIAG_OFF, 524288)
    a(f"""
    s_lshl_b32 s30, s2, 11
    s_lshl_b32 s31, s3, 8
    s_add_u32 s30, s30, s31
    v_lshlrev_b32 v{VS+1}, 2, v1
    buffer_store_dword v{VS}, v{VS+1}, s[16:19], s30 offen
    """)

def pbar(a):
    a("s_barrier")
    if DIAG and OPT["steps"]:
        a("s_memtime s[96:97]" if OPT["steps"] == 2 else "s_memrealtime s[96:97]")
        a("""
        s_waitcnt lgkmcnt(0)
        s_mov_b32 m0, s99
        s_nop 0
        v_writelane_b32 v252, s96, m0
        s_add_u32 s99, s99, 1
        """)

def pbar_flush(a, ph):
    if not (DIAG and OPT["steps"]): return
    srd_off(a, 16, P_WS, DIAG_OFF + 524288 * (1 + ph), 524288)
    a(f"""
    s_lshl_b32 s30, s2, 11
    s_lshl_b32 s31, s3, 8
    s_add_u32 s30, s30, s31
    v_lshlrev_b32 v2, 2, v1
    buffer_store_dword v252, v2, s[16:19], s30 offen
    """)

def wgmap(a, RX, CX):
    CT = 16 // CX; RB = 16 // RX
    lg = lambda x: x.bit_length() - 1
    a(f"""
    s_and_b32 s30, s2, 7
    s_lshr_b32 s31, s2, 3
    s_lshr_b32 s24, s30, {lg(CX)}
    s_lshl_b32 s24, s24, {lg(RB)}
    s_and_b32 s25, s30, {CX-1}
    s_lshl_b32 s25, s25, {lg(CT)}
    s_lshr_b32 s30, s31, {lg(CT)}
    s_add_u32 s24, s24, s30
    s_and_b32 s30, s31, {CT-1}
    s_add_u32 s25, s25, s30
    """)

def st2(a, text):
    if not OPT["kvlocal"]:
        a(text + " sc0 sc1"); return
    l1 = a.label("skip_s1"); l2 = a.label("skip_s2")
    a(f"""
    s_cmp_lg_u32 s55, 0
    s_cbranch_scc1 {l1}
    {text} sc0 sc1
    s_branch {l2}
    {l1}:
    {text}
    {l2}:
    """)

def signal(a, seam, slot_shift, t, local=False, cnt=0, plain0=False, rbj=('s24', 's25')):
    kv = seam == 0 and not plain0
    a(f"""
    s_lshl_b32 s40, {rbj[0]}, {11 if kv else 10}
    s_lshl_b32 s41, {rbj[1]}, {7 if kv else slot_shift+3}
    s_add_u32 s40, s40, s41
    s_lshl_b32 s41, s3, 3
    s_add_u32 s40, s40, s41
    s_add_u32 s40, s40, {65536 if kv else seam*16384}
    v_mov_b32 v{t}, s{TAG}
    v_mov_b32 v{t+1}, s{TAG+1}
    v_mov_b32 v{t+2}, 0
    s_waitcnt vmcnt({cnt})
    s_mov_b64 exec, 1
    """)
    txt = f"buffer_store_dwordx2 v[{t}:{t+1}], v{t+2}, s[{FLS}:{FLS+3}], s40 offen"
    if local: st2(a, txt)
    else: a(txt + " sc0 sc1")
    a("s_mov_b64 exec, -1")

def wait_flags(a, voff, soff, wide, t):
    lp = a.label("poll"); dn = a.label("polld")
    a(f"s_mov_b32 s39, 0x100000")
    if OPT["inv"] == 1: a("buffer_inv sc1")
    a(f"{lp}:")
    if wide:
        a(f"buffer_load_dwordx4 v[{t}:{t+3}], v{voff}, s[{FLS}:{FLS+3}], {soff} offen sc0 sc1")
    else:
        a(f"buffer_load_dwordx2 v[{t}:{t+1}], v{voff}, s[{FLS}:{FLS+3}], {soff} offen sc0 sc1")
    a("s_waitcnt vmcnt(0)")
    a(f"v_cmp_eq_u64 vcc, s[{TAG}:{TAG+1}], v[{t}:{t+1}]")
    if wide:
        a(f"v_cmp_eq_u64 s[36:37], s[{TAG}:{TAG+1}], v[{t+2}:{t+3}]")
        a("s_nop 3")
        a("s_and_b64 vcc, vcc, s[36:37]")
    else:
        a("s_nop 3")
    a(f"""
    s_cmp_eq_u64 vcc, -1
    s_cbranch_scc1 {dn}
    s_sleep 1
    s_sub_u32 s39, s39, 1
    s_cmp_lg_u32 s39, 0
    s_cbranch_scc1 {lp}
    {dn}:
    """)
    if OPT["inv"] == 2: a("buffer_inv sc1")

class G: pass
NBF = ['', ' sc1', ' sc0']

def mk(kind, **kw):
    c = G(); c.kind = kind; c.__dict__.update(kw)
    c.sk = 0
    c.pvb, c.sb, c.s35 = 8, 12, "s35"
    c.early = 0
    if kind == "wo" and OPT["xst"]: c.S = min(c.S, 4)
    if kind == "w2" and OPT["sk"]:
        c.sk = 1; c.BN = 128; c.NT = 4; c.S = 4; c.BBASE = 65536; c.full = OPT["skfull"]; c.rpg = OPT["skrpg"]; c.pstride = 512
        if OPT["eb2"]:
            c.early = 1; c.pvb, c.sb, c.s35 = 16, 52, "s41"; c.BBASE = 77824
    c.SB = c.S; c.bs0 = 0
    if kind == "wo" and OPT["deepb"]:
        c.S = 3; c.SB = 12; c.bs0 = 8; c.BBASE = 49152
    c.n = c.K // 64 // (2 if c.sk else 1)
    c.BB = c.BN * 128
    c.NBW = c.BB // 4096
    c.gmul = 4 if c.korder == "F" else 8
    c.rdrows = 16 if c.korder == "F" else 4
    c.RS = 128 if c.layout == "panel" else 448
    return c

CFG = dict(
    qkv=dict(K=1024, BN=192, NT=6, S=3, korder="N", layout="panel", wp=P_WQKV, ldb=6144, bcol=128, pstride=2048,
             a_off=None, normal_tiles=(4, 5), RX=2, CX=4, rpg=1, ABASE=0, BBASE=49152, ln=True, sid=0, lt=0, full=0, rot=0),
    wo=dict(K=1024, BN=64, NT=2, S=5, korder="F", layout="panel", wp=P_WO, ldb=2048, bcol=128, pstride=0,
            a_off=O_OFF, normal_tiles=(), RX=2, CX=4, rpg=2, ABASE=0, BBASE=114688, ln=False, sid=16, lt=0, full=1, rot=2),
    w1=dict(K=1024, BN=224, NT=7, S=3, korder="F", layout="w1", wp=P_W1, ldb=7168, bcol=448, pstride=0,
            a_off=H_OFF, normal_tiles=(), RX=2, CX=4, rpg=1, ABASE=0, BBASE=49152, ln=True, sid=24, lt=0, full=0, rot=2),
    w2=dict(K=3584, BN=64, NT=2, S=6, korder="F", layout="panel", wp=P_W2, ldb=2048, bcol=128, pstride=0,
            a_off=H1_OFF, normal_tiles=(), RX=2, CX=4, rpg=2, ABASE=0, BBASE=98304, ln=False, sid=32, lt=0, full=1, rot=0),
)

def gemm_consumer(a, c):
    kind = c.kind; n = c.n; S = c.S; NT = c.NT; RS = c.RS
    vA0, vA10, vB00, vB01, vB02, vA, vA1, vB0, vB1, vB2 = 2, 3, 4, 5, 6, 7, 8, 9, 10, 11
    vG = 12; vCH = 13
    t0, t1 = 14, 15
    ACC = 16
    FX = ACC + 16 * NT
    FSZ = 16 + 4 * NT
    if c.full: FSZ *= 2
    FY = FX + FSZ
    VTOP = FY + FSZ
    acc = lambda mt, nt: ACC + (nt * 4 + mt) * 4
    wgmap(a, c.RX, c.CX)
    T = FX
    if kind == "qkv": row_stats_issue(a, FY)
    a(f"""
    s_lshr_b32 s34, s3, 1
    s_and_b32 s35, s3, 1
    v_lshlrev_b32 v{vCH}, 4, v1
    s_lshl_b32 s30, s34, 12
    v_add_u32 v{vCH}, s30, v{vCH}
    v_lshrrev_b32 v{vG}, 4, v1
    v_bfe_u32 v{T}, v1, 2, 2
    v_and_b32 v{T+1}, 3, v1
    """)
    if c.a_off is None:
        a(f"""
        v_and_b32 v{t0}, 15, v1
        v_lshrrev_b32 v{t1}, 1, v{t0}
        v_xor_b32 v{t1}, v{t1}, v{vG}
        v_lshlrev_b32 v{t1}, 4, v{t1}
        v_lshl_add_u32 v{vA0}, v{t0}, 7, v{t1}
        s_lshl_b32 s30, s34, 13
        v_add_u32 v{vA0}, s30, v{vA0}
        v_xor_b32 v{vA10}, 64, v{vA0}
        """)
        aread = lambda mt, kg: ((vA, vA1)[kg], mt * 2048)
    else:
        a(f"v_mov_b32 v{vA0}, v{vCH}")
        aread = lambda mt, kg: (vA, kg * 8192 + mt * 1024)
    if c.layout == "panel":
        a(f"""
        v_mul_u32_u24 v{t0}, {c.gmul}, v{vG}
        v_add_u32 v{t0}, v{t0}, v{T}
        v_lshlrev_b32 v{t0}, 7, v{t0}
        v_lshl_add_u32 v{t0}, v{T+1}, 3, v{t0}
        v_lshrrev_b32 v{t1}, 1, v{T}
        v_and_b32 v{T+2}, 1, v{vG}
        v_lshl_or_b32 v{t1}, v{T+2}, 1, v{t1}
        s_lshl_b32 s30, s35, 1
        v_xor_b32 v{t1}, s30, v{t1}
        v_lshl_add_u32 v{vB00}, v{t1}, 5, v{t0}
        v_xor_b32 v{t1}, 1, v{t1}
        v_lshl_add_u32 v{vB01}, v{t1}, 5, v{t0}
        """)
        def bread(nt, kg, rd):
            return (vB0 if nt % 2 == 0 else vB1), (nt // 2) * 8192 + kg * 32 * RS + rd * c.rdrows * RS
    else:
        a(f"""
        v_mul_u32_u24 v{t0}, {c.gmul}, v{vG}
        v_add_u32 v{t0}, v{t0}, v{T}
        v_mul_u32_u24 v{t0}, {RS}, v{t0}
        v_lshl_add_u32 v{t0}, v{T+1}, 3, v{t0}
        v_and_b32 v{t1}, 1, v{vG}
        v_lshlrev_b32 v{T+2}, 5, v{t1}
        s_lshl_b32 s30, s35, 8
        v_add_u32 v{T+3}, s30, v{t0}
        v_add_u32 v{vB00}, v{T+3}, v{T+2}
        v_sub_u32 v{vB01}, v{T+3}, v{T+2}
        s_add_u32 s30, s35, 6
        v_xor_b32 v{t1}, s30, v{t1}
        v_lshl_add_u32 v{vB02}, v{t1}, 5, v{t0}
        """)
        def bread(nt, kg, rd):
            o = kg * 32 * RS + rd * c.rdrows * RS
            if nt == 6: return vB2, o
            return (vB0 if nt % 2 == 0 else vB1), o + nt * 32
    RES = VTOP
    if kind == "wo":
        srd_off(a, 20, P_X, 0, 4 * MB)
        a(f"""
        v_and_b32 v{t0}, 15, v1
        v_lshlrev_b32 v{t0}, 11, v{t0}
        v_lshl_add_u32 v{t0}, v{vG}, 3, v{t0}
        s_lshl_b32 s30, s24, 18
        s_lshl_b32 s31, s34, 17
        s_add_u32 s30, s30, s31
        s_lshl_b32 s31, s25, 7
        s_add_u32 s30, s30, s31
        s_lshl_b32 s31, s35, 6
        s_add_u32 s30, s30, s31
        """)
        def res_loads():
            for mt in range(4):
                for nt in range(2):
                    r = RES + mt * 4 + nt * 2
                    a(f"buffer_load_dwordx2 v[{r}:{r+1}], v{t0}, s[20:23], s30 offen offset:{nt*32}")
                a("s_add_u32 s30, s30, 32768")
        if not OPT["reslate"] and not OPT["xst"]: res_loads()
    if kind == "wo" and OPT["xst"]:
        a(f"""
        v_and_b32 v{t0}, 15, v1
        v_lshrrev_b32 v{t1}, 1, v{t0}
        v_lshrrev_b32 v{T}, 1, v{vG}
        s_lshl_b32 s30, s35, 2
        v_add_u32 v{T}, s30, v{T}
        v_xor_b32 v{t1}, v{t1}, v{T}
        v_lshlrev_b32 v{t1}, 4, v{t1}
        v_lshl_add_u32 v{t1}, v{t0}, 7, v{t1}
        v_and_b32 v{T}, 1, v{vG}
        v_lshl_add_u32 v{t1}, v{T}, 3, v{t1}
        s_lshl_b32 s30, s34, 13
        s_add_u32 s30, s30, {XST}
        v_add_u32 v{t1}, s30, v{t1}
        v_xor_b32 v{t0}, 32, v{t1}
        """)
        for mt in range(4):
            for nt in range(2):
                r = RES + mt * 4 + nt * 2
                a(f"ds_read_b64 v[{r}:{r+1}], v{t0 if nt else t1} offset:{mt*2048}")
    for i in range(16 * NT):
        a(f"v_mov_b32 v{ACC+i}, 0")
    abases = [(vA, vA0)] + ([(vA1, vA10)] if c.a_off is None else [])
    bbases = [(vB0, vB00), (vB1, vB01)] + ([(vB2, vB02)] if c.layout != "panel" else [])
    a(f"s_mov_b32 s27, {c.ABASE}")
    a(f"s_mov_b32 s32, {c.BBASE + c.bs0*c.BB}")
    setb = [f"v_add_u32 v{x}, s27, v{y}" for x, y in abases] + [f"v_add_u32 v{x}, s32, v{y}" for x, y in bbases]
    for x in setb: a(x)
    RT = OPT["sktail"] if (c.sk and not c.full) else 0
    W1T = kind == "w1" and OPT["w1t"]
    a(f"s_mov_b32 s26, {n - 2 if W1T else (n - 1 if (c.ln and OPT['peel']) else n - RT)}")
    def reads(F, kg, tiles=None):
        r = []
        tiles = list(range(NT)) if tiles is None else tiles
        for nt in tiles:
            for rd in range(2):
                b, o = bread(nt, kg, rd)
                d = F + 16 + nt * 4 + rd * 2
                r.append(f"ds_read_b64_tr_b16 v[{d}:{d+1}], v{b} offset:{o}")
            if nt == tiles[0]:
                for mt in range(4):
                    d = F + mt * 4
                    b, o = aread(mt, kg)
                    r.append(f"ds_read_b128 v[{d}:{d+3}], v{b} offset:{o}")
        return r
    def mfmas(F, tiles=None):
        m = []
        for nt in (range(NT) if tiles is None else tiles):
            for mt in (range(4) if (nt % 2 == 0 or not OPT["snake"]) else range(3, -1, -1)):
                A = F + mt * 4; B = F + 16 + nt * 4; D = acc(mt, nt)
                if nt in c.normal_tiles:
                    m.append(f"v_mfma_f32_16x16x32_bf16 v[{D}:{D+3}], v[{A}:{A+3}], v[{B}:{B+3}], v[{D}:{D+3}]")
                else:
                    m.append(f"v_mfma_f32_16x16x32_bf16 v[{D}:{D+3}], v[{B}:{B+3}], v[{A}:{A+3}], v[{D}:{D+3}]")
        return m
    loop = a.label("c_loop")
    if kind == "qkv": row_stats_finish(a, FY, FX)
    stamp(a, c.sid)
    a("s_barrier")
    hold(a, "h_" + kind)
    stamp(a, c.sid + 1)
    adv = [f"s_add_u32 s27, s27, 16384", f"s_add_u32 s32, s32, {c.BB}", f"s_cmp_eq_u32 s27, {c.ABASE + S*16384}",
           f"s_cselect_b32 s27, {c.ABASE}, s27"] + ([f"s_cmp_eq_u32 s32, {c.BBASE + c.SB*c.BB}"] if c.SB != S else []) + [f"s_cselect_b32 s32, {c.BBASE}, s32"] + setb
    def pk4(t, p0, p1):
        a(f"v_cvt_pk_bf16_f32 v{t}, v{p0}, v{p0+1}")
        a(f"v_cvt_pk_bf16_f32 v{t+1}, v{p0+2}, v{p0+3}")
        a(f"v_cvt_pk_bf16_f32 v{t+2}, v{p1}, v{p1+1}")
        a(f"v_cvt_pk_bf16_f32 v{t+3}, v{p1+2}, v{p1+3}")
    vX = VTOP + 4
    def sk_send():
        srd_off(a, 20, P_WS, XP_OFF, 8 * MB)
        a(f"""
        s_lshl_b32 s30, s24, 19
        s_lshl_b32 s31, s3, 13
        s_add_u32 s30, s30, s31
        s_lshl_b32 s31, s25, 15
        s_add_u32 s33, s30, s31
        s_xor_b32 s31, s31, {4 << 15}
        s_add_u32 s37, s30, s31
        v_lshlrev_b32 v{vX}, 4, v1
        """)
        for mt in range(4):
            t = acc(mt, 2)
            pk4(t, acc(mt, 2), acc(mt, 3))
            a(f"buffer_store_dwordx4 v[{t}:{t+3}], v{vX}, s[20:23], s33 offen offset:{mt*1024} sc0 sc1")
    def epi_setup():
        b = Asm(); r = []
        if kind == "qkv":
            REC, CSQ, MV, RV, CSV = T, T + 16, VTOP, VTOP + 16, VTOP + 32
            b(f"""
            v_and_b32 v{t0}, 15, v1
            v_lshlrev_b32 v{vA}, 4, v{t0}
            s_lshl_b32 s30, s34, 10
            s_add_u32 s30, s30, {ST_REC}
            v_add_u32 v{vA}, s30, v{vA}
            v_lshlrev_b32 v{vA1}, 4, v{vG}
            s_lshl_b32 s30, s35, 7
            s_add_u32 s30, s30, {ST_CS}
            v_add_u32 v{vB0}, s30, v{vA1}
            v_lshlrev_b32 v{vB1}, 2, v{t0}
            v_add_u32 v{vB1}, s30, v{vB1}
            s_lshl_b32 s30, s34, 8
            s_add_u32 s30, s30, {ST_MEAN}
            v_add_u32 v{vA1}, s30, v{vA1}
            """)
            srd_off(b, 16, P_WS, K_OFF, 8 * MB)
            b(f"""
            s_lshl_b32 s30, s25, 1
            s_add_u32 s30, s30, s35
            s_lshl_b32 s30, s30, 17
            s_lshl_b32 s31, s24, 13
            s_add_u32 s30, s30, s31
            s_add_u32 s31, s30, {4*MB}
            s_mul_i32 s33, s35, {HEADW}
            v_add_u32 v{vB2}, s33, v{vCH}
            """)
            for mt in range(4):
                r.append(f"ds_read_b128 v[{REC+4*mt}:{REC+4*mt+3}], v{vA} offset:{mt*256}")
            for nt in range(4):
                r.append(f"ds_read_b128 v[{CSQ+4*nt}:{CSQ+4*nt+3}], v{vB0} offset:{(nt//2)*256 + (nt%2)*64}")
            for mt in range(4):
                r.append(f"ds_read_b128 v[{MV+4*mt}:{MV+4*mt+3}], v{vA1} offset:{mt*64}")
                r.append(f"ds_read_b128 v[{RV+4*mt}:{RV+4*mt+3}], v{vA1} offset:{512 + mt*64}")
            for dt in range(2):
                r.append(f"ds_read_b32 v{CSV+2*dt}, v{vB1} offset:{512 + dt*64}")
        else:
            CSR = T; REC = T + 28
            srd_off(b, 16, P_WS, H1_OFF, 14 * MB)
            b(f"""
            v_and_b32 v{t0}, 15, v1
            v_lshlrev_b32 v{vA}, 4, v{t0}
            s_lshl_b32 s30, s34, 10
            s_add_u32 s30, s30, {ST_REC}
            v_add_u32 v{vA}, s30, v{vA}
            v_lshlrev_b32 v{t1}, 4, v{vG}
            s_lshl_b32 s30, s35, 9
            s_add_u32 s30, s30, {ST_CS}
            v_add_u32 v{vB0}, s30, v{t1}
            s_lshl_b32 s30, s35, 6
            s_add_u32 s30, s30, {ST_CS}
            v_add_u32 v{vB1}, s30, v{t1}
            s_mul_i32 s30, s24, {112*8192}
            s_mul_i32 s31, s25, {7*8192}
            s_add_u32 s30, s30, s31
            s_add_u32 s36, s30, {3*8192}
            s_lshl_b32 s31, s35, 15
            s_add_u32 s30, s30, s31
            s_add_u32 s31, s30, 8192
            s_add_u32 s37, s30, 16384
            s_lshl_b32 s33, s35, 3
            s_add_u32 s33, s33, {XCH}
            v_add_u32 v{vB2}, s33, v{vCH}
            """)
            for mt in range(4):
                r.append(f"ds_read_b128 v[{REC+4*mt}:{REC+4*mt+3}], v{vA} offset:{mt*256}")
            r.append(f"ds_read_b128 v[{CSR+24}:{CSR+27}], v{vB1} offset:{6*64}")
            for nt in range(6):
                r.append(f"ds_read_b128 v[{CSR+4*nt}:{CSR+4*nt+3}], v{vB0} offset:{nt*64}")
        return [x.strip() for x in b.lines], r
    peel = c.ln and OPT["peel"] and not W1T
    def silu_l(mt, nt, e, m, cs):
        p = acc(mt, nt); o = []
        for h in range(2):
            o.append(f"v_pk_fma_f32 v[{p+2*h}:{p+2*h+1}], v[{m}:{m+1}], v[{cs+2*h}:{cs+2*h+1}], v[{p+2*h}:{p+2*h+1}] op_sel_hi:[0,1,1] neg_lo:[1,0,0] neg_hi:[1,0,0]")
        for h in range(2):
            o.append(f"v_pk_mul_f32 v[{e+2*h}:{e+2*h+1}], v[{m}:{m+1}], v[{p+2*h}:{p+2*h+1}] op_sel:[1,0] op_sel_hi:[1,1]")
        for r in range(4): o.append(f"v_exp_f32 v{e+r}, v{e+r}")
        for h in range(2):
            o.append(f"v_pk_fma_f32 v[{e+2*h}:{e+2*h+1}], v[{e+2*h}:{e+2*h+1}], v[{m+2}:{m+3}], v[{m+2}:{m+3}]")
        for r in range(4): o.append(f"v_rcp_f32 v{e+r}, v{e+r}")
        for h in range(2):
            o.append(f"v_pk_mul_f32 v[{p+2*h}:{p+2*h+1}], v[{p+2*h}:{p+2*h+1}], v[{e+2*h}:{e+2*h+1}]")
        return o
    NI = n // 2 if c.full else n - RT
    def w2hook_c():
        if kind == "wo" and OPT["reslate"]:
            back = a.label("woback"); late = a.label("wolate")
            a(f"s_cmp_eq_u32 s26, {OPT['reslate']}")
            a(f"s_cbranch_scc1 {late}")
            a(f"{back}:")
            def ool():
                a(f"{late}:")
                res_loads()
                a(f"s_branch {back}")
            c.ool = ool
        if kind == "w2":
            back = a.label("w2back"); early = a.label("w2early")
            a(f"s_cmp_ge_u32 s26, {NI - OPT['sigB']}")
            a(f"s_cbranch_scc1 {early}")
            a(f"{back}:")
            def ool():
                a(f"{early}:")
                nst = OPT["dper"]
                its = 8 // nst if OPT["defer"] else 0
                for it in range(its):
                    nx = a.label("skip_e")
                    a(f"s_cmp_lg_u32 s26, {NI - it - OPT['dstart']}")
                    a(f"s_cbranch_scc1 {nx}")
                    for k in range(it * nst, it * nst + nst):
                        r = DEF + k * 4
                        a(f"buffer_store_dwordx4 v[{r}:{r+3}], v{vCH}, s[16:19], {'s44' if k < 4 else 's45'} offen offset:{(k%4)*1024} sc0 sc1")
                    a(f"s_branch {back}")
                    a(f"{nx}:")
                a(f"s_cmp_lg_u32 s26, {NI - OPT['sigB']}")
                a(f"s_cbranch_scc1 {back}")
                signal(a, 3, 2, VTOP, rbj=("s42", "s43"))
                a(f"s_branch {back}")
            c.ool = ool

    if c.full:
        H = FSZ // 2
        rd2 = lambda F: reads(F, 0) + reads(F + H, 1)
        mf2 = lambda F: mfmas(F) + mfmas(F + H)
        a(f"s_mov_b32 s26, {n//2}")
        for r in rd2(FX): a(r)
        for x in adv: a(x)
        if OPT["align"]: a(f".p2align {OPT['align']}")
        a(f"{loop}:")
        w2hook_c()
        a("s_waitcnt lgkmcnt(0)")
        a("s_barrier")
        for x in interleave(mf2(FX), rd2(FY) + adv, 0, 1, c.rpg): a(x)
        a("s_waitcnt lgkmcnt(0)")
        a("s_barrier")
        for x in interleave(mf2(FY), rd2(FX) + adv + ["s_sub_u32 s26, s26, 1", "s_cmp_lg_u32 s26, 0"], 0, 1, c.rpg): a(x)
        a(f"s_cbranch_scc1 {loop}")
        a("s_waitcnt lgkmcnt(0)")
    else:
        for r in reads(FX, 0): a(r)
        if kind == "w1" and OPT["own1"]:
            a("s_waitcnt lgkmcnt(0)")
            for x in interleave(mfmas(FX), reads(FY, 1) + adv, 0, 1, c.rpg): a(x)
            a("s_waitcnt lgkmcnt(0)")
            m_ = mfmas(FY); kb_ = len(m_) - OPT["own1"]
            for x in m_[:kb_]: a(x)
            a("s_barrier")
            for x in interleave(m_[kb_:], reads(FX, 0), 0, 1, 2): a(x)
            a("s_sub_u32 s26, s26, 1")
        if OPT["align"]: a(f".p2align {OPT['align']}")
        a(f"{loop}:")
        w2hook_c()
        a("s_waitcnt lgkmcnt(0)")
        for x in interleave(mfmas(FX), reads(FY, 1) + adv, 0, 1, c.rpg): a(x)
        a("s_waitcnt lgkmcnt(0)")
        a("s_barrier")
        for x in interleave(mfmas(FY), reads(FX, 0) + ["s_sub_u32 s26, s26, 1", "s_cmp_lg_u32 s26, 0"], 0, 1, c.rpg): a(x)
        a(f"s_cbranch_scc1 {loop}")
        a("s_waitcnt lgkmcnt(0)")
        if W1T:
            RECT = 216
            def setst1(st):
                return [f"v_add_u32 v{x}, {c.ABASE + (st % S)*16384}, v{y}" for x, y in abases] + [f"v_add_u32 v{x}, {c.BBASE + (st % S)*c.BB}, v{y}" for x, y in bbases]
            G1 = [0, 1]; G2 = [2, 3, 4, 5, 6]
            b_ = Asm()
            srd_off(b_, 16, P_WS, H1_OFF, 14 * MB)
            b_(f"""
            v_and_b32 v{t0}, 15, v1
            v_lshlrev_b32 v{vA1}, 4, v{t0}
            s_lshl_b32 s30, s34, 10
            s_add_u32 s30, s30, {ST_REC}
            v_add_u32 v{vA1}, s30, v{vA1}
            v_lshlrev_b32 v{t1}, 4, v{vG}
            s_lshl_b32 s30, s35, 9
            s_add_u32 s30, s30, {ST_CS}
            v_add_u32 v{vA10}, s30, v{t1}
            s_lshl_b32 s30, s35, 6
            s_add_u32 s30, s30, {ST_CS}
            v_add_u32 v{t1}, s30, v{t1}
            s_mul_i32 s30, s24, {112*8192}
            s_mul_i32 s31, s25, {7*8192}
            s_add_u32 s30, s30, s31
            s_add_u32 s36, s30, {3*8192}
            s_lshl_b32 s31, s35, 15
            s_add_u32 s30, s30, s31
            s_add_u32 s31, s30, 8192
            s_add_u32 s37, s30, 16384
            """)
            alu = [x.strip() for x in b_.lines]
            for x in interleave(mfmas(FX), reads(FY, 1, G1) + alu, 0, 1, 1): a(x)
            a("s_waitcnt lgkmcnt(0)")
            for x in setst1(15): a(x)
            a("s_barrier")
            for x in interleave(mfmas(FY, G1), reads(FX, 0, G1), 0, 1, 1): a(x)
            a("s_waitcnt lgkmcnt(0)")
            for x in interleave(mfmas(FX, G1), reads(FY, 1, G1), 0, 1, 1): a(x)
            a("s_waitcnt lgkmcnt(0)")
            a("s_barrier")
            rX = [r for r in reads(FX, 0, G2) if "tr_b16" in r]
            st_ = [f"ds_read_b128 v[{RECT+4*mt}:{RECT+4*mt+3}], v{vA1} offset:{mt*256}" for mt in range(4)]
            st_ += [f"ds_read_b128 v[{FX+16+4*nt}:{FX+19+4*nt}], v{vA10} offset:{nt*64}" for nt in range(2)]
            for x in interleave(mfmas(FY, G1), rX + st_, 0, 1, 2): a(x)
            a("s_waitcnt lgkmcnt(0)")
            stamp(a, 50)
            ep = []
            for mt in range(4):
                ep += silu_l(mt, 0, FY + 16, RECT + 4 * mt, FX + 16) + silu_l(mt, 1, FY + 20, RECT + 4 * mt, FX + 20)
                p0 = acc(mt, 0); p1 = acc(mt, 1)
                ep += [f"v_cvt_pk_bf16_f32 v{p0}, v{p0}, v{p0+1}", f"v_cvt_pk_bf16_f32 v{p0+1}, v{p0+2}, v{p0+3}",
                       f"v_cvt_pk_bf16_f32 v{p0+2}, v{p1}, v{p1+1}", f"v_cvt_pk_bf16_f32 v{p0+3}, v{p1+2}, v{p1+3}",
                       f"buffer_store_dwordx4 v[{p0}:{p0+3}], v{vCH}, s[16:19], s30 offen offset:{mt*1024} sc0 sc1"]
            k3 = len(ep) // 3
            rY = [r for r in reads(FY, 1, G2) if "tr_b16" in r]
            def mix(m, rd_, e_):
                out = []; ne = len(e_); nm = len(m); ei = 0
                for i, x in enumerate(m):
                    out.append(x)
                    if i < len(rd_): out.append(rd_[i])
                    tgt = (ne * (i + 1)) // nm
                    while ei < tgt: out.append(e_[ei]); ei += 1
                return out + rd_[nm:]
            for x in mix(mfmas(FX, G2), rY, ["s_nop 3"] + ep[:k3]): a(x)
            a("s_waitcnt lgkmcnt(0)")
            for x in setst1(14): a(x)
            for x in mix(mfmas(FY, G2), reads(FX, 1, G2), ep[k3:2*k3]): a(x)
            a("s_waitcnt lgkmcnt(0)")
            cs_ = [f"ds_read_b128 v[{FY+4*(nt-2)}:{FY+4*(nt-2)+3}], v{vA10} offset:{nt*64}" for nt in range(2, 6)]
            cs_.append(f"ds_read_b128 v[{FY+24}:{FY+27}], v{t1} offset:{6*64}")
            for x in mix(mfmas(FX, G2), ["s_nop 0"] * 2 + cs_, ep[2*k3:]): a(x)
        if RT:
            def setst(st):
                return [f"v_add_u32 v{x}, {c.ABASE + (st % S)*16384}, v{y}" for x, y in abases] + [f"v_add_u32 v{x}, {c.BBASE + (st % S)*c.BB}, v{y}" for x, y in bbases]
            items = [(st, kg, [2, 3]) for st in range(n - RT, n) for kg in range(2)] + [(st, kg, [0, 1]) for st in range(n - RT, n) for kg in range(2)]
            sets = [FX, FY]
            for i, (st, kg, tl) in enumerate(items):
                cur = sets[i % 2]; nxt = sets[(i + 1) % 2]
                fill_ = []
                if i + 1 < len(items):
                    st2_, kg2, tl2 = items[i + 1]
                    if st2_ != st:
                        for x in setst(st2_): a(x)
                        if i + 1 < 2 * RT: a("s_barrier")
                    fill_ = reads(nxt, kg2, tl2)
                for x in interleave(mfmas(cur, tl), fill_, 0, 1, 1): a(x)
                if i == 2 * RT - 1:
                    stamp(a, c.sid + 2)
                    a("s_barrier")
                    sk_send()
                if i == 2 * RT + OPT["sksig"]:
                    signal(a, 6, 2, VTOP)
                    stamp(a, 47)
                a("s_waitcnt lgkmcnt(0)")
        if peel:
            for x in interleave(mfmas(FX), reads(FY, 1), 0, 1, c.rpg): a(x)
            a("s_waitcnt lgkmcnt(0)")
            alu, rds = epi_setup()
            m = mfmas(FY)
            if kind == "qkv": m = m[8:16] + m[16:] + m[:8]
            kb = len(m) - OPT["peel"]
            for x in interleave(m[:kb], alu, 0, 1, 2): a(x)
            a("s_barrier")
            for x in interleave(m[kb:], rds, 0, 1, 2): a(x)
    if not RT: stamp(a, c.sid + 2)
    def pk4_unused(t, p0, p1):
        a(f"v_cvt_pk_bf16_f32 v{t}, v{p0}, v{p0+1}")
        a(f"v_cvt_pk_bf16_f32 v{t+1}, v{p0+2}, v{p0+3}")
        a(f"v_cvt_pk_bf16_f32 v{t+2}, v{p1}, v{p1+1}")
        a(f"v_cvt_pk_bf16_f32 v{t+3}, v{p1+2}, v{p1+3}")
    if kind == "qkv":
        REC, CSQ, MV, RV, CSV = T, T + 16, VTOP, VTOP + 16, VTOP + 32
        if not peel:
            for x in sum(epi_setup(), []): a(x)
        a("s_waitcnt lgkmcnt(10)")
        def fold_sw(mt, nt):
            p = acc(mt, nt); m = REC + 4 * mt; cs = CSQ + 4 * nt
            for h in range(2):
                a(f"v_pk_fma_f32 v[{p+2*h}:{p+2*h+1}], v[{m}:{m+1}], v[{cs+2*h}:{cs+2*h+1}], v[{p+2*h}:{p+2*h+1}] op_sel_hi:[0,1,1] neg_lo:[1,0,0] neg_hi:[1,0,0]")
            for h in range(2):
                a(f"v_pk_mul_f32 v[{p+2*h}:{p+2*h+1}], v[{m}:{m+1}], v[{p+2*h}:{p+2*h+1}] op_sel:[1,0] op_sel_hi:[1,1]")
        for mt in range(4):
            fold_sw(mt, 2); fold_sw(mt, 3)
            t = acc(mt, 2); pk4(t, acc(mt, 2), acc(mt, 3))
            st2(a, f"buffer_store_dwordx4 v[{t}:{t+3}], v{vCH}, s[16:19], s30 offen offset:{mt*1024}")
            a(f"ds_write_b128 v{vB2}, v[{t}:{t+3}] offset:{16384 + mt*1024}")
        a("s_waitcnt lgkmcnt(4)")
        for mp in range(2):
            for dt in range(2):
                for mt in (2 * mp, 2 * mp + 1):
                    p = acc(mt, 4 + dt)
                    sel = "op_sel_hi:[1,0,1]"
                    for h in range(2):
                        a(f"v_pk_fma_f32 v[{p+2*h}:{p+2*h+1}], v[{MV+4*mt+2*h}:{MV+4*mt+2*h+1}], v[{CSV+2*dt}:{CSV+2*dt+1}], v[{p+2*h}:{p+2*h+1}] {sel} neg_lo:[1,0,0] neg_hi:[1,0,0]")
                    for h in range(2):
                        a(f"v_pk_mul_f32 v[{p+2*h}:{p+2*h+1}], v[{RV+4*mt+2*h}:{RV+4*mt+2*h+1}], v[{p+2*h}:{p+2*h+1}]")
                t = acc(2 * mp, 4 + dt); pk4(t, acc(2 * mp, 4 + dt), acc(2 * mp + 1, 4 + dt))
                st2(a, f"buffer_store_dwordx4 v[{t}:{t+3}], v{vCH}, s[16:19], s31 offen offset:{(2*mp+dt)*1024}")
                a(f"ds_write_b128 v{vB2}, v[{t}:{t+3}] offset:{24576 + 16384 + (2*mp+dt)*1024}")
        for mt in range(4):
            fold_sw(mt, 0); fold_sw(mt, 1)
            t = acc(mt, 0); pk4(t, acc(mt, 0), acc(mt, 1))
            a(f"ds_write_b128 v{vB2}, v[{t}:{t+3}] offset:{49152 + mt*1024}")
        stamp(a, c.sid + 3)
        signal(a, 0, 2, T, True)
        stamp(a, c.sid + 4)
        a("s_waitcnt lgkmcnt(0)")
    elif kind == "wo":
        srd_off(a, 16, P_WS, H_OFF, 4 * MB)
        a(f"""
        s_lshl_b32 s30, s24, 18
        s_lshl_b32 s31, s25, 14
        s_add_u32 s30, s30, s31
        s_lshl_b32 s31, s35, 13
        s_add_u32 s30, s30, s31
        s_mov_b32 s36, 0xffff0000
        s_waitcnt vmcnt(0) lgkmcnt(0)
        """)
        for mt in range(4):
            for nt in range(2):
                r = RES + mt * 4 + nt * 2; p = acc(mt, nt)
                for d in range(2):
                    a(f"v_lshlrev_b32 v{T}, 16, v{r+d}")
                    a(f"v_and_b32 v{T+1}, s36, v{r+d}")
                    a(f"v_pk_add_f32 v[{p+2*d}:{p+2*d+1}], v[{p+2*d}:{p+2*d+1}], v[{T}:{T+1}]")
            t = HRES + mt * 4
            pk4(t, acc(mt, 0), acc(mt, 1))
            a(f"buffer_store_dwordx4 v[{t}:{t+3}], v{vCH}, s[16:19], s30 offen offset:{mt*1024} sc0 sc1")
            if OPT["own1"]:
                if mt == 0: a(f"s_lshl_b32 s33, s35, 13\nv_add_u32 v{vA}, s33, v{vCH}")
                a(f"ds_write_b128 v{vA}, v[{t}:{t+3}] offset:{mt*1024}")
        SS = T + 4
        for mt in range(4):
            p0 = acc(mt, 0); p1 = acc(mt, 1)
            s_, q_ = SS + 2 * mt, SS + 2 * mt + 1
            a(f"v_pk_add_f32 v[{T}:{T+1}], v[{p0}:{p0+1}], v[{p0+2}:{p0+3}]")
            a(f"v_pk_mul_f32 v[{T+2}:{T+3}], v[{p0}:{p0+1}], v[{p0}:{p0+1}]")
            a(f"v_pk_add_f32 v[{T}:{T+1}], v[{T}:{T+1}], v[{p1}:{p1+1}]")
            a(f"v_pk_fma_f32 v[{T+2}:{T+3}], v[{p0+2}:{p0+3}], v[{p0+2}:{p0+3}], v[{T+2}:{T+3}]")
            a(f"v_pk_add_f32 v[{T}:{T+1}], v[{T}:{T+1}], v[{p1+2}:{p1+3}]")
            a(f"v_pk_fma_f32 v[{T+2}:{T+3}], v[{p1}:{p1+1}], v[{p1}:{p1+1}], v[{T+2}:{T+3}]")
            a(f"v_pk_fma_f32 v[{T+2}:{T+3}], v[{p1+2}:{p1+3}], v[{p1+2}:{p1+3}], v[{T+2}:{T+3}]")
            a(f"v_add_f32 v{s_}, v{T}, v{T+1}")
            a(f"v_add_f32 v{q_}, v{T+2}, v{T+3}")
        for mt in range(4):
            s_, q_ = SS + 2 * mt, SS + 2 * mt + 1
            a(f"v_permlane32_swap_b32 v{s_}, v{q_}")
            a(f"v_add_f32 v{s_}, v{s_}, v{q_}")
        srd_off(a, 20, P_WS, ST2_OFF, 16 * 32768)
        a(f"""
        v_and_b32 v{t0}, 31, v1
        v_lshlrev_b32 v{t0}, 2, v{t0}
        v_lshrrev_b32 v{t1}, 5, v1
        v_lshl_add_u32 v{t0}, v{t1}, 9, v{t0}
        s_lshl_b32 s30, s24, 15
        s_lshl_b32 s31, s25, 11
        s_add_u32 s30, s30, s31
        s_lshl_b32 s31, s35, 10
        s_add_u32 s30, s30, s31
        s_lshl_b32 s31, s34, 8
        s_add_u32 s30, s30, s31
        """)
        for mp in range(2):
            x0 = SS + 4 * mp; x1 = SS + 4 * mp + 2
            a(f"v_permlane16_swap_b32 v{x0}, v{x1}")
            a(f"v_add_f32 v{x0}, v{x0}, v{x1}")
            a(f"buffer_store_dword v{x0}, v{t0}, s[20:23], s30 offen offset:{mp*128} sc0 sc1")
        stamp(a, c.sid + 3)
        if OPT["wobar"]: a("s_barrier")
        signal(a, 2, 2, T)
        a("s_waitcnt lgkmcnt(0)")
        stamp(a, c.sid + 4)
    elif kind == "w1" and W1T:
        RECT = 216; E = FY + 16
        csr = lambda nt: (FY + 24) if nt == 6 else FY + 4 * (nt - 2)
        soffs = ["s30", "s31", "s37"]
        signal(a, 0, 2, FX, False, 0, True)
        stamp(a, 45)
        a("s_waitcnt lgkmcnt(0)")
        a("s_barrier")
        stamp(a, 46)
        a(f"""
        s_lshl_b32 s33, s35, 13
        v_add_u32 v{vA}, s33, v{vCH}
        s_lshl_b32 s33, s35, 3
        s_add_u32 s33, s33, {XCH}
        v_add_u32 v{vB2}, s33, v{vCH}
        """)
        for mt in range(4):
            p0 = acc(mt, 0)
            a(f"ds_write_b128 v{vA}, v[{p0}:{p0+3}] offset:{mt*1024}")
        def pair(q, mt):
            for x in silu_l(mt, 2 * q, E, RECT + 4 * mt, csr(2 * q)) + silu_l(mt, 2 * q + 1, E + 4, RECT + 4 * mt, csr(2 * q + 1)): a(x)
            p0 = acc(mt, 2 * q)
            pk4(p0, p0, acc(mt, 2 * q + 1))
            a(f"buffer_store_dwordx4 v[{p0}:{p0+3}], v{vCH}, s[16:19], {soffs[q]} offen offset:{mt*1024} sc0 sc1")
            a(f"ds_write_b128 v{vA}, v[{p0}:{p0+3}] offset:{q*16384 + mt*1024}")
        for mt in range(4): pair(1, mt)
        stamp(a, 42)
        for mt in range(4):
            for x in silu_l(mt, 6, E + (mt % 2) * 4, RECT + 4 * mt, csr(6)): a(x)
            p = acc(mt, 6)
            a(f"v_cvt_pk_bf16_f32 v{p}, v{p}, v{p+1}")
            a(f"v_cvt_pk_bf16_f32 v{p+1}, v{p+2}, v{p+3}")
            a(f"ds_write_b64 v{vB2}, v[{p}:{p+1}] offset:{mt*1024}")
        a("s_waitcnt lgkmcnt(0)")
        stamp(a, 40)
        a("s_barrier")
        stamp(a, 41)
        a(f"""
        s_lshl_b32 s33, s35, 11
        v_add_u32 v{vB2}, s33, v{vCH}
        v_add_u32 v{vB1}, {XCH}, v{vB2}
        ds_read_b128 v[{acc(0,6)}:{acc(0,6)+3}], v{vB1}
        ds_read_b128 v[{acc(1,6)}:{acc(1,6)+3}], v{vB1} offset:1024
        """)
        pair(2, 0)
        a("s_waitcnt lgkmcnt(0)")
        a(f"buffer_store_dwordx4 v[{acc(0,6)}:{acc(0,6)+3}], v{vB2}, s[16:19], s36 offen sc0 sc1")
        a(f"buffer_store_dwordx4 v[{acc(1,6)}:{acc(1,6)+3}], v{vB2}, s[16:19], s36 offen offset:1024 sc0 sc1")
        for mt in range(1, 4): pair(2, mt)
        stamp(a, 43)
        stamp(a, c.sid + 3)
        a("s_waitcnt lgkmcnt(0)")
        a("s_mov_b32 s42, s24\ns_mov_b32 s43, s25")
        stamp(a, c.sid + 4)
    elif kind == "w1":
        CSR = T; REC = T + 28; E = T + 44
        if not peel:
            for x in sum(epi_setup(), []): a(x)
        a("s_waitcnt lgkmcnt(0)")
        soffs = ["s30", "s31", "s37"]
        def silu(mt, nt, e):
            p = acc(mt, nt); m = REC + 4 * mt; cs = CSR + 4 * nt
            for h in range(2):
                a(f"v_pk_fma_f32 v[{p+2*h}:{p+2*h+1}], v[{m}:{m+1}], v[{cs+2*h}:{cs+2*h+1}], v[{p+2*h}:{p+2*h+1}] op_sel_hi:[0,1,1] neg_lo:[1,0,0] neg_hi:[1,0,0]")
            for h in range(2):
                a(f"v_pk_mul_f32 v[{e+2*h}:{e+2*h+1}], v[{m}:{m+1}], v[{p+2*h}:{p+2*h+1}] op_sel:[1,0] op_sel_hi:[1,1]")
            for r in range(4):
                a(f"v_exp_f32 v{e+r}, v{e+r}")
            for h in range(2):
                a(f"v_pk_fma_f32 v[{e+2*h}:{e+2*h+1}], v[{e+2*h}:{e+2*h+1}], v[{m+2}:{m+3}], v[{m+2}:{m+3}]")
            for r in range(4):
                a(f"v_rcp_f32 v{e+r}, v{e+r}")
            for h in range(2):
                a(f"v_pk_mul_f32 v[{p+2*h}:{p+2*h+1}], v[{p+2*h}:{p+2*h+1}], v[{e+2*h}:{e+2*h+1}]")
        def pair(q, mt):
            silu(mt, 2 * q, E); silu(mt, 2 * q + 1, E + 4)
            p0 = acc(mt, 2 * q)
            pk4(p0, p0, acc(mt, 2 * q + 1))
            a(f"buffer_store_dwordx4 v[{p0}:{p0+3}], v{vCH}, s[16:19], {soffs[q]} offen offset:{mt*1024} sc0 sc1")
            if OPT["own"]: a(f"ds_write_b128 v{vA}, v[{p0}:{p0+3}] offset:{q*16384 + mt*1024}")
        if OPT["own"]:
            a(f"s_lshl_b32 s33, s35, 13")
            a(f"v_add_u32 v{vA}, s33, v{vCH}")
        for mt in range(4): pair(0, mt)
        stamp(a, 42)
        for mt in range(4):
            silu(mt, 6, E + (mt % 2) * 4)
            p = acc(mt, 6)
            a(f"v_cvt_pk_bf16_f32 v{p}, v{p}, v{p+1}")
            a(f"v_cvt_pk_bf16_f32 v{p+1}, v{p+2}, v{p+3}")
            a(f"ds_write_b64 v{vB2}, v[{p}:{p+1}] offset:{mt*1024}")
        a("s_waitcnt lgkmcnt(0)")
        stamp(a, 40)
        a("s_barrier")
        stamp(a, 41)
        a(f"""
        s_lshl_b32 s33, s35, 11
        v_add_u32 v{vB2}, s33, v{vCH}
        v_add_u32 v{vB1}, {XCH}, v{vB2}
        ds_read_b128 v[{acc(0,6)}:{acc(0,6)+3}], v{vB1}
        ds_read_b128 v[{acc(1,6)}:{acc(1,6)+3}], v{vB1} offset:1024
        """)
        pair(1, 0)
        a("s_waitcnt lgkmcnt(0)")
        a(f"buffer_store_dwordx4 v[{acc(0,6)}:{acc(0,6)+3}], v{vB2}, s[16:19], s36 offen sc0 sc1")
        a(f"buffer_store_dwordx4 v[{acc(1,6)}:{acc(1,6)+3}], v{vB2}, s[16:19], s36 offen offset:1024 sc0 sc1")
        for mt in range(1, 4): pair(1, mt)
        stamp(a, 43)
        k2 = OPT["sigA2"]
        for mt in range(k2): pair(2, mt)
        signal(a, 0, 2, acc(2, 6), False, 3 + k2, True)
        stamp(a, 45)
        if OPT["bar2"] == 0: a("s_barrier")
        stamp(a, 46)
        for mt in range(k2, 4): pair(2, mt)
        stamp(a, c.sid + 3)
        if OPT["bar2"] == 1: a("s_barrier")
        if OPT["own"]: a("s_waitcnt lgkmcnt(0)")
        a("s_mov_b32 s42, s24\ns_mov_b32 s43, s25\ns_mov_b32 s44, s31\ns_mov_b32 s45, s37")
        stamp(a, c.sid + 4)
    elif kind == "w2":
        XR = T + 32
        if c.sk and not RT:
            sk_send()
            signal(a, 6, 2, T)
            stamp(a, 47)
        srd_off(a, 16, P_OUT, 0, 4 * MB)
        a(f"""
        v_and_b32 v{t0}, 15, v1
        v_lshlrev_b32 v{t0}, 11, v{t0}
        v_and_b32 v{t1}, 1, v{vG}
        v_lshl_add_u32 v{t0}, v{t1}, 5, v{t0}
        v_lshrrev_b32 v{t1}, 1, v{vG}
        v_lshl_add_u32 v{t0}, v{t1}, 4, v{t0}
        s_lshl_b32 s30, s24, 18
        s_lshl_b32 s31, s34, 17
        s_add_u32 s30, s30, s31
        s_lshl_b32 s31, s25, 7
        s_add_u32 s30, s30, s31
        s_lshl_b32 s31, s35, 6
        s_add_u32 s30, s30, s31
        s_mov_b32 s36, 0xffff0000
        """)
        for mt in range(4):
            for nt in range(2):
                r = HRES + mt * 4 + nt * 2; p = acc(mt, nt)
                for d in range(2):
                    a(f"v_lshlrev_b32 v{T+16}, 16, v{r+d}")
                    a(f"v_and_b32 v{T+17}, s36, v{r+d}")
                    a(f"v_pk_add_f32 v[{p+2*d}:{p+2*d+1}], v[{p+2*d}:{p+2*d+1}], v[{T+16}:{T+17}]")
        if c.sk and OPT["sent"]:
            lp = a.label("xpoll"); dn = a.label("skip_xp")
            a("s_mov_b32 s39, 0x200000")
            a(f"{lp}:")
            for mt in range(4):
                a(f"buffer_load_dwordx4 v[{XR+4*mt}:{XR+4*mt+3}], v{vX}, s[20:23], s37 offen offset:{mt*1024} sc0 sc1")
            for mt in range(4):
                r = XR + 4 * mt
                a(f"s_waitcnt vmcnt({3-mt})")
                if mt == 0: a(f"v_max_u32 v{T+4}, v{r}, v{r+1}")
                else: a(f"v_max3_u32 v{T+4}, v{r}, v{r+1}, v{T+4}")
                a(f"v_max3_u32 v{T+4}, v{r+2}, v{r+3}, v{T+4}")
            a(f"""
            v_cmp_eq_u32 vcc, -1, v{T+4}
            s_nop 3
            s_cmp_eq_u64 vcc, 0
            s_cbranch_scc1 {dn}
            s_sub_u32 s39, s39, 1
            s_cbranch_scc0 {lp}
            {dn}:
            """)
            stamp(a, 48)
        elif c.sk:
            lp = a.label("xpoll"); dn = a.label("skip_xp")
            a(f"""
            s_xor_b32 s40, s40, {4 << 5}
            s_mov_b32 s39, 0x200000
            {lp}:
            buffer_load_dwordx2 v[{T+4}:{T+5}], v{(VTOP if RT else T)+2}, s[{FLS}:{FLS+3}], s40 offen sc0 sc1
            s_waitcnt vmcnt(0)
            v_cmp_eq_u64 vcc, s[{TAG}:{TAG+1}], v[{T+4}:{T+5}]
            s_nop 3
            s_cmp_eq_u64 vcc, -1
            s_cbranch_scc1 {dn}
            s_sub_u32 s39, s39, 1
            s_cbranch_scc0 {lp}
            {dn}:
            """)
            stamp(a, 48)
            for mt in range(4):
                a(f"buffer_load_dwordx4 v[{XR+4*mt}:{XR+4*mt+3}], v{vX}, s[20:23], s37 offen offset:{mt*1024} sc0 sc1")
        for mt in range(4):
            if c.sk:
                if not OPT["sent"]: a(f"s_waitcnt vmcnt(3)")
                for nt in range(2):
                    r = XR + mt * 4 + nt * 2; p = acc(mt, nt)
                    for d in range(2):
                        a(f"v_lshlrev_b32 v{T+16}, 16, v{r+d}")
                        a(f"v_and_b32 v{T+17}, s36, v{r+d}")
                        a(f"v_pk_add_f32 v[{p+2*d}:{p+2*d+1}], v[{p+2*d}:{p+2*d+1}], v[{T+16}:{T+17}]")
            t = T + mt * 4
            pk4(t, acc(mt, 0), acc(mt, 1))
            a(f"v_permlane16_swap_b32 v{t}, v{t+2}")
            a(f"v_permlane16_swap_b32 v{t+1}, v{t+3}")
            a(f"buffer_store_dwordx4 v[{t}:{t+3}], v{t0}, s[16:19], s30 offen{['', ' sc0 sc1', ' nt', ' sc1'][OPT['osf']]}")
            a("s_add_u32 s30, s30, 32768")
        stamp(a, c.sid + 3)
        if DIAG:
            a("s_waitcnt vmcnt(0)")
            stamp(a, c.sid + 4)

PV_A = 4
PV_B = 8
PV_SA = 16
PV_SB = 18
PV_RD = 32
PV_ACC = 80

def prod_setup(a, c):
    n = c.n
    wgmap(a, c.RX, c.CX)
    if c.a_off is None:
        a("s_lshl_b32 s30, s24, 18")
        srd_off(a, 8, P_X, "s30", 262144)
        for i in range(4):
            a(f"""
            v_lshrrev_b32 v2, 3, v1
            v_lshrrev_b32 v3, 4, v1
            v_add_u32 v3, {4*(i&1)}, v3
            v_and_b32 v{PV_A+i}, 7, v1
            v_xor_b32 v3, v3, v{PV_A+i}
            v_lshlrev_b32 v3, 4, v3
            v_lshl_add_u32 v3, v2, 11, v3
            s_lshl_b32 s30, s38, 16
            s_add_u32 s30, s30, {i*8*2048 - i*1024}
            v_add_u32 v{PV_A+i}, s30, v3
            """)
        c.astep = 128
    else:
        a(f"s_mul_i32 s30, s24, {c.K*256}")
        a(f"s_add_u32 s30, s30, {c.a_off}")
        srd_off(a, 8, P_WS, "s30", c.K * 256)
        a(f"""
        {"s_lshr_b32 s30, s38, 1" if c.sk else f"s_and_b32 s30, s38, {1 if c.kind == 'w2' else 3}"}
        s_lshl_b32 s30, s30, 12
        v_lshlrev_b32 v{PV_A}, 4, v1
        v_add_u32 v{PV_A}, s30, v{PV_A}
        """)
        c.astep = 16384
        if c.kind == "w2":
            a(f"""
            {"s_and_b32 s30, s38, 1" if c.sk else "s_lshr_b32 s30, s38, 1"}
            s_mul_i32 s63, s30, {4*8192}
            s_mul_i32 s64, s30, {7*8192}
            """)
    c.bstep = 64 * c.ldb
    CT = 16 // c.CX
    a(f"""
    s_and_b32 s65, s25, {CT-1}
    s_mul_i32 s65, s65, {(16 // CT) if c.rot else 0}
    """)
    if c.rot == 2: a(f"s_mov_b32 s65, {OPT['rot0']}")
    if c.kind == "w1" and OPT["own1"]: a("s_mov_b32 s65, s25")
    if c.sk: a("s_and_b32 s65, s25, 4\ns_lshl_b32 s65, s65, 1")
    a(f"""
    s_lshl_b32 s34, s38, 12
    s_mul_i32 s35, s38, {c.NBW*1024}
    """)
    if c.sk:
        a("""
        s_and_b32 s34, s38, 1
        s_lshl_b32 s34, s34, 13
        s_lshr_b32 s30, s38, 1
        s_lshl_b32 s30, s30, 12
        s_add_u32 s34, s34, s30
        """)
    if c.kind == "w2" and not OPT["own"]: a(f"s_mul_i32 s66, s65, {7*8192}")
    if not c.early: b_setup(a, c, PV_B, 12)
    a(f"""
    s_mov_b32 s27, {c.ABASE}
    s_mov_b32 s32, {c.BBASE}
    s_mul_i32 s28, s65, {c.astep}
    s_mul_i32 s29, s65, {c.bstep}
    """)

def b_setup(a, c, dst, sr_):
    if c.sk:
        a("s_andn2_b32 s30, s25, 4")
        a(f"s_mul_i32 s30, s30, {c.bcol}")
    else:
        a(f"s_mul_i32 s30, s25, {c.bcol}")
    a(f"s_sub_u32 s31, {c.K*c.ldb}, s30")
    srd_off(a, sr_, c.wp, "s30", "s31")
    a(f"""
    s_mul_i32 s30, s38, {c.NBW*64}
    s_mov_b32 s36, {c.ldb}
    """)
    for i in range(c.NBW):
        a(f"s_add_u32 s31, s30, {i*64}")
        a(f"v_add_u32 v3, s31, v1")
        d = dst + i
        if c.layout == "panel":
            a("v_bfe_u32 v2, v3, 3, 6")
            if c.korder == "F":
                a(f"v_bfe_u32 v{d}, v2, 1, 2")
            else:
                a(f"v_bfe_u32 v{d}, v2, 1, 1")
                a("v_bfe_u32 v15, v2, 3, 1")
                a(f"v_lshl_or_b32 v{d}, v15, 1, v{d}")
            a(f"""
            v_lshlrev_b32 v{d}, 1, v{d}
            v_and_b32 v15, 7, v3
            v_xor_b32 v{d}, v{d}, v15
            v_and_b32 v2, {31 if c.kind == "w2" else 63}, v2
            v_mul_lo_u32 v2, v2, s36
            v_lshl_add_u32 v{d}, v{d}, 4, v2
            """)
            if c.pstride:
                a(f"""
                v_lshrrev_b32 v3, 9, v3
                {"s_bfe_u32 s31, s25, 0x10002" if c.sk else ""}
                {"v_xor_b32 v3, s31, v3" if c.sk else ""}
                v_mul_u32_u24 v3, {c.pstride}, v3
                v_add_u32 v{d}, v{d}, v3
                """)
        else:
            a(f"""
            v_mul_u32_u24 v2, 2341, v3
            v_lshrrev_b32 v2, 16, v2
            v_mul_u32_u24 v15, 28, v2
            v_sub_u32 v3, v3, v15
            v_bfe_u32 v15, v2, 2, 1
            v_lshlrev_b32 v15, 1, v15
            v_xor_b32 v3, v3, v15
            v_mul_lo_u32 v2, v2, s36
            v_lshl_add_u32 v{d}, v3, 4, v2
            """)
        if i & 3: a(f"v_subrev_u32 v{d}, {(i&3)*1024}, v{d}")

def issueA(a, c, slot=None, adv=True):
    if slot is None: a("s_add_u32 m0, s27, s34")
    else: a(f"s_add_u32 m0, s34, {c.ABASE + slot*16384}")
    for i in range(4):
        v = PV_A + (i if c.a_off is None else 0)
        a(f"buffer_load_dwordx4 v{v}, s[8:11], s28 offen offset:{i*1024}{'' if c.a_off is None else ' sc1'} lds")
    if adv:
        a(f"s_add_u32 s28, s28, {c.astep}")
        if c.rot: a(f"s_and_b32 s28, s28, {16*c.astep - 1}")
    if slot is None:
        a(f"""
        s_add_u32 s27, s27, 16384
        s_cmp_eq_u32 s27, {c.ABASE + c.S*16384}
        s_cselect_b32 s27, {c.ABASE}, s27
        """)

def issueB(a, c, slot=None, adv=True):
    for i in range(c.NBW):
        if i % 4 == 0:
            if slot is None:
                a(f"s_add_u32 m0, s32, {c.s35}")
                if i: a(f"s_add_u32 m0, m0, {i*1024}")
            else:
                a(f"s_add_u32 m0, {c.s35}, {c.BBASE + slot*c.BB + i*1024}")
        a(f"buffer_load_dwordx4 v{c.pvb+i}, s[{c.sb}:{c.sb+3}], s29 offen offset:{(i&3)*1024}{' nt' if (c.kind == 'qkv' and OPT['qnt'] >= 2) else ''} lds")
    if adv:
        a(f"s_add_u32 s29, s29, {c.bstep}")
        if c.rot:
            a(f"s_cmp_eq_u32 s29, {16*c.bstep}")
            a("s_cselect_b32 s29, 0, s29")
    if slot is None:
        a(f"""
        s_add_u32 s32, s32, {c.BB}
        s_cmp_eq_u32 s32, {c.BBASE + c.S*c.BB}
        s_cselect_b32 s32, {c.BBASE}, s32
        """)

PV_POLL = 28
def poll_once(a, wide):
    t = PV_POLL
    if wide: a(f"buffer_load_dwordx4 v[{t}:{t+3}], v26, s[{FLS}:{FLS+3}], s33 offen sc0 sc1")
    else: a(f"buffer_load_dwordx2 v[{t}:{t+1}], v26, s[{FLS}:{FLS+3}], s33 offen sc0 sc1")
    a("s_waitcnt vmcnt(0)")
    a(f"v_cmp_eq_u64 s[56:57], s[{TAG}:{TAG+1}], v[{t}:{t+1}]")
    if wide:
        a(f"v_cmp_eq_u64 s[58:59], s[{TAG}:{TAG+1}], v[{t+2}:{t+3}]")
        a("s_nop 3")
        a("s_and_b64 s[56:57], s[56:57], s[58:59]")
    else:
        a("s_nop 3")

def gate(a, t, wide):
    lp = a.label("gate"); ok = a.label("skip_gate")
    a(f"{lp}:")
    if t == "all":
        a("s_cmp_eq_u32 s56, -1" if OPT["sk"] else "s_cmp_eq_u64 s[56:57], -1")
    else:
        a(f"s_bfe_u32 s30, s{56 + t // 8}, {hex((4 << 16) | (4 * (t % 8)))}")
        a("s_cmp_eq_u32 s30, 15")
    a(f"s_cbranch_scc1 {ok}")
    poll_once(a, wide)
    a("""
    s_sub_u32 s39, s39, 1
    s_cselect_b64 s[58:59], -1, 0
    s_cselect_b32 s39, 0, s39
    s_or_b64 s[56:57], s[56:57], s[58:59]
    """)
    a(f"s_branch {lp}")
    a(f"{ok}:")

def gate_setup(a, seam_id, wide):
    a(f"""
    s_lshl_b32 s30, s65, 2
    v_add_u32 v26, s30, v1
    v_and_b32 v26, 63, v26
    v_lshlrev_b32 v26, {4 if wide else 3}, v26
    s_lshl_b32 s33, s24, 10
    s_add_u32 s33, s33, {seam_id*16384}
    s_mov_b64 s[56:57], 0
    s_mov_b32 s39, 0x200000
    """)

def colsum_tile(a, c, lds_base, wsg, which, R, part=None):
    AD = R; ACCU = R + 4; D = R + 8; t = R + 40
    if part in (None, 0):
        a(f"""
        v_lshrrev_b32 v{t}, 4, v1
        v_bfe_u32 v{t+1}, v1, 2, 2
        v_mul_u32_u24 v{t+2}, {c.gmul}, v{t}
        v_add_u32 v{t+2}, v{t+2}, v{t+1}
        v_mul_u32_u24 v{t+2}, {c.RS}, v{t+2}
        v_and_b32 v{t+3}, 3, v1
        v_lshl_add_u32 v{t+2}, v{t+3}, 3, v{t+2}
        v_and_b32 v{t}, 1, v{t}
        s_lshl_b32 s71, {wsg}, {13 if c.layout == "panel" else 7}
        s_add_u32 s71, s71, {lds_base}
        v_add_u32 v{t+2}, s71, v{t+2}
        """)
        if c.layout == "panel":
            a(f"v_lshrrev_b32 v{t+1}, 1, v{t+1}")
            a(f"v_lshl_or_b32 v{t}, v{t}, 1, v{t+1}")
        for ts in range(4):
            a(f"v_xor_b32 v{t+3}, {ts}, v{t}")
            a(f"v_lshl_add_u32 v{AD+ts}, v{t+3}, 5, v{t+2}")
        for q in range(4):
            for ts in range(4):
                d = D + (q * 4 + ts) * 2
                a(f"ds_read_b64_tr_b16 v[{d}:{d+1}], v{AD+ts} offset:{((q>>1)*32 + (q&1)*c.rdrows) * c.RS}")
        for ts in range(4): a(f"v_mov_b32 v{ACCU+ts}, 0")
        srd_off(a, 16, P_WS, CSG_OFF + which * 524288, 524288)
        a(f"""
        s_mov_b32 s75, 0x3f803f80
        v_lshlrev_b32 v{t}, 3, v1
        """)
        if c.kind == "qkv" and OPT["dil"]:
            a(f"""
            s_lshl_b32 s71, s24, 15
            s_mul_i32 s31, s25, 1536
            s_add_u32 s71, s71, s31
            s_lshl_b32 s31, {wsg}, 9
            s_add_u32 s71, s71, s31
            s_cmp_eq_u32 {wsg}, 3
            s_cselect_b32 s71, 0x40000000, s71
            """)
        else:
            a(f"""
            s_lshl_b32 s71, s25, 15
            s_lshl_b32 s31, s24, 11
            s_add_u32 s71, s71, s31
            s_lshl_b32 s31, {wsg}, 9
            s_add_u32 s71, s71, s31
            """)
    for q in range(4):
        if part not in (None, 1 + q // 2): continue
        if part is None or q == 0: a(f"s_waitcnt lgkmcnt({12-4*q if part is None else 0})")
        for d in range(2):
            for ts in range(4):
                a(f"v_dot2c_f32_bf16 v{ACCU+ts}, s75, v{D+(q*4+ts)*2+d}")
    if part in (None, 3):
        t0, t1, t2, t3 = ACCU, ACCU + 1, ACCU + 2, ACCU + 3
        a(f"""
        v_permlane32_swap_b32 v{t0}, v{t2}
        v_permlane32_swap_b32 v{t1}, v{t3}
        v_add_f32 v{t0}, v{t0}, v{t2}
        v_add_f32 v{t1}, v{t1}, v{t3}
        v_permlane16_swap_b32 v{t0}, v{t1}
        v_add_f32 v{t0}, v{t0}, v{t1}
        v_mov_b32 v{t1}, s{TAG}
        """)
        if c.kind == "qkv":
            sk = a.label("skip_xi")
            a(f"""
            s_cmp_lg_u32 {wsg}, 3
            s_cbranch_scc1 {sk}
            v_cmp_eq_u32 vcc, s74, v1
            v_cndmask_b32 v{t0}, 0, 1.0, vcc
            {sk}:
            """)
        a(f"buffer_store_dwordx2 v[{t0}:{t1}], v{t}, s[16:19], s71 offen sc0 sc1")

G_CS = 32
G_RS = 64
def gather_cs_setup(a, c):
    which = 0 if c.kind == "qkv" else 1
    srd_off(a, 16, P_WS, CSG_OFF + which * 524288, 524288)
    if c.kind == "qkv" and OPT["dil"]:
        a(f"""
        s_min_u32 s31, s38, 2
        s_lshl_b32 s60, s31, 13
        s_lshl_b32 s31, s25, 9
        s_add_u32 s60, s60, s31
        s_mov_b32 s67, 32768
        """)
    else:
        a(f"""
        s_lshl_b32 s60, s25, 15
        s_lshl_b32 s31, s38, 9
        s_add_u32 s60, s60, s31
        s_mov_b32 s67, 2048
        """)
    a("v_lshlrev_b32 v24, 3, v1")
    return 0
def gather_cs(a, r0, r1):
    for r in range(r0, r1):
        a(f"buffer_load_dwordx2 v[{G_CS+2*r}:{G_CS+2*r+1}], v24, s[16:19], s60 offen sc0 sc1")
        a("s_add_u32 s60, s60, s67")
    return r1 - r0
def gather_rs_setup(a, c):
    if c.kind == "qkv":
        srd_off(a, 20, P_WS, RS1_OFF, 32768)
        a(f"""
        v_and_b32 v25, 31, v1
        v_lshlrev_b32 v25, 4, v25
        s_lshl_b32 s61, s24, 11
        s_lshl_b32 s31, s38, 9
        s_add_u32 s61, s61, s31
        """)
    else:
        srd_off(a, 20, P_WS, ST2_OFF, 16 * 32768)
        a(f"""
        v_and_b32 v25, 31, v1
        v_lshlrev_b32 v25, 2, v25
        v_lshrrev_b32 v15, 5, v1
        v_lshl_add_u32 v25, v15, 9, v25
        s_lshl_b32 s61, s24, 15
        s_lshl_b32 s31, s38, 7
        s_add_u32 s61, s61, s31
        """)
    return 0
def gather_rs(a, c, p0=0, p1=32):
    if c.kind == "qkv":
        a(f"buffer_load_dwordx4 v[{G_RS}:{G_RS+3}], v25, s[20:23], s61 offen sc0 sc1")
        return 1
    a(f"s_add_u32 s30, s65, {p0 // 2}")
    a("s_and_b32 s30, s30, 15")
    a("s_lshl_b32 s30, s30, 11")
    a("s_add_u32 s30, s30, s61")
    for p in range(p0, p1):
        a(f"buffer_load_dword v{G_RS+p}, v25, s[20:23], s30 offen offset:{(p&1)*1024} sc0 sc1")
    return p1 - p0

def gather_finish_cs(a, c):
    lp = a.label("gchk"); ok = a.label("skip_gok")
    a("s_mov_b32 s62, 0x40000")
    a(f"{lp}:")
    a(f"v_xor_b32 v15, s{TAG}, v{G_CS+1}")
    for r in range(1, 16):
        a(f"v_xor_b32 v27, s{TAG}, v{G_CS+2*r+1}")
        a("v_or_b32 v15, v15, v27")
    if c.kind == "qkv":
        a(f"v_xor_b32 v27, s{TAG}, v{G_RS+2}")
        a("v_or_b32 v15, v15, v27")
        a(f"v_xor_b32 v27, s{TAG+1}, v{G_RS+3}")
        a("v_or_b32 v15, v15, v27")
    a(f"""
    v_cmp_ne_u32 vcc, 0, v15
    s_nop 3
    s_cmp_eq_u64 vcc, 0
    s_cbranch_scc1 {ok}
    s_sub_u32 s62, s62, 1
    s_cbranch_scc1 {ok}
    s_sleep 2
    """)
    gather_cs_setup(a, c); gather_cs(a, 0, 16)
    if c.kind == "qkv": gather_rs(a, c)
    a("s_waitcnt vmcnt(0)")
    a(f"s_branch {lp}")
    a(f"{ok}:")
    for r in range(1, 16): a(f"v_add_f32 v{G_CS}, v{G_CS}, v{G_CS+2*r}")
    a(f"""
    v_lshlrev_b32 v2, 2, v1
    s_lshl_b32 s30, s38, 8
    s_add_u32 s30, s30, {ST_CS}
    v_add_u32 v2, s30, v2
    ds_write_b32 v2, v{G_CS}
    """)
    return 0

def l2_issue(a, c):
    which = 0 if c.kind == "qkv" else 1
    srd_off(a, 16, P_WS, CSG_OFF + which * 524288, 524288)
    a(f"""
    s_lshl_b32 s60, s2, 2
    s_add_u32 s60, s60, s38
    v_lshrrev_b32 v24, 2, v1
    v_lshlrev_b32 v24, {15 if which == 0 else 11}, v24
    v_and_b32 v27, 3, v1
    v_lshl_add_u32 v24, v27, 3, v24
    """)
    if which == 0:
        a("s_min_u32 s60, s60, 767")
        a("s_lshl_b32 s67, s60, 5")
    else:
        a("""
        s_lshr_b32 s67, s60, 6
        s_lshl_b32 s67, s67, 15
        s_and_b32 s31, s60, 63
        s_lshl_b32 s31, s31, 5
        s_add_u32 s67, s67, s31
        """)
    a(f"buffer_load_dwordx2 v[{G_CS}:{G_CS+1}], v24, s[16:19], s67 offen sc0 sc1")
    return 1

def tagcheck(a, regs, retry):
    lp = a.label("gchk"); ok = a.label("skip_gok")
    a("s_mov_b32 s62, 0x80000")
    a(f"{lp}:")
    for k, (r, sg) in enumerate(regs):
        a(f"v_xor_b32 v{15 if k == 0 else 27}, s{sg}, v{r}")
        if k: a("v_or_b32 v15, v15, v27")
    a(f"""
    v_cmp_ne_u32 vcc, 0, v15
    s_nop 3
    s_cmp_eq_u64 vcc, 0
    s_cbranch_scc1 {ok}
    s_sub_u32 s62, s62, 1
    s_cbranch_scc1 {ok}
    """)
    retry()
    a("s_waitcnt vmcnt(0)")
    a(f"s_branch {lp}")
    a(f"{ok}:")

def l2_finish(a, c):
    which = 0 if c.kind == "qkv" else 1
    v = G_CS
    tagcheck(a, [(v + 1, TAG)], lambda: a(f"buffer_load_dwordx2 v[{v}:{v+1}], v24, s[16:19], s67 offen sc0 sc1"))
    srd_off(a, 16, P_WS, FIN_OFF + which * 32768, 32768)
    a(f"""
    v_add_f32_dpp v{v}, v{v}, v{v} row_ror:4 row_mask:0xf bank_mask:0xf
    v_add_f32_dpp v{v}, v{v}, v{v} row_ror:8 row_mask:0xf bank_mask:0xf
    v_mov_b32 v{v+2}, v{v}
    v_permlane16_swap_b32 v{v}, v{v+2}
    v_add_f32 v{v}, v{v}, v{v+2}
    v_mov_b32 v{v+2}, v{v}
    v_permlane32_swap_b32 v{v}, v{v+2}
    v_add_f32 v{v}, v{v}, v{v+2}
    v_lshlrev_b32 v24, 3, v1
    s_lshl_b32 s60, s60, 5
    s_mov_b64 exec, 15
    buffer_store_dwordx2 v[{v}:{v+1}], v24, s[16:19], s60 offen sc0 sc1
    s_mov_b64 exec, -1
    """)
    return 1

def fin_issue(a, c):
    if c.kind == "qkv":
        a("""
        s_min_u32 s31, s38, 2
        s_lshl_b32 s60, s31, 13
        s_lshl_b32 s31, s25, 9
        s_add_u32 s60, s60, s31
        """)
    else:
        a("""
        s_lshl_b32 s60, s25, 11
        s_lshl_b32 s31, s38, 9
        s_add_u32 s60, s60, s31
        """)
    a(f"buffer_load_dwordx2 v[{G_CS}:{G_CS+1}], v24, s[16:19], s60 offen sc0 sc1")
    return 1

def fin_finish(a, c):
    regs = [(G_CS + 1, TAG)] + ([(G_RS + 2, TAG), (G_RS + 3, TAG + 1)] if c.kind == "qkv" else [])
    def retry():
        a(f"buffer_load_dwordx2 v[{G_CS}:{G_CS+1}], v24, s[16:19], s60 offen sc0 sc1")
        if c.kind == "qkv": gather_rs(a, c)
    tagcheck(a, regs, retry)
    a(f"""
    v_lshlrev_b32 v2, 2, v1
    s_lshl_b32 s30, s38, 8
    s_add_u32 s30, s30, {ST_CS}
    v_add_u32 v2, s30, v2
    ds_write_b32 v2, v{G_CS}
    """)
    return 0

def gather_finish_rs(a, c):
    a(f"""
    v_and_b32 v3, 31, v1
    s_lshl_b32 s30, s38, 5
    v_add_u32 v3, s30, v3
    v_lshlrev_b32 v2, 4, v3
    v_add_u32 v2, {ST_REC}, v2
    """)
    R = G_RS
    if c.kind == "qkv":
        a(f"""
        v_lshlrev_b32 v3, 2, v3
        v_add_u32 v3, {ST_MEAN}, v3
        ds_write_b128 v2, v[{R}:{R+3}]
        ds_write_b32 v3, v{R}
        ds_write_b32 v3, v{R+1} offset:512
        """)
    else:
        a(f"""
        v_mov_b32 v{R+1}, v{R}
        v_permlane32_swap_b32 v{R}, v{R+1}
        v_mul_f32 v{R}, {f32(1.0/1024)}, v{R}
        v_mul_f32 v{R+1}, {f32(1.0/1024)}, v{R+1}
        v_fma_f32 v{R+1}, -v{R}, v{R}, v{R+1}
        v_max_f32 v{R+1}, 0, v{R+1}
        v_add_f32 v{R+4}, {f32(1e-5)}, v{R+1}
        v_rsq_f32 v{R+1}, v{R+4}
        v_sqrt_f32 v{R+3}, v{R+4}
        v_sqrt_f32 v{R+2}, v{R+4}
        v_mul_f32 v{R+1}, {f32(-LOG2E)}, v{R+1}
        ds_write_b128 v2, v[{R}:{R+3}]
        """)
    a("s_waitcnt lgkmcnt(0)")
    return 0

def row_stats_issue(a, X):
    srd_off(a, 20, P_X, 0, 4 * MB)
    srd_off(a, 16, P_DBG, 0, 256)
    a(f"""
    s_lshl_b32 s30, s24, 7
    s_lshl_b32 s31, s25, 3
    s_add_u32 s30, s30, s31
    s_lshl_b32 s31, s3, 1
    s_add_u32 s33, s30, s31
    s_lshl_b32 s30, s33, 11
    v_lshlrev_b32 v{X+18}, 4, v1
    v_mov_b32 v{X+19}, 0
    """)
    for i in range(4):
        a(f"buffer_load_dwordx4 v[{X+4*i}:{X+4*i+3}], v{X+18}, s[20:23], s30 offen offset:{i*1024}")

def row_stats_finish(a, X, T):
    s0, q0, s1, q1 = T, T + 1, T + 2, T + 3
    a(f"buffer_load_dwordx2 v[{X+16}:{X+17}], v{X+19}, s[16:19], 0 offen sc0 sc1")
    a("s_mov_b32 s75, 0x3f803f80")
    for i in range(4): a(f"v_mov_b32 v{T+i}, 0")
    a("s_waitcnt vmcnt(1)")
    for d in range(8):
        for row in range(2):
            r = X + 8 * row + d
            a(f"v_dot2c_f32_bf16 v{T+2*row}, s75, v{r}")
            a(f"v_dot2c_f32_bf16 v{T+2*row+1}, v{r}, v{r}")
    a(f"""
    v_permlane32_swap_b32 v{s0}, v{q0}
    v_permlane32_swap_b32 v{s1}, v{q1}
    v_add_f32 v{s0}, v{s0}, v{q0}
    v_add_f32 v{s1}, v{s1}, v{q1}
    v_permlane16_swap_b32 v{s0}, v{s1}
    v_add_f32 v{s0}, v{s0}, v{s1}
    v_add_f32_dpp v{s0}, v{s0}, v{s0} quad_perm:[1,0,3,2] row_mask:0xf bank_mask:0xf
    v_add_f32_dpp v{s0}, v{s0}, v{s0} quad_perm:[2,3,0,1] row_mask:0xf bank_mask:0xf
    v_add_f32_dpp v{s0}, v{s0}, v{s0} row_half_mirror row_mask:0xf bank_mask:0xf
    v_add_f32_dpp v{s0}, v{s0}, v{s0} row_mirror row_mask:0xf bank_mask:0xf
    v_mov_b32 v{q0}, v{s0}
    v_permlane32_swap_b32 v{s0}, v{q0}
    v_mul_f32 v{s0}, {f32(1.0/1024)}, v{s0}
    v_mul_f32 v{q0}, {f32(1.0/1024)}, v{q0}
    v_fma_f32 v{q0}, -v{s0}, v{s0}, v{q0}
    v_max_f32 v{q0}, 0, v{q0}
    v_add_f32 v{q0}, {f32(1e-5)}, v{q0}
    v_rsq_f32 v{q0}, v{q0}
    """)
    lp = a.label("tagp"); dn = a.label("tagd")
    a(f"""
    s_mov_b32 s39, 0x100000
    {lp}:
    s_waitcnt vmcnt(0)
    v_readfirstlane_b32 s{TAG}, v{X+16}
    v_readfirstlane_b32 s{TAG+1}, v{X+17}
    s_nop 3
    s_cmp_lg_u32 s{TAG}, 0
    s_cbranch_scc1 {dn}
    s_sleep 1
    buffer_load_dwordx2 v[{X+16}:{X+17}], v{X+19}, s[16:19], 0 offen sc0 sc1
    s_sub_u32 s39, s39, 1
    s_cmp_lg_u32 s39, 0
    s_cbranch_scc1 {lp}
    {dn}:
    """)
    srd_off(a, 20, P_WS, RS1_OFF, 32768)
    a(f"""
    v_mov_b32 v{s1}, s{TAG}
    v_mov_b32 v{q1}, s{TAG+1}
    v_and_b32 v{T+4}, 16, v1
    s_lshl_b32 s30, s33, 4
    v_mov_b32 v{T+5}, {ST_TAG}
    s_mov_b64 exec, 0x10001
    buffer_store_dwordx4 v[{T}:{T+3}], v{T+4}, s[20:23], s30 offen sc0 sc1
    ds_write_b64 v{T+5}, v[{s1}:{q1}]
    s_mov_b64 exec, -1
    s_waitcnt lgkmcnt(0)
    """)

def w2_kg(t):
    if OPT["sk"]:
        if t < 8: return 7 * t, 4
        if t < 12: return 14 * (t - 8) + 3, 7
        if t < 20: return 7 * (t - 12) + 1, 4
        return 7 * (t - 20) + 2, 4
    if t < 16: return 7 * t, 4
    if t < 24: return 14 * (t - 16) + 3, 7
    if t < 40: return 7 * (t - 24) + 1, 4
    return 7 * (t - 40) + 2, 4

def set_soff(a, c, st, A=True, B=True):
    if c.kind != "w2": return
    if OPT["own"]:
        if st < 3:
            a(f"s_add_u32 s30, s43, s63"); off = st
        elif 10 <= st < 14:
            m = st - 10; i = 2 * m
            a(f"s_add_u32 s30, s66, s64"); off = 7 * (i + (i & 4)) + 3
        else:
            t, off = (st - 3, 0) if st < 10 else ((st - 14, 1) if st < 21 else (st - 21, 2))
            a(f"""
            s_add_u32 s30, s42, {t + 1}
            s_and_b32 s30, s30, 7
            s_and_b32 s31, s30, 4
            s_add_u32 s30, s30, s31
            s_mul_i32 s30, s30, {7*8192}
            s_add_u32 s30, s30, s66
            s_add_u32 s30, s30, s63
            """)
        if A: a(f"s_add_u32 s28, s30, {off*8192}")
        if B:
            a(f"s_add_u32 s29, s30, {off*8192}")
            a("s_lshl_b32 s29, s29, 3")
        return
    base, dh = w2_kg(st)
    off = base % 7
    hs = "s63" if dh == 4 else "s64"
    a(f"s_add_u32 s30, s66, {(base - off)*8192}")
    a(f"s_sub_u32 s31, s30, {112*8192}")
    a("s_cselect_b32 s30, s30, s31")
    a(f"s_add_u32 s30, s30, {hs}")
    if A: a(f"s_add_u32 s28, s30, {off*8192}")
    if B:
        a(f"s_add_u32 s29, s30, {off*8192}")
        a("s_lshl_b32 s29, s29, 3")

def w2_early_setup(a, c):
    a(f"""
    s_mul_i32 s41, s38, {c.NBW*1024}
    s_and_b32 s30, s38, 1
    s_mul_i32 s63, s30, {4*8192}
    s_mul_i32 s64, s30, {7*8192}
    s_and_b32 s30, s25, 4
    s_mul_i32 s66, s30, {(7 if OPT["own"] else 14)*8192}
    s_and_b32 s42, s25, 3
    s_lshr_b32 s30, s25, 3
    s_lshl_b32 s30, s30, 2
    s_add_u32 s42, s42, s30
    s_mul_i32 s43, s25, {7*8192}
    """)
    c.bstep = 64 * c.ldb
    b_setup(a, c, c.pvb, c.sb)

def pre_B(a, c, st0=0, st1=None):
    for st in range(st0, c.S if st1 is None else st1):
        set_soff(a, c, st, A=False)
        issueB(a, c, (st + c.bs0) % c.SB, c.kind != "w2")
    return (( c.S if st1 is None else st1) - st0) * c.NBW

def gemm_producer(a, c, preB, gated=None, side=None, after_issue=None, unroll_to=None):
    n = c.n; S = c.S; L = 4 + c.NBW
    side = side or {}
    U = n if unroll_to is None else unroll_to
    ops = []
    w2 = c.kind == "w2"
    def iss(st):
        if gated and st < (8 if c.sk else 16): gate(a, st, gated == "wide")
        if st == (1 if (c.kind == "w1" and OPT["own1"]) else 0): stamp(a, c.sid)
        doB = not (preB and st < c.SB)
        set_soff(a, c, st, True, doB)
        issueA(a, c, st % S, not w2); ops.extend([st] * 4)
        if doB:
            issueB(a, c, (st + c.bs0) % c.SB, not w2); ops.extend([st] * c.NBW)
        if after_issue:
            if st == 1 and c.kind == "w1" and OPT["own1"]: ops.extend([st] * after_issue(0))
            ops.extend([st] * after_issue(st))
    def wait(st):
        last = max(i for i, x in enumerate(ops) if x <= st)
        a(f"s_waitcnt vmcnt({min(63, len(ops) - 1 - last)})")
    def run_side(j, tag):
        for f in side.get(j, []): ops.extend([tag] * (f() or 0))
    if DIAG and OPT['steps']: a('s_mov_b32 s99, 0\nv_mov_b32 v252, 0')
    own0 = c.kind == "w1" and OPT["own1"]
    if own0:
        a(f"s_add_u32 s28, s28, {c.astep}")
        a(f"s_and_b32 s28, s28, {16*c.astep - 1}")
        a(f"s_waitcnt vmcnt({(S-1)*c.NBW})")
        issued = 1
    else:
        iss(0); issued = 1
        if not (c.kind == "qkv" and OPT["early0"]):
            run_side(-1, 1)
            iss(1); issued = 2
        wait(0)
    stamp(a, c.sid + 1)
    pbar(a)
    j = 0
    while j < n:
        allowed = j - 1 + S
        if issued >= U and issued < n: break
        cnt = 0
        if c.kind == "qkv" and OPT["early0"] == 1 and j == 0: run_side(-1, 1)
        while issued <= allowed and cnt < 2 and issued < U:
            if c.kind == "qkv" and OPT["early0"] >= 2 and issued == OPT["early0"]: run_side(-1, OPT["early0"])
            iss(issued); issued += 1; cnt += 1
        run_side(j, max(issued - 1, j + 2))
        j += 1
        if j < n: wait(j)
        pbar(a)
    if j < n:
        assert issued == j - 1 + S
        a(f"s_mov_b32 s27, {c.ABASE + (issued % S)*16384}")
        a(f"s_mov_b32 s32, {c.BBASE + (issued % S)*c.BB}")
        for (t0, t1, stride) in c.rounds:
            if t0 == c.gate_all_at:
                a(f"s_waitcnt vmcnt({(c.gate_all_at - c.prepoll_at) * L})")
                a(f"v_cmp_eq_u64 s[56:57], s[{TAG}:{TAG+1}], v[{PV_POLL}:{PV_POLL+1}]")
                a("s_nop 3")
                gate(a, "all", False)
            if t0 == c.prepoll_at:
                gate_setup(a, c.seamB, False)
                a(f"buffer_load_dwordx2 v[{PV_POLL}:{PV_POLL+1}], v26, s[{FLS}:{FLS+3}], s33 offen sc0 sc1")
            if t0 in c.round_hook: c.round_hook[t0]()
            lp = a.label("p_loop")
            set_soff(a, c, t0, True, False)
            a(f"s_mov_b32 s26, {t1 - t0}")
            a(f"{lp}:")
            a("s_lshl_b32 s29, s28, 3")
            issueA(a, c, None, False); issueB(a, c, None, False)
            a(f"s_add_u32 s28, s28, {stride*8192}")
            a(f"s_sub_u32 s31, s28, {112*8192}")
            a("s_cselect_b32 s28, s28, s31")
            a(f"s_waitcnt vmcnt({(S-2)*L})")
            if DIAG and OPT["steps"]:
                pbar(a)
                a(f"s_sub_u32 s26, s26, 1\ns_cmp_lg_u32 s26, 0\ns_cbranch_scc1 {lp}")
            else:
                a(f"s_sub_u32 s26, s26, 1\ns_cmp_lg_u32 s26, 0\ns_barrier\ns_cbranch_scc1 {lp}")
        j = n - S + 1
        stamp(a, c.sid + 2)
        while j < n:
            j += 1
            if j < n: a(f"s_waitcnt vmcnt({(n-1-j)*L})")
            pbar(a)
    stamp(a, c.sid + 3)
    pbar_flush(a, {'qkv':0,'wo':1,'w1':2,'w2':3}[c.kind])

def own_gate_setup(a, seam_id):
    a(f"""
    v_lshrrev_b32 v2, 2, v1
    s_add_u32 s30, s42, 1
    v_add_u32 v2, s30, v2
    v_and_b32 v2, 7, v2
    v_and_b32 v3, 4, v2
    v_add_u32 v2, v2, v3
    s_and_b32 s30, s25, 4
    v_add_u32 v2, s30, v2
    v_and_b32 v3, 3, v1
    v_lshl_add_u32 v2, v2, 2, v3
    v_lshlrev_b32 v26, 3, v2
    s_lshl_b32 s33, s24, 10
    s_add_u32 s33, s33, {seam_id*16384}
    s_mov_b64 s[56:57], 0
    s_mov_b32 s39, 0x200000
    """)

def w2_producer(a, c):
    n = c.n; S = c.S
    ops = []
    def A(st):
        if 3 <= st < 10: gate(a, st - 3, False)
        if st == 3: stamp(a, c.sid)
        if st == (10 if OPT["w1t"] else 14):
            last = max(i for i, x in enumerate(ops) if x == -7)
            a(f"s_waitcnt vmcnt({len(ops) - 1 - last})")
            a(f"v_cmp_eq_u64 s[56:57], s[{TAG}:{TAG+1}], v[{PV_POLL+2}:{PV_POLL+3}]")
            a("s_mov_b32 s33, s37")
            a("s_nop 3")
            gate(a, "all", False)
        set_soff(a, c, st, True, False)
        issueA(a, c, st % S, False); ops.extend([st] * 4)
    def B(st, same=False):
        if same: a("s_lshl_b32 s29, s28, 3")
        else: set_soff(a, c, st, False, True)
        issueB(a, c, st % S, False); ops.extend([st] * c.NBW)
    def wait(st):
        last = max(i for i, x in enumerate(ops) if 0 <= x <= st)
        a(f"s_waitcnt vmcnt({min(63, len(ops) - 1 - last)})")
    if DIAG and OPT['steps']: a('s_mov_b32 s99, 0\nv_mov_b32 v252, 0')
    own_gate_setup(a, 0)
    apoll = f"buffer_load_dwordx2 v[{PV_POLL}:{PV_POLL+1}], v26, s[{FLS}:{FLS+3}], s33 offen sc0 sc1"
    def acheck(cnt):
        a(f"s_waitcnt vmcnt({cnt})")
        a(f"v_cmp_eq_u64 s[56:57], s[{TAG}:{TAG+1}], v[{PV_POLL}:{PV_POLL+1}]")
        a("s_nop 3")
    if OPT["w1t"]:
        a("s_barrier")
        pre_B(a, c, 1, 4)
        a("s_barrier")
        a(apoll)
        acheck(0)
        sk = a.label("skip_a3"); sk2 = a.label("skip_a3b")
        a(f"""
        s_mov_b32 s40, 0
        s_and_b32 s30, s56, 15
        s_cmp_lg_u32 s30, 15
        s_cbranch_scc1 {sk}
        s_mov_b32 s40, 1
        """)
        set_soff(a, c, 3, True, False)
        issueA(a, c, 3, False)
        a(f"{sk}:")
        pbar(a)
        pbar(a)
        B(4)
        a(f"s_cmp_lg_u32 s40, 0")
        a(f"s_cbranch_scc1 {sk2}")
        A(3)
        a(f"{sk2}:")
        A(4)
        pbar(a)
        A(5); B(5, True)
    else:
        a("s_waitcnt vmcnt(0)")
        pbar(a)
        om = OPT["ownm"]
        pbar(a)
        if om == 1: a(apoll)
        B(4)
        pbar(a)
        if om == 1:
            acheck(4); A(3); B(5); A(4); A(5)
        else:
            B(5); A(3); A(4); A(5)
    wait(3)
    stamp(a, c.sid + 1)
    pbar(a)
    for j in range(3, n):
        st = j - 1 + S
        if st < n:
            if st == (OPT["pb"] if OPT["w1t"] else 12):
                a(f"s_add_u32 s37, s33, {3*16384}")
                a(f"buffer_load_dwordx2 v[{PV_POLL+2}:{PV_POLL+3}], v26, s[{FLS}:{FLS+3}], s37 offen sc0 sc1")
                ops.append(-7)
            A(st); B(st, True)
        if j + 1 < n: wait(j + 1)
        pbar(a)
    stamp(a, c.sid + 3)
    pbar_flush(a, 3)

def touch(a, ptr, total_bytes, sr_=20):
    nl = total_bytes // 128 // 1024
    srd_off(a, sr_, ptr, 0, total_bytes)
    a(f"""
    s_lshl_b32 s30, s2, 2
    s_add_u32 s30, s30, s38
    s_mul_i32 s30, s30, {nl*128}
    v_lshlrev_b32 v2, 7, v1
    s_mov_b32 exec_lo, {hex(((1 << nl) - 1) & 0xffffffff)}
    s_mov_b32 exec_hi, {hex(((1 << nl) - 1) >> 32)}
    buffer_load_dword v253, v2, s[{sr_}:{sr_+3}], s30 offen
    s_mov_b64 exec, -1
    """)
    return 1

def xtouch_setup(a, ptr, nbytes, sr_, vreg):
    srd_off(a, sr_, ptr, 0, nbytes)
    a(f"""
    v_lshrrev_b32 v2, 2, v1
    v_lshlrev_b32 v2, 11, v2
    v_and_b32 v3, 3, v1
    v_lshl_add_u32 v2, v3, 7, v2
    s_and_b32 s30, s2, 3
    s_lshl_b32 s30, s30, 9
    s_lshl_b32 s31, s38, 14
    s_add_u32 s30, s30, s31
    v_add_u32 v2, s30, v2
    v_mov_b32 v3, 0x40000000
    v_cmp_gt_u32 vcc, 32, v1
    v_cndmask_b32 v{vreg}, v3, v2, vcc
    """)

def w2_xtouch(a, q):
    a(f"""
    s_lshr_b32 s30, s2, 4
    s_mul_i32 s30, s30, {7*65536}
    s_bfe_u32 s31, s2, 0x10003
    s_mul_i32 s31, s31, {4*65536 if q < 3 else 0x20000000}
    s_add_u32 s30, s30, s31
    s_add_u32 s30, s30, {q*65536}
    buffer_load_dword v253, v23, s[44:47], s30 offen
    """)
    return 1

def attention_v1(a):
    SC = (32 ** -0.5) * LOG2E
    vF, vL, vQH = 2, 4, 5
    Q = 8; O = 16; SB = 32; F = 176; T = 248
    a(f"""
    v_bfe_u32 v6, v1, 4, 1
    v_lshlrev_b32 v{vF}, 10, v6
    v_lshrrev_b32 v6, 5, v1
    v_lshl_add_u32 v{vF}, v6, 8, v{vF}
    v_and_b32 v7, 15, v1
    v_lshl_add_u32 v{vF}, v7, 4, v{vF}
    v_and_b32 v7, 31, v1
    v_lshlrev_b32 v6, 2, v6
    v_sub_u32 v{vQH}, v7, v6
    s_lshr_b32 s34, s3, 2            ; hh
    s_and_b32 s35, s3, 3             ; qb
    s_mul_i32 s30, s34, {HEADW}
    s_lshl_b32 s31, s35, 11
    s_add_u32 s30, s30, s31
    v_add_u32 v{vL}, s30, v{vF}
    ds_read_b128 v[{Q}:{Q+3}], v{vL} offset:49152
    ds_read_b128 v[{Q+4}:{Q+7}], v{vL} offset:{49152+512}
    """)
    def fr(b, i): return F + b * 8 + i * 4
    rd = []
    for b in range(9):
        for i in range(2):
            rd.append(f"ds_read_b128 v[{fr(b,i)}:{fr(b,i)+3}], v{vL} offset:{b*2048 + i*512}")
    for x in rd[:8]: a(x)
    for r in range(16):
        cst = 8 * (r >> 2) + (r & 3)
        a(f"v_cmp_gt_i32 s[{40+2*r}:{41+2*r}], {cst}, v{vQH}")
    nissued = 8
    rv = []
    for b in range(9):
        for i in range(2):
            rv.append(f"ds_read_b128 v[{fr(b,i)}:{fr(b,i)+3}], v{vL} offset:{24576 + b*2048 + i*512}")
    for b in range(9):
        a(f"s_waitcnt lgkmcnt({nissued - (2*b+2)})")
        s = SB + 16 * b
        a(f"v_mfma_f32_32x32x16_bf16 v[{s}:{s+15}], v[{fr(b,0)}:{fr(b,0)+3}], v[{Q}:{Q+3}], 0")
        if nissued < 18: a(rd[nissued]); nissued += 1
        a(f"v_mfma_f32_32x32x16_bf16 v[{s}:{s+15}], v[{fr(b,1)}:{fr(b,1)+3}], v[{Q+4}:{Q+7}], v[{s}:{s+15}]")
        if nissued < 18: a(rd[nissued]); nissued += 1
    for x in rv[:14]: a(x)
    skip = a.label("at_valid")
    a(f"""
    s_lshl_b32 s30, s24, 2
    s_add_u32 s30, s30, s35
    s_cmp_ge_u32 s30, 8
    s_cbranch_scc1 {skip}
    """)
    for b in range(8):
        nb = a.label("at_nb")
        a(f"s_cmp_ge_u32 s30, {8-b}")
        a(f"s_cbranch_scc1 {nb}")
        for r in range(16):
            a(f"v_mov_b32 v{SB+16*b+r}, 0xff800000")
        a(f"{nb}:")
    a(f"{skip}:")
    mx = T; mx2 = T + 1; sm = T + 2
    a(f"v_max_f32 v{mx}, v{SB+16}, v{SB+17}")
    a(f"v_max_f32 v{mx2}, v{SB+18}, v{SB+19}")
    idx = list(range(20, 128))
    for k in range(0, len(idx), 2):
        m = mx if (k // 2) % 2 == 0 else mx2
        a(f"v_max3_f32 v{m}, v{SB+idx[k]}, v{SB+idx[k+1]}, v{m}")
    for r in range(16):
        a(f"v_cndmask_b32 v{SB+r}, v{SB+128+r}, v{SB+r}, s[{40+2*r}:{41+2*r}]")
    for k in range(0, 16, 2):
        m = mx if (k // 2) % 2 == 0 else mx2
        a(f"v_max3_f32 v{m}, v{SB+k}, v{SB+k+1}, v{m}")
    for x in rv[14:]: a(x)
    a(f"""
    v_max_f32 v{mx}, v{mx}, v{mx2}
    v_mov_b32 v{mx2}, v{mx}
    v_permlane32_swap_b32 v{mx}, v{mx2}
    v_max_f32 v{mx}, v{mx}, v{mx2}
    v_mov_b32 v{Q}, {f32(SC)}
    v_mov_b32 v{Q+1}, {f32(SC)}
    v_mul_f32 v{Q+2}, {f32(-SC)}, v{mx}
    v_mul_f32 v{Q+3}, {f32(-SC)}, v{mx}
    v_mov_b32 v{sm}, 0
    v_mov_b32 v{sm+1}, 0
    s_waitcnt lgkmcnt(0)
    s_barrier
    """)
    sk = a.label("skip_x1")
    a(f"""
    s_cmp_lt_u32 s3, 4
    s_cbranch_scc1 {sk}
    s_mul_i32 s30, s24, {64*7168}
    s_mul_i32 s31, s38, 7168
    """)
    for i in range(7):
        if i % 4 == 0: a(f"s_add_u32 m0, s31, {XB1 + i*1024}")
        a(f"buffer_load_dwordx4 v{O+i}, s[20:23], s30 offen offset:{(i&3)*1024} lds")
    if OPT["sk"] and OPT["sent"] == 1:
        sk2 = a.label("skip_x2")
        a(f"s_branch {sk2}")
        a(f"{sk}:")
        srd_off(a, 20, P_WS, XP_OFF, 8 * MB)
        a(f"""
        s_lshl_b32 s30, s24, 19
        s_lshl_b32 s31, s3, 13
        s_add_u32 s30, s30, s31
        s_lshl_b32 s31, s25, 15
        s_add_u32 s30, s30, s31
        v_lshlrev_b32 v{O+4}, 4, v1
        """)
        for i in range(4): a(f"v_mov_b32 v{O+i}, -1")
        for mt in range(4):
            a(f"buffer_store_dwordx4 v[{O}:{O+3}], v{O+4}, s[20:23], s30 offen offset:{mt*1024} sc0 sc1")
        a(f"{sk2}:")
    else:
        a(f"{sk}:")
    def pack(s):
        for d, r in [(0, 0), (1, 2), (2, 8), (3, 10), (4, 4), (5, 6), (6, 12), (7, 14)]:
            a(f"v_cvt_pk_bf16_f32 v{s+d}, v{s+r}, v{s+r+1}")
    first = [True]
    def pv(b, s):
        c0 = "0" if first[0] else f"v[{O}:{O+15}]"
        first[0] = False
        a(f"v_mfma_f32_32x32x16_bf16 v[{O}:{O+15}], v[{fr(b,0)}:{fr(b,0)+3}], v[{s}:{s+3}], {c0}")
        a(f"v_mfma_f32_32x32x16_bf16 v[{O}:{O+15}], v[{fr(b,1)}:{fr(b,1)+3}], v[{s+4}:{s+7}], v[{O}:{O+15}]")
    pending = None
    for b in [0, 1, 2, 3, 4, 5, 6, 7]:
        s = SB + 16 * b
        for r in range(0, 16, 2):
            a(f"v_pk_fma_f32 v[{s+r}:{s+r+1}], v[{s+r}:{s+r+1}], v[{Q}:{Q+1}], v[{Q+2}:{Q+3}]")
        if pending is not None:
            for p in pending: pv(*p)
            pending = None
        for r in range(16):
            a(f"v_exp_f32 v{s+r}, v{s+r}")
        for r in range(0, 16, 2):
            a(f"v_pk_add_f32 v[{sm}:{sm+1}], v[{sm}:{sm+1}], v[{s+r}:{s+r+1}]")
        if b == 0:
            s8 = SB + 128
            for r in range(16):
                a(f"v_cndmask_b32 v{s8+r}, v{s+r}, 0, s[{40+2*r}:{41+2*r}]")
                a(f"v_cndmask_b32 v{s+r}, 0, v{s+r}, s[{40+2*r}:{41+2*r}]")
            pack(s); pack(s8)
            pending = [(0, s), (8, s8)]
        else:
            pack(s)
            pending = [(b, s)]
    for p in pending: pv(*p)
    srd_off(a, 16, P_WS, O_OFF, 4 * MB)
    a(f"""
    v_add_f32 v{sm}, v{sm}, v{sm+1}
    v_mov_b32 v{sm+1}, v{sm}
    v_permlane32_swap_b32 v{sm}, v{sm+1}
    v_add_f32 v{sm}, v{sm}, v{sm+1}
    v_rcp_f32 v{sm+1}, v{sm}
    v_rcp_f32 v{sm}, v{sm}
    s_lshl_b32 s30, s24, 18
    s_lshl_b32 s31, s25, 14
    s_add_u32 s30, s30, s31
    s_lshl_b32 s31, s34, 13
    s_add_u32 s30, s30, s31
    s_lshl_b32 s31, s35, 11
    s_add_u32 s30, s30, s31
    """)
    for r in range(0, 16, 2):
        a(f"v_pk_mul_f32 v[{O+r}:{O+r+1}], v[{O+r}:{O+r+1}], v[{sm}:{sm+1}]")
    pack(O)
    a(f"""
    buffer_store_dwordx4 v[{O}:{O+3}], v{vF}, s[16:19], s30 offen sc0 sc1
    buffer_store_dwordx4 v[{O+4}:{O+7}], v{vF}, s[16:19], s30 offen offset:512 sc0 sc1
    """)
    stamp(a, 10)
    signal(a, 1, 3, SB)
    stamp(a, 11)

def attention(a):
    if not OPT["att2"]: return attention_v1(a)
    SC = (32 ** -0.5) * LOG2E
    vF, vL, vQH = 2, 4, 5
    Q = 8; O = 16; SB = 32; F = 176; T = 248
    MK = O + 8
    ONES = Q + 4
    LS = SB + 128
    mx = T; mx2 = T + 1
    a(f"""
    v_bfe_u32 v6, v1, 4, 1
    v_lshlrev_b32 v{vF}, 10, v6
    v_lshrrev_b32 v6, 5, v1
    v_lshl_add_u32 v{vF}, v6, 8, v{vF}
    v_and_b32 v7, 15, v1
    v_lshl_add_u32 v{vF}, v7, 4, v{vF}
    s_lshr_b32 s34, s3, 2
    s_and_b32 s35, s3, 3
    s_mul_i32 s30, s34, {HEADW}
    s_lshl_b32 s31, s35, 11
    s_add_u32 s30, s30, s31
    v_add_u32 v{vL}, s30, v{vF}
    ds_read_b128 v[{Q}:{Q+3}], v{vL} offset:49152
    ds_read_b128 v[{Q+4}:{Q+7}], v{vL} offset:{49152+512}
    """)
    def fr(b, i): return F + b * 8 + i * 4
    order = [0, 8, 1, 2, 3, 4, 5, 6, 7]
    rd = [f"ds_read_b128 v[{fr(b,i)}:{fr(b,i)+3}], v{vL} offset:{b*2048 + i*512}" for b in order for i in range(2)]
    rv = [f"ds_read_b128 v[{fr(b,i)}:{fr(b,i)+3}], v{vL} offset:{24576 + b*2048 + i*512}" for b in order for i in range(2)]
    for x in rd[:8]: a(x)
    a(f"""
    v_and_b32 v7, 31, v1
    v_lshlrev_b32 v6, 2, v6
    v_sub_u32 v{vQH}, v7, v6
    v_mov_b32 v6, 0xffff0000
    """)
    msk = lambda r: f"s[{40+2*r}:{41+2*r}]"
    for r in range(16):
        a(f"v_cmp_gt_i32 {msk(r)}, {8 * (r >> 2) + (r & 3)}, v{vQH}")
    PK = [(0, 0), (1, 2), (2, 8), (3, 10), (4, 4), (5, 6), (6, 12), (7, 14)]
    fill = {k: [] for k in range(9)}
    for d, r in PK:
        fill[d // 4].append(f"v_cndmask_b32 v{MK+d}, 0, v6, {msk(r+1)}")
        fill[d // 4].append(f"v_cndmask_b32 v{MK+d}, v{MK+d}, -1, {msk(r)}")
    def merge(): return [f"v_cndmask_b32 v{SB+r}, v{SB+128+r}, v{SB+r}, {msk(r)}" for r in range(16)]
    def maxblk(b, first=False):
        o = []; s_ = SB + 16 * b
        for k in range(0, 16, 2):
            m = mx if (k // 2) % 2 == 0 else mx2
            if first and k < 4: o.append(f"v_max_f32 v{m}, v{s_+k}, v{s_+k+1}")
            else: o.append(f"v_max3_f32 v{m}, v{s_+k}, v{s_+k+1}, v{m}")
        return o
    mg = merge()
    fill[3] += mg[:8]; fill[4] += mg[8:] + maxblk(1, True)[:4]
    fill[5] += maxblk(1, True)[4:] + maxblk(0); fill[6] += maxblk(2) + maxblk(3)[:4]
    fill[7] += maxblk(3)[4:] + maxblk(4); fill[8] += maxblk(5)
    nissued = 8
    late = []
    for k, b in enumerate(order):
        a(f"s_waitcnt lgkmcnt({nissued - (2*k+2)})")
        s_ = SB + 16 * b
        fl = fill[k]; h = len(fl) // 2
        if OPT["bis"] == 1: h = 0
        if OPT["bis"] == 2: late += fl; fl = []
        a(f"v_mfma_f32_32x32x16_bf16 v[{s_}:{s_+15}], v[{fr(b,0)}:{fr(b,0)+3}], v[{Q}:{Q+3}], 0")
        if nissued < 18: a(rd[nissued]); nissued += 1
        for x in fl[:h]: a(x)
        a(f"v_mfma_f32_32x32x16_bf16 v[{s_}:{s_+15}], v[{fr(b,1)}:{fr(b,1)+3}], v[{Q+4}:{Q+7}], v[{s_}:{s_+15}]")
        if nissued < 18: a(rd[nissued]); nissued += 1
        for x in fl[h:]: a(x)
    for x in rv[:12]: a(x)
    for x in late + maxblk(6) + maxblk(7): a(x)
    skip = a.label("at_valid")
    a(f"""
    s_lshl_b32 s30, s24, 2
    s_add_u32 s30, s30, s35
    s_cmp_ge_u32 s30, 8
    s_cbranch_scc1 {skip}
    v_mov_b32 v7, 0xff800000
    """)
    for r in range(16):
        a(f"v_cndmask_b32 v{SB+r}, v{SB+r}, v7, {msk(r)}")
    for b in range(1, 8):
        nb = a.label("at_nb")
        a(f"s_cmp_ge_u32 s30, {8-b}")
        a(f"s_cbranch_scc1 {nb}")
        for r in range(16):
            a(f"v_mov_b32 v{SB+16*b+r}, v7")
        a(f"{nb}:")
    for b in range(8):
        for x in maxblk(b, b == 0): a(x)
    a(f"{skip}:")
    for x in rv[12:]: a(x)
    a(f"""
    v_max_f32 v{mx}, v{mx}, v{mx2}
    v_mov_b32 v{Q}, {f32(SC)}
    v_mov_b32 v{Q+1}, {f32(SC)}
    v_mov_b32 v{mx2}, v{mx}
    """)
    for i in range(4): a(f"v_mov_b32 v{ONES+i}, 0x3f803f80")
    a(f"""
    v_permlane32_swap_b32 v{mx}, v{mx2}
    v_max_f32 v{mx}, v{mx}, v{mx2}
    v_mul_f32 v{Q+2}, {f32(-SC)}, v{mx}
    v_mul_f32 v{Q+3}, {f32(-SC)}, v{mx}
    """)
    def free_lds():
        a("s_waitcnt lgkmcnt(0)")
        a("s_barrier")
        sk = a.label("skip_x1")
        a(f"""
        s_cmp_lt_u32 s3, 4
        s_cbranch_scc1 {sk}
        """)
        if OPT["deepb"]:
            cw = mk("wo", **CFG["wo"]); cw.bstep = 64 * cw.ldb; cw.pvb = 250; cw.s35 = "s33"
            a("s_lshl_b32 s33, s38, 11")
            pre_B(a, cw, 4, 12)
        a(f"""
        s_mul_i32 s30, s24, {64*7168}
        s_mul_i32 s31, s38, 7168
        """)
        for i in range(7):
            if i % 4 == 0: a(f"s_add_u32 m0, s31, {xb1() + i*1024}")
            a(f"buffer_load_dwordx4 v{O+i}, s[20:23], s30 offen offset:{(i&3)*1024} lds")
        a(f"{sk}:")
    def pack(s_):
        return [f"v_cvt_pk_bf16_f32 v{s_+d}, v{s_+r}, v{s_+r+1}" for d, r in PK]
    fo = [True]; fl_ = [True]
    def pv(b, s_):
        o = []
        for i in range(2):
            c0 = "0" if fo[0] else f"v[{O}:{O+15}]"; fo[0] = False
            o.append(f"v_mfma_f32_32x32x16_bf16 v[{O}:{O+15}], v[{fr(b,i)}:{fr(b,i)+3}], v[{s_+4*i}:{s_+4*i+3}], {c0}")
        return o
    def rsum(s_):
        o = []
        for i in range(2):
            c0 = "0" if fl_[0] else f"v[{LS}:{LS+15}]"; fl_[0] = False
            o.append(f"v_mfma_f32_32x32x16_bf16 v[{LS}:{LS+15}], v[{ONES}:{ONES+3}], v[{s_+4*i}:{s_+4*i+3}], {c0}")
        return o
    pend = []
    BARB = OPT["attbar"]
    held = []
    for b in range(8):
        s_ = SB + 16 * b
        if b == BARB:
            free_lds(); pend += [x for bb, ss in held for x in pv(bb, ss)]; held = []
        work = [f"v_pk_fma_f32 v[{s_+r}:{s_+r+1}], v[{s_+r}:{s_+r+1}], v[{Q}:{Q+1}], v[{Q+2}:{Q+3}]" for r in range(0, 16, 2)]
        work += [f"v_exp_f32 v{s_+r}, v{s_+r}" for r in range(16)]
        work += pack(s_)
        take = pend[:6]; pend = pend[6:]
        for x in {3: interleave(work, take, 7, 1, 6), 5: interleave(work, take, 7, 3, 1), 6: interleave(work, take, 1, 1, 1), 7: interleave(work, take, 7, 8, 2), 8: interleave(work, take, 23, 1, 1)}.get(OPT["bis"], interleave(work, take, 2, 4, 1)): a(x)
        if b == 0:
            for d in range(8): a(f"v_and_b32 v{s_+8+d}, v{MK+d}, v{s_+d}")
            for d in range(8): a(f"v_xor_b32 v{s_+d}, v{s_+8+d}, v{s_+d}")
            pend += rsum(s_ + 8) + rsum(s_)
            blocks = [(0, s_ + 8), (8, s_)]
        else:
            pend += rsum(s_)
            blocks = [(b, s_)]
        if b < BARB: held += blocks
        else: pend += [x for bb, ss in blocks for x in pv(bb, ss)]
    for x in pend: a(x)
    srd_off(a, 16, P_WS, O_OFF, 4 * MB)
    a(f"""
    s_lshl_b32 s30, s24, 18
    s_lshl_b32 s31, s25, 14
    s_add_u32 s30, s30, s31
    s_lshl_b32 s31, s34, 13
    s_add_u32 s30, s30, s31
    s_lshl_b32 s31, s35, 11
    s_add_u32 s30, s30, s31
    """)
    if OPT["bis"] == 4: a("s_nop 15\ns_nop 15")
    a(f"v_rcp_f32 v{mx}, v{LS}")
    a(f"v_rcp_f32 v{mx+1}, v{LS}")
    for r in range(0, 16, 2):
        a(f"v_pk_mul_f32 v[{O+r}:{O+r+1}], v[{O+r}:{O+r+1}], v[{mx}:{mx+1}]")
    for x in pack(O): a(x)
    a(f"""
    buffer_store_dwordx4 v[{O}:{O+3}], v{vF}, s[16:19], s30 offen sc0 sc1
    buffer_store_dwordx4 v[{O+4}:{O+7}], v{vF}, s[16:19], s30 offen offset:512 sc0 sc1
    """)
    stamp(a, 10)
    signal(a, 1, 3, SB)
    stamp(a, 11)

def build(header_src=None):
    a = Asm()
    C = {k: mk(k, **v) for k, v in CFG.items()}
    kernel_begin(a, KNAME)
    if OPT["t0"]: a("s_memrealtime s[96:97]")
    a(f"""
    s_cmp_ge_u32 s2, 256
    s_cbranch_scc1 L_end
    s_load_dwordx16 s[80:95], s[0:1], 0
    s_load_dwordx2 s[4:5], s[0:1], 64
    v_lshrrev_b32 v2, 6, v0
    v_and_b32 v1, 63, v0
    v_readfirstlane_b32 s3, v2
    s_getreg_b32 s74, hwreg(HW_REG_XCC_ID)
    s_and_b32 s74, s74, 15
    s_mov_b32 s{TAG}, 0
    s_mov_b32 s{TAG+1}, 0
    s_waitcnt lgkmcnt(0)
    """)
    srd_off(a, FLS, P_WS, FL_OFF, 131072)
    if DIAG: a(f"v_mov_b32 v{VS}, 0")
    stamp(a, 63)
    a("""
    s_cmp_ge_u32 s3, 4
    s_cbranch_scc1 L_prod
    """)
    a("""
    s_or_b32 s30, s2, s3
    s_cmp_lg_u32 s30, 0
    s_cbranch_scc1 L_notag
    """)
    srd_off(a, 16, P_DBG, 0, 256)
    a("""
    """)
    a("s_mov_b64 s[30:31], s[96:97]" if OPT["t0"] else "s_memrealtime s[30:31]")
    a("""
    v_mov_b32 v4, 0
    s_waitcnt lgkmcnt(0)
    s_or_b32 s30, s30, 1
    v_mov_b32 v2, s30
    v_mov_b32 v3, s31
    s_mov_b64 exec, 1
    buffer_store_dwordx2 v[2:3], v4, s[16:19], 0 offen sc0 sc1
    s_mov_b64 exec, -1
    L_notag:
    """)
    if OPT["cpf"]:
        a(f"""
        s_getpc_b64 s[30:31]
        L_pc:
        s_sub_u32 s16, s30, L_pc-{KNAME}
        s_subb_u32 s17, s31, 0
        s_mov_b32 s18, L_code_end-{KNAME}
        s_mov_b32 s19, 0x20000
        s_lshr_b32 s30, s2, 3
        s_lshl_b32 s30, s30, 11
        s_lshl_b32 s31, s3, 9
        s_add_u32 s30, s30, s31
        v_lshlrev_b32 v2, 7, v1
        s_mov_b64 exec, 15
        buffer_load_dword v253, v2, s[16:19], s30 offen
        s_mov_b64 exec, -1
        """)
    if OPT["prio"]: a(f"s_setprio {OPT['prio']}")
    gemm_consumer(a, C["qkv"])
    a("s_barrier")
    a("L_attn:")
    stamp(a, 9)
    attention(a)
    a("""
    s_barrier
    s_cmp_ge_u32 s3, 4
    s_cbranch_scc1 L_prod2
    """)
    colsum_tile(a, C["w1"], xb1(), "s3", 1, 32)
    if OPT["deepb"]: a("s_barrier")
    gemm_consumer(a, C["wo"])
    gemm_consumer(a, C["w1"])
    gemm_consumer(a, C["w2"])
    if OPT["spin"]:
        a(f"""
        s_waitcnt vmcnt(0)
        L_spin:
        s_memrealtime s[96:97]
        s_waitcnt lgkmcnt(0)
        s_sub_u32 s96, s96, s{TAG}
        s_cmp_lt_u32 s96, {OPT["spin"]}
        s_cbranch_scc1 L_spin
        """)
    stamp_flush(a)
    a("s_endpgm")
    C["w2"].ool()
    if OPT["reslate"]: C["wo"].ool()
    a("L_prod:")
    a("s_sub_u32 s38, s3, 4")
    c = C["qkv"]
    prod_setup(a, c)
    cq = c
    def q_extra():
        vb, sr_ = PV_B, 12
        if OPT["dil"]:
            cx = mk("qkv", **CFG["qkv"]); cx.pstride = 128; cx.bcol = 384
            vb, sr_ = 16, 20
            b_setup(a, cx, vb, sr_)
        a(f"s_mul_i32 s33, s24, {64*cq.ldb}")
        for i in range(cq.NBW):
            if i % 4 == 0: a(f"s_add_u32 m0, s35, {XB0 + i*1024}")
            a(f"buffer_load_dwordx4 v{vb+i}, s[{sr_}:{sr_+3}], s33 offen offset:{(i&3)*1024} lds")
        return cq.NBW
    def q_colsum(part=None):
        if part in (None, 0):
            a(f"""
            v_mov_b32 v2, {ST_TAG}
            ds_read_b64 v[{PV_RD}:{PV_RD+1}], v2
            s_waitcnt lgkmcnt(0)
            v_readfirstlane_b32 s{TAG}, v{PV_RD}
            v_readfirstlane_b32 s{TAG+1}, v{PV_RD+1}
            """)
        a("s_setprio 3")
        colsum_tile(a, cq, XB0, "s38", 0, PV_RD, part)
        a("s_setprio 0")
        return 1 if part in (None, 3) else 0
    def hi(f):
        def g():
            a("s_setprio 3"); r = f(); a("s_setprio 0"); return r
        return g
    side = {-1: [q_extra], max(OPT['early0'], 1): [q_colsum], 12: [lambda: gather_cs_setup(a, cq), lambda: gather_rs_setup(a, cq)],
            14: [lambda: gather_rs(a, cq), lambda: gather_cs(a, 0, 16)]}
    side[15] = [lambda: a("s_waitcnt vmcnt(0)"), hi(lambda: gather_finish_cs(a, cq)), hi(lambda: gather_finish_rs(a, cq))]
    if OPT["two"] & 1:
        q2 = OPT["q2"]
        side[12] = [lambda: gather_rs_setup(a, cq)]
        side[q2] = [hi(lambda: l2_issue(a, cq))]
        side[q2 + 2] = [hi(lambda: l2_finish(a, cq))]
        side[14] = [lambda: gather_rs(a, cq), lambda: fin_issue(a, cq)]
        side[15] = [lambda: a("s_waitcnt vmcnt(0)"), hi(lambda: fin_finish(a, cq)), hi(lambda: gather_finish_rs(a, cq))]
    if OPT["cspl"]:
        cb = max(OPT["early0"], 1)
        del side[cb]
        for k in range(4): side.setdefault(cb + k, []).append(lambda k=k: q_colsum(k))
    if OPT["help"]:
        def help_setup():
            srd_off(a, 44, P_WQKV, 0, 6 * MB)
            a(f"""
            s_and_b32 s30, s25, 3
            s_lshl_b32 s31, s30, 11
            s_or_b32 s70, s25, 3
            s_lshl_b32 s70, s70, 7
            s_add_u32 s31, s31, s70
            v_mov_b32 v2, 6144
            v_mul_lo_u32 v23, v1, v2
            v_add_u32 v23, s31, v23
            s_and_b32 s70, s24, 7
            s_cmp_eq_u32 s30, 3
            s_cselect_b32 s70, 99, s70
            s_and_b32 s30, s25, 4
            s_cselect_b32 s70, 99, s70
            s_cmp_lg_u32 s38, 0
            s_cselect_b32 s70, 99, s70
            """)
            return 0
        def helper(k):
            def f():
                sk = a.label("skip_help")
                a(f"""
                s_cmp_lg_u32 s70, {k & 7}
                s_cbranch_scc1 {sk}
                s_mov_b32 s30, {(k + OPT['help']) * 64 * 6144}
                buffer_load_dword v253, v23, s[44:47], s30 offen
                {sk}:
                """)
                return 0
            return f
        help_setup()
        for k in range(0, 16 - OPT["help"]): side.setdefault(k, []).insert(0, helper(k))
    if OPT["sk"] and OPT["sent"] == 2:
        def prefill(k):
            def f():
                if k == 0:
                    srd_off(a, 16, P_WS, XP_OFF, 8 * MB)
                    a(f"""
                    s_lshl_b32 s62, s24, 19
                    s_lshl_b32 s31, s38, 13
                    s_add_u32 s62, s62, s31
                    s_lshl_b32 s31, s25, 15
                    s_add_u32 s62, s62, s31
                    v_lshlrev_b32 v27, 4, v1
                    """)
                    for i in range(4): a(f"v_mov_b32 v{28+i}, -1")
                a(f"buffer_store_dwordx4 v[28:31], v27, s[16:19], s62 offen offset:{k*1024} sc0 sc1")
                return 1
            return f
        for k in range(4): side.setdefault(5 + (k // OPT["pfg"]), []).append(prefill(k))
    if OPT["tlb"]:
        def tlbwarm():
            G = OPT["tlb"] * MB // 2 if OPT["tlb"] > 1 else 2 * MB
            a(f"s_mul_i32 s30, s38, {12*MB}")
            a(f"s_add_u32 s30, s30, {8*MB}")
            a(f"s_add_u32 s98, s{P_WS}, s30")
            a(f"s_addc_u32 s99, s{P_WS+1}, 0")
            for k in range(6):
                a(f"s_load_dword s100, s[98:99], 0")
                a(f"s_add_u32 s98, s98, {2*MB}")
                a(f"s_addc_u32 s99, s99, 0")
            a(f"s_lshl_b32 s30, s38, 21")
            for ptr, npg in ((P_W1, 4), (P_OUT, 2), (P_WO, 1)):
                a(f"s_min_u32 s31, s30, {(npg-1)*2*MB}")
                a(f"s_add_u32 s98, s{ptr}, s31")
                a(f"s_addc_u32 s99, s{ptr+1}, 0")
                a(f"s_load_dword s101, s[98:99], 0")
            return 0
        side.setdefault(5, []).insert(0, tlbwarm)
    spf = [0]
    def sprefetch(k):
        def f():
            for _ in range(k):
                if spf[0] < 112:
                    a(f"s_load_dword s{100 + (spf[0] & 1)}, s[68:69], {spf[0]*64}")
                    spf[0] += 1
            return 0
        return f
    def spf_setup():
        a(f"""
        s_lshl_b32 s30, s2, 2
        s_add_u32 s30, s30, s38
        s_mul_i32 s30, s30, 7168
        s_add_u32 s68, s{P_W2}, s30
        s_addc_u32 s69, s{P_W2+1}, 0
        """)
        return 0
    if OPT["pf"] == 3:
        side.setdefault(5, []).append(spf_setup)
        for k in range(5, 13): side.setdefault(k, []).append(sprefetch(6))
    gemm_producer(a, c, False, None, side)
    if OPT["xst"]:
        for i in range(4): a(f"v_mov_b32 v{28+i}, v{PV_A+i}")
        a("""
        s_mov_b32 s48, s8
        s_mov_b32 s49, s9
        s_mov_b32 s50, s10
        s_mov_b32 s51, 0x20000
        """)
    a(f"""
    s_sub_u32 s30, s24, 1
    s_max_i32 s30, s30, 0
    s_sub_u32 s31, s24, 2
    s_max_i32 s31, s31, 0
    s_sub_u32 s30, s30, s31
    s_lshl_b32 s30, s30, 11
    v_bfe_u32 v2, v1, 2, 1
    v_mul_lo_u32 v2, v2, s30
    v_and_b32 v3, 3, v1
    v_lshl_add_u32 v2, v3, 3, v2
    s_lshl_b32 s31, s31, 11
    s_lshl_b32 s30, s25, 7
    s_add_u32 s33, s30, s31
    s_add_u32 s33, s33, 65536
    """)
    a(f"""
    s_lshr_b32 s34, s38, 1
    s_and_b32 s35, s38, 1
    s_lshl_b32 s30, s25, 1
    s_add_u32 s30, s30, s34
    s_lshl_b32 s30, s30, 17
    s_lshl_b32 s31, s35, 22
    s_add_u32 s30, s30, s31
    s_add_u32 s30, s30, {K_OFF}
    """)
    srd_off(a, 8, P_WS, "s30", 131072)
    a(f"""
    s_lshl_b32 s30, s24, 13
    s_sub_u32 s30, s30, 16384
    v_lshlrev_b32 v4, 4, v1
    v_add_u32 v4, s30, v4
    s_mul_i32 s34, s34, {HEADW}
    s_mul_i32 s35, s35, 24576
    s_add_u32 s34, s34, s35
    """)
    a("v_mov_b32 v5, v2")
    b_setup(a, C["w1"], 16, 20)
    wait_flags(a, 5, "s33", False, PV_RD)
    stamp(a, 5)
    for q in range(4):
        a(f"s_add_u32 m0, s34, {q*4096}")
        for i in range(4):
            a(f"buffer_load_dwordx4 v4, s[8:11], 0 offen offset:{i*1024}{NBF[OPT['nbf']]} lds")
        if q < 3: a("v_add_u32 v4, 0x1000, v4")
    a("s_mov_b32 s98, s24\ns_mov_b32 s99, s25")
    c = C["wo"]
    prod_setup(a, c)
    a("s_mov_b32 s24, s98\ns_mov_b32 s25, s99")
    if OPT["xt"]:
        xtouch_setup(a, P_WO, 2 * MB, 16, 25)
        a("s_lshr_b32 s37, s2, 3\ns_lshl_b32 s37, s37, 16")
    a("s_waitcnt vmcnt(0)")
    stamp(a, 6)
    a("s_barrier")
    if OPT["xst"]:
        a(f"s_add_u32 m0, s34, {XST}")
        a("s_lshl_b32 s30, s25, 7")
        for i in range(4):
            a(f"buffer_load_dwordx4 v{28+i}, s[48:51], s30 offen offset:{i*1024} lds")
    pre_B(a, c, 0, 4 if OPT["deepb"] else None)
    if OPT["xt"]:
        a("buffer_load_dword v253, v25, s[16:19], s37 offen")
    elif OPT["pf"]: touch(a, P_WO, 2 * MB, 16)
    if OPT["deepb"]: a("v_mov_b32 v250, v8\nv_mov_b32 v251, v9")
    a("s_branch L_attn")
    a("L_prod2:")
    c = C["wo"]
    prod_setup(a, c)
    a(f"s_add_u32 s29, s29, {c.SB*64*c.ldb}")
    a(f"s_and_b32 s29, s29, {16*64*c.ldb - 1}")
    gate_setup(a, 1, True)
    if OPT["deepb"]: a("s_barrier")
    gemm_producer(a, c, True, "wide")
    c = C["w1"]; c1 = c
    prod_setup(a, c)
    if OPT["wobar"]: a("s_barrier")
    pre_B(a, c)
    gather_cs_setup(a, c)
    gather_rs_setup(a, c)
    if C["w2"].early: w2_early_setup(a, C["w2"])
    gate_setup(a, 2, False)
    def w2hook(k):
        def f():
            sk = a.label("skip_pf")
            a(f"""
            s_lshr_b32 s30, s2, 3
            s_and_b32 s30, s30, 7
            s_cmp_lg_u32 s30, {k}
            s_cbranch_scc1 {sk}
            """)
            touch(a, P_W2, 7 * MB, 44)
            a(f"{sk}:")
            return 0
        return f
    side = {}
    if OPT["pf"] == 2:
        for k in range(8): side.setdefault(3 + k, []).append(w2hook(k))
    if OPT["pf"] == 3:
        spf_setup()
        for k in range(0, 13): side.setdefault(k, []).append(sprefetch(5))
    def rs_add(p0, p1):
        def f():
            for p in range(max(p0, 1), p1): a(f"v_add_f32 v{G_RS}, v{G_RS}, v{G_RS+p}")
        return f
    side.setdefault(8, []).append(hi(rs_add(0, 16)))
    side.setdefault(13, []).append(hi(rs_add(16, 26)))
    side[14] = [lambda: gather_cs(a, 0, 16)]
    side[15] = [hi(rs_add(26, 32)), lambda: a("s_waitcnt vmcnt(0)"), hi(lambda: gather_finish_cs(a, c1)), hi(lambda: gather_finish_rs(a, c1))]
    if C["w2"].early:
        c2 = C["w2"]
        side[14].append(lambda: pre_B(a, c2, 0, 1))
        side[15] = [lambda: pre_B(a, c2, 1, 4), hi(rs_add(26, 32)), lambda: a("s_waitcnt vmcnt(16)"), hi(lambda: gather_finish_cs(a, c1)), hi(lambda: gather_finish_rs(a, c1))]
    if OPT["two"] & 2:
        side.setdefault(2, []).append(hi(lambda: l2_issue(a, c1)))
        side.setdefault(4, []).append(hi(lambda: l2_finish(a, c1)))
        side[14] = [lambda: fin_issue(a, c1), lambda: pre_B(a, c2, 0, 1)]
        side[15] = [lambda: pre_B(a, c2, 1, 4), hi(rs_add(26, 32)), lambda: a("s_waitcnt vmcnt(16)"), hi(lambda: fin_finish(a, c1)), hi(lambda: gather_finish_rs(a, c1))]
    if OPT["w1t"]:
        side[13].append(lambda: fin_issue(a, c1))
        side[14] = [lambda: pre_B(a, c2, 0, 1), hi(rs_add(26, 30))]
        side[15] = [hi(rs_add(30, 32)), hi(lambda: fin_finish(a, c1)), hi(lambda: gather_finish_rs(a, c1))]
    gemm_producer(a, c, True, "narrow", side, lambda st: gather_rs(a, c1, 2 * st, 2 * st + 2))
    c = C["w2"]
    c.rounds = [(16, OPT['prepoll'], 14), (OPT['prepoll'], 24, 14), (24, 40, 7), (40, 56, 7)]; c.prepoll_at = OPT['prepoll']; c.gate_all_at = 24; c.seamB = 3
    if c.sk:
        c.rounds = [(8, 10, 14), (10, 12, 14), (12, 20, 7), (20, 28, 7)]; c.prepoll_at = 10; c.gate_all_at = 12
    prod_setup(a, c)
    if not c.early: pre_B(a, c)
    side = {}
    c.round_hook = {}
    if OPT["xt"] and not c.sk:
        xtouch_setup(a, P_W2, 7 * MB, 44, 23)
        w2_xtouch(a, 0); w2_xtouch(a, 3)
        side = {4: [lambda: w2_xtouch(a, 1)]}
        c.round_hook = {24: lambda: w2_xtouch(a, 2)}
    if not OPT["w1t"]:
        a("s_barrier")
        a("s_barrier")
    if OPT["own"]:
        w2_producer(a, c)
    else:
        gate_setup(a, 0, False)
        gemm_producer(a, c, True, "narrow", side, None, 8 if c.sk else 16)
    stamp_flush(a)
    a("L_end:")
    a("s_endpgm")
    a("L_code_end:")
    body, nins = hazard.fix(a.lines)
    hdr = []
    if header_src:
        for ln in open(header_src):
            if ln.startswith(";") and "@launch" not in ln:
                hdr.append(ln.rstrip("\n"))
            elif not ln.startswith(";"):
                break
    hdr.append(f"; @launch grid=(256,1,1) block=(512,1,1) lds=163840")
    hdr.append('.amdgcn_target "amdgcn-amd-amdhsa--gfx950"')
    hdr.append(".text")
    return "\n".join(hdr) + "\n" + "\n".join(body) + "\n" + kernel_desc(KNAME, 256, 102), nins

if __name__ == "__main__":
    if "--diag" in sys.argv:
        DIAG = True; sys.argv.remove("--diag")
    for arg in list(sys.argv[1:]):
        if "=" in arg:
            k_, v_ = arg.split("=", 1)
            if "." in k_:
                kk, f_ = k_.split(".")
                for kind_ in (CFG.keys() if kk == "all" else [kk]): CFG[kind_][f_] = int(v_)
            else: OPT[k_] = int(v_)
            sys.argv.remove(arg)
    out = sys.argv[1] if len(sys.argv) > 1 else "p1.s"
    txt, nins = build(header_src="sequential_preLN__sliding_block__dense_activation_silu__prompt.s.ref")
    open(out, "w").write(txt)
    print("wrote", out, len(txt), "bytes; nop states inserted:", nins)
```

```python
import sys, struct
from asmlib import *
import hazard

MB = 1 << 20
K_OFF = 8 * MB
V_OFF = 12 * MB
O_OFF = 16 * MB
H_OFF = 20 * MB
H1_OFF = 24 * MB
FL_OFF = 40 * MB
RS1_OFF = 41 * MB
CSG_OFF = 42 * MB
FIN_OFF = 41 * MB + 524288
XP_OFF = 44 * MB
ST2_OFF = 43 * MB
DIAG_OFF = 64 * MB
LOG2E = 1.4426950408889634
KNAME = "sequential_preLN__sliding_block__dense_activation_silu__prompt_kernel"
P_X, P_WQKV, P_WO, P_W1, P_W2, P_OUT, P_DBG, P_WS = 80, 82, 84, 88, 90, 92, 94, 4
TAG = 72
FLS = 76
ST = 155648
ST_REC, ST_MEAN, ST_RSTD, ST_CS, ST_CSP = ST, ST + 2048, ST + 2560, ST + 3072, ST + 4096
HEADW = 57344
XB0 = 122880
XB1 = 81920
XCH = 147456
XST = 147456
ST_TAG = ST + 4096
HRES = 232
DEF = 200
VS = 254
DIAG = False
OPT = dict(owno=0, w1t=0, pb=9, two=2, q2=8, own1=4, ownm=1, own=1, sktail=3, sksig=4, deepb=0, tlb=0, align=0, skrpg=1, bis=5, att2=1, attbar=1, osf=1, t0=0, spin=0, eb2=1, sigA2=2, peel=8, cspl=0, xst=1, reslate=0, sent=0, pfg=1, help=4, snake=1, rot0=4, early0=0, dil=1, sk=1, skfull=0, pf=3, xt=1, prio=0, inv=0, nodma=0, steps=0, kvlocal=0, cpf=1, nbf=1, sigA=3, sigB=3, qnt=0, bar2=0, defer=0, dper=2, dstart=0, prepoll=21, wobar=0)

def xb1(): return 0 if OPT['deepb'] else XB1

DESC = """
; Persistent single-launch transformer block (generated by a hand-written Python emitter, work/gen2.py).
; 256 workgroups (one per CU), 8 waves: waves 0-3 MFMA consumers, waves 4-7 LDS-DMA producers.
; Hand-offs between workgroups: write-through stores, drained, then a per-wave flag carrying a launch-unique tag.
"""

def f32(x):
    return "0x%08x" % struct.unpack("<I", struct.pack("<f", x))[0]

def srd_off(a, d, ptr, off, nrec):
    a(f"s_add_u32 s{d}, s{ptr}, {off}")
    a(f"s_addc_u32 s{d+1}, s{ptr+1}, 0")
    a(f"s_mov_b32 s{d+2}, {nrec}")
    a(f"s_mov_b32 s{d+3}, 0x20000")

def hold(a, key):
    if not OPT.get(key): return
    l = a.label("hold")
    a(f"""
    {l}:
    s_memrealtime s[96:97]
    s_waitcnt lgkmcnt(0)
    s_sub_u32 s96, s96, s{TAG}
    s_cmp_lt_u32 s96, {OPT[key]}
    s_cbranch_scc1 {l}
    """)

def stamp(a, idx):
    if not DIAG: return
    a("s_memrealtime s[96:97]")
    a("s_waitcnt lgkmcnt(0)")
    a(f"v_writelane_b32 v{VS}, s96, {idx}")

def stamp_flush(a):
    if not DIAG: return
    srd_off(a, 16, P_WS, DIAG_OFF, 524288)
    a(f"""
    s_lshl_b32 s30, s2, 11
    s_lshl_b32 s31, s3, 8
    s_add_u32 s30, s30, s31
    v_lshlrev_b32 v{VS+1}, 2, v1
    buffer_store_dword v{VS}, v{VS+1}, s[16:19], s30 offen
    """)

def pbar(a):
    a("s_barrier")
    if DIAG and OPT["steps"]:
        a("s_memtime s[96:97]" if OPT["steps"] == 2 else "s_memrealtime s[96:97]")
        a("""
        s_waitcnt lgkmcnt(0)
        s_mov_b32 m0, s99
        s_nop 0
        v_writelane_b32 v252, s96, m0
        s_add_u32 s99, s99, 1
        """)

def pbar_flush(a, ph):
    if not (DIAG and OPT["steps"]): return
    srd_off(a, 16, P_WS, DIAG_OFF + 524288 * (1 + ph), 524288)
    a(f"""
    s_lshl_b32 s30, s2, 11
    s_lshl_b32 s31, s3, 8
    s_add_u32 s30, s30, s31
    v_lshlrev_b32 v2, 2, v1
    buffer_store_dword v252, v2, s[16:19], s30 offen
    """)

def wgmap(a, RX, CX):
    CT = 16 // CX; RB = 16 // RX
    lg = lambda x: x.bit_length() - 1
    a(f"""
    s_and_b32 s30, s2, 7
    s_lshr_b32 s31, s2, 3
    s_lshr_b32 s24, s30, {lg(CX)}
    s_lshl_b32 s24, s24, {lg(RB)}
    s_and_b32 s25, s30, {CX-1}
    s_lshl_b32 s25, s25, {lg(CT)}
    s_lshr_b32 s30, s31, {lg(CT)}
    s_add_u32 s24, s24, s30
    s_and_b32 s30, s31, {CT-1}
    s_add_u32 s25, s25, s30
    """)

def st2(a, text):
    if not OPT["kvlocal"]:
        a(text + " sc0 sc1"); return
    l1 = a.label("skip_s1"); l2 = a.label("skip_s2")
    a(f"""
    s_cmp_lg_u32 s55, 0
    s_cbranch_scc1 {l1}
    {text} sc0 sc1
    s_branch {l2}
    {l1}:
    {text}
    {l2}:
    """)

def signal(a, seam, slot_shift, t, local=False, cnt=0, plain0=False, rbj=('s24', 's25')):
    kv = seam == 0 and not plain0
    a(f"""
    s_lshl_b32 s40, {rbj[0]}, {11 if kv else 10}
    s_lshl_b32 s41, {rbj[1]}, {7 if kv else slot_shift+3}
    s_add_u32 s40, s40, s41
    s_lshl_b32 s41, s3, 3
    s_add_u32 s40, s40, s41
    s_add_u32 s40, s40, {65536 if kv else seam*16384}
    v_mov_b32 v{t}, s{TAG}
    v_mov_b32 v{t+1}, s{TAG+1}
    v_mov_b32 v{t+2}, 0
    s_waitcnt vmcnt({cnt})
    s_mov_b64 exec, 1
    """)
    txt = f"buffer_store_dwordx2 v[{t}:{t+1}], v{t+2}, s[{FLS}:{FLS+3}], s40 offen"
    if local: st2(a, txt)
    else: a(txt + " sc0 sc1")
    a("s_mov_b64 exec, -1")

def wait_flags(a, voff, soff, wide, t):
    lp = a.label("poll"); dn = a.label("polld")
    a(f"s_mov_b32 s39, 0x100000")
    if OPT["inv"] == 1: a("buffer_inv sc1")
    a(f"{lp}:")
    if wide:
        a(f"buffer_load_dwordx4 v[{t}:{t+3}], v{voff}, s[{FLS}:{FLS+3}], {soff} offen sc0 sc1")
    else:
        a(f"buffer_load_dwordx2 v[{t}:{t+1}], v{voff}, s[{FLS}:{FLS+3}], {soff} offen sc0 sc1")
    a("s_waitcnt vmcnt(0)")
    a(f"v_cmp_eq_u64 vcc, s[{TAG}:{TAG+1}], v[{t}:{t+1}]")
    if wide:
        a(f"v_cmp_eq_u64 s[36:37], s[{TAG}:{TAG+1}], v[{t+2}:{t+3}]")
        a("s_nop 3")
        a("s_and_b64 vcc, vcc, s[36:37]")
    else:
        a("s_nop 3")
    a(f"""
    s_cmp_eq_u64 vcc, -1
    s_cbranch_scc1 {dn}
    s_sleep 1
    s_sub_u32 s39, s39, 1
    s_cmp_lg_u32 s39, 0
    s_cbranch_scc1 {lp}
    {dn}:
    """)
    if OPT["inv"] == 2: a("buffer_inv sc1")

class G: pass
NBF = ['', ' sc1', ' sc0']

def mk(kind, **kw):
    c = G(); c.kind = kind; c.__dict__.update(kw)
    c.sk = 0
    c.pvb, c.sb, c.s35 = 8, 12, "s35"
    c.early = 0
    if kind == "wo" and OPT["xst"]: c.S = min(c.S, 4)
    if kind == "w2" and OPT["sk"]:
        c.sk = 1; c.BN = 128; c.NT = 4; c.S = 4; c.BBASE = 65536; c.full = OPT["skfull"]; c.rpg = OPT["skrpg"]; c.pstride = 512
        if OPT["eb2"]:
            c.early = 1; c.pvb, c.sb, c.s35 = 16, 52, "s41"; c.BBASE = 77824
    c.SB = c.S; c.bs0 = 0
    if kind == "wo" and OPT["deepb"]:
        c.S = 3; c.SB = 12; c.bs0 = 8; c.BBASE = 49152
    c.n = c.K // 64 // (2 if c.sk else 1)
    c.BB = c.BN * 128
    c.NBW = c.BB // 4096
    c.gmul = 4 if c.korder == "F" else 8
    c.rdrows = 16 if c.korder == "F" else 4
    c.RS = 128 if c.layout == "panel" else 448
    return c

CFG = dict(
    qkv=dict(K=1024, BN=192, NT=6, S=3, korder="N", layout="panel", wp=P_WQKV, ldb=6144, bcol=128, pstride=2048,
             a_off=None, normal_tiles=(4, 5), RX=2, CX=4, rpg=1, ABASE=0, BBASE=49152, ln=True, sid=0, lt=0, full=0, rot=0),
    wo=dict(K=1024, BN=64, NT=2, S=5, korder="F", layout="panel", wp=P_WO, ldb=2048, bcol=128, pstride=0,
            a_off=O_OFF, normal_tiles=(), RX=2, CX=4, rpg=2, ABASE=0, BBASE=114688, ln=False, sid=16, lt=0, full=1, rot=2),
    w1=dict(K=1024, BN=224, NT=7, S=3, korder="F", layout="w1", wp=P_W1, ldb=7168, bcol=448, pstride=0,
            a_off=H_OFF, normal_tiles=(), RX=2, CX=4, rpg=1, ABASE=0, BBASE=49152, ln=True, sid=24, lt=0, full=0, rot=2),
    w2=dict(K=3584, BN=64, NT=2, S=6, korder="F", layout="panel", wp=P_W2, ldb=2048, bcol=128, pstride=0,
            a_off=H1_OFF, normal_tiles=(), RX=2, CX=4, rpg=2, ABASE=0, BBASE=98304, ln=False, sid=32, lt=0, full=1, rot=0),
)

def gemm_consumer(a, c):
    kind = c.kind; n = c.n; S = c.S; NT = c.NT; RS = c.RS
    vA0, vA10, vB00, vB01, vB02, vA, vA1, vB0, vB1, vB2 = 2, 3, 4, 5, 6, 7, 8, 9, 10, 11
    vG = 12; vCH = 13
    t0, t1 = 14, 15
    ACC = 16
    FX = ACC + 16 * NT
    FSZ = 16 + 4 * NT
    if c.full: FSZ *= 2
    FY = FX + FSZ
    VTOP = FY + FSZ
    acc = lambda mt, nt: ACC + (nt * 4 + mt) * 4
    wgmap(a, c.RX, c.CX)
    T = FX
    if kind == "qkv": row_stats_issue(a, FY)
    a(f"""
    s_lshr_b32 s34, s3, 1
    s_and_b32 s35, s3, 1
    v_lshlrev_b32 v{vCH}, 4, v1
    s_lshl_b32 s30, s34, 12
    v_add_u32 v{vCH}, s30, v{vCH}
    v_lshrrev_b32 v{vG}, 4, v1
    v_bfe_u32 v{T}, v1, 2, 2
    v_and_b32 v{T+1}, 3, v1
    """)
    if c.a_off is None:
        a(f"""
        v_and_b32 v{t0}, 15, v1
        v_lshrrev_b32 v{t1}, 1, v{t0}
        v_xor_b32 v{t1}, v{t1}, v{vG}
        v_lshlrev_b32 v{t1}, 4, v{t1}
        v_lshl_add_u32 v{vA0}, v{t0}, 7, v{t1}
        s_lshl_b32 s30, s34, 13
        v_add_u32 v{vA0}, s30, v{vA0}
        v_xor_b32 v{vA10}, 64, v{vA0}
        """)
        aread = lambda mt, kg: ((vA, vA1)[kg], mt * 2048)
    else:
        a(f"v_mov_b32 v{vA0}, v{vCH}")
        aread = lambda mt, kg: (vA, kg * 8192 + mt * 1024)
    if c.layout == "panel":
        a(f"""
        v_mul_u32_u24 v{t0}, {c.gmul}, v{vG}
        v_add_u32 v{t0}, v{t0}, v{T}
        v_lshlrev_b32 v{t0}, 7, v{t0}
        v_lshl_add_u32 v{t0}, v{T+1}, 3, v{t0}
        v_lshrrev_b32 v{t1}, 1, v{T}
        v_and_b32 v{T+2}, 1, v{vG}
        v_lshl_or_b32 v{t1}, v{T+2}, 1, v{t1}
        s_lshl_b32 s30, s35, 1
        v_xor_b32 v{t1}, s30, v{t1}
        v_lshl_add_u32 v{vB00}, v{t1}, 5, v{t0}
        v_xor_b32 v{t1}, 1, v{t1}
        v_lshl_add_u32 v{vB01}, v{t1}, 5, v{t0}
        """)
        def bread(nt, kg, rd):
            return (vB0 if nt % 2 == 0 else vB1), (nt // 2) * 8192 + kg * 32 * RS + rd * c.rdrows * RS
    else:
        a(f"""
        v_mul_u32_u24 v{t0}, {c.gmul}, v{vG}
        v_add_u32 v{t0}, v{t0}, v{T}
        v_mul_u32_u24 v{t0}, {RS}, v{t0}
        v_lshl_add_u32 v{t0}, v{T+1}, 3, v{t0}
        v_and_b32 v{t1}, 1, v{vG}
        v_lshlrev_b32 v{T+2}, 5, v{t1}
        s_lshl_b32 s30, s35, 8
        v_add_u32 v{T+3}, s30, v{t0}
        v_add_u32 v{vB00}, v{T+3}, v{T+2}
        v_sub_u32 v{vB01}, v{T+3}, v{T+2}
        s_add_u32 s30, s35, 6
        v_xor_b32 v{t1}, s30, v{t1}
        v_lshl_add_u32 v{vB02}, v{t1}, 5, v{t0}
        """)
        def bread(nt, kg, rd):
            o = kg * 32 * RS + rd * c.rdrows * RS
            if nt == 6: return vB2, o
            return (vB0 if nt % 2 == 0 else vB1), o + nt * 32
    RES = VTOP
    if kind == "wo":
        srd_off(a, 20, P_X, 0, 4 * MB)
        a(f"""
        v_and_b32 v{t0}, 15, v1
        v_lshlrev_b32 v{t0}, 11, v{t0}
        v_lshl_add_u32 v{t0}, v{vG}, 3, v{t0}
        s_lshl_b32 s30, s24, 18
        s_lshl_b32 s31, s34, 17
        s_add_u32 s30, s30, s31
        s_lshl_b32 s31, s25, 7
        s_add_u32 s30, s30, s31
        s_lshl_b32 s31, s35, 6
        s_add_u32 s30, s30, s31
        """)
        def res_loads():
            for mt in range(4):
                for nt in range(2):
                    r = RES + mt * 4 + nt * 2
                    a(f"buffer_load_dwordx2 v[{r}:{r+1}], v{t0}, s[20:23], s30 offen offset:{nt*32}")
                a("s_add_u32 s30, s30, 32768")
        if not OPT["reslate"] and not OPT["xst"]: res_loads()
    if kind == "wo" and OPT["xst"]:
        a(f"""
        v_and_b32 v{t0}, 15, v1
        v_lshrrev_b32 v{t1}, 1, v{t0}
        v_lshrrev_b32 v{T}, 1, v{vG}
        s_lshl_b32 s30, s35, 2
        v_add_u32 v{T}, s30, v{T}
        v_xor_b32 v{t1}, v{t1}, v{T}
        v_lshlrev_b32 v{t1}, 4, v{t1}
        v_lshl_add_u32 v{t1}, v{t0}, 7, v{t1}
        v_and_b32 v{T}, 1, v{vG}
        v_lshl_add_u32 v{t1}, v{T}, 3, v{t1}
        s_lshl_b32 s30, s34, 13
        s_add_u32 s30, s30, {XST}
        v_add_u32 v{t1}, s30, v{t1}
        v_xor_b32 v{t0}, 32, v{t1}
        """)
        for mt in range(4):
            for nt in range(2):
                r = RES + mt * 4 + nt * 2
                a(f"ds_read_b64 v[{r}:{r+1}], v{t0 if nt else t1} offset:{mt*2048}")
    for i in range(16 * NT):
        a(f"v_mov_b32 v{ACC+i}, 0")
    abases = [(vA, vA0)] + ([(vA1, vA10)] if c.a_off is None else [])
    bbases = [(vB0, vB00), (vB1, vB01)] + ([(vB2, vB02)] if c.layout != "panel" else [])
    a(f"s_mov_b32 s27, {c.ABASE}")
    a(f"s_mov_b32 s32, {c.BBASE + c.bs0*c.BB}")
    setb = [f"v_add_u32 v{x}, s27, v{y}" for x, y in abases] + [f"v_add_u32 v{x}, s32, v{y}" for x, y in bbases]
    for x in setb: a(x)
    RT = OPT["sktail"] if (c.sk and not c.full) else 0
    W1T = kind == "w1" and OPT["w1t"]
    a(f"s_mov_b32 s26, {n - 2 if W1T else (n - 1 if (c.ln and OPT['peel']) else n - RT)}")
    def reads(F, kg, tiles=None):
        r = []
        tiles = list(range(NT)) if tiles is None else tiles
        for nt in tiles:
            for rd in range(2):
                b, o = bread(nt, kg, rd)
                d = F + 16 + nt * 4 + rd * 2
                r.append(f"ds_read_b64_tr_b16 v[{d}:{d+1}], v{b} offset:{o}")
            if nt == tiles[0]:
                for mt in range(4):
                    d = F + mt * 4
                    b, o = aread(mt, kg)
                    r.append(f"ds_read_b128 v[{d}:{d+3}], v{b} offset:{o}")
        return r
    def mfmas(F, tiles=None):
        m = []
        for nt in (range(NT) if tiles is None else tiles):
            for mt in (range(4) if (nt % 2 == 0 or not OPT["snake"]) else range(3, -1, -1)):
                A = F + mt * 4; B = F + 16 + nt * 4; D = acc(mt, nt)
                if nt in c.normal_tiles:
                    m.append(f"v_mfma_f32_16x16x32_bf16 v[{D}:{D+3}], v[{A}:{A+3}], v[{B}:{B+3}], v[{D}:{D+3}]")
                else:
                    m.append(f"v_mfma_f32_16x16x32_bf16 v[{D}:{D+3}], v[{B}:{B+3}], v[{A}:{A+3}], v[{D}:{D+3}]")
        return m
    loop = a.label("c_loop")
    if kind == "qkv": row_stats_finish(a, FY, FX)
    stamp(a, c.sid)
    a("s_barrier")
    hold(a, "h_" + kind)
    stamp(a, c.sid + 1)
    adv = [f"s_add_u32 s27, s27, 16384", f"s_add_u32 s32, s32, {c.BB}", f"s_cmp_eq_u32 s27, {c.ABASE + S*16384}",
           f"s_cselect_b32 s27, {c.ABASE}, s27"] + ([f"s_cmp_eq_u32 s32, {c.BBASE + c.SB*c.BB}"] if c.SB != S else []) + [f"s_cselect_b32 s32, {c.BBASE}, s32"] + setb
    def pk4(t, p0, p1):
        a(f"v_cvt_pk_bf16_f32 v{t}, v{p0}, v{p0+1}")
        a(f"v_cvt_pk_bf16_f32 v{t+1}, v{p0+2}, v{p0+3}")
        a(f"v_cvt_pk_bf16_f32 v{t+2}, v{p1}, v{p1+1}")
        a(f"v_cvt_pk_bf16_f32 v{t+3}, v{p1+2}, v{p1+3}")
    vX = VTOP + 4
    def sk_send():
        srd_off(a, 20, P_WS, XP_OFF, 8 * MB)
        a(f"""
        s_lshl_b32 s30, s24, 19
        s_lshl_b32 s31, s3, 13
        s_add_u32 s30, s30, s31
        s_lshl_b32 s31, s25, 15
        s_add_u32 s33, s30, s31
        s_xor_b32 s31, s31, {4 << 15}
        s_add_u32 s37, s30, s31
        v_lshlrev_b32 v{vX}, 4, v1
        """)
        for mt in range(4):
            t = acc(mt, 2)
            pk4(t, acc(mt, 2), acc(mt, 3))
            a(f"buffer_store_dwordx4 v[{t}:{t+3}], v{vX}, s[20:23], s33 offen offset:{mt*1024} sc0 sc1")
    def epi_setup():
        b = Asm(); r = []
        if kind == "qkv":
            REC, CSQ, MV, RV, CSV = T, T + 16, VTOP, VTOP + 16, VTOP + 32
            b(f"""
            v_and_b32 v{t0}, 15, v1
            v_lshlrev_b32 v{vA}, 4, v{t0}
            s_lshl_b32 s30, s34, 10
            s_add_u32 s30, s30, {ST_REC}
            v_add_u32 v{vA}, s30, v{vA}
            v_lshlrev_b32 v{vA1}, 4, v{vG}
            s_lshl_b32 s30, s35, 7
            s_add_u32 s30, s30, {ST_CS}
            v_add_u32 v{vB0}, s30, v{vA1}
            v_lshlrev_b32 v{vB1}, 2, v{t0}
            v_add_u32 v{vB1}, s30, v{vB1}
            s_lshl_b32 s30, s34, 8
            s_add_u32 s30, s30, {ST_MEAN}
            v_add_u32 v{vA1}, s30, v{vA1}
            """)
            srd_off(b, 16, P_WS, K_OFF, 8 * MB)
            b(f"""
            s_lshl_b32 s30, s25, 1
            s_add_u32 s30, s30, s35
            s_lshl_b32 s30, s30, 17
            s_lshl_b32 s31, s24, 13
            s_add_u32 s30, s30, s31
            s_add_u32 s31, s30, {4*MB}
            s_mul_i32 s33, s35, {HEADW}
            v_add_u32 v{vB2}, s33, v{vCH}
            """)
            for mt in range(4):
                r.append(f"ds_read_b128 v[{REC+4*mt}:{REC+4*mt+3}], v{vA} offset:{mt*256}")
            for nt in range(4):
                r.append(f"ds_read_b128 v[{CSQ+4*nt}:{CSQ+4*nt+3}], v{vB0} offset:{(nt//2)*256 + (nt%2)*64}")
            for mt in range(4):
                r.append(f"ds_read_b128 v[{MV+4*mt}:{MV+4*mt+3}], v{vA1} offset:{mt*64}")
                r.append(f"ds_read_b128 v[{RV+4*mt}:{RV+4*mt+3}], v{vA1} offset:{512 + mt*64}")
            for dt in range(2):
                r.append(f"ds_read_b32 v{CSV+2*dt}, v{vB1} offset:{512 + dt*64}")
        else:
            CSR = T; REC = T + 28
            srd_off(b, 16, P_WS, H1_OFF, 14 * MB)
            b(f"""
            v_and_b32 v{t0}, 15, v1
            v_lshlrev_b32 v{vA}, 4, v{t0}
            s_lshl_b32 s30, s34, 10
            s_add_u32 s30, s30, {ST_REC}
            v_add_u32 v{vA}, s30, v{vA}
            v_lshlrev_b32 v{t1}, 4, v{vG}
            s_lshl_b32 s30, s35, 9
            s_add_u32 s30, s30, {ST_CS}
            v_add_u32 v{vB0}, s30, v{t1}
            s_lshl_b32 s30, s35, 6
            s_add_u32 s30, s30, {ST_CS}
            v_add_u32 v{vB1}, s30, v{t1}
            s_mul_i32 s30, s24, {112*8192}
            s_mul_i32 s31, s25, {7*8192}
            s_add_u32 s30, s30, s31
            s_add_u32 s36, s30, {3*8192}
            s_lshl_b32 s31, s35, 15
            s_add_u32 s30, s30, s31
            s_add_u32 s31, s30, 8192
            s_add_u32 s37, s30, 16384
            s_lshl_b32 s33, s35, 3
            s_add_u32 s33, s33, {XCH}
            v_add_u32 v{vB2}, s33, v{vCH}
            """)
            for mt in range(4):
                r.append(f"ds_read_b128 v[{REC+4*mt}:{REC+4*mt+3}], v{vA} offset:{mt*256}")
            r.append(f"ds_read_b128 v[{CSR+24}:{CSR+27}], v{vB1} offset:{6*64}")
            for nt in range(6):
                r.append(f"ds_read_b128 v[{CSR+4*nt}:{CSR+4*nt+3}], v{vB0} offset:{nt*64}")
        return [x.strip() for x in b.lines], r
    peel = c.ln and OPT["peel"] and not W1T
    def silu_l(mt, nt, e, m, cs):
        p = acc(mt, nt); o = []
        for h in range(2):
            o.append(f"v_pk_fma_f32 v[{p+2*h}:{p+2*h+1}], v[{m}:{m+1}], v[{cs+2*h}:{cs+2*h+1}], v[{p+2*h}:{p+2*h+1}] op_sel_hi:[0,1,1] neg_lo:[1,0,0] neg_hi:[1,0,0]")
        for h in range(2):
            o.append(f"v_pk_mul_f32 v[{e+2*h}:{e+2*h+1}], v[{m}:{m+1}], v[{p+2*h}:{p+2*h+1}] op_sel:[1,0] op_sel_hi:[1,1]")
        for r in range(4): o.append(f"v_exp_f32 v{e+r}, v{e+r}")
        for h in range(2):
            o.append(f"v_pk_fma_f32 v[{e+2*h}:{e+2*h+1}], v[{e+2*h}:{e+2*h+1}], v[{m+2}:{m+3}], v[{m+2}:{m+3}]")
        for r in range(4): o.append(f"v_rcp_f32 v{e+r}, v{e+r}")
        for h in range(2):
            o.append(f"v_pk_mul_f32 v[{p+2*h}:{p+2*h+1}], v[{p+2*h}:{p+2*h+1}], v[{e+2*h}:{e+2*h+1}]")
        return o
    NI = n // 2 if c.full else n - RT
    def w2hook_c():
        if kind == "wo" and OPT["reslate"]:
            back = a.label("woback"); late = a.label("wolate")
            a(f"s_cmp_eq_u32 s26, {OPT['reslate']}")
            a(f"s_cbranch_scc1 {late}")
            a(f"{back}:")
            def ool():
                a(f"{late}:")
                res_loads()
                a(f"s_branch {back}")
            c.ool = ool
        if kind == "w2":
            back = a.label("w2back"); early = a.label("w2early")
            a(f"s_cmp_ge_u32 s26, {NI - OPT['sigB']}")
            a(f"s_cbranch_scc1 {early}")
            a(f"{back}:")
            def ool():
                a(f"{early}:")
                nst = OPT["dper"]
                its = 8 // nst if OPT["defer"] else 0
                for it in range(its):
                    nx = a.label("skip_e")
                    a(f"s_cmp_lg_u32 s26, {NI - it - OPT['dstart']}")
                    a(f"s_cbranch_scc1 {nx}")
                    for k in range(it * nst, it * nst + nst):
                        r = DEF + k * 4
                        a(f"buffer_store_dwordx4 v[{r}:{r+3}], v{vCH}, s[16:19], {'s44' if k < 4 else 's45'} offen offset:{(k%4)*1024} sc0 sc1")
                    a(f"s_branch {back}")
                    a(f"{nx}:")
                a(f"s_cmp_lg_u32 s26, {NI - OPT['sigB']}")
                a(f"s_cbranch_scc1 {back}")
                signal(a, 3, 2, VTOP, rbj=("s42", "s43"))
                a(f"s_branch {back}")
            c.ool = ool

    if c.full:
        H = FSZ // 2
        rd2 = lambda F: reads(F, 0) + reads(F + H, 1)
        mf2 = lambda F: mfmas(F) + mfmas(F + H)
        a(f"s_mov_b32 s26, {n//2}")
        for r in rd2(FX): a(r)
        for x in adv: a(x)
        if kind == "wo" and OPT["owno"] == 2:
            a("s_waitcnt lgkmcnt(0)")
            for x in mf2(FX): a(x)
            a("s_barrier")
            for r in rd2(FY) + adv: a(r)
            a("s_waitcnt lgkmcnt(0)")
            a("s_barrier")
            for x in interleave(mf2(FY), rd2(FX) + adv, 0, 1, c.rpg): a(x)
            a("s_sub_u32 s26, s26, 1")
        if OPT["align"]: a(f".p2align {OPT['align']}")
        a(f"{loop}:")
        w2hook_c()
        a("s_waitcnt lgkmcnt(0)")
        a("s_barrier")
        for x in interleave(mf2(FX), rd2(FY) + adv, 0, 1, c.rpg): a(x)
        a("s_waitcnt lgkmcnt(0)")
        a("s_barrier")
        for x in interleave(mf2(FY), rd2(FX) + adv + ["s_sub_u32 s26, s26, 1", "s_cmp_lg_u32 s26, 0"], 0, 1, c.rpg): a(x)
        a(f"s_cbranch_scc1 {loop}")
        a("s_waitcnt lgkmcnt(0)")
    else:
        for r in reads(FX, 0): a(r)
        if kind == "w1" and OPT["own1"]:
            a("s_waitcnt lgkmcnt(0)")
            for x in interleave(mfmas(FX), reads(FY, 1) + adv, 0, 1, c.rpg): a(x)
            a("s_waitcnt lgkmcnt(0)")
            m_ = mfmas(FY); kb_ = len(m_) - OPT["own1"]
            for x in m_[:kb_]: a(x)
            a("s_barrier")
            for x in interleave(m_[kb_:], reads(FX, 0), 0, 1, 2): a(x)
            a("s_sub_u32 s26, s26, 1")
        if OPT["align"]: a(f".p2align {OPT['align']}")
        a(f"{loop}:")
        w2hook_c()
        a("s_waitcnt lgkmcnt(0)")
        for x in interleave(mfmas(FX), reads(FY, 1) + adv, 0, 1, c.rpg): a(x)
        a("s_waitcnt lgkmcnt(0)")
        a("s_barrier")
        for x in interleave(mfmas(FY), reads(FX, 0) + ["s_sub_u32 s26, s26, 1", "s_cmp_lg_u32 s26, 0"], 0, 1, c.rpg): a(x)
        a(f"s_cbranch_scc1 {loop}")
        a("s_waitcnt lgkmcnt(0)")
        if W1T:
            RECT = 216
            def setst1(st):
                return [f"v_add_u32 v{x}, {c.ABASE + (st % S)*16384}, v{y}" for x, y in abases] + [f"v_add_u32 v{x}, {c.BBASE + (st % S)*c.BB}, v{y}" for x, y in bbases]
            G1 = [0, 1]; G2 = [2, 3, 4, 5, 6]
            b_ = Asm()
            srd_off(b_, 16, P_WS, H1_OFF, 14 * MB)
            b_(f"""
            v_and_b32 v{t0}, 15, v1
            v_lshlrev_b32 v{vA1}, 4, v{t0}
            s_lshl_b32 s30, s34, 10
            s_add_u32 s30, s30, {ST_REC}
            v_add_u32 v{vA1}, s30, v{vA1}
            v_lshlrev_b32 v{t1}, 4, v{vG}
            s_lshl_b32 s30, s35, 9
            s_add_u32 s30, s30, {ST_CS}
            v_add_u32 v{vA10}, s30, v{t1}
            s_lshl_b32 s30, s35, 6
            s_add_u32 s30, s30, {ST_CS}
            v_add_u32 v{t1}, s30, v{t1}
            s_mul_i32 s30, s24, {112*8192}
            s_mul_i32 s31, s25, {7*8192}
            s_add_u32 s30, s30, s31
            s_add_u32 s36, s30, {3*8192}
            s_lshl_b32 s31, s35, 15
            s_add_u32 s30, s30, s31
            s_add_u32 s31, s30, 8192
            s_add_u32 s37, s30, 16384
            """)
            alu = [x.strip() for x in b_.lines]
            for x in interleave(mfmas(FX), reads(FY, 1, G1) + alu, 0, 1, 1): a(x)
            a("s_waitcnt lgkmcnt(0)")
            for x in setst1(15): a(x)
            a("s_barrier")
            for x in interleave(mfmas(FY, G1), reads(FX, 0, G1), 0, 1, 1): a(x)
            a("s_waitcnt lgkmcnt(0)")
            for x in interleave(mfmas(FX, G1), reads(FY, 1, G1), 0, 1, 1): a(x)
            a("s_waitcnt lgkmcnt(0)")
            a("s_barrier")
            rX = [r for r in reads(FX, 0, G2) if "tr_b16" in r]
            st_ = [f"ds_read_b128 v[{RECT+4*mt}:{RECT+4*mt+3}], v{vA1} offset:{mt*256}" for mt in range(4)]
            st_ += [f"ds_read_b128 v[{FX+16+4*nt}:{FX+19+4*nt}], v{vA10} offset:{nt*64}" for nt in range(2)]
            for x in interleave(mfmas(FY, G1), rX + st_, 0, 1, 2): a(x)
            a("s_waitcnt lgkmcnt(0)")
            stamp(a, 50)
            ep = []
            for mt in range(4):
                ep += silu_l(mt, 0, FY + 16, RECT + 4 * mt, FX + 16) + silu_l(mt, 1, FY + 20, RECT + 4 * mt, FX + 20)
                p0 = acc(mt, 0); p1 = acc(mt, 1)
                ep += [f"v_cvt_pk_bf16_f32 v{p0}, v{p0}, v{p0+1}", f"v_cvt_pk_bf16_f32 v{p0+1}, v{p0+2}, v{p0+3}",
                       f"v_cvt_pk_bf16_f32 v{p0+2}, v{p1}, v{p1+1}", f"v_cvt_pk_bf16_f32 v{p0+3}, v{p1+2}, v{p1+3}",
                       f"buffer_store_dwordx4 v[{p0}:{p0+3}], v{vCH}, s[16:19], s30 offen offset:{mt*1024} sc0 sc1"]
            k3 = len(ep) // 3
            rY = [r for r in reads(FY, 1, G2) if "tr_b16" in r]
            def mix(m, rd_, e_):
                out = []; ne = len(e_); nm = len(m); ei = 0
                for i, x in enumerate(m):
                    out.append(x)
                    if i < len(rd_): out.append(rd_[i])
                    tgt = (ne * (i + 1)) // nm
                    while ei < tgt: out.append(e_[ei]); ei += 1
                return out + rd_[nm:]
            for x in mix(mfmas(FX, G2), rY, ["s_nop 3"] + ep[:k3]): a(x)
            a("s_waitcnt lgkmcnt(0)")
            for x in setst1(14): a(x)
            for x in mix(mfmas(FY, G2), reads(FX, 1, G2), ep[k3:2*k3]): a(x)
            a("s_waitcnt lgkmcnt(0)")
            cs_ = [f"ds_read_b128 v[{FY+4*(nt-2)}:{FY+4*(nt-2)+3}], v{vA10} offset:{nt*64}" for nt in range(2, 6)]
            cs_.append(f"ds_read_b128 v[{FY+24}:{FY+27}], v{t1} offset:{6*64}")
            for x in mix(mfmas(FX, G2), ["s_nop 0"] * 2 + cs_, ep[2*k3:]): a(x)
        if RT:
            def setst(st):
                return [f"v_add_u32 v{x}, {c.ABASE + (st % S)*16384}, v{y}" for x, y in abases] + [f"v_add_u32 v{x}, {c.BBASE + (st % S)*c.BB}, v{y}" for x, y in bbases]
            items = [(st, kg, [2, 3]) for st in range(n - RT, n) for kg in range(2)] + [(st, kg, [0, 1]) for st in range(n - RT, n) for kg in range(2)]
            sets = [FX, FY]
            for i, (st, kg, tl) in enumerate(items):
                cur = sets[i % 2]; nxt = sets[(i + 1) % 2]
                fill_ = []
                if i + 1 < len(items):
                    st2_, kg2, tl2 = items[i + 1]
                    if st2_ != st:
                        for x in setst(st2_): a(x)
                        if i + 1 < 2 * RT: a("s_barrier")
                    fill_ = reads(nxt, kg2, tl2)
                for x in interleave(mfmas(cur, tl), fill_, 0, 1, 1): a(x)
                if i == 2 * RT - 1:
                    stamp(a, c.sid + 2)
                    a("s_barrier")
                    sk_send()
                if i == 2 * RT + OPT["sksig"]:
                    signal(a, 6, 2, VTOP)
                    stamp(a, 47)
                a("s_waitcnt lgkmcnt(0)")
        if peel:
            for x in interleave(mfmas(FX), reads(FY, 1), 0, 1, c.rpg): a(x)
            a("s_waitcnt lgkmcnt(0)")
            alu, rds = epi_setup()
            m = mfmas(FY)
            if kind == "qkv": m = m[8:16] + m[16:] + m[:8]
            kb = len(m) - OPT["peel"]
            for x in interleave(m[:kb], alu, 0, 1, 2): a(x)
            a("s_barrier")
            for x in interleave(m[kb:], rds, 0, 1, 2): a(x)
    if not RT: stamp(a, c.sid + 2)
    def pk4_unused(t, p0, p1):
        a(f"v_cvt_pk_bf16_f32 v{t}, v{p0}, v{p0+1}")
        a(f"v_cvt_pk_bf16_f32 v{t+1}, v{p0+2}, v{p0+3}")
        a(f"v_cvt_pk_bf16_f32 v{t+2}, v{p1}, v{p1+1}")
        a(f"v_cvt_pk_bf16_f32 v{t+3}, v{p1+2}, v{p1+3}")
    if kind == "qkv":
        REC, CSQ, MV, RV, CSV = T, T + 16, VTOP, VTOP + 16, VTOP + 32
        if not peel:
            for x in sum(epi_setup(), []): a(x)
        a("s_waitcnt lgkmcnt(10)")
        def fold_sw(mt, nt):
            p = acc(mt, nt); m = REC + 4 * mt; cs = CSQ + 4 * nt
            for h in range(2):
                a(f"v_pk_fma_f32 v[{p+2*h}:{p+2*h+1}], v[{m}:{m+1}], v[{cs+2*h}:{cs+2*h+1}], v[{p+2*h}:{p+2*h+1}] op_sel_hi:[0,1,1] neg_lo:[1,0,0] neg_hi:[1,0,0]")
            for h in range(2):
                a(f"v_pk_mul_f32 v[{p+2*h}:{p+2*h+1}], v[{m}:{m+1}], v[{p+2*h}:{p+2*h+1}] op_sel:[1,0] op_sel_hi:[1,1]")
        for mt in range(4):
            fold_sw(mt, 2); fold_sw(mt, 3)
            t = acc(mt, 2); pk4(t, acc(mt, 2), acc(mt, 3))
            st2(a, f"buffer_store_dwordx4 v[{t}:{t+3}], v{vCH}, s[16:19], s30 offen offset:{mt*1024}")
            a(f"ds_write_b128 v{vB2}, v[{t}:{t+3}] offset:{16384 + mt*1024}")
        a("s_waitcnt lgkmcnt(4)")
        for mp in range(2):
            for dt in range(2):
                for mt in (2 * mp, 2 * mp + 1):
                    p = acc(mt, 4 + dt)
                    sel = "op_sel_hi:[1,0,1]"
                    for h in range(2):
                        a(f"v_pk_fma_f32 v[{p+2*h}:{p+2*h+1}], v[{MV+4*mt+2*h}:{MV+4*mt+2*h+1}], v[{CSV+2*dt}:{CSV+2*dt+1}], v[{p+2*h}:{p+2*h+1}] {sel} neg_lo:[1,0,0] neg_hi:[1,0,0]")
                    for h in range(2):
                        a(f"v_pk_mul_f32 v[{p+2*h}:{p+2*h+1}], v[{RV+4*mt+2*h}:{RV+4*mt+2*h+1}], v[{p+2*h}:{p+2*h+1}]")
                t = acc(2 * mp, 4 + dt); pk4(t, acc(2 * mp, 4 + dt), acc(2 * mp + 1, 4 + dt))
                st2(a, f"buffer_store_dwordx4 v[{t}:{t+3}], v{vCH}, s[16:19], s31 offen offset:{(2*mp+dt)*1024}")
                a(f"ds_write_b128 v{vB2}, v[{t}:{t+3}] offset:{24576 + 16384 + (2*mp+dt)*1024}")
        for mt in range(4):
            fold_sw(mt, 0); fold_sw(mt, 1)
            t = acc(mt, 0); pk4(t, acc(mt, 0), acc(mt, 1))
            a(f"ds_write_b128 v{vB2}, v[{t}:{t+3}] offset:{49152 + mt*1024}")
        stamp(a, c.sid + 3)
        signal(a, 0, 2, T, True)
        stamp(a, c.sid + 4)
        a("s_waitcnt lgkmcnt(0)")
    elif kind == "wo":
        srd_off(a, 16, P_WS, H_OFF, 4 * MB)
        a(f"""
        s_lshl_b32 s30, s24, 18
        s_lshl_b32 s31, s25, 14
        s_add_u32 s30, s30, s31
        s_lshl_b32 s31, s35, 13
        s_add_u32 s30, s30, s31
        s_mov_b32 s36, 0xffff0000
        s_waitcnt vmcnt(0) lgkmcnt(0)
        """)
        for mt in range(4):
            for nt in range(2):
                r = RES + mt * 4 + nt * 2; p = acc(mt, nt)
                for d in range(2):
                    a(f"v_lshlrev_b32 v{T}, 16, v{r+d}")
                    a(f"v_and_b32 v{T+1}, s36, v{r+d}")
                    a(f"v_pk_add_f32 v[{p+2*d}:{p+2*d+1}], v[{p+2*d}:{p+2*d+1}], v[{T}:{T+1}]")
            t = HRES + mt * 4
            pk4(t, acc(mt, 0), acc(mt, 1))
            a(f"buffer_store_dwordx4 v[{t}:{t+3}], v{vCH}, s[16:19], s30 offen offset:{mt*1024} sc0 sc1")
            if OPT["own1"]:
                if mt == 0: a(f"s_lshl_b32 s33, s35, 13\nv_add_u32 v{vA}, s33, v{vCH}")
                a(f"ds_write_b128 v{vA}, v[{t}:{t+3}] offset:{mt*1024}")
        SS = T + 4
        for mt in range(4):
            p0 = acc(mt, 0); p1 = acc(mt, 1)
            s_, q_ = SS + 2 * mt, SS + 2 * mt + 1
            a(f"v_pk_add_f32 v[{T}:{T+1}], v[{p0}:{p0+1}], v[{p0+2}:{p0+3}]")
            a(f"v_pk_mul_f32 v[{T+2}:{T+3}], v[{p0}:{p0+1}], v[{p0}:{p0+1}]")
            a(f"v_pk_add_f32 v[{T}:{T+1}], v[{T}:{T+1}], v[{p1}:{p1+1}]")
            a(f"v_pk_fma_f32 v[{T+2}:{T+3}], v[{p0+2}:{p0+3}], v[{p0+2}:{p0+3}], v[{T+2}:{T+3}]")
            a(f"v_pk_add_f32 v[{T}:{T+1}], v[{T}:{T+1}], v[{p1+2}:{p1+3}]")
            a(f"v_pk_fma_f32 v[{T+2}:{T+3}], v[{p1}:{p1+1}], v[{p1}:{p1+1}], v[{T+2}:{T+3}]")
            a(f"v_pk_fma_f32 v[{T+2}:{T+3}], v[{p1+2}:{p1+3}], v[{p1+2}:{p1+3}], v[{T+2}:{T+3}]")
            a(f"v_add_f32 v{s_}, v{T}, v{T+1}")
            a(f"v_add_f32 v{q_}, v{T+2}, v{T+3}")
        for mt in range(4):
            s_, q_ = SS + 2 * mt, SS + 2 * mt + 1
            a(f"v_permlane32_swap_b32 v{s_}, v{q_}")
            a(f"v_add_f32 v{s_}, v{s_}, v{q_}")
        srd_off(a, 20, P_WS, ST2_OFF, 16 * 32768)
        a(f"""
        v_and_b32 v{t0}, 31, v1
        v_lshlrev_b32 v{t0}, 2, v{t0}
        v_lshrrev_b32 v{t1}, 5, v1
        v_lshl_add_u32 v{t0}, v{t1}, 9, v{t0}
        s_lshl_b32 s30, s24, 15
        s_lshl_b32 s31, s25, 11
        s_add_u32 s30, s30, s31
        s_lshl_b32 s31, s35, 10
        s_add_u32 s30, s30, s31
        s_lshl_b32 s31, s34, 8
        s_add_u32 s30, s30, s31
        """)
        for mp in range(2):
            x0 = SS + 4 * mp; x1 = SS + 4 * mp + 2
            a(f"v_permlane16_swap_b32 v{x0}, v{x1}")
            a(f"v_add_f32 v{x0}, v{x0}, v{x1}")
            a(f"buffer_store_dword v{x0}, v{t0}, s[20:23], s30 offen offset:{mp*128} sc0 sc1")
        stamp(a, c.sid + 3)
        if OPT["wobar"] in (1, 2): a("s_barrier")
        signal(a, 2, 2, T)
        if OPT["wobar"] == 3: a("s_barrier")
        a("s_waitcnt lgkmcnt(0)")
        stamp(a, c.sid + 4)
    elif kind == "w1" and W1T:
        RECT = 216; E = FY + 16
        csr = lambda nt: (FY + 24) if nt == 6 else FY + 4 * (nt - 2)
        soffs = ["s30", "s31", "s37"]
        signal(a, 0, 2, FX, False, 0, True)
        stamp(a, 45)
        a("s_waitcnt lgkmcnt(0)")
        a("s_barrier")
        stamp(a, 46)
        a(f"""
        s_lshl_b32 s33, s35, 13
        v_add_u32 v{vA}, s33, v{vCH}
        s_lshl_b32 s33, s35, 3
        s_add_u32 s33, s33, {XCH}
        v_add_u32 v{vB2}, s33, v{vCH}
        """)
        for mt in range(4):
            p0 = acc(mt, 0)
            a(f"ds_write_b128 v{vA}, v[{p0}:{p0+3}] offset:{mt*1024}")
        def pair(q, mt):
            for x in silu_l(mt, 2 * q, E, RECT + 4 * mt, csr(2 * q)) + silu_l(mt, 2 * q + 1, E + 4, RECT + 4 * mt, csr(2 * q + 1)): a(x)
            p0 = acc(mt, 2 * q)
            pk4(p0, p0, acc(mt, 2 * q + 1))
            a(f"buffer_store_dwordx4 v[{p0}:{p0+3}], v{vCH}, s[16:19], {soffs[q]} offen offset:{mt*1024} sc0 sc1")
            a(f"ds_write_b128 v{vA}, v[{p0}:{p0+3}] offset:{q*16384 + mt*1024}")
        for mt in range(4): pair(1, mt)
        stamp(a, 42)
        for mt in range(4):
            for x in silu_l(mt, 6, E + (mt % 2) * 4, RECT + 4 * mt, csr(6)): a(x)
            p = acc(mt, 6)
            a(f"v_cvt_pk_bf16_f32 v{p}, v{p}, v{p+1}")
            a(f"v_cvt_pk_bf16_f32 v{p+1}, v{p+2}, v{p+3}")
            a(f"ds_write_b64 v{vB2}, v[{p}:{p+1}] offset:{mt*1024}")
        a("s_waitcnt lgkmcnt(0)")
        stamp(a, 40)
        a("s_barrier")
        stamp(a, 41)
        a(f"""
        s_lshl_b32 s33, s35, 11
        v_add_u32 v{vB2}, s33, v{vCH}
        v_add_u32 v{vB1}, {XCH}, v{vB2}
        ds_read_b128 v[{acc(0,6)}:{acc(0,6)+3}], v{vB1}
        ds_read_b128 v[{acc(1,6)}:{acc(1,6)+3}], v{vB1} offset:1024
        """)
        pair(2, 0)
        a("s_waitcnt lgkmcnt(0)")
        a(f"buffer_store_dwordx4 v[{acc(0,6)}:{acc(0,6)+3}], v{vB2}, s[16:19], s36 offen sc0 sc1")
        a(f"buffer_store_dwordx4 v[{acc(1,6)}:{acc(1,6)+3}], v{vB2}, s[16:19], s36 offen offset:1024 sc0 sc1")
        for mt in range(1, 4): pair(2, mt)
        stamp(a, 43)
        stamp(a, c.sid + 3)
        a("s_waitcnt lgkmcnt(0)")
        a("s_mov_b32 s42, s24\ns_mov_b32 s43, s25")
        stamp(a, c.sid + 4)
    elif kind == "w1":
        CSR = T; REC = T + 28; E = T + 44
        if not peel:
            for x in sum(epi_setup(), []): a(x)
        a("s_waitcnt lgkmcnt(0)")
        soffs = ["s30", "s31", "s37"]
        def silu(mt, nt, e):
            p = acc(mt, nt); m = REC + 4 * mt; cs = CSR + 4 * nt
            for h in range(2):
                a(f"v_pk_fma_f32 v[{p+2*h}:{p+2*h+1}], v[{m}:{m+1}], v[{cs+2*h}:{cs+2*h+1}], v[{p+2*h}:{p+2*h+1}] op_sel_hi:[0,1,1] neg_lo:[1,0,0] neg_hi:[1,0,0]")
            for h in range(2):
                a(f"v_pk_mul_f32 v[{e+2*h}:{e+2*h+1}], v[{m}:{m+1}], v[{p+2*h}:{p+2*h+1}] op_sel:[1,0] op_sel_hi:[1,1]")
            for r in range(4):
                a(f"v_exp_f32 v{e+r}, v{e+r}")
            for h in range(2):
                a(f"v_pk_fma_f32 v[{e+2*h}:{e+2*h+1}], v[{e+2*h}:{e+2*h+1}], v[{m+2}:{m+3}], v[{m+2}:{m+3}]")
            for r in range(4):
                a(f"v_rcp_f32 v{e+r}, v{e+r}")
            for h in range(2):
                a(f"v_pk_mul_f32 v[{p+2*h}:{p+2*h+1}], v[{p+2*h}:{p+2*h+1}], v[{e+2*h}:{e+2*h+1}]")
        def pair(q, mt):
            silu(mt, 2 * q, E); silu(mt, 2 * q + 1, E + 4)
            p0 = acc(mt, 2 * q)
            pk4(p0, p0, acc(mt, 2 * q + 1))
            a(f"buffer_store_dwordx4 v[{p0}:{p0+3}], v{vCH}, s[16:19], {soffs[q]} offen offset:{mt*1024} sc0 sc1")
            if OPT["own"]: a(f"ds_write_b128 v{vA}, v[{p0}:{p0+3}] offset:{q*16384 + mt*1024}")
        if OPT["own"]:
            a(f"s_lshl_b32 s33, s35, 13")
            a(f"v_add_u32 v{vA}, s33, v{vCH}")
        for mt in range(4): pair(0, mt)
        stamp(a, 42)
        for mt in range(4):
            silu(mt, 6, E + (mt % 2) * 4)
            p = acc(mt, 6)
            a(f"v_cvt_pk_bf16_f32 v{p}, v{p}, v{p+1}")
            a(f"v_cvt_pk_bf16_f32 v{p+1}, v{p+2}, v{p+3}")
            a(f"ds_write_b64 v{vB2}, v[{p}:{p+1}] offset:{mt*1024}")
        a("s_waitcnt lgkmcnt(0)")
        stamp(a, 40)
        a("s_barrier")
        stamp(a, 41)
        a(f"""
        s_lshl_b32 s33, s35, 11
        v_add_u32 v{vB2}, s33, v{vCH}
        v_add_u32 v{vB1}, {XCH}, v{vB2}
        ds_read_b128 v[{acc(0,6)}:{acc(0,6)+3}], v{vB1}
        ds_read_b128 v[{acc(1,6)}:{acc(1,6)+3}], v{vB1} offset:1024
        """)
        pair(1, 0)
        a("s_waitcnt lgkmcnt(0)")
        a(f"buffer_store_dwordx4 v[{acc(0,6)}:{acc(0,6)+3}], v{vB2}, s[16:19], s36 offen sc0 sc1")
        a(f"buffer_store_dwordx4 v[{acc(1,6)}:{acc(1,6)+3}], v{vB2}, s[16:19], s36 offen offset:1024 sc0 sc1")
        for mt in range(1, 4): pair(1, mt)
        stamp(a, 43)
        k2 = OPT["sigA2"]
        for mt in range(k2): pair(2, mt)
        signal(a, 0, 2, acc(2, 6), False, 3 + k2, True)
        stamp(a, 45)
        if OPT["bar2"] == 0: a("s_barrier")
        stamp(a, 46)
        for mt in range(k2, 4): pair(2, mt)
        stamp(a, c.sid + 3)
        if OPT["bar2"] == 1: a("s_barrier")
        if OPT["own"]: a("s_waitcnt lgkmcnt(0)")
        a("s_mov_b32 s42, s24\ns_mov_b32 s43, s25\ns_mov_b32 s44, s31\ns_mov_b32 s45, s37")
        stamp(a, c.sid + 4)
    elif kind == "w2":
        XR = T + 32
        if c.sk and not RT:
            sk_send()
            signal(a, 6, 2, T)
            stamp(a, 47)
        srd_off(a, 16, P_OUT, 0, 4 * MB)
        a(f"""
        v_and_b32 v{t0}, 15, v1
        v_lshlrev_b32 v{t0}, 11, v{t0}
        v_and_b32 v{t1}, 1, v{vG}
        v_lshl_add_u32 v{t0}, v{t1}, 5, v{t0}
        v_lshrrev_b32 v{t1}, 1, v{vG}
        v_lshl_add_u32 v{t0}, v{t1}, 4, v{t0}
        s_lshl_b32 s30, s24, 18
        s_lshl_b32 s31, s34, 17
        s_add_u32 s30, s30, s31
        s_lshl_b32 s31, s25, 7
        s_add_u32 s30, s30, s31
        s_lshl_b32 s31, s35, 6
        s_add_u32 s30, s30, s31
        s_mov_b32 s36, 0xffff0000
        """)
        for mt in range(4):
            for nt in range(2):
                r = HRES + mt * 4 + nt * 2; p = acc(mt, nt)
                for d in range(2):
                    a(f"v_lshlrev_b32 v{T+16}, 16, v{r+d}")
                    a(f"v_and_b32 v{T+17}, s36, v{r+d}")
                    a(f"v_pk_add_f32 v[{p+2*d}:{p+2*d+1}], v[{p+2*d}:{p+2*d+1}], v[{T+16}:{T+17}]")
        if c.sk and OPT["sent"]:
            lp = a.label("xpoll"); dn = a.label("skip_xp")
            a("s_mov_b32 s39, 0x200000")
            a(f"{lp}:")
            for mt in range(4):
                a(f"buffer_load_dwordx4 v[{XR+4*mt}:{XR+4*mt+3}], v{vX}, s[20:23], s37 offen offset:{mt*1024} sc0 sc1")
            for mt in range(4):
                r = XR + 4 * mt
                a(f"s_waitcnt vmcnt({3-mt})")
                if mt == 0: a(f"v_max_u32 v{T+4}, v{r}, v{r+1}")
                else: a(f"v_max3_u32 v{T+4}, v{r}, v{r+1}, v{T+4}")
                a(f"v_max3_u32 v{T+4}, v{r+2}, v{r+3}, v{T+4}")
            a(f"""
            v_cmp_eq_u32 vcc, -1, v{T+4}
            s_nop 3
            s_cmp_eq_u64 vcc, 0
            s_cbranch_scc1 {dn}
            s_sub_u32 s39, s39, 1
            s_cbranch_scc0 {lp}
            {dn}:
            """)
            stamp(a, 48)
        elif c.sk:
            lp = a.label("xpoll"); dn = a.label("skip_xp")
            a(f"""
            s_xor_b32 s40, s40, {4 << 5}
            s_mov_b32 s39, 0x200000
            {lp}:
            buffer_load_dwordx2 v[{T+4}:{T+5}], v{(VTOP if RT else T)+2}, s[{FLS}:{FLS+3}], s40 offen sc0 sc1
            s_waitcnt vmcnt(0)
            v_cmp_eq_u64 vcc, s[{TAG}:{TAG+1}], v[{T+4}:{T+5}]
            s_nop 3
            s_cmp_eq_u64 vcc, -1
            s_cbranch_scc1 {dn}
            s_sub_u32 s39, s39, 1
            s_cbranch_scc0 {lp}
            {dn}:
            """)
            stamp(a, 48)
            for mt in range(4):
                a(f"buffer_load_dwordx4 v[{XR+4*mt}:{XR+4*mt+3}], v{vX}, s[20:23], s37 offen offset:{mt*1024} sc0 sc1")
        for mt in range(4):
            if c.sk:
                if not OPT["sent"]: a(f"s_waitcnt vmcnt(3)")
                for nt in range(2):
                    r = XR + mt * 4 + nt * 2; p = acc(mt, nt)
                    for d in range(2):
                        a(f"v_lshlrev_b32 v{T+16}, 16, v{r+d}")
                        a(f"v_and_b32 v{T+17}, s36, v{r+d}")
                        a(f"v_pk_add_f32 v[{p+2*d}:{p+2*d+1}], v[{p+2*d}:{p+2*d+1}], v[{T+16}:{T+17}]")
            t = T + mt * 4
            pk4(t, acc(mt, 0), acc(mt, 1))
            a(f"v_permlane16_swap_b32 v{t}, v{t+2}")
            a(f"v_permlane16_swap_b32 v{t+1}, v{t+3}")
            a(f"buffer_store_dwordx4 v[{t}:{t+3}], v{t0}, s[16:19], s30 offen{['', ' sc0 sc1', ' nt', ' sc1'][OPT['osf']]}")
            a("s_add_u32 s30, s30, 32768")
        stamp(a, c.sid + 3)
        if DIAG:
            a("s_waitcnt vmcnt(0)")
            stamp(a, c.sid + 4)

PV_A = 4
PV_B = 8
PV_SA = 16
PV_SB = 18
PV_RD = 32
PV_ACC = 80

def prod_setup(a, c):
    n = c.n
    wgmap(a, c.RX, c.CX)
    if c.a_off is None:
        a("s_lshl_b32 s30, s24, 18")
        srd_off(a, 8, P_X, "s30", 262144)
        for i in range(4):
            a(f"""
            v_lshrrev_b32 v2, 3, v1
            v_lshrrev_b32 v3, 4, v1
            v_add_u32 v3, {4*(i&1)}, v3
            v_and_b32 v{PV_A+i}, 7, v1
            v_xor_b32 v3, v3, v{PV_A+i}
            v_lshlrev_b32 v3, 4, v3
            v_lshl_add_u32 v3, v2, 11, v3
            s_lshl_b32 s30, s38, 16
            s_add_u32 s30, s30, {i*8*2048 - i*1024}
            v_add_u32 v{PV_A+i}, s30, v3
            """)
        c.astep = 128
    else:
        a(f"s_mul_i32 s30, s24, {c.K*256}")
        a(f"s_add_u32 s30, s30, {c.a_off}")
        srd_off(a, 8, P_WS, "s30", c.K * 256)
        a(f"""
        {"s_lshr_b32 s30, s38, 1" if c.sk else f"s_and_b32 s30, s38, {1 if c.kind == 'w2' else 3}"}
        s_lshl_b32 s30, s30, 12
        v_lshlrev_b32 v{PV_A}, 4, v1
        v_add_u32 v{PV_A}, s30, v{PV_A}
        """)
        c.astep = 16384
        if c.kind == "w2":
            a(f"""
            {"s_and_b32 s30, s38, 1" if c.sk else "s_lshr_b32 s30, s38, 1"}
            s_mul_i32 s63, s30, {4*8192}
            s_mul_i32 s64, s30, {7*8192}
            """)
    c.bstep = 64 * c.ldb
    CT = 16 // c.CX
    a(f"""
    s_and_b32 s65, s25, {CT-1}
    s_mul_i32 s65, s65, {(16 // CT) if c.rot else 0}
    """)
    if c.rot == 2: a(f"s_mov_b32 s65, {OPT['rot0']}")
    if (c.kind == "w1" and OPT["own1"]) or (c.kind == "wo" and OPT["owno"]): a("s_mov_b32 s65, s25")
    if c.sk: a("s_and_b32 s65, s25, 4\ns_lshl_b32 s65, s65, 1")
    a(f"""
    s_lshl_b32 s34, s38, 12
    s_mul_i32 s35, s38, {c.NBW*1024}
    """)
    if c.sk:
        a("""
        s_and_b32 s34, s38, 1
        s_lshl_b32 s34, s34, 13
        s_lshr_b32 s30, s38, 1
        s_lshl_b32 s30, s30, 12
        s_add_u32 s34, s34, s30
        """)
    if c.kind == "w2" and not OPT["own"]: a(f"s_mul_i32 s66, s65, {7*8192}")
    if not c.early: b_setup(a, c, PV_B, 12)
    a(f"""
    s_mov_b32 s27, {c.ABASE}
    s_mov_b32 s32, {c.BBASE}
    s_mul_i32 s28, s65, {c.astep}
    s_mul_i32 s29, s65, {c.bstep}
    """)

def b_setup(a, c, dst, sr_):
    if c.sk:
        a("s_andn2_b32 s30, s25, 4")
        a(f"s_mul_i32 s30, s30, {c.bcol}")
    else:
        a(f"s_mul_i32 s30, s25, {c.bcol}")
    a(f"s_sub_u32 s31, {c.K*c.ldb}, s30")
    srd_off(a, sr_, c.wp, "s30", "s31")
    a(f"""
    s_mul_i32 s30, s38, {c.NBW*64}
    s_mov_b32 s36, {c.ldb}
    """)
    for i in range(c.NBW):
        a(f"s_add_u32 s31, s30, {i*64}")
        a(f"v_add_u32 v3, s31, v1")
        d = dst + i
        if c.layout == "panel":
            a("v_bfe_u32 v2, v3, 3, 6")
            if c.korder == "F":
                a(f"v_bfe_u32 v{d}, v2, 1, 2")
            else:
                a(f"v_bfe_u32 v{d}, v2, 1, 1")
                a("v_bfe_u32 v15, v2, 3, 1")
                a(f"v_lshl_or_b32 v{d}, v15, 1, v{d}")
            a(f"""
            v_lshlrev_b32 v{d}, 1, v{d}
            v_and_b32 v15, 7, v3
            v_xor_b32 v{d}, v{d}, v15
            v_and_b32 v2, {31 if c.kind == "w2" else 63}, v2
            v_mul_lo_u32 v2, v2, s36
            v_lshl_add_u32 v{d}, v{d}, 4, v2
            """)
            if c.pstride:
                a(f"""
                v_lshrrev_b32 v3, 9, v3
                {"s_bfe_u32 s31, s25, 0x10002" if c.sk else ""}
                {"v_xor_b32 v3, s31, v3" if c.sk else ""}
                v_mul_u32_u24 v3, {c.pstride}, v3
                v_add_u32 v{d}, v{d}, v3
                """)
        else:
            a(f"""
            v_mul_u32_u24 v2, 2341, v3
            v_lshrrev_b32 v2, 16, v2
            v_mul_u32_u24 v15, 28, v2
            v_sub_u32 v3, v3, v15
            v_bfe_u32 v15, v2, 2, 1
            v_lshlrev_b32 v15, 1, v15
            v_xor_b32 v3, v3, v15
            v_mul_lo_u32 v2, v2, s36
            v_lshl_add_u32 v{d}, v3, 4, v2
            """)
        if i & 3: a(f"v_subrev_u32 v{d}, {(i&3)*1024}, v{d}")

def issueA(a, c, slot=None, adv=True):
    if slot is None: a("s_add_u32 m0, s27, s34")
    else: a(f"s_add_u32 m0, s34, {c.ABASE + slot*16384}")
    for i in range(4):
        v = PV_A + (i if c.a_off is None else 0)
        a(f"buffer_load_dwordx4 v{v}, s[8:11], s28 offen offset:{i*1024}{'' if c.a_off is None else ' sc1'} lds")
    if adv:
        a(f"s_add_u32 s28, s28, {c.astep}")
        if c.rot: a(f"s_and_b32 s28, s28, {16*c.astep - 1}")
    if slot is None:
        a(f"""
        s_add_u32 s27, s27, 16384
        s_cmp_eq_u32 s27, {c.ABASE + c.S*16384}
        s_cselect_b32 s27, {c.ABASE}, s27
        """)

def issueB(a, c, slot=None, adv=True):
    for i in range(c.NBW):
        if i % 4 == 0:
            if slot is None:
                a(f"s_add_u32 m0, s32, {c.s35}")
                if i: a(f"s_add_u32 m0, m0, {i*1024}")
            else:
                a(f"s_add_u32 m0, {c.s35}, {c.BBASE + slot*c.BB + i*1024}")
        a(f"buffer_load_dwordx4 v{c.pvb+i}, s[{c.sb}:{c.sb+3}], s29 offen offset:{(i&3)*1024}{' nt' if (c.kind == 'qkv' and OPT['qnt'] >= 2) else ''} lds")
    if adv:
        a(f"s_add_u32 s29, s29, {c.bstep}")
        if c.rot:
            a(f"s_cmp_eq_u32 s29, {16*c.bstep}")
            a("s_cselect_b32 s29, 0, s29")
    if slot is None:
        a(f"""
        s_add_u32 s32, s32, {c.BB}
        s_cmp_eq_u32 s32, {c.BBASE + c.S*c.BB}
        s_cselect_b32 s32, {c.BBASE}, s32
        """)

PV_POLL = 28
def poll_once(a, wide):
    t = PV_POLL
    if wide: a(f"buffer_load_dwordx4 v[{t}:{t+3}], v26, s[{FLS}:{FLS+3}], s33 offen sc0 sc1")
    else: a(f"buffer_load_dwordx2 v[{t}:{t+1}], v26, s[{FLS}:{FLS+3}], s33 offen sc0 sc1")
    a("s_waitcnt vmcnt(0)")
    a(f"v_cmp_eq_u64 s[56:57], s[{TAG}:{TAG+1}], v[{t}:{t+1}]")
    if wide:
        a(f"v_cmp_eq_u64 s[58:59], s[{TAG}:{TAG+1}], v[{t+2}:{t+3}]")
        a("s_nop 3")
        a("s_and_b64 s[56:57], s[56:57], s[58:59]")
    else:
        a("s_nop 3")

def gate(a, t, wide):
    lp = a.label("gate"); ok = a.label("skip_gate")
    a(f"{lp}:")
    if t == "all":
        a("s_cmp_eq_u32 s56, -1" if OPT["sk"] else "s_cmp_eq_u64 s[56:57], -1")
    else:
        a(f"s_bfe_u32 s30, s{56 + t // 8}, {hex((4 << 16) | (4 * (t % 8)))}")
        a("s_cmp_eq_u32 s30, 15")
    a(f"s_cbranch_scc1 {ok}")
    poll_once(a, wide)
    a("""
    s_sub_u32 s39, s39, 1
    s_cselect_b64 s[58:59], -1, 0
    s_cselect_b32 s39, 0, s39
    s_or_b64 s[56:57], s[56:57], s[58:59]
    """)
    a(f"s_branch {lp}")
    a(f"{ok}:")

def gate_setup(a, seam_id, wide):
    a(f"""
    s_lshl_b32 s30, s65, 2
    v_add_u32 v26, s30, v1
    v_and_b32 v26, 63, v26
    v_lshlrev_b32 v26, {4 if wide else 3}, v26
    s_lshl_b32 s33, s24, 10
    s_add_u32 s33, s33, {seam_id*16384}
    s_mov_b64 s[56:57], 0
    s_mov_b32 s39, 0x200000
    """)

def colsum_tile(a, c, lds_base, wsg, which, R, part=None):
    AD = R; ACCU = R + 4; D = R + 8; t = R + 40
    if part in (None, 0):
        a(f"""
        v_lshrrev_b32 v{t}, 4, v1
        v_bfe_u32 v{t+1}, v1, 2, 2
        v_mul_u32_u24 v{t+2}, {c.gmul}, v{t}
        v_add_u32 v{t+2}, v{t+2}, v{t+1}
        v_mul_u32_u24 v{t+2}, {c.RS}, v{t+2}
        v_and_b32 v{t+3}, 3, v1
        v_lshl_add_u32 v{t+2}, v{t+3}, 3, v{t+2}
        v_and_b32 v{t}, 1, v{t}
        s_lshl_b32 s71, {wsg}, {13 if c.layout == "panel" else 7}
        s_add_u32 s71, s71, {lds_base}
        v_add_u32 v{t+2}, s71, v{t+2}
        """)
        if c.layout == "panel":
            a(f"v_lshrrev_b32 v{t+1}, 1, v{t+1}")
            a(f"v_lshl_or_b32 v{t}, v{t}, 1, v{t+1}")
        for ts in range(4):
            a(f"v_xor_b32 v{t+3}, {ts}, v{t}")
            a(f"v_lshl_add_u32 v{AD+ts}, v{t+3}, 5, v{t+2}")
        for q in range(4):
            for ts in range(4):
                d = D + (q * 4 + ts) * 2
                a(f"ds_read_b64_tr_b16 v[{d}:{d+1}], v{AD+ts} offset:{((q>>1)*32 + (q&1)*c.rdrows) * c.RS}")
        for ts in range(4): a(f"v_mov_b32 v{ACCU+ts}, 0")
        srd_off(a, 16, P_WS, CSG_OFF + which * 524288, 524288)
        a(f"""
        s_mov_b32 s75, 0x3f803f80
        v_lshlrev_b32 v{t}, 3, v1
        """)
        if c.kind == "qkv" and OPT["dil"]:
            a(f"""
            s_lshl_b32 s71, s24, 15
            s_mul_i32 s31, s25, 1536
            s_add_u32 s71, s71, s31
            s_lshl_b32 s31, {wsg}, 9
            s_add_u32 s71, s71, s31
            s_cmp_eq_u32 {wsg}, 3
            s_cselect_b32 s71, 0x40000000, s71
            """)
        else:
            a(f"""
            s_lshl_b32 s71, s25, 15
            s_lshl_b32 s31, s24, 11
            s_add_u32 s71, s71, s31
            s_lshl_b32 s31, {wsg}, 9
            s_add_u32 s71, s71, s31
            """)
    for q in range(4):
        if part not in (None, 1 + q // 2): continue
        if part is None or q == 0: a(f"s_waitcnt lgkmcnt({12-4*q if part is None else 0})")
        for d in range(2):
            for ts in range(4):
                a(f"v_dot2c_f32_bf16 v{ACCU+ts}, s75, v{D+(q*4+ts)*2+d}")
    if part in (None, 3):
        t0, t1, t2, t3 = ACCU, ACCU + 1, ACCU + 2, ACCU + 3
        a(f"""
        v_permlane32_swap_b32 v{t0}, v{t2}
        v_permlane32_swap_b32 v{t1}, v{t3}
        v_add_f32 v{t0}, v{t0}, v{t2}
        v_add_f32 v{t1}, v{t1}, v{t3}
        v_permlane16_swap_b32 v{t0}, v{t1}
        v_add_f32 v{t0}, v{t0}, v{t1}
        v_mov_b32 v{t1}, s{TAG}
        """)
        if c.kind == "qkv":
            sk = a.label("skip_xi")
            a(f"""
            s_cmp_lg_u32 {wsg}, 3
            s_cbranch_scc1 {sk}
            v_cmp_eq_u32 vcc, s74, v1
            v_cndmask_b32 v{t0}, 0, 1.0, vcc
            {sk}:
            """)
        a(f"buffer_store_dwordx2 v[{t0}:{t1}], v{t}, s[16:19], s71 offen sc0 sc1")

G_CS = 32
G_RS = 64
def gather_cs_setup(a, c):
    which = 0 if c.kind == "qkv" else 1
    srd_off(a, 16, P_WS, CSG_OFF + which * 524288, 524288)
    if c.kind == "qkv" and OPT["dil"]:
        a(f"""
        s_min_u32 s31, s38, 2
        s_lshl_b32 s60, s31, 13
        s_lshl_b32 s31, s25, 9
        s_add_u32 s60, s60, s31
        s_mov_b32 s67, 32768
        """)
    else:
        a(f"""
        s_lshl_b32 s60, s25, 15
        s_lshl_b32 s31, s38, 9
        s_add_u32 s60, s60, s31
        s_mov_b32 s67, 2048
        """)
    a("v_lshlrev_b32 v24, 3, v1")
    return 0
def gather_cs(a, r0, r1):
    for r in range(r0, r1):
        a(f"buffer_load_dwordx2 v[{G_CS+2*r}:{G_CS+2*r+1}], v24, s[16:19], s60 offen sc0 sc1")
        a("s_add_u32 s60, s60, s67")
    return r1 - r0
def gather_rs_setup(a, c):
    if c.kind == "qkv":
        srd_off(a, 20, P_WS, RS1_OFF, 32768)
        a(f"""
        v_and_b32 v25, 31, v1
        v_lshlrev_b32 v25, 4, v25
        s_lshl_b32 s61, s24, 11
        s_lshl_b32 s31, s38, 9
        s_add_u32 s61, s61, s31
        """)
    else:
        srd_off(a, 20, P_WS, ST2_OFF, 16 * 32768)
        a(f"""
        v_and_b32 v25, 31, v1
        v_lshlrev_b32 v25, 2, v25
        v_lshrrev_b32 v15, 5, v1
        v_lshl_add_u32 v25, v15, 9, v25
        s_lshl_b32 s61, s24, 15
        s_lshl_b32 s31, s38, 7
        s_add_u32 s61, s61, s31
        """)
    return 0
def gather_rs(a, c, p0=0, p1=32):
    if c.kind == "qkv":
        a(f"buffer_load_dwordx4 v[{G_RS}:{G_RS+3}], v25, s[20:23], s61 offen sc0 sc1")
        return 1
    a(f"s_add_u32 s30, s65, {p0 // 2}")
    a("s_and_b32 s30, s30, 15")
    a("s_lshl_b32 s30, s30, 11")
    a("s_add_u32 s30, s30, s61")
    for p in range(p0, p1):
        a(f"buffer_load_dword v{G_RS+p}, v25, s[20:23], s30 offen offset:{(p&1)*1024} sc0 sc1")
    return p1 - p0

def gather_finish_cs(a, c):
    lp = a.label("gchk"); ok = a.label("skip_gok")
    a("s_mov_b32 s62, 0x40000")
    a(f"{lp}:")
    a(f"v_xor_b32 v15, s{TAG}, v{G_CS+1}")
    for r in range(1, 16):
        a(f"v_xor_b32 v27, s{TAG}, v{G_CS+2*r+1}")
        a("v_or_b32 v15, v15, v27")
    if c.kind == "qkv":
        a(f"v_xor_b32 v27, s{TAG}, v{G_RS+2}")
        a("v_or_b32 v15, v15, v27")
        a(f"v_xor_b32 v27, s{TAG+1}, v{G_RS+3}")
        a("v_or_b32 v15, v15, v27")
    a(f"""
    v_cmp_ne_u32 vcc, 0, v15
    s_nop 3
    s_cmp_eq_u64 vcc, 0
    s_cbranch_scc1 {ok}
    s_sub_u32 s62, s62, 1
    s_cbranch_scc1 {ok}
    s_sleep 2
    """)
    gather_cs_setup(a, c); gather_cs(a, 0, 16)
    if c.kind == "qkv": gather_rs(a, c)
    a("s_waitcnt vmcnt(0)")
    a(f"s_branch {lp}")
    a(f"{ok}:")
    for r in range(1, 16): a(f"v_add_f32 v{G_CS}, v{G_CS}, v{G_CS+2*r}")
    a(f"""
    v_lshlrev_b32 v2, 2, v1
    s_lshl_b32 s30, s38, 8
    s_add_u32 s30, s30, {ST_CS}
    v_add_u32 v2, s30, v2
    ds_write_b32 v2, v{G_CS}
    """)
    return 0

def l2_issue(a, c):
    which = 0 if c.kind == "qkv" else 1
    srd_off(a, 16, P_WS, CSG_OFF + which * 524288, 524288)
    a(f"""
    s_lshl_b32 s60, s2, 2
    s_add_u32 s60, s60, s38
    v_lshrrev_b32 v24, 2, v1
    v_lshlrev_b32 v24, {15 if which == 0 else 11}, v24
    v_and_b32 v27, 3, v1
    v_lshl_add_u32 v24, v27, 3, v24
    """)
    if which == 0:
        a("s_min_u32 s60, s60, 767")
        a("s_lshl_b32 s67, s60, 5")
    else:
        a("""
        s_lshr_b32 s67, s60, 6
        s_lshl_b32 s67, s67, 15
        s_and_b32 s31, s60, 63
        s_lshl_b32 s31, s31, 5
        s_add_u32 s67, s67, s31
        """)
    a(f"buffer_load_dwordx2 v[{G_CS}:{G_CS+1}], v24, s[16:19], s67 offen sc0 sc1")
    return 1

def tagcheck(a, regs, retry):
    lp = a.label("gchk"); ok = a.label("skip_gok")
    a("s_mov_b32 s62, 0x80000")
    a(f"{lp}:")
    for k, (r, sg) in enumerate(regs):
        a(f"v_xor_b32 v{15 if k == 0 else 27}, s{sg}, v{r}")
        if k: a("v_or_b32 v15, v15, v27")
    a(f"""
    v_cmp_ne_u32 vcc, 0, v15
    s_nop 3
    s_cmp_eq_u64 vcc, 0
    s_cbranch_scc1 {ok}
    s_sub_u32 s62, s62, 1
    s_cbranch_scc1 {ok}
    """)
    retry()
    a("s_waitcnt vmcnt(0)")
    a(f"s_branch {lp}")
    a(f"{ok}:")

def l2_finish(a, c):
    which = 0 if c.kind == "qkv" else 1
    v = G_CS
    tagcheck(a, [(v + 1, TAG)], lambda: a(f"buffer_load_dwordx2 v[{v}:{v+1}], v24, s[16:19], s67 offen sc0 sc1"))
    srd_off(a, 16, P_WS, FIN_OFF + which * 32768, 32768)
    a(f"""
    v_add_f32_dpp v{v}, v{v}, v{v} row_ror:4 row_mask:0xf bank_mask:0xf
    v_add_f32_dpp v{v}, v{v}, v{v} row_ror:8 row_mask:0xf bank_mask:0xf
    v_mov_b32 v{v+2}, v{v}
    v_permlane16_swap_b32 v{v}, v{v+2}
    v_add_f32 v{v}, v{v}, v{v+2}
    v_mov_b32 v{v+2}, v{v}
    v_permlane32_swap_b32 v{v}, v{v+2}
    v_add_f32 v{v}, v{v}, v{v+2}
    v_lshlrev_b32 v24, 3, v1
    s_lshl_b32 s60, s60, 5
    s_mov_b64 exec, 15
    buffer_store_dwordx2 v[{v}:{v+1}], v24, s[16:19], s60 offen sc0 sc1
    s_mov_b64 exec, -1
    """)
    return 1

def fin_issue(a, c):
    if c.kind == "qkv":
        a("""
        s_min_u32 s31, s38, 2
        s_lshl_b32 s60, s31, 13
        s_lshl_b32 s31, s25, 9
        s_add_u32 s60, s60, s31
        """)
    else:
        a("""
        s_lshl_b32 s60, s25, 11
        s_lshl_b32 s31, s38, 9
        s_add_u32 s60, s60, s31
        """)
    a(f"buffer_load_dwordx2 v[{G_CS}:{G_CS+1}], v24, s[16:19], s60 offen sc0 sc1")
    return 1

def fin_finish(a, c):
    regs = [(G_CS + 1, TAG)] + ([(G_RS + 2, TAG), (G_RS + 3, TAG + 1)] if c.kind == "qkv" else [])
    def retry():
        a(f"buffer_load_dwordx2 v[{G_CS}:{G_CS+1}], v24, s[16:19], s60 offen sc0 sc1")
        if c.kind == "qkv": gather_rs(a, c)
    tagcheck(a, regs, retry)
    a(f"""
    v_lshlrev_b32 v2, 2, v1
    s_lshl_b32 s30, s38, 8
    s_add_u32 s30, s30, {ST_CS}
    v_add_u32 v2, s30, v2
    ds_write_b32 v2, v{G_CS}
    """)
    return 0

def gather_finish_rs(a, c):
    a(f"""
    v_and_b32 v3, 31, v1
    s_lshl_b32 s30, s38, 5
    v_add_u32 v3, s30, v3
    v_lshlrev_b32 v2, 4, v3
    v_add_u32 v2, {ST_REC}, v2
    """)
    R = G_RS
    if c.kind == "qkv":
        a(f"""
        v_lshlrev_b32 v3, 2, v3
        v_add_u32 v3, {ST_MEAN}, v3
        ds_write_b128 v2, v[{R}:{R+3}]
        ds_write_b32 v3, v{R}
        ds_write_b32 v3, v{R+1} offset:512
        """)
    else:
        a(f"""
        v_mov_b32 v{R+1}, v{R}
        v_permlane32_swap_b32 v{R}, v{R+1}
        v_mul_f32 v{R}, {f32(1.0/1024)}, v{R}
        v_mul_f32 v{R+1}, {f32(1.0/1024)}, v{R+1}
        v_fma_f32 v{R+1}, -v{R}, v{R}, v{R+1}
        v_max_f32 v{R+1}, 0, v{R+1}
        v_add_f32 v{R+4}, {f32(1e-5)}, v{R+1}
        v_rsq_f32 v{R+1}, v{R+4}
        v_sqrt_f32 v{R+3}, v{R+4}
        v_sqrt_f32 v{R+2}, v{R+4}
        v_mul_f32 v{R+1}, {f32(-LOG2E)}, v{R+1}
        ds_write_b128 v2, v[{R}:{R+3}]
        """)
    a("s_waitcnt lgkmcnt(0)")
    return 0

def row_stats_issue(a, X):
    srd_off(a, 20, P_X, 0, 4 * MB)
    srd_off(a, 16, P_DBG, 0, 256)
    a(f"""
    s_lshl_b32 s30, s24, 7
    s_lshl_b32 s31, s25, 3
    s_add_u32 s30, s30, s31
    s_lshl_b32 s31, s3, 1
    s_add_u32 s33, s30, s31
    s_lshl_b32 s30, s33, 11
    v_lshlrev_b32 v{X+18}, 4, v1
    v_mov_b32 v{X+19}, 0
    """)
    for i in range(4):
        a(f"buffer_load_dwordx4 v[{X+4*i}:{X+4*i+3}], v{X+18}, s[20:23], s30 offen offset:{i*1024}")

def row_stats_finish(a, X, T):
    s0, q0, s1, q1 = T, T + 1, T + 2, T + 3
    a(f"buffer_load_dwordx2 v[{X+16}:{X+17}], v{X+19}, s[16:19], 0 offen sc0 sc1")
    a("s_mov_b32 s75, 0x3f803f80")
    for i in range(4): a(f"v_mov_b32 v{T+i}, 0")
    a("s_waitcnt vmcnt(1)")
    for d in range(8):
        for row in range(2):
            r = X + 8 * row + d
            a(f"v_dot2c_f32_bf16 v{T+2*row}, s75, v{r}")
            a(f"v_dot2c_f32_bf16 v{T+2*row+1}, v{r}, v{r}")
    a(f"""
    v_permlane32_swap_b32 v{s0}, v{q0}
    v_permlane32_swap_b32 v{s1}, v{q1}
    v_add_f32 v{s0}, v{s0}, v{q0}
    v_add_f32 v{s1}, v{s1}, v{q1}
    v_permlane16_swap_b32 v{s0}, v{s1}
    v_add_f32 v{s0}, v{s0}, v{s1}
    v_add_f32_dpp v{s0}, v{s0}, v{s0} quad_perm:[1,0,3,2] row_mask:0xf bank_mask:0xf
    v_add_f32_dpp v{s0}, v{s0}, v{s0} quad_perm:[2,3,0,1] row_mask:0xf bank_mask:0xf
    v_add_f32_dpp v{s0}, v{s0}, v{s0} row_half_mirror row_mask:0xf bank_mask:0xf
    v_add_f32_dpp v{s0}, v{s0}, v{s0} row_mirror row_mask:0xf bank_mask:0xf
    v_mov_b32 v{q0}, v{s0}
    v_permlane32_swap_b32 v{s0}, v{q0}
    v_mul_f32 v{s0}, {f32(1.0/1024)}, v{s0}
    v_mul_f32 v{q0}, {f32(1.0/1024)}, v{q0}
    v_fma_f32 v{q0}, -v{s0}, v{s0}, v{q0}
    v_max_f32 v{q0}, 0, v{q0}
    v_add_f32 v{q0}, {f32(1e-5)}, v{q0}
    v_rsq_f32 v{q0}, v{q0}
    """)
    lp = a.label("tagp"); dn = a.label("tagd")
    a(f"""
    s_mov_b32 s39, 0x100000
    {lp}:
    s_waitcnt vmcnt(0)
    v_readfirstlane_b32 s{TAG}, v{X+16}
    v_readfirstlane_b32 s{TAG+1}, v{X+17}
    s_nop 3
    s_cmp_lg_u32 s{TAG}, 0
    s_cbranch_scc1 {dn}
    s_sleep 1
    buffer_load_dwordx2 v[{X+16}:{X+17}], v{X+19}, s[16:19], 0 offen sc0 sc1
    s_sub_u32 s39, s39, 1
    s_cmp_lg_u32 s39, 0
    s_cbranch_scc1 {lp}
    {dn}:
    """)
    srd_off(a, 20, P_WS, RS1_OFF, 32768)
    a(f"""
    v_mov_b32 v{s1}, s{TAG}
    v_mov_b32 v{q1}, s{TAG+1}
    v_and_b32 v{T+4}, 16, v1
    s_lshl_b32 s30, s33, 4
    v_mov_b32 v{T+5}, {ST_TAG}
    s_mov_b64 exec, 0x10001
    buffer_store_dwordx4 v[{T}:{T+3}], v{T+4}, s[20:23], s30 offen sc0 sc1
    ds_write_b64 v{T+5}, v[{s1}:{q1}]
    s_mov_b64 exec, -1
    s_waitcnt lgkmcnt(0)
    """)

def w2_kg(t):
    if OPT["sk"]:
        if t < 8: return 7 * t, 4
        if t < 12: return 14 * (t - 8) + 3, 7
        if t < 20: return 7 * (t - 12) + 1, 4
        return 7 * (t - 20) + 2, 4
    if t < 16: return 7 * t, 4
    if t < 24: return 14 * (t - 16) + 3, 7
    if t < 40: return 7 * (t - 24) + 1, 4
    return 7 * (t - 40) + 2, 4

def set_soff(a, c, st, A=True, B=True):
    if c.kind != "w2": return
    if OPT["own"]:
        if st < 3:
            a(f"s_add_u32 s30, s43, s63"); off = st
        elif 10 <= st < 14:
            m = st - 10; i = 2 * m
            a(f"s_add_u32 s30, s66, s64"); off = 7 * (i + (i & 4)) + 3
        else:
            t, off = (st - 3, 0) if st < 10 else ((st - 14, 1) if st < 21 else (st - 21, 2))
            a(f"""
            s_add_u32 s30, s42, {t + 1}
            s_and_b32 s30, s30, 7
            s_and_b32 s31, s30, 4
            s_add_u32 s30, s30, s31
            s_mul_i32 s30, s30, {7*8192}
            s_add_u32 s30, s30, s66
            s_add_u32 s30, s30, s63
            """)
        if A: a(f"s_add_u32 s28, s30, {off*8192}")
        if B:
            a(f"s_add_u32 s29, s30, {off*8192}")
            a("s_lshl_b32 s29, s29, 3")
        return
    base, dh = w2_kg(st)
    off = base % 7
    hs = "s63" if dh == 4 else "s64"
    a(f"s_add_u32 s30, s66, {(base - off)*8192}")
    a(f"s_sub_u32 s31, s30, {112*8192}")
    a("s_cselect_b32 s30, s30, s31")
    a(f"s_add_u32 s30, s30, {hs}")
    if A: a(f"s_add_u32 s28, s30, {off*8192}")
    if B:
        a(f"s_add_u32 s29, s30, {off*8192}")
        a("s_lshl_b32 s29, s29, 3")

def w2_early_setup(a, c):
    a(f"""
    s_mul_i32 s41, s38, {c.NBW*1024}
    s_and_b32 s30, s38, 1
    s_mul_i32 s63, s30, {4*8192}
    s_mul_i32 s64, s30, {7*8192}
    s_and_b32 s30, s25, 4
    s_mul_i32 s66, s30, {(7 if OPT["own"] else 14)*8192}
    s_and_b32 s42, s25, 3
    s_lshr_b32 s30, s25, 3
    s_lshl_b32 s30, s30, 2
    s_add_u32 s42, s42, s30
    s_mul_i32 s43, s25, {7*8192}
    """)
    c.bstep = 64 * c.ldb
    b_setup(a, c, c.pvb, c.sb)

def pre_B(a, c, st0=0, st1=None):
    for st in range(st0, c.S if st1 is None else st1):
        set_soff(a, c, st, A=False)
        issueB(a, c, (st + c.bs0) % c.SB, c.kind != "w2")
    return (( c.S if st1 is None else st1) - st0) * c.NBW

def gemm_producer(a, c, preB, gated=None, side=None, after_issue=None, unroll_to=None):
    n = c.n; S = c.S; L = 4 + c.NBW
    side = side or {}
    U = n if unroll_to is None else unroll_to
    ops = []
    w2 = c.kind == "w2"
    def iss(st):
        if gated and st < (8 if c.sk else 16): gate(a, st, gated == "wide")
        if st == (1 if ((c.kind == "w1" and OPT["own1"]) or (c.kind == "wo" and OPT["owno"])) else 0): stamp(a, c.sid)
        doB = not (preB and st < c.SB)
        set_soff(a, c, st, True, doB)
        issueA(a, c, st % S, not w2); ops.extend([st] * 4)
        if doB:
            issueB(a, c, (st + c.bs0) % c.SB, not w2); ops.extend([st] * c.NBW)
        if after_issue:
            if st == 1 and c.kind == "w1" and OPT["own1"]: ops.extend([st] * after_issue(0))
            ops.extend([st] * after_issue(st))
    def wait(st):
        last = max(i for i, x in enumerate(ops) if x <= st)
        a(f"s_waitcnt vmcnt({min(63, len(ops) - 1 - last)})")
    def run_side(j, tag):
        for f in side.get(j, []): ops.extend([tag] * (f() or 0))
    if DIAG and OPT['steps']: a('s_mov_b32 s99, 0\nv_mov_b32 v252, 0')
    own0 = (c.kind == "w1" and OPT["own1"]) or (c.kind == "wo" and OPT["owno"])
    if own0:
        a(f"s_add_u32 s28, s28, {c.astep}")
        a(f"s_and_b32 s28, s28, {16*c.astep - 1}")
        a(f"s_waitcnt vmcnt({(S-1)*c.NBW})")
        issued = 1
    else:
        iss(0); issued = 1
        if not (c.kind == "qkv" and OPT["early0"]):
            run_side(-1, 1)
            iss(1); issued = 2
        wait(0)
    stamp(a, c.sid + 1)
    pbar(a)
    j = 0
    while j < n:
        allowed = j - 1 + S
        if issued >= U and issued < n: break
        cnt = 0
        if c.kind == "qkv" and OPT["early0"] == 1 and j == 0: run_side(-1, 1)
        while issued <= allowed and cnt < 2 and issued < U:
            if c.kind == "qkv" and OPT["early0"] >= 2 and issued == OPT["early0"]: run_side(-1, OPT["early0"])
            iss(issued); issued += 1; cnt += 1
        run_side(j, max(issued - 1, j + 2))
        j += 1
        if j < n: wait(j)
        pbar(a)
    if j < n:
        assert issued == j - 1 + S
        a(f"s_mov_b32 s27, {c.ABASE + (issued % S)*16384}")
        a(f"s_mov_b32 s32, {c.BBASE + (issued % S)*c.BB}")
        for (t0, t1, stride) in c.rounds:
            if t0 == c.gate_all_at:
                a(f"s_waitcnt vmcnt({(c.gate_all_at - c.prepoll_at) * L})")
                a(f"v_cmp_eq_u64 s[56:57], s[{TAG}:{TAG+1}], v[{PV_POLL}:{PV_POLL+1}]")
                a("s_nop 3")
                gate(a, "all", False)
            if t0 == c.prepoll_at:
                gate_setup(a, c.seamB, False)
                a(f"buffer_load_dwordx2 v[{PV_POLL}:{PV_POLL+1}], v26, s[{FLS}:{FLS+3}], s33 offen sc0 sc1")
            if t0 in c.round_hook: c.round_hook[t0]()
            lp = a.label("p_loop")
            set_soff(a, c, t0, True, False)
            a(f"s_mov_b32 s26, {t1 - t0}")
            a(f"{lp}:")
            a("s_lshl_b32 s29, s28, 3")
            issueA(a, c, None, False); issueB(a, c, None, False)
            a(f"s_add_u32 s28, s28, {stride*8192}")
            a(f"s_sub_u32 s31, s28, {112*8192}")
            a("s_cselect_b32 s28, s28, s31")
            a(f"s_waitcnt vmcnt({(S-2)*L})")
            if DIAG and OPT["steps"]:
                pbar(a)
                a(f"s_sub_u32 s26, s26, 1\ns_cmp_lg_u32 s26, 0\ns_cbranch_scc1 {lp}")
            else:
                a(f"s_sub_u32 s26, s26, 1\ns_cmp_lg_u32 s26, 0\ns_barrier\ns_cbranch_scc1 {lp}")
        j = n - S + 1
        stamp(a, c.sid + 2)
        while j < n:
            j += 1
            if j < n: a(f"s_waitcnt vmcnt({(n-1-j)*L})")
            pbar(a)
    stamp(a, c.sid + 3)
    pbar_flush(a, {'qkv':0,'wo':1,'w1':2,'w2':3}[c.kind])

def own_gate_setup(a, seam_id):
    a(f"""
    v_lshrrev_b32 v2, 2, v1
    s_add_u32 s30, s42, 1
    v_add_u32 v2, s30, v2
    v_and_b32 v2, 7, v2
    v_and_b32 v3, 4, v2
    v_add_u32 v2, v2, v3
    s_and_b32 s30, s25, 4
    v_add_u32 v2, s30, v2
    v_and_b32 v3, 3, v1
    v_lshl_add_u32 v2, v2, 2, v3
    v_lshlrev_b32 v26, 3, v2
    s_lshl_b32 s33, s24, 10
    s_add_u32 s33, s33, {seam_id*16384}
    s_mov_b64 s[56:57], 0
    s_mov_b32 s39, 0x200000
    """)

def w2_producer(a, c):
    n = c.n; S = c.S
    ops = []
    def A(st):
        if 3 <= st < 10: gate(a, st - 3, False)
        if st == 3: stamp(a, c.sid)
        if st == (10 if OPT["w1t"] else 14):
            last = max(i for i, x in enumerate(ops) if x == -7)
            a(f"s_waitcnt vmcnt({len(ops) - 1 - last})")
            a(f"v_cmp_eq_u64 s[56:57], s[{TAG}:{TAG+1}], v[{PV_POLL+2}:{PV_POLL+3}]")
            a("s_mov_b32 s33, s37")
            a("s_nop 3")
            gate(a, "all", False)
        set_soff(a, c, st, True, False)
        issueA(a, c, st % S, False); ops.extend([st] * 4)
    def B(st, same=False):
        if same: a("s_lshl_b32 s29, s28, 3")
        else: set_soff(a, c, st, False, True)
        issueB(a, c, st % S, False); ops.extend([st] * c.NBW)
    def wait(st):
        last = max(i for i, x in enumerate(ops) if 0 <= x <= st)
        a(f"s_waitcnt vmcnt({min(63, len(ops) - 1 - last)})")
    if DIAG and OPT['steps']: a('s_mov_b32 s99, 0\nv_mov_b32 v252, 0')
    own_gate_setup(a, 0)
    apoll = f"buffer_load_dwordx2 v[{PV_POLL}:{PV_POLL+1}], v26, s[{FLS}:{FLS+3}], s33 offen sc0 sc1"
    def acheck(cnt):
        a(f"s_waitcnt vmcnt({cnt})")
        a(f"v_cmp_eq_u64 s[56:57], s[{TAG}:{TAG+1}], v[{PV_POLL}:{PV_POLL+1}]")
        a("s_nop 3")
    if OPT["w1t"]:
        a("s_barrier")
        pre_B(a, c, 1, 4)
        a("s_barrier")
        a(apoll)
        acheck(0)
        sk = a.label("skip_a3"); sk2 = a.label("skip_a3b")
        a(f"""
        s_mov_b32 s40, 0
        s_and_b32 s30, s56, 15
        s_cmp_lg_u32 s30, 15
        s_cbranch_scc1 {sk}
        s_mov_b32 s40, 1
        """)
        set_soff(a, c, 3, True, False)
        issueA(a, c, 3, False)
        a(f"{sk}:")
        pbar(a)
        pbar(a)
        B(4)
        a(f"s_cmp_lg_u32 s40, 0")
        a(f"s_cbranch_scc1 {sk2}")
        A(3)
        a(f"{sk2}:")
        A(4)
        pbar(a)
        A(5); B(5, True)
    else:
        a("s_waitcnt vmcnt(0)")
        pbar(a)
        om = OPT["ownm"]
        pbar(a)
        if om == 1: a(apoll)
        B(4)
        pbar(a)
        if om == 1:
            acheck(4); A(3); B(5); A(4); A(5)
        else:
            B(5); A(3); A(4); A(5)
    wait(3)
    stamp(a, c.sid + 1)
    pbar(a)
    for j in range(3, n):
        st = j - 1 + S
        if st < n:
            if st == (OPT["pb"] if OPT["w1t"] else 12):
                a(f"s_add_u32 s37, s33, {3*16384}")
                a(f"buffer_load_dwordx2 v[{PV_POLL+2}:{PV_POLL+3}], v26, s[{FLS}:{FLS+3}], s37 offen sc0 sc1")
                ops.append(-7)
            A(st); B(st, True)
        if j + 1 < n: wait(j + 1)
        pbar(a)
    stamp(a, c.sid + 3)
    pbar_flush(a, 3)

def touch(a, ptr, total_bytes, sr_=20):
    nl = total_bytes // 128 // 1024
    srd_off(a, sr_, ptr, 0, total_bytes)
    a(f"""
    s_lshl_b32 s30, s2, 2
    s_add_u32 s30, s30, s38
    s_mul_i32 s30, s30, {nl*128}
    v_lshlrev_b32 v2, 7, v1
    s_mov_b32 exec_lo, {hex(((1 << nl) - 1) & 0xffffffff)}
    s_mov_b32 exec_hi, {hex(((1 << nl) - 1) >> 32)}
    buffer_load_dword v253, v2, s[{sr_}:{sr_+3}], s30 offen
    s_mov_b64 exec, -1
    """)
    return 1

def xtouch_setup(a, ptr, nbytes, sr_, vreg):
    srd_off(a, sr_, ptr, 0, nbytes)
    a(f"""
    v_lshrrev_b32 v2, 2, v1
    v_lshlrev_b32 v2, 11, v2
    v_and_b32 v3, 3, v1
    v_lshl_add_u32 v2, v3, 7, v2
    s_and_b32 s30, s2, 3
    s_lshl_b32 s30, s30, 9
    s_lshl_b32 s31, s38, 14
    s_add_u32 s30, s30, s31
    v_add_u32 v2, s30, v2
    v_mov_b32 v3, 0x40000000
    v_cmp_gt_u32 vcc, 32, v1
    v_cndmask_b32 v{vreg}, v3, v2, vcc
    """)

def w2_xtouch(a, q):
    a(f"""
    s_lshr_b32 s30, s2, 4
    s_mul_i32 s30, s30, {7*65536}
    s_bfe_u32 s31, s2, 0x10003
    s_mul_i32 s31, s31, {4*65536 if q < 3 else 0x20000000}
    s_add_u32 s30, s30, s31
    s_add_u32 s30, s30, {q*65536}
    buffer_load_dword v253, v23, s[44:47], s30 offen
    """)
    return 1

def attention_v1(a):
    SC = (32 ** -0.5) * LOG2E
    vF, vL, vQH = 2, 4, 5
    Q = 8; O = 16; SB = 32; F = 176; T = 248
    a(f"""
    v_bfe_u32 v6, v1, 4, 1
    v_lshlrev_b32 v{vF}, 10, v6
    v_lshrrev_b32 v6, 5, v1
    v_lshl_add_u32 v{vF}, v6, 8, v{vF}
    v_and_b32 v7, 15, v1
    v_lshl_add_u32 v{vF}, v7, 4, v{vF}
    v_and_b32 v7, 31, v1
    v_lshlrev_b32 v6, 2, v6
    v_sub_u32 v{vQH}, v7, v6
    s_lshr_b32 s34, s3, 2            ; hh
    s_and_b32 s35, s3, 3             ; qb
    s_mul_i32 s30, s34, {HEADW}
    s_lshl_b32 s31, s35, 11
    s_add_u32 s30, s30, s31
    v_add_u32 v{vL}, s30, v{vF}
    ds_read_b128 v[{Q}:{Q+3}], v{vL} offset:49152
    ds_read_b128 v[{Q+4}:{Q+7}], v{vL} offset:{49152+512}
    """)
    def fr(b, i): return F + b * 8 + i * 4
    rd = []
    for b in range(9):
        for i in range(2):
            rd.append(f"ds_read_b128 v[{fr(b,i)}:{fr(b,i)+3}], v{vL} offset:{b*2048 + i*512}")
    for x in rd[:8]: a(x)
    for r in range(16):
        cst = 8 * (r >> 2) + (r & 3)
        a(f"v_cmp_gt_i32 s[{40+2*r}:{41+2*r}], {cst}, v{vQH}")
    nissued = 8
    rv = []
    for b in range(9):
        for i in range(2):
            rv.append(f"ds_read_b128 v[{fr(b,i)}:{fr(b,i)+3}], v{vL} offset:{24576 + b*2048 + i*512}")
    for b in range(9):
        a(f"s_waitcnt lgkmcnt({nissued - (2*b+2)})")
        s = SB + 16 * b
        a(f"v_mfma_f32_32x32x16_bf16 v[{s}:{s+15}], v[{fr(b,0)}:{fr(b,0)+3}], v[{Q}:{Q+3}], 0")
        if nissued < 18: a(rd[nissued]); nissued += 1
        a(f"v_mfma_f32_32x32x16_bf16 v[{s}:{s+15}], v[{fr(b,1)}:{fr(b,1)+3}], v[{Q+4}:{Q+7}], v[{s}:{s+15}]")
        if nissued < 18: a(rd[nissued]); nissued += 1
    for x in rv[:14]: a(x)
    skip = a.label("at_valid")
    a(f"""
    s_lshl_b32 s30, s24, 2
    s_add_u32 s30, s30, s35
    s_cmp_ge_u32 s30, 8
    s_cbranch_scc1 {skip}
    """)
    for b in range(8):
        nb = a.label("at_nb")
        a(f"s_cmp_ge_u32 s30, {8-b}")
        a(f"s_cbranch_scc1 {nb}")
        for r in range(16):
            a(f"v_mov_b32 v{SB+16*b+r}, 0xff800000")
        a(f"{nb}:")
    a(f"{skip}:")
    mx = T; mx2 = T + 1; sm = T + 2
    a(f"v_max_f32 v{mx}, v{SB+16}, v{SB+17}")
    a(f"v_max_f32 v{mx2}, v{SB+18}, v{SB+19}")
    idx = list(range(20, 128))
    for k in range(0, len(idx), 2):
        m = mx if (k // 2) % 2 == 0 else mx2
        a(f"v_max3_f32 v{m}, v{SB+idx[k]}, v{SB+idx[k+1]}, v{m}")
    for r in range(16):
        a(f"v_cndmask_b32 v{SB+r}, v{SB+128+r}, v{SB+r}, s[{40+2*r}:{41+2*r}]")
    for k in range(0, 16, 2):
        m = mx if (k // 2) % 2 == 0 else mx2
        a(f"v_max3_f32 v{m}, v{SB+k}, v{SB+k+1}, v{m}")
    for x in rv[14:]: a(x)
    a(f"""
    v_max_f32 v{mx}, v{mx}, v{mx2}
    v_mov_b32 v{mx2}, v{mx}
    v_permlane32_swap_b32 v{mx}, v{mx2}
    v_max_f32 v{mx}, v{mx}, v{mx2}
    v_mov_b32 v{Q}, {f32(SC)}
    v_mov_b32 v{Q+1}, {f32(SC)}
    v_mul_f32 v{Q+2}, {f32(-SC)}, v{mx}
    v_mul_f32 v{Q+3}, {f32(-SC)}, v{mx}
    v_mov_b32 v{sm}, 0
    v_mov_b32 v{sm+1}, 0
    s_waitcnt lgkmcnt(0)
    s_barrier
    """)
    sk = a.label("skip_x1")
    a(f"""
    s_cmp_lt_u32 s3, 4
    s_cbranch_scc1 {sk}
    s_mul_i32 s30, s24, {64*7168}
    s_mul_i32 s31, s38, 7168
    """)
    for i in range(7):
        if i % 4 == 0: a(f"s_add_u32 m0, s31, {XB1 + i*1024}")
        a(f"buffer_load_dwordx4 v{O+i}, s[20:23], s30 offen offset:{(i&3)*1024} lds")
    if OPT["sk"] and OPT["sent"] == 1:
        sk2 = a.label("skip_x2")
        a(f"s_branch {sk2}")
        a(f"{sk}:")
        srd_off(a, 20, P_WS, XP_OFF, 8 * MB)
        a(f"""
        s_lshl_b32 s30, s24, 19
        s_lshl_b32 s31, s3, 13
        s_add_u32 s30, s30, s31
        s_lshl_b32 s31, s25, 15
        s_add_u32 s30, s30, s31
        v_lshlrev_b32 v{O+4}, 4, v1
        """)
        for i in range(4): a(f"v_mov_b32 v{O+i}, -1")
        for mt in range(4):
            a(f"buffer_store_dwordx4 v[{O}:{O+3}], v{O+4}, s[20:23], s30 offen offset:{mt*1024} sc0 sc1")
        a(f"{sk2}:")
    else:
        a(f"{sk}:")
    def pack(s):
        for d, r in [(0, 0), (1, 2), (2, 8), (3, 10), (4, 4), (5, 6), (6, 12), (7, 14)]:
            a(f"v_cvt_pk_bf16_f32 v{s+d}, v{s+r}, v{s+r+1}")
    first = [True]
    def pv(b, s):
        c0 = "0" if first[0] else f"v[{O}:{O+15}]"
        first[0] = False
        a(f"v_mfma_f32_32x32x16_bf16 v[{O}:{O+15}], v[{fr(b,0)}:{fr(b,0)+3}], v[{s}:{s+3}], {c0}")
        a(f"v_mfma_f32_32x32x16_bf16 v[{O}:{O+15}], v[{fr(b,1)}:{fr(b,1)+3}], v[{s+4}:{s+7}], v[{O}:{O+15}]")
    pending = None
    for b in [0, 1, 2, 3, 4, 5, 6, 7]:
        s = SB + 16 * b
        for r in range(0, 16, 2):
            a(f"v_pk_fma_f32 v[{s+r}:{s+r+1}], v[{s+r}:{s+r+1}], v[{Q}:{Q+1}], v[{Q+2}:{Q+3}]")
        if pending is not None:
            for p in pending: pv(*p)
            pending = None
        for r in range(16):
            a(f"v_exp_f32 v{s+r}, v{s+r}")
        for r in range(0, 16, 2):
            a(f"v_pk_add_f32 v[{sm}:{sm+1}], v[{sm}:{sm+1}], v[{s+r}:{s+r+1}]")
        if b == 0:
            s8 = SB + 128
            for r in range(16):
                a(f"v_cndmask_b32 v{s8+r}, v{s+r}, 0, s[{40+2*r}:{41+2*r}]")
                a(f"v_cndmask_b32 v{s+r}, 0, v{s+r}, s[{40+2*r}:{41+2*r}]")
            pack(s); pack(s8)
            pending = [(0, s), (8, s8)]
        else:
            pack(s)
            pending = [(b, s)]
    for p in pending: pv(*p)
    srd_off(a, 16, P_WS, O_OFF, 4 * MB)
    a(f"""
    v_add_f32 v{sm}, v{sm}, v{sm+1}
    v_mov_b32 v{sm+1}, v{sm}
    v_permlane32_swap_b32 v{sm}, v{sm+1}
    v_add_f32 v{sm}, v{sm}, v{sm+1}
    v_rcp_f32 v{sm+1}, v{sm}
    v_rcp_f32 v{sm}, v{sm}
    s_lshl_b32 s30, s24, 18
    s_lshl_b32 s31, s25, 14
    s_add_u32 s30, s30, s31
    s_lshl_b32 s31, s34, 13
    s_add_u32 s30, s30, s31
    s_lshl_b32 s31, s35, 11
    s_add_u32 s30, s30, s31
    """)
    for r in range(0, 16, 2):
        a(f"v_pk_mul_f32 v[{O+r}:{O+r+1}], v[{O+r}:{O+r+1}], v[{sm}:{sm+1}]")
    pack(O)
    a(f"""
    buffer_store_dwordx4 v[{O}:{O+3}], v{vF}, s[16:19], s30 offen sc0 sc1
    buffer_store_dwordx4 v[{O+4}:{O+7}], v{vF}, s[16:19], s30 offen offset:512 sc0 sc1
    """)
    stamp(a, 10)
    signal(a, 1, 3, SB)
    stamp(a, 11)

def attention(a):
    if not OPT["att2"]: return attention_v1(a)
    SC = (32 ** -0.5) * LOG2E
    vF, vL, vQH = 2, 4, 5
    Q = 8; O = 16; SB = 32; F = 176; T = 248
    MK = O + 8
    ONES = Q + 4
    LS = SB + 128
    mx = T; mx2 = T + 1
    a(f"""
    v_bfe_u32 v6, v1, 4, 1
    v_lshlrev_b32 v{vF}, 10, v6
    v_lshrrev_b32 v6, 5, v1
    v_lshl_add_u32 v{vF}, v6, 8, v{vF}
    v_and_b32 v7, 15, v1
    v_lshl_add_u32 v{vF}, v7, 4, v{vF}
    s_lshr_b32 s34, s3, 2
    s_and_b32 s35, s3, 3
    s_mul_i32 s30, s34, {HEADW}
    s_lshl_b32 s31, s35, 11
    s_add_u32 s30, s30, s31
    v_add_u32 v{vL}, s30, v{vF}
    ds_read_b128 v[{Q}:{Q+3}], v{vL} offset:49152
    ds_read_b128 v[{Q+4}:{Q+7}], v{vL} offset:{49152+512}
    """)
    def fr(b, i): return F + b * 8 + i * 4
    order = [0, 8, 1, 2, 3, 4, 5, 6, 7]
    rd = [f"ds_read_b128 v[{fr(b,i)}:{fr(b,i)+3}], v{vL} offset:{b*2048 + i*512}" for b in order for i in range(2)]
    rv = [f"ds_read_b128 v[{fr(b,i)}:{fr(b,i)+3}], v{vL} offset:{24576 + b*2048 + i*512}" for b in order for i in range(2)]
    for x in rd[:8]: a(x)
    a(f"""
    v_and_b32 v7, 31, v1
    v_lshlrev_b32 v6, 2, v6
    v_sub_u32 v{vQH}, v7, v6
    v_mov_b32 v6, 0xffff0000
    """)
    msk = lambda r: f"s[{40+2*r}:{41+2*r}]"
    for r in range(16):
        a(f"v_cmp_gt_i32 {msk(r)}, {8 * (r >> 2) + (r & 3)}, v{vQH}")
    PK = [(0, 0), (1, 2), (2, 8), (3, 10), (4, 4), (5, 6), (6, 12), (7, 14)]
    fill = {k: [] for k in range(9)}
    for d, r in PK:
        fill[d // 4].append(f"v_cndmask_b32 v{MK+d}, 0, v6, {msk(r+1)}")
        fill[d // 4].append(f"v_cndmask_b32 v{MK+d}, v{MK+d}, -1, {msk(r)}")
    def merge(): return [f"v_cndmask_b32 v{SB+r}, v{SB+128+r}, v{SB+r}, {msk(r)}" for r in range(16)]
    def maxblk(b, first=False):
        o = []; s_ = SB + 16 * b
        for k in range(0, 16, 2):
            m = mx if (k // 2) % 2 == 0 else mx2
            if first and k < 4: o.append(f"v_max_f32 v{m}, v{s_+k}, v{s_+k+1}")
            else: o.append(f"v_max3_f32 v{m}, v{s_+k}, v{s_+k+1}, v{m}")
        return o
    mg = merge()
    fill[3] += mg[:8]; fill[4] += mg[8:] + maxblk(1, True)[:4]
    fill[5] += maxblk(1, True)[4:] + maxblk(0); fill[6] += maxblk(2) + maxblk(3)[:4]
    fill[7] += maxblk(3)[4:] + maxblk(4); fill[8] += maxblk(5)
    nissued = 8
    late = []
    for k, b in enumerate(order):
        a(f"s_waitcnt lgkmcnt({nissued - (2*k+2)})")
        s_ = SB + 16 * b
        fl = fill[k]; h = len(fl) // 2
        if OPT["bis"] == 1: h = 0
        if OPT["bis"] == 2: late += fl; fl = []
        a(f"v_mfma_f32_32x32x16_bf16 v[{s_}:{s_+15}], v[{fr(b,0)}:{fr(b,0)+3}], v[{Q}:{Q+3}], 0")
        if nissued < 18: a(rd[nissued]); nissued += 1
        for x in fl[:h]: a(x)
        a(f"v_mfma_f32_32x32x16_bf16 v[{s_}:{s_+15}], v[{fr(b,1)}:{fr(b,1)+3}], v[{Q+4}:{Q+7}], v[{s_}:{s_+15}]")
        if nissued < 18: a(rd[nissued]); nissued += 1
        for x in fl[h:]: a(x)
    for x in rv[:12]: a(x)
    for x in late + maxblk(6) + maxblk(7): a(x)
    skip = a.label("at_valid")
    a(f"""
    s_lshl_b32 s30, s24, 2
    s_add_u32 s30, s30, s35
    s_cmp_ge_u32 s30, 8
    s_cbranch_scc1 {skip}
    v_mov_b32 v7, 0xff800000
    """)
    for r in range(16):
        a(f"v_cndmask_b32 v{SB+r}, v{SB+r}, v7, {msk(r)}")
    for b in range(1, 8):
        nb = a.label("at_nb")
        a(f"s_cmp_ge_u32 s30, {8-b}")
        a(f"s_cbranch_scc1 {nb}")
        for r in range(16):
            a(f"v_mov_b32 v{SB+16*b+r}, v7")
        a(f"{nb}:")
    for b in range(8):
        for x in maxblk(b, b == 0): a(x)
    a(f"{skip}:")
    for x in rv[12:]: a(x)
    a(f"""
    v_max_f32 v{mx}, v{mx}, v{mx2}
    v_mov_b32 v{Q}, {f32(SC)}
    v_mov_b32 v{Q+1}, {f32(SC)}
    v_mov_b32 v{mx2}, v{mx}
    """)
    for i in range(4): a(f"v_mov_b32 v{ONES+i}, 0x3f803f80")
    a(f"""
    v_permlane32_swap_b32 v{mx}, v{mx2}
    v_max_f32 v{mx}, v{mx}, v{mx2}
    v_mul_f32 v{Q+2}, {f32(-SC)}, v{mx}
    v_mul_f32 v{Q+3}, {f32(-SC)}, v{mx}
    """)
    def free_lds():
        a("s_waitcnt lgkmcnt(0)")
        a("s_barrier")
        sk = a.label("skip_x1")
        a(f"""
        s_cmp_lt_u32 s3, 4
        s_cbranch_scc1 {sk}
        """)
        if OPT["deepb"]:
            cw = mk("wo", **CFG["wo"]); cw.bstep = 64 * cw.ldb; cw.pvb = 250; cw.s35 = "s33"
            a("s_lshl_b32 s33, s38, 11")
            pre_B(a, cw, 4, 12)
        a(f"""
        s_mul_i32 s30, s24, {64*7168}
        s_mul_i32 s31, s38, 7168
        """)
        for i in range(7):
            if i % 4 == 0: a(f"s_add_u32 m0, s31, {xb1() + i*1024}")
            a(f"buffer_load_dwordx4 v{O+i}, s[20:23], s30 offen offset:{(i&3)*1024} lds")
        a(f"{sk}:")
    def pack(s_):
        return [f"v_cvt_pk_bf16_f32 v{s_+d}, v{s_+r}, v{s_+r+1}" for d, r in PK]
    fo = [True]; fl_ = [True]
    def pv(b, s_):
        o = []
        for i in range(2):
            c0 = "0" if fo[0] else f"v[{O}:{O+15}]"; fo[0] = False
            o.append(f"v_mfma_f32_32x32x16_bf16 v[{O}:{O+15}], v[{fr(b,i)}:{fr(b,i)+3}], v[{s_+4*i}:{s_+4*i+3}], {c0}")
        return o
    def rsum(s_):
        o = []
        for i in range(2):
            c0 = "0" if fl_[0] else f"v[{LS}:{LS+15}]"; fl_[0] = False
            o.append(f"v_mfma_f32_32x32x16_bf16 v[{LS}:{LS+15}], v[{ONES}:{ONES+3}], v[{s_+4*i}:{s_+4*i+3}], {c0}")
        return o
    pend = []
    BARB = OPT["attbar"]
    held = []
    for b in range(8):
        s_ = SB + 16 * b
        if b == BARB:
            free_lds(); pend += [x for bb, ss in held for x in pv(bb, ss)]; held = []
        work = [f"v_pk_fma_f32 v[{s_+r}:{s_+r+1}], v[{s_+r}:{s_+r+1}], v[{Q}:{Q+1}], v[{Q+2}:{Q+3}]" for r in range(0, 16, 2)]
        work += [f"v_exp_f32 v{s_+r}, v{s_+r}" for r in range(16)]
        work += pack(s_)
        take = pend[:6]; pend = pend[6:]
        for x in {3: interleave(work, take, 7, 1, 6), 5: interleave(work, take, 7, 3, 1), 6: interleave(work, take, 1, 1, 1), 7: interleave(work, take, 7, 8, 2), 8: interleave(work, take, 23, 1, 1)}.get(OPT["bis"], interleave(work, take, 2, 4, 1)): a(x)
        if b == 0:
            for d in range(8): a(f"v_and_b32 v{s_+8+d}, v{MK+d}, v{s_+d}")
            for d in range(8): a(f"v_xor_b32 v{s_+d}, v{s_+8+d}, v{s_+d}")
            pend += rsum(s_ + 8) + rsum(s_)
            blocks = [(0, s_ + 8), (8, s_)]
        else:
            pend += rsum(s_)
            blocks = [(b, s_)]
        if b < BARB: held += blocks
        else: pend += [x for bb, ss in blocks for x in pv(bb, ss)]
    for x in pend: a(x)
    srd_off(a, 16, P_WS, O_OFF, 4 * MB)
    a(f"""
    s_lshl_b32 s30, s24, 18
    s_lshl_b32 s31, s25, 14
    s_add_u32 s30, s30, s31
    s_lshl_b32 s31, s34, 13
    s_add_u32 s30, s30, s31
    s_lshl_b32 s31, s35, 11
    s_add_u32 s30, s30, s31
    """)
    if OPT["bis"] == 4: a("s_nop 15\ns_nop 15")
    a(f"v_rcp_f32 v{mx}, v{LS}")
    a(f"v_rcp_f32 v{mx+1}, v{LS}")
    for r in range(0, 16, 2):
        a(f"v_pk_mul_f32 v[{O+r}:{O+r+1}], v[{O+r}:{O+r+1}], v[{mx}:{mx+1}]")
    for x in pack(O): a(x)
    a(f"""
    buffer_store_dwordx4 v[{O}:{O+3}], v{vF}, s[16:19], s30 offen sc0 sc1
    buffer_store_dwordx4 v[{O+4}:{O+7}], v{vF}, s[16:19], s30 offen offset:512 sc0 sc1
    """)
    if OPT["owno"]:
        a(f"""
        s_lshl_b32 s30, s3, 11
        v_add_u32 v{vL}, s30, v{vF}
        ds_write_b128 v{vL}, v[{O}:{O+3}]
        ds_write_b128 v{vL}, v[{O+4}:{O+7}] offset:512
        """)
    stamp(a, 10)
    signal(a, 1, 3, SB)
    if OPT["owno"]: a("s_waitcnt lgkmcnt(0)")
    stamp(a, 11)

def build(header_src=None):
    a = Asm()
    C = {k: mk(k, **v) for k, v in CFG.items()}
    kernel_begin(a, KNAME)
    if OPT["t0"]: a("s_memrealtime s[96:97]")
    a(f"""
    s_cmp_ge_u32 s2, 256
    s_cbranch_scc1 L_end
    s_load_dwordx16 s[80:95], s[0:1], 0
    s_load_dwordx2 s[4:5], s[0:1], 64
    v_lshrrev_b32 v2, 6, v0
    v_and_b32 v1, 63, v0
    v_readfirstlane_b32 s3, v2
    s_getreg_b32 s74, hwreg(HW_REG_XCC_ID)
    s_and_b32 s74, s74, 15
    s_mov_b32 s{TAG}, 0
    s_mov_b32 s{TAG+1}, 0
    s_waitcnt lgkmcnt(0)
    """)
    srd_off(a, FLS, P_WS, FL_OFF, 131072)
    if DIAG: a(f"v_mov_b32 v{VS}, 0")
    stamp(a, 63)
    a("""
    s_cmp_ge_u32 s3, 4
    s_cbranch_scc1 L_prod
    """)
    a("""
    s_or_b32 s30, s2, s3
    s_cmp_lg_u32 s30, 0
    s_cbranch_scc1 L_notag
    """)
    srd_off(a, 16, P_DBG, 0, 256)
    a("""
    """)
    a("s_mov_b64 s[30:31], s[96:97]" if OPT["t0"] else "s_memrealtime s[30:31]")
    a("""
    v_mov_b32 v4, 0
    s_waitcnt lgkmcnt(0)
    s_or_b32 s30, s30, 1
    v_mov_b32 v2, s30
    v_mov_b32 v3, s31
    s_mov_b64 exec, 1
    buffer_store_dwordx2 v[2:3], v4, s[16:19], 0 offen sc0 sc1
    s_mov_b64 exec, -1
    L_notag:
    """)
    if OPT["cpf"]:
        a(f"""
        s_getpc_b64 s[30:31]
        L_pc:
        s_sub_u32 s16, s30, L_pc-{KNAME}
        s_subb_u32 s17, s31, 0
        s_mov_b32 s18, L_code_end-{KNAME}
        s_mov_b32 s19, 0x20000
        s_lshr_b32 s30, s2, 3
        s_lshl_b32 s30, s30, 11
        s_lshl_b32 s31, s3, 9
        s_add_u32 s30, s30, s31
        v_lshlrev_b32 v2, 7, v1
        s_mov_b64 exec, 15
        buffer_load_dword v253, v2, s[16:19], s30 offen
        s_mov_b64 exec, -1
        """)
    if OPT["prio"]: a(f"s_setprio {OPT['prio']}")
    gemm_consumer(a, C["qkv"])
    a("s_barrier")
    a("L_attn:")
    stamp(a, 9)
    attention(a)
    a("""
    s_barrier
    s_cmp_ge_u32 s3, 4
    s_cbranch_scc1 L_prod2
    """)
    colsum_tile(a, C["w1"], xb1(), "s3", 1, 32)
    if OPT["deepb"]: a("s_barrier")
    gemm_consumer(a, C["wo"])
    gemm_consumer(a, C["w1"])
    gemm_consumer(a, C["w2"])
    if OPT["spin"]:
        a(f"""
        s_waitcnt vmcnt(0)
        L_spin:
        s_memrealtime s[96:97]
        s_waitcnt lgkmcnt(0)
        s_sub_u32 s96, s96, s{TAG}
        s_cmp_lt_u32 s96, {OPT["spin"]}
        s_cbranch_scc1 L_spin
        """)
    stamp_flush(a)
    a("s_endpgm")
    C["w2"].ool()
    if OPT["reslate"]: C["wo"].ool()
    a("L_prod:")
    a("s_sub_u32 s38, s3, 4")
    c = C["qkv"]
    prod_setup(a, c)
    cq = c
    def q_extra():
        vb, sr_ = PV_B, 12
        if OPT["dil"]:
            cx = mk("qkv", **CFG["qkv"]); cx.pstride = 128; cx.bcol = 384
            vb, sr_ = 16, 20
            b_setup(a, cx, vb, sr_)
        a(f"s_mul_i32 s33, s24, {64*cq.ldb}")
        for i in range(cq.NBW):
            if i % 4 == 0: a(f"s_add_u32 m0, s35, {XB0 + i*1024}")
            a(f"buffer_load_dwordx4 v{vb+i}, s[{sr_}:{sr_+3}], s33 offen offset:{(i&3)*1024} lds")
        return cq.NBW
    def q_colsum(part=None):
        if part in (None, 0):
            a(f"""
            v_mov_b32 v2, {ST_TAG}
            ds_read_b64 v[{PV_RD}:{PV_RD+1}], v2
            s_waitcnt lgkmcnt(0)
            v_readfirstlane_b32 s{TAG}, v{PV_RD}
            v_readfirstlane_b32 s{TAG+1}, v{PV_RD+1}
            """)
        a("s_setprio 3")
        colsum_tile(a, cq, XB0, "s38", 0, PV_RD, part)
        a("s_setprio 0")
        return 1 if part in (None, 3) else 0
    def hi(f):
        def g():
            a("s_setprio 3"); r = f(); a("s_setprio 0"); return r
        return g
    side = {-1: [q_extra], max(OPT['early0'], 1): [q_colsum], 12: [lambda: gather_cs_setup(a, cq), lambda: gather_rs_setup(a, cq)],
            14: [lambda: gather_rs(a, cq), lambda: gather_cs(a, 0, 16)]}
    side[15] = [lambda: a("s_waitcnt vmcnt(0)"), hi(lambda: gather_finish_cs(a, cq)), hi(lambda: gather_finish_rs(a, cq))]
    if OPT["two"] & 1:
        q2 = OPT["q2"]
        side[12] = [lambda: gather_rs_setup(a, cq)]
        side[q2] = [hi(lambda: l2_issue(a, cq))]
        side[q2 + 2] = [hi(lambda: l2_finish(a, cq))]
        side[14] = [lambda: gather_rs(a, cq), lambda: fin_issue(a, cq)]
        side[15] = [lambda: a("s_waitcnt vmcnt(0)"), hi(lambda: fin_finish(a, cq)), hi(lambda: gather_finish_rs(a, cq))]
    if OPT["cspl"]:
        cb = max(OPT["early0"], 1)
        del side[cb]
        for k in range(4): side.setdefault(cb + k, []).append(lambda k=k: q_colsum(k))
    if OPT["help"]:
        def help_setup():
            srd_off(a, 44, P_WQKV, 0, 6 * MB)
            a(f"""
            s_and_b32 s30, s25, 3
            s_lshl_b32 s31, s30, 11
            s_or_b32 s70, s25, 3
            s_lshl_b32 s70, s70, 7
            s_add_u32 s31, s31, s70
            v_mov_b32 v2, 6144
            v_mul_lo_u32 v23, v1, v2
            v_add_u32 v23, s31, v23
            s_and_b32 s70, s24, 7
            s_cmp_eq_u32 s30, 3
            s_cselect_b32 s70, 99, s70
            s_and_b32 s30, s25, 4
            s_cselect_b32 s70, 99, s70
            s_cmp_lg_u32 s38, 0
            s_cselect_b32 s70, 99, s70
            """)
            return 0
        def helper(k):
            def f():
                sk = a.label("skip_help")
                a(f"""
                s_cmp_lg_u32 s70, {k & 7}
                s_cbranch_scc1 {sk}
                s_mov_b32 s30, {(k + OPT['help']) * 64 * 6144}
                buffer_load_dword v253, v23, s[44:47], s30 offen
                {sk}:
                """)
                return 0
            return f
        help_setup()
        for k in range(0, 16 - OPT["help"]): side.setdefault(k, []).insert(0, helper(k))
    if OPT["sk"] and OPT["sent"] == 2:
        def prefill(k):
            def f():
                if k == 0:
                    srd_off(a, 16, P_WS, XP_OFF, 8 * MB)
                    a(f"""
                    s_lshl_b32 s62, s24, 19
                    s_lshl_b32 s31, s38, 13
                    s_add_u32 s62, s62, s31
                    s_lshl_b32 s31, s25, 15
                    s_add_u32 s62, s62, s31
                    v_lshlrev_b32 v27, 4, v1
                    """)
                    for i in range(4): a(f"v_mov_b32 v{28+i}, -1")
                a(f"buffer_store_dwordx4 v[28:31], v27, s[16:19], s62 offen offset:{k*1024} sc0 sc1")
                return 1
            return f
        for k in range(4): side.setdefault(5 + (k // OPT["pfg"]), []).append(prefill(k))
    if OPT["tlb"]:
        def tlbwarm():
            G = OPT["tlb"] * MB // 2 if OPT["tlb"] > 1 else 2 * MB
            a(f"s_mul_i32 s30, s38, {12*MB}")
            a(f"s_add_u32 s30, s30, {8*MB}")
            a(f"s_add_u32 s98, s{P_WS}, s30")
            a(f"s_addc_u32 s99, s{P_WS+1}, 0")
            for k in range(6):
                a(f"s_load_dword s100, s[98:99], 0")
                a(f"s_add_u32 s98, s98, {2*MB}")
                a(f"s_addc_u32 s99, s99, 0")
            a(f"s_lshl_b32 s30, s38, 21")
            for ptr, npg in ((P_W1, 4), (P_OUT, 2), (P_WO, 1)):
                a(f"s_min_u32 s31, s30, {(npg-1)*2*MB}")
                a(f"s_add_u32 s98, s{ptr}, s31")
                a(f"s_addc_u32 s99, s{ptr+1}, 0")
                a(f"s_load_dword s101, s[98:99], 0")
            return 0
        side.setdefault(5, []).insert(0, tlbwarm)
    spf = [0]
    def sprefetch(k):
        def f():
            for _ in range(k):
                if spf[0] < 112:
                    a(f"s_load_dword s{100 + (spf[0] & 1)}, s[68:69], {spf[0]*64}")
                    spf[0] += 1
            return 0
        return f
    def spf_setup():
        a(f"""
        s_lshl_b32 s30, s2, 2
        s_add_u32 s30, s30, s38
        s_mul_i32 s30, s30, 7168
        s_add_u32 s68, s{P_W2}, s30
        s_addc_u32 s69, s{P_W2+1}, 0
        """)
        return 0
    if OPT["pf"] == 3:
        side.setdefault(5, []).append(spf_setup)
        for k in range(5, 13): side.setdefault(k, []).append(sprefetch(6))
    gemm_producer(a, c, False, None, side)
    if OPT["xst"]:
        for i in range(4): a(f"v_mov_b32 v{28+i}, v{PV_A+i}")
        a("""
        s_mov_b32 s48, s8
        s_mov_b32 s49, s9
        s_mov_b32 s50, s10
        s_mov_b32 s51, 0x20000
        """)
    a(f"""
    s_sub_u32 s30, s24, 1
    s_max_i32 s30, s30, 0
    s_sub_u32 s31, s24, 2
    s_max_i32 s31, s31, 0
    s_sub_u32 s30, s30, s31
    s_lshl_b32 s30, s30, 11
    v_bfe_u32 v2, v1, 2, 1
    v_mul_lo_u32 v2, v2, s30
    v_and_b32 v3, 3, v1
    v_lshl_add_u32 v2, v3, 3, v2
    s_lshl_b32 s31, s31, 11
    s_lshl_b32 s30, s25, 7
    s_add_u32 s33, s30, s31
    s_add_u32 s33, s33, 65536
    """)
    a(f"""
    s_lshr_b32 s34, s38, 1
    s_and_b32 s35, s38, 1
    s_lshl_b32 s30, s25, 1
    s_add_u32 s30, s30, s34
    s_lshl_b32 s30, s30, 17
    s_lshl_b32 s31, s35, 22
    s_add_u32 s30, s30, s31
    s_add_u32 s30, s30, {K_OFF}
    """)
    srd_off(a, 8, P_WS, "s30", 131072)
    a(f"""
    s_lshl_b32 s30, s24, 13
    s_sub_u32 s30, s30, 16384
    v_lshlrev_b32 v4, 4, v1
    v_add_u32 v4, s30, v4
    s_mul_i32 s34, s34, {HEADW}
    s_mul_i32 s35, s35, 24576
    s_add_u32 s34, s34, s35
    """)
    a("v_mov_b32 v5, v2")
    b_setup(a, C["w1"], 16, 20)
    wait_flags(a, 5, "s33", False, PV_RD)
    stamp(a, 5)
    for q in range(4):
        a(f"s_add_u32 m0, s34, {q*4096}")
        for i in range(4):
            a(f"buffer_load_dwordx4 v4, s[8:11], 0 offen offset:{i*1024}{NBF[OPT['nbf']]} lds")
        if q < 3: a("v_add_u32 v4, 0x1000, v4")
    a("s_mov_b32 s98, s24\ns_mov_b32 s99, s25")
    c = C["wo"]
    prod_setup(a, c)
    a("s_mov_b32 s24, s98\ns_mov_b32 s25, s99")
    if OPT["xt"]:
        xtouch_setup(a, P_WO, 2 * MB, 16, 25)
        a("s_lshr_b32 s37, s2, 3\ns_lshl_b32 s37, s37, 16")
    a("s_waitcnt vmcnt(0)")
    stamp(a, 6)
    a("s_barrier")
    if OPT["xst"]:
        a(f"s_add_u32 m0, s34, {XST}")
        a("s_lshl_b32 s30, s25, 7")
        for i in range(4):
            a(f"buffer_load_dwordx4 v{28+i}, s[48:51], s30 offen offset:{i*1024} lds")
    pre_B(a, c, 0, 4 if OPT["deepb"] else None)
    if OPT["xt"]:
        a("buffer_load_dword v253, v25, s[16:19], s37 offen")
    elif OPT["pf"]: touch(a, P_WO, 2 * MB, 16)
    if OPT["deepb"]: a("v_mov_b32 v250, v8\nv_mov_b32 v251, v9")
    a("s_branch L_attn")
    a("L_prod2:")
    c = C["wo"]
    prod_setup(a, c)
    a(f"s_add_u32 s29, s29, {c.SB*64*c.ldb}")
    a(f"s_and_b32 s29, s29, {16*64*c.ldb - 1}")
    gate_setup(a, 1, True)
    if OPT["deepb"]: a("s_barrier")
    gemm_producer(a, c, True, "wide")
    c = C["w1"]; c1 = c
    prod_setup(a, c)
    if OPT["wobar"] == 1: a("s_barrier")
    pre_B(a, c, 0, 1 if OPT["wobar"] >= 2 else None)
    gather_cs_setup(a, c)
    gather_rs_setup(a, c)
    if C["w2"].early: w2_early_setup(a, C["w2"])
    if OPT["wobar"] >= 2:
        a("s_barrier")
        pre_B(a, c, 1, 3)
    gate_setup(a, 2, False)
    def w2hook(k):
        def f():
            sk = a.label("skip_pf")
            a(f"""
            s_lshr_b32 s30, s2, 3
            s_and_b32 s30, s30, 7
            s_cmp_lg_u32 s30, {k}
            s_cbranch_scc1 {sk}
            """)
            touch(a, P_W2, 7 * MB, 44)
            a(f"{sk}:")
            return 0
        return f
    side = {}
    if OPT["pf"] == 2:
        for k in range(8): side.setdefault(3 + k, []).append(w2hook(k))
    if OPT["pf"] == 3:
        spf_setup()
        for k in range(0, 13): side.setdefault(k, []).append(sprefetch(5))
    def rs_add(p0, p1):
        def f():
            for p in range(max(p0, 1), p1): a(f"v_add_f32 v{G_RS}, v{G_RS}, v{G_RS+p}")
        return f
    side.setdefault(8, []).append(hi(rs_add(0, 16)))
    side.setdefault(13, []).append(hi(rs_add(16, 26)))
    side[14] = [lambda: gather_cs(a, 0, 16)]
    side[15] = [hi(rs_add(26, 32)), lambda: a("s_waitcnt vmcnt(0)"), hi(lambda: gather_finish_cs(a, c1)), hi(lambda: gather_finish_rs(a, c1))]
    if C["w2"].early:
        c2 = C["w2"]
        side[14].append(lambda: pre_B(a, c2, 0, 1))
        side[15] = [lambda: pre_B(a, c2, 1, 4), hi(rs_add(26, 32)), lambda: a("s_waitcnt vmcnt(16)"), hi(lambda: gather_finish_cs(a, c1)), hi(lambda: gather_finish_rs(a, c1))]
    if OPT["two"] & 2:
        side.setdefault(2, []).append(hi(lambda: l2_issue(a, c1)))
        side.setdefault(4, []).append(hi(lambda: l2_finish(a, c1)))
        side[14] = [lambda: fin_issue(a, c1), lambda: pre_B(a, c2, 0, 1)]
        side[15] = [lambda: pre_B(a, c2, 1, 4), hi(rs_add(26, 32)), lambda: a("s_waitcnt vmcnt(16)"), hi(lambda: fin_finish(a, c1)), hi(lambda: gather_finish_rs(a, c1))]
    if OPT["w1t"]:
        side[13].append(lambda: fin_issue(a, c1))
        side[14] = [lambda: pre_B(a, c2, 0, 1), hi(rs_add(26, 30))]
        side[15] = [hi(rs_add(30, 32)), hi(lambda: fin_finish(a, c1)), hi(lambda: gather_finish_rs(a, c1))]
    gemm_producer(a, c, True, "narrow", side, lambda st: gather_rs(a, c1, 2 * st, 2 * st + 2))
    c = C["w2"]
    c.rounds = [(16, OPT['prepoll'], 14), (OPT['prepoll'], 24, 14), (24, 40, 7), (40, 56, 7)]; c.prepoll_at = OPT['prepoll']; c.gate_all_at = 24; c.seamB = 3
    if c.sk:
        c.rounds = [(8, 10, 14), (10, 12, 14), (12, 20, 7), (20, 28, 7)]; c.prepoll_at = 10; c.gate_all_at = 12
    prod_setup(a, c)
    if not c.early: pre_B(a, c)
    side = {}
    c.round_hook = {}
    if OPT["xt"] and not c.sk:
        xtouch_setup(a, P_W2, 7 * MB, 44, 23)
        w2_xtouch(a, 0); w2_xtouch(a, 3)
        side = {4: [lambda: w2_xtouch(a, 1)]}
        c.round_hook = {24: lambda: w2_xtouch(a, 2)}
    if not OPT["w1t"]:
        a("s_barrier")
        a("s_barrier")
    if OPT["own"]:
        w2_producer(a, c)
    else:
        gate_setup(a, 0, False)
        gemm_producer(a, c, True, "narrow", side, None, 8 if c.sk else 16)
    stamp_flush(a)
    a("L_end:")
    a("s_endpgm")
    a("L_code_end:")
    body, nins = hazard.fix(a.lines)
    hdr = []
    if header_src:
        for ln in open(header_src):
            if ln.startswith(";") and "@launch" not in ln:
                hdr.append(ln.rstrip("\n"))
            elif not ln.startswith(";"):
                break
    hdr.append(f"; @launch grid=(256,1,1) block=(512,1,1) lds=163840")
    hdr.append('.amdgcn_target "amdgcn-amd-amdhsa--gfx950"')
    hdr.append(".text")
    hdr.extend(DESC.strip("\n").split("\n"))
    return "\n".join(hdr) + "\n" + "\n".join(body) + "\n" + kernel_desc(KNAME, 256, 102), nins

if __name__ == "__main__":
    if "--diag" in sys.argv:
        DIAG = True; sys.argv.remove("--diag")
    for arg in list(sys.argv[1:]):
        if "=" in arg:
            k_, v_ = arg.split("=", 1)
            if "." in k_:
                kk, f_ = k_.split(".")
                for kind_ in (CFG.keys() if kk == "all" else [kk]): CFG[kind_][f_] = int(v_)
            else: OPT[k_] = int(v_)
            sys.argv.remove(arg)
    out = sys.argv[1] if len(sys.argv) > 1 else "p1.s"
    txt, nins = build(header_src="sequential_preLN__sliding_block__dense_activation_silu__prompt.s.ref")
    open(out, "w").write(txt)
    print("wrote", out, len(txt), "bytes; nop states inserted:", nins)
```

```python
import sys, struct
from asmlib import *
import hazard

MB = 1 << 20
K_OFF = 8 * MB
V_OFF = 12 * MB
O_OFF = 16 * MB
H_OFF = 20 * MB
H1_OFF = 24 * MB
FL_OFF = 40 * MB
RS1_OFF = 41 * MB
CSG_OFF = 42 * MB
FIN_OFF = 41 * MB + 524288
XP_OFF = 44 * MB
ST2_OFF = 43 * MB
DIAG_OFF = 64 * MB
LOG2E = 1.4426950408889634
KNAME = "sequential_preLN__sliding_block__dense_activation_silu__prompt_kernel"
P_X, P_WQKV, P_WO, P_W1, P_W2, P_OUT, P_DBG, P_WS = 80, 82, 84, 88, 90, 92, 94, 4
TAG = 72
FLS = 76
ST = 155648
ST_REC, ST_MEAN, ST_RSTD, ST_CS, ST_CSP = ST, ST + 2048, ST + 2560, ST + 3072, ST + 4096
HEADW = 57344
XB0 = 122880
XB1 = 81920
XCH = 147456
XST = 147456
ST_TAG = ST + 4096
HRES = 232
DEF = 200
VS = 254
DIAG = False
OPT = dict(fastb=1, owno=0, w1t=0, pb=9, two=2, q2=8, own1=4, ownm=1, own=1, sktail=3, sksig=4, deepb=0, tlb=0, align=0, skrpg=1, bis=5, att2=1, attbar=1, osf=1, t0=0, spin=0, eb2=1, sigA2=2, peel=8, cspl=0, xst=1, reslate=0, sent=0, pfg=1, help=4, snake=1, rot0=4, early0=0, dil=1, sk=1, skfull=0, pf=3, xt=1, prio=0, inv=0, nodma=0, steps=0, kvlocal=0, cpf=1, nbf=1, sigA=3, sigB=3, qnt=0, bar2=0, defer=0, dper=2, dstart=0, prepoll=21, wobar=0)

def xb1(): return 0 if OPT['deepb'] else XB1

DESC = """
; Persistent single-launch transformer block (generated by a hand-written Python emitter, work/gen2.py).
; 256 workgroups (one per CU), 8 waves: waves 0-3 MFMA consumers, waves 4-7 LDS-DMA producers.
; Hand-offs between workgroups: write-through stores, drained, then a per-wave flag carrying a launch-unique tag.
"""

def f32(x):
    return "0x%08x" % struct.unpack("<I", struct.pack("<f", x))[0]

def srd_off(a, d, ptr, off, nrec):
    a(f"s_add_u32 s{d}, s{ptr}, {off}")
    a(f"s_addc_u32 s{d+1}, s{ptr+1}, 0")
    a(f"s_mov_b32 s{d+2}, {nrec}")
    a(f"s_mov_b32 s{d+3}, 0x20000")

def hold(a, key):
    if not OPT.get(key): return
    l = a.label("hold")
    a(f"""
    {l}:
    s_memrealtime s[96:97]
    s_waitcnt lgkmcnt(0)
    s_sub_u32 s96, s96, s{TAG}
    s_cmp_lt_u32 s96, {OPT[key]}
    s_cbranch_scc1 {l}
    """)

def stamp(a, idx):
    if not DIAG: return
    a("s_memrealtime s[96:97]")
    a("s_waitcnt lgkmcnt(0)")
    a(f"v_writelane_b32 v{VS}, s96, {idx}")

def stamp_flush(a):
    if not DIAG: return
    srd_off(a, 16, P_WS, DIAG_OFF, 524288)
    a(f"""
    s_lshl_b32 s30, s2, 11
    s_lshl_b32 s31, s3, 8
    s_add_u32 s30, s30, s31
    v_lshlrev_b32 v{VS+1}, 2, v1
    buffer_store_dword v{VS}, v{VS+1}, s[16:19], s30 offen
    """)

def pbar(a):
    a("s_barrier")
    if DIAG and OPT["steps"]:
        a("s_memtime s[96:97]" if OPT["steps"] == 2 else "s_memrealtime s[96:97]")
        a("""
        s_waitcnt lgkmcnt(0)
        s_mov_b32 m0, s99
        s_nop 0
        v_writelane_b32 v252, s96, m0
        s_add_u32 s99, s99, 1
        """)

def pbar_flush(a, ph):
    if not (DIAG and OPT["steps"]): return
    srd_off(a, 16, P_WS, DIAG_OFF + 524288 * (1 + ph), 524288)
    a(f"""
    s_lshl_b32 s30, s2, 11
    s_lshl_b32 s31, s3, 8
    s_add_u32 s30, s30, s31
    v_lshlrev_b32 v2, 2, v1
    buffer_store_dword v252, v2, s[16:19], s30 offen
    """)

def code_prefetch(a):
    lp = a.label("Lpc"); sk = a.label("skip_cpf")
    a(f"""
    s_getpc_b64 s[30:31]
    {lp}:
    s_sub_u32 s30, s30, {lp}-{KNAME}
    s_subb_u32 s31, s31, 0
    s_lshr_b32 s36, s2, 3
    s_lshl_b32 s36, s36, 11
    s_lshl_b32 s37, s3, 9
    s_add_u32 s36, s36, s37
    v_lshlrev_b32 v14, 7, v1
    v_add_u32 v14, s36, v14
    v_mov_b32 v15, L_code_end-{KNAME}
    v_cmp_gt_u32 vcc, 4, v1
    v_cndmask_b32 v15, 0, v15, vcc
    v_cmp_lt_u32 s[36:37], v14, v15
    v_mov_b32 v15, s31
    v_add_co_u32 v14, vcc, s30, v14
    v_addc_co_u32 v15, vcc, 0, v15, vcc
    s_and_saveexec_b64 s[30:31], s[36:37]
    s_cbranch_execz {sk}
    global_load_dword v253, v[14:15], off
    {sk}:
    s_mov_b64 exec, -1
    """)

def wgmap(a, RX, CX):
    CT = 16 // CX; RB = 16 // RX
    lg = lambda x: x.bit_length() - 1
    a(f"""
    s_and_b32 s30, s2, 7
    s_lshr_b32 s31, s2, 3
    s_lshr_b32 s24, s30, {lg(CX)}
    s_lshl_b32 s24, s24, {lg(RB)}
    s_and_b32 s25, s30, {CX-1}
    s_lshl_b32 s25, s25, {lg(CT)}
    s_lshr_b32 s30, s31, {lg(CT)}
    s_add_u32 s24, s24, s30
    s_and_b32 s30, s31, {CT-1}
    s_add_u32 s25, s25, s30
    """)

def st2(a, text):
    if not OPT["kvlocal"]:
        a(text + " sc0 sc1"); return
    l1 = a.label("skip_s1"); l2 = a.label("skip_s2")
    a(f"""
    s_cmp_lg_u32 s55, 0
    s_cbranch_scc1 {l1}
    {text} sc0 sc1
    s_branch {l2}
    {l1}:
    {text}
    {l2}:
    """)

def signal(a, seam, slot_shift, t, local=False, cnt=0, plain0=False, rbj=('s24', 's25')):
    kv = seam == 0 and not plain0
    a(f"""
    s_lshl_b32 s40, {rbj[0]}, {11 if kv else 10}
    s_lshl_b32 s41, {rbj[1]}, {7 if kv else slot_shift+3}
    s_add_u32 s40, s40, s41
    s_lshl_b32 s41, s3, 3
    s_add_u32 s40, s40, s41
    s_add_u32 s40, s40, {65536 if kv else seam*16384}
    v_mov_b32 v{t}, s{TAG}
    v_mov_b32 v{t+1}, s{TAG+1}
    v_mov_b32 v{t+2}, 0
    s_waitcnt vmcnt({cnt})
    s_mov_b64 exec, 1
    """)
    txt = f"buffer_store_dwordx2 v[{t}:{t+1}], v{t+2}, s[{FLS}:{FLS+3}], s40 offen"
    if local: st2(a, txt)
    else: a(txt + " sc0 sc1")
    a("s_mov_b64 exec, -1")

def wait_flags(a, voff, soff, wide, t):
    lp = a.label("poll"); dn = a.label("polld")
    a(f"s_mov_b32 s39, 0x100000")
    if OPT["inv"] == 1: a("buffer_inv sc1")
    a(f"{lp}:")
    if wide:
        a(f"buffer_load_dwordx4 v[{t}:{t+3}], v{voff}, s[{FLS}:{FLS+3}], {soff} offen sc0 sc1")
    else:
        a(f"buffer_load_dwordx2 v[{t}:{t+1}], v{voff}, s[{FLS}:{FLS+3}], {soff} offen sc0 sc1")
    a("s_waitcnt vmcnt(0)")
    a(f"v_cmp_eq_u64 vcc, s[{TAG}:{TAG+1}], v[{t}:{t+1}]")
    if wide:
        a(f"v_cmp_eq_u64 s[36:37], s[{TAG}:{TAG+1}], v[{t+2}:{t+3}]")
        a("s_nop 3")
        a("s_and_b64 vcc, vcc, s[36:37]")
    else:
        a("s_nop 3")
    a(f"""
    s_cmp_eq_u64 vcc, -1
    s_cbranch_scc1 {dn}
    s_sleep 1
    s_sub_u32 s39, s39, 1
    s_cmp_lg_u32 s39, 0
    s_cbranch_scc1 {lp}
    {dn}:
    """)
    if OPT["inv"] == 2: a("buffer_inv sc1")

class G: pass
NBF = ['', ' sc1', ' sc0']

def mk(kind, **kw):
    c = G(); c.kind = kind; c.__dict__.update(kw)
    c.sk = 0
    c.pvb, c.sb, c.s35 = 8, 12, "s35"
    c.early = 0
    if kind == "wo" and OPT["xst"]: c.S = min(c.S, 4)
    if kind == "w2" and OPT["sk"]:
        c.sk = 1; c.BN = 128; c.NT = 4; c.S = 4; c.BBASE = 65536; c.full = OPT["skfull"]; c.rpg = OPT["skrpg"]; c.pstride = 512
        if OPT["eb2"]:
            c.early = 1; c.pvb, c.sb, c.s35 = 16, 52, "s41"; c.BBASE = 77824
    c.SB = c.S; c.bs0 = 0
    if kind == "wo" and OPT["deepb"]:
        c.S = 3; c.SB = 12; c.bs0 = 8; c.BBASE = 49152
    c.n = c.K // 64 // (2 if c.sk else 1)
    c.BB = c.BN * 128
    c.NBW = c.BB // 4096
    c.gmul = 4 if c.korder == "F" else 8
    c.rdrows = 16 if c.korder == "F" else 4
    c.RS = 128 if c.layout == "panel" else 448
    return c

CFG = dict(
    qkv=dict(K=1024, BN=192, NT=6, S=3, korder="N", layout="panel", wp=P_WQKV, ldb=6144, bcol=128, pstride=2048,
             a_off=None, normal_tiles=(4, 5), RX=2, CX=4, rpg=1, ABASE=0, BBASE=49152, ln=True, sid=0, lt=0, full=0, rot=0),
    wo=dict(K=1024, BN=64, NT=2, S=5, korder="F", layout="panel", wp=P_WO, ldb=2048, bcol=128, pstride=0,
            a_off=O_OFF, normal_tiles=(), RX=2, CX=4, rpg=2, ABASE=0, BBASE=114688, ln=False, sid=16, lt=0, full=1, rot=2),
    w1=dict(K=1024, BN=224, NT=7, S=3, korder="F", layout="w1", wp=P_W1, ldb=7168, bcol=448, pstride=0,
            a_off=H_OFF, normal_tiles=(), RX=2, CX=4, rpg=1, ABASE=0, BBASE=49152, ln=True, sid=24, lt=0, full=0, rot=2),
    w2=dict(K=3584, BN=64, NT=2, S=6, korder="F", layout="panel", wp=P_W2, ldb=2048, bcol=128, pstride=0,
            a_off=H1_OFF, normal_tiles=(), RX=2, CX=4, rpg=2, ABASE=0, BBASE=98304, ln=False, sid=32, lt=0, full=1, rot=0),
)

def gemm_consumer(a, c):
    kind = c.kind; n = c.n; S = c.S; NT = c.NT; RS = c.RS
    vA0, vA10, vB00, vB01, vB02, vA, vA1, vB0, vB1, vB2 = 2, 3, 4, 5, 6, 7, 8, 9, 10, 11
    vG = 12; vCH = 13
    t0, t1 = 14, 15
    ACC = 16
    FX = ACC + 16 * NT
    FSZ = 16 + 4 * NT
    if c.full: FSZ *= 2
    FY = FX + FSZ
    VTOP = FY + FSZ
    acc = lambda mt, nt: ACC + (nt * 4 + mt) * 4
    wgmap(a, c.RX, c.CX)
    T = FX
    if kind == "qkv": row_stats_issue(a, FY)
    a(f"""
    s_lshr_b32 s34, s3, 1
    s_and_b32 s35, s3, 1
    v_lshlrev_b32 v{vCH}, 4, v1
    s_lshl_b32 s30, s34, 12
    v_add_u32 v{vCH}, s30, v{vCH}
    v_lshrrev_b32 v{vG}, 4, v1
    v_bfe_u32 v{T}, v1, 2, 2
    v_and_b32 v{T+1}, 3, v1
    """)
    if c.a_off is None:
        a(f"""
        v_and_b32 v{t0}, 15, v1
        v_lshrrev_b32 v{t1}, 1, v{t0}
        v_xor_b32 v{t1}, v{t1}, v{vG}
        v_lshlrev_b32 v{t1}, 4, v{t1}
        v_lshl_add_u32 v{vA0}, v{t0}, 7, v{t1}
        s_lshl_b32 s30, s34, 13
        v_add_u32 v{vA0}, s30, v{vA0}
        v_xor_b32 v{vA10}, 64, v{vA0}
        """)
        aread = lambda mt, kg: ((vA, vA1)[kg], mt * 2048)
    else:
        a(f"v_mov_b32 v{vA0}, v{vCH}")
        aread = lambda mt, kg: (vA, kg * 8192 + mt * 1024)
    if c.layout == "panel":
        a(f"""
        v_mul_u32_u24 v{t0}, {c.gmul}, v{vG}
        v_add_u32 v{t0}, v{t0}, v{T}
        v_lshlrev_b32 v{t0}, 7, v{t0}
        v_lshl_add_u32 v{t0}, v{T+1}, 3, v{t0}
        v_lshrrev_b32 v{t1}, 1, v{T}
        v_and_b32 v{T+2}, 1, v{vG}
        v_lshl_or_b32 v{t1}, v{T+2}, 1, v{t1}
        s_lshl_b32 s30, s35, 1
        v_xor_b32 v{t1}, s30, v{t1}
        v_lshl_add_u32 v{vB00}, v{t1}, 5, v{t0}
        v_xor_b32 v{t1}, 1, v{t1}
        v_lshl_add_u32 v{vB01}, v{t1}, 5, v{t0}
        """)
        def bread(nt, kg, rd):
            return (vB0 if nt % 2 == 0 else vB1), (nt // 2) * 8192 + kg * 32 * RS + rd * c.rdrows * RS
    else:
        a(f"""
        v_mul_u32_u24 v{t0}, {c.gmul}, v{vG}
        v_add_u32 v{t0}, v{t0}, v{T}
        v_mul_u32_u24 v{t0}, {RS}, v{t0}
        v_lshl_add_u32 v{t0}, v{T+1}, 3, v{t0}
        v_and_b32 v{t1}, 1, v{vG}
        v_lshlrev_b32 v{T+2}, 5, v{t1}
        s_lshl_b32 s30, s35, 8
        v_add_u32 v{T+3}, s30, v{t0}
        v_add_u32 v{vB00}, v{T+3}, v{T+2}
        v_sub_u32 v{vB01}, v{T+3}, v{T+2}
        s_add_u32 s30, s35, 6
        v_xor_b32 v{t1}, s30, v{t1}
        v_lshl_add_u32 v{vB02}, v{t1}, 5, v{t0}
        """)
        def bread(nt, kg, rd):
            o = kg * 32 * RS + rd * c.rdrows * RS
            if nt == 6: return vB2, o
            return (vB0 if nt % 2 == 0 else vB1), o + nt * 32
    RES = VTOP
    if kind == "wo":
        srd_off(a, 20, P_X, 0, 4 * MB)
        a(f"""
        v_and_b32 v{t0}, 15, v1
        v_lshlrev_b32 v{t0}, 11, v{t0}
        v_lshl_add_u32 v{t0}, v{vG}, 3, v{t0}
        s_lshl_b32 s30, s24, 18
        s_lshl_b32 s31, s34, 17
        s_add_u32 s30, s30, s31
        s_lshl_b32 s31, s25, 7
        s_add_u32 s30, s30, s31
        s_lshl_b32 s31, s35, 6
        s_add_u32 s30, s30, s31
        """)
        def res_loads():
            for mt in range(4):
                for nt in range(2):
                    r = RES + mt * 4 + nt * 2
                    a(f"buffer_load_dwordx2 v[{r}:{r+1}], v{t0}, s[20:23], s30 offen offset:{nt*32}")
                a("s_add_u32 s30, s30, 32768")
        if not OPT["reslate"] and not OPT["xst"]: res_loads()
    if kind == "wo" and OPT["xst"]:
        a(f"""
        v_and_b32 v{t0}, 15, v1
        v_lshrrev_b32 v{t1}, 1, v{t0}
        v_lshrrev_b32 v{T}, 1, v{vG}
        s_lshl_b32 s30, s35, 2
        v_add_u32 v{T}, s30, v{T}
        v_xor_b32 v{t1}, v{t1}, v{T}
        v_lshlrev_b32 v{t1}, 4, v{t1}
        v_lshl_add_u32 v{t1}, v{t0}, 7, v{t1}
        v_and_b32 v{T}, 1, v{vG}
        v_lshl_add_u32 v{t1}, v{T}, 3, v{t1}
        s_lshl_b32 s30, s34, 13
        s_add_u32 s30, s30, {XST}
        v_add_u32 v{t1}, s30, v{t1}
        v_xor_b32 v{t0}, 32, v{t1}
        """)
        for mt in range(4):
            for nt in range(2):
                r = RES + mt * 4 + nt * 2
                a(f"ds_read_b64 v[{r}:{r+1}], v{t0 if nt else t1} offset:{mt*2048}")
    for i in range(16 * NT):
        a(f"v_mov_b32 v{ACC+i}, 0")
    abases = [(vA, vA0)] + ([(vA1, vA10)] if c.a_off is None else [])
    bbases = [(vB0, vB00), (vB1, vB01)] + ([(vB2, vB02)] if c.layout != "panel" else [])
    a(f"s_mov_b32 s27, {c.ABASE}")
    a(f"s_mov_b32 s32, {c.BBASE + c.bs0*c.BB}")
    setb = [f"v_add_u32 v{x}, s27, v{y}" for x, y in abases] + [f"v_add_u32 v{x}, s32, v{y}" for x, y in bbases]
    for x in setb: a(x)
    RT = OPT["sktail"] if (c.sk and not c.full) else 0
    W1T = kind == "w1" and OPT["w1t"]
    a(f"s_mov_b32 s26, {n - 2 if W1T else (n - 1 if (c.ln and OPT['peel']) else n - RT)}")
    def reads(F, kg, tiles=None):
        r = []
        tiles = list(range(NT)) if tiles is None else tiles
        for nt in tiles:
            for rd in range(2):
                b, o = bread(nt, kg, rd)
                d = F + 16 + nt * 4 + rd * 2
                r.append(f"ds_read_b64_tr_b16 v[{d}:{d+1}], v{b} offset:{o}")
            if nt == tiles[0]:
                for mt in range(4):
                    d = F + mt * 4
                    b, o = aread(mt, kg)
                    r.append(f"ds_read_b128 v[{d}:{d+3}], v{b} offset:{o}")
        return r
    def mfmas(F, tiles=None):
        m = []
        for nt in (range(NT) if tiles is None else tiles):
            for mt in (range(4) if (nt % 2 == 0 or not OPT["snake"]) else range(3, -1, -1)):
                A = F + mt * 4; B = F + 16 + nt * 4; D = acc(mt, nt)
                if nt in c.normal_tiles:
                    m.append(f"v_mfma_f32_16x16x32_bf16 v[{D}:{D+3}], v[{A}:{A+3}], v[{B}:{B+3}], v[{D}:{D+3}]")
                else:
                    m.append(f"v_mfma_f32_16x16x32_bf16 v[{D}:{D+3}], v[{B}:{B+3}], v[{A}:{A+3}], v[{D}:{D+3}]")
        return m
    loop = a.label("c_loop")
    if kind == "qkv": row_stats_finish(a, FY, FX)
    stamp(a, c.sid)
    a("s_barrier")
    hold(a, "h_" + kind)
    stamp(a, c.sid + 1)
    adv = [f"s_add_u32 s27, s27, 16384", f"s_add_u32 s32, s32, {c.BB}", f"s_cmp_eq_u32 s27, {c.ABASE + S*16384}",
           f"s_cselect_b32 s27, {c.ABASE}, s27"] + ([f"s_cmp_eq_u32 s32, {c.BBASE + c.SB*c.BB}"] if c.SB != S else []) + [f"s_cselect_b32 s32, {c.BBASE}, s32"] + setb
    def pk4(t, p0, p1):
        a(f"v_cvt_pk_bf16_f32 v{t}, v{p0}, v{p0+1}")
        a(f"v_cvt_pk_bf16_f32 v{t+1}, v{p0+2}, v{p0+3}")
        a(f"v_cvt_pk_bf16_f32 v{t+2}, v{p1}, v{p1+1}")
        a(f"v_cvt_pk_bf16_f32 v{t+3}, v{p1+2}, v{p1+3}")
    vX = VTOP + 4
    def sk_send():
        srd_off(a, 20, P_WS, XP_OFF, 8 * MB)
        a(f"""
        s_lshl_b32 s30, s24, 19
        s_lshl_b32 s31, s3, 13
        s_add_u32 s30, s30, s31
        s_lshl_b32 s31, s25, 15
        s_add_u32 s33, s30, s31
        s_xor_b32 s31, s31, {4 << 15}
        s_add_u32 s37, s30, s31
        v_lshlrev_b32 v{vX}, 4, v1
        """)
        for mt in range(4):
            t = acc(mt, 2)
            pk4(t, acc(mt, 2), acc(mt, 3))
            a(f"buffer_store_dwordx4 v[{t}:{t+3}], v{vX}, s[20:23], s33 offen offset:{mt*1024} sc0 sc1")
    def epi_setup():
        b = Asm(); r = []
        if kind == "qkv":
            REC, CSQ, MV, RV, CSV = T, T + 16, VTOP, VTOP + 16, VTOP + 32
            b(f"""
            v_and_b32 v{t0}, 15, v1
            v_lshlrev_b32 v{vA}, 4, v{t0}
            s_lshl_b32 s30, s34, 10
            s_add_u32 s30, s30, {ST_REC}
            v_add_u32 v{vA}, s30, v{vA}
            v_lshlrev_b32 v{vA1}, 4, v{vG}
            s_lshl_b32 s30, s35, 7
            s_add_u32 s30, s30, {ST_CS}
            v_add_u32 v{vB0}, s30, v{vA1}
            v_lshlrev_b32 v{vB1}, 2, v{t0}
            v_add_u32 v{vB1}, s30, v{vB1}
            s_lshl_b32 s30, s34, 8
            s_add_u32 s30, s30, {ST_MEAN}
            v_add_u32 v{vA1}, s30, v{vA1}
            """)
            srd_off(b, 16, P_WS, K_OFF, 8 * MB)
            b(f"""
            s_lshl_b32 s30, s25, 1
            s_add_u32 s30, s30, s35
            s_lshl_b32 s30, s30, 17
            s_lshl_b32 s31, s24, 13
            s_add_u32 s30, s30, s31
            s_add_u32 s31, s30, {4*MB}
            s_mul_i32 s33, s35, {HEADW}
            v_add_u32 v{vB2}, s33, v{vCH}
            """)
            for mt in range(4):
                r.append(f"ds_read_b128 v[{REC+4*mt}:{REC+4*mt+3}], v{vA} offset:{mt*256}")
            for nt in range(4):
                r.append(f"ds_read_b128 v[{CSQ+4*nt}:{CSQ+4*nt+3}], v{vB0} offset:{(nt//2)*256 + (nt%2)*64}")
            for mt in range(4):
                r.append(f"ds_read_b128 v[{MV+4*mt}:{MV+4*mt+3}], v{vA1} offset:{mt*64}")
                r.append(f"ds_read_b128 v[{RV+4*mt}:{RV+4*mt+3}], v{vA1} offset:{512 + mt*64}")
            for dt in range(2):
                r.append(f"ds_read_b32 v{CSV+2*dt}, v{vB1} offset:{512 + dt*64}")
        else:
            CSR = T; REC = T + 28
            srd_off(b, 16, P_WS, H1_OFF, 14 * MB)
            b(f"""
            v_and_b32 v{t0}, 15, v1
            v_lshlrev_b32 v{vA}, 4, v{t0}
            s_lshl_b32 s30, s34, 10
            s_add_u32 s30, s30, {ST_REC}
            v_add_u32 v{vA}, s30, v{vA}
            v_lshlrev_b32 v{t1}, 4, v{vG}
            s_lshl_b32 s30, s35, 9
            s_add_u32 s30, s30, {ST_CS}
            v_add_u32 v{vB0}, s30, v{t1}
            s_lshl_b32 s30, s35, 6
            s_add_u32 s30, s30, {ST_CS}
            v_add_u32 v{vB1}, s30, v{t1}
            s_mul_i32 s30, s24, {112*8192}
            s_mul_i32 s31, s25, {7*8192}
            s_add_u32 s30, s30, s31
            s_add_u32 s36, s30, {3*8192}
            s_lshl_b32 s31, s35, 15
            s_add_u32 s30, s30, s31
            s_add_u32 s31, s30, 8192
            s_add_u32 s37, s30, 16384
            s_lshl_b32 s33, s35, 3
            s_add_u32 s33, s33, {XCH}
            v_add_u32 v{vB2}, s33, v{vCH}
            """)
            for mt in range(4):
                r.append(f"ds_read_b128 v[{REC+4*mt}:{REC+4*mt+3}], v{vA} offset:{mt*256}")
            r.append(f"ds_read_b128 v[{CSR+24}:{CSR+27}], v{vB1} offset:{6*64}")
            for nt in range(6):
                r.append(f"ds_read_b128 v[{CSR+4*nt}:{CSR+4*nt+3}], v{vB0} offset:{nt*64}")
        return [x.strip() for x in b.lines], r
    peel = c.ln and OPT["peel"] and not W1T
    def silu_l(mt, nt, e, m, cs):
        p = acc(mt, nt); o = []
        for h in range(2):
            o.append(f"v_pk_fma_f32 v[{p+2*h}:{p+2*h+1}], v[{m}:{m+1}], v[{cs+2*h}:{cs+2*h+1}], v[{p+2*h}:{p+2*h+1}] op_sel_hi:[0,1,1] neg_lo:[1,0,0] neg_hi:[1,0,0]")
        for h in range(2):
            o.append(f"v_pk_mul_f32 v[{e+2*h}:{e+2*h+1}], v[{m}:{m+1}], v[{p+2*h}:{p+2*h+1}] op_sel:[1,0] op_sel_hi:[1,1]")
        for r in range(4): o.append(f"v_exp_f32 v{e+r}, v{e+r}")
        for h in range(2):
            o.append(f"v_pk_fma_f32 v[{e+2*h}:{e+2*h+1}], v[{e+2*h}:{e+2*h+1}], v[{m+2}:{m+3}], v[{m+2}:{m+3}]")
        for r in range(4): o.append(f"v_rcp_f32 v{e+r}, v{e+r}")
        for h in range(2):
            o.append(f"v_pk_mul_f32 v[{p+2*h}:{p+2*h+1}], v[{p+2*h}:{p+2*h+1}], v[{e+2*h}:{e+2*h+1}]")
        return o
    NI = n // 2 if c.full else n - RT
    def w2hook_c():
        if kind == "wo" and OPT["reslate"]:
            back = a.label("woback"); late = a.label("wolate")
            a(f"s_cmp_eq_u32 s26, {OPT['reslate']}")
            a(f"s_cbranch_scc1 {late}")
            a(f"{back}:")
            def ool():
                a(f"{late}:")
                res_loads()
                a(f"s_branch {back}")
            c.ool = ool
        if kind == "w2":
            back = a.label("w2back"); early = a.label("w2early")
            a(f"s_cmp_ge_u32 s26, {NI - OPT['sigB']}")
            a(f"s_cbranch_scc1 {early}")
            a(f"{back}:")
            def ool():
                a(f"{early}:")
                nst = OPT["dper"]
                its = 8 // nst if OPT["defer"] else 0
                for it in range(its):
                    nx = a.label("skip_e")
                    a(f"s_cmp_lg_u32 s26, {NI - it - OPT['dstart']}")
                    a(f"s_cbranch_scc1 {nx}")
                    for k in range(it * nst, it * nst + nst):
                        r = DEF + k * 4
                        a(f"buffer_store_dwordx4 v[{r}:{r+3}], v{vCH}, s[16:19], {'s44' if k < 4 else 's45'} offen offset:{(k%4)*1024} sc0 sc1")
                    a(f"s_branch {back}")
                    a(f"{nx}:")
                a(f"s_cmp_lg_u32 s26, {NI - OPT['sigB']}")
                a(f"s_cbranch_scc1 {back}")
                signal(a, 3, 2, VTOP, rbj=("s42", "s43"))
                a(f"s_branch {back}")
            c.ool = ool

    if c.full:
        H = FSZ // 2
        rd2 = lambda F: reads(F, 0) + reads(F + H, 1)
        mf2 = lambda F: mfmas(F) + mfmas(F + H)
        a(f"s_mov_b32 s26, {n//2}")
        for r in rd2(FX): a(r)
        for x in adv: a(x)
        if kind == "wo" and OPT["owno"] == 2:
            a("s_waitcnt lgkmcnt(0)")
            for x in mf2(FX): a(x)
            a("s_barrier")
            for r in rd2(FY) + adv: a(r)
            a("s_waitcnt lgkmcnt(0)")
            a("s_barrier")
            for x in interleave(mf2(FY), rd2(FX) + adv, 0, 1, c.rpg): a(x)
            a("s_sub_u32 s26, s26, 1")
        if OPT["align"]: a(f".p2align {OPT['align']}")
        a(f"{loop}:")
        w2hook_c()
        a("s_waitcnt lgkmcnt(0)")
        a("s_barrier")
        for x in interleave(mf2(FX), rd2(FY) + adv, 0, 1, c.rpg): a(x)
        a("s_waitcnt lgkmcnt(0)")
        a("s_barrier")
        for x in interleave(mf2(FY), rd2(FX) + adv + ["s_sub_u32 s26, s26, 1", "s_cmp_lg_u32 s26, 0"], 0, 1, c.rpg): a(x)
        a(f"s_cbranch_scc1 {loop}")
        a("s_waitcnt lgkmcnt(0)")
    else:
        for r in reads(FX, 0): a(r)
        if kind == "w1" and OPT["own1"]:
            a("s_waitcnt lgkmcnt(0)")
            for x in interleave(mfmas(FX), reads(FY, 1) + adv, 0, 1, c.rpg): a(x)
            a("s_waitcnt lgkmcnt(0)")
            m_ = mfmas(FY); kb_ = len(m_) - OPT["own1"]
            for x in m_[:kb_]: a(x)
            a("s_barrier")
            for x in interleave(m_[kb_:], reads(FX, 0), 0, 1, 2): a(x)
            a("s_sub_u32 s26, s26, 1")
        if OPT["align"]: a(f".p2align {OPT['align']}")
        a(f"{loop}:")
        w2hook_c()
        a("s_waitcnt lgkmcnt(0)")
        for x in interleave(mfmas(FX), reads(FY, 1) + adv, 0, 1, c.rpg): a(x)
        a("s_waitcnt lgkmcnt(0)")
        a("s_barrier")
        for x in interleave(mfmas(FY), reads(FX, 0) + ["s_sub_u32 s26, s26, 1", "s_cmp_lg_u32 s26, 0"], 0, 1, c.rpg): a(x)
        a(f"s_cbranch_scc1 {loop}")
        a("s_waitcnt lgkmcnt(0)")
        if W1T:
            RECT = 216
            def setst1(st):
                return [f"v_add_u32 v{x}, {c.ABASE + (st % S)*16384}, v{y}" for x, y in abases] + [f"v_add_u32 v{x}, {c.BBASE + (st % S)*c.BB}, v{y}" for x, y in bbases]
            G1 = [0, 1]; G2 = [2, 3, 4, 5, 6]
            b_ = Asm()
            srd_off(b_, 16, P_WS, H1_OFF, 14 * MB)
            b_(f"""
            v_and_b32 v{t0}, 15, v1
            v_lshlrev_b32 v{vA1}, 4, v{t0}
            s_lshl_b32 s30, s34, 10
            s_add_u32 s30, s30, {ST_REC}
            v_add_u32 v{vA1}, s30, v{vA1}
            v_lshlrev_b32 v{t1}, 4, v{vG}
            s_lshl_b32 s30, s35, 9
            s_add_u32 s30, s30, {ST_CS}
            v_add_u32 v{vA10}, s30, v{t1}
            s_lshl_b32 s30, s35, 6
            s_add_u32 s30, s30, {ST_CS}
            v_add_u32 v{t1}, s30, v{t1}
            s_mul_i32 s30, s24, {112*8192}
            s_mul_i32 s31, s25, {7*8192}
            s_add_u32 s30, s30, s31
            s_add_u32 s36, s30, {3*8192}
            s_lshl_b32 s31, s35, 15
            s_add_u32 s30, s30, s31
            s_add_u32 s31, s30, 8192
            s_add_u32 s37, s30, 16384
            """)
            alu = [x.strip() for x in b_.lines]
            for x in interleave(mfmas(FX), reads(FY, 1, G1) + alu, 0, 1, 1): a(x)
            a("s_waitcnt lgkmcnt(0)")
            for x in setst1(15): a(x)
            a("s_barrier")
            for x in interleave(mfmas(FY, G1), reads(FX, 0, G1), 0, 1, 1): a(x)
            a("s_waitcnt lgkmcnt(0)")
            for x in interleave(mfmas(FX, G1), reads(FY, 1, G1), 0, 1, 1): a(x)
            a("s_waitcnt lgkmcnt(0)")
            a("s_barrier")
            rX = [r for r in reads(FX, 0, G2) if "tr_b16" in r]
            st_ = [f"ds_read_b128 v[{RECT+4*mt}:{RECT+4*mt+3}], v{vA1} offset:{mt*256}" for mt in range(4)]
            st_ += [f"ds_read_b128 v[{FX+16+4*nt}:{FX+19+4*nt}], v{vA10} offset:{nt*64}" for nt in range(2)]
            for x in interleave(mfmas(FY, G1), rX + st_, 0, 1, 2): a(x)
            a("s_waitcnt lgkmcnt(0)")
            stamp(a, 50)
            ep = []
            for mt in range(4):
                ep += silu_l(mt, 0, FY + 16, RECT + 4 * mt, FX + 16) + silu_l(mt, 1, FY + 20, RECT + 4 * mt, FX + 20)
                p0 = acc(mt, 0); p1 = acc(mt, 1)
                ep += [f"v_cvt_pk_bf16_f32 v{p0}, v{p0}, v{p0+1}", f"v_cvt_pk_bf16_f32 v{p0+1}, v{p0+2}, v{p0+3}",
                       f"v_cvt_pk_bf16_f32 v{p0+2}, v{p1}, v{p1+1}", f"v_cvt_pk_bf16_f32 v{p0+3}, v{p1+2}, v{p1+3}",
                       f"buffer_store_dwordx4 v[{p0}:{p0+3}], v{vCH}, s[16:19], s30 offen offset:{mt*1024} sc0 sc1"]
            k3 = len(ep) // 3
            rY = [r for r in reads(FY, 1, G2) if "tr_b16" in r]
            def mix(m, rd_, e_):
                out = []; ne = len(e_); nm = len(m); ei = 0
                for i, x in enumerate(m):
                    out.append(x)
                    if i < len(rd_): out.append(rd_[i])
                    tgt = (ne * (i + 1)) // nm
                    while ei < tgt: out.append(e_[ei]); ei += 1
                return out + rd_[nm:]
            for x in mix(mfmas(FX, G2), rY, ["s_nop 3"] + ep[:k3]): a(x)
            a("s_waitcnt lgkmcnt(0)")
            for x in setst1(14): a(x)
            for x in mix(mfmas(FY, G2), reads(FX, 1, G2), ep[k3:2*k3]): a(x)
            a("s_waitcnt lgkmcnt(0)")
            cs_ = [f"ds_read_b128 v[{FY+4*(nt-2)}:{FY+4*(nt-2)+3}], v{vA10} offset:{nt*64}" for nt in range(2, 6)]
            cs_.append(f"ds_read_b128 v[{FY+24}:{FY+27}], v{t1} offset:{6*64}")
            for x in mix(mfmas(FX, G2), ["s_nop 0"] * 2 + cs_, ep[2*k3:]): a(x)
        if RT:
            def setst(st):
                return [f"v_add_u32 v{x}, {c.ABASE + (st % S)*16384}, v{y}" for x, y in abases] + [f"v_add_u32 v{x}, {c.BBASE + (st % S)*c.BB}, v{y}" for x, y in bbases]
            items = [(st, kg, [2, 3]) for st in range(n - RT, n) for kg in range(2)] + [(st, kg, [0, 1]) for st in range(n - RT, n) for kg in range(2)]
            sets = [FX, FY]
            for i, (st, kg, tl) in enumerate(items):
                cur = sets[i % 2]; nxt = sets[(i + 1) % 2]
                fill_ = []
                if i + 1 < len(items):
                    st2_, kg2, tl2 = items[i + 1]
                    if st2_ != st:
                        for x in setst(st2_): a(x)
                        if i + 1 < 2 * RT: a("s_barrier")
                    fill_ = reads(nxt, kg2, tl2)
                for x in interleave(mfmas(cur, tl), fill_, 0, 1, 1): a(x)
                if i == 2 * RT - 1:
                    stamp(a, c.sid + 2)
                    a("s_barrier")
                    sk_send()
                if i == 2 * RT + OPT["sksig"]:
                    signal(a, 6, 2, VTOP)
                    stamp(a, 47)
                a("s_waitcnt lgkmcnt(0)")
        if peel:
            for x in interleave(mfmas(FX), reads(FY, 1), 0, 1, c.rpg): a(x)
            a("s_waitcnt lgkmcnt(0)")
            alu, rds = epi_setup()
            m = mfmas(FY)
            if kind == "qkv": m = m[8:16] + m[16:] + m[:8]
            kb = len(m) - OPT["peel"]
            for x in interleave(m[:kb], alu, 0, 1, 2): a(x)
            a("s_barrier")
            for x in interleave(m[kb:], rds, 0, 1, 2): a(x)
    if not RT: stamp(a, c.sid + 2)
    def pk4_unused(t, p0, p1):
        a(f"v_cvt_pk_bf16_f32 v{t}, v{p0}, v{p0+1}")
        a(f"v_cvt_pk_bf16_f32 v{t+1}, v{p0+2}, v{p0+3}")
        a(f"v_cvt_pk_bf16_f32 v{t+2}, v{p1}, v{p1+1}")
        a(f"v_cvt_pk_bf16_f32 v{t+3}, v{p1+2}, v{p1+3}")
    if kind == "qkv":
        REC, CSQ, MV, RV, CSV = T, T + 16, VTOP, VTOP + 16, VTOP + 32
        if not peel:
            for x in sum(epi_setup(), []): a(x)
        a("s_waitcnt lgkmcnt(10)")
        def fold_sw(mt, nt):
            p = acc(mt, nt); m = REC + 4 * mt; cs = CSQ + 4 * nt
            for h in range(2):
                a(f"v_pk_fma_f32 v[{p+2*h}:{p+2*h+1}], v[{m}:{m+1}], v[{cs+2*h}:{cs+2*h+1}], v[{p+2*h}:{p+2*h+1}] op_sel_hi:[0,1,1] neg_lo:[1,0,0] neg_hi:[1,0,0]")
            for h in range(2):
                a(f"v_pk_mul_f32 v[{p+2*h}:{p+2*h+1}], v[{m}:{m+1}], v[{p+2*h}:{p+2*h+1}] op_sel:[1,0] op_sel_hi:[1,1]")
        for mt in range(4):
            fold_sw(mt, 2); fold_sw(mt, 3)
            t = acc(mt, 2); pk4(t, acc(mt, 2), acc(mt, 3))
            st2(a, f"buffer_store_dwordx4 v[{t}:{t+3}], v{vCH}, s[16:19], s30 offen offset:{mt*1024}")
            a(f"ds_write_b128 v{vB2}, v[{t}:{t+3}] offset:{16384 + mt*1024}")
        a("s_waitcnt lgkmcnt(4)")
        for mp in range(2):
            for dt in range(2):
                for mt in (2 * mp, 2 * mp + 1):
                    p = acc(mt, 4 + dt)
                    sel = "op_sel_hi:[1,0,1]"
                    for h in range(2):
                        a(f"v_pk_fma_f32 v[{p+2*h}:{p+2*h+1}], v[{MV+4*mt+2*h}:{MV+4*mt+2*h+1}], v[{CSV+2*dt}:{CSV+2*dt+1}], v[{p+2*h}:{p+2*h+1}] {sel} neg_lo:[1,0,0] neg_hi:[1,0,0]")
                    for h in range(2):
                        a(f"v_pk_mul_f32 v[{p+2*h}:{p+2*h+1}], v[{RV+4*mt+2*h}:{RV+4*mt+2*h+1}], v[{p+2*h}:{p+2*h+1}]")
                t = acc(2 * mp, 4 + dt); pk4(t, acc(2 * mp, 4 + dt), acc(2 * mp + 1, 4 + dt))
                st2(a, f"buffer_store_dwordx4 v[{t}:{t+3}], v{vCH}, s[16:19], s31 offen offset:{(2*mp+dt)*1024}")
                a(f"ds_write_b128 v{vB2}, v[{t}:{t+3}] offset:{24576 + 16384 + (2*mp+dt)*1024}")
        for mt in range(4):
            fold_sw(mt, 0); fold_sw(mt, 1)
            t = acc(mt, 0); pk4(t, acc(mt, 0), acc(mt, 1))
            a(f"ds_write_b128 v{vB2}, v[{t}:{t+3}] offset:{49152 + mt*1024}")
        stamp(a, c.sid + 3)
        signal(a, 0, 2, T, True)
        stamp(a, c.sid + 4)
        a("s_waitcnt lgkmcnt(0)")
    elif kind == "wo":
        srd_off(a, 16, P_WS, H_OFF, 4 * MB)
        a(f"""
        s_lshl_b32 s30, s24, 18
        s_lshl_b32 s31, s25, 14
        s_add_u32 s30, s30, s31
        s_lshl_b32 s31, s35, 13
        s_add_u32 s30, s30, s31
        s_mov_b32 s36, 0xffff0000
        s_waitcnt vmcnt(0) lgkmcnt(0)
        """)
        for mt in range(4):
            for nt in range(2):
                r = RES + mt * 4 + nt * 2; p = acc(mt, nt)
                for d in range(2):
                    a(f"v_lshlrev_b32 v{T}, 16, v{r+d}")
                    a(f"v_and_b32 v{T+1}, s36, v{r+d}")
                    a(f"v_pk_add_f32 v[{p+2*d}:{p+2*d+1}], v[{p+2*d}:{p+2*d+1}], v[{T}:{T+1}]")
            t = HRES + mt * 4
            pk4(t, acc(mt, 0), acc(mt, 1))
            a(f"buffer_store_dwordx4 v[{t}:{t+3}], v{vCH}, s[16:19], s30 offen offset:{mt*1024} sc0 sc1")
            if OPT["own1"]:
                if mt == 0: a(f"s_lshl_b32 s33, s35, 13\nv_add_u32 v{vA}, s33, v{vCH}")
                a(f"ds_write_b128 v{vA}, v[{t}:{t+3}] offset:{mt*1024}")
        SS = T + 4
        for mt in range(4):
            p0 = acc(mt, 0); p1 = acc(mt, 1)
            s_, q_ = SS + 2 * mt, SS + 2 * mt + 1
            a(f"v_pk_add_f32 v[{T}:{T+1}], v[{p0}:{p0+1}], v[{p0+2}:{p0+3}]")
            a(f"v_pk_mul_f32 v[{T+2}:{T+3}], v[{p0}:{p0+1}], v[{p0}:{p0+1}]")
            a(f"v_pk_add_f32 v[{T}:{T+1}], v[{T}:{T+1}], v[{p1}:{p1+1}]")
            a(f"v_pk_fma_f32 v[{T+2}:{T+3}], v[{p0+2}:{p0+3}], v[{p0+2}:{p0+3}], v[{T+2}:{T+3}]")
            a(f"v_pk_add_f32 v[{T}:{T+1}], v[{T}:{T+1}], v[{p1+2}:{p1+3}]")
            a(f"v_pk_fma_f32 v[{T+2}:{T+3}], v[{p1}:{p1+1}], v[{p1}:{p1+1}], v[{T+2}:{T+3}]")
            a(f"v_pk_fma_f32 v[{T+2}:{T+3}], v[{p1+2}:{p1+3}], v[{p1+2}:{p1+3}], v[{T+2}:{T+3}]")
            a(f"v_add_f32 v{s_}, v{T}, v{T+1}")
            a(f"v_add_f32 v{q_}, v{T+2}, v{T+3}")
        for mt in range(4):
            s_, q_ = SS + 2 * mt, SS + 2 * mt + 1
            a(f"v_permlane32_swap_b32 v{s_}, v{q_}")
            a(f"v_add_f32 v{s_}, v{s_}, v{q_}")
        srd_off(a, 20, P_WS, ST2_OFF, 16 * 32768)
        a(f"""
        v_and_b32 v{t0}, 31, v1
        v_lshlrev_b32 v{t0}, 2, v{t0}
        v_lshrrev_b32 v{t1}, 5, v1
        v_lshl_add_u32 v{t0}, v{t1}, 9, v{t0}
        s_lshl_b32 s30, s24, 15
        s_lshl_b32 s31, s25, 11
        s_add_u32 s30, s30, s31
        s_lshl_b32 s31, s35, 10
        s_add_u32 s30, s30, s31
        s_lshl_b32 s31, s34, 8
        s_add_u32 s30, s30, s31
        """)
        for mp in range(2):
            x0 = SS + 4 * mp; x1 = SS + 4 * mp + 2
            a(f"v_permlane16_swap_b32 v{x0}, v{x1}")
            a(f"v_add_f32 v{x0}, v{x0}, v{x1}")
            a(f"buffer_store_dword v{x0}, v{t0}, s[20:23], s30 offen offset:{mp*128} sc0 sc1")
        stamp(a, c.sid + 3)
        if OPT["wobar"] in (1, 2): a("s_barrier")
        signal(a, 2, 2, T)
        if OPT["wobar"] == 3: a("s_barrier")
        a("s_waitcnt lgkmcnt(0)")
        stamp(a, c.sid + 4)
    elif kind == "w1" and W1T:
        RECT = 216; E = FY + 16
        csr = lambda nt: (FY + 24) if nt == 6 else FY + 4 * (nt - 2)
        soffs = ["s30", "s31", "s37"]
        signal(a, 0, 2, FX, False, 0, True)
        stamp(a, 45)
        a("s_waitcnt lgkmcnt(0)")
        a("s_barrier")
        stamp(a, 46)
        a(f"""
        s_lshl_b32 s33, s35, 13
        v_add_u32 v{vA}, s33, v{vCH}
        s_lshl_b32 s33, s35, 3
        s_add_u32 s33, s33, {XCH}
        v_add_u32 v{vB2}, s33, v{vCH}
        """)
        for mt in range(4):
            p0 = acc(mt, 0)
            a(f"ds_write_b128 v{vA}, v[{p0}:{p0+3}] offset:{mt*1024}")
        def pair(q, mt):
            for x in silu_l(mt, 2 * q, E, RECT + 4 * mt, csr(2 * q)) + silu_l(mt, 2 * q + 1, E + 4, RECT + 4 * mt, csr(2 * q + 1)): a(x)
            p0 = acc(mt, 2 * q)
            pk4(p0, p0, acc(mt, 2 * q + 1))
            a(f"buffer_store_dwordx4 v[{p0}:{p0+3}], v{vCH}, s[16:19], {soffs[q]} offen offset:{mt*1024} sc0 sc1")
            a(f"ds_write_b128 v{vA}, v[{p0}:{p0+3}] offset:{q*16384 + mt*1024}")
        for mt in range(4): pair(1, mt)
        stamp(a, 42)
        for mt in range(4):
            for x in silu_l(mt, 6, E + (mt % 2) * 4, RECT + 4 * mt, csr(6)): a(x)
            p = acc(mt, 6)
            a(f"v_cvt_pk_bf16_f32 v{p}, v{p}, v{p+1}")
            a(f"v_cvt_pk_bf16_f32 v{p+1}, v{p+2}, v{p+3}")
            a(f"ds_write_b64 v{vB2}, v[{p}:{p+1}] offset:{mt*1024}")
        a("s_waitcnt lgkmcnt(0)")
        stamp(a, 40)
        a("s_barrier")
        stamp(a, 41)
        a(f"""
        s_lshl_b32 s33, s35, 11
        v_add_u32 v{vB2}, s33, v{vCH}
        v_add_u32 v{vB1}, {XCH}, v{vB2}
        ds_read_b128 v[{acc(0,6)}:{acc(0,6)+3}], v{vB1}
        ds_read_b128 v[{acc(1,6)}:{acc(1,6)+3}], v{vB1} offset:1024
        """)
        pair(2, 0)
        a("s_waitcnt lgkmcnt(0)")
        a(f"buffer_store_dwordx4 v[{acc(0,6)}:{acc(0,6)+3}], v{vB2}, s[16:19], s36 offen sc0 sc1")
        a(f"buffer_store_dwordx4 v[{acc(1,6)}:{acc(1,6)+3}], v{vB2}, s[16:19], s36 offen offset:1024 sc0 sc1")
        for mt in range(1, 4): pair(2, mt)
        stamp(a, 43)
        stamp(a, c.sid + 3)
        a("s_waitcnt lgkmcnt(0)")
        a("s_mov_b32 s42, s24\ns_mov_b32 s43, s25")
        stamp(a, c.sid + 4)
    elif kind == "w1":
        CSR = T; REC = T + 28; E = T + 44
        if not peel:
            for x in sum(epi_setup(), []): a(x)
        a("s_waitcnt lgkmcnt(0)")
        soffs = ["s30", "s31", "s37"]
        def silu(mt, nt, e):
            p = acc(mt, nt); m = REC + 4 * mt; cs = CSR + 4 * nt
            for h in range(2):
                a(f"v_pk_fma_f32 v[{p+2*h}:{p+2*h+1}], v[{m}:{m+1}], v[{cs+2*h}:{cs+2*h+1}], v[{p+2*h}:{p+2*h+1}] op_sel_hi:[0,1,1] neg_lo:[1,0,0] neg_hi:[1,0,0]")
            for h in range(2):
                a(f"v_pk_mul_f32 v[{e+2*h}:{e+2*h+1}], v[{m}:{m+1}], v[{p+2*h}:{p+2*h+1}] op_sel:[1,0] op_sel_hi:[1,1]")
            for r in range(4):
                a(f"v_exp_f32 v{e+r}, v{e+r}")
            for h in range(2):
                a(f"v_pk_fma_f32 v[{e+2*h}:{e+2*h+1}], v[{e+2*h}:{e+2*h+1}], v[{m+2}:{m+3}], v[{m+2}:{m+3}]")
            for r in range(4):
                a(f"v_rcp_f32 v{e+r}, v{e+r}")
            for h in range(2):
                a(f"v_pk_mul_f32 v[{p+2*h}:{p+2*h+1}], v[{p+2*h}:{p+2*h+1}], v[{e+2*h}:{e+2*h+1}]")
        def pair(q, mt):
            silu(mt, 2 * q, E); silu(mt, 2 * q + 1, E + 4)
            p0 = acc(mt, 2 * q)
            pk4(p0, p0, acc(mt, 2 * q + 1))
            a(f"buffer_store_dwordx4 v[{p0}:{p0+3}], v{vCH}, s[16:19], {soffs[q]} offen offset:{mt*1024} sc0 sc1")
            if OPT["own"]: a(f"ds_write_b128 v{vA}, v[{p0}:{p0+3}] offset:{q*16384 + mt*1024}")
        if OPT["own"]:
            a(f"s_lshl_b32 s33, s35, 13")
            a(f"v_add_u32 v{vA}, s33, v{vCH}")
        for mt in range(4): pair(0, mt)
        stamp(a, 42)
        for mt in range(4):
            silu(mt, 6, E + (mt % 2) * 4)
            p = acc(mt, 6)
            a(f"v_cvt_pk_bf16_f32 v{p}, v{p}, v{p+1}")
            a(f"v_cvt_pk_bf16_f32 v{p+1}, v{p+2}, v{p+3}")
            a(f"ds_write_b64 v{vB2}, v[{p}:{p+1}] offset:{mt*1024}")
        a("s_waitcnt lgkmcnt(0)")
        stamp(a, 40)
        a("s_barrier")
        stamp(a, 41)
        a(f"""
        s_lshl_b32 s33, s35, 11
        v_add_u32 v{vB2}, s33, v{vCH}
        v_add_u32 v{vB1}, {XCH}, v{vB2}
        ds_read_b128 v[{acc(0,6)}:{acc(0,6)+3}], v{vB1}
        ds_read_b128 v[{acc(1,6)}:{acc(1,6)+3}], v{vB1} offset:1024
        """)
        pair(1, 0)
        a("s_waitcnt lgkmcnt(0)")
        a(f"buffer_store_dwordx4 v[{acc(0,6)}:{acc(0,6)+3}], v{vB2}, s[16:19], s36 offen sc0 sc1")
        a(f"buffer_store_dwordx4 v[{acc(1,6)}:{acc(1,6)+3}], v{vB2}, s[16:19], s36 offen offset:1024 sc0 sc1")
        for mt in range(1, 4): pair(1, mt)
        stamp(a, 43)
        k2 = OPT["sigA2"]
        for mt in range(k2): pair(2, mt)
        signal(a, 0, 2, acc(2, 6), False, 3 + k2, True)
        stamp(a, 45)
        if OPT["bar2"] == 0: a("s_barrier")
        stamp(a, 46)
        for mt in range(k2, 4): pair(2, mt)
        stamp(a, c.sid + 3)
        if OPT["bar2"] == 1: a("s_barrier")
        if OPT["own"]: a("s_waitcnt lgkmcnt(0)")
        a("s_mov_b32 s42, s24\ns_mov_b32 s43, s25\ns_mov_b32 s44, s31\ns_mov_b32 s45, s37")
        stamp(a, c.sid + 4)
    elif kind == "w2":
        XR = T + 32
        if c.sk and not RT:
            sk_send()
            signal(a, 6, 2, T)
            stamp(a, 47)
        srd_off(a, 16, P_OUT, 0, 4 * MB)
        a(f"""
        v_and_b32 v{t0}, 15, v1
        v_lshlrev_b32 v{t0}, 11, v{t0}
        v_and_b32 v{t1}, 1, v{vG}
        v_lshl_add_u32 v{t0}, v{t1}, 5, v{t0}
        v_lshrrev_b32 v{t1}, 1, v{vG}
        v_lshl_add_u32 v{t0}, v{t1}, 4, v{t0}
        s_lshl_b32 s30, s24, 18
        s_lshl_b32 s31, s34, 17
        s_add_u32 s30, s30, s31
        s_lshl_b32 s31, s25, 7
        s_add_u32 s30, s30, s31
        s_lshl_b32 s31, s35, 6
        s_add_u32 s30, s30, s31
        s_mov_b32 s36, 0xffff0000
        """)
        for mt in range(4):
            for nt in range(2):
                r = HRES + mt * 4 + nt * 2; p = acc(mt, nt)
                for d in range(2):
                    a(f"v_lshlrev_b32 v{T+16}, 16, v{r+d}")
                    a(f"v_and_b32 v{T+17}, s36, v{r+d}")
                    a(f"v_pk_add_f32 v[{p+2*d}:{p+2*d+1}], v[{p+2*d}:{p+2*d+1}], v[{T+16}:{T+17}]")
        if c.sk and OPT["sent"]:
            lp = a.label("xpoll"); dn = a.label("skip_xp")
            a("s_mov_b32 s39, 0x200000")
            a(f"{lp}:")
            for mt in range(4):
                a(f"buffer_load_dwordx4 v[{XR+4*mt}:{XR+4*mt+3}], v{vX}, s[20:23], s37 offen offset:{mt*1024} sc0 sc1")
            for mt in range(4):
                r = XR + 4 * mt
                a(f"s_waitcnt vmcnt({3-mt})")
                if mt == 0: a(f"v_max_u32 v{T+4}, v{r}, v{r+1}")
                else: a(f"v_max3_u32 v{T+4}, v{r}, v{r+1}, v{T+4}")
                a(f"v_max3_u32 v{T+4}, v{r+2}, v{r+3}, v{T+4}")
            a(f"""
            v_cmp_eq_u32 vcc, -1, v{T+4}
            s_nop 3
            s_cmp_eq_u64 vcc, 0
            s_cbranch_scc1 {dn}
            s_sub_u32 s39, s39, 1
            s_cbranch_scc0 {lp}
            {dn}:
            """)
            stamp(a, 48)
        elif c.sk:
            lp = a.label("xpoll"); dn = a.label("skip_xp")
            a(f"""
            s_xor_b32 s40, s40, {4 << 5}
            s_mov_b32 s39, 0x200000
            {lp}:
            buffer_load_dwordx2 v[{T+4}:{T+5}], v{(VTOP if RT else T)+2}, s[{FLS}:{FLS+3}], s40 offen sc0 sc1
            s_waitcnt vmcnt(0)
            v_cmp_eq_u64 vcc, s[{TAG}:{TAG+1}], v[{T+4}:{T+5}]
            s_nop 3
            s_cmp_eq_u64 vcc, -1
            s_cbranch_scc1 {dn}
            s_sub_u32 s39, s39, 1
            s_cbranch_scc0 {lp}
            {dn}:
            """)
            stamp(a, 48)
            for mt in range(4):
                a(f"buffer_load_dwordx4 v[{XR+4*mt}:{XR+4*mt+3}], v{vX}, s[20:23], s37 offen offset:{mt*1024} sc0 sc1")
        for mt in range(4):
            if c.sk:
                if not OPT["sent"]: a(f"s_waitcnt vmcnt(3)")
                for nt in range(2):
                    r = XR + mt * 4 + nt * 2; p = acc(mt, nt)
                    for d in range(2):
                        a(f"v_lshlrev_b32 v{T+16}, 16, v{r+d}")
                        a(f"v_and_b32 v{T+17}, s36, v{r+d}")
                        a(f"v_pk_add_f32 v[{p+2*d}:{p+2*d+1}], v[{p+2*d}:{p+2*d+1}], v[{T+16}:{T+17}]")
            t = T + mt * 4
            pk4(t, acc(mt, 0), acc(mt, 1))
            a(f"v_permlane16_swap_b32 v{t}, v{t+2}")
            a(f"v_permlane16_swap_b32 v{t+1}, v{t+3}")
            a(f"buffer_store_dwordx4 v[{t}:{t+3}], v{t0}, s[16:19], s30 offen{['', ' sc0 sc1', ' nt', ' sc1'][OPT['osf']]}")
            a("s_add_u32 s30, s30, 32768")
        stamp(a, c.sid + 3)
        if DIAG:
            a("s_waitcnt vmcnt(0)")
            stamp(a, c.sid + 4)

PV_A = 4
PV_B = 8
PV_SA = 16
PV_SB = 18
PV_RD = 32
PV_ACC = 80

def prod_setup(a, c):
    n = c.n
    wgmap(a, c.RX, c.CX)
    if c.a_off is None:
        a("s_lshl_b32 s30, s24, 18")
        srd_off(a, 8, P_X, "s30", 262144)
        a(f"""
        v_lshrrev_b32 v2, 3, v1
        v_lshrrev_b32 v3, 4, v1
        v_and_b32 v15, 7, v1
        v_xor_b32 v3, v3, v15
        v_lshlrev_b32 v3, 4, v3
        v_lshl_add_u32 v2, v2, 11, v3
        v_xor_b32 v3, 64, v2
        s_lshl_b32 s30, s38, 16
        """)
        for i in range(4):
            a(f"s_add_u32 s31, s30, {i*8*2048 - i*1024}")
            a(f"v_add_u32 v{PV_A+i}, s31, v{3 if i & 1 else 2}")
        c.astep = 128
    else:
        a(f"s_mul_i32 s30, s24, {c.K*256}")
        a(f"s_add_u32 s30, s30, {c.a_off}")
        srd_off(a, 8, P_WS, "s30", c.K * 256)
        a(f"""
        {"s_lshr_b32 s30, s38, 1" if c.sk else f"s_and_b32 s30, s38, {1 if c.kind == 'w2' else 3}"}
        s_lshl_b32 s30, s30, 12
        v_lshlrev_b32 v{PV_A}, 4, v1
        v_add_u32 v{PV_A}, s30, v{PV_A}
        """)
        c.astep = 16384
        if c.kind == "w2":
            a(f"""
            {"s_and_b32 s30, s38, 1" if c.sk else "s_lshr_b32 s30, s38, 1"}
            s_mul_i32 s63, s30, {4*8192}
            s_mul_i32 s64, s30, {7*8192}
            """)
    c.bstep = 64 * c.ldb
    CT = 16 // c.CX
    a(f"""
    s_and_b32 s65, s25, {CT-1}
    s_mul_i32 s65, s65, {(16 // CT) if c.rot else 0}
    """)
    if c.rot == 2: a(f"s_mov_b32 s65, {OPT['rot0']}")
    if (c.kind == "w1" and OPT["own1"]) or (c.kind == "wo" and OPT["owno"]): a("s_mov_b32 s65, s25")
    if c.sk: a("s_and_b32 s65, s25, 4\ns_lshl_b32 s65, s65, 1")
    a(f"""
    s_lshl_b32 s34, s38, 12
    s_mul_i32 s35, s38, {c.NBW*1024}
    """)
    if c.sk:
        a("""
        s_and_b32 s34, s38, 1
        s_lshl_b32 s34, s34, 13
        s_lshr_b32 s30, s38, 1
        s_lshl_b32 s30, s30, 12
        s_add_u32 s34, s34, s30
        """)
    if c.kind == "w2" and not OPT["own"]: a(f"s_mul_i32 s66, s65, {7*8192}")
    if not c.early: b_setup(a, c, PV_B, 12)
    a(f"""
    s_mov_b32 s27, {c.ABASE}
    s_mov_b32 s32, {c.BBASE}
    s_mul_i32 s28, s65, {c.astep}
    s_mul_i32 s29, s65, {c.bstep}
    """)

def b_setup(a, c, dst, sr_, comp=True):
    if c.sk:
        a("s_andn2_b32 s30, s25, 4")
        a(f"s_mul_i32 s30, s30, {c.bcol}")
    else:
        a(f"s_mul_i32 s30, s25, {c.bcol}")
    a(f"s_sub_u32 s31, {c.K*c.ldb}, s30")
    srd_off(a, sr_, c.wp, "s30", "s31")
    if c.layout == "panel" and OPT["fastb"]:
        a(f"""
        v_lshrrev_b32 v2, 3, v1
        v_mul_u32_u24 v2, {c.ldb}, v2
        v_bfe_u32 v3, v1, 4, {2 if c.korder == "F" else 1}
        v_lshlrev_b32 v3, 1, v3
        v_and_b32 v15, 7, v1
        v_xor_b32 v3, v3, v15
        v_lshl_add_u32 v2, v3, 4, v2
        s_mul_i32 s36, s38, {c.NBW}
        """)
        if c.korder == "N": a("v_xor_b32 v3, 64, v2")
        for i in range(c.NBW):
            a(f"""
            s_add_u32 s30, s36, {i}
            s_and_b32 s31, s30, {3 if c.kind == "w2" else 7}
            s_mul_i32 s31, s31, {8*c.ldb}
            """)
            if c.pstride:
                a("s_lshr_b32 s30, s30, 3")
                if c.sk:
                    a("s_bfe_u32 s39, s25, 0x10002")
                    a("s_xor_b32 s30, s30, s39")
                a(f"s_mul_i32 s30, s30, {c.pstride}")
                a("s_add_u32 s31, s31, s30")
            if i & 3 and comp: a(f"s_sub_u32 s31, s31, {(i&3)*1024}")
            src = 3 if (c.korder == "N" and i & 1) else 2
            a(f"v_add_u32 v{dst+i}, s31, v{src}")
        return
    a(f"""
    s_mul_i32 s30, s38, {c.NBW*64}
    s_mov_b32 s36, {c.ldb}
    """)
    for i in range(c.NBW):
        a(f"s_add_u32 s31, s30, {i*64}")
        a(f"v_add_u32 v3, s31, v1")
        d = dst + i
        if c.layout == "panel":
            a("v_bfe_u32 v2, v3, 3, 6")
            if c.korder == "F":
                a(f"v_bfe_u32 v{d}, v2, 1, 2")
            else:
                a(f"v_bfe_u32 v{d}, v2, 1, 1")
                a("v_bfe_u32 v15, v2, 3, 1")
                a(f"v_lshl_or_b32 v{d}, v15, 1, v{d}")
            a(f"""
            v_lshlrev_b32 v{d}, 1, v{d}
            v_and_b32 v15, 7, v3
            v_xor_b32 v{d}, v{d}, v15
            v_and_b32 v2, {31 if c.kind == "w2" else 63}, v2
            v_mul_lo_u32 v2, v2, s36
            v_lshl_add_u32 v{d}, v{d}, 4, v2
            """)
            if c.pstride:
                a(f"""
                v_lshrrev_b32 v3, 9, v3
                {"s_bfe_u32 s31, s25, 0x10002" if c.sk else ""}
                {"v_xor_b32 v3, s31, v3" if c.sk else ""}
                v_mul_u32_u24 v3, {c.pstride}, v3
                v_add_u32 v{d}, v{d}, v3
                """)
        else:
            a(f"""
            v_mul_u32_u24 v2, 2341, v3
            v_lshrrev_b32 v2, 16, v2
            v_mul_u32_u24 v15, 28, v2
            v_sub_u32 v3, v3, v15
            v_bfe_u32 v15, v2, 2, 1
            v_lshlrev_b32 v15, 1, v15
            v_xor_b32 v3, v3, v15
            v_mul_lo_u32 v2, v2, s36
            v_lshl_add_u32 v{d}, v3, 4, v2
            """)
        if i & 3 and comp: a(f"v_subrev_u32 v{d}, {(i&3)*1024}, v{d}")

def issueA(a, c, slot=None, adv=True):
    if slot is None: a("s_add_u32 m0, s27, s34")
    else: a(f"s_add_u32 m0, s34, {c.ABASE + slot*16384}")
    for i in range(4):
        v = PV_A + (i if c.a_off is None else 0)
        a(f"buffer_load_dwordx4 v{v}, s[8:11], s28 offen offset:{i*1024}{'' if c.a_off is None else ' sc1'} lds")
    if adv:
        a(f"s_add_u32 s28, s28, {c.astep}")
        if c.rot: a(f"s_and_b32 s28, s28, {16*c.astep - 1}")
    if slot is None:
        a(f"""
        s_add_u32 s27, s27, 16384
        s_cmp_eq_u32 s27, {c.ABASE + c.S*16384}
        s_cselect_b32 s27, {c.ABASE}, s27
        """)

def issueB(a, c, slot=None, adv=True):
    for i in range(c.NBW):
        if i % 4 == 0:
            if slot is None:
                a(f"s_add_u32 m0, s32, {c.s35}")
                if i: a(f"s_add_u32 m0, m0, {i*1024}")
            else:
                a(f"s_add_u32 m0, {c.s35}, {c.BBASE + slot*c.BB + i*1024}")
        a(f"buffer_load_dwordx4 v{c.pvb+i}, s[{c.sb}:{c.sb+3}], s29 offen offset:{(i&3)*1024}{' nt' if (c.kind == 'qkv' and OPT['qnt'] >= 2) else ''} lds")
    if adv:
        a(f"s_add_u32 s29, s29, {c.bstep}")
        if c.rot:
            a(f"s_cmp_eq_u32 s29, {16*c.bstep}")
            a("s_cselect_b32 s29, 0, s29")
    if slot is None:
        a(f"""
        s_add_u32 s32, s32, {c.BB}
        s_cmp_eq_u32 s32, {c.BBASE + c.S*c.BB}
        s_cselect_b32 s32, {c.BBASE}, s32
        """)

PV_POLL = 28
def poll_once(a, wide):
    t = PV_POLL
    if wide: a(f"buffer_load_dwordx4 v[{t}:{t+3}], v26, s[{FLS}:{FLS+3}], s33 offen sc0 sc1")
    else: a(f"buffer_load_dwordx2 v[{t}:{t+1}], v26, s[{FLS}:{FLS+3}], s33 offen sc0 sc1")
    a("s_waitcnt vmcnt(0)")
    a(f"v_cmp_eq_u64 s[56:57], s[{TAG}:{TAG+1}], v[{t}:{t+1}]")
    if wide:
        a(f"v_cmp_eq_u64 s[58:59], s[{TAG}:{TAG+1}], v[{t+2}:{t+3}]")
        a("s_nop 3")
        a("s_and_b64 s[56:57], s[56:57], s[58:59]")
    else:
        a("s_nop 3")

def gate(a, t, wide):
    lp = a.label("gate"); ok = a.label("skip_gate")
    a(f"{lp}:")
    if t == "all":
        a("s_cmp_eq_u32 s56, -1" if OPT["sk"] else "s_cmp_eq_u64 s[56:57], -1")
    else:
        a(f"s_bfe_u32 s30, s{56 + t // 8}, {hex((4 << 16) | (4 * (t % 8)))}")
        a("s_cmp_eq_u32 s30, 15")
    a(f"s_cbranch_scc1 {ok}")
    poll_once(a, wide)
    a("""
    s_sub_u32 s39, s39, 1
    s_cselect_b64 s[58:59], -1, 0
    s_cselect_b32 s39, 0, s39
    s_or_b64 s[56:57], s[56:57], s[58:59]
    """)
    a(f"s_branch {lp}")
    a(f"{ok}:")

def gate_setup(a, seam_id, wide):
    a(f"""
    s_lshl_b32 s30, s65, 2
    v_add_u32 v26, s30, v1
    v_and_b32 v26, 63, v26
    v_lshlrev_b32 v26, {4 if wide else 3}, v26
    s_lshl_b32 s33, s24, 10
    s_add_u32 s33, s33, {seam_id*16384}
    s_mov_b64 s[56:57], 0
    s_mov_b32 s39, 0x200000
    """)

def colsum_tile(a, c, lds_base, wsg, which, R, part=None):
    AD = R; ACCU = R + 4; D = R + 8; t = R + 40
    if part in (None, 0):
        a(f"""
        v_lshrrev_b32 v{t}, 4, v1
        v_bfe_u32 v{t+1}, v1, 2, 2
        v_mul_u32_u24 v{t+2}, {c.gmul}, v{t}
        v_add_u32 v{t+2}, v{t+2}, v{t+1}
        v_mul_u32_u24 v{t+2}, {c.RS}, v{t+2}
        v_and_b32 v{t+3}, 3, v1
        v_lshl_add_u32 v{t+2}, v{t+3}, 3, v{t+2}
        v_and_b32 v{t}, 1, v{t}
        s_lshl_b32 s71, {wsg}, {13 if c.layout == "panel" else 7}
        s_add_u32 s71, s71, {lds_base}
        v_add_u32 v{t+2}, s71, v{t+2}
        """)
        if c.layout == "panel":
            a(f"v_lshrrev_b32 v{t+1}, 1, v{t+1}")
            a(f"v_lshl_or_b32 v{t}, v{t}, 1, v{t+1}")
        for ts in range(4):
            a(f"v_xor_b32 v{t+3}, {ts}, v{t}")
            a(f"v_lshl_add_u32 v{AD+ts}, v{t+3}, 5, v{t+2}")
        for q in range(4):
            for ts in range(4):
                d = D + (q * 4 + ts) * 2
                a(f"ds_read_b64_tr_b16 v[{d}:{d+1}], v{AD+ts} offset:{((q>>1)*32 + (q&1)*c.rdrows) * c.RS}")
        for ts in range(4): a(f"v_mov_b32 v{ACCU+ts}, 0")
        srd_off(a, 16, P_WS, CSG_OFF + which * 524288, 524288)
        a(f"""
        s_mov_b32 s75, 0x3f803f80
        v_lshlrev_b32 v{t}, 3, v1
        """)
        if c.kind == "qkv" and OPT["dil"]:
            a(f"""
            s_lshl_b32 s71, s24, 15
            s_mul_i32 s31, s25, 1536
            s_add_u32 s71, s71, s31
            s_lshl_b32 s31, {wsg}, 9
            s_add_u32 s71, s71, s31
            s_cmp_eq_u32 {wsg}, 3
            s_cselect_b32 s71, 0x40000000, s71
            """)
        else:
            a(f"""
            s_lshl_b32 s71, s25, 15
            s_lshl_b32 s31, s24, 11
            s_add_u32 s71, s71, s31
            s_lshl_b32 s31, {wsg}, 9
            s_add_u32 s71, s71, s31
            """)
    for q in range(4):
        if part not in (None, 1 + q // 2): continue
        if part is None or q == 0: a(f"s_waitcnt lgkmcnt({12-4*q if part is None else 0})")
        for d in range(2):
            for ts in range(4):
                a(f"v_dot2c_f32_bf16 v{ACCU+ts}, s75, v{D+(q*4+ts)*2+d}")
    if part in (None, 3):
        t0, t1, t2, t3 = ACCU, ACCU + 1, ACCU + 2, ACCU + 3
        a(f"""
        v_permlane32_swap_b32 v{t0}, v{t2}
        v_permlane32_swap_b32 v{t1}, v{t3}
        v_add_f32 v{t0}, v{t0}, v{t2}
        v_add_f32 v{t1}, v{t1}, v{t3}
        v_permlane16_swap_b32 v{t0}, v{t1}
        v_add_f32 v{t0}, v{t0}, v{t1}
        v_mov_b32 v{t1}, s{TAG}
        """)
        if c.kind == "qkv":
            sk = a.label("skip_xi")
            a(f"""
            s_cmp_lg_u32 {wsg}, 3
            s_cbranch_scc1 {sk}
            v_cmp_eq_u32 vcc, s74, v1
            v_cndmask_b32 v{t0}, 0, 1.0, vcc
            {sk}:
            """)
        a(f"buffer_store_dwordx2 v[{t0}:{t1}], v{t}, s[16:19], s71 offen sc0 sc1")

G_CS = 32
G_RS = 64
def gather_cs_setup(a, c):
    which = 0 if c.kind == "qkv" else 1
    srd_off(a, 16, P_WS, CSG_OFF + which * 524288, 524288)
    if c.kind == "qkv" and OPT["dil"]:
        a(f"""
        s_min_u32 s31, s38, 2
        s_lshl_b32 s60, s31, 13
        s_lshl_b32 s31, s25, 9
        s_add_u32 s60, s60, s31
        s_mov_b32 s67, 32768
        """)
    else:
        a(f"""
        s_lshl_b32 s60, s25, 15
        s_lshl_b32 s31, s38, 9
        s_add_u32 s60, s60, s31
        s_mov_b32 s67, 2048
        """)
    a("v_lshlrev_b32 v24, 3, v1")
    return 0
def gather_cs(a, r0, r1):
    for r in range(r0, r1):
        a(f"buffer_load_dwordx2 v[{G_CS+2*r}:{G_CS+2*r+1}], v24, s[16:19], s60 offen sc0 sc1")
        a("s_add_u32 s60, s60, s67")
    return r1 - r0
def gather_rs_setup(a, c):
    if c.kind == "qkv":
        srd_off(a, 20, P_WS, RS1_OFF, 32768)
        a(f"""
        v_and_b32 v25, 31, v1
        v_lshlrev_b32 v25, 4, v25
        s_lshl_b32 s61, s24, 11
        s_lshl_b32 s31, s38, 9
        s_add_u32 s61, s61, s31
        """)
    else:
        srd_off(a, 20, P_WS, ST2_OFF, 16 * 32768)
        a(f"""
        v_and_b32 v25, 31, v1
        v_lshlrev_b32 v25, 2, v25
        v_lshrrev_b32 v15, 5, v1
        v_lshl_add_u32 v25, v15, 9, v25
        s_lshl_b32 s61, s24, 15
        s_lshl_b32 s31, s38, 7
        s_add_u32 s61, s61, s31
        """)
    return 0
def gather_rs(a, c, p0=0, p1=32):
    if c.kind == "qkv":
        a(f"buffer_load_dwordx4 v[{G_RS}:{G_RS+3}], v25, s[20:23], s61 offen sc0 sc1")
        return 1
    a(f"s_add_u32 s30, s65, {p0 // 2}")
    a("s_and_b32 s30, s30, 15")
    a("s_lshl_b32 s30, s30, 11")
    a("s_add_u32 s30, s30, s61")
    for p in range(p0, p1):
        a(f"buffer_load_dword v{G_RS+p}, v25, s[20:23], s30 offen offset:{(p&1)*1024} sc0 sc1")
    return p1 - p0

def gather_finish_cs(a, c):
    lp = a.label("gchk"); ok = a.label("skip_gok")
    a("s_mov_b32 s62, 0x40000")
    a(f"{lp}:")
    a(f"v_xor_b32 v15, s{TAG}, v{G_CS+1}")
    for r in range(1, 16):
        a(f"v_xor_b32 v27, s{TAG}, v{G_CS+2*r+1}")
        a("v_or_b32 v15, v15, v27")
    if c.kind == "qkv":
        a(f"v_xor_b32 v27, s{TAG}, v{G_RS+2}")
        a("v_or_b32 v15, v15, v27")
        a(f"v_xor_b32 v27, s{TAG+1}, v{G_RS+3}")
        a("v_or_b32 v15, v15, v27")
    a(f"""
    v_cmp_ne_u32 vcc, 0, v15
    s_nop 3
    s_cmp_eq_u64 vcc, 0
    s_cbranch_scc1 {ok}
    s_sub_u32 s62, s62, 1
    s_cbranch_scc1 {ok}
    s_sleep 2
    """)
    gather_cs_setup(a, c); gather_cs(a, 0, 16)
    if c.kind == "qkv": gather_rs(a, c)
    a("s_waitcnt vmcnt(0)")
    a(f"s_branch {lp}")
    a(f"{ok}:")
    for r in range(1, 16): a(f"v_add_f32 v{G_CS}, v{G_CS}, v{G_CS+2*r}")
    a(f"""
    v_lshlrev_b32 v2, 2, v1
    s_lshl_b32 s30, s38, 8
    s_add_u32 s30, s30, {ST_CS}
    v_add_u32 v2, s30, v2
    ds_write_b32 v2, v{G_CS}
    """)
    return 0

def l2_issue(a, c):
    which = 0 if c.kind == "qkv" else 1
    srd_off(a, 16, P_WS, CSG_OFF + which * 524288, 524288)
    a(f"""
    s_lshl_b32 s60, s2, 2
    s_add_u32 s60, s60, s38
    v_lshrrev_b32 v24, 2, v1
    v_lshlrev_b32 v24, {15 if which == 0 else 11}, v24
    v_and_b32 v27, 3, v1
    v_lshl_add_u32 v24, v27, 3, v24
    """)
    if which == 0:
        a("s_min_u32 s60, s60, 767")
        a("s_lshl_b32 s67, s60, 5")
    else:
        a("""
        s_lshr_b32 s67, s60, 6
        s_lshl_b32 s67, s67, 15
        s_and_b32 s31, s60, 63
        s_lshl_b32 s31, s31, 5
        s_add_u32 s67, s67, s31
        """)
    a(f"buffer_load_dwordx2 v[{G_CS}:{G_CS+1}], v24, s[16:19], s67 offen sc0 sc1")
    return 1

def tagcheck(a, regs, retry):
    lp = a.label("gchk"); ok = a.label("skip_gok")
    a("s_mov_b32 s62, 0x80000")
    a(f"{lp}:")
    for k, (r, sg) in enumerate(regs):
        a(f"v_xor_b32 v{15 if k == 0 else 27}, s{sg}, v{r}")
        if k: a("v_or_b32 v15, v15, v27")
    a(f"""
    v_cmp_ne_u32 vcc, 0, v15
    s_nop 3
    s_cmp_eq_u64 vcc, 0
    s_cbranch_scc1 {ok}
    s_sub_u32 s62, s62, 1
    s_cbranch_scc1 {ok}
    """)
    retry()
    a("s_waitcnt vmcnt(0)")
    a(f"s_branch {lp}")
    a(f"{ok}:")

def l2_finish(a, c):
    which = 0 if c.kind == "qkv" else 1
    v = G_CS
    tagcheck(a, [(v + 1, TAG)], lambda: a(f"buffer_load_dwordx2 v[{v}:{v+1}], v24, s[16:19], s67 offen sc0 sc1"))
    srd_off(a, 16, P_WS, FIN_OFF + which * 32768, 32768)
    a(f"""
    v_add_f32_dpp v{v}, v{v}, v{v} row_ror:4 row_mask:0xf bank_mask:0xf
    v_add_f32_dpp v{v}, v{v}, v{v} row_ror:8 row_mask:0xf bank_mask:0xf
    v_mov_b32 v{v+2}, v{v}
    v_permlane16_swap_b32 v{v}, v{v+2}
    v_add_f32 v{v}, v{v}, v{v+2}
    v_mov_b32 v{v+2}, v{v}
    v_permlane32_swap_b32 v{v}, v{v+2}
    v_add_f32 v{v}, v{v}, v{v+2}
    v_lshlrev_b32 v24, 3, v1
    s_lshl_b32 s60, s60, 5
    s_mov_b64 exec, 15
    buffer_store_dwordx2 v[{v}:{v+1}], v24, s[16:19], s60 offen sc0 sc1
    s_mov_b64 exec, -1
    """)
    return 1

def fin_issue(a, c):
    if c.kind == "qkv":
        a("""
        s_min_u32 s31, s38, 2
        s_lshl_b32 s60, s31, 13
        s_lshl_b32 s31, s25, 9
        s_add_u32 s60, s60, s31
        """)
    else:
        a("""
        s_lshl_b32 s60, s25, 11
        s_lshl_b32 s31, s38, 9
        s_add_u32 s60, s60, s31
        """)
    a(f"buffer_load_dwordx2 v[{G_CS}:{G_CS+1}], v24, s[16:19], s60 offen sc0 sc1")
    return 1

def fin_finish(a, c):
    regs = [(G_CS + 1, TAG)] + ([(G_RS + 2, TAG), (G_RS + 3, TAG + 1)] if c.kind == "qkv" else [])
    def retry():
        a(f"buffer_load_dwordx2 v[{G_CS}:{G_CS+1}], v24, s[16:19], s60 offen sc0 sc1")
        if c.kind == "qkv": gather_rs(a, c)
    tagcheck(a, regs, retry)
    a(f"""
    v_lshlrev_b32 v2, 2, v1
    s_lshl_b32 s30, s38, 8
    s_add_u32 s30, s30, {ST_CS}
    v_add_u32 v2, s30, v2
    ds_write_b32 v2, v{G_CS}
    """)
    return 0

def gather_finish_rs(a, c):
    a(f"""
    v_and_b32 v3, 31, v1
    s_lshl_b32 s30, s38, 5
    v_add_u32 v3, s30, v3
    v_lshlrev_b32 v2, 4, v3
    v_add_u32 v2, {ST_REC}, v2
    """)
    R = G_RS
    if c.kind == "qkv":
        a(f"""
        v_lshlrev_b32 v3, 2, v3
        v_add_u32 v3, {ST_MEAN}, v3
        ds_write_b128 v2, v[{R}:{R+3}]
        ds_write_b32 v3, v{R}
        ds_write_b32 v3, v{R+1} offset:512
        """)
    else:
        a(f"""
        v_mov_b32 v{R+1}, v{R}
        v_permlane32_swap_b32 v{R}, v{R+1}
        v_mul_f32 v{R}, {f32(1.0/1024)}, v{R}
        v_mul_f32 v{R+1}, {f32(1.0/1024)}, v{R+1}
        v_fma_f32 v{R+1}, -v{R}, v{R}, v{R+1}
        v_max_f32 v{R+1}, 0, v{R+1}
        v_add_f32 v{R+4}, {f32(1e-5)}, v{R+1}
        v_rsq_f32 v{R+1}, v{R+4}
        v_sqrt_f32 v{R+3}, v{R+4}
        v_sqrt_f32 v{R+2}, v{R+4}
        v_mul_f32 v{R+1}, {f32(-LOG2E)}, v{R+1}
        ds_write_b128 v2, v[{R}:{R+3}]
        """)
    a("s_waitcnt lgkmcnt(0)")
    return 0

def row_stats_issue(a, X):
    srd_off(a, 20, P_X, 0, 4 * MB)
    srd_off(a, 16, P_DBG, 0, 256)
    a(f"""
    s_lshl_b32 s30, s24, 7
    s_lshl_b32 s31, s25, 3
    s_add_u32 s30, s30, s31
    s_lshl_b32 s31, s3, 1
    s_add_u32 s33, s30, s31
    s_lshl_b32 s30, s33, 11
    v_lshlrev_b32 v{X+18}, 4, v1
    v_mov_b32 v{X+19}, 0
    """)
    for i in range(4):
        a(f"buffer_load_dwordx4 v[{X+4*i}:{X+4*i+3}], v{X+18}, s[20:23], s30 offen offset:{i*1024}")

def row_stats_finish(a, X, T):
    s0, q0, s1, q1 = T, T + 1, T + 2, T + 3
    a(f"buffer_load_dwordx2 v[{X+16}:{X+17}], v{X+19}, s[16:19], 0 offen sc0 sc1")
    a("s_mov_b32 s75, 0x3f803f80")
    for i in range(4): a(f"v_mov_b32 v{T+i}, 0")
    a("s_waitcnt vmcnt(1)")
    for d in range(8):
        for row in range(2):
            r = X + 8 * row + d
            a(f"v_dot2c_f32_bf16 v{T+2*row}, s75, v{r}")
            a(f"v_dot2c_f32_bf16 v{T+2*row+1}, v{r}, v{r}")
    a(f"""
    v_permlane32_swap_b32 v{s0}, v{q0}
    v_permlane32_swap_b32 v{s1}, v{q1}
    v_add_f32 v{s0}, v{s0}, v{q0}
    v_add_f32 v{s1}, v{s1}, v{q1}
    v_permlane16_swap_b32 v{s0}, v{s1}
    v_add_f32 v{s0}, v{s0}, v{s1}
    v_add_f32_dpp v{s0}, v{s0}, v{s0} quad_perm:[1,0,3,2] row_mask:0xf bank_mask:0xf
    v_add_f32_dpp v{s0}, v{s0}, v{s0} quad_perm:[2,3,0,1] row_mask:0xf bank_mask:0xf
    v_add_f32_dpp v{s0}, v{s0}, v{s0} row_half_mirror row_mask:0xf bank_mask:0xf
    v_add_f32_dpp v{s0}, v{s0}, v{s0} row_mirror row_mask:0xf bank_mask:0xf
    v_mov_b32 v{q0}, v{s0}
    v_permlane32_swap_b32 v{s0}, v{q0}
    v_mul_f32 v{s0}, {f32(1.0/1024)}, v{s0}
    v_mul_f32 v{q0}, {f32(1.0/1024)}, v{q0}
    v_fma_f32 v{q0}, -v{s0}, v{s0}, v{q0}
    v_max_f32 v{q0}, 0, v{q0}
    v_add_f32 v{q0}, {f32(1e-5)}, v{q0}
    v_rsq_f32 v{q0}, v{q0}
    """)
    lp = a.label("tagp"); dn = a.label("tagd")
    a(f"""
    s_mov_b32 s39, 0x100000
    {lp}:
    s_waitcnt vmcnt(0)
    v_readfirstlane_b32 s{TAG}, v{X+16}
    v_readfirstlane_b32 s{TAG+1}, v{X+17}
    s_nop 3
    s_cmp_lg_u32 s{TAG}, 0
    s_cbranch_scc1 {dn}
    s_sleep 1
    buffer_load_dwordx2 v[{X+16}:{X+17}], v{X+19}, s[16:19], 0 offen sc0 sc1
    s_sub_u32 s39, s39, 1
    s_cmp_lg_u32 s39, 0
    s_cbranch_scc1 {lp}
    {dn}:
    """)
    srd_off(a, 20, P_WS, RS1_OFF, 32768)
    a(f"""
    v_mov_b32 v{s1}, s{TAG}
    v_mov_b32 v{q1}, s{TAG+1}
    v_and_b32 v{T+4}, 16, v1
    s_lshl_b32 s30, s33, 4
    v_mov_b32 v{T+5}, {ST_TAG}
    s_mov_b64 exec, 0x10001
    buffer_store_dwordx4 v[{T}:{T+3}], v{T+4}, s[20:23], s30 offen sc0 sc1
    ds_write_b64 v{T+5}, v[{s1}:{q1}]
    s_mov_b64 exec, -1
    s_waitcnt lgkmcnt(0)
    """)

def w2_kg(t):
    if OPT["sk"]:
        if t < 8: return 7 * t, 4
        if t < 12: return 14 * (t - 8) + 3, 7
        if t < 20: return 7 * (t - 12) + 1, 4
        return 7 * (t - 20) + 2, 4
    if t < 16: return 7 * t, 4
    if t < 24: return 14 * (t - 16) + 3, 7
    if t < 40: return 7 * (t - 24) + 1, 4
    return 7 * (t - 40) + 2, 4

def set_soff(a, c, st, A=True, B=True):
    if c.kind != "w2": return
    if OPT["own"]:
        if st < 3:
            a(f"s_add_u32 s30, s43, s63"); off = st
        elif 10 <= st < 14:
            m = st - 10; i = 2 * m
            a(f"s_add_u32 s30, s66, s64"); off = 7 * (i + (i & 4)) + 3
        else:
            t, off = (st - 3, 0) if st < 10 else ((st - 14, 1) if st < 21 else (st - 21, 2))
            a(f"""
            s_add_u32 s30, s42, {t + 1}
            s_and_b32 s30, s30, 7
            s_and_b32 s31, s30, 4
            s_add_u32 s30, s30, s31
            s_mul_i32 s30, s30, {7*8192}
            s_add_u32 s30, s30, s66
            s_add_u32 s30, s30, s63
            """)
        if A: a(f"s_add_u32 s28, s30, {off*8192}")
        if B:
            a(f"s_add_u32 s29, s30, {off*8192}")
            a("s_lshl_b32 s29, s29, 3")
        return
    base, dh = w2_kg(st)
    off = base % 7
    hs = "s63" if dh == 4 else "s64"
    a(f"s_add_u32 s30, s66, {(base - off)*8192}")
    a(f"s_sub_u32 s31, s30, {112*8192}")
    a("s_cselect_b32 s30, s30, s31")
    a(f"s_add_u32 s30, s30, {hs}")
    if A: a(f"s_add_u32 s28, s30, {off*8192}")
    if B:
        a(f"s_add_u32 s29, s30, {off*8192}")
        a("s_lshl_b32 s29, s29, 3")

def w2_early_setup(a, c):
    a(f"""
    s_mul_i32 s41, s38, {c.NBW*1024}
    s_and_b32 s30, s38, 1
    s_mul_i32 s63, s30, {4*8192}
    s_mul_i32 s64, s30, {7*8192}
    s_and_b32 s30, s25, 4
    s_mul_i32 s66, s30, {(7 if OPT["own"] else 14)*8192}
    s_and_b32 s42, s25, 3
    s_lshr_b32 s30, s25, 3
    s_lshl_b32 s30, s30, 2
    s_add_u32 s42, s42, s30
    s_mul_i32 s43, s25, {7*8192}
    """)
    c.bstep = 64 * c.ldb
    b_setup(a, c, c.pvb, c.sb)

def pre_B(a, c, st0=0, st1=None):
    for st in range(st0, c.S if st1 is None else st1):
        set_soff(a, c, st, A=False)
        issueB(a, c, (st + c.bs0) % c.SB, c.kind != "w2")
    return (( c.S if st1 is None else st1) - st0) * c.NBW

def gemm_producer(a, c, preB, gated=None, side=None, after_issue=None, unroll_to=None):
    n = c.n; S = c.S; L = 4 + c.NBW
    side = side or {}
    U = n if unroll_to is None else unroll_to
    ops = []
    w2 = c.kind == "w2"
    def iss(st):
        if gated and st < (8 if c.sk else 16): gate(a, st, gated == "wide")
        if st == (1 if ((c.kind == "w1" and OPT["own1"]) or (c.kind == "wo" and OPT["owno"])) else 0): stamp(a, c.sid)
        doB = not (preB and st < c.SB)
        set_soff(a, c, st, True, doB)
        issueA(a, c, st % S, not w2); ops.extend([st] * 4)
        if doB:
            issueB(a, c, (st + c.bs0) % c.SB, not w2); ops.extend([st] * c.NBW)
        if after_issue:
            if st == 1 and c.kind == "w1" and OPT["own1"]: ops.extend([st] * after_issue(0))
            ops.extend([st] * after_issue(st))
    def wait(st):
        last = max(i for i, x in enumerate(ops) if x <= st)
        a(f"s_waitcnt vmcnt({min(63, len(ops) - 1 - last)})")
    def run_side(j, tag):
        for f in side.get(j, []): ops.extend([tag] * (f() or 0))
    if DIAG and OPT['steps']: a('s_mov_b32 s99, 0\nv_mov_b32 v252, 0')
    own0 = (c.kind == "w1" and OPT["own1"]) or (c.kind == "wo" and OPT["owno"])
    if own0:
        a(f"s_add_u32 s28, s28, {c.astep}")
        a(f"s_and_b32 s28, s28, {16*c.astep - 1}")
        a(f"s_waitcnt vmcnt({(S-1)*c.NBW})")
        issued = 1
    else:
        iss(0); issued = 1
        if not (c.kind == "qkv" and OPT["early0"]):
            run_side(-1, 1)
            iss(1); issued = 2
        wait(0)
    stamp(a, c.sid + 1)
    pbar(a)
    j = 0
    while j < n:
        allowed = j - 1 + S
        if issued >= U and issued < n: break
        cnt = 0
        if c.kind == "qkv" and OPT["early0"] == 1 and j == 0: run_side(-1, 1)
        while issued <= allowed and cnt < 2 and issued < U:
            if c.kind == "qkv" and OPT["early0"] >= 2 and issued == OPT["early0"]: run_side(-1, OPT["early0"])
            iss(issued); issued += 1; cnt += 1
        run_side(j, max(issued - 1, j + 2))
        j += 1
        if j < n: wait(j)
        pbar(a)
    if j < n:
        assert issued == j - 1 + S
        a(f"s_mov_b32 s27, {c.ABASE + (issued % S)*16384}")
        a(f"s_mov_b32 s32, {c.BBASE + (issued % S)*c.BB}")
        for (t0, t1, stride) in c.rounds:
            if t0 == c.gate_all_at:
                a(f"s_waitcnt vmcnt({(c.gate_all_at - c.prepoll_at) * L})")
                a(f"v_cmp_eq_u64 s[56:57], s[{TAG}:{TAG+1}], v[{PV_POLL}:{PV_POLL+1}]")
                a("s_nop 3")
                gate(a, "all", False)
            if t0 == c.prepoll_at:
                gate_setup(a, c.seamB, False)
                a(f"buffer_load_dwordx2 v[{PV_POLL}:{PV_POLL+1}], v26, s[{FLS}:{FLS+3}], s33 offen sc0 sc1")
            if t0 in c.round_hook: c.round_hook[t0]()
            lp = a.label("p_loop")
            set_soff(a, c, t0, True, False)
            a(f"s_mov_b32 s26, {t1 - t0}")
            a(f"{lp}:")
            a("s_lshl_b32 s29, s28, 3")
            issueA(a, c, None, False); issueB(a, c, None, False)
            a(f"s_add_u32 s28, s28, {stride*8192}")
            a(f"s_sub_u32 s31, s28, {112*8192}")
            a("s_cselect_b32 s28, s28, s31")
            a(f"s_waitcnt vmcnt({(S-2)*L})")
            if DIAG and OPT["steps"]:
                pbar(a)
                a(f"s_sub_u32 s26, s26, 1\ns_cmp_lg_u32 s26, 0\ns_cbranch_scc1 {lp}")
            else:
                a(f"s_sub_u32 s26, s26, 1\ns_cmp_lg_u32 s26, 0\ns_barrier\ns_cbranch_scc1 {lp}")
        j = n - S + 1
        stamp(a, c.sid + 2)
        while j < n:
            j += 1
            if j < n: a(f"s_waitcnt vmcnt({(n-1-j)*L})")
            pbar(a)
    stamp(a, c.sid + 3)
    pbar_flush(a, {'qkv':0,'wo':1,'w1':2,'w2':3}[c.kind])

def own_gate_setup(a, seam_id):
    a(f"""
    v_lshrrev_b32 v2, 2, v1
    s_add_u32 s30, s42, 1
    v_add_u32 v2, s30, v2
    v_and_b32 v2, 7, v2
    v_and_b32 v3, 4, v2
    v_add_u32 v2, v2, v3
    s_and_b32 s30, s25, 4
    v_add_u32 v2, s30, v2
    v_and_b32 v3, 3, v1
    v_lshl_add_u32 v2, v2, 2, v3
    v_lshlrev_b32 v26, 3, v2
    s_lshl_b32 s33, s24, 10
    s_add_u32 s33, s33, {seam_id*16384}
    s_mov_b64 s[56:57], 0
    s_mov_b32 s39, 0x200000
    """)

def w2_producer(a, c):
    n = c.n; S = c.S
    ops = []
    def A(st):
        if 3 <= st < 10: gate(a, st - 3, False)
        if st == 3: stamp(a, c.sid)
        if st == (10 if OPT["w1t"] else 14):
            last = max(i for i, x in enumerate(ops) if x == -7)
            a(f"s_waitcnt vmcnt({len(ops) - 1 - last})")
            a(f"v_cmp_eq_u64 s[56:57], s[{TAG}:{TAG+1}], v[{PV_POLL+2}:{PV_POLL+3}]")
            a("s_mov_b32 s33, s37")
            a("s_nop 3")
            gate(a, "all", False)
        set_soff(a, c, st, True, False)
        issueA(a, c, st % S, False); ops.extend([st] * 4)
    def B(st, same=False):
        if same: a("s_lshl_b32 s29, s28, 3")
        else: set_soff(a, c, st, False, True)
        issueB(a, c, st % S, False); ops.extend([st] * c.NBW)
    def wait(st):
        last = max(i for i, x in enumerate(ops) if 0 <= x <= st)
        a(f"s_waitcnt vmcnt({min(63, len(ops) - 1 - last)})")
    if DIAG and OPT['steps']: a('s_mov_b32 s99, 0\nv_mov_b32 v252, 0')
    own_gate_setup(a, 0)
    apoll = f"buffer_load_dwordx2 v[{PV_POLL}:{PV_POLL+1}], v26, s[{FLS}:{FLS+3}], s33 offen sc0 sc1"
    def acheck(cnt):
        a(f"s_waitcnt vmcnt({cnt})")
        a(f"v_cmp_eq_u64 s[56:57], s[{TAG}:{TAG+1}], v[{PV_POLL}:{PV_POLL+1}]")
        a("s_nop 3")
    if OPT["w1t"]:
        a("s_barrier")
        pre_B(a, c, 1, 4)
        a("s_barrier")
        a(apoll)
        acheck(0)
        sk = a.label("skip_a3"); sk2 = a.label("skip_a3b")
        a(f"""
        s_mov_b32 s40, 0
        s_and_b32 s30, s56, 15
        s_cmp_lg_u32 s30, 15
        s_cbranch_scc1 {sk}
        s_mov_b32 s40, 1
        """)
        set_soff(a, c, 3, True, False)
        issueA(a, c, 3, False)
        a(f"{sk}:")
        pbar(a)
        pbar(a)
        B(4)
        a(f"s_cmp_lg_u32 s40, 0")
        a(f"s_cbranch_scc1 {sk2}")
        A(3)
        a(f"{sk2}:")
        A(4)
        pbar(a)
        A(5); B(5, True)
    else:
        a("s_waitcnt vmcnt(0)")
        pbar(a)
        om = OPT["ownm"]
        pbar(a)
        if om == 1: a(apoll)
        B(4)
        pbar(a)
        if om == 1:
            acheck(4); A(3); B(5); A(4); A(5)
        else:
            B(5); A(3); A(4); A(5)
    wait(3)
    stamp(a, c.sid + 1)
    pbar(a)
    for j in range(3, n):
        st = j - 1 + S
        if st < n:
            if st == (OPT["pb"] if OPT["w1t"] else 12):
                a(f"s_add_u32 s37, s33, {3*16384}")
                a(f"buffer_load_dwordx2 v[{PV_POLL+2}:{PV_POLL+3}], v26, s[{FLS}:{FLS+3}], s37 offen sc0 sc1")
                ops.append(-7)
            A(st); B(st, True)
        if j + 1 < n: wait(j + 1)
        pbar(a)
    stamp(a, c.sid + 3)
    pbar_flush(a, 3)

def touch(a, ptr, total_bytes, sr_=20):
    nl = total_bytes // 128 // 1024
    srd_off(a, sr_, ptr, 0, total_bytes)
    a(f"""
    s_lshl_b32 s30, s2, 2
    s_add_u32 s30, s30, s38
    s_mul_i32 s30, s30, {nl*128}
    v_lshlrev_b32 v2, 7, v1
    s_mov_b32 exec_lo, {hex(((1 << nl) - 1) & 0xffffffff)}
    s_mov_b32 exec_hi, {hex(((1 << nl) - 1) >> 32)}
    buffer_load_dword v253, v2, s[{sr_}:{sr_+3}], s30 offen
    s_mov_b64 exec, -1
    """)
    return 1

def xtouch_setup(a, ptr, nbytes, sr_, vreg):
    srd_off(a, sr_, ptr, 0, nbytes)
    a(f"""
    v_lshrrev_b32 v2, 2, v1
    v_lshlrev_b32 v2, 11, v2
    v_and_b32 v3, 3, v1
    v_lshl_add_u32 v2, v3, 7, v2
    s_and_b32 s30, s2, 3
    s_lshl_b32 s30, s30, 9
    s_lshl_b32 s31, s38, 14
    s_add_u32 s30, s30, s31
    v_add_u32 v2, s30, v2
    v_mov_b32 v3, 0x40000000
    v_cmp_gt_u32 vcc, 32, v1
    v_cndmask_b32 v{vreg}, v3, v2, vcc
    """)

def w2_xtouch(a, q):
    a(f"""
    s_lshr_b32 s30, s2, 4
    s_mul_i32 s30, s30, {7*65536}
    s_bfe_u32 s31, s2, 0x10003
    s_mul_i32 s31, s31, {4*65536 if q < 3 else 0x20000000}
    s_add_u32 s30, s30, s31
    s_add_u32 s30, s30, {q*65536}
    buffer_load_dword v253, v23, s[44:47], s30 offen
    """)
    return 1

def attention_v1(a):
    SC = (32 ** -0.5) * LOG2E
    vF, vL, vQH = 2, 4, 5
    Q = 8; O = 16; SB = 32; F = 176; T = 248
    a(f"""
    v_bfe_u32 v6, v1, 4, 1
    v_lshlrev_b32 v{vF}, 10, v6
    v_lshrrev_b32 v6, 5, v1
    v_lshl_add_u32 v{vF}, v6, 8, v{vF}
    v_and_b32 v7, 15, v1
    v_lshl_add_u32 v{vF}, v7, 4, v{vF}
    v_and_b32 v7, 31, v1
    v_lshlrev_b32 v6, 2, v6
    v_sub_u32 v{vQH}, v7, v6
    s_lshr_b32 s34, s3, 2            ; hh
    s_and_b32 s35, s3, 3             ; qb
    s_mul_i32 s30, s34, {HEADW}
    s_lshl_b32 s31, s35, 11
    s_add_u32 s30, s30, s31
    v_add_u32 v{vL}, s30, v{vF}
    ds_read_b128 v[{Q}:{Q+3}], v{vL} offset:49152
    ds_read_b128 v[{Q+4}:{Q+7}], v{vL} offset:{49152+512}
    """)
    def fr(b, i): return F + b * 8 + i * 4
    rd = []
    for b in range(9):
        for i in range(2):
            rd.append(f"ds_read_b128 v[{fr(b,i)}:{fr(b,i)+3}], v{vL} offset:{b*2048 + i*512}")
    for x in rd[:8]: a(x)
    for r in range(16):
        cst = 8 * (r >> 2) + (r & 3)
        a(f"v_cmp_gt_i32 s[{40+2*r}:{41+2*r}], {cst}, v{vQH}")
    nissued = 8
    rv = []
    for b in range(9):
        for i in range(2):
            rv.append(f"ds_read_b128 v[{fr(b,i)}:{fr(b,i)+3}], v{vL} offset:{24576 + b*2048 + i*512}")
    for b in range(9):
        a(f"s_waitcnt lgkmcnt({nissued - (2*b+2)})")
        s = SB + 16 * b
        a(f"v_mfma_f32_32x32x16_bf16 v[{s}:{s+15}], v[{fr(b,0)}:{fr(b,0)+3}], v[{Q}:{Q+3}], 0")
        if nissued < 18: a(rd[nissued]); nissued += 1
        a(f"v_mfma_f32_32x32x16_bf16 v[{s}:{s+15}], v[{fr(b,1)}:{fr(b,1)+3}], v[{Q+4}:{Q+7}], v[{s}:{s+15}]")
        if nissued < 18: a(rd[nissued]); nissued += 1
    for x in rv[:14]: a(x)
    skip = a.label("at_valid")
    a(f"""
    s_lshl_b32 s30, s24, 2
    s_add_u32 s30, s30, s35
    s_cmp_ge_u32 s30, 8
    s_cbranch_scc1 {skip}
    """)
    for b in range(8):
        nb = a.label("at_nb")
        a(f"s_cmp_ge_u32 s30, {8-b}")
        a(f"s_cbranch_scc1 {nb}")
        for r in range(16):
            a(f"v_mov_b32 v{SB+16*b+r}, 0xff800000")
        a(f"{nb}:")
    a(f"{skip}:")
    mx = T; mx2 = T + 1; sm = T + 2
    a(f"v_max_f32 v{mx}, v{SB+16}, v{SB+17}")
    a(f"v_max_f32 v{mx2}, v{SB+18}, v{SB+19}")
    idx = list(range(20, 128))
    for k in range(0, len(idx), 2):
        m = mx if (k // 2) % 2 == 0 else mx2
        a(f"v_max3_f32 v{m}, v{SB+idx[k]}, v{SB+idx[k+1]}, v{m}")
    for r in range(16):
        a(f"v_cndmask_b32 v{SB+r}, v{SB+128+r}, v{SB+r}, s[{40+2*r}:{41+2*r}]")
    for k in range(0, 16, 2):
        m = mx if (k // 2) % 2 == 0 else mx2
        a(f"v_max3_f32 v{m}, v{SB+k}, v{SB+k+1}, v{m}")
    for x in rv[14:]: a(x)
    a(f"""
    v_max_f32 v{mx}, v{mx}, v{mx2}
    v_mov_b32 v{mx2}, v{mx}
    v_permlane32_swap_b32 v{mx}, v{mx2}
    v_max_f32 v{mx}, v{mx}, v{mx2}
    v_mov_b32 v{Q}, {f32(SC)}
    v_mov_b32 v{Q+1}, {f32(SC)}
    v_mul_f32 v{Q+2}, {f32(-SC)}, v{mx}
    v_mul_f32 v{Q+3}, {f32(-SC)}, v{mx}
    v_mov_b32 v{sm}, 0
    v_mov_b32 v{sm+1}, 0
    s_waitcnt lgkmcnt(0)
    s_barrier
    """)
    sk = a.label("skip_x1")
    a(f"""
    s_cmp_lt_u32 s3, 4
    s_cbranch_scc1 {sk}
    s_mul_i32 s30, s24, {64*7168}
    s_mul_i32 s31, s38, 7168
    """)
    for i in range(7):
        if i % 4 == 0: a(f"s_add_u32 m0, s31, {XB1 + i*1024}")
        a(f"buffer_load_dwordx4 v{O+i}, s[20:23], s30 offen offset:{(i&3)*1024} lds")
    if OPT["sk"] and OPT["sent"] == 1:
        sk2 = a.label("skip_x2")
        a(f"s_branch {sk2}")
        a(f"{sk}:")
        srd_off(a, 20, P_WS, XP_OFF, 8 * MB)
        a(f"""
        s_lshl_b32 s30, s24, 19
        s_lshl_b32 s31, s3, 13
        s_add_u32 s30, s30, s31
        s_lshl_b32 s31, s25, 15
        s_add_u32 s30, s30, s31
        v_lshlrev_b32 v{O+4}, 4, v1
        """)
        for i in range(4): a(f"v_mov_b32 v{O+i}, -1")
        for mt in range(4):
            a(f"buffer_store_dwordx4 v[{O}:{O+3}], v{O+4}, s[20:23], s30 offen offset:{mt*1024} sc0 sc1")
        a(f"{sk2}:")
    else:
        a(f"{sk}:")
    def pack(s):
        for d, r in [(0, 0), (1, 2), (2, 8), (3, 10), (4, 4), (5, 6), (6, 12), (7, 14)]:
            a(f"v_cvt_pk_bf16_f32 v{s+d}, v{s+r}, v{s+r+1}")
    first = [True]
    def pv(b, s):
        c0 = "0" if first[0] else f"v[{O}:{O+15}]"
        first[0] = False
        a(f"v_mfma_f32_32x32x16_bf16 v[{O}:{O+15}], v[{fr(b,0)}:{fr(b,0)+3}], v[{s}:{s+3}], {c0}")
        a(f"v_mfma_f32_32x32x16_bf16 v[{O}:{O+15}], v[{fr(b,1)}:{fr(b,1)+3}], v[{s+4}:{s+7}], v[{O}:{O+15}]")
    pending = None
    for b in [0, 1, 2, 3, 4, 5, 6, 7]:
        s = SB + 16 * b
        for r in range(0, 16, 2):
            a(f"v_pk_fma_f32 v[{s+r}:{s+r+1}], v[{s+r}:{s+r+1}], v[{Q}:{Q+1}], v[{Q+2}:{Q+3}]")
        if pending is not None:
            for p in pending: pv(*p)
            pending = None
        for r in range(16):
            a(f"v_exp_f32 v{s+r}, v{s+r}")
        for r in range(0, 16, 2):
            a(f"v_pk_add_f32 v[{sm}:{sm+1}], v[{sm}:{sm+1}], v[{s+r}:{s+r+1}]")
        if b == 0:
            s8 = SB + 128
            for r in range(16):
                a(f"v_cndmask_b32 v{s8+r}, v{s+r}, 0, s[{40+2*r}:{41+2*r}]")
                a(f"v_cndmask_b32 v{s+r}, 0, v{s+r}, s[{40+2*r}:{41+2*r}]")
            pack(s); pack(s8)
            pending = [(0, s), (8, s8)]
        else:
            pack(s)
            pending = [(b, s)]
    for p in pending: pv(*p)
    srd_off(a, 16, P_WS, O_OFF, 4 * MB)
    a(f"""
    v_add_f32 v{sm}, v{sm}, v{sm+1}
    v_mov_b32 v{sm+1}, v{sm}
    v_permlane32_swap_b32 v{sm}, v{sm+1}
    v_add_f32 v{sm}, v{sm}, v{sm+1}
    v_rcp_f32 v{sm+1}, v{sm}
    v_rcp_f32 v{sm}, v{sm}
    s_lshl_b32 s30, s24, 18
    s_lshl_b32 s31, s25, 14
    s_add_u32 s30, s30, s31
    s_lshl_b32 s31, s34, 13
    s_add_u32 s30, s30, s31
    s_lshl_b32 s31, s35, 11
    s_add_u32 s30, s30, s31
    """)
    for r in range(0, 16, 2):
        a(f"v_pk_mul_f32 v[{O+r}:{O+r+1}], v[{O+r}:{O+r+1}], v[{sm}:{sm+1}]")
    pack(O)
    a(f"""
    buffer_store_dwordx4 v[{O}:{O+3}], v{vF}, s[16:19], s30 offen sc0 sc1
    buffer_store_dwordx4 v[{O+4}:{O+7}], v{vF}, s[16:19], s30 offen offset:512 sc0 sc1
    """)
    stamp(a, 10)
    signal(a, 1, 3, SB)
    stamp(a, 11)

def attention(a):
    if not OPT["att2"]: return attention_v1(a)
    SC = (32 ** -0.5) * LOG2E
    vF, vL, vQH = 2, 4, 5
    Q = 8; O = 16; SB = 32; F = 176; T = 248
    MK = O + 8
    ONES = Q + 4
    LS = SB + 128
    mx = T; mx2 = T + 1
    a(f"""
    v_bfe_u32 v6, v1, 4, 1
    v_lshlrev_b32 v{vF}, 10, v6
    v_lshrrev_b32 v6, 5, v1
    v_lshl_add_u32 v{vF}, v6, 8, v{vF}
    v_and_b32 v7, 15, v1
    v_lshl_add_u32 v{vF}, v7, 4, v{vF}
    s_lshr_b32 s34, s3, 2
    s_and_b32 s35, s3, 3
    s_mul_i32 s30, s34, {HEADW}
    s_lshl_b32 s31, s35, 11
    s_add_u32 s30, s30, s31
    v_add_u32 v{vL}, s30, v{vF}
    ds_read_b128 v[{Q}:{Q+3}], v{vL} offset:49152
    ds_read_b128 v[{Q+4}:{Q+7}], v{vL} offset:{49152+512}
    """)
    def fr(b, i): return F + b * 8 + i * 4
    order = [0, 8, 1, 2, 3, 4, 5, 6, 7]
    rd = [f"ds_read_b128 v[{fr(b,i)}:{fr(b,i)+3}], v{vL} offset:{b*2048 + i*512}" for b in order for i in range(2)]
    rv = [f"ds_read_b128 v[{fr(b,i)}:{fr(b,i)+3}], v{vL} offset:{24576 + b*2048 + i*512}" for b in order for i in range(2)]
    for x in rd[:8]: a(x)
    a(f"""
    v_and_b32 v7, 31, v1
    v_lshlrev_b32 v6, 2, v6
    v_sub_u32 v{vQH}, v7, v6
    v_mov_b32 v6, 0xffff0000
    """)
    msk = lambda r: f"s[{40+2*r}:{41+2*r}]"
    for r in range(16):
        a(f"v_cmp_gt_i32 {msk(r)}, {8 * (r >> 2) + (r & 3)}, v{vQH}")
    PK = [(0, 0), (1, 2), (2, 8), (3, 10), (4, 4), (5, 6), (6, 12), (7, 14)]
    fill = {k: [] for k in range(9)}
    for d, r in PK:
        fill[d // 4].append(f"v_cndmask_b32 v{MK+d}, 0, v6, {msk(r+1)}")
        fill[d // 4].append(f"v_cndmask_b32 v{MK+d}, v{MK+d}, -1, {msk(r)}")
    def merge(): return [f"v_cndmask_b32 v{SB+r}, v{SB+128+r}, v{SB+r}, {msk(r)}" for r in range(16)]
    def maxblk(b, first=False):
        o = []; s_ = SB + 16 * b
        for k in range(0, 16, 2):
            m = mx if (k // 2) % 2 == 0 else mx2
            if first and k < 4: o.append(f"v_max_f32 v{m}, v{s_+k}, v{s_+k+1}")
            else: o.append(f"v_max3_f32 v{m}, v{s_+k}, v{s_+k+1}, v{m}")
        return o
    mg = merge()
    fill[3] += mg[:8]; fill[4] += mg[8:] + maxblk(1, True)[:4]
    fill[5] += maxblk(1, True)[4:] + maxblk(0); fill[6] += maxblk(2) + maxblk(3)[:4]
    fill[7] += maxblk(3)[4:] + maxblk(4); fill[8] += maxblk(5)
    nissued = 8
    late = []
    for k, b in enumerate(order):
        a(f"s_waitcnt lgkmcnt({nissued - (2*k+2)})")
        s_ = SB + 16 * b
        fl = fill[k]; h = len(fl) // 2
        if OPT["bis"] == 1: h = 0
        if OPT["bis"] == 2: late += fl; fl = []
        a(f"v_mfma_f32_32x32x16_bf16 v[{s_}:{s_+15}], v[{fr(b,0)}:{fr(b,0)+3}], v[{Q}:{Q+3}], 0")
        if nissued < 18: a(rd[nissued]); nissued += 1
        for x in fl[:h]: a(x)
        a(f"v_mfma_f32_32x32x16_bf16 v[{s_}:{s_+15}], v[{fr(b,1)}:{fr(b,1)+3}], v[{Q+4}:{Q+7}], v[{s_}:{s_+15}]")
        if nissued < 18: a(rd[nissued]); nissued += 1
        for x in fl[h:]: a(x)
    for x in rv[:12]: a(x)
    for x in late + maxblk(6) + maxblk(7): a(x)
    skip = a.label("at_valid")
    a(f"""
    s_lshl_b32 s30, s24, 2
    s_add_u32 s30, s30, s35
    s_cmp_ge_u32 s30, 8
    s_cbranch_scc1 {skip}
    v_mov_b32 v7, 0xff800000
    """)
    for r in range(16):
        a(f"v_cndmask_b32 v{SB+r}, v{SB+r}, v7, {msk(r)}")
    for b in range(1, 8):
        nb = a.label("at_nb")
        a(f"s_cmp_ge_u32 s30, {8-b}")
        a(f"s_cbranch_scc1 {nb}")
        for r in range(16):
            a(f"v_mov_b32 v{SB+16*b+r}, v7")
        a(f"{nb}:")
    for b in range(8):
        for x in maxblk(b, b == 0): a(x)
    a(f"{skip}:")
    for x in rv[12:]: a(x)
    a(f"""
    v_max_f32 v{mx}, v{mx}, v{mx2}
    v_mov_b32 v{Q}, {f32(SC)}
    v_mov_b32 v{Q+1}, {f32(SC)}
    v_mov_b32 v{mx2}, v{mx}
    """)
    for i in range(4): a(f"v_mov_b32 v{ONES+i}, 0x3f803f80")
    a(f"""
    v_permlane32_swap_b32 v{mx}, v{mx2}
    v_max_f32 v{mx}, v{mx}, v{mx2}
    v_mul_f32 v{Q+2}, {f32(-SC)}, v{mx}
    v_mul_f32 v{Q+3}, {f32(-SC)}, v{mx}
    """)
    def free_lds():
        a("s_waitcnt lgkmcnt(0)")
        a("s_barrier")
        sk = a.label("skip_x1")
        a(f"""
        s_cmp_lt_u32 s3, 4
        s_cbranch_scc1 {sk}
        """)
        if OPT["deepb"]:
            cw = mk("wo", **CFG["wo"]); cw.bstep = 64 * cw.ldb; cw.pvb = 250; cw.s35 = "s33"
            a("s_lshl_b32 s33, s38, 11")
            pre_B(a, cw, 4, 12)
        a(f"""
        s_mul_i32 s30, s24, {64*7168}
        s_mul_i32 s31, s38, 7168
        """)
        for i in range(7):
            if i % 4 == 0: a(f"s_add_u32 m0, s31, {xb1() + i*1024}")
            a(f"buffer_load_dwordx4 v{O+i}, s[20:23], s30 offen offset:{(i&3)*1024} lds")
        a(f"{sk}:")
    def pack(s_):
        return [f"v_cvt_pk_bf16_f32 v{s_+d}, v{s_+r}, v{s_+r+1}" for d, r in PK]
    fo = [True]; fl_ = [True]
    def pv(b, s_):
        o = []
        for i in range(2):
            c0 = "0" if fo[0] else f"v[{O}:{O+15}]"; fo[0] = False
            o.append(f"v_mfma_f32_32x32x16_bf16 v[{O}:{O+15}], v[{fr(b,i)}:{fr(b,i)+3}], v[{s_+4*i}:{s_+4*i+3}], {c0}")
        return o
    def rsum(s_):
        o = []
        for i in range(2):
            c0 = "0" if fl_[0] else f"v[{LS}:{LS+15}]"; fl_[0] = False
            o.append(f"v_mfma_f32_32x32x16_bf16 v[{LS}:{LS+15}], v[{ONES}:{ONES+3}], v[{s_+4*i}:{s_+4*i+3}], {c0}")
        return o
    pend = []
    BARB = OPT["attbar"]
    held = []
    for b in range(8):
        s_ = SB + 16 * b
        if b == BARB:
            free_lds(); pend += [x for bb, ss in held for x in pv(bb, ss)]; held = []
        work = [f"v_pk_fma_f32 v[{s_+r}:{s_+r+1}], v[{s_+r}:{s_+r+1}], v[{Q}:{Q+1}], v[{Q+2}:{Q+3}]" for r in range(0, 16, 2)]
        work += [f"v_exp_f32 v{s_+r}, v{s_+r}" for r in range(16)]
        work += pack(s_)
        take = pend[:6]; pend = pend[6:]
        for x in {3: interleave(work, take, 7, 1, 6), 5: interleave(work, take, 7, 3, 1), 6: interleave(work, take, 1, 1, 1), 7: interleave(work, take, 7, 8, 2), 8: interleave(work, take, 23, 1, 1)}.get(OPT["bis"], interleave(work, take, 2, 4, 1)): a(x)
        if b == 0:
            for d in range(8): a(f"v_and_b32 v{s_+8+d}, v{MK+d}, v{s_+d}")
            for d in range(8): a(f"v_xor_b32 v{s_+d}, v{s_+8+d}, v{s_+d}")
            pend += rsum(s_ + 8) + rsum(s_)
            blocks = [(0, s_ + 8), (8, s_)]
        else:
            pend += rsum(s_)
            blocks = [(b, s_)]
        if b < BARB: held += blocks
        else: pend += [x for bb, ss in blocks for x in pv(bb, ss)]
    for x in pend: a(x)
    srd_off(a, 16, P_WS, O_OFF, 4 * MB)
    a(f"""
    s_lshl_b32 s30, s24, 18
    s_lshl_b32 s31, s25, 14
    s_add_u32 s30, s30, s31
    s_lshl_b32 s31, s34, 13
    s_add_u32 s30, s30, s31
    s_lshl_b32 s31, s35, 11
    s_add_u32 s30, s30, s31
    """)
    if OPT["bis"] == 4: a("s_nop 15\ns_nop 15")
    a(f"v_rcp_f32 v{mx}, v{LS}")
    a(f"v_rcp_f32 v{mx+1}, v{LS}")
    for r in range(0, 16, 2):
        a(f"v_pk_mul_f32 v[{O+r}:{O+r+1}], v[{O+r}:{O+r+1}], v[{mx}:{mx+1}]")
    for x in pack(O): a(x)
    a(f"""
    buffer_store_dwordx4 v[{O}:{O+3}], v{vF}, s[16:19], s30 offen sc0 sc1
    buffer_store_dwordx4 v[{O+4}:{O+7}], v{vF}, s[16:19], s30 offen offset:512 sc0 sc1
    """)
    if OPT["owno"]:
        a(f"""
        s_lshl_b32 s30, s3, 11
        v_add_u32 v{vL}, s30, v{vF}
        ds_write_b128 v{vL}, v[{O}:{O+3}]
        ds_write_b128 v{vL}, v[{O+4}:{O+7}] offset:512
        """)
    stamp(a, 10)
    signal(a, 1, 3, SB)
    if OPT["owno"]: a("s_waitcnt lgkmcnt(0)")
    stamp(a, 11)

def build(header_src=None):
    a = Asm()
    C = {k: mk(k, **v) for k, v in CFG.items()}
    kernel_begin(a, KNAME)
    if OPT["t0"]: a("s_memrealtime s[96:97]")
    a(f"""
    s_cmp_ge_u32 s2, 256
    s_cbranch_scc1 L_end
    s_load_dwordx16 s[80:95], s[0:1], 0
    s_load_dwordx2 s[4:5], s[0:1], 64
    v_lshrrev_b32 v2, 6, v0
    v_and_b32 v1, 63, v0
    v_readfirstlane_b32 s3, v2
    s_getreg_b32 s74, hwreg(HW_REG_XCC_ID)
    s_and_b32 s74, s74, 15
    s_mov_b32 s{TAG}, 0
    s_mov_b32 s{TAG+1}, 0
    s_waitcnt lgkmcnt(0)
    """)
    srd_off(a, FLS, P_WS, FL_OFF, 131072)
    if DIAG: a(f"v_mov_b32 v{VS}, 0")
    stamp(a, 63)
    a("""
    s_cmp_ge_u32 s3, 4
    s_cbranch_scc1 L_prod
    """)
    a("""
    s_or_b32 s30, s2, s3
    s_cmp_lg_u32 s30, 0
    s_cbranch_scc1 L_notag
    """)
    srd_off(a, 16, P_DBG, 0, 256)
    a("""
    """)
    a("s_mov_b64 s[30:31], s[96:97]" if OPT["t0"] else "s_memrealtime s[30:31]")
    a("""
    v_mov_b32 v4, 0
    s_waitcnt lgkmcnt(0)
    s_or_b32 s30, s30, 1
    v_mov_b32 v2, s30
    v_mov_b32 v3, s31
    s_mov_b64 exec, 1
    buffer_store_dwordx2 v[2:3], v4, s[16:19], 0 offen sc0 sc1
    s_mov_b64 exec, -1
    L_notag:
    """)
    if OPT["cpf"]: code_prefetch(a)
    if OPT["prio"]: a(f"s_setprio {OPT['prio']}")
    gemm_consumer(a, C["qkv"])
    a("s_barrier")
    a("L_attn:")
    stamp(a, 9)
    attention(a)
    a("""
    s_barrier
    s_cmp_ge_u32 s3, 4
    s_cbranch_scc1 L_prod2
    """)
    colsum_tile(a, C["w1"], xb1(), "s3", 1, 32)
    if OPT["deepb"]: a("s_barrier")
    if OPT["cpf"] & 2: code_prefetch(a)
    gemm_consumer(a, C["wo"])
    if OPT["cpf"] & 4: code_prefetch(a)
    gemm_consumer(a, C["w1"])
    gemm_consumer(a, C["w2"])
    if OPT["spin"]:
        a(f"""
        s_waitcnt vmcnt(0)
        L_spin:
        s_memrealtime s[96:97]
        s_waitcnt lgkmcnt(0)
        s_sub_u32 s96, s96, s{TAG}
        s_cmp_lt_u32 s96, {OPT["spin"]}
        s_cbranch_scc1 L_spin
        """)
    stamp_flush(a)
    a("s_endpgm")
    C["w2"].ool()
    if OPT["reslate"]: C["wo"].ool()
    a("L_prod:")
    a("s_sub_u32 s38, s3, 4")
    c = C["qkv"]
    prod_setup(a, c)
    cq = c
    def q_extra():
        vb, sr_ = PV_B, 12
        if OPT["dil"]:
            cx = mk("qkv", **CFG["qkv"]); cx.pstride = 128; cx.bcol = 384
            vb, sr_ = 16, 20
            b_setup(a, cx, vb, sr_, False)
        a(f"s_mul_i32 s33, s24, {64*cq.ldb}")
        for i in range(cq.NBW):
            if OPT["dil"]:
                a(f"s_add_u32 m0, s35, {XB0 + i*1024}")
                a(f"buffer_load_dwordx4 v{vb+i}, s[{sr_}:{sr_+3}], s33 offen lds")
                continue
            if i % 4 == 0: a(f"s_add_u32 m0, s35, {XB0 + i*1024}")
            a(f"buffer_load_dwordx4 v{vb+i}, s[{sr_}:{sr_+3}], s33 offen offset:{(i&3)*1024} lds")
        return cq.NBW
    def q_colsum(part=None):
        if part in (None, 0):
            a(f"""
            v_mov_b32 v2, {ST_TAG}
            ds_read_b64 v[{PV_RD}:{PV_RD+1}], v2
            s_waitcnt lgkmcnt(0)
            v_readfirstlane_b32 s{TAG}, v{PV_RD}
            v_readfirstlane_b32 s{TAG+1}, v{PV_RD+1}
            """)
        a("s_setprio 3")
        colsum_tile(a, cq, XB0, "s38", 0, PV_RD, part)
        a("s_setprio 0")
        return 1 if part in (None, 3) else 0
    def hi(f):
        def g():
            a("s_setprio 3"); r = f(); a("s_setprio 0"); return r
        return g
    side = {-1: [q_extra], max(OPT['early0'], 1): [q_colsum], 12: [lambda: gather_cs_setup(a, cq), lambda: gather_rs_setup(a, cq)],
            14: [lambda: gather_rs(a, cq), lambda: gather_cs(a, 0, 16)]}
    side[15] = [lambda: a("s_waitcnt vmcnt(0)"), hi(lambda: gather_finish_cs(a, cq)), hi(lambda: gather_finish_rs(a, cq))]
    if OPT["two"] & 1:
        q2 = OPT["q2"]
        side[12] = [lambda: gather_rs_setup(a, cq)]
        side[q2] = [hi(lambda: l2_issue(a, cq))]
        side[q2 + 2] = [hi(lambda: l2_finish(a, cq))]
        side[14] = [lambda: gather_rs(a, cq), lambda: fin_issue(a, cq)]
        side[15] = [lambda: a("s_waitcnt vmcnt(0)"), hi(lambda: fin_finish(a, cq)), hi(lambda: gather_finish_rs(a, cq))]
    if OPT["cspl"]:
        cb = max(OPT["early0"], 1)
        del side[cb]
        for k in range(4): side.setdefault(cb + k, []).append(lambda k=k: q_colsum(k))
    if OPT["help"]:
        def help_setup():
            srd_off(a, 44, P_WQKV, 0, 6 * MB)
            a(f"""
            s_and_b32 s30, s25, 3
            s_lshl_b32 s31, s30, 11
            s_or_b32 s70, s25, 3
            s_lshl_b32 s70, s70, 7
            s_add_u32 s31, s31, s70
            v_mov_b32 v2, 6144
            v_mul_lo_u32 v23, v1, v2
            v_add_u32 v23, s31, v23
            s_and_b32 s70, s24, 7
            s_cmp_eq_u32 s30, 3
            s_cselect_b32 s70, 99, s70
            s_and_b32 s30, s25, 4
            s_cselect_b32 s70, 99, s70
            s_cmp_lg_u32 s38, 0
            s_cselect_b32 s70, 99, s70
            """)
            return 0
        def helper(k):
            def f():
                sk = a.label("skip_help")
                a(f"""
                s_cmp_lg_u32 s70, {k & 7}
                s_cbranch_scc1 {sk}
                s_mov_b32 s30, {(k + OPT['help']) * 64 * 6144}
                buffer_load_dword v253, v23, s[44:47], s30 offen
                {sk}:
                """)
                return 0
            return f
        help_setup()
        for k in range(0, 16 - OPT["help"]): side.setdefault(k, []).insert(0, helper(k))
    if OPT["sk"] and OPT["sent"] == 2:
        def prefill(k):
            def f():
                if k == 0:
                    srd_off(a, 16, P_WS, XP_OFF, 8 * MB)
                    a(f"""
                    s_lshl_b32 s62, s24, 19
                    s_lshl_b32 s31, s38, 13
                    s_add_u32 s62, s62, s31
                    s_lshl_b32 s31, s25, 15
                    s_add_u32 s62, s62, s31
                    v_lshlrev_b32 v27, 4, v1
                    """)
                    for i in range(4): a(f"v_mov_b32 v{28+i}, -1")
                a(f"buffer_store_dwordx4 v[28:31], v27, s[16:19], s62 offen offset:{k*1024} sc0 sc1")
                return 1
            return f
        for k in range(4): side.setdefault(5 + (k // OPT["pfg"]), []).append(prefill(k))
    if OPT["tlb"]:
        def tlbwarm():
            G = OPT["tlb"] * MB // 2 if OPT["tlb"] > 1 else 2 * MB
            a(f"s_mul_i32 s30, s38, {12*MB}")
            a(f"s_add_u32 s30, s30, {8*MB}")
            a(f"s_add_u32 s98, s{P_WS}, s30")
            a(f"s_addc_u32 s99, s{P_WS+1}, 0")
            for k in range(6):
                a(f"s_load_dword s100, s[98:99], 0")
                a(f"s_add_u32 s98, s98, {2*MB}")
                a(f"s_addc_u32 s99, s99, 0")
            a(f"s_lshl_b32 s30, s38, 21")
            for ptr, npg in ((P_W1, 4), (P_OUT, 2), (P_WO, 1)):
                a(f"s_min_u32 s31, s30, {(npg-1)*2*MB}")
                a(f"s_add_u32 s98, s{ptr}, s31")
                a(f"s_addc_u32 s99, s{ptr+1}, 0")
                a(f"s_load_dword s101, s[98:99], 0")
            return 0
        side.setdefault(5, []).insert(0, tlbwarm)
    spf = [0]
    def sprefetch(k):
        def f():
            for _ in range(k):
                if spf[0] < 112:
                    a(f"s_load_dword s{100 + (spf[0] & 1)}, s[68:69], {spf[0]*64}")
                    spf[0] += 1
            return 0
        return f
    def spf_setup():
        a(f"""
        s_lshl_b32 s30, s2, 2
        s_add_u32 s30, s30, s38
        s_mul_i32 s30, s30, 7168
        s_add_u32 s68, s{P_W2}, s30
        s_addc_u32 s69, s{P_W2+1}, 0
        """)
        return 0
    if OPT["pf"] == 3:
        side.setdefault(5, []).append(spf_setup)
        for k in range(5, 13): side.setdefault(k, []).append(sprefetch(6))
    gemm_producer(a, c, False, None, side)
    if OPT["xst"]:
        for i in range(4): a(f"v_mov_b32 v{28+i}, v{PV_A+i}")
        a("""
        s_mov_b32 s48, s8
        s_mov_b32 s49, s9
        s_mov_b32 s50, s10
        s_mov_b32 s51, 0x20000
        """)
    a(f"""
    s_sub_u32 s30, s24, 1
    s_max_i32 s30, s30, 0
    s_sub_u32 s31, s24, 2
    s_max_i32 s31, s31, 0
    s_sub_u32 s30, s30, s31
    s_lshl_b32 s30, s30, 11
    v_bfe_u32 v2, v1, 2, 1
    v_mul_lo_u32 v2, v2, s30
    v_and_b32 v3, 3, v1
    v_lshl_add_u32 v2, v3, 3, v2
    s_lshl_b32 s31, s31, 11
    s_lshl_b32 s30, s25, 7
    s_add_u32 s33, s30, s31
    s_add_u32 s33, s33, 65536
    """)
    a(f"""
    s_lshr_b32 s34, s38, 1
    s_and_b32 s35, s38, 1
    s_lshl_b32 s30, s25, 1
    s_add_u32 s30, s30, s34
    s_lshl_b32 s30, s30, 17
    s_lshl_b32 s31, s35, 22
    s_add_u32 s30, s30, s31
    s_add_u32 s30, s30, {K_OFF}
    """)
    srd_off(a, 8, P_WS, "s30", 131072)
    a(f"""
    s_lshl_b32 s30, s24, 13
    s_sub_u32 s30, s30, 16384
    v_lshlrev_b32 v4, 4, v1
    v_add_u32 v4, s30, v4
    s_mul_i32 s34, s34, {HEADW}
    s_mul_i32 s35, s35, 24576
    s_add_u32 s34, s34, s35
    """)
    a("v_mov_b32 v5, v2")
    b_setup(a, C["w1"], 16, 20)
    wait_flags(a, 5, "s33", False, PV_RD)
    stamp(a, 5)
    for q in range(4):
        a(f"s_add_u32 m0, s34, {q*4096}")
        for i in range(4):
            a(f"buffer_load_dwordx4 v4, s[8:11], 0 offen offset:{i*1024}{NBF[OPT['nbf']]} lds")
        if q < 3: a("v_add_u32 v4, 0x1000, v4")
    a("s_mov_b32 s98, s24\ns_mov_b32 s99, s25")
    c = C["wo"]
    prod_setup(a, c)
    a("s_mov_b32 s24, s98\ns_mov_b32 s25, s99")
    if OPT["xt"]:
        xtouch_setup(a, P_WO, 2 * MB, 16, 25)
        a("s_lshr_b32 s37, s2, 3\ns_lshl_b32 s37, s37, 16")
    a("s_waitcnt vmcnt(0)")
    stamp(a, 6)
    a("s_barrier")
    if OPT["xst"]:
        a(f"s_add_u32 m0, s34, {XST}")
        a("s_lshl_b32 s30, s25, 7")
        for i in range(4):
            a(f"buffer_load_dwordx4 v{28+i}, s[48:51], s30 offen offset:{i*1024} lds")
    pre_B(a, c, 0, 4 if OPT["deepb"] else None)
    if OPT["xt"]:
        a("buffer_load_dword v253, v25, s[16:19], s37 offen")
    elif OPT["pf"]: touch(a, P_WO, 2 * MB, 16)
    if OPT["deepb"]: a("v_mov_b32 v250, v8\nv_mov_b32 v251, v9")
    a("s_branch L_attn")
    a("L_prod2:")
    c = C["wo"]
    prod_setup(a, c)
    a(f"s_add_u32 s29, s29, {c.SB*64*c.ldb}")
    a(f"s_and_b32 s29, s29, {16*64*c.ldb - 1}")
    gate_setup(a, 1, True)
    if OPT["deepb"]: a("s_barrier")
    gemm_producer(a, c, True, "wide")
    c = C["w1"]; c1 = c
    prod_setup(a, c)
    if OPT["wobar"] == 1: a("s_barrier")
    pre_B(a, c, 0, 1 if OPT["wobar"] >= 2 else None)
    gather_cs_setup(a, c)
    gather_rs_setup(a, c)
    if C["w2"].early: w2_early_setup(a, C["w2"])
    if OPT["wobar"] >= 2:
        a("s_barrier")
        pre_B(a, c, 1, 3)
    gate_setup(a, 2, False)
    def w2hook(k):
        def f():
            sk = a.label("skip_pf")
            a(f"""
            s_lshr_b32 s30, s2, 3
            s_and_b32 s30, s30, 7
            s_cmp_lg_u32 s30, {k}
            s_cbranch_scc1 {sk}
            """)
            touch(a, P_W2, 7 * MB, 44)
            a(f"{sk}:")
            return 0
        return f
    side = {}
    if OPT["pf"] == 2:
        for k in range(8): side.setdefault(3 + k, []).append(w2hook(k))
    if OPT["pf"] == 3:
        spf_setup()
        for k in range(0, 13): side.setdefault(k, []).append(sprefetch(5))
    def rs_add(p0, p1):
        def f():
            for p in range(max(p0, 1), p1): a(f"v_add_f32 v{G_RS}, v{G_RS}, v{G_RS+p}")
        return f
    side.setdefault(8, []).append(hi(rs_add(0, 16)))
    side.setdefault(13, []).append(hi(rs_add(16, 26)))
    side[14] = [lambda: gather_cs(a, 0, 16)]
    side[15] = [hi(rs_add(26, 32)), lambda: a("s_waitcnt vmcnt(0)"), hi(lambda: gather_finish_cs(a, c1)), hi(lambda: gather_finish_rs(a, c1))]
    if C["w2"].early:
        c2 = C["w2"]
        side[14].append(lambda: pre_B(a, c2, 0, 1))
        side[15] = [lambda: pre_B(a, c2, 1, 4), hi(rs_add(26, 32)), lambda: a("s_waitcnt vmcnt(16)"), hi(lambda: gather_finish_cs(a, c1)), hi(lambda: gather_finish_rs(a, c1))]
    if OPT["two"] & 2:
        side.setdefault(2, []).append(hi(lambda: l2_issue(a, c1)))
        side.setdefault(4, []).append(hi(lambda: l2_finish(a, c1)))
        side[14] = [lambda: fin_issue(a, c1), lambda: pre_B(a, c2, 0, 1)]
        side[15] = [lambda: pre_B(a, c2, 1, 4), hi(rs_add(26, 32)), lambda: a("s_waitcnt vmcnt(16)"), hi(lambda: fin_finish(a, c1)), hi(lambda: gather_finish_rs(a, c1))]
    if OPT["w1t"]:
        side[13].append(lambda: fin_issue(a, c1))
        side[14] = [lambda: pre_B(a, c2, 0, 1), hi(rs_add(26, 30))]
        side[15] = [hi(rs_add(30, 32)), hi(lambda: fin_finish(a, c1)), hi(lambda: gather_finish_rs(a, c1))]
    gemm_producer(a, c, True, "narrow", side, lambda st: gather_rs(a, c1, 2 * st, 2 * st + 2))
    c = C["w2"]
    c.rounds = [(16, OPT['prepoll'], 14), (OPT['prepoll'], 24, 14), (24, 40, 7), (40, 56, 7)]; c.prepoll_at = OPT['prepoll']; c.gate_all_at = 24; c.seamB = 3
    if c.sk:
        c.rounds = [(8, 10, 14), (10, 12, 14), (12, 20, 7), (20, 28, 7)]; c.prepoll_at = 10; c.gate_all_at = 12
    prod_setup(a, c)
    if not c.early: pre_B(a, c)
    side = {}
    c.round_hook = {}
    if OPT["xt"] and not c.sk:
        xtouch_setup(a, P_W2, 7 * MB, 44, 23)
        w2_xtouch(a, 0); w2_xtouch(a, 3)
        side = {4: [lambda: w2_xtouch(a, 1)]}
        c.round_hook = {24: lambda: w2_xtouch(a, 2)}
    if not OPT["w1t"]:
        a("s_barrier")
        a("s_barrier")
    if OPT["own"]:
        w2_producer(a, c)
    else:
        gate_setup(a, 0, False)
        gemm_producer(a, c, True, "narrow", side, None, 8 if c.sk else 16)
    stamp_flush(a)
    a("L_end:")
    a("s_endpgm")
    a("L_code_end:")
    body, nins = hazard.fix(a.lines)
    hdr = []
    if header_src:
        for ln in open(header_src):
            if ln.startswith(";") and "@launch" not in ln:
                hdr.append(ln.rstrip("\n"))
            elif not ln.startswith(";"):
                break
    hdr.append(f"; @launch grid=(256,1,1) block=(512,1,1) lds=163840")
    hdr.append('.amdgcn_target "amdgcn-amd-amdhsa--gfx950"')
    hdr.append(".text")
    hdr.extend(DESC.strip("\n").split("\n"))
    return "\n".join(hdr) + "\n" + "\n".join(body) + "\n" + kernel_desc(KNAME, 256, 102), nins

if __name__ == "__main__":
    if "--diag" in sys.argv:
        DIAG = True; sys.argv.remove("--diag")
    for arg in list(sys.argv[1:]):
        if "=" in arg:
            k_, v_ = arg.split("=", 1)
            if "." in k_:
                kk, f_ = k_.split(".")
                for kind_ in (CFG.keys() if kk == "all" else [kk]): CFG[kind_][f_] = int(v_)
            else: OPT[k_] = int(v_)
            sys.argv.remove(arg)
    out = sys.argv[1] if len(sys.argv) > 1 else "p1.s"
    txt, nins = build(header_src="sequential_preLN__sliding_block__dense_activation_silu__prompt.s.ref")
    open(out, "w").write(txt)
    print("wrote", out, len(txt), "bytes; nop states inserted:", nins)
```

```python
import sys, struct
from asmlib import *
import hazard

MB = 1 << 20
K_OFF = 8 * MB
V_OFF = 12 * MB
O_OFF = 16 * MB
H_OFF = 20 * MB
H1_OFF = 24 * MB
FL_OFF = 40 * MB
RS1_OFF = 41 * MB
CSG_OFF = 42 * MB
FIN_OFF = 41 * MB + 524288
XP_OFF = 44 * MB
ST2_OFF = 43 * MB
DIAG_OFF = 64 * MB
LOG2E = 1.4426950408889634
KNAME = "sequential_preLN__sliding_block__dense_activation_silu__prompt_kernel"
P_X, P_WQKV, P_WO, P_W1, P_W2, P_OUT, P_DBG, P_WS = 80, 82, 84, 88, 90, 92, 94, 4
TAG = 72
FLS = 76
ST = 155648
ST_REC, ST_MEAN, ST_RSTD, ST_CS, ST_CSP = ST, ST + 2048, ST + 2560, ST + 3072, ST + 4096
HEADW = 57344
XB0 = 122880
XB1 = 81920
XCH = 147456
XST = 147456
ST_TAG = ST + 4096
HRES = 232
DEF = 200
VS = 254
DIAG = False
OPT = dict(lay=1, fastb=1, owno=0, w1t=0, pb=9, two=2, q2=8, own1=4, ownm=1, own=1, sktail=3, sksig=4, deepb=0, tlb=0, align=0, skrpg=1, bis=5, att2=1, attbar=1, osf=1, t0=0, spin=0, eb2=1, sigA2=2, peel=8, cspl=0, xst=1, reslate=0, sent=0, pfg=1, help=4, snake=1, rot0=4, early0=0, dil=1, sk=1, skfull=0, pf=3, xt=1, prio=0, inv=0, nodma=0, steps=0, kvlocal=0, cpf=1, nbf=1, sigA=3, sigB=3, qnt=0, bar2=0, defer=0, dper=2, dstart=0, prepoll=21, wobar=0)

def xb1(): return 0 if OPT['deepb'] else XB1

DESC = """
; Persistent single-launch transformer block (generated by a hand-written Python emitter, work/gen2.py).
; 256 workgroups (one per CU), 8 waves: waves 0-3 MFMA consumers, waves 4-7 LDS-DMA producers.
; Hand-offs between workgroups: write-through stores, drained, then a per-wave flag carrying a launch-unique tag.
"""

def f32(x):
    return "0x%08x" % struct.unpack("<I", struct.pack("<f", x))[0]

def srd_off(a, d, ptr, off, nrec):
    a(f"s_add_u32 s{d}, s{ptr}, {off}")
    a(f"s_addc_u32 s{d+1}, s{ptr+1}, 0")
    a(f"s_mov_b32 s{d+2}, {nrec}")
    a(f"s_mov_b32 s{d+3}, 0x20000")

def hold(a, key):
    if not OPT.get(key): return
    l = a.label("hold")
    a(f"""
    {l}:
    s_memrealtime s[96:97]
    s_waitcnt lgkmcnt(0)
    s_sub_u32 s96, s96, s{TAG}
    s_cmp_lt_u32 s96, {OPT[key]}
    s_cbranch_scc1 {l}
    """)

def stamp(a, idx):
    if not DIAG: return
    a("s_memrealtime s[96:97]")
    a("s_waitcnt lgkmcnt(0)")
    a(f"v_writelane_b32 v{VS}, s96, {idx}")

def stamp_flush(a):
    if not DIAG: return
    srd_off(a, 16, P_WS, DIAG_OFF, 524288)
    a(f"""
    s_lshl_b32 s30, s2, 11
    s_lshl_b32 s31, s3, 8
    s_add_u32 s30, s30, s31
    v_lshlrev_b32 v{VS+1}, 2, v1
    buffer_store_dword v{VS}, v{VS+1}, s[16:19], s30 offen
    """)

def pbar(a):
    a("s_barrier")
    if DIAG and OPT["steps"]:
        a("s_memtime s[96:97]" if OPT["steps"] == 2 else "s_memrealtime s[96:97]")
        a("""
        s_waitcnt lgkmcnt(0)
        s_mov_b32 m0, s99
        s_nop 0
        v_writelane_b32 v252, s96, m0
        s_add_u32 s99, s99, 1
        """)

def pbar_flush(a, ph):
    if not (DIAG and OPT["steps"]): return
    srd_off(a, 16, P_WS, DIAG_OFF + 524288 * (1 + ph), 524288)
    a(f"""
    s_lshl_b32 s30, s2, 11
    s_lshl_b32 s31, s3, 8
    s_add_u32 s30, s30, s31
    v_lshlrev_b32 v2, 2, v1
    buffer_store_dword v252, v2, s[16:19], s30 offen
    """)

def code_prefetch(a):
    lp = a.label("Lpc"); sk = a.label("skip_cpf")
    a(f"""
    s_getpc_b64 s[30:31]
    {lp}:
    s_sub_u32 s30, s30, {lp}-{KNAME}
    s_subb_u32 s31, s31, 0
    s_lshr_b32 s36, s2, 3
    s_lshl_b32 s36, s36, 11
    s_lshl_b32 s37, s3, 9
    s_add_u32 s36, s36, s37
    v_lshlrev_b32 v14, 7, v1
    v_add_u32 v14, s36, v14
    v_mov_b32 v15, L_code_end-{KNAME}
    v_cmp_gt_u32 vcc, 4, v1
    v_cndmask_b32 v15, 0, v15, vcc
    v_cmp_lt_u32 s[36:37], v14, v15
    v_mov_b32 v15, s31
    v_add_co_u32 v14, vcc, s30, v14
    v_addc_co_u32 v15, vcc, 0, v15, vcc
    s_and_saveexec_b64 s[30:31], s[36:37]
    s_cbranch_execz {sk}
    global_load_dword v253, v[14:15], off
    {sk}:
    s_mov_b64 exec, -1
    """)

def wgmap(a, RX, CX):
    CT = 16 // CX; RB = 16 // RX
    lg = lambda x: x.bit_length() - 1
    a(f"""
    s_and_b32 s30, s2, 7
    s_lshr_b32 s31, s2, 3
    s_lshr_b32 s24, s30, {lg(CX)}
    s_lshl_b32 s24, s24, {lg(RB)}
    s_and_b32 s25, s30, {CX-1}
    s_lshl_b32 s25, s25, {lg(CT)}
    s_lshr_b32 s30, s31, {lg(CT)}
    s_add_u32 s24, s24, s30
    s_and_b32 s30, s31, {CT-1}
    s_add_u32 s25, s25, s30
    """)

def st2(a, text):
    if not OPT["kvlocal"]:
        a(text + " sc0 sc1"); return
    l1 = a.label("skip_s1"); l2 = a.label("skip_s2")
    a(f"""
    s_cmp_lg_u32 s55, 0
    s_cbranch_scc1 {l1}
    {text} sc0 sc1
    s_branch {l2}
    {l1}:
    {text}
    {l2}:
    """)

def signal(a, seam, slot_shift, t, local=False, cnt=0, plain0=False, rbj=('s24', 's25')):
    kv = seam == 0 and not plain0
    a(f"""
    s_lshl_b32 s40, {rbj[0]}, {11 if kv else 10}
    s_lshl_b32 s41, {rbj[1]}, {7 if kv else slot_shift+3}
    s_add_u32 s40, s40, s41
    s_lshl_b32 s41, s3, 3
    s_add_u32 s40, s40, s41
    s_add_u32 s40, s40, {65536 if kv else seam*16384}
    v_mov_b32 v{t}, s{TAG}
    v_mov_b32 v{t+1}, s{TAG+1}
    v_mov_b32 v{t+2}, 0
    s_waitcnt vmcnt({cnt})
    s_mov_b64 exec, 1
    """)
    txt = f"buffer_store_dwordx2 v[{t}:{t+1}], v{t+2}, s[{FLS}:{FLS+3}], s40 offen"
    if local: st2(a, txt)
    else: a(txt + " sc0 sc1")
    a("s_mov_b64 exec, -1")

def wait_flags(a, voff, soff, wide, t):
    lp = a.label("poll"); dn = a.label("polld")
    a(f"s_mov_b32 s39, 0x100000")
    if OPT["inv"] == 1: a("buffer_inv sc1")
    a(f"{lp}:")
    if wide:
        a(f"buffer_load_dwordx4 v[{t}:{t+3}], v{voff}, s[{FLS}:{FLS+3}], {soff} offen sc0 sc1")
    else:
        a(f"buffer_load_dwordx2 v[{t}:{t+1}], v{voff}, s[{FLS}:{FLS+3}], {soff} offen sc0 sc1")
    a("s_waitcnt vmcnt(0)")
    a(f"v_cmp_eq_u64 vcc, s[{TAG}:{TAG+1}], v[{t}:{t+1}]")
    if wide:
        a(f"v_cmp_eq_u64 s[36:37], s[{TAG}:{TAG+1}], v[{t+2}:{t+3}]")
        a("s_nop 3")
        a("s_and_b64 vcc, vcc, s[36:37]")
    else:
        a("s_nop 3")
    a(f"""
    s_cmp_eq_u64 vcc, -1
    s_cbranch_scc1 {dn}
    s_sleep 1
    s_sub_u32 s39, s39, 1
    s_cmp_lg_u32 s39, 0
    s_cbranch_scc1 {lp}
    {dn}:
    """)
    if OPT["inv"] == 2: a("buffer_inv sc1")

class G: pass
NBF = ['', ' sc1', ' sc0']

def mk(kind, **kw):
    c = G(); c.kind = kind; c.__dict__.update(kw)
    c.sk = 0
    c.pvb, c.sb, c.s35 = 8, 12, "s35"
    c.early = 0
    if kind == "wo" and OPT["xst"]: c.S = min(c.S, 4)
    if kind == "w2" and OPT["sk"]:
        c.sk = 1; c.BN = 128; c.NT = 4; c.S = 4; c.BBASE = 65536; c.full = OPT["skfull"]; c.rpg = OPT["skrpg"]; c.pstride = 512
        if OPT["eb2"]:
            c.early = 1; c.pvb, c.sb, c.s35 = 16, 52, "s41"; c.BBASE = 77824
    c.SB = c.S; c.bs0 = 0
    if kind == "wo" and OPT["deepb"]:
        c.S = 3; c.SB = 12; c.bs0 = 8; c.BBASE = 49152
    c.n = c.K // 64 // (2 if c.sk else 1)
    c.BB = c.BN * 128
    c.NBW = c.BB // 4096
    c.gmul = 4 if c.korder == "F" else 8
    c.rdrows = 16 if c.korder == "F" else 4
    c.RS = 128 if c.layout == "panel" else 448
    return c

CFG = dict(
    qkv=dict(K=1024, BN=192, NT=6, S=3, korder="N", layout="panel", wp=P_WQKV, ldb=6144, bcol=128, pstride=2048,
             a_off=None, normal_tiles=(4, 5), RX=2, CX=4, rpg=1, ABASE=0, BBASE=49152, ln=True, sid=0, lt=0, full=0, rot=0),
    wo=dict(K=1024, BN=64, NT=2, S=5, korder="F", layout="panel", wp=P_WO, ldb=2048, bcol=128, pstride=0,
            a_off=O_OFF, normal_tiles=(), RX=2, CX=4, rpg=2, ABASE=0, BBASE=114688, ln=False, sid=16, lt=0, full=1, rot=2),
    w1=dict(K=1024, BN=224, NT=7, S=3, korder="F", layout="w1", wp=P_W1, ldb=7168, bcol=448, pstride=0,
            a_off=H_OFF, normal_tiles=(), RX=2, CX=4, rpg=1, ABASE=0, BBASE=49152, ln=True, sid=24, lt=0, full=0, rot=2),
    w2=dict(K=3584, BN=64, NT=2, S=6, korder="F", layout="panel", wp=P_W2, ldb=2048, bcol=128, pstride=0,
            a_off=H1_OFF, normal_tiles=(), RX=2, CX=4, rpg=2, ABASE=0, BBASE=98304, ln=False, sid=32, lt=0, full=1, rot=0),
)

def gemm_consumer(a, c):
    kind = c.kind; n = c.n; S = c.S; NT = c.NT; RS = c.RS
    vA0, vA10, vB00, vB01, vB02, vA, vA1, vB0, vB1, vB2 = 2, 3, 4, 5, 6, 7, 8, 9, 10, 11
    vG = 12; vCH = 13
    t0, t1 = 14, 15
    ACC = 16
    FX = ACC + 16 * NT
    FSZ = 16 + 4 * NT
    if c.full: FSZ *= 2
    FY = FX + FSZ
    VTOP = FY + FSZ
    acc = lambda mt, nt: ACC + (nt * 4 + mt) * 4
    wgmap(a, c.RX, c.CX)
    T = FX
    if kind == "qkv": row_stats_issue(a, FY)
    a(f"""
    s_lshr_b32 s34, s3, 1
    s_and_b32 s35, s3, 1
    v_lshlrev_b32 v{vCH}, 4, v1
    s_lshl_b32 s30, s34, 12
    v_add_u32 v{vCH}, s30, v{vCH}
    v_lshrrev_b32 v{vG}, 4, v1
    v_bfe_u32 v{T}, v1, 2, 2
    v_and_b32 v{T+1}, 3, v1
    """)
    if c.a_off is None:
        a(f"""
        v_and_b32 v{t0}, 15, v1
        v_lshrrev_b32 v{t1}, 1, v{t0}
        v_xor_b32 v{t1}, v{t1}, v{vG}
        v_lshlrev_b32 v{t1}, 4, v{t1}
        v_lshl_add_u32 v{vA0}, v{t0}, 7, v{t1}
        s_lshl_b32 s30, s34, 13
        v_add_u32 v{vA0}, s30, v{vA0}
        v_xor_b32 v{vA10}, 64, v{vA0}
        """)
        aread = lambda mt, kg: ((vA, vA1)[kg], mt * 2048)
    else:
        a(f"v_mov_b32 v{vA0}, v{vCH}")
        aread = lambda mt, kg: (vA, kg * 8192 + mt * 1024)
    if c.layout == "panel":
        a(f"""
        v_mul_u32_u24 v{t0}, {c.gmul}, v{vG}
        v_add_u32 v{t0}, v{t0}, v{T}
        v_lshlrev_b32 v{t0}, 7, v{t0}
        v_lshl_add_u32 v{t0}, v{T+1}, 3, v{t0}
        v_lshrrev_b32 v{t1}, 1, v{T}
        v_and_b32 v{T+2}, 1, v{vG}
        v_lshl_or_b32 v{t1}, v{T+2}, 1, v{t1}
        s_lshl_b32 s30, s35, 1
        v_xor_b32 v{t1}, s30, v{t1}
        v_lshl_add_u32 v{vB00}, v{t1}, 5, v{t0}
        v_xor_b32 v{t1}, 1, v{t1}
        v_lshl_add_u32 v{vB01}, v{t1}, 5, v{t0}
        """)
        def bread(nt, kg, rd):
            return (vB0 if nt % 2 == 0 else vB1), (nt // 2) * 8192 + kg * 32 * RS + rd * c.rdrows * RS
    else:
        a(f"""
        v_mul_u32_u24 v{t0}, {c.gmul}, v{vG}
        v_add_u32 v{t0}, v{t0}, v{T}
        v_mul_u32_u24 v{t0}, {RS}, v{t0}
        v_lshl_add_u32 v{t0}, v{T+1}, 3, v{t0}
        v_and_b32 v{t1}, 1, v{vG}
        v_lshlrev_b32 v{T+2}, 5, v{t1}
        s_lshl_b32 s30, s35, 8
        v_add_u32 v{T+3}, s30, v{t0}
        v_add_u32 v{vB00}, v{T+3}, v{T+2}
        v_sub_u32 v{vB01}, v{T+3}, v{T+2}
        s_add_u32 s30, s35, 6
        v_xor_b32 v{t1}, s30, v{t1}
        v_lshl_add_u32 v{vB02}, v{t1}, 5, v{t0}
        """)
        def bread(nt, kg, rd):
            o = kg * 32 * RS + rd * c.rdrows * RS
            if nt == 6: return vB2, o
            return (vB0 if nt % 2 == 0 else vB1), o + nt * 32
    RES = VTOP
    if kind == "wo":
        srd_off(a, 20, P_X, 0, 4 * MB)
        a(f"""
        v_and_b32 v{t0}, 15, v1
        v_lshlrev_b32 v{t0}, 11, v{t0}
        v_lshl_add_u32 v{t0}, v{vG}, 3, v{t0}
        s_lshl_b32 s30, s24, 18
        s_lshl_b32 s31, s34, 17
        s_add_u32 s30, s30, s31
        s_lshl_b32 s31, s25, 7
        s_add_u32 s30, s30, s31
        s_lshl_b32 s31, s35, 6
        s_add_u32 s30, s30, s31
        """)
        def res_loads():
            for mt in range(4):
                for nt in range(2):
                    r = RES + mt * 4 + nt * 2
                    a(f"buffer_load_dwordx2 v[{r}:{r+1}], v{t0}, s[20:23], s30 offen offset:{nt*32}")
                a("s_add_u32 s30, s30, 32768")
        if not OPT["reslate"] and not OPT["xst"]: res_loads()
    if kind == "wo" and OPT["xst"]:
        a(f"""
        v_and_b32 v{t0}, 15, v1
        v_lshrrev_b32 v{t1}, 1, v{t0}
        v_lshrrev_b32 v{T}, 1, v{vG}
        s_lshl_b32 s30, s35, 2
        v_add_u32 v{T}, s30, v{T}
        v_xor_b32 v{t1}, v{t1}, v{T}
        v_lshlrev_b32 v{t1}, 4, v{t1}
        v_lshl_add_u32 v{t1}, v{t0}, 7, v{t1}
        v_and_b32 v{T}, 1, v{vG}
        v_lshl_add_u32 v{t1}, v{T}, 3, v{t1}
        s_lshl_b32 s30, s34, 13
        s_add_u32 s30, s30, {XST}
        v_add_u32 v{t1}, s30, v{t1}
        v_xor_b32 v{t0}, 32, v{t1}
        """)
        for mt in range(4):
            for nt in range(2):
                r = RES + mt * 4 + nt * 2
                a(f"ds_read_b64 v[{r}:{r+1}], v{t0 if nt else t1} offset:{mt*2048}")
    for i in range(16 * NT):
        a(f"v_mov_b32 v{ACC+i}, 0")
    abases = [(vA, vA0)] + ([(vA1, vA10)] if c.a_off is None else [])
    bbases = [(vB0, vB00), (vB1, vB01)] + ([(vB2, vB02)] if c.layout != "panel" else [])
    a(f"s_mov_b32 s27, {c.ABASE}")
    a(f"s_mov_b32 s32, {c.BBASE + c.bs0*c.BB}")
    setb = [f"v_add_u32 v{x}, s27, v{y}" for x, y in abases] + [f"v_add_u32 v{x}, s32, v{y}" for x, y in bbases]
    for x in setb: a(x)
    RT = OPT["sktail"] if (c.sk and not c.full) else 0
    W1T = kind == "w1" and OPT["w1t"]
    a(f"s_mov_b32 s26, {n - 2 if W1T else (n - 1 if (c.ln and OPT['peel']) else n - RT)}")
    def reads(F, kg, tiles=None):
        r = []
        tiles = list(range(NT)) if tiles is None else tiles
        for nt in tiles:
            for rd in range(2):
                b, o = bread(nt, kg, rd)
                d = F + 16 + nt * 4 + rd * 2
                r.append(f"ds_read_b64_tr_b16 v[{d}:{d+1}], v{b} offset:{o}")
            if nt == tiles[0]:
                for mt in range(4):
                    d = F + mt * 4
                    b, o = aread(mt, kg)
                    r.append(f"ds_read_b128 v[{d}:{d+3}], v{b} offset:{o}")
        return r
    def mfmas(F, tiles=None):
        m = []
        for nt in (range(NT) if tiles is None else tiles):
            for mt in (range(4) if (nt % 2 == 0 or not OPT["snake"]) else range(3, -1, -1)):
                A = F + mt * 4; B = F + 16 + nt * 4; D = acc(mt, nt)
                if nt in c.normal_tiles:
                    m.append(f"v_mfma_f32_16x16x32_bf16 v[{D}:{D+3}], v[{A}:{A+3}], v[{B}:{B+3}], v[{D}:{D+3}]")
                else:
                    m.append(f"v_mfma_f32_16x16x32_bf16 v[{D}:{D+3}], v[{B}:{B+3}], v[{A}:{A+3}], v[{D}:{D+3}]")
        return m
    loop = a.label("c_loop")
    if kind == "qkv": row_stats_finish(a, FY, FX)
    stamp(a, c.sid)
    a("s_barrier")
    hold(a, "h_" + kind)
    stamp(a, c.sid + 1)
    adv = [f"s_add_u32 s27, s27, 16384", f"s_add_u32 s32, s32, {c.BB}", f"s_cmp_eq_u32 s27, {c.ABASE + S*16384}",
           f"s_cselect_b32 s27, {c.ABASE}, s27"] + ([f"s_cmp_eq_u32 s32, {c.BBASE + c.SB*c.BB}"] if c.SB != S else []) + [f"s_cselect_b32 s32, {c.BBASE}, s32"] + setb
    def pk4(t, p0, p1):
        a(f"v_cvt_pk_bf16_f32 v{t}, v{p0}, v{p0+1}")
        a(f"v_cvt_pk_bf16_f32 v{t+1}, v{p0+2}, v{p0+3}")
        a(f"v_cvt_pk_bf16_f32 v{t+2}, v{p1}, v{p1+1}")
        a(f"v_cvt_pk_bf16_f32 v{t+3}, v{p1+2}, v{p1+3}")
    vX = VTOP + 4
    def sk_send():
        srd_off(a, 20, P_WS, XP_OFF, 8 * MB)
        a(f"""
        s_lshl_b32 s30, s24, 19
        s_lshl_b32 s31, s3, 13
        s_add_u32 s30, s30, s31
        s_lshl_b32 s31, s25, 15
        s_add_u32 s33, s30, s31
        s_xor_b32 s31, s31, {4 << 15}
        s_add_u32 s37, s30, s31
        v_lshlrev_b32 v{vX}, 4, v1
        """)
        for mt in range(4):
            t = acc(mt, 2)
            pk4(t, acc(mt, 2), acc(mt, 3))
            a(f"buffer_store_dwordx4 v[{t}:{t+3}], v{vX}, s[20:23], s33 offen offset:{mt*1024} sc0 sc1")
    def epi_setup():
        b = Asm(); r = []
        if kind == "qkv":
            REC, CSQ, MV, RV, CSV = T, T + 16, VTOP, VTOP + 16, VTOP + 32
            b(f"""
            v_and_b32 v{t0}, 15, v1
            v_lshlrev_b32 v{vA}, 4, v{t0}
            s_lshl_b32 s30, s34, 10
            s_add_u32 s30, s30, {ST_REC}
            v_add_u32 v{vA}, s30, v{vA}
            v_lshlrev_b32 v{vA1}, 4, v{vG}
            s_lshl_b32 s30, s35, 7
            s_add_u32 s30, s30, {ST_CS}
            v_add_u32 v{vB0}, s30, v{vA1}
            v_lshlrev_b32 v{vB1}, 2, v{t0}
            v_add_u32 v{vB1}, s30, v{vB1}
            s_lshl_b32 s30, s34, 8
            s_add_u32 s30, s30, {ST_MEAN}
            v_add_u32 v{vA1}, s30, v{vA1}
            """)
            srd_off(b, 16, P_WS, K_OFF, 8 * MB)
            b(f"""
            s_lshl_b32 s30, s25, 1
            s_add_u32 s30, s30, s35
            s_lshl_b32 s30, s30, 17
            s_lshl_b32 s31, s24, 13
            s_add_u32 s30, s30, s31
            s_add_u32 s31, s30, {4*MB}
            s_mul_i32 s33, s35, {HEADW}
            v_add_u32 v{vB2}, s33, v{vCH}
            """)
            for mt in range(4):
                r.append(f"ds_read_b128 v[{REC+4*mt}:{REC+4*mt+3}], v{vA} offset:{mt*256}")
            for nt in range(4):
                r.append(f"ds_read_b128 v[{CSQ+4*nt}:{CSQ+4*nt+3}], v{vB0} offset:{(nt//2)*256 + (nt%2)*64}")
            for mt in range(4):
                r.append(f"ds_read_b128 v[{MV+4*mt}:{MV+4*mt+3}], v{vA1} offset:{mt*64}")
                r.append(f"ds_read_b128 v[{RV+4*mt}:{RV+4*mt+3}], v{vA1} offset:{512 + mt*64}")
            for dt in range(2):
                r.append(f"ds_read_b32 v{CSV+2*dt}, v{vB1} offset:{512 + dt*64}")
        else:
            CSR = T; REC = T + 28
            srd_off(b, 16, P_WS, H1_OFF, 14 * MB)
            b(f"""
            v_and_b32 v{t0}, 15, v1
            v_lshlrev_b32 v{vA}, 4, v{t0}
            s_lshl_b32 s30, s34, 10
            s_add_u32 s30, s30, {ST_REC}
            v_add_u32 v{vA}, s30, v{vA}
            v_lshlrev_b32 v{t1}, 4, v{vG}
            s_lshl_b32 s30, s35, 9
            s_add_u32 s30, s30, {ST_CS}
            v_add_u32 v{vB0}, s30, v{t1}
            s_lshl_b32 s30, s35, 6
            s_add_u32 s30, s30, {ST_CS}
            v_add_u32 v{vB1}, s30, v{t1}
            s_mul_i32 s30, s24, {112*8192}
            s_mul_i32 s31, s25, {7*8192}
            s_add_u32 s30, s30, s31
            s_add_u32 s36, s30, {3*8192}
            s_lshl_b32 s31, s35, 15
            s_add_u32 s30, s30, s31
            s_add_u32 s31, s30, 8192
            s_add_u32 s37, s30, 16384
            s_lshl_b32 s33, s35, 3
            s_add_u32 s33, s33, {XCH}
            v_add_u32 v{vB2}, s33, v{vCH}
            """)
            for mt in range(4):
                r.append(f"ds_read_b128 v[{REC+4*mt}:{REC+4*mt+3}], v{vA} offset:{mt*256}")
            r.append(f"ds_read_b128 v[{CSR+24}:{CSR+27}], v{vB1} offset:{6*64}")
            for nt in range(6):
                r.append(f"ds_read_b128 v[{CSR+4*nt}:{CSR+4*nt+3}], v{vB0} offset:{nt*64}")
        return [x.strip() for x in b.lines], r
    peel = c.ln and OPT["peel"] and not W1T
    def silu_l(mt, nt, e, m, cs):
        p = acc(mt, nt); o = []
        for h in range(2):
            o.append(f"v_pk_fma_f32 v[{p+2*h}:{p+2*h+1}], v[{m}:{m+1}], v[{cs+2*h}:{cs+2*h+1}], v[{p+2*h}:{p+2*h+1}] op_sel_hi:[0,1,1] neg_lo:[1,0,0] neg_hi:[1,0,0]")
        for h in range(2):
            o.append(f"v_pk_mul_f32 v[{e+2*h}:{e+2*h+1}], v[{m}:{m+1}], v[{p+2*h}:{p+2*h+1}] op_sel:[1,0] op_sel_hi:[1,1]")
        for r in range(4): o.append(f"v_exp_f32 v{e+r}, v{e+r}")
        for h in range(2):
            o.append(f"v_pk_fma_f32 v[{e+2*h}:{e+2*h+1}], v[{e+2*h}:{e+2*h+1}], v[{m+2}:{m+3}], v[{m+2}:{m+3}]")
        for r in range(4): o.append(f"v_rcp_f32 v{e+r}, v{e+r}")
        for h in range(2):
            o.append(f"v_pk_mul_f32 v[{p+2*h}:{p+2*h+1}], v[{p+2*h}:{p+2*h+1}], v[{e+2*h}:{e+2*h+1}]")
        return o
    NI = n // 2 if c.full else n - RT
    def w2hook_c():
        if kind == "wo" and OPT["reslate"]:
            back = a.label("woback"); late = a.label("wolate")
            a(f"s_cmp_eq_u32 s26, {OPT['reslate']}")
            a(f"s_cbranch_scc1 {late}")
            a(f"{back}:")
            def ool():
                a(f"{late}:")
                res_loads()
                a(f"s_branch {back}")
            c.ool = ool
        if kind == "w2":
            back = a.label("w2back"); early = a.label("w2early")
            a(f"s_cmp_ge_u32 s26, {NI - OPT['sigB']}")
            a(f"s_cbranch_scc1 {early}")
            a(f"{back}:")
            def ool():
                a(f"{early}:")
                nst = OPT["dper"]
                its = 8 // nst if OPT["defer"] else 0
                for it in range(its):
                    nx = a.label("skip_e")
                    a(f"s_cmp_lg_u32 s26, {NI - it - OPT['dstart']}")
                    a(f"s_cbranch_scc1 {nx}")
                    for k in range(it * nst, it * nst + nst):
                        r = DEF + k * 4
                        a(f"buffer_store_dwordx4 v[{r}:{r+3}], v{vCH}, s[16:19], {'s44' if k < 4 else 's45'} offen offset:{(k%4)*1024} sc0 sc1")
                    a(f"s_branch {back}")
                    a(f"{nx}:")
                a(f"s_cmp_lg_u32 s26, {NI - OPT['sigB']}")
                a(f"s_cbranch_scc1 {back}")
                signal(a, 3, 2, VTOP, rbj=("s42", "s43"))
                a(f"s_branch {back}")
            c.ool = ool

    if c.full:
        H = FSZ // 2
        rd2 = lambda F: reads(F, 0) + reads(F + H, 1)
        mf2 = lambda F: mfmas(F) + mfmas(F + H)
        a(f"s_mov_b32 s26, {n//2}")
        for r in rd2(FX): a(r)
        for x in adv: a(x)
        if kind == "wo" and OPT["owno"] == 2:
            a("s_waitcnt lgkmcnt(0)")
            for x in mf2(FX): a(x)
            a("s_barrier")
            for r in rd2(FY) + adv: a(r)
            a("s_waitcnt lgkmcnt(0)")
            a("s_barrier")
            for x in interleave(mf2(FY), rd2(FX) + adv, 0, 1, c.rpg): a(x)
            a("s_sub_u32 s26, s26, 1")
        if OPT["align"]: a(f".p2align {OPT['align']}")
        a(f"{loop}:")
        w2hook_c()
        a("s_waitcnt lgkmcnt(0)")
        a("s_barrier")
        for x in interleave(mf2(FX), rd2(FY) + adv, 0, 1, c.rpg): a(x)
        a("s_waitcnt lgkmcnt(0)")
        a("s_barrier")
        for x in interleave(mf2(FY), rd2(FX) + adv + ["s_sub_u32 s26, s26, 1", "s_cmp_lg_u32 s26, 0"], 0, 1, c.rpg): a(x)
        a(f"s_cbranch_scc1 {loop}")
        a("s_waitcnt lgkmcnt(0)")
    else:
        for r in reads(FX, 0): a(r)
        if kind == "w1" and OPT["own1"]:
            a("s_waitcnt lgkmcnt(0)")
            for x in interleave(mfmas(FX), reads(FY, 1) + adv, 0, 1, c.rpg): a(x)
            a("s_waitcnt lgkmcnt(0)")
            m_ = mfmas(FY); kb_ = len(m_) - OPT["own1"]
            for x in m_[:kb_]: a(x)
            a("s_barrier")
            for x in interleave(m_[kb_:], reads(FX, 0), 0, 1, 2): a(x)
            a("s_sub_u32 s26, s26, 1")
        if OPT["align"]: a(f".p2align {OPT['align']}")
        a(f"{loop}:")
        w2hook_c()
        a("s_waitcnt lgkmcnt(0)")
        for x in interleave(mfmas(FX), reads(FY, 1) + adv, 0, 1, c.rpg): a(x)
        a("s_waitcnt lgkmcnt(0)")
        a("s_barrier")
        for x in interleave(mfmas(FY), reads(FX, 0) + ["s_sub_u32 s26, s26, 1", "s_cmp_lg_u32 s26, 0"], 0, 1, c.rpg): a(x)
        a(f"s_cbranch_scc1 {loop}")
        a("s_waitcnt lgkmcnt(0)")
        if W1T:
            RECT = 216
            def setst1(st):
                return [f"v_add_u32 v{x}, {c.ABASE + (st % S)*16384}, v{y}" for x, y in abases] + [f"v_add_u32 v{x}, {c.BBASE + (st % S)*c.BB}, v{y}" for x, y in bbases]
            G1 = [0, 1]; G2 = [2, 3, 4, 5, 6]
            b_ = Asm()
            srd_off(b_, 16, P_WS, H1_OFF, 14 * MB)
            b_(f"""
            v_and_b32 v{t0}, 15, v1
            v_lshlrev_b32 v{vA1}, 4, v{t0}
            s_lshl_b32 s30, s34, 10
            s_add_u32 s30, s30, {ST_REC}
            v_add_u32 v{vA1}, s30, v{vA1}
            v_lshlrev_b32 v{t1}, 4, v{vG}
            s_lshl_b32 s30, s35, 9
            s_add_u32 s30, s30, {ST_CS}
            v_add_u32 v{vA10}, s30, v{t1}
            s_lshl_b32 s30, s35, 6
            s_add_u32 s30, s30, {ST_CS}
            v_add_u32 v{t1}, s30, v{t1}
            s_mul_i32 s30, s24, {112*8192}
            s_mul_i32 s31, s25, {7*8192}
            s_add_u32 s30, s30, s31
            s_add_u32 s36, s30, {3*8192}
            s_lshl_b32 s31, s35, 15
            s_add_u32 s30, s30, s31
            s_add_u32 s31, s30, 8192
            s_add_u32 s37, s30, 16384
            """)
            alu = [x.strip() for x in b_.lines]
            for x in interleave(mfmas(FX), reads(FY, 1, G1) + alu, 0, 1, 1): a(x)
            a("s_waitcnt lgkmcnt(0)")
            for x in setst1(15): a(x)
            a("s_barrier")
            for x in interleave(mfmas(FY, G1), reads(FX, 0, G1), 0, 1, 1): a(x)
            a("s_waitcnt lgkmcnt(0)")
            for x in interleave(mfmas(FX, G1), reads(FY, 1, G1), 0, 1, 1): a(x)
            a("s_waitcnt lgkmcnt(0)")
            a("s_barrier")
            rX = [r for r in reads(FX, 0, G2) if "tr_b16" in r]
            st_ = [f"ds_read_b128 v[{RECT+4*mt}:{RECT+4*mt+3}], v{vA1} offset:{mt*256}" for mt in range(4)]
            st_ += [f"ds_read_b128 v[{FX+16+4*nt}:{FX+19+4*nt}], v{vA10} offset:{nt*64}" for nt in range(2)]
            for x in interleave(mfmas(FY, G1), rX + st_, 0, 1, 2): a(x)
            a("s_waitcnt lgkmcnt(0)")
            stamp(a, 50)
            ep = []
            for mt in range(4):
                ep += silu_l(mt, 0, FY + 16, RECT + 4 * mt, FX + 16) + silu_l(mt, 1, FY + 20, RECT + 4 * mt, FX + 20)
                p0 = acc(mt, 0); p1 = acc(mt, 1)
                ep += [f"v_cvt_pk_bf16_f32 v{p0}, v{p0}, v{p0+1}", f"v_cvt_pk_bf16_f32 v{p0+1}, v{p0+2}, v{p0+3}",
                       f"v_cvt_pk_bf16_f32 v{p0+2}, v{p1}, v{p1+1}", f"v_cvt_pk_bf16_f32 v{p0+3}, v{p1+2}, v{p1+3}",
                       f"buffer_store_dwordx4 v[{p0}:{p0+3}], v{vCH}, s[16:19], s30 offen offset:{mt*1024} sc0 sc1"]
            k3 = len(ep) // 3
            rY = [r for r in reads(FY, 1, G2) if "tr_b16" in r]
            def mix(m, rd_, e_):
                out = []; ne = len(e_); nm = len(m); ei = 0
                for i, x in enumerate(m):
                    out.append(x)
                    if i < len(rd_): out.append(rd_[i])
                    tgt = (ne * (i + 1)) // nm
                    while ei < tgt: out.append(e_[ei]); ei += 1
                return out + rd_[nm:]
            for x in mix(mfmas(FX, G2), rY, ["s_nop 3"] + ep[:k3]): a(x)
            a("s_waitcnt lgkmcnt(0)")
            for x in setst1(14): a(x)
            for x in mix(mfmas(FY, G2), reads(FX, 1, G2), ep[k3:2*k3]): a(x)
            a("s_waitcnt lgkmcnt(0)")
            cs_ = [f"ds_read_b128 v[{FY+4*(nt-2)}:{FY+4*(nt-2)+3}], v{vA10} offset:{nt*64}" for nt in range(2, 6)]
            cs_.append(f"ds_read_b128 v[{FY+24}:{FY+27}], v{t1} offset:{6*64}")
            for x in mix(mfmas(FX, G2), ["s_nop 0"] * 2 + cs_, ep[2*k3:]): a(x)
        if RT:
            def setst(st):
                return [f"v_add_u32 v{x}, {c.ABASE + (st % S)*16384}, v{y}" for x, y in abases] + [f"v_add_u32 v{x}, {c.BBASE + (st % S)*c.BB}, v{y}" for x, y in bbases]
            items = [(st, kg, [2, 3]) for st in range(n - RT, n) for kg in range(2)] + [(st, kg, [0, 1]) for st in range(n - RT, n) for kg in range(2)]
            sets = [FX, FY]
            for i, (st, kg, tl) in enumerate(items):
                cur = sets[i % 2]; nxt = sets[(i + 1) % 2]
                fill_ = []
                if i + 1 < len(items):
                    st2_, kg2, tl2 = items[i + 1]
                    if st2_ != st:
                        for x in setst(st2_): a(x)
                        if i + 1 < 2 * RT: a("s_barrier")
                    fill_ = reads(nxt, kg2, tl2)
                for x in interleave(mfmas(cur, tl), fill_, 0, 1, 1): a(x)
                if i == 2 * RT - 1:
                    stamp(a, c.sid + 2)
                    a("s_barrier")
                    sk_send()
                if i == 2 * RT + OPT["sksig"]:
                    signal(a, 6, 2, VTOP)
                    stamp(a, 47)
                a("s_waitcnt lgkmcnt(0)")
        if peel:
            for x in interleave(mfmas(FX), reads(FY, 1), 0, 1, c.rpg): a(x)
            a("s_waitcnt lgkmcnt(0)")
            alu, rds = epi_setup()
            m = mfmas(FY)
            if kind == "qkv": m = m[8:16] + m[16:] + m[:8]
            kb = len(m) - OPT["peel"]
            for x in interleave(m[:kb], alu, 0, 1, 2): a(x)
            a("s_barrier")
            for x in interleave(m[kb:], rds, 0, 1, 2): a(x)
    if not RT: stamp(a, c.sid + 2)
    def pk4_unused(t, p0, p1):
        a(f"v_cvt_pk_bf16_f32 v{t}, v{p0}, v{p0+1}")
        a(f"v_cvt_pk_bf16_f32 v{t+1}, v{p0+2}, v{p0+3}")
        a(f"v_cvt_pk_bf16_f32 v{t+2}, v{p1}, v{p1+1}")
        a(f"v_cvt_pk_bf16_f32 v{t+3}, v{p1+2}, v{p1+3}")
    if kind == "qkv":
        REC, CSQ, MV, RV, CSV = T, T + 16, VTOP, VTOP + 16, VTOP + 32
        if not peel:
            for x in sum(epi_setup(), []): a(x)
        a("s_waitcnt lgkmcnt(10)")
        def fold_sw(mt, nt):
            p = acc(mt, nt); m = REC + 4 * mt; cs = CSQ + 4 * nt
            for h in range(2):
                a(f"v_pk_fma_f32 v[{p+2*h}:{p+2*h+1}], v[{m}:{m+1}], v[{cs+2*h}:{cs+2*h+1}], v[{p+2*h}:{p+2*h+1}] op_sel_hi:[0,1,1] neg_lo:[1,0,0] neg_hi:[1,0,0]")
            for h in range(2):
                a(f"v_pk_mul_f32 v[{p+2*h}:{p+2*h+1}], v[{m}:{m+1}], v[{p+2*h}:{p+2*h+1}] op_sel:[1,0] op_sel_hi:[1,1]")
        for mt in range(4):
            fold_sw(mt, 2); fold_sw(mt, 3)
            t = acc(mt, 2); pk4(t, acc(mt, 2), acc(mt, 3))
            st2(a, f"buffer_store_dwordx4 v[{t}:{t+3}], v{vCH}, s[16:19], s30 offen offset:{mt*1024}")
            a(f"ds_write_b128 v{vB2}, v[{t}:{t+3}] offset:{16384 + mt*1024}")
        a("s_waitcnt lgkmcnt(4)")
        for mp in range(2):
            for dt in range(2):
                for mt in (2 * mp, 2 * mp + 1):
                    p = acc(mt, 4 + dt)
                    sel = "op_sel_hi:[1,0,1]"
                    for h in range(2):
                        a(f"v_pk_fma_f32 v[{p+2*h}:{p+2*h+1}], v[{MV+4*mt+2*h}:{MV+4*mt+2*h+1}], v[{CSV+2*dt}:{CSV+2*dt+1}], v[{p+2*h}:{p+2*h+1}] {sel} neg_lo:[1,0,0] neg_hi:[1,0,0]")
                    for h in range(2):
                        a(f"v_pk_mul_f32 v[{p+2*h}:{p+2*h+1}], v[{RV+4*mt+2*h}:{RV+4*mt+2*h+1}], v[{p+2*h}:{p+2*h+1}]")
                t = acc(2 * mp, 4 + dt); pk4(t, acc(2 * mp, 4 + dt), acc(2 * mp + 1, 4 + dt))
                st2(a, f"buffer_store_dwordx4 v[{t}:{t+3}], v{vCH}, s[16:19], s31 offen offset:{(2*mp+dt)*1024}")
                a(f"ds_write_b128 v{vB2}, v[{t}:{t+3}] offset:{24576 + 16384 + (2*mp+dt)*1024}")
        for mt in range(4):
            fold_sw(mt, 0); fold_sw(mt, 1)
            t = acc(mt, 0); pk4(t, acc(mt, 0), acc(mt, 1))
            a(f"ds_write_b128 v{vB2}, v[{t}:{t+3}] offset:{49152 + mt*1024}")
        stamp(a, c.sid + 3)
        signal(a, 0, 2, T, True)
        stamp(a, c.sid + 4)
        a("s_waitcnt lgkmcnt(0)")
    elif kind == "wo":
        srd_off(a, 16, P_WS, H_OFF, 4 * MB)
        a(f"""
        s_lshl_b32 s30, s24, 18
        s_lshl_b32 s31, s25, 14
        s_add_u32 s30, s30, s31
        s_lshl_b32 s31, s35, 13
        s_add_u32 s30, s30, s31
        s_mov_b32 s36, 0xffff0000
        s_waitcnt vmcnt(0) lgkmcnt(0)
        """)
        for mt in range(4):
            for nt in range(2):
                r = RES + mt * 4 + nt * 2; p = acc(mt, nt)
                for d in range(2):
                    a(f"v_lshlrev_b32 v{T}, 16, v{r+d}")
                    a(f"v_and_b32 v{T+1}, s36, v{r+d}")
                    a(f"v_pk_add_f32 v[{p+2*d}:{p+2*d+1}], v[{p+2*d}:{p+2*d+1}], v[{T}:{T+1}]")
            t = HRES + mt * 4
            pk4(t, acc(mt, 0), acc(mt, 1))
            a(f"buffer_store_dwordx4 v[{t}:{t+3}], v{vCH}, s[16:19], s30 offen offset:{mt*1024} sc0 sc1")
            if OPT["own1"]:
                if mt == 0: a(f"s_lshl_b32 s33, s35, 13\nv_add_u32 v{vA}, s33, v{vCH}")
                a(f"ds_write_b128 v{vA}, v[{t}:{t+3}] offset:{mt*1024}")
        SS = T + 4
        for mt in range(4):
            p0 = acc(mt, 0); p1 = acc(mt, 1)
            s_, q_ = SS + 2 * mt, SS + 2 * mt + 1
            a(f"v_pk_add_f32 v[{T}:{T+1}], v[{p0}:{p0+1}], v[{p0+2}:{p0+3}]")
            a(f"v_pk_mul_f32 v[{T+2}:{T+3}], v[{p0}:{p0+1}], v[{p0}:{p0+1}]")
            a(f"v_pk_add_f32 v[{T}:{T+1}], v[{T}:{T+1}], v[{p1}:{p1+1}]")
            a(f"v_pk_fma_f32 v[{T+2}:{T+3}], v[{p0+2}:{p0+3}], v[{p0+2}:{p0+3}], v[{T+2}:{T+3}]")
            a(f"v_pk_add_f32 v[{T}:{T+1}], v[{T}:{T+1}], v[{p1+2}:{p1+3}]")
            a(f"v_pk_fma_f32 v[{T+2}:{T+3}], v[{p1}:{p1+1}], v[{p1}:{p1+1}], v[{T+2}:{T+3}]")
            a(f"v_pk_fma_f32 v[{T+2}:{T+3}], v[{p1+2}:{p1+3}], v[{p1+2}:{p1+3}], v[{T+2}:{T+3}]")
            a(f"v_add_f32 v{s_}, v{T}, v{T+1}")
            a(f"v_add_f32 v{q_}, v{T+2}, v{T+3}")
        for mt in range(4):
            s_, q_ = SS + 2 * mt, SS + 2 * mt + 1
            a(f"v_permlane32_swap_b32 v{s_}, v{q_}")
            a(f"v_add_f32 v{s_}, v{s_}, v{q_}")
        srd_off(a, 20, P_WS, ST2_OFF, 16 * 32768)
        a(f"""
        v_and_b32 v{t0}, 31, v1
        v_lshlrev_b32 v{t0}, 2, v{t0}
        v_lshrrev_b32 v{t1}, 5, v1
        v_lshl_add_u32 v{t0}, v{t1}, 9, v{t0}
        s_lshl_b32 s30, s24, 15
        s_lshl_b32 s31, s25, 11
        s_add_u32 s30, s30, s31
        s_lshl_b32 s31, s35, 10
        s_add_u32 s30, s30, s31
        s_lshl_b32 s31, s34, 8
        s_add_u32 s30, s30, s31
        """)
        for mp in range(2):
            x0 = SS + 4 * mp; x1 = SS + 4 * mp + 2
            a(f"v_permlane16_swap_b32 v{x0}, v{x1}")
            a(f"v_add_f32 v{x0}, v{x0}, v{x1}")
            a(f"buffer_store_dword v{x0}, v{t0}, s[20:23], s30 offen offset:{mp*128} sc0 sc1")
        stamp(a, c.sid + 3)
        if OPT["wobar"] in (1, 2): a("s_barrier")
        signal(a, 2, 2, T)
        if OPT["wobar"] == 3: a("s_barrier")
        a("s_waitcnt lgkmcnt(0)")
        stamp(a, c.sid + 4)
    elif kind == "w1" and W1T:
        RECT = 216; E = FY + 16
        csr = lambda nt: (FY + 24) if nt == 6 else FY + 4 * (nt - 2)
        soffs = ["s30", "s31", "s37"]
        signal(a, 0, 2, FX, False, 0, True)
        stamp(a, 45)
        a("s_waitcnt lgkmcnt(0)")
        a("s_barrier")
        stamp(a, 46)
        a(f"""
        s_lshl_b32 s33, s35, 13
        v_add_u32 v{vA}, s33, v{vCH}
        s_lshl_b32 s33, s35, 3
        s_add_u32 s33, s33, {XCH}
        v_add_u32 v{vB2}, s33, v{vCH}
        """)
        for mt in range(4):
            p0 = acc(mt, 0)
            a(f"ds_write_b128 v{vA}, v[{p0}:{p0+3}] offset:{mt*1024}")
        def pair(q, mt):
            for x in silu_l(mt, 2 * q, E, RECT + 4 * mt, csr(2 * q)) + silu_l(mt, 2 * q + 1, E + 4, RECT + 4 * mt, csr(2 * q + 1)): a(x)
            p0 = acc(mt, 2 * q)
            pk4(p0, p0, acc(mt, 2 * q + 1))
            a(f"buffer_store_dwordx4 v[{p0}:{p0+3}], v{vCH}, s[16:19], {soffs[q]} offen offset:{mt*1024} sc0 sc1")
            a(f"ds_write_b128 v{vA}, v[{p0}:{p0+3}] offset:{q*16384 + mt*1024}")
        for mt in range(4): pair(1, mt)
        stamp(a, 42)
        for mt in range(4):
            for x in silu_l(mt, 6, E + (mt % 2) * 4, RECT + 4 * mt, csr(6)): a(x)
            p = acc(mt, 6)
            a(f"v_cvt_pk_bf16_f32 v{p}, v{p}, v{p+1}")
            a(f"v_cvt_pk_bf16_f32 v{p+1}, v{p+2}, v{p+3}")
            a(f"ds_write_b64 v{vB2}, v[{p}:{p+1}] offset:{mt*1024}")
        a("s_waitcnt lgkmcnt(0)")
        stamp(a, 40)
        a("s_barrier")
        stamp(a, 41)
        a(f"""
        s_lshl_b32 s33, s35, 11
        v_add_u32 v{vB2}, s33, v{vCH}
        v_add_u32 v{vB1}, {XCH}, v{vB2}
        ds_read_b128 v[{acc(0,6)}:{acc(0,6)+3}], v{vB1}
        ds_read_b128 v[{acc(1,6)}:{acc(1,6)+3}], v{vB1} offset:1024
        """)
        pair(2, 0)
        a("s_waitcnt lgkmcnt(0)")
        a(f"buffer_store_dwordx4 v[{acc(0,6)}:{acc(0,6)+3}], v{vB2}, s[16:19], s36 offen sc0 sc1")
        a(f"buffer_store_dwordx4 v[{acc(1,6)}:{acc(1,6)+3}], v{vB2}, s[16:19], s36 offen offset:1024 sc0 sc1")
        for mt in range(1, 4): pair(2, mt)
        stamp(a, 43)
        stamp(a, c.sid + 3)
        a("s_waitcnt lgkmcnt(0)")
        a("s_mov_b32 s42, s24\ns_mov_b32 s43, s25")
        stamp(a, c.sid + 4)
    elif kind == "w1":
        CSR = T; REC = T + 28; E = T + 44
        if not peel:
            for x in sum(epi_setup(), []): a(x)
        a("s_waitcnt lgkmcnt(0)")
        soffs = ["s30", "s31", "s37"]
        def silu(mt, nt, e):
            p = acc(mt, nt); m = REC + 4 * mt; cs = CSR + 4 * nt
            for h in range(2):
                a(f"v_pk_fma_f32 v[{p+2*h}:{p+2*h+1}], v[{m}:{m+1}], v[{cs+2*h}:{cs+2*h+1}], v[{p+2*h}:{p+2*h+1}] op_sel_hi:[0,1,1] neg_lo:[1,0,0] neg_hi:[1,0,0]")
            for h in range(2):
                a(f"v_pk_mul_f32 v[{e+2*h}:{e+2*h+1}], v[{m}:{m+1}], v[{p+2*h}:{p+2*h+1}] op_sel:[1,0] op_sel_hi:[1,1]")
            for r in range(4):
                a(f"v_exp_f32 v{e+r}, v{e+r}")
            for h in range(2):
                a(f"v_pk_fma_f32 v[{e+2*h}:{e+2*h+1}], v[{e+2*h}:{e+2*h+1}], v[{m+2}:{m+3}], v[{m+2}:{m+3}]")
            for r in range(4):
                a(f"v_rcp_f32 v{e+r}, v{e+r}")
            for h in range(2):
                a(f"v_pk_mul_f32 v[{p+2*h}:{p+2*h+1}], v[{p+2*h}:{p+2*h+1}], v[{e+2*h}:{e+2*h+1}]")
        def pair(q, mt):
            silu(mt, 2 * q, E); silu(mt, 2 * q + 1, E + 4)
            p0 = acc(mt, 2 * q)
            pk4(p0, p0, acc(mt, 2 * q + 1))
            a(f"buffer_store_dwordx4 v[{p0}:{p0+3}], v{vCH}, s[16:19], {soffs[q]} offen offset:{mt*1024} sc0 sc1")
            if OPT["own"]: a(f"ds_write_b128 v{vA}, v[{p0}:{p0+3}] offset:{q*16384 + mt*1024}")
        if OPT["own"]:
            a(f"s_lshl_b32 s33, s35, 13")
            a(f"v_add_u32 v{vA}, s33, v{vCH}")
        for mt in range(4): pair(0, mt)
        stamp(a, 42)
        for mt in range(4):
            silu(mt, 6, E + (mt % 2) * 4)
            p = acc(mt, 6)
            a(f"v_cvt_pk_bf16_f32 v{p}, v{p}, v{p+1}")
            a(f"v_cvt_pk_bf16_f32 v{p+1}, v{p+2}, v{p+3}")
            a(f"ds_write_b64 v{vB2}, v[{p}:{p+1}] offset:{mt*1024}")
        a("s_waitcnt lgkmcnt(0)")
        stamp(a, 40)
        a("s_barrier")
        stamp(a, 41)
        a(f"""
        s_lshl_b32 s33, s35, 11
        v_add_u32 v{vB2}, s33, v{vCH}
        v_add_u32 v{vB1}, {XCH}, v{vB2}
        ds_read_b128 v[{acc(0,6)}:{acc(0,6)+3}], v{vB1}
        ds_read_b128 v[{acc(1,6)}:{acc(1,6)+3}], v{vB1} offset:1024
        """)
        pair(1, 0)
        a("s_waitcnt lgkmcnt(0)")
        a(f"buffer_store_dwordx4 v[{acc(0,6)}:{acc(0,6)+3}], v{vB2}, s[16:19], s36 offen sc0 sc1")
        a(f"buffer_store_dwordx4 v[{acc(1,6)}:{acc(1,6)+3}], v{vB2}, s[16:19], s36 offen offset:1024 sc0 sc1")
        for mt in range(1, 4): pair(1, mt)
        stamp(a, 43)
        k2 = OPT["sigA2"]
        for mt in range(k2): pair(2, mt)
        signal(a, 0, 2, acc(2, 6), False, 3 + k2, True)
        stamp(a, 45)
        if OPT["bar2"] == 0: a("s_barrier")
        stamp(a, 46)
        for mt in range(k2, 4): pair(2, mt)
        stamp(a, c.sid + 3)
        if OPT["bar2"] == 1: a("s_barrier")
        if OPT["own"]: a("s_waitcnt lgkmcnt(0)")
        a("s_mov_b32 s42, s24\ns_mov_b32 s43, s25\ns_mov_b32 s44, s31\ns_mov_b32 s45, s37")
        stamp(a, c.sid + 4)
    elif kind == "w2":
        XR = T + 32
        if c.sk and not RT:
            sk_send()
            signal(a, 6, 2, T)
            stamp(a, 47)
        srd_off(a, 16, P_OUT, 0, 4 * MB)
        a(f"""
        v_and_b32 v{t0}, 15, v1
        v_lshlrev_b32 v{t0}, 11, v{t0}
        v_and_b32 v{t1}, 1, v{vG}
        v_lshl_add_u32 v{t0}, v{t1}, 5, v{t0}
        v_lshrrev_b32 v{t1}, 1, v{vG}
        v_lshl_add_u32 v{t0}, v{t1}, 4, v{t0}
        s_lshl_b32 s30, s24, 18
        s_lshl_b32 s31, s34, 17
        s_add_u32 s30, s30, s31
        s_lshl_b32 s31, s25, 7
        s_add_u32 s30, s30, s31
        s_lshl_b32 s31, s35, 6
        s_add_u32 s30, s30, s31
        s_mov_b32 s36, 0xffff0000
        """)
        for mt in range(4):
            for nt in range(2):
                r = HRES + mt * 4 + nt * 2; p = acc(mt, nt)
                for d in range(2):
                    a(f"v_lshlrev_b32 v{T+16}, 16, v{r+d}")
                    a(f"v_and_b32 v{T+17}, s36, v{r+d}")
                    a(f"v_pk_add_f32 v[{p+2*d}:{p+2*d+1}], v[{p+2*d}:{p+2*d+1}], v[{T+16}:{T+17}]")
        if c.sk and OPT["sent"]:
            lp = a.label("xpoll"); dn = a.label("skip_xp")
            a("s_mov_b32 s39, 0x200000")
            a(f"{lp}:")
            for mt in range(4):
                a(f"buffer_load_dwordx4 v[{XR+4*mt}:{XR+4*mt+3}], v{vX}, s[20:23], s37 offen offset:{mt*1024} sc0 sc1")
            for mt in range(4):
                r = XR + 4 * mt
                a(f"s_waitcnt vmcnt({3-mt})")
                if mt == 0: a(f"v_max_u32 v{T+4}, v{r}, v{r+1}")
                else: a(f"v_max3_u32 v{T+4}, v{r}, v{r+1}, v{T+4}")
                a(f"v_max3_u32 v{T+4}, v{r+2}, v{r+3}, v{T+4}")
            a(f"""
            v_cmp_eq_u32 vcc, -1, v{T+4}
            s_nop 3
            s_cmp_eq_u64 vcc, 0
            s_cbranch_scc1 {dn}
            s_sub_u32 s39, s39, 1
            s_cbranch_scc0 {lp}
            {dn}:
            """)
            stamp(a, 48)
        elif c.sk:
            lp = a.label("xpoll"); dn = a.label("skip_xp")
            a(f"""
            s_xor_b32 s40, s40, {4 << 5}
            s_mov_b32 s39, 0x200000
            {lp}:
            buffer_load_dwordx2 v[{T+4}:{T+5}], v{(VTOP if RT else T)+2}, s[{FLS}:{FLS+3}], s40 offen sc0 sc1
            s_waitcnt vmcnt(0)
            v_cmp_eq_u64 vcc, s[{TAG}:{TAG+1}], v[{T+4}:{T+5}]
            s_nop 3
            s_cmp_eq_u64 vcc, -1
            s_cbranch_scc1 {dn}
            s_sub_u32 s39, s39, 1
            s_cbranch_scc0 {lp}
            {dn}:
            """)
            stamp(a, 48)
            for mt in range(4):
                a(f"buffer_load_dwordx4 v[{XR+4*mt}:{XR+4*mt+3}], v{vX}, s[20:23], s37 offen offset:{mt*1024} sc0 sc1")
        for mt in range(4):
            if c.sk:
                if not OPT["sent"]: a(f"s_waitcnt vmcnt(3)")
                for nt in range(2):
                    r = XR + mt * 4 + nt * 2; p = acc(mt, nt)
                    for d in range(2):
                        a(f"v_lshlrev_b32 v{T+16}, 16, v{r+d}")
                        a(f"v_and_b32 v{T+17}, s36, v{r+d}")
                        a(f"v_pk_add_f32 v[{p+2*d}:{p+2*d+1}], v[{p+2*d}:{p+2*d+1}], v[{T+16}:{T+17}]")
            t = T + mt * 4
            pk4(t, acc(mt, 0), acc(mt, 1))
            a(f"v_permlane16_swap_b32 v{t}, v{t+2}")
            a(f"v_permlane16_swap_b32 v{t+1}, v{t+3}")
            a(f"buffer_store_dwordx4 v[{t}:{t+3}], v{t0}, s[16:19], s30 offen{['', ' sc0 sc1', ' nt', ' sc1'][OPT['osf']]}")
            a("s_add_u32 s30, s30, 32768")
        stamp(a, c.sid + 3)
        if DIAG:
            a("s_waitcnt vmcnt(0)")
            stamp(a, c.sid + 4)

PV_A = 4
PV_B = 8
PV_SA = 16
PV_SB = 18
PV_RD = 32
PV_ACC = 80

def prod_setup(a, c):
    n = c.n
    wgmap(a, c.RX, c.CX)
    if c.a_off is None:
        a("s_lshl_b32 s30, s24, 18")
        srd_off(a, 8, P_X, "s30", 262144)
        a(f"""
        v_lshrrev_b32 v2, 3, v1
        v_lshrrev_b32 v3, 4, v1
        v_and_b32 v15, 7, v1
        v_xor_b32 v3, v3, v15
        v_lshlrev_b32 v3, 4, v3
        v_lshl_add_u32 v2, v2, 11, v3
        v_xor_b32 v3, 64, v2
        s_lshl_b32 s30, s38, 16
        """)
        for i in range(4):
            a(f"s_add_u32 s31, s30, {i*8*2048 - i*1024}")
            a(f"v_add_u32 v{PV_A+i}, s31, v{3 if i & 1 else 2}")
        c.astep = 128
    else:
        a(f"s_mul_i32 s30, s24, {c.K*256}")
        a(f"s_add_u32 s30, s30, {c.a_off}")
        srd_off(a, 8, P_WS, "s30", c.K * 256)
        a(f"""
        {"s_lshr_b32 s30, s38, 1" if c.sk else f"s_and_b32 s30, s38, {1 if c.kind == 'w2' else 3}"}
        s_lshl_b32 s30, s30, 12
        v_lshlrev_b32 v{PV_A}, 4, v1
        v_add_u32 v{PV_A}, s30, v{PV_A}
        """)
        c.astep = 16384
        if c.kind == "w2":
            a(f"""
            {"s_and_b32 s30, s38, 1" if c.sk else "s_lshr_b32 s30, s38, 1"}
            s_mul_i32 s63, s30, {4*8192}
            s_mul_i32 s64, s30, {7*8192}
            """)
    c.bstep = 64 * c.ldb
    CT = 16 // c.CX
    a(f"""
    s_and_b32 s65, s25, {CT-1}
    s_mul_i32 s65, s65, {(16 // CT) if c.rot else 0}
    """)
    if c.rot == 2: a(f"s_mov_b32 s65, {OPT['rot0']}")
    if (c.kind == "w1" and OPT["own1"]) or (c.kind == "wo" and OPT["owno"]): a("s_mov_b32 s65, s25")
    if c.sk: a("s_and_b32 s65, s25, 4\ns_lshl_b32 s65, s65, 1")
    a(f"""
    s_lshl_b32 s34, s38, 12
    s_mul_i32 s35, s38, {c.NBW*1024}
    """)
    if c.sk:
        a("""
        s_and_b32 s34, s38, 1
        s_lshl_b32 s34, s34, 13
        s_lshr_b32 s30, s38, 1
        s_lshl_b32 s30, s30, 12
        s_add_u32 s34, s34, s30
        """)
    if c.kind == "w2" and not OPT["own"]: a(f"s_mul_i32 s66, s65, {7*8192}")
    if not c.early: b_setup(a, c, PV_B, 12)
    a(f"""
    s_mov_b32 s27, {c.ABASE}
    s_mov_b32 s32, {c.BBASE}
    s_mul_i32 s28, s65, {c.astep}
    s_mul_i32 s29, s65, {c.bstep}
    """)

def b_setup(a, c, dst, sr_, comp=True):
    if c.sk:
        a("s_andn2_b32 s30, s25, 4")
        a(f"s_mul_i32 s30, s30, {c.bcol}")
    else:
        a(f"s_mul_i32 s30, s25, {c.bcol}")
    a(f"s_sub_u32 s31, {c.K*c.ldb}, s30")
    srd_off(a, sr_, c.wp, "s30", "s31")
    if c.layout == "panel" and OPT["fastb"]:
        a(f"""
        v_lshrrev_b32 v2, 3, v1
        v_mul_u32_u24 v2, {c.ldb}, v2
        v_bfe_u32 v3, v1, 4, {2 if c.korder == "F" else 1}
        v_lshlrev_b32 v3, 1, v3
        v_and_b32 v15, 7, v1
        v_xor_b32 v3, v3, v15
        v_lshl_add_u32 v2, v3, 4, v2
        s_mul_i32 s36, s38, {c.NBW}
        """)
        if c.korder == "N": a("v_xor_b32 v3, 64, v2")
        for i in range(c.NBW):
            a(f"""
            s_add_u32 s30, s36, {i}
            s_and_b32 s31, s30, {3 if c.kind == "w2" else 7}
            s_mul_i32 s31, s31, {8*c.ldb}
            """)
            if c.pstride:
                a("s_lshr_b32 s30, s30, 3")
                if c.sk:
                    a("s_bfe_u32 s39, s25, 0x10002")
                    a("s_xor_b32 s30, s30, s39")
                a(f"s_mul_i32 s30, s30, {c.pstride}")
                a("s_add_u32 s31, s31, s30")
            if i & 3 and comp: a(f"s_sub_u32 s31, s31, {(i&3)*1024}")
            src = 3 if (c.korder == "N" and i & 1) else 2
            a(f"v_add_u32 v{dst+i}, s31, v{src}")
        return
    a(f"""
    s_mul_i32 s30, s38, {c.NBW*64}
    s_mov_b32 s36, {c.ldb}
    """)
    for i in range(c.NBW):
        a(f"s_add_u32 s31, s30, {i*64}")
        a(f"v_add_u32 v3, s31, v1")
        d = dst + i
        if c.layout == "panel":
            a("v_bfe_u32 v2, v3, 3, 6")
            if c.korder == "F":
                a(f"v_bfe_u32 v{d}, v2, 1, 2")
            else:
                a(f"v_bfe_u32 v{d}, v2, 1, 1")
                a("v_bfe_u32 v15, v2, 3, 1")
                a(f"v_lshl_or_b32 v{d}, v15, 1, v{d}")
            a(f"""
            v_lshlrev_b32 v{d}, 1, v{d}
            v_and_b32 v15, 7, v3
            v_xor_b32 v{d}, v{d}, v15
            v_and_b32 v2, {31 if c.kind == "w2" else 63}, v2
            v_mul_lo_u32 v2, v2, s36
            v_lshl_add_u32 v{d}, v{d}, 4, v2
            """)
            if c.pstride:
                a(f"""
                v_lshrrev_b32 v3, 9, v3
                {"s_bfe_u32 s31, s25, 0x10002" if c.sk else ""}
                {"v_xor_b32 v3, s31, v3" if c.sk else ""}
                v_mul_u32_u24 v3, {c.pstride}, v3
                v_add_u32 v{d}, v{d}, v3
                """)
        else:
            a(f"""
            v_mul_u32_u24 v2, 2341, v3
            v_lshrrev_b32 v2, 16, v2
            v_mul_u32_u24 v15, 28, v2
            v_sub_u32 v3, v3, v15
            v_bfe_u32 v15, v2, 2, 1
            v_lshlrev_b32 v15, 1, v15
            v_xor_b32 v3, v3, v15
            v_mul_lo_u32 v2, v2, s36
            v_lshl_add_u32 v{d}, v3, 4, v2
            """)
        if i & 3 and comp: a(f"v_subrev_u32 v{d}, {(i&3)*1024}, v{d}")

def issueA(a, c, slot=None, adv=True):
    if slot is None: a("s_add_u32 m0, s27, s34")
    else: a(f"s_add_u32 m0, s34, {c.ABASE + slot*16384}")
    for i in range(4):
        v = PV_A + (i if c.a_off is None else 0)
        a(f"buffer_load_dwordx4 v{v}, s[8:11], s28 offen offset:{i*1024}{'' if c.a_off is None else ' sc1'} lds")
    if adv:
        a(f"s_add_u32 s28, s28, {c.astep}")
        if c.rot: a(f"s_and_b32 s28, s28, {16*c.astep - 1}")
    if slot is None:
        a(f"""
        s_add_u32 s27, s27, 16384
        s_cmp_eq_u32 s27, {c.ABASE + c.S*16384}
        s_cselect_b32 s27, {c.ABASE}, s27
        """)

def issueB(a, c, slot=None, adv=True):
    for i in range(c.NBW):
        if i % 4 == 0:
            if slot is None:
                a(f"s_add_u32 m0, s32, {c.s35}")
                if i: a(f"s_add_u32 m0, m0, {i*1024}")
            else:
                a(f"s_add_u32 m0, {c.s35}, {c.BBASE + slot*c.BB + i*1024}")
        a(f"buffer_load_dwordx4 v{c.pvb+i}, s[{c.sb}:{c.sb+3}], s29 offen offset:{(i&3)*1024}{' nt' if (c.kind == 'qkv' and OPT['qnt'] >= 2) else ''} lds")
    if adv:
        a(f"s_add_u32 s29, s29, {c.bstep}")
        if c.rot:
            a(f"s_cmp_eq_u32 s29, {16*c.bstep}")
            a("s_cselect_b32 s29, 0, s29")
    if slot is None:
        a(f"""
        s_add_u32 s32, s32, {c.BB}
        s_cmp_eq_u32 s32, {c.BBASE + c.S*c.BB}
        s_cselect_b32 s32, {c.BBASE}, s32
        """)

PV_POLL = 28
def poll_once(a, wide):
    t = PV_POLL
    if wide: a(f"buffer_load_dwordx4 v[{t}:{t+3}], v26, s[{FLS}:{FLS+3}], s33 offen sc0 sc1")
    else: a(f"buffer_load_dwordx2 v[{t}:{t+1}], v26, s[{FLS}:{FLS+3}], s33 offen sc0 sc1")
    a("s_waitcnt vmcnt(0)")
    a(f"v_cmp_eq_u64 s[56:57], s[{TAG}:{TAG+1}], v[{t}:{t+1}]")
    if wide:
        a(f"v_cmp_eq_u64 s[58:59], s[{TAG}:{TAG+1}], v[{t+2}:{t+3}]")
        a("s_nop 3")
        a("s_and_b64 s[56:57], s[56:57], s[58:59]")
    else:
        a("s_nop 3")

def gate(a, t, wide):
    lp = a.label("gate"); ok = a.label("skip_gate")
    a(f"{lp}:")
    if t == "all":
        a("s_cmp_eq_u32 s56, -1" if OPT["sk"] else "s_cmp_eq_u64 s[56:57], -1")
    else:
        a(f"s_bfe_u32 s30, s{56 + t // 8}, {hex((4 << 16) | (4 * (t % 8)))}")
        a("s_cmp_eq_u32 s30, 15")
    a(f"s_cbranch_scc1 {ok}")
    poll_once(a, wide)
    a("""
    s_sub_u32 s39, s39, 1
    s_cselect_b64 s[58:59], -1, 0
    s_cselect_b32 s39, 0, s39
    s_or_b64 s[56:57], s[56:57], s[58:59]
    """)
    a(f"s_branch {lp}")
    a(f"{ok}:")

def gate_setup(a, seam_id, wide):
    a(f"""
    s_lshl_b32 s30, s65, 2
    v_add_u32 v26, s30, v1
    v_and_b32 v26, 63, v26
    v_lshlrev_b32 v26, {4 if wide else 3}, v26
    s_lshl_b32 s33, s24, 10
    s_add_u32 s33, s33, {seam_id*16384}
    s_mov_b64 s[56:57], 0
    s_mov_b32 s39, 0x200000
    """)

def colsum_tile(a, c, lds_base, wsg, which, R, part=None):
    AD = R; ACCU = R + 4; D = R + 8; t = R + 40
    if part in (None, 0):
        a(f"""
        v_lshrrev_b32 v{t}, 4, v1
        v_bfe_u32 v{t+1}, v1, 2, 2
        v_mul_u32_u24 v{t+2}, {c.gmul}, v{t}
        v_add_u32 v{t+2}, v{t+2}, v{t+1}
        v_mul_u32_u24 v{t+2}, {c.RS}, v{t+2}
        v_and_b32 v{t+3}, 3, v1
        v_lshl_add_u32 v{t+2}, v{t+3}, 3, v{t+2}
        v_and_b32 v{t}, 1, v{t}
        s_lshl_b32 s71, {wsg}, {13 if c.layout == "panel" else 7}
        s_add_u32 s71, s71, {lds_base}
        v_add_u32 v{t+2}, s71, v{t+2}
        """)
        if c.layout == "panel":
            a(f"v_lshrrev_b32 v{t+1}, 1, v{t+1}")
            a(f"v_lshl_or_b32 v{t}, v{t}, 1, v{t+1}")
        for ts in range(4):
            a(f"v_xor_b32 v{t+3}, {ts}, v{t}")
            a(f"v_lshl_add_u32 v{AD+ts}, v{t+3}, 5, v{t+2}")
        for q in range(4):
            for ts in range(4):
                d = D + (q * 4 + ts) * 2
                a(f"ds_read_b64_tr_b16 v[{d}:{d+1}], v{AD+ts} offset:{((q>>1)*32 + (q&1)*c.rdrows) * c.RS}")
        for ts in range(4): a(f"v_mov_b32 v{ACCU+ts}, 0")
        srd_off(a, 16, P_WS, CSG_OFF + which * 524288, 524288)
        a(f"""
        s_mov_b32 s75, 0x3f803f80
        v_lshlrev_b32 v{t}, 3, v1
        """)
        if c.kind == "qkv" and OPT["dil"]:
            a(f"""
            s_lshl_b32 s71, s24, 15
            s_mul_i32 s31, s25, 1536
            s_add_u32 s71, s71, s31
            s_lshl_b32 s31, {wsg}, 9
            s_add_u32 s71, s71, s31
            s_cmp_eq_u32 {wsg}, 3
            s_cselect_b32 s71, 0x40000000, s71
            """)
        else:
            a(f"""
            s_lshl_b32 s71, s25, 15
            s_lshl_b32 s31, s24, 11
            s_add_u32 s71, s71, s31
            s_lshl_b32 s31, {wsg}, 9
            s_add_u32 s71, s71, s31
            """)
    for q in range(4):
        if part not in (None, 1 + q // 2): continue
        if part is None or q == 0: a(f"s_waitcnt lgkmcnt({12-4*q if part is None else 0})")
        for d in range(2):
            for ts in range(4):
                a(f"v_dot2c_f32_bf16 v{ACCU+ts}, s75, v{D+(q*4+ts)*2+d}")
    if part in (None, 3):
        t0, t1, t2, t3 = ACCU, ACCU + 1, ACCU + 2, ACCU + 3
        a(f"""
        v_permlane32_swap_b32 v{t0}, v{t2}
        v_permlane32_swap_b32 v{t1}, v{t3}
        v_add_f32 v{t0}, v{t0}, v{t2}
        v_add_f32 v{t1}, v{t1}, v{t3}
        v_permlane16_swap_b32 v{t0}, v{t1}
        v_add_f32 v{t0}, v{t0}, v{t1}
        v_mov_b32 v{t1}, s{TAG}
        """)
        if c.kind == "qkv":
            sk = a.label("skip_xi")
            a(f"""
            s_cmp_lg_u32 {wsg}, 3
            s_cbranch_scc1 {sk}
            v_cmp_eq_u32 vcc, s74, v1
            v_cndmask_b32 v{t0}, 0, 1.0, vcc
            {sk}:
            """)
        a(f"buffer_store_dwordx2 v[{t0}:{t1}], v{t}, s[16:19], s71 offen sc0 sc1")

G_CS = 32
G_RS = 64
def gather_cs_setup(a, c):
    which = 0 if c.kind == "qkv" else 1
    srd_off(a, 16, P_WS, CSG_OFF + which * 524288, 524288)
    if c.kind == "qkv" and OPT["dil"]:
        a(f"""
        s_min_u32 s31, s38, 2
        s_lshl_b32 s60, s31, 13
        s_lshl_b32 s31, s25, 9
        s_add_u32 s60, s60, s31
        s_mov_b32 s67, 32768
        """)
    else:
        a(f"""
        s_lshl_b32 s60, s25, 15
        s_lshl_b32 s31, s38, 9
        s_add_u32 s60, s60, s31
        s_mov_b32 s67, 2048
        """)
    a("v_lshlrev_b32 v24, 3, v1")
    return 0
def gather_cs(a, r0, r1):
    for r in range(r0, r1):
        a(f"buffer_load_dwordx2 v[{G_CS+2*r}:{G_CS+2*r+1}], v24, s[16:19], s60 offen sc0 sc1")
        a("s_add_u32 s60, s60, s67")
    return r1 - r0
def gather_rs_setup(a, c):
    if c.kind == "qkv":
        srd_off(a, 20, P_WS, RS1_OFF, 32768)
        a(f"""
        v_and_b32 v25, 31, v1
        v_lshlrev_b32 v25, 4, v25
        s_lshl_b32 s61, s24, 11
        s_lshl_b32 s31, s38, 9
        s_add_u32 s61, s61, s31
        """)
    else:
        srd_off(a, 20, P_WS, ST2_OFF, 16 * 32768)
        a(f"""
        v_and_b32 v25, 31, v1
        v_lshlrev_b32 v25, 2, v25
        v_lshrrev_b32 v15, 5, v1
        v_lshl_add_u32 v25, v15, 9, v25
        s_lshl_b32 s61, s24, 15
        s_lshl_b32 s31, s38, 7
        s_add_u32 s61, s61, s31
        """)
    return 0
def gather_rs(a, c, p0=0, p1=32):
    if c.kind == "qkv":
        a(f"buffer_load_dwordx4 v[{G_RS}:{G_RS+3}], v25, s[20:23], s61 offen sc0 sc1")
        return 1
    a(f"s_add_u32 s30, s65, {p0 // 2}")
    a("s_and_b32 s30, s30, 15")
    a("s_lshl_b32 s30, s30, 11")
    a("s_add_u32 s30, s30, s61")
    for p in range(p0, p1):
        a(f"buffer_load_dword v{G_RS+p}, v25, s[20:23], s30 offen offset:{(p&1)*1024} sc0 sc1")
    return p1 - p0

def gather_finish_cs(a, c):
    lp = a.label("gchk"); ok = a.label("skip_gok")
    a("s_mov_b32 s62, 0x40000")
    a(f"{lp}:")
    a(f"v_xor_b32 v15, s{TAG}, v{G_CS+1}")
    for r in range(1, 16):
        a(f"v_xor_b32 v27, s{TAG}, v{G_CS+2*r+1}")
        a("v_or_b32 v15, v15, v27")
    if c.kind == "qkv":
        a(f"v_xor_b32 v27, s{TAG}, v{G_RS+2}")
        a("v_or_b32 v15, v15, v27")
        a(f"v_xor_b32 v27, s{TAG+1}, v{G_RS+3}")
        a("v_or_b32 v15, v15, v27")
    a(f"""
    v_cmp_ne_u32 vcc, 0, v15
    s_nop 3
    s_cmp_eq_u64 vcc, 0
    s_cbranch_scc1 {ok}
    s_sub_u32 s62, s62, 1
    s_cbranch_scc1 {ok}
    s_sleep 2
    """)
    gather_cs_setup(a, c); gather_cs(a, 0, 16)
    if c.kind == "qkv": gather_rs(a, c)
    a("s_waitcnt vmcnt(0)")
    a(f"s_branch {lp}")
    a(f"{ok}:")
    for r in range(1, 16): a(f"v_add_f32 v{G_CS}, v{G_CS}, v{G_CS+2*r}")
    a(f"""
    v_lshlrev_b32 v2, 2, v1
    s_lshl_b32 s30, s38, 8
    s_add_u32 s30, s30, {ST_CS}
    v_add_u32 v2, s30, v2
    ds_write_b32 v2, v{G_CS}
    """)
    return 0

def l2_issue(a, c):
    which = 0 if c.kind == "qkv" else 1
    srd_off(a, 16, P_WS, CSG_OFF + which * 524288, 524288)
    a(f"""
    s_lshl_b32 s60, s2, 2
    s_add_u32 s60, s60, s38
    v_lshrrev_b32 v24, 2, v1
    v_lshlrev_b32 v24, {15 if which == 0 else 11}, v24
    v_and_b32 v27, 3, v1
    v_lshl_add_u32 v24, v27, 3, v24
    """)
    if which == 0:
        a("s_min_u32 s60, s60, 767")
        a("s_lshl_b32 s67, s60, 5")
    else:
        a("""
        s_lshr_b32 s67, s60, 6
        s_lshl_b32 s67, s67, 15
        s_and_b32 s31, s60, 63
        s_lshl_b32 s31, s31, 5
        s_add_u32 s67, s67, s31
        """)
    a(f"buffer_load_dwordx2 v[{G_CS}:{G_CS+1}], v24, s[16:19], s67 offen sc0 sc1")
    return 1

def tagcheck(a, regs, retry):
    lp = a.label("gchk"); ok = a.label("skip_gok")
    a("s_mov_b32 s62, 0x80000")
    a(f"{lp}:")
    for k, (r, sg) in enumerate(regs):
        a(f"v_xor_b32 v{15 if k == 0 else 27}, s{sg}, v{r}")
        if k: a("v_or_b32 v15, v15, v27")
    a(f"""
    v_cmp_ne_u32 vcc, 0, v15
    s_nop 3
    s_cmp_eq_u64 vcc, 0
    s_cbranch_scc1 {ok}
    s_sub_u32 s62, s62, 1
    s_cbranch_scc1 {ok}
    """)
    retry()
    a("s_waitcnt vmcnt(0)")
    a(f"s_branch {lp}")
    a(f"{ok}:")

def l2_finish(a, c):
    which = 0 if c.kind == "qkv" else 1
    v = G_CS
    tagcheck(a, [(v + 1, TAG)], lambda: a(f"buffer_load_dwordx2 v[{v}:{v+1}], v24, s[16:19], s67 offen sc0 sc1"))
    srd_off(a, 16, P_WS, FIN_OFF + which * 32768, 32768)
    a(f"""
    v_add_f32_dpp v{v}, v{v}, v{v} row_ror:4 row_mask:0xf bank_mask:0xf
    v_add_f32_dpp v{v}, v{v}, v{v} row_ror:8 row_mask:0xf bank_mask:0xf
    v_mov_b32 v{v+2}, v{v}
    v_permlane16_swap_b32 v{v}, v{v+2}
    v_add_f32 v{v}, v{v}, v{v+2}
    v_mov_b32 v{v+2}, v{v}
    v_permlane32_swap_b32 v{v}, v{v+2}
    v_add_f32 v{v}, v{v}, v{v+2}
    v_lshlrev_b32 v24, 3, v1
    s_lshl_b32 s60, s60, 5
    s_mov_b64 exec, 15
    buffer_store_dwordx2 v[{v}:{v+1}], v24, s[16:19], s60 offen sc0 sc1
    s_mov_b64 exec, -1
    """)
    return 1

def fin_issue(a, c):
    if c.kind == "qkv":
        a("""
        s_min_u32 s31, s38, 2
        s_lshl_b32 s60, s31, 13
        s_lshl_b32 s31, s25, 9
        s_add_u32 s60, s60, s31
        """)
    else:
        a("""
        s_lshl_b32 s60, s25, 11
        s_lshl_b32 s31, s38, 9
        s_add_u32 s60, s60, s31
        """)
    a(f"buffer_load_dwordx2 v[{G_CS}:{G_CS+1}], v24, s[16:19], s60 offen sc0 sc1")
    return 1

def fin_finish(a, c):
    regs = [(G_CS + 1, TAG)] + ([(G_RS + 2, TAG), (G_RS + 3, TAG + 1)] if c.kind == "qkv" else [])
    def retry():
        a(f"buffer_load_dwordx2 v[{G_CS}:{G_CS+1}], v24, s[16:19], s60 offen sc0 sc1")
        if c.kind == "qkv": gather_rs(a, c)
    tagcheck(a, regs, retry)
    a(f"""
    v_lshlrev_b32 v2, 2, v1
    s_lshl_b32 s30, s38, 8
    s_add_u32 s30, s30, {ST_CS}
    v_add_u32 v2, s30, v2
    ds_write_b32 v2, v{G_CS}
    """)
    return 0

def gather_finish_rs(a, c):
    a(f"""
    v_and_b32 v3, 31, v1
    s_lshl_b32 s30, s38, 5
    v_add_u32 v3, s30, v3
    v_lshlrev_b32 v2, 4, v3
    v_add_u32 v2, {ST_REC}, v2
    """)
    R = G_RS
    if c.kind == "qkv":
        a(f"""
        v_lshlrev_b32 v3, 2, v3
        v_add_u32 v3, {ST_MEAN}, v3
        ds_write_b128 v2, v[{R}:{R+3}]
        ds_write_b32 v3, v{R}
        ds_write_b32 v3, v{R+1} offset:512
        """)
    else:
        a(f"""
        v_mov_b32 v{R+1}, v{R}
        v_permlane32_swap_b32 v{R}, v{R+1}
        v_mul_f32 v{R}, {f32(1.0/1024)}, v{R}
        v_mul_f32 v{R+1}, {f32(1.0/1024)}, v{R+1}
        v_fma_f32 v{R+1}, -v{R}, v{R}, v{R+1}
        v_max_f32 v{R+1}, 0, v{R+1}
        v_add_f32 v{R+4}, {f32(1e-5)}, v{R+1}
        v_rsq_f32 v{R+1}, v{R+4}
        v_sqrt_f32 v{R+3}, v{R+4}
        v_sqrt_f32 v{R+2}, v{R+4}
        v_mul_f32 v{R+1}, {f32(-LOG2E)}, v{R+1}
        ds_write_b128 v2, v[{R}:{R+3}]
        """)
    a("s_waitcnt lgkmcnt(0)")
    return 0

def row_stats_issue(a, X):
    srd_off(a, 20, P_X, 0, 4 * MB)
    srd_off(a, 16, P_DBG, 0, 256)
    a(f"""
    s_lshl_b32 s30, s24, 7
    s_lshl_b32 s31, s25, 3
    s_add_u32 s30, s30, s31
    s_lshl_b32 s31, s3, 1
    s_add_u32 s33, s30, s31
    s_lshl_b32 s30, s33, 11
    v_lshlrev_b32 v{X+18}, 4, v1
    v_mov_b32 v{X+19}, 0
    """)
    for i in range(4):
        a(f"buffer_load_dwordx4 v[{X+4*i}:{X+4*i+3}], v{X+18}, s[20:23], s30 offen offset:{i*1024}")

def row_stats_finish(a, X, T):
    s0, q0, s1, q1 = T, T + 1, T + 2, T + 3
    a(f"buffer_load_dwordx2 v[{X+16}:{X+17}], v{X+19}, s[16:19], 0 offen sc0 sc1")
    a("s_mov_b32 s75, 0x3f803f80")
    for i in range(4): a(f"v_mov_b32 v{T+i}, 0")
    a("s_waitcnt vmcnt(1)")
    for d in range(8):
        for row in range(2):
            r = X + 8 * row + d
            a(f"v_dot2c_f32_bf16 v{T+2*row}, s75, v{r}")
            a(f"v_dot2c_f32_bf16 v{T+2*row+1}, v{r}, v{r}")
    a(f"""
    v_permlane32_swap_b32 v{s0}, v{q0}
    v_permlane32_swap_b32 v{s1}, v{q1}
    v_add_f32 v{s0}, v{s0}, v{q0}
    v_add_f32 v{s1}, v{s1}, v{q1}
    v_permlane16_swap_b32 v{s0}, v{s1}
    v_add_f32 v{s0}, v{s0}, v{s1}
    v_add_f32_dpp v{s0}, v{s0}, v{s0} quad_perm:[1,0,3,2] row_mask:0xf bank_mask:0xf
    v_add_f32_dpp v{s0}, v{s0}, v{s0} quad_perm:[2,3,0,1] row_mask:0xf bank_mask:0xf
    v_add_f32_dpp v{s0}, v{s0}, v{s0} row_half_mirror row_mask:0xf bank_mask:0xf
    v_add_f32_dpp v{s0}, v{s0}, v{s0} row_mirror row_mask:0xf bank_mask:0xf
    v_mov_b32 v{q0}, v{s0}
    v_permlane32_swap_b32 v{s0}, v{q0}
    v_mul_f32 v{s0}, {f32(1.0/1024)}, v{s0}
    v_mul_f32 v{q0}, {f32(1.0/1024)}, v{q0}
    v_fma_f32 v{q0}, -v{s0}, v{s0}, v{q0}
    v_max_f32 v{q0}, 0, v{q0}
    v_add_f32 v{q0}, {f32(1e-5)}, v{q0}
    v_rsq_f32 v{q0}, v{q0}
    """)
    lp = a.label("tagp"); dn = a.label("tagd")
    a(f"""
    s_mov_b32 s39, 0x100000
    {lp}:
    s_waitcnt vmcnt(0)
    v_readfirstlane_b32 s{TAG}, v{X+16}
    v_readfirstlane_b32 s{TAG+1}, v{X+17}
    s_nop 3
    s_cmp_lg_u32 s{TAG}, 0
    s_cbranch_scc1 {dn}
    s_sleep 1
    buffer_load_dwordx2 v[{X+16}:{X+17}], v{X+19}, s[16:19], 0 offen sc0 sc1
    s_sub_u32 s39, s39, 1
    s_cmp_lg_u32 s39, 0
    s_cbranch_scc1 {lp}
    {dn}:
    """)
    srd_off(a, 20, P_WS, RS1_OFF, 32768)
    a(f"""
    v_mov_b32 v{s1}, s{TAG}
    v_mov_b32 v{q1}, s{TAG+1}
    v_and_b32 v{T+4}, 16, v1
    s_lshl_b32 s30, s33, 4
    v_mov_b32 v{T+5}, {ST_TAG}
    s_mov_b64 exec, 0x10001
    buffer_store_dwordx4 v[{T}:{T+3}], v{T+4}, s[20:23], s30 offen sc0 sc1
    ds_write_b64 v{T+5}, v[{s1}:{q1}]
    s_mov_b64 exec, -1
    s_waitcnt lgkmcnt(0)
    """)

def w2_kg(t):
    if OPT["sk"]:
        if t < 8: return 7 * t, 4
        if t < 12: return 14 * (t - 8) + 3, 7
        if t < 20: return 7 * (t - 12) + 1, 4
        return 7 * (t - 20) + 2, 4
    if t < 16: return 7 * t, 4
    if t < 24: return 14 * (t - 16) + 3, 7
    if t < 40: return 7 * (t - 24) + 1, 4
    return 7 * (t - 40) + 2, 4

def set_soff(a, c, st, A=True, B=True):
    if c.kind != "w2": return
    if OPT["own"]:
        if st < 3:
            a(f"s_add_u32 s30, s43, s63"); off = st
        elif 10 <= st < 14:
            m = st - 10; i = 2 * m
            a(f"s_add_u32 s30, s66, s64"); off = 7 * (i + (i & 4)) + 3
        else:
            t, off = (st - 3, 0) if st < 10 else ((st - 14, 1) if st < 21 else (st - 21, 2))
            a(f"""
            s_add_u32 s30, s42, {t + 1}
            s_and_b32 s30, s30, 7
            s_and_b32 s31, s30, 4
            s_add_u32 s30, s30, s31
            s_mul_i32 s30, s30, {7*8192}
            s_add_u32 s30, s30, s66
            s_add_u32 s30, s30, s63
            """)
        if A: a(f"s_add_u32 s28, s30, {off*8192}")
        if B:
            a(f"s_add_u32 s29, s30, {off*8192}")
            a("s_lshl_b32 s29, s29, 3")
        return
    base, dh = w2_kg(st)
    off = base % 7
    hs = "s63" if dh == 4 else "s64"
    a(f"s_add_u32 s30, s66, {(base - off)*8192}")
    a(f"s_sub_u32 s31, s30, {112*8192}")
    a("s_cselect_b32 s30, s30, s31")
    a(f"s_add_u32 s30, s30, {hs}")
    if A: a(f"s_add_u32 s28, s30, {off*8192}")
    if B:
        a(f"s_add_u32 s29, s30, {off*8192}")
        a("s_lshl_b32 s29, s29, 3")

def w2_early_setup(a, c):
    a(f"""
    s_mul_i32 s41, s38, {c.NBW*1024}
    s_and_b32 s30, s38, 1
    s_mul_i32 s63, s30, {4*8192}
    s_mul_i32 s64, s30, {7*8192}
    s_and_b32 s30, s25, 4
    s_mul_i32 s66, s30, {(7 if OPT["own"] else 14)*8192}
    s_and_b32 s42, s25, 3
    s_lshr_b32 s30, s25, 3
    s_lshl_b32 s30, s30, 2
    s_add_u32 s42, s42, s30
    s_mul_i32 s43, s25, {7*8192}
    """)
    c.bstep = 64 * c.ldb
    b_setup(a, c, c.pvb, c.sb)

def pre_B(a, c, st0=0, st1=None):
    for st in range(st0, c.S if st1 is None else st1):
        set_soff(a, c, st, A=False)
        issueB(a, c, (st + c.bs0) % c.SB, c.kind != "w2")
    return (( c.S if st1 is None else st1) - st0) * c.NBW

def gemm_producer(a, c, preB, gated=None, side=None, after_issue=None, unroll_to=None):
    n = c.n; S = c.S; L = 4 + c.NBW
    side = side or {}
    U = n if unroll_to is None else unroll_to
    ops = []
    w2 = c.kind == "w2"
    def iss(st):
        if gated and st < (8 if c.sk else 16): gate(a, st, gated == "wide")
        if st == (1 if ((c.kind == "w1" and OPT["own1"]) or (c.kind == "wo" and OPT["owno"])) else 0): stamp(a, c.sid)
        doB = not (preB and st < c.SB)
        set_soff(a, c, st, True, doB)
        issueA(a, c, st % S, not w2); ops.extend([st] * 4)
        if doB:
            issueB(a, c, (st + c.bs0) % c.SB, not w2); ops.extend([st] * c.NBW)
        if after_issue:
            if st == 1 and c.kind == "w1" and OPT["own1"]: ops.extend([st] * after_issue(0))
            ops.extend([st] * after_issue(st))
    def wait(st):
        last = max(i for i, x in enumerate(ops) if x <= st)
        a(f"s_waitcnt vmcnt({min(63, len(ops) - 1 - last)})")
    def run_side(j, tag):
        for f in side.get(j, []): ops.extend([tag] * (f() or 0))
    if DIAG and OPT['steps']: a('s_mov_b32 s99, 0\nv_mov_b32 v252, 0')
    own0 = (c.kind == "w1" and OPT["own1"]) or (c.kind == "wo" and OPT["owno"])
    if own0:
        a(f"s_add_u32 s28, s28, {c.astep}")
        a(f"s_and_b32 s28, s28, {16*c.astep - 1}")
        a(f"s_waitcnt vmcnt({(S-1)*c.NBW})")
        issued = 1
    else:
        iss(0); issued = 1
        if not (c.kind == "qkv" and OPT["early0"]):
            run_side(-1, 1)
            iss(1); issued = 2
        wait(0)
    stamp(a, c.sid + 1)
    pbar(a)
    j = 0
    while j < n:
        allowed = j - 1 + S
        if issued >= U and issued < n: break
        cnt = 0
        if c.kind == "qkv" and OPT["early0"] == 1 and j == 0: run_side(-1, 1)
        while issued <= allowed and cnt < 2 and issued < U:
            if c.kind == "qkv" and OPT["early0"] >= 2 and issued == OPT["early0"]: run_side(-1, OPT["early0"])
            iss(issued); issued += 1; cnt += 1
        run_side(j, max(issued - 1, j + 2))
        j += 1
        if j < n: wait(j)
        pbar(a)
    if j < n:
        assert issued == j - 1 + S
        a(f"s_mov_b32 s27, {c.ABASE + (issued % S)*16384}")
        a(f"s_mov_b32 s32, {c.BBASE + (issued % S)*c.BB}")
        for (t0, t1, stride) in c.rounds:
            if t0 == c.gate_all_at:
                a(f"s_waitcnt vmcnt({(c.gate_all_at - c.prepoll_at) * L})")
                a(f"v_cmp_eq_u64 s[56:57], s[{TAG}:{TAG+1}], v[{PV_POLL}:{PV_POLL+1}]")
                a("s_nop 3")
                gate(a, "all", False)
            if t0 == c.prepoll_at:
                gate_setup(a, c.seamB, False)
                a(f"buffer_load_dwordx2 v[{PV_POLL}:{PV_POLL+1}], v26, s[{FLS}:{FLS+3}], s33 offen sc0 sc1")
            if t0 in c.round_hook: c.round_hook[t0]()
            lp = a.label("p_loop")
            set_soff(a, c, t0, True, False)
            a(f"s_mov_b32 s26, {t1 - t0}")
            a(f"{lp}:")
            a("s_lshl_b32 s29, s28, 3")
            issueA(a, c, None, False); issueB(a, c, None, False)
            a(f"s_add_u32 s28, s28, {stride*8192}")
            a(f"s_sub_u32 s31, s28, {112*8192}")
            a("s_cselect_b32 s28, s28, s31")
            a(f"s_waitcnt vmcnt({(S-2)*L})")
            if DIAG and OPT["steps"]:
                pbar(a)
                a(f"s_sub_u32 s26, s26, 1\ns_cmp_lg_u32 s26, 0\ns_cbranch_scc1 {lp}")
            else:
                a(f"s_sub_u32 s26, s26, 1\ns_cmp_lg_u32 s26, 0\ns_barrier\ns_cbranch_scc1 {lp}")
        j = n - S + 1
        stamp(a, c.sid + 2)
        while j < n:
            j += 1
            if j < n: a(f"s_waitcnt vmcnt({(n-1-j)*L})")
            pbar(a)
    stamp(a, c.sid + 3)
    pbar_flush(a, {'qkv':0,'wo':1,'w1':2,'w2':3}[c.kind])

def own_gate_setup(a, seam_id):
    a(f"""
    v_lshrrev_b32 v2, 2, v1
    s_add_u32 s30, s42, 1
    v_add_u32 v2, s30, v2
    v_and_b32 v2, 7, v2
    v_and_b32 v3, 4, v2
    v_add_u32 v2, v2, v3
    s_and_b32 s30, s25, 4
    v_add_u32 v2, s30, v2
    v_and_b32 v3, 3, v1
    v_lshl_add_u32 v2, v2, 2, v3
    v_lshlrev_b32 v26, 3, v2
    s_lshl_b32 s33, s24, 10
    s_add_u32 s33, s33, {seam_id*16384}
    s_mov_b64 s[56:57], 0
    s_mov_b32 s39, 0x200000
    """)

def w2_producer(a, c):
    n = c.n; S = c.S
    ops = []
    def A(st):
        if 3 <= st < 10: gate(a, st - 3, False)
        if st == 3: stamp(a, c.sid)
        if st == (10 if OPT["w1t"] else 14):
            last = max(i for i, x in enumerate(ops) if x == -7)
            a(f"s_waitcnt vmcnt({len(ops) - 1 - last})")
            a(f"v_cmp_eq_u64 s[56:57], s[{TAG}:{TAG+1}], v[{PV_POLL+2}:{PV_POLL+3}]")
            a("s_mov_b32 s33, s37")
            a("s_nop 3")
            gate(a, "all", False)
        set_soff(a, c, st, True, False)
        issueA(a, c, st % S, False); ops.extend([st] * 4)
    def B(st, same=False):
        if same: a("s_lshl_b32 s29, s28, 3")
        else: set_soff(a, c, st, False, True)
        issueB(a, c, st % S, False); ops.extend([st] * c.NBW)
    def wait(st):
        last = max(i for i, x in enumerate(ops) if 0 <= x <= st)
        a(f"s_waitcnt vmcnt({min(63, len(ops) - 1 - last)})")
    if DIAG and OPT['steps']: a('s_mov_b32 s99, 0\nv_mov_b32 v252, 0')
    own_gate_setup(a, 0)
    apoll = f"buffer_load_dwordx2 v[{PV_POLL}:{PV_POLL+1}], v26, s[{FLS}:{FLS+3}], s33 offen sc0 sc1"
    def acheck(cnt):
        a(f"s_waitcnt vmcnt({cnt})")
        a(f"v_cmp_eq_u64 s[56:57], s[{TAG}:{TAG+1}], v[{PV_POLL}:{PV_POLL+1}]")
        a("s_nop 3")
    if OPT["w1t"]:
        a("s_barrier")
        pre_B(a, c, 1, 4)
        a("s_barrier")
        a(apoll)
        acheck(0)
        sk = a.label("skip_a3"); sk2 = a.label("skip_a3b")
        a(f"""
        s_mov_b32 s40, 0
        s_and_b32 s30, s56, 15
        s_cmp_lg_u32 s30, 15
        s_cbranch_scc1 {sk}
        s_mov_b32 s40, 1
        """)
        set_soff(a, c, 3, True, False)
        issueA(a, c, 3, False)
        a(f"{sk}:")
        pbar(a)
        pbar(a)
        B(4)
        a(f"s_cmp_lg_u32 s40, 0")
        a(f"s_cbranch_scc1 {sk2}")
        A(3)
        a(f"{sk2}:")
        A(4)
        pbar(a)
        A(5); B(5, True)
    else:
        a("s_waitcnt vmcnt(0)")
        pbar(a)
        om = OPT["ownm"]
        pbar(a)
        if om == 1: a(apoll)
        B(4)
        pbar(a)
        if om == 1:
            acheck(4); A(3); B(5); A(4); A(5)
        else:
            B(5); A(3); A(4); A(5)
    wait(3)
    stamp(a, c.sid + 1)
    pbar(a)
    for j in range(3, n):
        st = j - 1 + S
        if st < n:
            if st == (OPT["pb"] if OPT["w1t"] else 12):
                a(f"s_add_u32 s37, s33, {3*16384}")
                a(f"buffer_load_dwordx2 v[{PV_POLL+2}:{PV_POLL+3}], v26, s[{FLS}:{FLS+3}], s37 offen sc0 sc1")
                ops.append(-7)
            A(st); B(st, True)
        if j + 1 < n: wait(j + 1)
        pbar(a)
    stamp(a, c.sid + 3)
    pbar_flush(a, 3)

def touch(a, ptr, total_bytes, sr_=20):
    nl = total_bytes // 128 // 1024
    srd_off(a, sr_, ptr, 0, total_bytes)
    a(f"""
    s_lshl_b32 s30, s2, 2
    s_add_u32 s30, s30, s38
    s_mul_i32 s30, s30, {nl*128}
    v_lshlrev_b32 v2, 7, v1
    s_mov_b32 exec_lo, {hex(((1 << nl) - 1) & 0xffffffff)}
    s_mov_b32 exec_hi, {hex(((1 << nl) - 1) >> 32)}
    buffer_load_dword v253, v2, s[{sr_}:{sr_+3}], s30 offen
    s_mov_b64 exec, -1
    """)
    return 1

def xtouch_setup(a, ptr, nbytes, sr_, vreg):
    srd_off(a, sr_, ptr, 0, nbytes)
    a(f"""
    v_lshrrev_b32 v2, 2, v1
    v_lshlrev_b32 v2, 11, v2
    v_and_b32 v3, 3, v1
    v_lshl_add_u32 v2, v3, 7, v2
    s_and_b32 s30, s2, 3
    s_lshl_b32 s30, s30, 9
    s_lshl_b32 s31, s38, 14
    s_add_u32 s30, s30, s31
    v_add_u32 v2, s30, v2
    v_mov_b32 v3, 0x40000000
    v_cmp_gt_u32 vcc, 32, v1
    v_cndmask_b32 v{vreg}, v3, v2, vcc
    """)

def w2_xtouch(a, q):
    a(f"""
    s_lshr_b32 s30, s2, 4
    s_mul_i32 s30, s30, {7*65536}
    s_bfe_u32 s31, s2, 0x10003
    s_mul_i32 s31, s31, {4*65536 if q < 3 else 0x20000000}
    s_add_u32 s30, s30, s31
    s_add_u32 s30, s30, {q*65536}
    buffer_load_dword v253, v23, s[44:47], s30 offen
    """)
    return 1

def attention_v1(a):
    SC = (32 ** -0.5) * LOG2E
    vF, vL, vQH = 2, 4, 5
    Q = 8; O = 16; SB = 32; F = 176; T = 248
    a(f"""
    v_bfe_u32 v6, v1, 4, 1
    v_lshlrev_b32 v{vF}, 10, v6
    v_lshrrev_b32 v6, 5, v1
    v_lshl_add_u32 v{vF}, v6, 8, v{vF}
    v_and_b32 v7, 15, v1
    v_lshl_add_u32 v{vF}, v7, 4, v{vF}
    v_and_b32 v7, 31, v1
    v_lshlrev_b32 v6, 2, v6
    v_sub_u32 v{vQH}, v7, v6
    s_lshr_b32 s34, s3, 2            ; hh
    s_and_b32 s35, s3, 3             ; qb
    s_mul_i32 s30, s34, {HEADW}
    s_lshl_b32 s31, s35, 11
    s_add_u32 s30, s30, s31
    v_add_u32 v{vL}, s30, v{vF}
    ds_read_b128 v[{Q}:{Q+3}], v{vL} offset:49152
    ds_read_b128 v[{Q+4}:{Q+7}], v{vL} offset:{49152+512}
    """)
    def fr(b, i): return F + b * 8 + i * 4
    rd = []
    for b in range(9):
        for i in range(2):
            rd.append(f"ds_read_b128 v[{fr(b,i)}:{fr(b,i)+3}], v{vL} offset:{b*2048 + i*512}")
    for x in rd[:8]: a(x)
    for r in range(16):
        cst = 8 * (r >> 2) + (r & 3)
        a(f"v_cmp_gt_i32 s[{40+2*r}:{41+2*r}], {cst}, v{vQH}")
    nissued = 8
    rv = []
    for b in range(9):
        for i in range(2):
            rv.append(f"ds_read_b128 v[{fr(b,i)}:{fr(b,i)+3}], v{vL} offset:{24576 + b*2048 + i*512}")
    for b in range(9):
        a(f"s_waitcnt lgkmcnt({nissued - (2*b+2)})")
        s = SB + 16 * b
        a(f"v_mfma_f32_32x32x16_bf16 v[{s}:{s+15}], v[{fr(b,0)}:{fr(b,0)+3}], v[{Q}:{Q+3}], 0")
        if nissued < 18: a(rd[nissued]); nissued += 1
        a(f"v_mfma_f32_32x32x16_bf16 v[{s}:{s+15}], v[{fr(b,1)}:{fr(b,1)+3}], v[{Q+4}:{Q+7}], v[{s}:{s+15}]")
        if nissued < 18: a(rd[nissued]); nissued += 1
    for x in rv[:14]: a(x)
    skip = a.label("at_valid")
    a(f"""
    s_lshl_b32 s30, s24, 2
    s_add_u32 s30, s30, s35
    s_cmp_ge_u32 s30, 8
    s_cbranch_scc1 {skip}
    """)
    for b in range(8):
        nb = a.label("at_nb")
        a(f"s_cmp_ge_u32 s30, {8-b}")
        a(f"s_cbranch_scc1 {nb}")
        for r in range(16):
            a(f"v_mov_b32 v{SB+16*b+r}, 0xff800000")
        a(f"{nb}:")
    a(f"{skip}:")
    mx = T; mx2 = T + 1; sm = T + 2
    a(f"v_max_f32 v{mx}, v{SB+16}, v{SB+17}")
    a(f"v_max_f32 v{mx2}, v{SB+18}, v{SB+19}")
    idx = list(range(20, 128))
    for k in range(0, len(idx), 2):
        m = mx if (k // 2) % 2 == 0 else mx2
        a(f"v_max3_f32 v{m}, v{SB+idx[k]}, v{SB+idx[k+1]}, v{m}")
    for r in range(16):
        a(f"v_cndmask_b32 v{SB+r}, v{SB+128+r}, v{SB+r}, s[{40+2*r}:{41+2*r}]")
    for k in range(0, 16, 2):
        m = mx if (k // 2) % 2 == 0 else mx2
        a(f"v_max3_f32 v{m}, v{SB+k}, v{SB+k+1}, v{m}")
    for x in rv[14:]: a(x)
    a(f"""
    v_max_f32 v{mx}, v{mx}, v{mx2}
    v_mov_b32 v{mx2}, v{mx}
    v_permlane32_swap_b32 v{mx}, v{mx2}
    v_max_f32 v{mx}, v{mx}, v{mx2}
    v_mov_b32 v{Q}, {f32(SC)}
    v_mov_b32 v{Q+1}, {f32(SC)}
    v_mul_f32 v{Q+2}, {f32(-SC)}, v{mx}
    v_mul_f32 v{Q+3}, {f32(-SC)}, v{mx}
    v_mov_b32 v{sm}, 0
    v_mov_b32 v{sm+1}, 0
    s_waitcnt lgkmcnt(0)
    s_barrier
    """)
    sk = a.label("skip_x1")
    a(f"""
    s_cmp_lt_u32 s3, 4
    s_cbranch_scc1 {sk}
    s_mul_i32 s30, s24, {64*7168}
    s_mul_i32 s31, s38, 7168
    """)
    for i in range(7):
        if i % 4 == 0: a(f"s_add_u32 m0, s31, {XB1 + i*1024}")
        a(f"buffer_load_dwordx4 v{O+i}, s[20:23], s30 offen offset:{(i&3)*1024} lds")
    if OPT["sk"] and OPT["sent"] == 1:
        sk2 = a.label("skip_x2")
        a(f"s_branch {sk2}")
        a(f"{sk}:")
        srd_off(a, 20, P_WS, XP_OFF, 8 * MB)
        a(f"""
        s_lshl_b32 s30, s24, 19
        s_lshl_b32 s31, s3, 13
        s_add_u32 s30, s30, s31
        s_lshl_b32 s31, s25, 15
        s_add_u32 s30, s30, s31
        v_lshlrev_b32 v{O+4}, 4, v1
        """)
        for i in range(4): a(f"v_mov_b32 v{O+i}, -1")
        for mt in range(4):
            a(f"buffer_store_dwordx4 v[{O}:{O+3}], v{O+4}, s[20:23], s30 offen offset:{mt*1024} sc0 sc1")
        a(f"{sk2}:")
    else:
        a(f"{sk}:")
    def pack(s):
        for d, r in [(0, 0), (1, 2), (2, 8), (3, 10), (4, 4), (5, 6), (6, 12), (7, 14)]:
            a(f"v_cvt_pk_bf16_f32 v{s+d}, v{s+r}, v{s+r+1}")
    first = [True]
    def pv(b, s):
        c0 = "0" if first[0] else f"v[{O}:{O+15}]"
        first[0] = False
        a(f"v_mfma_f32_32x32x16_bf16 v[{O}:{O+15}], v[{fr(b,0)}:{fr(b,0)+3}], v[{s}:{s+3}], {c0}")
        a(f"v_mfma_f32_32x32x16_bf16 v[{O}:{O+15}], v[{fr(b,1)}:{fr(b,1)+3}], v[{s+4}:{s+7}], v[{O}:{O+15}]")
    pending = None
    for b in [0, 1, 2, 3, 4, 5, 6, 7]:
        s = SB + 16 * b
        for r in range(0, 16, 2):
            a(f"v_pk_fma_f32 v[{s+r}:{s+r+1}], v[{s+r}:{s+r+1}], v[{Q}:{Q+1}], v[{Q+2}:{Q+3}]")
        if pending is not None:
            for p in pending: pv(*p)
            pending = None
        for r in range(16):
            a(f"v_exp_f32 v{s+r}, v{s+r}")
        for r in range(0, 16, 2):
            a(f"v_pk_add_f32 v[{sm}:{sm+1}], v[{sm}:{sm+1}], v[{s+r}:{s+r+1}]")
        if b == 0:
            s8 = SB + 128
            for r in range(16):
                a(f"v_cndmask_b32 v{s8+r}, v{s+r}, 0, s[{40+2*r}:{41+2*r}]")
                a(f"v_cndmask_b32 v{s+r}, 0, v{s+r}, s[{40+2*r}:{41+2*r}]")
            pack(s); pack(s8)
            pending = [(0, s), (8, s8)]
        else:
            pack(s)
            pending = [(b, s)]
    for p in pending: pv(*p)
    srd_off(a, 16, P_WS, O_OFF, 4 * MB)
    a(f"""
    v_add_f32 v{sm}, v{sm}, v{sm+1}
    v_mov_b32 v{sm+1}, v{sm}
    v_permlane32_swap_b32 v{sm}, v{sm+1}
    v_add_f32 v{sm}, v{sm}, v{sm+1}
    v_rcp_f32 v{sm+1}, v{sm}
    v_rcp_f32 v{sm}, v{sm}
    s_lshl_b32 s30, s24, 18
    s_lshl_b32 s31, s25, 14
    s_add_u32 s30, s30, s31
    s_lshl_b32 s31, s34, 13
    s_add_u32 s30, s30, s31
    s_lshl_b32 s31, s35, 11
    s_add_u32 s30, s30, s31
    """)
    for r in range(0, 16, 2):
        a(f"v_pk_mul_f32 v[{O+r}:{O+r+1}], v[{O+r}:{O+r+1}], v[{sm}:{sm+1}]")
    pack(O)
    a(f"""
    buffer_store_dwordx4 v[{O}:{O+3}], v{vF}, s[16:19], s30 offen sc0 sc1
    buffer_store_dwordx4 v[{O+4}:{O+7}], v{vF}, s[16:19], s30 offen offset:512 sc0 sc1
    """)
    stamp(a, 10)
    signal(a, 1, 3, SB)
    stamp(a, 11)

def attention(a):
    if not OPT["att2"]: return attention_v1(a)
    SC = (32 ** -0.5) * LOG2E
    vF, vL, vQH = 2, 4, 5
    Q = 8; O = 16; SB = 32; F = 176; T = 248
    MK = O + 8
    ONES = Q + 4
    LS = SB + 128
    mx = T; mx2 = T + 1
    a(f"""
    v_bfe_u32 v6, v1, 4, 1
    v_lshlrev_b32 v{vF}, 10, v6
    v_lshrrev_b32 v6, 5, v1
    v_lshl_add_u32 v{vF}, v6, 8, v{vF}
    v_and_b32 v7, 15, v1
    v_lshl_add_u32 v{vF}, v7, 4, v{vF}
    s_lshr_b32 s34, s3, 2
    s_and_b32 s35, s3, 3
    s_mul_i32 s30, s34, {HEADW}
    s_lshl_b32 s31, s35, 11
    s_add_u32 s30, s30, s31
    v_add_u32 v{vL}, s30, v{vF}
    ds_read_b128 v[{Q}:{Q+3}], v{vL} offset:49152
    ds_read_b128 v[{Q+4}:{Q+7}], v{vL} offset:{49152+512}
    """)
    def fr(b, i): return F + b * 8 + i * 4
    order = [0, 8, 1, 2, 3, 4, 5, 6, 7]
    rd = [f"ds_read_b128 v[{fr(b,i)}:{fr(b,i)+3}], v{vL} offset:{b*2048 + i*512}" for b in order for i in range(2)]
    rv = [f"ds_read_b128 v[{fr(b,i)}:{fr(b,i)+3}], v{vL} offset:{24576 + b*2048 + i*512}" for b in order for i in range(2)]
    for x in rd[:8]: a(x)
    a(f"""
    v_and_b32 v7, 31, v1
    v_lshlrev_b32 v6, 2, v6
    v_sub_u32 v{vQH}, v7, v6
    v_mov_b32 v6, 0xffff0000
    """)
    msk = lambda r: f"s[{40+2*r}:{41+2*r}]"
    for r in range(16):
        a(f"v_cmp_gt_i32 {msk(r)}, {8 * (r >> 2) + (r & 3)}, v{vQH}")
    PK = [(0, 0), (1, 2), (2, 8), (3, 10), (4, 4), (5, 6), (6, 12), (7, 14)]
    fill = {k: [] for k in range(9)}
    for d, r in PK:
        fill[d // 4].append(f"v_cndmask_b32 v{MK+d}, 0, v6, {msk(r+1)}")
        fill[d // 4].append(f"v_cndmask_b32 v{MK+d}, v{MK+d}, -1, {msk(r)}")
    def merge(): return [f"v_cndmask_b32 v{SB+r}, v{SB+128+r}, v{SB+r}, {msk(r)}" for r in range(16)]
    def maxblk(b, first=False):
        o = []; s_ = SB + 16 * b
        for k in range(0, 16, 2):
            m = mx if (k // 2) % 2 == 0 else mx2
            if first and k < 4: o.append(f"v_max_f32 v{m}, v{s_+k}, v{s_+k+1}")
            else: o.append(f"v_max3_f32 v{m}, v{s_+k}, v{s_+k+1}, v{m}")
        return o
    mg = merge()
    fill[3] += mg[:8]; fill[4] += mg[8:] + maxblk(1, True)[:4]
    fill[5] += maxblk(1, True)[4:] + maxblk(0); fill[6] += maxblk(2) + maxblk(3)[:4]
    fill[7] += maxblk(3)[4:] + maxblk(4); fill[8] += maxblk(5)
    nissued = 8
    late = []
    for k, b in enumerate(order):
        a(f"s_waitcnt lgkmcnt({nissued - (2*k+2)})")
        s_ = SB + 16 * b
        fl = fill[k]; h = len(fl) // 2
        if OPT["bis"] == 1: h = 0
        if OPT["bis"] == 2: late += fl; fl = []
        a(f"v_mfma_f32_32x32x16_bf16 v[{s_}:{s_+15}], v[{fr(b,0)}:{fr(b,0)+3}], v[{Q}:{Q+3}], 0")
        if nissued < 18: a(rd[nissued]); nissued += 1
        for x in fl[:h]: a(x)
        a(f"v_mfma_f32_32x32x16_bf16 v[{s_}:{s_+15}], v[{fr(b,1)}:{fr(b,1)+3}], v[{Q+4}:{Q+7}], v[{s_}:{s_+15}]")
        if nissued < 18: a(rd[nissued]); nissued += 1
        for x in fl[h:]: a(x)
    for x in rv[:12]: a(x)
    for x in late + maxblk(6) + maxblk(7): a(x)
    skip = a.label("at_valid")
    a(f"""
    s_lshl_b32 s30, s24, 2
    s_add_u32 s30, s30, s35
    s_cmp_ge_u32 s30, 8
    s_cbranch_scc1 {skip}
    v_mov_b32 v7, 0xff800000
    """)
    for r in range(16):
        a(f"v_cndmask_b32 v{SB+r}, v{SB+r}, v7, {msk(r)}")
    for b in range(1, 8):
        nb = a.label("at_nb")
        a(f"s_cmp_ge_u32 s30, {8-b}")
        a(f"s_cbranch_scc1 {nb}")
        for r in range(16):
            a(f"v_mov_b32 v{SB+16*b+r}, v7")
        a(f"{nb}:")
    for b in range(8):
        for x in maxblk(b, b == 0): a(x)
    a(f"{skip}:")
    for x in rv[12:]: a(x)
    a(f"""
    v_max_f32 v{mx}, v{mx}, v{mx2}
    v_mov_b32 v{Q}, {f32(SC)}
    v_mov_b32 v{Q+1}, {f32(SC)}
    v_mov_b32 v{mx2}, v{mx}
    """)
    for i in range(4): a(f"v_mov_b32 v{ONES+i}, 0x3f803f80")
    a(f"""
    v_permlane32_swap_b32 v{mx}, v{mx2}
    v_max_f32 v{mx}, v{mx}, v{mx2}
    v_mul_f32 v{Q+2}, {f32(-SC)}, v{mx}
    v_mul_f32 v{Q+3}, {f32(-SC)}, v{mx}
    """)
    def free_lds():
        a("s_waitcnt lgkmcnt(0)")
        a("s_barrier")
        sk = a.label("skip_x1")
        a(f"""
        s_cmp_lt_u32 s3, 4
        s_cbranch_scc1 {sk}
        """)
        if OPT["deepb"]:
            cw = mk("wo", **CFG["wo"]); cw.bstep = 64 * cw.ldb; cw.pvb = 250; cw.s35 = "s33"
            a("s_lshl_b32 s33, s38, 11")
            pre_B(a, cw, 4, 12)
        a(f"""
        s_mul_i32 s30, s24, {64*7168}
        s_mul_i32 s31, s38, 7168
        """)
        for i in range(7):
            if i % 4 == 0: a(f"s_add_u32 m0, s31, {xb1() + i*1024}")
            a(f"buffer_load_dwordx4 v{O+i}, s[20:23], s30 offen offset:{(i&3)*1024} lds")
        a(f"{sk}:")
    def pack(s_):
        return [f"v_cvt_pk_bf16_f32 v{s_+d}, v{s_+r}, v{s_+r+1}" for d, r in PK]
    fo = [True]; fl_ = [True]
    def pv(b, s_):
        o = []
        for i in range(2):
            c0 = "0" if fo[0] else f"v[{O}:{O+15}]"; fo[0] = False
            o.append(f"v_mfma_f32_32x32x16_bf16 v[{O}:{O+15}], v[{fr(b,i)}:{fr(b,i)+3}], v[{s_+4*i}:{s_+4*i+3}], {c0}")
        return o
    def rsum(s_):
        o = []
        for i in range(2):
            c0 = "0" if fl_[0] else f"v[{LS}:{LS+15}]"; fl_[0] = False
            o.append(f"v_mfma_f32_32x32x16_bf16 v[{LS}:{LS+15}], v[{ONES}:{ONES+3}], v[{s_+4*i}:{s_+4*i+3}], {c0}")
        return o
    pend = []
    BARB = OPT["attbar"]
    held = []
    for b in range(8):
        s_ = SB + 16 * b
        if b == BARB:
            free_lds(); pend += [x for bb, ss in held for x in pv(bb, ss)]; held = []
        work = [f"v_pk_fma_f32 v[{s_+r}:{s_+r+1}], v[{s_+r}:{s_+r+1}], v[{Q}:{Q+1}], v[{Q+2}:{Q+3}]" for r in range(0, 16, 2)]
        work += [f"v_exp_f32 v{s_+r}, v{s_+r}" for r in range(16)]
        work += pack(s_)
        take = pend[:6]; pend = pend[6:]
        for x in {3: interleave(work, take, 7, 1, 6), 5: interleave(work, take, 7, 3, 1), 6: interleave(work, take, 1, 1, 1), 7: interleave(work, take, 7, 8, 2), 8: interleave(work, take, 23, 1, 1)}.get(OPT["bis"], interleave(work, take, 2, 4, 1)): a(x)
        if b == 0:
            for d in range(8): a(f"v_and_b32 v{s_+8+d}, v{MK+d}, v{s_+d}")
            for d in range(8): a(f"v_xor_b32 v{s_+d}, v{s_+8+d}, v{s_+d}")
            pend += rsum(s_ + 8) + rsum(s_)
            blocks = [(0, s_ + 8), (8, s_)]
        else:
            pend += rsum(s_)
            blocks = [(b, s_)]
        if b < BARB: held += blocks
        else: pend += [x for bb, ss in blocks for x in pv(bb, ss)]
    for x in pend: a(x)
    srd_off(a, 16, P_WS, O_OFF, 4 * MB)
    a(f"""
    s_lshl_b32 s30, s24, 18
    s_lshl_b32 s31, s25, 14
    s_add_u32 s30, s30, s31
    s_lshl_b32 s31, s34, 13
    s_add_u32 s30, s30, s31
    s_lshl_b32 s31, s35, 11
    s_add_u32 s30, s30, s31
    """)
    if OPT["bis"] == 4: a("s_nop 15\ns_nop 15")
    a(f"v_rcp_f32 v{mx}, v{LS}")
    a(f"v_rcp_f32 v{mx+1}, v{LS}")
    for r in range(0, 16, 2):
        a(f"v_pk_mul_f32 v[{O+r}:{O+r+1}], v[{O+r}:{O+r+1}], v[{mx}:{mx+1}]")
    for x in pack(O): a(x)
    a(f"""
    buffer_store_dwordx4 v[{O}:{O+3}], v{vF}, s[16:19], s30 offen sc0 sc1
    buffer_store_dwordx4 v[{O+4}:{O+7}], v{vF}, s[16:19], s30 offen offset:512 sc0 sc1
    """)
    if OPT["owno"]:
        a(f"""
        s_lshl_b32 s30, s3, 11
        v_add_u32 v{vL}, s30, v{vF}
        ds_write_b128 v{vL}, v[{O}:{O+3}]
        ds_write_b128 v{vL}, v[{O+4}:{O+7}] offset:512
        """)
    stamp(a, 10)
    signal(a, 1, 3, SB)
    if OPT["owno"]: a("s_waitcnt lgkmcnt(0)")
    stamp(a, 11)

def build(header_src=None):
    a = Asm()
    C = {k: mk(k, **v) for k, v in CFG.items()}
    kernel_begin(a, KNAME)
    if OPT["t0"]: a("s_memrealtime s[96:97]")
    a(f"""
    s_cmp_ge_u32 s2, 256
    s_cbranch_scc1 L_end
    s_load_dwordx16 s[80:95], s[0:1], 0
    s_load_dwordx2 s[4:5], s[0:1], 64
    v_lshrrev_b32 v2, 6, v0
    v_and_b32 v1, 63, v0
    v_readfirstlane_b32 s3, v2
    s_getreg_b32 s74, hwreg(HW_REG_XCC_ID)
    s_and_b32 s74, s74, 15
    s_mov_b32 s{TAG}, 0
    s_mov_b32 s{TAG+1}, 0
    s_waitcnt lgkmcnt(0)
    """)
    srd_off(a, FLS, P_WS, FL_OFF, 131072)
    if DIAG: a(f"v_mov_b32 v{VS}, 0")
    stamp(a, 63)
    a("""
    s_cmp_ge_u32 s3, 4
    s_cbranch_scc1 L_prod
    """)
    a("""
    s_or_b32 s30, s2, s3
    s_cmp_lg_u32 s30, 0
    s_cbranch_scc1 L_notag
    """)
    srd_off(a, 16, P_DBG, 0, 256)
    a("""
    """)
    a("s_mov_b64 s[30:31], s[96:97]" if OPT["t0"] else "s_memrealtime s[30:31]")
    a("""
    v_mov_b32 v4, 0
    s_waitcnt lgkmcnt(0)
    s_or_b32 s30, s30, 1
    v_mov_b32 v2, s30
    v_mov_b32 v3, s31
    s_mov_b64 exec, 1
    buffer_store_dwordx2 v[2:3], v4, s[16:19], 0 offen sc0 sc1
    s_mov_b64 exec, -1
    L_notag:
    """)
    if OPT["cpf"]: code_prefetch(a)
    if OPT["prio"]: a(f"s_setprio {OPT['prio']}")
    gemm_consumer(a, C["qkv"])
    a("s_barrier")
    a("L_attn:")
    stamp(a, 9)
    attention(a)
    a("""
    s_barrier
    s_cmp_ge_u32 s3, 4
    s_cbranch_scc1 L_prod2
    """)
    colsum_tile(a, C["w1"], xb1(), "s3", 1, 32)
    if OPT["deepb"]: a("s_barrier")
    if OPT["cpf"] & 2: code_prefetch(a)
    gemm_consumer(a, C["wo"])
    if OPT["cpf"] & 4: code_prefetch(a)
    gemm_consumer(a, C["w1"])
    gemm_consumer(a, C["w2"])
    if OPT["spin"]:
        a(f"""
        s_waitcnt vmcnt(0)
        L_spin:
        s_memrealtime s[96:97]
        s_waitcnt lgkmcnt(0)
        s_sub_u32 s96, s96, s{TAG}
        s_cmp_lt_u32 s96, {OPT["spin"]}
        s_cbranch_scc1 L_spin
        """)
    stamp_flush(a)
    a("s_endpgm")
    C["w2"].ool()
    if OPT["reslate"]: C["wo"].ool()
    a("L_prod:")
    a("s_sub_u32 s38, s3, 4")
    c = C["qkv"]
    prod_setup(a, c)
    cq = c
    def q_extra():
        vb, sr_ = PV_B, 12
        if OPT["dil"]:
            cx = mk("qkv", **CFG["qkv"]); cx.pstride = 128; cx.bcol = 384
            vb, sr_ = 16, 20
            b_setup(a, cx, vb, sr_, False)
        a(f"s_mul_i32 s33, s24, {64*cq.ldb}")
        for i in range(cq.NBW):
            if OPT["dil"]:
                a(f"s_add_u32 m0, s35, {XB0 + i*1024}")
                a(f"buffer_load_dwordx4 v{vb+i}, s[{sr_}:{sr_+3}], s33 offen lds")
                continue
            if i % 4 == 0: a(f"s_add_u32 m0, s35, {XB0 + i*1024}")
            a(f"buffer_load_dwordx4 v{vb+i}, s[{sr_}:{sr_+3}], s33 offen offset:{(i&3)*1024} lds")
        return cq.NBW
    def q_colsum(part=None):
        if part in (None, 0):
            a(f"""
            v_mov_b32 v2, {ST_TAG}
            ds_read_b64 v[{PV_RD}:{PV_RD+1}], v2
            s_waitcnt lgkmcnt(0)
            v_readfirstlane_b32 s{TAG}, v{PV_RD}
            v_readfirstlane_b32 s{TAG+1}, v{PV_RD+1}
            """)
        a("s_setprio 3")
        colsum_tile(a, cq, XB0, "s38", 0, PV_RD, part)
        a("s_setprio 0")
        return 1 if part in (None, 3) else 0
    def hi(f):
        def g():
            a("s_setprio 3"); r = f(); a("s_setprio 0"); return r
        return g
    side = {-1: [q_extra], max(OPT['early0'], 1): [q_colsum], 12: [lambda: gather_cs_setup(a, cq), lambda: gather_rs_setup(a, cq)],
            14: [lambda: gather_rs(a, cq), lambda: gather_cs(a, 0, 16)]}
    side[15] = [lambda: a("s_waitcnt vmcnt(0)"), hi(lambda: gather_finish_cs(a, cq)), hi(lambda: gather_finish_rs(a, cq))]
    if OPT["two"] & 1:
        q2 = OPT["q2"]
        side[12] = [lambda: gather_rs_setup(a, cq)]
        side[q2] = [hi(lambda: l2_issue(a, cq))]
        side[q2 + 2] = [hi(lambda: l2_finish(a, cq))]
        side[14] = [lambda: gather_rs(a, cq), lambda: fin_issue(a, cq)]
        side[15] = [lambda: a("s_waitcnt vmcnt(0)"), hi(lambda: fin_finish(a, cq)), hi(lambda: gather_finish_rs(a, cq))]
    if OPT["cspl"]:
        cb = max(OPT["early0"], 1)
        del side[cb]
        for k in range(4): side.setdefault(cb + k, []).append(lambda k=k: q_colsum(k))
    if OPT["help"]:
        def help_setup():
            srd_off(a, 44, P_WQKV, 0, 6 * MB)
            a(f"""
            s_and_b32 s30, s25, 3
            s_lshl_b32 s31, s30, 11
            s_or_b32 s70, s25, 3
            s_lshl_b32 s70, s70, 7
            s_add_u32 s31, s31, s70
            v_mov_b32 v2, 6144
            v_mul_lo_u32 v23, v1, v2
            v_add_u32 v23, s31, v23
            s_and_b32 s70, s24, 7
            s_cmp_eq_u32 s30, 3
            s_cselect_b32 s70, 99, s70
            s_and_b32 s30, s25, 4
            s_cselect_b32 s70, 99, s70
            s_cmp_lg_u32 s38, 0
            s_cselect_b32 s70, 99, s70
            """)
            return 0
        def helper(k):
            def f():
                sk = a.label("skip_help")
                a(f"""
                s_cmp_lg_u32 s70, {k & 7}
                s_cbranch_scc1 {sk}
                s_mov_b32 s30, {(k + OPT['help']) * 64 * 6144}
                buffer_load_dword v253, v23, s[44:47], s30 offen
                {sk}:
                """)
                return 0
            return f
        side[-1].append(help_setup)
        for k in range(0, 16 - OPT["help"]): side.setdefault(k, []).insert(0, helper(k))
    if OPT["sk"] and OPT["sent"] == 2:
        def prefill(k):
            def f():
                if k == 0:
                    srd_off(a, 16, P_WS, XP_OFF, 8 * MB)
                    a(f"""
                    s_lshl_b32 s62, s24, 19
                    s_lshl_b32 s31, s38, 13
                    s_add_u32 s62, s62, s31
                    s_lshl_b32 s31, s25, 15
                    s_add_u32 s62, s62, s31
                    v_lshlrev_b32 v27, 4, v1
                    """)
                    for i in range(4): a(f"v_mov_b32 v{28+i}, -1")
                a(f"buffer_store_dwordx4 v[28:31], v27, s[16:19], s62 offen offset:{k*1024} sc0 sc1")
                return 1
            return f
        for k in range(4): side.setdefault(5 + (k // OPT["pfg"]), []).append(prefill(k))
    if OPT["tlb"]:
        def tlbwarm():
            G = OPT["tlb"] * MB // 2 if OPT["tlb"] > 1 else 2 * MB
            a(f"s_mul_i32 s30, s38, {12*MB}")
            a(f"s_add_u32 s30, s30, {8*MB}")
            a(f"s_add_u32 s98, s{P_WS}, s30")
            a(f"s_addc_u32 s99, s{P_WS+1}, 0")
            for k in range(6):
                a(f"s_load_dword s100, s[98:99], 0")
                a(f"s_add_u32 s98, s98, {2*MB}")
                a(f"s_addc_u32 s99, s99, 0")
            a(f"s_lshl_b32 s30, s38, 21")
            for ptr, npg in ((P_W1, 4), (P_OUT, 2), (P_WO, 1)):
                a(f"s_min_u32 s31, s30, {(npg-1)*2*MB}")
                a(f"s_add_u32 s98, s{ptr}, s31")
                a(f"s_addc_u32 s99, s{ptr+1}, 0")
                a(f"s_load_dword s101, s[98:99], 0")
            return 0
        side.setdefault(5, []).insert(0, tlbwarm)
    spf = [0]
    def sprefetch(k):
        def f():
            for _ in range(k):
                if spf[0] < 112:
                    a(f"s_load_dword s{100 + (spf[0] & 1)}, s[68:69], {spf[0]*64}")
                    spf[0] += 1
            return 0
        return f
    def spf_setup():
        a(f"""
        s_lshl_b32 s30, s2, 2
        s_add_u32 s30, s30, s38
        s_mul_i32 s30, s30, 7168
        s_add_u32 s68, s{P_W2}, s30
        s_addc_u32 s69, s{P_W2+1}, 0
        """)
        return 0
    if OPT["pf"] == 3:
        side.setdefault(5, []).append(spf_setup)
        for k in range(5, 13): side.setdefault(k, []).append(sprefetch(6))
    gemm_producer(a, c, False, None, side)
    if OPT["xst"]:
        for i in range(4): a(f"v_mov_b32 v{28+i}, v{PV_A+i}")
        a("""
        s_mov_b32 s48, s8
        s_mov_b32 s49, s9
        s_mov_b32 s50, s10
        s_mov_b32 s51, 0x20000
        """)
    a(f"""
    s_sub_u32 s30, s24, 1
    s_max_i32 s30, s30, 0
    s_sub_u32 s31, s24, 2
    s_max_i32 s31, s31, 0
    s_sub_u32 s30, s30, s31
    s_lshl_b32 s30, s30, 11
    v_bfe_u32 v2, v1, 2, 1
    v_mul_lo_u32 v2, v2, s30
    v_and_b32 v3, 3, v1
    v_lshl_add_u32 v2, v3, 3, v2
    s_lshl_b32 s31, s31, 11
    s_lshl_b32 s30, s25, 7
    s_add_u32 s33, s30, s31
    s_add_u32 s33, s33, 65536
    """)
    a(f"""
    s_lshr_b32 s34, s38, 1
    s_and_b32 s35, s38, 1
    s_lshl_b32 s30, s25, 1
    s_add_u32 s30, s30, s34
    s_lshl_b32 s30, s30, 17
    s_lshl_b32 s31, s35, 22
    s_add_u32 s30, s30, s31
    s_add_u32 s30, s30, {K_OFF}
    """)
    srd_off(a, 8, P_WS, "s30", 131072)
    a(f"""
    s_lshl_b32 s30, s24, 13
    s_sub_u32 s30, s30, 16384
    v_lshlrev_b32 v4, 4, v1
    v_add_u32 v4, s30, v4
    s_mul_i32 s34, s34, {HEADW}
    s_mul_i32 s35, s35, 24576
    s_add_u32 s34, s34, s35
    """)
    a("v_mov_b32 v5, v2")
    b_setup(a, C["w1"], 16, 20)
    wait_flags(a, 5, "s33", False, PV_RD)
    stamp(a, 5)
    for q in range(4):
        a(f"s_add_u32 m0, s34, {q*4096}")
        for i in range(4):
            a(f"buffer_load_dwordx4 v4, s[8:11], 0 offen offset:{i*1024}{NBF[OPT['nbf']]} lds")
        if q < 3: a("v_add_u32 v4, 0x1000, v4")
    a("s_mov_b32 s98, s24\ns_mov_b32 s99, s25")
    c = C["wo"]
    prod_setup(a, c)
    a("s_mov_b32 s24, s98\ns_mov_b32 s25, s99")
    if OPT["xt"]:
        xtouch_setup(a, P_WO, 2 * MB, 16, 25)
        a("s_lshr_b32 s37, s2, 3\ns_lshl_b32 s37, s37, 16")
    a("s_waitcnt vmcnt(0)")
    stamp(a, 6)
    a("s_barrier")
    if OPT["xst"]:
        a(f"s_add_u32 m0, s34, {XST}")
        a("s_lshl_b32 s30, s25, 7")
        for i in range(4):
            a(f"buffer_load_dwordx4 v{28+i}, s[48:51], s30 offen offset:{i*1024} lds")
    pre_B(a, c, 0, 4 if OPT["deepb"] else None)
    if OPT["xt"]:
        a("buffer_load_dword v253, v25, s[16:19], s37 offen")
    elif OPT["pf"]: touch(a, P_WO, 2 * MB, 16)
    if OPT["deepb"]: a("v_mov_b32 v250, v8\nv_mov_b32 v251, v9")
    a("s_branch L_attn")
    a("L_prod2:")
    c = C["wo"]
    prod_setup(a, c)
    a(f"s_add_u32 s29, s29, {c.SB*64*c.ldb}")
    a(f"s_and_b32 s29, s29, {16*64*c.ldb - 1}")
    gate_setup(a, 1, True)
    if OPT["deepb"]: a("s_barrier")
    gemm_producer(a, c, True, "wide")
    c = C["w1"]; c1 = c
    prod_setup(a, c)
    if OPT["wobar"] == 1: a("s_barrier")
    pre_B(a, c, 0, 1 if OPT["wobar"] >= 2 else None)
    gather_cs_setup(a, c)
    gather_rs_setup(a, c)
    if C["w2"].early: w2_early_setup(a, C["w2"])
    if OPT["wobar"] >= 2:
        a("s_barrier")
        pre_B(a, c, 1, 3)
    gate_setup(a, 2, False)
    def w2hook(k):
        def f():
            sk = a.label("skip_pf")
            a(f"""
            s_lshr_b32 s30, s2, 3
            s_and_b32 s30, s30, 7
            s_cmp_lg_u32 s30, {k}
            s_cbranch_scc1 {sk}
            """)
            touch(a, P_W2, 7 * MB, 44)
            a(f"{sk}:")
            return 0
        return f
    side = {}
    if OPT["pf"] == 2:
        for k in range(8): side.setdefault(3 + k, []).append(w2hook(k))
    if OPT["pf"] == 3:
        spf_setup()
        for k in range(0, 13): side.setdefault(k, []).append(sprefetch(5))
    def rs_add(p0, p1):
        def f():
            for p in range(max(p0, 1), p1): a(f"v_add_f32 v{G_RS}, v{G_RS}, v{G_RS+p}")
        return f
    side.setdefault(8, []).append(hi(rs_add(0, 16)))
    side.setdefault(13, []).append(hi(rs_add(16, 26)))
    side[14] = [lambda: gather_cs(a, 0, 16)]
    side[15] = [hi(rs_add(26, 32)), lambda: a("s_waitcnt vmcnt(0)"), hi(lambda: gather_finish_cs(a, c1)), hi(lambda: gather_finish_rs(a, c1))]
    if C["w2"].early:
        c2 = C["w2"]
        side[14].append(lambda: pre_B(a, c2, 0, 1))
        side[15] = [lambda: pre_B(a, c2, 1, 4), hi(rs_add(26, 32)), lambda: a("s_waitcnt vmcnt(16)"), hi(lambda: gather_finish_cs(a, c1)), hi(lambda: gather_finish_rs(a, c1))]
    if OPT["two"] & 2:
        side.setdefault(2, []).append(hi(lambda: l2_issue(a, c1)))
        side.setdefault(4, []).append(hi(lambda: l2_finish(a, c1)))
        side[14] = [lambda: fin_issue(a, c1), lambda: pre_B(a, c2, 0, 1)]
        side[15] = [lambda: pre_B(a, c2, 1, 4), hi(rs_add(26, 32)), lambda: a("s_waitcnt vmcnt(16)"), hi(lambda: fin_finish(a, c1)), hi(lambda: gather_finish_rs(a, c1))]
    if OPT["w1t"]:
        side[13].append(lambda: fin_issue(a, c1))
        side[14] = [lambda: pre_B(a, c2, 0, 1), hi(rs_add(26, 30))]
        side[15] = [hi(rs_add(30, 32)), hi(lambda: fin_finish(a, c1)), hi(lambda: gather_finish_rs(a, c1))]
    gemm_producer(a, c, True, "narrow", side, lambda st: gather_rs(a, c1, 2 * st, 2 * st + 2))
    c = C["w2"]
    c.rounds = [(16, OPT['prepoll'], 14), (OPT['prepoll'], 24, 14), (24, 40, 7), (40, 56, 7)]; c.prepoll_at = OPT['prepoll']; c.gate_all_at = 24; c.seamB = 3
    if c.sk:
        c.rounds = [(8, 10, 14), (10, 12, 14), (12, 20, 7), (20, 28, 7)]; c.prepoll_at = 10; c.gate_all_at = 12
    prod_setup(a, c)
    if not c.early: pre_B(a, c)
    side = {}
    c.round_hook = {}
    if OPT["xt"] and not c.sk:
        xtouch_setup(a, P_W2, 7 * MB, 44, 23)
        w2_xtouch(a, 0); w2_xtouch(a, 3)
        side = {4: [lambda: w2_xtouch(a, 1)]}
        c.round_hook = {24: lambda: w2_xtouch(a, 2)}
    if not OPT["w1t"]:
        a("s_barrier")
        a("s_barrier")
    if OPT["own"]:
        w2_producer(a, c)
    else:
        gate_setup(a, 0, False)
        gemm_producer(a, c, True, "narrow", side, None, 8 if c.sk else 16)
    stamp_flush(a)
    a("L_end:")
    a("s_endpgm")
    a("L_code_end:")
    if OPT["lay"]:
        L = a.lines
        i_br = next(i for i, x in enumerate(L) if x.strip() == "s_cbranch_scc1 L_prod")
        i0 = L.index("L_prod:")
        i1 = next(i for i, x in enumerate(L) if x.strip() == "s_branch L_attn")
        blk = L[i0:i1 + 1]
        a.lines = L[:i_br] + ["    s_cbranch_scc0 L_cons"] + blk + ["L_cons:"] + L[i_br + 1:i0] + L[i1 + 1:]
    body, nins = hazard.fix(a.lines)
    hdr = []
    if header_src:
        for ln in open(header_src):
            if ln.startswith(";") and "@launch" not in ln:
                hdr.append(ln.rstrip("\n"))
            elif not ln.startswith(";"):
                break
    hdr.append(f"; @launch grid=(256,1,1) block=(512,1,1) lds=163840")
    hdr.append('.amdgcn_target "amdgcn-amd-amdhsa--gfx950"')
    hdr.append(".text")
    hdr.extend(DESC.strip("\n").split("\n"))
    return "\n".join(hdr) + "\n" + "\n".join(body) + "\n" + kernel_desc(KNAME, 256, 102), nins

if __name__ == "__main__":
    if "--diag" in sys.argv:
        DIAG = True; sys.argv.remove("--diag")
    for arg in list(sys.argv[1:]):
        if "=" in arg:
            k_, v_ = arg.split("=", 1)
            if "." in k_:
                kk, f_ = k_.split(".")
                for kind_ in (CFG.keys() if kk == "all" else [kk]): CFG[kind_][f_] = int(v_)
            else: OPT[k_] = int(v_)
            sys.argv.remove(arg)
    out = sys.argv[1] if len(sys.argv) > 1 else "p1.s"
    txt, nins = build(header_src="sequential_preLN__sliding_block__dense_activation_silu__prompt.s.ref")
    open(out, "w").write(txt)
    print("wrote", out, len(txt), "bytes; nop states inserted:", nins)
```

```python
import sys, struct
from asmlib import *
import hazard

MB = 1 << 20
K_OFF = 8 * MB
V_OFF = 12 * MB
O_OFF = 16 * MB
H_OFF = 20 * MB
H1_OFF = 24 * MB
FL_OFF = 40 * MB
RS1_OFF = 41 * MB
CSG_OFF = 42 * MB
FIN_OFF = 41 * MB + 524288
XP_OFF = 44 * MB
ST2_OFF = 43 * MB
DIAG_OFF = 64 * MB
LOG2E = 1.4426950408889634
KNAME = "sequential_preLN__sliding_block__dense_activation_silu__prompt_kernel"
P_X, P_WQKV, P_WO, P_W1, P_W2, P_OUT, P_DBG, P_WS = 80, 82, 84, 88, 90, 92, 94, 4
TAG = 72
FLS = 76
ST = 155648
ST_REC, ST_MEAN, ST_RSTD, ST_CS, ST_CSP = ST, ST + 2048, ST + 2560, ST + 3072, ST + 4096
HEADW = 57344
XB0 = 122880
XB1 = 81920
XCH = 147456
XST = 147456
ST_TAG = ST + 4096
HRES = 232
DEF = 200
VS = 254
DIAG = False
OPT = dict(tagx=0, xpc=1, lay=1, fastb=1, owno=0, w1t=0, pb=9, two=2, q2=8, own1=4, ownm=1, own=1, sktail=3, sksig=4, deepb=0, tlb=0, align=0, skrpg=1, bis=5, att2=1, attbar=1, osf=1, t0=0, spin=0, eb2=1, sigA2=2, peel=8, cspl=0, xst=1, reslate=0, sent=0, pfg=1, help=4, snake=1, rot0=4, early0=0, dil=1, sk=1, skfull=0, pf=3, xt=1, prio=0, inv=0, nodma=0, steps=0, kvlocal=0, cpf=1, nbf=1, sigA=3, sigB=3, qnt=0, bar2=0, defer=0, dper=2, dstart=0, prepoll=21, wobar=0)

def xb1(): return 0 if OPT['deepb'] else XB1

DESC = """
; Persistent single-launch transformer block (generated by a hand-written Python emitter, work/gen2.py).
; 256 workgroups (one per CU), 8 waves: waves 0-3 MFMA consumers, waves 4-7 LDS-DMA producers.
; Hand-offs between workgroups: write-through stores, drained, then a per-wave flag carrying a launch-unique tag.
"""

def f32(x):
    return "0x%08x" % struct.unpack("<I", struct.pack("<f", x))[0]

def srd_off(a, d, ptr, off, nrec):
    a(f"s_add_u32 s{d}, s{ptr}, {off}")
    a(f"s_addc_u32 s{d+1}, s{ptr+1}, 0")
    a(f"s_mov_b32 s{d+2}, {nrec}")
    a(f"s_mov_b32 s{d+3}, 0x20000")

def hold(a, key):
    if not OPT.get(key): return
    l = a.label("hold")
    a(f"""
    {l}:
    s_memrealtime s[96:97]
    s_waitcnt lgkmcnt(0)
    s_sub_u32 s96, s96, s{TAG}
    s_cmp_lt_u32 s96, {OPT[key]}
    s_cbranch_scc1 {l}
    """)

def stamp(a, idx):
    if not DIAG: return
    a("s_memrealtime s[96:97]")
    a("s_waitcnt lgkmcnt(0)")
    a(f"v_writelane_b32 v{VS}, s96, {idx}")

def stamp_flush(a):
    if not DIAG: return
    srd_off(a, 16, P_WS, DIAG_OFF, 524288)
    a(f"""
    s_lshl_b32 s30, s2, 11
    s_lshl_b32 s31, s3, 8
    s_add_u32 s30, s30, s31
    v_lshlrev_b32 v{VS+1}, 2, v1
    buffer_store_dword v{VS}, v{VS+1}, s[16:19], s30 offen
    """)

def pbar(a):
    a("s_barrier")
    if DIAG and OPT["steps"]:
        a("s_memtime s[96:97]" if OPT["steps"] == 2 else "s_memrealtime s[96:97]")
        a("""
        s_waitcnt lgkmcnt(0)
        s_mov_b32 m0, s99
        s_nop 0
        v_writelane_b32 v252, s96, m0
        s_add_u32 s99, s99, 1
        """)

def pbar_flush(a, ph):
    if not (DIAG and OPT["steps"]): return
    srd_off(a, 16, P_WS, DIAG_OFF + 524288 * (1 + ph), 524288)
    a(f"""
    s_lshl_b32 s30, s2, 11
    s_lshl_b32 s31, s3, 8
    s_add_u32 s30, s30, s31
    v_lshlrev_b32 v2, 2, v1
    buffer_store_dword v252, v2, s[16:19], s30 offen
    """)

def code_prefetch(a):
    lp = a.label("Lpc"); sk = a.label("skip_cpf")
    a(f"""
    s_getpc_b64 s[30:31]
    {lp}:
    s_sub_u32 s30, s30, {lp}-{KNAME}
    s_subb_u32 s31, s31, 0
    s_lshr_b32 s36, s2, 3
    s_lshl_b32 s36, s36, 11
    s_lshl_b32 s37, s3, 9
    s_add_u32 s36, s36, s37
    v_lshlrev_b32 v14, 7, v1
    v_add_u32 v14, s36, v14
    v_mov_b32 v15, L_code_end-{KNAME}
    v_cmp_gt_u32 vcc, 4, v1
    v_cndmask_b32 v15, 0, v15, vcc
    v_cmp_lt_u32 s[36:37], v14, v15
    v_mov_b32 v15, s31
    v_add_co_u32 v14, vcc, s30, v14
    v_addc_co_u32 v15, vcc, 0, v15, vcc
    s_and_saveexec_b64 s[30:31], s[36:37]
    s_cbranch_execz {sk}
    global_load_dword v253, v[14:15], off
    {sk}:
    s_mov_b64 exec, -1
    """)

def wgmap(a, RX, CX):
    CT = 16 // CX; RB = 16 // RX
    lg = lambda x: x.bit_length() - 1
    a(f"""
    s_and_b32 s30, s2, 7
    s_lshr_b32 s31, s2, 3
    s_lshr_b32 s24, s30, {lg(CX)}
    s_lshl_b32 s24, s24, {lg(RB)}
    s_and_b32 s25, s30, {CX-1}
    s_lshl_b32 s25, s25, {lg(CT)}
    s_lshr_b32 s30, s31, {lg(CT)}
    s_add_u32 s24, s24, s30
    s_and_b32 s30, s31, {CT-1}
    s_add_u32 s25, s25, s30
    """)

def st2(a, text):
    if not OPT["kvlocal"]:
        a(text + " sc0 sc1"); return
    l1 = a.label("skip_s1"); l2 = a.label("skip_s2")
    a(f"""
    s_cmp_lg_u32 s55, 0
    s_cbranch_scc1 {l1}
    {text} sc0 sc1
    s_branch {l2}
    {l1}:
    {text}
    {l2}:
    """)

def signal(a, seam, slot_shift, t, local=False, cnt=0, plain0=False, rbj=('s24', 's25')):
    kv = seam == 0 and not plain0
    a(f"""
    s_lshl_b32 s40, {rbj[0]}, {11 if kv else 10}
    s_lshl_b32 s41, {rbj[1]}, {7 if kv else slot_shift+3}
    s_add_u32 s40, s40, s41
    s_lshl_b32 s41, s3, 3
    s_add_u32 s40, s40, s41
    s_add_u32 s40, s40, {65536 if kv else seam*16384}
    v_mov_b32 v{t}, s{TAG}
    v_mov_b32 v{t+1}, s{TAG+1}
    v_mov_b32 v{t+2}, 0
    s_waitcnt vmcnt({cnt})
    s_mov_b64 exec, 1
    """)
    txt = f"buffer_store_dwordx2 v[{t}:{t+1}], v{t+2}, s[{FLS}:{FLS+3}], s40 offen"
    if local: st2(a, txt)
    else: a(txt + " sc0 sc1")
    a("s_mov_b64 exec, -1")

def wait_flags(a, voff, soff, wide, t):
    lp = a.label("poll"); dn = a.label("polld")
    a(f"s_mov_b32 s39, 0x100000")
    if OPT["inv"] == 1: a("buffer_inv sc1")
    a(f"{lp}:")
    if wide:
        a(f"buffer_load_dwordx4 v[{t}:{t+3}], v{voff}, s[{FLS}:{FLS+3}], {soff} offen sc0 sc1")
    else:
        a(f"buffer_load_dwordx2 v[{t}:{t+1}], v{voff}, s[{FLS}:{FLS+3}], {soff} offen sc0 sc1")
    a("s_waitcnt vmcnt(0)")
    a(f"v_cmp_eq_u64 vcc, s[{TAG}:{TAG+1}], v[{t}:{t+1}]")
    if wide:
        a(f"v_cmp_eq_u64 s[36:37], s[{TAG}:{TAG+1}], v[{t+2}:{t+3}]")
        a("s_nop 3")
        a("s_and_b64 vcc, vcc, s[36:37]")
    else:
        a("s_nop 3")
    a(f"""
    s_cmp_eq_u64 vcc, -1
    s_cbranch_scc1 {dn}
    s_sleep 1
    s_sub_u32 s39, s39, 1
    s_cmp_lg_u32 s39, 0
    s_cbranch_scc1 {lp}
    {dn}:
    """)
    if OPT["inv"] == 2: a("buffer_inv sc1")

class G: pass
NBF = ['', ' sc1', ' sc0']

def mk(kind, **kw):
    c = G(); c.kind = kind; c.__dict__.update(kw)
    c.sk = 0
    c.pvb, c.sb, c.s35 = 8, 12, "s35"
    c.early = 0
    if kind == "wo" and OPT["xst"]: c.S = min(c.S, 4)
    if kind == "w2" and OPT["sk"]:
        c.sk = 1; c.BN = 128; c.NT = 4; c.S = 4; c.BBASE = 65536; c.full = OPT["skfull"]; c.rpg = OPT["skrpg"]; c.pstride = 512
        if OPT["eb2"]:
            c.early = 1; c.pvb, c.sb, c.s35 = 16, 52, "s41"; c.BBASE = 77824
    c.SB = c.S; c.bs0 = 0
    if kind == "wo" and OPT["deepb"]:
        c.S = 3; c.SB = 12; c.bs0 = 8; c.BBASE = 49152
    c.n = c.K // 64 // (2 if c.sk else 1)
    c.BB = c.BN * 128
    c.NBW = c.BB // 4096
    c.gmul = 4 if c.korder == "F" else 8
    c.rdrows = 16 if c.korder == "F" else 4
    c.RS = 128 if c.layout == "panel" else 448
    return c

CFG = dict(
    qkv=dict(K=1024, BN=192, NT=6, S=3, korder="N", layout="panel", wp=P_WQKV, ldb=6144, bcol=128, pstride=2048,
             a_off=None, normal_tiles=(4, 5), RX=2, CX=4, rpg=1, ABASE=0, BBASE=49152, ln=True, sid=0, lt=0, full=0, rot=0),
    wo=dict(K=1024, BN=64, NT=2, S=5, korder="F", layout="panel", wp=P_WO, ldb=2048, bcol=128, pstride=0,
            a_off=O_OFF, normal_tiles=(), RX=2, CX=4, rpg=2, ABASE=0, BBASE=114688, ln=False, sid=16, lt=0, full=1, rot=2),
    w1=dict(K=1024, BN=224, NT=7, S=3, korder="F", layout="w1", wp=P_W1, ldb=7168, bcol=448, pstride=0,
            a_off=H_OFF, normal_tiles=(), RX=2, CX=4, rpg=1, ABASE=0, BBASE=49152, ln=True, sid=24, lt=0, full=0, rot=2),
    w2=dict(K=3584, BN=64, NT=2, S=6, korder="F", layout="panel", wp=P_W2, ldb=2048, bcol=128, pstride=0,
            a_off=H1_OFF, normal_tiles=(), RX=2, CX=4, rpg=2, ABASE=0, BBASE=98304, ln=False, sid=32, lt=0, full=1, rot=0),
)

def gemm_consumer(a, c):
    kind = c.kind; n = c.n; S = c.S; NT = c.NT; RS = c.RS
    vA0, vA10, vB00, vB01, vB02, vA, vA1, vB0, vB1, vB2 = 2, 3, 4, 5, 6, 7, 8, 9, 10, 11
    vG = 12; vCH = 13
    t0, t1 = 14, 15
    ACC = 16
    FX = ACC + 16 * NT
    FSZ = 16 + 4 * NT
    if c.full: FSZ *= 2
    FY = FX + FSZ
    VTOP = FY + FSZ
    acc = lambda mt, nt: ACC + (nt * 4 + mt) * 4
    wgmap(a, c.RX, c.CX)
    T = FX
    if kind == "qkv": row_stats_issue(a, FY)
    a(f"""
    s_lshr_b32 s34, s3, 1
    s_and_b32 s35, s3, 1
    v_lshlrev_b32 v{vCH}, 4, v1
    s_lshl_b32 s30, s34, 12
    v_add_u32 v{vCH}, s30, v{vCH}
    v_lshrrev_b32 v{vG}, 4, v1
    v_bfe_u32 v{T}, v1, 2, 2
    v_and_b32 v{T+1}, 3, v1
    """)
    if c.a_off is None:
        a(f"""
        v_and_b32 v{t0}, 15, v1
        v_lshrrev_b32 v{t1}, 1, v{t0}
        v_xor_b32 v{t1}, v{t1}, v{vG}
        v_lshlrev_b32 v{t1}, 4, v{t1}
        v_lshl_add_u32 v{vA0}, v{t0}, 7, v{t1}
        s_lshl_b32 s30, s34, 13
        v_add_u32 v{vA0}, s30, v{vA0}
        v_xor_b32 v{vA10}, 64, v{vA0}
        """)
        aread = lambda mt, kg: ((vA, vA1)[kg], mt * 2048)
    else:
        a(f"v_mov_b32 v{vA0}, v{vCH}")
        aread = lambda mt, kg: (vA, kg * 8192 + mt * 1024)
    if c.layout == "panel":
        a(f"""
        v_mul_u32_u24 v{t0}, {c.gmul}, v{vG}
        v_add_u32 v{t0}, v{t0}, v{T}
        v_lshlrev_b32 v{t0}, 7, v{t0}
        v_lshl_add_u32 v{t0}, v{T+1}, 3, v{t0}
        v_lshrrev_b32 v{t1}, 1, v{T}
        v_and_b32 v{T+2}, 1, v{vG}
        v_lshl_or_b32 v{t1}, v{T+2}, 1, v{t1}
        s_lshl_b32 s30, s35, 1
        v_xor_b32 v{t1}, s30, v{t1}
        v_lshl_add_u32 v{vB00}, v{t1}, 5, v{t0}
        v_xor_b32 v{t1}, 1, v{t1}
        v_lshl_add_u32 v{vB01}, v{t1}, 5, v{t0}
        """)
        def bread(nt, kg, rd):
            return (vB0 if nt % 2 == 0 else vB1), (nt // 2) * 8192 + kg * 32 * RS + rd * c.rdrows * RS
    else:
        a(f"""
        v_mul_u32_u24 v{t0}, {c.gmul}, v{vG}
        v_add_u32 v{t0}, v{t0}, v{T}
        v_mul_u32_u24 v{t0}, {RS}, v{t0}
        v_lshl_add_u32 v{t0}, v{T+1}, 3, v{t0}
        v_and_b32 v{t1}, 1, v{vG}
        v_lshlrev_b32 v{T+2}, 5, v{t1}
        s_lshl_b32 s30, s35, 8
        v_add_u32 v{T+3}, s30, v{t0}
        v_add_u32 v{vB00}, v{T+3}, v{T+2}
        v_sub_u32 v{vB01}, v{T+3}, v{T+2}
        s_add_u32 s30, s35, 6
        v_xor_b32 v{t1}, s30, v{t1}
        v_lshl_add_u32 v{vB02}, v{t1}, 5, v{t0}
        """)
        def bread(nt, kg, rd):
            o = kg * 32 * RS + rd * c.rdrows * RS
            if nt == 6: return vB2, o
            return (vB0 if nt % 2 == 0 else vB1), o + nt * 32
    RES = VTOP
    if kind == "wo":
        srd_off(a, 20, P_X, 0, 4 * MB)
        a(f"""
        v_and_b32 v{t0}, 15, v1
        v_lshlrev_b32 v{t0}, 11, v{t0}
        v_lshl_add_u32 v{t0}, v{vG}, 3, v{t0}
        s_lshl_b32 s30, s24, 18
        s_lshl_b32 s31, s34, 17
        s_add_u32 s30, s30, s31
        s_lshl_b32 s31, s25, 7
        s_add_u32 s30, s30, s31
        s_lshl_b32 s31, s35, 6
        s_add_u32 s30, s30, s31
        """)
        def res_loads():
            for mt in range(4):
                for nt in range(2):
                    r = RES + mt * 4 + nt * 2
                    a(f"buffer_load_dwordx2 v[{r}:{r+1}], v{t0}, s[20:23], s30 offen offset:{nt*32}")
                a("s_add_u32 s30, s30, 32768")
        if not OPT["reslate"] and not OPT["xst"]: res_loads()
    if kind == "wo" and OPT["xst"]:
        a(f"""
        v_and_b32 v{t0}, 15, v1
        v_lshrrev_b32 v{t1}, 1, v{t0}
        v_lshrrev_b32 v{T}, 1, v{vG}
        s_lshl_b32 s30, s35, 2
        v_add_u32 v{T}, s30, v{T}
        v_xor_b32 v{t1}, v{t1}, v{T}
        v_lshlrev_b32 v{t1}, 4, v{t1}
        v_lshl_add_u32 v{t1}, v{t0}, 7, v{t1}
        v_and_b32 v{T}, 1, v{vG}
        v_lshl_add_u32 v{t1}, v{T}, 3, v{t1}
        s_lshl_b32 s30, s34, 13
        s_add_u32 s30, s30, {XST}
        v_add_u32 v{t1}, s30, v{t1}
        v_xor_b32 v{t0}, 32, v{t1}
        """)
        for mt in range(4):
            for nt in range(2):
                r = RES + mt * 4 + nt * 2
                a(f"ds_read_b64 v[{r}:{r+1}], v{t0 if nt else t1} offset:{mt*2048}")
    for i in range(16 * NT):
        a(f"v_mov_b32 v{ACC+i}, 0")
    abases = [(vA, vA0)] + ([(vA1, vA10)] if c.a_off is None else [])
    bbases = [(vB0, vB00), (vB1, vB01)] + ([(vB2, vB02)] if c.layout != "panel" else [])
    a(f"s_mov_b32 s27, {c.ABASE}")
    a(f"s_mov_b32 s32, {c.BBASE + c.bs0*c.BB}")
    setb = [f"v_add_u32 v{x}, s27, v{y}" for x, y in abases] + [f"v_add_u32 v{x}, s32, v{y}" for x, y in bbases]
    for x in setb: a(x)
    RT = OPT["sktail"] if (c.sk and not c.full) else 0
    W1T = kind == "w1" and OPT["w1t"]
    a(f"s_mov_b32 s26, {n - 2 if W1T else (n - 1 if (c.ln and OPT['peel']) else n - RT)}")
    def reads(F, kg, tiles=None):
        r = []
        tiles = list(range(NT)) if tiles is None else tiles
        for nt in tiles:
            for rd in range(2):
                b, o = bread(nt, kg, rd)
                d = F + 16 + nt * 4 + rd * 2
                r.append(f"ds_read_b64_tr_b16 v[{d}:{d+1}], v{b} offset:{o}")
            if nt == tiles[0]:
                for mt in range(4):
                    d = F + mt * 4
                    b, o = aread(mt, kg)
                    r.append(f"ds_read_b128 v[{d}:{d+3}], v{b} offset:{o}")
        return r
    def mfmas(F, tiles=None):
        m = []
        for nt in (range(NT) if tiles is None else tiles):
            for mt in (range(4) if (nt % 2 == 0 or not OPT["snake"]) else range(3, -1, -1)):
                A = F + mt * 4; B = F + 16 + nt * 4; D = acc(mt, nt)
                if nt in c.normal_tiles:
                    m.append(f"v_mfma_f32_16x16x32_bf16 v[{D}:{D+3}], v[{A}:{A+3}], v[{B}:{B+3}], v[{D}:{D+3}]")
                else:
                    m.append(f"v_mfma_f32_16x16x32_bf16 v[{D}:{D+3}], v[{B}:{B+3}], v[{A}:{A+3}], v[{D}:{D+3}]")
        return m
    loop = a.label("c_loop")
    if kind == "qkv": row_stats_finish(a, FY, FX)
    stamp(a, c.sid)
    a("s_barrier")
    hold(a, "h_" + kind)
    stamp(a, c.sid + 1)
    adv = [f"s_add_u32 s27, s27, 16384", f"s_add_u32 s32, s32, {c.BB}", f"s_cmp_eq_u32 s27, {c.ABASE + S*16384}",
           f"s_cselect_b32 s27, {c.ABASE}, s27"] + ([f"s_cmp_eq_u32 s32, {c.BBASE + c.SB*c.BB}"] if c.SB != S else []) + [f"s_cselect_b32 s32, {c.BBASE}, s32"] + setb
    def pk4(t, p0, p1):
        a(f"v_cvt_pk_bf16_f32 v{t}, v{p0}, v{p0+1}")
        a(f"v_cvt_pk_bf16_f32 v{t+1}, v{p0+2}, v{p0+3}")
        a(f"v_cvt_pk_bf16_f32 v{t+2}, v{p1}, v{p1+1}")
        a(f"v_cvt_pk_bf16_f32 v{t+3}, v{p1+2}, v{p1+3}")
    vX = VTOP + 4
    def sk_send():
        srd_off(a, 20, P_WS, XP_OFF, 8 * MB)
        a(f"""
        s_lshl_b32 s30, s24, {19 - OPT['xpc']}
        s_lshl_b32 s31, s3, {13 - OPT['xpc']}
        s_add_u32 s30, s30, s31
        s_lshl_b32 s31, s25, {15 - OPT['xpc']}
        s_add_u32 s33, s30, s31
        s_xor_b32 s31, s31, {4 << (15 - OPT['xpc'])}
        s_add_u32 s37, s30, s31
        v_lshlrev_b32 v{vX}, 4, v1
        """)
        if OPT["tagx"]:
            SX = 152
            a(f"v_add_u32 v{vX+1}, 0x1000, v{vX}")
            for ch in range(6):
                for k in range(3):
                    i = 3 * ch + k
                    if i < 16:
                        src = acc(i // 4, 2 + (i % 4) // 2) + 2 * (i % 2)
                        a(f"v_cvt_pk_bf16_f32 v{SX+4*ch+k}, v{src}, v{src+1}")
                a(f"v_mov_b32 v{SX+4*ch+3}, s{TAG}")
                a(f"buffer_store_dwordx4 v[{SX+4*ch}:{SX+4*ch+3}], v{vX + ch // 4}, s[20:23], s33 offen offset:{(ch%4)*1024} sc0 sc1")
            return
        for mt in range(4):
            t = acc(mt, 2)
            pk4(t, acc(mt, 2), acc(mt, 3))
            a(f"buffer_store_dwordx4 v[{t}:{t+3}], v{vX}, s[20:23], s33 offen offset:{mt*1024} sc0 sc1")
    RXX = 176
    def xload():
        for ch in range(6):
            a(f"buffer_load_dwordx4 v[{RXX+4*ch}:{RXX+4*ch+3}], v{vX + ch // 4}, s[20:23], s37 offen offset:{(ch%4)*1024} sc0 sc1")
    def epi_setup():
        b = Asm(); r = []
        if kind == "qkv":
            REC, CSQ, MV, RV, CSV = T, T + 16, VTOP, VTOP + 16, VTOP + 32
            b(f"""
            v_and_b32 v{t0}, 15, v1
            v_lshlrev_b32 v{vA}, 4, v{t0}
            s_lshl_b32 s30, s34, 10
            s_add_u32 s30, s30, {ST_REC}
            v_add_u32 v{vA}, s30, v{vA}
            v_lshlrev_b32 v{vA1}, 4, v{vG}
            s_lshl_b32 s30, s35, 7
            s_add_u32 s30, s30, {ST_CS}
            v_add_u32 v{vB0}, s30, v{vA1}
            v_lshlrev_b32 v{vB1}, 2, v{t0}
            v_add_u32 v{vB1}, s30, v{vB1}
            s_lshl_b32 s30, s34, 8
            s_add_u32 s30, s30, {ST_MEAN}
            v_add_u32 v{vA1}, s30, v{vA1}
            """)
            srd_off(b, 16, P_WS, K_OFF, 8 * MB)
            b(f"""
            s_lshl_b32 s30, s25, 1
            s_add_u32 s30, s30, s35
            s_lshl_b32 s30, s30, 17
            s_lshl_b32 s31, s24, 13
            s_add_u32 s30, s30, s31
            s_add_u32 s31, s30, {4*MB}
            s_mul_i32 s33, s35, {HEADW}
            v_add_u32 v{vB2}, s33, v{vCH}
            """)
            for mt in range(4):
                r.append(f"ds_read_b128 v[{REC+4*mt}:{REC+4*mt+3}], v{vA} offset:{mt*256}")
            for nt in range(4):
                r.append(f"ds_read_b128 v[{CSQ+4*nt}:{CSQ+4*nt+3}], v{vB0} offset:{(nt//2)*256 + (nt%2)*64}")
            for mt in range(4):
                r.append(f"ds_read_b128 v[{MV+4*mt}:{MV+4*mt+3}], v{vA1} offset:{mt*64}")
                r.append(f"ds_read_b128 v[{RV+4*mt}:{RV+4*mt+3}], v{vA1} offset:{512 + mt*64}")
            for dt in range(2):
                r.append(f"ds_read_b32 v{CSV+2*dt}, v{vB1} offset:{512 + dt*64}")
        else:
            CSR = T; REC = T + 28
            srd_off(b, 16, P_WS, H1_OFF, 14 * MB)
            b(f"""
            v_and_b32 v{t0}, 15, v1
            v_lshlrev_b32 v{vA}, 4, v{t0}
            s_lshl_b32 s30, s34, 10
            s_add_u32 s30, s30, {ST_REC}
            v_add_u32 v{vA}, s30, v{vA}
            v_lshlrev_b32 v{t1}, 4, v{vG}
            s_lshl_b32 s30, s35, 9
            s_add_u32 s30, s30, {ST_CS}
            v_add_u32 v{vB0}, s30, v{t1}
            s_lshl_b32 s30, s35, 6
            s_add_u32 s30, s30, {ST_CS}
            v_add_u32 v{vB1}, s30, v{t1}
            s_mul_i32 s30, s24, {112*8192}
            s_mul_i32 s31, s25, {7*8192}
            s_add_u32 s30, s30, s31
            s_add_u32 s36, s30, {3*8192}
            s_lshl_b32 s31, s35, 15
            s_add_u32 s30, s30, s31
            s_add_u32 s31, s30, 8192
            s_add_u32 s37, s30, 16384
            s_lshl_b32 s33, s35, 3
            s_add_u32 s33, s33, {XCH}
            v_add_u32 v{vB2}, s33, v{vCH}
            """)
            for mt in range(4):
                r.append(f"ds_read_b128 v[{REC+4*mt}:{REC+4*mt+3}], v{vA} offset:{mt*256}")
            r.append(f"ds_read_b128 v[{CSR+24}:{CSR+27}], v{vB1} offset:{6*64}")
            for nt in range(6):
                r.append(f"ds_read_b128 v[{CSR+4*nt}:{CSR+4*nt+3}], v{vB0} offset:{nt*64}")
        return [x.strip() for x in b.lines], r
    peel = c.ln and OPT["peel"] and not W1T
    def silu_l(mt, nt, e, m, cs):
        p = acc(mt, nt); o = []
        for h in range(2):
            o.append(f"v_pk_fma_f32 v[{p+2*h}:{p+2*h+1}], v[{m}:{m+1}], v[{cs+2*h}:{cs+2*h+1}], v[{p+2*h}:{p+2*h+1}] op_sel_hi:[0,1,1] neg_lo:[1,0,0] neg_hi:[1,0,0]")
        for h in range(2):
            o.append(f"v_pk_mul_f32 v[{e+2*h}:{e+2*h+1}], v[{m}:{m+1}], v[{p+2*h}:{p+2*h+1}] op_sel:[1,0] op_sel_hi:[1,1]")
        for r in range(4): o.append(f"v_exp_f32 v{e+r}, v{e+r}")
        for h in range(2):
            o.append(f"v_pk_fma_f32 v[{e+2*h}:{e+2*h+1}], v[{e+2*h}:{e+2*h+1}], v[{m+2}:{m+3}], v[{m+2}:{m+3}]")
        for r in range(4): o.append(f"v_rcp_f32 v{e+r}, v{e+r}")
        for h in range(2):
            o.append(f"v_pk_mul_f32 v[{p+2*h}:{p+2*h+1}], v[{p+2*h}:{p+2*h+1}], v[{e+2*h}:{e+2*h+1}]")
        return o
    NI = n // 2 if c.full else n - RT
    def w2hook_c():
        if kind == "wo" and OPT["reslate"]:
            back = a.label("woback"); late = a.label("wolate")
            a(f"s_cmp_eq_u32 s26, {OPT['reslate']}")
            a(f"s_cbranch_scc1 {late}")
            a(f"{back}:")
            def ool():
                a(f"{late}:")
                res_loads()
                a(f"s_branch {back}")
            c.ool = ool
        if kind == "w2":
            back = a.label("w2back"); early = a.label("w2early")
            a(f"s_cmp_ge_u32 s26, {NI - OPT['sigB']}")
            a(f"s_cbranch_scc1 {early}")
            a(f"{back}:")
            def ool():
                a(f"{early}:")
                nst = OPT["dper"]
                its = 8 // nst if OPT["defer"] else 0
                for it in range(its):
                    nx = a.label("skip_e")
                    a(f"s_cmp_lg_u32 s26, {NI - it - OPT['dstart']}")
                    a(f"s_cbranch_scc1 {nx}")
                    for k in range(it * nst, it * nst + nst):
                        r = DEF + k * 4
                        a(f"buffer_store_dwordx4 v[{r}:{r+3}], v{vCH}, s[16:19], {'s44' if k < 4 else 's45'} offen offset:{(k%4)*1024} sc0 sc1")
                    a(f"s_branch {back}")
                    a(f"{nx}:")
                a(f"s_cmp_lg_u32 s26, {NI - OPT['sigB']}")
                a(f"s_cbranch_scc1 {back}")
                signal(a, 3, 2, VTOP, rbj=("s42", "s43"))
                a(f"s_branch {back}")
            c.ool = ool

    if c.full:
        H = FSZ // 2
        rd2 = lambda F: reads(F, 0) + reads(F + H, 1)
        mf2 = lambda F: mfmas(F) + mfmas(F + H)
        a(f"s_mov_b32 s26, {n//2}")
        for r in rd2(FX): a(r)
        for x in adv: a(x)
        if kind == "wo" and OPT["owno"] == 2:
            a("s_waitcnt lgkmcnt(0)")
            for x in mf2(FX): a(x)
            a("s_barrier")
            for r in rd2(FY) + adv: a(r)
            a("s_waitcnt lgkmcnt(0)")
            a("s_barrier")
            for x in interleave(mf2(FY), rd2(FX) + adv, 0, 1, c.rpg): a(x)
            a("s_sub_u32 s26, s26, 1")
        if OPT["align"]: a(f".p2align {OPT['align']}")
        a(f"{loop}:")
        w2hook_c()
        a("s_waitcnt lgkmcnt(0)")
        a("s_barrier")
        for x in interleave(mf2(FX), rd2(FY) + adv, 0, 1, c.rpg): a(x)
        a("s_waitcnt lgkmcnt(0)")
        a("s_barrier")
        for x in interleave(mf2(FY), rd2(FX) + adv + ["s_sub_u32 s26, s26, 1", "s_cmp_lg_u32 s26, 0"], 0, 1, c.rpg): a(x)
        a(f"s_cbranch_scc1 {loop}")
        a("s_waitcnt lgkmcnt(0)")
    else:
        for r in reads(FX, 0): a(r)
        if kind == "w1" and OPT["own1"]:
            a("s_waitcnt lgkmcnt(0)")
            for x in interleave(mfmas(FX), reads(FY, 1) + adv, 0, 1, c.rpg): a(x)
            a("s_waitcnt lgkmcnt(0)")
            m_ = mfmas(FY); kb_ = len(m_) - OPT["own1"]
            for x in m_[:kb_]: a(x)
            a("s_barrier")
            for x in interleave(m_[kb_:], reads(FX, 0), 0, 1, 2): a(x)
            a("s_sub_u32 s26, s26, 1")
        if OPT["align"]: a(f".p2align {OPT['align']}")
        a(f"{loop}:")
        w2hook_c()
        a("s_waitcnt lgkmcnt(0)")
        for x in interleave(mfmas(FX), reads(FY, 1) + adv, 0, 1, c.rpg): a(x)
        a("s_waitcnt lgkmcnt(0)")
        a("s_barrier")
        for x in interleave(mfmas(FY), reads(FX, 0) + ["s_sub_u32 s26, s26, 1", "s_cmp_lg_u32 s26, 0"], 0, 1, c.rpg): a(x)
        a(f"s_cbranch_scc1 {loop}")
        a("s_waitcnt lgkmcnt(0)")
        if W1T:
            RECT = 216
            def setst1(st):
                return [f"v_add_u32 v{x}, {c.ABASE + (st % S)*16384}, v{y}" for x, y in abases] + [f"v_add_u32 v{x}, {c.BBASE + (st % S)*c.BB}, v{y}" for x, y in bbases]
            G1 = [0, 1]; G2 = [2, 3, 4, 5, 6]
            b_ = Asm()
            srd_off(b_, 16, P_WS, H1_OFF, 14 * MB)
            b_(f"""
            v_and_b32 v{t0}, 15, v1
            v_lshlrev_b32 v{vA1}, 4, v{t0}
            s_lshl_b32 s30, s34, 10
            s_add_u32 s30, s30, {ST_REC}
            v_add_u32 v{vA1}, s30, v{vA1}
            v_lshlrev_b32 v{t1}, 4, v{vG}
            s_lshl_b32 s30, s35, 9
            s_add_u32 s30, s30, {ST_CS}
            v_add_u32 v{vA10}, s30, v{t1}
            s_lshl_b32 s30, s35, 6
            s_add_u32 s30, s30, {ST_CS}
            v_add_u32 v{t1}, s30, v{t1}
            s_mul_i32 s30, s24, {112*8192}
            s_mul_i32 s31, s25, {7*8192}
            s_add_u32 s30, s30, s31
            s_add_u32 s36, s30, {3*8192}
            s_lshl_b32 s31, s35, 15
            s_add_u32 s30, s30, s31
            s_add_u32 s31, s30, 8192
            s_add_u32 s37, s30, 16384
            """)
            alu = [x.strip() for x in b_.lines]
            for x in interleave(mfmas(FX), reads(FY, 1, G1) + alu, 0, 1, 1): a(x)
            a("s_waitcnt lgkmcnt(0)")
            for x in setst1(15): a(x)
            a("s_barrier")
            for x in interleave(mfmas(FY, G1), reads(FX, 0, G1), 0, 1, 1): a(x)
            a("s_waitcnt lgkmcnt(0)")
            for x in interleave(mfmas(FX, G1), reads(FY, 1, G1), 0, 1, 1): a(x)
            a("s_waitcnt lgkmcnt(0)")
            a("s_barrier")
            rX = [r for r in reads(FX, 0, G2) if "tr_b16" in r]
            st_ = [f"ds_read_b128 v[{RECT+4*mt}:{RECT+4*mt+3}], v{vA1} offset:{mt*256}" for mt in range(4)]
            st_ += [f"ds_read_b128 v[{FX+16+4*nt}:{FX+19+4*nt}], v{vA10} offset:{nt*64}" for nt in range(2)]
            for x in interleave(mfmas(FY, G1), rX + st_, 0, 1, 2): a(x)
            a("s_waitcnt lgkmcnt(0)")
            stamp(a, 50)
            ep = []
            for mt in range(4):
                ep += silu_l(mt, 0, FY + 16, RECT + 4 * mt, FX + 16) + silu_l(mt, 1, FY + 20, RECT + 4 * mt, FX + 20)
                p0 = acc(mt, 0); p1 = acc(mt, 1)
                ep += [f"v_cvt_pk_bf16_f32 v{p0}, v{p0}, v{p0+1}", f"v_cvt_pk_bf16_f32 v{p0+1}, v{p0+2}, v{p0+3}",
                       f"v_cvt_pk_bf16_f32 v{p0+2}, v{p1}, v{p1+1}", f"v_cvt_pk_bf16_f32 v{p0+3}, v{p1+2}, v{p1+3}",
                       f"buffer_store_dwordx4 v[{p0}:{p0+3}], v{vCH}, s[16:19], s30 offen offset:{mt*1024} sc0 sc1"]
            k3 = len(ep) // 3
            rY = [r for r in reads(FY, 1, G2) if "tr_b16" in r]
            def mix(m, rd_, e_):
                out = []; ne = len(e_); nm = len(m); ei = 0
                for i, x in enumerate(m):
                    out.append(x)
                    if i < len(rd_): out.append(rd_[i])
                    tgt = (ne * (i + 1)) // nm
                    while ei < tgt: out.append(e_[ei]); ei += 1
                return out + rd_[nm:]
            for x in mix(mfmas(FX, G2), rY, ["s_nop 3"] + ep[:k3]): a(x)
            a("s_waitcnt lgkmcnt(0)")
            for x in setst1(14): a(x)
            for x in mix(mfmas(FY, G2), reads(FX, 1, G2), ep[k3:2*k3]): a(x)
            a("s_waitcnt lgkmcnt(0)")
            cs_ = [f"ds_read_b128 v[{FY+4*(nt-2)}:{FY+4*(nt-2)+3}], v{vA10} offset:{nt*64}" for nt in range(2, 6)]
            cs_.append(f"ds_read_b128 v[{FY+24}:{FY+27}], v{t1} offset:{6*64}")
            for x in mix(mfmas(FX, G2), ["s_nop 0"] * 2 + cs_, ep[2*k3:]): a(x)
        if RT:
            def setst(st):
                return [f"v_add_u32 v{x}, {c.ABASE + (st % S)*16384}, v{y}" for x, y in abases] + [f"v_add_u32 v{x}, {c.BBASE + (st % S)*c.BB}, v{y}" for x, y in bbases]
            items = [(st, kg, [2, 3]) for st in range(n - RT, n) for kg in range(2)] + [(st, kg, [0, 1]) for st in range(n - RT, n) for kg in range(2)]
            sets = [FX, FY]
            for i, (st, kg, tl) in enumerate(items):
                cur = sets[i % 2]; nxt = sets[(i + 1) % 2]
                fill_ = []
                if i + 1 < len(items):
                    st2_, kg2, tl2 = items[i + 1]
                    if st2_ != st:
                        for x in setst(st2_): a(x)
                        if i + 1 < 2 * RT: a("s_barrier")
                    fill_ = reads(nxt, kg2, tl2)
                for x in interleave(mfmas(cur, tl), fill_, 0, 1, 1): a(x)
                if i == 2 * RT - 1:
                    stamp(a, c.sid + 2)
                    a("s_barrier")
                    sk_send()
                if i == 2 * RT + OPT["sksig"]:
                    if OPT["tagx"]: xload()
                    else: signal(a, 6, 2, VTOP)
                    stamp(a, 47)
                a("s_waitcnt lgkmcnt(0)")
        if peel:
            for x in interleave(mfmas(FX), reads(FY, 1), 0, 1, c.rpg): a(x)
            a("s_waitcnt lgkmcnt(0)")
            alu, rds = epi_setup()
            m = mfmas(FY)
            if kind == "qkv": m = m[8:16] + m[16:] + m[:8]
            kb = len(m) - OPT["peel"]
            for x in interleave(m[:kb], alu, 0, 1, 2): a(x)
            a("s_barrier")
            for x in interleave(m[kb:], rds, 0, 1, 2): a(x)
    if not RT: stamp(a, c.sid + 2)
    def pk4_unused(t, p0, p1):
        a(f"v_cvt_pk_bf16_f32 v{t}, v{p0}, v{p0+1}")
        a(f"v_cvt_pk_bf16_f32 v{t+1}, v{p0+2}, v{p0+3}")
        a(f"v_cvt_pk_bf16_f32 v{t+2}, v{p1}, v{p1+1}")
        a(f"v_cvt_pk_bf16_f32 v{t+3}, v{p1+2}, v{p1+3}")
    if kind == "qkv":
        REC, CSQ, MV, RV, CSV = T, T + 16, VTOP, VTOP + 16, VTOP + 32
        if not peel:
            for x in sum(epi_setup(), []): a(x)
        a("s_waitcnt lgkmcnt(10)")
        def fold_sw(mt, nt):
            p = acc(mt, nt); m = REC + 4 * mt; cs = CSQ + 4 * nt
            for h in range(2):
                a(f"v_pk_fma_f32 v[{p+2*h}:{p+2*h+1}], v[{m}:{m+1}], v[{cs+2*h}:{cs+2*h+1}], v[{p+2*h}:{p+2*h+1}] op_sel_hi:[0,1,1] neg_lo:[1,0,0] neg_hi:[1,0,0]")
            for h in range(2):
                a(f"v_pk_mul_f32 v[{p+2*h}:{p+2*h+1}], v[{m}:{m+1}], v[{p+2*h}:{p+2*h+1}] op_sel:[1,0] op_sel_hi:[1,1]")
        for mt in range(4):
            fold_sw(mt, 2); fold_sw(mt, 3)
            t = acc(mt, 2); pk4(t, acc(mt, 2), acc(mt, 3))
            st2(a, f"buffer_store_dwordx4 v[{t}:{t+3}], v{vCH}, s[16:19], s30 offen offset:{mt*1024}")
            a(f"ds_write_b128 v{vB2}, v[{t}:{t+3}] offset:{16384 + mt*1024}")
        a("s_waitcnt lgkmcnt(4)")
        for mp in range(2):
            for dt in range(2):
                for mt in (2 * mp, 2 * mp + 1):
                    p = acc(mt, 4 + dt)
                    sel = "op_sel_hi:[1,0,1]"
                    for h in range(2):
                        a(f"v_pk_fma_f32 v[{p+2*h}:{p+2*h+1}], v[{MV+4*mt+2*h}:{MV+4*mt+2*h+1}], v[{CSV+2*dt}:{CSV+2*dt+1}], v[{p+2*h}:{p+2*h+1}] {sel} neg_lo:[1,0,0] neg_hi:[1,0,0]")
                    for h in range(2):
                        a(f"v_pk_mul_f32 v[{p+2*h}:{p+2*h+1}], v[{RV+4*mt+2*h}:{RV+4*mt+2*h+1}], v[{p+2*h}:{p+2*h+1}]")
                t = acc(2 * mp, 4 + dt); pk4(t, acc(2 * mp, 4 + dt), acc(2 * mp + 1, 4 + dt))
                st2(a, f"buffer_store_dwordx4 v[{t}:{t+3}], v{vCH}, s[16:19], s31 offen offset:{(2*mp+dt)*1024}")
                a(f"ds_write_b128 v{vB2}, v[{t}:{t+3}] offset:{24576 + 16384 + (2*mp+dt)*1024}")
        for mt in range(4):
            fold_sw(mt, 0); fold_sw(mt, 1)
            t = acc(mt, 0); pk4(t, acc(mt, 0), acc(mt, 1))
            a(f"ds_write_b128 v{vB2}, v[{t}:{t+3}] offset:{49152 + mt*1024}")
        stamp(a, c.sid + 3)
        signal(a, 0, 2, T, True)
        stamp(a, c.sid + 4)
        a("s_waitcnt lgkmcnt(0)")
    elif kind == "wo":
        srd_off(a, 16, P_WS, H_OFF, 4 * MB)
        a(f"""
        s_lshl_b32 s30, s24, 18
        s_lshl_b32 s31, s25, 14
        s_add_u32 s30, s30, s31
        s_lshl_b32 s31, s35, 13
        s_add_u32 s30, s30, s31
        s_mov_b32 s36, 0xffff0000
        s_waitcnt vmcnt(0) lgkmcnt(0)
        """)
        for mt in range(4):
            for nt in range(2):
                r = RES + mt * 4 + nt * 2; p = acc(mt, nt)
                for d in range(2):
                    a(f"v_lshlrev_b32 v{T}, 16, v{r+d}")
                    a(f"v_and_b32 v{T+1}, s36, v{r+d}")
                    a(f"v_pk_add_f32 v[{p+2*d}:{p+2*d+1}], v[{p+2*d}:{p+2*d+1}], v[{T}:{T+1}]")
            t = HRES + mt * 4
            pk4(t, acc(mt, 0), acc(mt, 1))
            a(f"buffer_store_dwordx4 v[{t}:{t+3}], v{vCH}, s[16:19], s30 offen offset:{mt*1024} sc0 sc1")
            if OPT["own1"]:
                if mt == 0: a(f"s_lshl_b32 s33, s35, 13\nv_add_u32 v{vA}, s33, v{vCH}")
                a(f"ds_write_b128 v{vA}, v[{t}:{t+3}] offset:{mt*1024}")
        SS = T + 4
        for mt in range(4):
            p0 = acc(mt, 0); p1 = acc(mt, 1)
            s_, q_ = SS + 2 * mt, SS + 2 * mt + 1
            a(f"v_pk_add_f32 v[{T}:{T+1}], v[{p0}:{p0+1}], v[{p0+2}:{p0+3}]")
            a(f"v_pk_mul_f32 v[{T+2}:{T+3}], v[{p0}:{p0+1}], v[{p0}:{p0+1}]")
            a(f"v_pk_add_f32 v[{T}:{T+1}], v[{T}:{T+1}], v[{p1}:{p1+1}]")
            a(f"v_pk_fma_f32 v[{T+2}:{T+3}], v[{p0+2}:{p0+3}], v[{p0+2}:{p0+3}], v[{T+2}:{T+3}]")
            a(f"v_pk_add_f32 v[{T}:{T+1}], v[{T}:{T+1}], v[{p1+2}:{p1+3}]")
            a(f"v_pk_fma_f32 v[{T+2}:{T+3}], v[{p1}:{p1+1}], v[{p1}:{p1+1}], v[{T+2}:{T+3}]")
            a(f"v_pk_fma_f32 v[{T+2}:{T+3}], v[{p1+2}:{p1+3}], v[{p1+2}:{p1+3}], v[{T+2}:{T+3}]")
            a(f"v_add_f32 v{s_}, v{T}, v{T+1}")
            a(f"v_add_f32 v{q_}, v{T+2}, v{T+3}")
        for mt in range(4):
            s_, q_ = SS + 2 * mt, SS + 2 * mt + 1
            a(f"v_permlane32_swap_b32 v{s_}, v{q_}")
            a(f"v_add_f32 v{s_}, v{s_}, v{q_}")
        srd_off(a, 20, P_WS, ST2_OFF, 16 * 32768)
        a(f"""
        v_and_b32 v{t0}, 31, v1
        v_lshlrev_b32 v{t0}, 2, v{t0}
        v_lshrrev_b32 v{t1}, 5, v1
        v_lshl_add_u32 v{t0}, v{t1}, 9, v{t0}
        s_lshl_b32 s30, s24, 15
        s_lshl_b32 s31, s25, 11
        s_add_u32 s30, s30, s31
        s_lshl_b32 s31, s35, 10
        s_add_u32 s30, s30, s31
        s_lshl_b32 s31, s34, 8
        s_add_u32 s30, s30, s31
        """)
        for mp in range(2):
            x0 = SS + 4 * mp; x1 = SS + 4 * mp + 2
            a(f"v_permlane16_swap_b32 v{x0}, v{x1}")
            a(f"v_add_f32 v{x0}, v{x0}, v{x1}")
            a(f"buffer_store_dword v{x0}, v{t0}, s[20:23], s30 offen offset:{mp*128} sc0 sc1")
        stamp(a, c.sid + 3)
        if OPT["wobar"] in (1, 2): a("s_barrier")
        signal(a, 2, 2, T)
        if OPT["wobar"] == 3: a("s_barrier")
        a("s_waitcnt lgkmcnt(0)")
        stamp(a, c.sid + 4)
    elif kind == "w1" and W1T:
        RECT = 216; E = FY + 16
        csr = lambda nt: (FY + 24) if nt == 6 else FY + 4 * (nt - 2)
        soffs = ["s30", "s31", "s37"]
        signal(a, 0, 2, FX, False, 0, True)
        stamp(a, 45)
        a("s_waitcnt lgkmcnt(0)")
        a("s_barrier")
        stamp(a, 46)
        a(f"""
        s_lshl_b32 s33, s35, 13
        v_add_u32 v{vA}, s33, v{vCH}
        s_lshl_b32 s33, s35, 3
        s_add_u32 s33, s33, {XCH}
        v_add_u32 v{vB2}, s33, v{vCH}
        """)
        for mt in range(4):
            p0 = acc(mt, 0)
            a(f"ds_write_b128 v{vA}, v[{p0}:{p0+3}] offset:{mt*1024}")
        def pair(q, mt):
            for x in silu_l(mt, 2 * q, E, RECT + 4 * mt, csr(2 * q)) + silu_l(mt, 2 * q + 1, E + 4, RECT + 4 * mt, csr(2 * q + 1)): a(x)
            p0 = acc(mt, 2 * q)
            pk4(p0, p0, acc(mt, 2 * q + 1))
            a(f"buffer_store_dwordx4 v[{p0}:{p0+3}], v{vCH}, s[16:19], {soffs[q]} offen offset:{mt*1024} sc0 sc1")
            a(f"ds_write_b128 v{vA}, v[{p0}:{p0+3}] offset:{q*16384 + mt*1024}")
        for mt in range(4): pair(1, mt)
        stamp(a, 42)
        for mt in range(4):
            for x in silu_l(mt, 6, E + (mt % 2) * 4, RECT + 4 * mt, csr(6)): a(x)
            p = acc(mt, 6)
            a(f"v_cvt_pk_bf16_f32 v{p}, v{p}, v{p+1}")
            a(f"v_cvt_pk_bf16_f32 v{p+1}, v{p+2}, v{p+3}")
            a(f"ds_write_b64 v{vB2}, v[{p}:{p+1}] offset:{mt*1024}")
        a("s_waitcnt lgkmcnt(0)")
        stamp(a, 40)
        a("s_barrier")
        stamp(a, 41)
        a(f"""
        s_lshl_b32 s33, s35, 11
        v_add_u32 v{vB2}, s33, v{vCH}
        v_add_u32 v{vB1}, {XCH}, v{vB2}
        ds_read_b128 v[{acc(0,6)}:{acc(0,6)+3}], v{vB1}
        ds_read_b128 v[{acc(1,6)}:{acc(1,6)+3}], v{vB1} offset:1024
        """)
        pair(2, 0)
        a("s_waitcnt lgkmcnt(0)")
        a(f"buffer_store_dwordx4 v[{acc(0,6)}:{acc(0,6)+3}], v{vB2}, s[16:19], s36 offen sc0 sc1")
        a(f"buffer_store_dwordx4 v[{acc(1,6)}:{acc(1,6)+3}], v{vB2}, s[16:19], s36 offen offset:1024 sc0 sc1")
        for mt in range(1, 4): pair(2, mt)
        stamp(a, 43)
        stamp(a, c.sid + 3)
        a("s_waitcnt lgkmcnt(0)")
        a("s_mov_b32 s42, s24\ns_mov_b32 s43, s25")
        stamp(a, c.sid + 4)
    elif kind == "w1":
        CSR = T; REC = T + 28; E = T + 44
        if not peel:
            for x in sum(epi_setup(), []): a(x)
        a("s_waitcnt lgkmcnt(0)")
        soffs = ["s30", "s31", "s37"]
        def silu(mt, nt, e):
            p = acc(mt, nt); m = REC + 4 * mt; cs = CSR + 4 * nt
            for h in range(2):
                a(f"v_pk_fma_f32 v[{p+2*h}:{p+2*h+1}], v[{m}:{m+1}], v[{cs+2*h}:{cs+2*h+1}], v[{p+2*h}:{p+2*h+1}] op_sel_hi:[0,1,1] neg_lo:[1,0,0] neg_hi:[1,0,0]")
            for h in range(2):
                a(f"v_pk_mul_f32 v[{e+2*h}:{e+2*h+1}], v[{m}:{m+1}], v[{p+2*h}:{p+2*h+1}] op_sel:[1,0] op_sel_hi:[1,1]")
            for r in range(4):
                a(f"v_exp_f32 v{e+r}, v{e+r}")
            for h in range(2):
                a(f"v_pk_fma_f32 v[{e+2*h}:{e+2*h+1}], v[{e+2*h}:{e+2*h+1}], v[{m+2}:{m+3}], v[{m+2}:{m+3}]")
            for r in range(4):
                a(f"v_rcp_f32 v{e+r}, v{e+r}")
            for h in range(2):
                a(f"v_pk_mul_f32 v[{p+2*h}:{p+2*h+1}], v[{p+2*h}:{p+2*h+1}], v[{e+2*h}:{e+2*h+1}]")
        def pair(q, mt):
            silu(mt, 2 * q, E); silu(mt, 2 * q + 1, E + 4)
            p0 = acc(mt, 2 * q)
            pk4(p0, p0, acc(mt, 2 * q + 1))
            a(f"buffer_store_dwordx4 v[{p0}:{p0+3}], v{vCH}, s[16:19], {soffs[q]} offen offset:{mt*1024} sc0 sc1")
            if OPT["own"]: a(f"ds_write_b128 v{vA}, v[{p0}:{p0+3}] offset:{q*16384 + mt*1024}")
        if OPT["own"]:
            a(f"s_lshl_b32 s33, s35, 13")
            a(f"v_add_u32 v{vA}, s33, v{vCH}")
        for mt in range(4): pair(0, mt)
        stamp(a, 42)
        for mt in range(4):
            silu(mt, 6, E + (mt % 2) * 4)
            p = acc(mt, 6)
            a(f"v_cvt_pk_bf16_f32 v{p}, v{p}, v{p+1}")
            a(f"v_cvt_pk_bf16_f32 v{p+1}, v{p+2}, v{p+3}")
            a(f"ds_write_b64 v{vB2}, v[{p}:{p+1}] offset:{mt*1024}")
        a("s_waitcnt lgkmcnt(0)")
        stamp(a, 40)
        a("s_barrier")
        stamp(a, 41)
        a(f"""
        s_lshl_b32 s33, s35, 11
        v_add_u32 v{vB2}, s33, v{vCH}
        v_add_u32 v{vB1}, {XCH}, v{vB2}
        ds_read_b128 v[{acc(0,6)}:{acc(0,6)+3}], v{vB1}
        ds_read_b128 v[{acc(1,6)}:{acc(1,6)+3}], v{vB1} offset:1024
        """)
        pair(1, 0)
        a("s_waitcnt lgkmcnt(0)")
        a(f"buffer_store_dwordx4 v[{acc(0,6)}:{acc(0,6)+3}], v{vB2}, s[16:19], s36 offen sc0 sc1")
        a(f"buffer_store_dwordx4 v[{acc(1,6)}:{acc(1,6)+3}], v{vB2}, s[16:19], s36 offen offset:1024 sc0 sc1")
        for mt in range(1, 4): pair(1, mt)
        stamp(a, 43)
        k2 = OPT["sigA2"]
        for mt in range(k2): pair(2, mt)
        signal(a, 0, 2, acc(2, 6), False, 3 + k2, True)
        stamp(a, 45)
        if OPT["bar2"] == 0: a("s_barrier")
        stamp(a, 46)
        for mt in range(k2, 4): pair(2, mt)
        stamp(a, c.sid + 3)
        if OPT["bar2"] == 1: a("s_barrier")
        if OPT["own"]: a("s_waitcnt lgkmcnt(0)")
        a("s_mov_b32 s42, s24\ns_mov_b32 s43, s25\ns_mov_b32 s44, s31\ns_mov_b32 s45, s37")
        stamp(a, c.sid + 4)
    elif kind == "w2":
        XR = T + 32
        if c.sk and not RT:
            sk_send()
            signal(a, 6, 2, T)
            stamp(a, 47)
        srd_off(a, 16, P_OUT, 0, 4 * MB)
        a(f"""
        v_and_b32 v{t0}, 15, v1
        v_lshlrev_b32 v{t0}, 11, v{t0}
        v_and_b32 v{t1}, 1, v{vG}
        v_lshl_add_u32 v{t0}, v{t1}, 5, v{t0}
        v_lshrrev_b32 v{t1}, 1, v{vG}
        v_lshl_add_u32 v{t0}, v{t1}, 4, v{t0}
        s_lshl_b32 s30, s24, 18
        s_lshl_b32 s31, s34, 17
        s_add_u32 s30, s30, s31
        s_lshl_b32 s31, s25, 7
        s_add_u32 s30, s30, s31
        s_lshl_b32 s31, s35, 6
        s_add_u32 s30, s30, s31
        s_mov_b32 s36, 0xffff0000
        """)
        for mt in range(4):
            for nt in range(2):
                r = HRES + mt * 4 + nt * 2; p = acc(mt, nt)
                for d in range(2):
                    a(f"v_lshlrev_b32 v{T+16}, 16, v{r+d}")
                    a(f"v_and_b32 v{T+17}, s36, v{r+d}")
                    a(f"v_pk_add_f32 v[{p+2*d}:{p+2*d+1}], v[{p+2*d}:{p+2*d+1}], v[{T+16}:{T+17}]")
        xr = lambda mt, nt, d: XR + mt * 4 + nt * 2 + d
        if c.sk and OPT["tagx"]:
            xr = lambda mt, nt, d: RXX + 4 * ((mt * 4 + nt * 2 + d) // 3) + (mt * 4 + nt * 2 + d) % 3
            lp = a.label("xpoll"); dn = a.label("skip_xp")
            a("s_mov_b32 s39, 0x200000")
            a(f"{lp}:")
            a("s_waitcnt vmcnt(0)")
            a(f"v_xor_b32 v{T+4}, s{TAG}, v{RXX+3}")
            for ch in range(1, 6):
                a(f"v_xor_b32 v{T+5}, s{TAG}, v{RXX+4*ch+3}")
                a(f"v_or_b32 v{T+4}, v{T+4}, v{T+5}")
            a(f"""
            v_cmp_ne_u32 vcc, 0, v{T+4}
            s_nop 3
            s_cmp_eq_u64 vcc, 0
            s_cbranch_scc1 {dn}
            """)
            xload()
            a(f"""
            s_sub_u32 s39, s39, 1
            s_cbranch_scc0 {lp}
            s_waitcnt vmcnt(0)
            {dn}:
            """)
            stamp(a, 48)
        elif c.sk and OPT["sent"]:
            lp = a.label("xpoll"); dn = a.label("skip_xp")
            a("s_mov_b32 s39, 0x200000")
            a(f"{lp}:")
            for mt in range(4):
                a(f"buffer_load_dwordx4 v[{XR+4*mt}:{XR+4*mt+3}], v{vX}, s[20:23], s37 offen offset:{mt*1024} sc0 sc1")
            for mt in range(4):
                r = XR + 4 * mt
                a(f"s_waitcnt vmcnt({3-mt})")
                if mt == 0: a(f"v_max_u32 v{T+4}, v{r}, v{r+1}")
                else: a(f"v_max3_u32 v{T+4}, v{r}, v{r+1}, v{T+4}")
                a(f"v_max3_u32 v{T+4}, v{r+2}, v{r+3}, v{T+4}")
            a(f"""
            v_cmp_eq_u32 vcc, -1, v{T+4}
            s_nop 3
            s_cmp_eq_u64 vcc, 0
            s_cbranch_scc1 {dn}
            s_sub_u32 s39, s39, 1
            s_cbranch_scc0 {lp}
            {dn}:
            """)
            stamp(a, 48)
        elif c.sk:
            lp = a.label("xpoll"); dn = a.label("skip_xp")
            a(f"""
            s_xor_b32 s40, s40, {4 << 5}
            s_mov_b32 s39, 0x200000
            {lp}:
            buffer_load_dwordx2 v[{T+4}:{T+5}], v{(VTOP if RT else T)+2}, s[{FLS}:{FLS+3}], s40 offen sc0 sc1
            s_waitcnt vmcnt(0)
            v_cmp_eq_u64 vcc, s[{TAG}:{TAG+1}], v[{T+4}:{T+5}]
            s_nop 3
            s_cmp_eq_u64 vcc, -1
            s_cbranch_scc1 {dn}
            s_sub_u32 s39, s39, 1
            s_cbranch_scc0 {lp}
            {dn}:
            """)
            stamp(a, 48)
            for mt in range(4):
                a(f"buffer_load_dwordx4 v[{XR+4*mt}:{XR+4*mt+3}], v{vX}, s[20:23], s37 offen offset:{mt*1024} sc0 sc1")
        for mt in range(4):
            if c.sk:
                if not OPT["sent"] and not OPT["tagx"]: a(f"s_waitcnt vmcnt(3)")
                for nt in range(2):
                    p = acc(mt, nt)
                    for d in range(2):
                        a(f"v_lshlrev_b32 v{T+16}, 16, v{xr(mt, nt, d)}")
                        a(f"v_and_b32 v{T+17}, s36, v{xr(mt, nt, d)}")
                        a(f"v_pk_add_f32 v[{p+2*d}:{p+2*d+1}], v[{p+2*d}:{p+2*d+1}], v[{T+16}:{T+17}]")
            t = T + mt * 4
            pk4(t, acc(mt, 0), acc(mt, 1))
            a(f"v_permlane16_swap_b32 v{t}, v{t+2}")
            a(f"v_permlane16_swap_b32 v{t+1}, v{t+3}")
            a(f"buffer_store_dwordx4 v[{t}:{t+3}], v{t0}, s[16:19], s30 offen{['', ' sc0 sc1', ' nt', ' sc1'][OPT['osf']]}")
            a("s_add_u32 s30, s30, 32768")
        stamp(a, c.sid + 3)
        if DIAG:
            a("s_waitcnt vmcnt(0)")
            stamp(a, c.sid + 4)

PV_A = 4
PV_B = 8
PV_SA = 16
PV_SB = 18
PV_RD = 32
PV_ACC = 80

def prod_setup(a, c):
    n = c.n
    wgmap(a, c.RX, c.CX)
    if c.a_off is None:
        a("s_lshl_b32 s30, s24, 18")
        srd_off(a, 8, P_X, "s30", 262144)
        a(f"""
        v_lshrrev_b32 v2, 3, v1
        v_lshrrev_b32 v3, 4, v1
        v_and_b32 v15, 7, v1
        v_xor_b32 v3, v3, v15
        v_lshlrev_b32 v3, 4, v3
        v_lshl_add_u32 v2, v2, 11, v3
        v_xor_b32 v3, 64, v2
        s_lshl_b32 s30, s38, 16
        """)
        for i in range(4):
            a(f"s_add_u32 s31, s30, {i*8*2048 - i*1024}")
            a(f"v_add_u32 v{PV_A+i}, s31, v{3 if i & 1 else 2}")
        c.astep = 128
    else:
        a(f"s_mul_i32 s30, s24, {c.K*256}")
        a(f"s_add_u32 s30, s30, {c.a_off}")
        srd_off(a, 8, P_WS, "s30", c.K * 256)
        a(f"""
        {"s_lshr_b32 s30, s38, 1" if c.sk else f"s_and_b32 s30, s38, {1 if c.kind == 'w2' else 3}"}
        s_lshl_b32 s30, s30, 12
        v_lshlrev_b32 v{PV_A}, 4, v1
        v_add_u32 v{PV_A}, s30, v{PV_A}
        """)
        c.astep = 16384
        if c.kind == "w2":
            a(f"""
            {"s_and_b32 s30, s38, 1" if c.sk else "s_lshr_b32 s30, s38, 1"}
            s_mul_i32 s63, s30, {4*8192}
            s_mul_i32 s64, s30, {7*8192}
            """)
    c.bstep = 64 * c.ldb
    CT = 16 // c.CX
    a(f"""
    s_and_b32 s65, s25, {CT-1}
    s_mul_i32 s65, s65, {(16 // CT) if c.rot else 0}
    """)
    if c.rot == 2: a(f"s_mov_b32 s65, {OPT['rot0']}")
    if (c.kind == "w1" and OPT["own1"]) or (c.kind == "wo" and OPT["owno"]): a("s_mov_b32 s65, s25")
    if c.sk: a("s_and_b32 s65, s25, 4\ns_lshl_b32 s65, s65, 1")
    a(f"""
    s_lshl_b32 s34, s38, 12
    s_mul_i32 s35, s38, {c.NBW*1024}
    """)
    if c.sk:
        a("""
        s_and_b32 s34, s38, 1
        s_lshl_b32 s34, s34, 13
        s_lshr_b32 s30, s38, 1
        s_lshl_b32 s30, s30, 12
        s_add_u32 s34, s34, s30
        """)
    if c.kind == "w2" and not OPT["own"]: a(f"s_mul_i32 s66, s65, {7*8192}")
    if not c.early: b_setup(a, c, PV_B, 12)
    a(f"""
    s_mov_b32 s27, {c.ABASE}
    s_mov_b32 s32, {c.BBASE}
    s_mul_i32 s28, s65, {c.astep}
    s_mul_i32 s29, s65, {c.bstep}
    """)

def b_setup(a, c, dst, sr_, comp=True):
    if c.sk:
        a("s_andn2_b32 s30, s25, 4")
        a(f"s_mul_i32 s30, s30, {c.bcol}")
    else:
        a(f"s_mul_i32 s30, s25, {c.bcol}")
    a(f"s_sub_u32 s31, {c.K*c.ldb}, s30")
    srd_off(a, sr_, c.wp, "s30", "s31")
    if c.layout == "panel" and OPT["fastb"]:
        a(f"""
        v_lshrrev_b32 v2, 3, v1
        v_mul_u32_u24 v2, {c.ldb}, v2
        v_bfe_u32 v3, v1, 4, {2 if c.korder == "F" else 1}
        v_lshlrev_b32 v3, 1, v3
        v_and_b32 v15, 7, v1
        v_xor_b32 v3, v3, v15
        v_lshl_add_u32 v2, v3, 4, v2
        s_mul_i32 s36, s38, {c.NBW}
        """)
        if c.korder == "N": a("v_xor_b32 v3, 64, v2")
        for i in range(c.NBW):
            a(f"""
            s_add_u32 s30, s36, {i}
            s_and_b32 s31, s30, {3 if c.kind == "w2" else 7}
            s_mul_i32 s31, s31, {8*c.ldb}
            """)
            if c.pstride:
                a("s_lshr_b32 s30, s30, 3")
                if c.sk:
                    a("s_bfe_u32 s39, s25, 0x10002")
                    a("s_xor_b32 s30, s30, s39")
                a(f"s_mul_i32 s30, s30, {c.pstride}")
                a("s_add_u32 s31, s31, s30")
            if i & 3 and comp: a(f"s_sub_u32 s31, s31, {(i&3)*1024}")
            src = 3 if (c.korder == "N" and i & 1) else 2
            a(f"v_add_u32 v{dst+i}, s31, v{src}")
        return
    a(f"""
    s_mul_i32 s30, s38, {c.NBW*64}
    s_mov_b32 s36, {c.ldb}
    """)
    for i in range(c.NBW):
        a(f"s_add_u32 s31, s30, {i*64}")
        a(f"v_add_u32 v3, s31, v1")
        d = dst + i
        if c.layout == "panel":
            a("v_bfe_u32 v2, v3, 3, 6")
            if c.korder == "F":
                a(f"v_bfe_u32 v{d}, v2, 1, 2")
            else:
                a(f"v_bfe_u32 v{d}, v2, 1, 1")
                a("v_bfe_u32 v15, v2, 3, 1")
                a(f"v_lshl_or_b32 v{d}, v15, 1, v{d}")
            a(f"""
            v_lshlrev_b32 v{d}, 1, v{d}
            v_and_b32 v15, 7, v3
            v_xor_b32 v{d}, v{d}, v15
            v_and_b32 v2, {31 if c.kind == "w2" else 63}, v2
            v_mul_lo_u32 v2, v2, s36
            v_lshl_add_u32 v{d}, v{d}, 4, v2
            """)
            if c.pstride:
                a(f"""
                v_lshrrev_b32 v3, 9, v3
                {"s_bfe_u32 s31, s25, 0x10002" if c.sk else ""}
                {"v_xor_b32 v3, s31, v3" if c.sk else ""}
                v_mul_u32_u24 v3, {c.pstride}, v3
                v_add_u32 v{d}, v{d}, v3
                """)
        else:
            a(f"""
            v_mul_u32_u24 v2, 2341, v3
            v_lshrrev_b32 v2, 16, v2
            v_mul_u32_u24 v15, 28, v2
            v_sub_u32 v3, v3, v15
            v_bfe_u32 v15, v2, 2, 1
            v_lshlrev_b32 v15, 1, v15
            v_xor_b32 v3, v3, v15
            v_mul_lo_u32 v2, v2, s36
            v_lshl_add_u32 v{d}, v3, 4, v2
            """)
        if i & 3 and comp: a(f"v_subrev_u32 v{d}, {(i&3)*1024}, v{d}")

def issueA(a, c, slot=None, adv=True):
    if slot is None: a("s_add_u32 m0, s27, s34")
    else: a(f"s_add_u32 m0, s34, {c.ABASE + slot*16384}")
    for i in range(4):
        v = PV_A + (i if c.a_off is None else 0)
        a(f"buffer_load_dwordx4 v{v}, s[8:11], s28 offen offset:{i*1024}{'' if c.a_off is None else ' sc1'} lds")
    if adv:
        a(f"s_add_u32 s28, s28, {c.astep}")
        if c.rot: a(f"s_and_b32 s28, s28, {16*c.astep - 1}")
    if slot is None:
        a(f"""
        s_add_u32 s27, s27, 16384
        s_cmp_eq_u32 s27, {c.ABASE + c.S*16384}
        s_cselect_b32 s27, {c.ABASE}, s27
        """)

def issueB(a, c, slot=None, adv=True):
    for i in range(c.NBW):
        if i % 4 == 0:
            if slot is None:
                a(f"s_add_u32 m0, s32, {c.s35}")
                if i: a(f"s_add_u32 m0, m0, {i*1024}")
            else:
                a(f"s_add_u32 m0, {c.s35}, {c.BBASE + slot*c.BB + i*1024}")
        a(f"buffer_load_dwordx4 v{c.pvb+i}, s[{c.sb}:{c.sb+3}], s29 offen offset:{(i&3)*1024}{' nt' if (c.kind == 'qkv' and OPT['qnt'] >= 2) else ''} lds")
    if adv:
        a(f"s_add_u32 s29, s29, {c.bstep}")
        if c.rot:
            a(f"s_cmp_eq_u32 s29, {16*c.bstep}")
            a("s_cselect_b32 s29, 0, s29")
    if slot is None:
        a(f"""
        s_add_u32 s32, s32, {c.BB}
        s_cmp_eq_u32 s32, {c.BBASE + c.S*c.BB}
        s_cselect_b32 s32, {c.BBASE}, s32
        """)

PV_POLL = 28
def poll_once(a, wide):
    t = PV_POLL
    if wide: a(f"buffer_load_dwordx4 v[{t}:{t+3}], v26, s[{FLS}:{FLS+3}], s33 offen sc0 sc1")
    else: a(f"buffer_load_dwordx2 v[{t}:{t+1}], v26, s[{FLS}:{FLS+3}], s33 offen sc0 sc1")
    a("s_waitcnt vmcnt(0)")
    a(f"v_cmp_eq_u64 s[56:57], s[{TAG}:{TAG+1}], v[{t}:{t+1}]")
    if wide:
        a(f"v_cmp_eq_u64 s[58:59], s[{TAG}:{TAG+1}], v[{t+2}:{t+3}]")
        a("s_nop 3")
        a("s_and_b64 s[56:57], s[56:57], s[58:59]")
    else:
        a("s_nop 3")

def gate(a, t, wide):
    lp = a.label("gate"); ok = a.label("skip_gate")
    a(f"{lp}:")
    if t == "all":
        a("s_cmp_eq_u32 s56, -1" if OPT["sk"] else "s_cmp_eq_u64 s[56:57], -1")
    else:
        a(f"s_bfe_u32 s30, s{56 + t // 8}, {hex((4 << 16) | (4 * (t % 8)))}")
        a("s_cmp_eq_u32 s30, 15")
    a(f"s_cbranch_scc1 {ok}")
    poll_once(a, wide)
    a("""
    s_sub_u32 s39, s39, 1
    s_cselect_b64 s[58:59], -1, 0
    s_cselect_b32 s39, 0, s39
    s_or_b64 s[56:57], s[56:57], s[58:59]
    """)
    a(f"s_branch {lp}")
    a(f"{ok}:")

def gate_setup(a, seam_id, wide):
    a(f"""
    s_lshl_b32 s30, s65, 2
    v_add_u32 v26, s30, v1
    v_and_b32 v26, 63, v26
    v_lshlrev_b32 v26, {4 if wide else 3}, v26
    s_lshl_b32 s33, s24, 10
    s_add_u32 s33, s33, {seam_id*16384}
    s_mov_b64 s[56:57], 0
    s_mov_b32 s39, 0x200000
    """)

def colsum_tile(a, c, lds_base, wsg, which, R, part=None):
    AD = R; ACCU = R + 4; D = R + 8; t = R + 40
    if part in (None, 0):
        a(f"""
        v_lshrrev_b32 v{t}, 4, v1
        v_bfe_u32 v{t+1}, v1, 2, 2
        v_mul_u32_u24 v{t+2}, {c.gmul}, v{t}
        v_add_u32 v{t+2}, v{t+2}, v{t+1}
        v_mul_u32_u24 v{t+2}, {c.RS}, v{t+2}
        v_and_b32 v{t+3}, 3, v1
        v_lshl_add_u32 v{t+2}, v{t+3}, 3, v{t+2}
        v_and_b32 v{t}, 1, v{t}
        s_lshl_b32 s71, {wsg}, {13 if c.layout == "panel" else 7}
        s_add_u32 s71, s71, {lds_base}
        v_add_u32 v{t+2}, s71, v{t+2}
        """)
        if c.layout == "panel":
            a(f"v_lshrrev_b32 v{t+1}, 1, v{t+1}")
            a(f"v_lshl_or_b32 v{t}, v{t}, 1, v{t+1}")
        for ts in range(4):
            a(f"v_xor_b32 v{t+3}, {ts}, v{t}")
            a(f"v_lshl_add_u32 v{AD+ts}, v{t+3}, 5, v{t+2}")
        for q in range(4):
            for ts in range(4):
                d = D + (q * 4 + ts) * 2
                a(f"ds_read_b64_tr_b16 v[{d}:{d+1}], v{AD+ts} offset:{((q>>1)*32 + (q&1)*c.rdrows) * c.RS}")
        for ts in range(4): a(f"v_mov_b32 v{ACCU+ts}, 0")
        srd_off(a, 16, P_WS, CSG_OFF + which * 524288, 524288)
        a(f"""
        s_mov_b32 s75, 0x3f803f80
        v_lshlrev_b32 v{t}, 3, v1
        """)
        if c.kind == "qkv" and OPT["dil"]:
            a(f"""
            s_lshl_b32 s71, s24, 15
            s_mul_i32 s31, s25, 1536
            s_add_u32 s71, s71, s31
            s_lshl_b32 s31, {wsg}, 9
            s_add_u32 s71, s71, s31
            s_cmp_eq_u32 {wsg}, 3
            s_cselect_b32 s71, 0x40000000, s71
            """)
        else:
            a(f"""
            s_lshl_b32 s71, s25, 15
            s_lshl_b32 s31, s24, 11
            s_add_u32 s71, s71, s31
            s_lshl_b32 s31, {wsg}, 9
            s_add_u32 s71, s71, s31
            """)
    for q in range(4):
        if part not in (None, 1 + q // 2): continue
        if part is None or q == 0: a(f"s_waitcnt lgkmcnt({12-4*q if part is None else 0})")
        for d in range(2):
            for ts in range(4):
                a(f"v_dot2c_f32_bf16 v{ACCU+ts}, s75, v{D+(q*4+ts)*2+d}")
    if part in (None, 3):
        t0, t1, t2, t3 = ACCU, ACCU + 1, ACCU + 2, ACCU + 3
        a(f"""
        v_permlane32_swap_b32 v{t0}, v{t2}
        v_permlane32_swap_b32 v{t1}, v{t3}
        v_add_f32 v{t0}, v{t0}, v{t2}
        v_add_f32 v{t1}, v{t1}, v{t3}
        v_permlane16_swap_b32 v{t0}, v{t1}
        v_add_f32 v{t0}, v{t0}, v{t1}
        v_mov_b32 v{t1}, s{TAG}
        """)
        if c.kind == "qkv":
            sk = a.label("skip_xi")
            a(f"""
            s_cmp_lg_u32 {wsg}, 3
            s_cbranch_scc1 {sk}
            v_cmp_eq_u32 vcc, s74, v1
            v_cndmask_b32 v{t0}, 0, 1.0, vcc
            {sk}:
            """)
        a(f"buffer_store_dwordx2 v[{t0}:{t1}], v{t}, s[16:19], s71 offen sc0 sc1")

G_CS = 32
G_RS = 64
def gather_cs_setup(a, c):
    which = 0 if c.kind == "qkv" else 1
    srd_off(a, 16, P_WS, CSG_OFF + which * 524288, 524288)
    if c.kind == "qkv" and OPT["dil"]:
        a(f"""
        s_min_u32 s31, s38, 2
        s_lshl_b32 s60, s31, 13
        s_lshl_b32 s31, s25, 9
        s_add_u32 s60, s60, s31
        s_mov_b32 s67, 32768
        """)
    else:
        a(f"""
        s_lshl_b32 s60, s25, 15
        s_lshl_b32 s31, s38, 9
        s_add_u32 s60, s60, s31
        s_mov_b32 s67, 2048
        """)
    a("v_lshlrev_b32 v24, 3, v1")
    return 0
def gather_cs(a, r0, r1):
    for r in range(r0, r1):
        a(f"buffer_load_dwordx2 v[{G_CS+2*r}:{G_CS+2*r+1}], v24, s[16:19], s60 offen sc0 sc1")
        a("s_add_u32 s60, s60, s67")
    return r1 - r0
def gather_rs_setup(a, c):
    if c.kind == "qkv":
        srd_off(a, 20, P_WS, RS1_OFF, 32768)
        a(f"""
        v_and_b32 v25, 31, v1
        v_lshlrev_b32 v25, 4, v25
        s_lshl_b32 s61, s24, 11
        s_lshl_b32 s31, s38, 9
        s_add_u32 s61, s61, s31
        """)
    else:
        srd_off(a, 20, P_WS, ST2_OFF, 16 * 32768)
        a(f"""
        v_and_b32 v25, 31, v1
        v_lshlrev_b32 v25, 2, v25
        v_lshrrev_b32 v15, 5, v1
        v_lshl_add_u32 v25, v15, 9, v25
        s_lshl_b32 s61, s24, 15
        s_lshl_b32 s31, s38, 7
        s_add_u32 s61, s61, s31
        """)
    return 0
def gather_rs(a, c, p0=0, p1=32):
    if c.kind == "qkv":
        a(f"buffer_load_dwordx4 v[{G_RS}:{G_RS+3}], v25, s[20:23], s61 offen sc0 sc1")
        return 1
    a(f"s_add_u32 s30, s65, {p0 // 2}")
    a("s_and_b32 s30, s30, 15")
    a("s_lshl_b32 s30, s30, 11")
    a("s_add_u32 s30, s30, s61")
    for p in range(p0, p1):
        a(f"buffer_load_dword v{G_RS+p}, v25, s[20:23], s30 offen offset:{(p&1)*1024} sc0 sc1")
    return p1 - p0

def gather_finish_cs(a, c):
    lp = a.label("gchk"); ok = a.label("skip_gok")
    a("s_mov_b32 s62, 0x40000")
    a(f"{lp}:")
    a(f"v_xor_b32 v15, s{TAG}, v{G_CS+1}")
    for r in range(1, 16):
        a(f"v_xor_b32 v27, s{TAG}, v{G_CS+2*r+1}")
        a("v_or_b32 v15, v15, v27")
    if c.kind == "qkv":
        a(f"v_xor_b32 v27, s{TAG}, v{G_RS+2}")
        a("v_or_b32 v15, v15, v27")
        a(f"v_xor_b32 v27, s{TAG+1}, v{G_RS+3}")
        a("v_or_b32 v15, v15, v27")
    a(f"""
    v_cmp_ne_u32 vcc, 0, v15
    s_nop 3
    s_cmp_eq_u64 vcc, 0
    s_cbranch_scc1 {ok}
    s_sub_u32 s62, s62, 1
    s_cbranch_scc1 {ok}
    s_sleep 2
    """)
    gather_cs_setup(a, c); gather_cs(a, 0, 16)
    if c.kind == "qkv": gather_rs(a, c)
    a("s_waitcnt vmcnt(0)")
    a(f"s_branch {lp}")
    a(f"{ok}:")
    for r in range(1, 16): a(f"v_add_f32 v{G_CS}, v{G_CS}, v{G_CS+2*r}")
    a(f"""
    v_lshlrev_b32 v2, 2, v1
    s_lshl_b32 s30, s38, 8
    s_add_u32 s30, s30, {ST_CS}
    v_add_u32 v2, s30, v2
    ds_write_b32 v2, v{G_CS}
    """)
    return 0

def l2_issue(a, c):
    which = 0 if c.kind == "qkv" else 1
    srd_off(a, 16, P_WS, CSG_OFF + which * 524288, 524288)
    a(f"""
    s_lshl_b32 s60, s2, 2
    s_add_u32 s60, s60, s38
    v_lshrrev_b32 v24, 2, v1
    v_lshlrev_b32 v24, {15 if which == 0 else 11}, v24
    v_and_b32 v27, 3, v1
    v_lshl_add_u32 v24, v27, 3, v24
    """)
    if which == 0:
        a("s_min_u32 s60, s60, 767")
        a("s_lshl_b32 s67, s60, 5")
    else:
        a("""
        s_lshr_b32 s67, s60, 6
        s_lshl_b32 s67, s67, 15
        s_and_b32 s31, s60, 63
        s_lshl_b32 s31, s31, 5
        s_add_u32 s67, s67, s31
        """)
    a(f"buffer_load_dwordx2 v[{G_CS}:{G_CS+1}], v24, s[16:19], s67 offen sc0 sc1")
    return 1

def tagcheck(a, regs, retry):
    lp = a.label("gchk"); ok = a.label("skip_gok")
    a("s_mov_b32 s62, 0x80000")
    a(f"{lp}:")
    for k, (r, sg) in enumerate(regs):
        a(f"v_xor_b32 v{15 if k == 0 else 27}, s{sg}, v{r}")
        if k: a("v_or_b32 v15, v15, v27")
    a(f"""
    v_cmp_ne_u32 vcc, 0, v15
    s_nop 3
    s_cmp_eq_u64 vcc, 0
    s_cbranch_scc1 {ok}
    s_sub_u32 s62, s62, 1
    s_cbranch_scc1 {ok}
    """)
    retry()
    a("s_waitcnt vmcnt(0)")
    a(f"s_branch {lp}")
    a(f"{ok}:")

def l2_finish(a, c):
    which = 0 if c.kind == "qkv" else 1
    v = G_CS
    tagcheck(a, [(v + 1, TAG)], lambda: a(f"buffer_load_dwordx2 v[{v}:{v+1}], v24, s[16:19], s67 offen sc0 sc1"))
    srd_off(a, 16, P_WS, FIN_OFF + which * 32768, 32768)
    a(f"""
    v_add_f32_dpp v{v}, v{v}, v{v} row_ror:4 row_mask:0xf bank_mask:0xf
    v_add_f32_dpp v{v}, v{v}, v{v} row_ror:8 row_mask:0xf bank_mask:0xf
    v_mov_b32 v{v+2}, v{v}
    v_permlane16_swap_b32 v{v}, v{v+2}
    v_add_f32 v{v}, v{v}, v{v+2}
    v_mov_b32 v{v+2}, v{v}
    v_permlane32_swap_b32 v{v}, v{v+2}
    v_add_f32 v{v}, v{v}, v{v+2}
    v_lshlrev_b32 v24, 3, v1
    s_lshl_b32 s60, s60, 5
    s_mov_b64 exec, 15
    buffer_store_dwordx2 v[{v}:{v+1}], v24, s[16:19], s60 offen sc0 sc1
    s_mov_b64 exec, -1
    """)
    return 1

def fin_issue(a, c):
    if c.kind == "qkv":
        a("""
        s_min_u32 s31, s38, 2
        s_lshl_b32 s60, s31, 13
        s_lshl_b32 s31, s25, 9
        s_add_u32 s60, s60, s31
        """)
    else:
        a("""
        s_lshl_b32 s60, s25, 11
        s_lshl_b32 s31, s38, 9
        s_add_u32 s60, s60, s31
        """)
    a(f"buffer_load_dwordx2 v[{G_CS}:{G_CS+1}], v24, s[16:19], s60 offen sc0 sc1")
    return 1

def fin_finish(a, c):
    regs = [(G_CS + 1, TAG)] + ([(G_RS + 2, TAG), (G_RS + 3, TAG + 1)] if c.kind == "qkv" else [])
    def retry():
        a(f"buffer_load_dwordx2 v[{G_CS}:{G_CS+1}], v24, s[16:19], s60 offen sc0 sc1")
        if c.kind == "qkv": gather_rs(a, c)
    tagcheck(a, regs, retry)
    a(f"""
    v_lshlrev_b32 v2, 2, v1
    s_lshl_b32 s30, s38, 8
    s_add_u32 s30, s30, {ST_CS}
    v_add_u32 v2, s30, v2
    ds_write_b32 v2, v{G_CS}
    """)
    return 0

def gather_finish_rs(a, c):
    a(f"""
    v_and_b32 v3, 31, v1
    s_lshl_b32 s30, s38, 5
    v_add_u32 v3, s30, v3
    v_lshlrev_b32 v2, 4, v3
    v_add_u32 v2, {ST_REC}, v2
    """)
    R = G_RS
    if c.kind == "qkv":
        a(f"""
        v_lshlrev_b32 v3, 2, v3
        v_add_u32 v3, {ST_MEAN}, v3
        ds_write_b128 v2, v[{R}:{R+3}]
        ds_write_b32 v3, v{R}
        ds_write_b32 v3, v{R+1} offset:512
        """)
    else:
        a(f"""
        v_mov_b32 v{R+1}, v{R}
        v_permlane32_swap_b32 v{R}, v{R+1}
        v_mul_f32 v{R}, {f32(1.0/1024)}, v{R}
        v_mul_f32 v{R+1}, {f32(1.0/1024)}, v{R+1}
        v_fma_f32 v{R+1}, -v{R}, v{R}, v{R+1}
        v_max_f32 v{R+1}, 0, v{R+1}
        v_add_f32 v{R+4}, {f32(1e-5)}, v{R+1}
        v_rsq_f32 v{R+1}, v{R+4}
        v_sqrt_f32 v{R+3}, v{R+4}
        v_sqrt_f32 v{R+2}, v{R+4}
        v_mul_f32 v{R+1}, {f32(-LOG2E)}, v{R+1}
        ds_write_b128 v2, v[{R}:{R+3}]
        """)
    a("s_waitcnt lgkmcnt(0)")
    return 0

def row_stats_issue(a, X):
    srd_off(a, 20, P_X, 0, 4 * MB)
    srd_off(a, 16, P_DBG, 0, 256)
    a(f"""
    s_lshl_b32 s30, s24, 7
    s_lshl_b32 s31, s25, 3
    s_add_u32 s30, s30, s31
    s_lshl_b32 s31, s3, 1
    s_add_u32 s33, s30, s31
    s_lshl_b32 s30, s33, 11
    v_lshlrev_b32 v{X+18}, 4, v1
    v_mov_b32 v{X+19}, 0
    """)
    for i in range(4):
        a(f"buffer_load_dwordx4 v[{X+4*i}:{X+4*i+3}], v{X+18}, s[20:23], s30 offen offset:{i*1024}")

def row_stats_finish(a, X, T):
    s0, q0, s1, q1 = T, T + 1, T + 2, T + 3
    a(f"buffer_load_dwordx2 v[{X+16}:{X+17}], v{X+19}, s[16:19], 0 offen sc0 sc1")
    a("s_mov_b32 s75, 0x3f803f80")
    for i in range(4): a(f"v_mov_b32 v{T+i}, 0")
    a("s_waitcnt vmcnt(1)")
    for d in range(8):
        for row in range(2):
            r = X + 8 * row + d
            a(f"v_dot2c_f32_bf16 v{T+2*row}, s75, v{r}")
            a(f"v_dot2c_f32_bf16 v{T+2*row+1}, v{r}, v{r}")
    a(f"""
    v_permlane32_swap_b32 v{s0}, v{q0}
    v_permlane32_swap_b32 v{s1}, v{q1}
    v_add_f32 v{s0}, v{s0}, v{q0}
    v_add_f32 v{s1}, v{s1}, v{q1}
    v_permlane16_swap_b32 v{s0}, v{s1}
    v_add_f32 v{s0}, v{s0}, v{s1}
    v_add_f32_dpp v{s0}, v{s0}, v{s0} quad_perm:[1,0,3,2] row_mask:0xf bank_mask:0xf
    v_add_f32_dpp v{s0}, v{s0}, v{s0} quad_perm:[2,3,0,1] row_mask:0xf bank_mask:0xf
    v_add_f32_dpp v{s0}, v{s0}, v{s0} row_half_mirror row_mask:0xf bank_mask:0xf
    v_add_f32_dpp v{s0}, v{s0}, v{s0} row_mirror row_mask:0xf bank_mask:0xf
    v_mov_b32 v{q0}, v{s0}
    v_permlane32_swap_b32 v{s0}, v{q0}
    v_mul_f32 v{s0}, {f32(1.0/1024)}, v{s0}
    v_mul_f32 v{q0}, {f32(1.0/1024)}, v{q0}
    v_fma_f32 v{q0}, -v{s0}, v{s0}, v{q0}
    v_max_f32 v{q0}, 0, v{q0}
    v_add_f32 v{q0}, {f32(1e-5)}, v{q0}
    v_rsq_f32 v{q0}, v{q0}
    """)
    lp = a.label("tagp"); dn = a.label("tagd")
    a(f"""
    s_mov_b32 s39, 0x100000
    {lp}:
    s_waitcnt vmcnt(0)
    v_readfirstlane_b32 s{TAG}, v{X+16}
    v_readfirstlane_b32 s{TAG+1}, v{X+17}
    s_nop 3
    s_cmp_lg_u32 s{TAG}, 0
    s_cbranch_scc1 {dn}
    s_sleep 1
    buffer_load_dwordx2 v[{X+16}:{X+17}], v{X+19}, s[16:19], 0 offen sc0 sc1
    s_sub_u32 s39, s39, 1
    s_cmp_lg_u32 s39, 0
    s_cbranch_scc1 {lp}
    {dn}:
    """)
    srd_off(a, 20, P_WS, RS1_OFF, 32768)
    a(f"""
    v_mov_b32 v{s1}, s{TAG}
    v_mov_b32 v{q1}, s{TAG+1}
    v_and_b32 v{T+4}, 16, v1
    s_lshl_b32 s30, s33, 4
    v_mov_b32 v{T+5}, {ST_TAG}
    s_mov_b64 exec, 0x10001
    buffer_store_dwordx4 v[{T}:{T+3}], v{T+4}, s[20:23], s30 offen sc0 sc1
    ds_write_b64 v{T+5}, v[{s1}:{q1}]
    s_mov_b64 exec, -1
    s_waitcnt lgkmcnt(0)
    """)

def w2_kg(t):
    if OPT["sk"]:
        if t < 8: return 7 * t, 4
        if t < 12: return 14 * (t - 8) + 3, 7
        if t < 20: return 7 * (t - 12) + 1, 4
        return 7 * (t - 20) + 2, 4
    if t < 16: return 7 * t, 4
    if t < 24: return 14 * (t - 16) + 3, 7
    if t < 40: return 7 * (t - 24) + 1, 4
    return 7 * (t - 40) + 2, 4

def set_soff(a, c, st, A=True, B=True):
    if c.kind != "w2": return
    if OPT["own"]:
        if st < 3:
            a(f"s_add_u32 s30, s43, s63"); off = st
        elif 10 <= st < 14:
            m = st - 10; i = 2 * m
            a(f"s_add_u32 s30, s66, s64"); off = 7 * (i + (i & 4)) + 3
        else:
            t, off = (st - 3, 0) if st < 10 else ((st - 14, 1) if st < 21 else (st - 21, 2))
            a(f"""
            s_add_u32 s30, s42, {t + 1}
            s_and_b32 s30, s30, 7
            s_and_b32 s31, s30, 4
            s_add_u32 s30, s30, s31
            s_mul_i32 s30, s30, {7*8192}
            s_add_u32 s30, s30, s66
            s_add_u32 s30, s30, s63
            """)
        if A: a(f"s_add_u32 s28, s30, {off*8192}")
        if B:
            a(f"s_add_u32 s29, s30, {off*8192}")
            a("s_lshl_b32 s29, s29, 3")
        return
    base, dh = w2_kg(st)
    off = base % 7
    hs = "s63" if dh == 4 else "s64"
    a(f"s_add_u32 s30, s66, {(base - off)*8192}")
    a(f"s_sub_u32 s31, s30, {112*8192}")
    a("s_cselect_b32 s30, s30, s31")
    a(f"s_add_u32 s30, s30, {hs}")
    if A: a(f"s_add_u32 s28, s30, {off*8192}")
    if B:
        a(f"s_add_u32 s29, s30, {off*8192}")
        a("s_lshl_b32 s29, s29, 3")

def w2_early_setup(a, c):
    a(f"""
    s_mul_i32 s41, s38, {c.NBW*1024}
    s_and_b32 s30, s38, 1
    s_mul_i32 s63, s30, {4*8192}
    s_mul_i32 s64, s30, {7*8192}
    s_and_b32 s30, s25, 4
    s_mul_i32 s66, s30, {(7 if OPT["own"] else 14)*8192}
    s_and_b32 s42, s25, 3
    s_lshr_b32 s30, s25, 3
    s_lshl_b32 s30, s30, 2
    s_add_u32 s42, s42, s30
    s_mul_i32 s43, s25, {7*8192}
    """)
    c.bstep = 64 * c.ldb
    b_setup(a, c, c.pvb, c.sb)

def pre_B(a, c, st0=0, st1=None):
    for st in range(st0, c.S if st1 is None else st1):
        set_soff(a, c, st, A=False)
        issueB(a, c, (st + c.bs0) % c.SB, c.kind != "w2")
    return (( c.S if st1 is None else st1) - st0) * c.NBW

def gemm_producer(a, c, preB, gated=None, side=None, after_issue=None, unroll_to=None):
    n = c.n; S = c.S; L = 4 + c.NBW
    side = side or {}
    U = n if unroll_to is None else unroll_to
    ops = []
    w2 = c.kind == "w2"
    def iss(st):
        if gated and st < (8 if c.sk else 16): gate(a, st, gated == "wide")
        if st == (1 if ((c.kind == "w1" and OPT["own1"]) or (c.kind == "wo" and OPT["owno"])) else 0): stamp(a, c.sid)
        doB = not (preB and st < c.SB)
        set_soff(a, c, st, True, doB)
        issueA(a, c, st % S, not w2); ops.extend([st] * 4)
        if doB:
            issueB(a, c, (st + c.bs0) % c.SB, not w2); ops.extend([st] * c.NBW)
        if after_issue:
            if st == 1 and c.kind == "w1" and OPT["own1"]: ops.extend([st] * after_issue(0))
            ops.extend([st] * after_issue(st))
    def wait(st):
        last = max(i for i, x in enumerate(ops) if x <= st)
        a(f"s_waitcnt vmcnt({min(63, len(ops) - 1 - last)})")
    def run_side(j, tag):
        for f in side.get(j, []): ops.extend([tag] * (f() or 0))
    if DIAG and OPT['steps']: a('s_mov_b32 s99, 0\nv_mov_b32 v252, 0')
    own0 = (c.kind == "w1" and OPT["own1"]) or (c.kind == "wo" and OPT["owno"])
    if own0:
        a(f"s_add_u32 s28, s28, {c.astep}")
        a(f"s_and_b32 s28, s28, {16*c.astep - 1}")
        a(f"s_waitcnt vmcnt({(S-1)*c.NBW})")
        issued = 1
    else:
        iss(0); issued = 1
        if not (c.kind == "qkv" and OPT["early0"]):
            run_side(-1, 1)
            iss(1); issued = 2
        wait(0)
    stamp(a, c.sid + 1)
    pbar(a)
    j = 0
    while j < n:
        allowed = j - 1 + S
        if issued >= U and issued < n: break
        cnt = 0
        if c.kind == "qkv" and OPT["early0"] == 1 and j == 0: run_side(-1, 1)
        while issued <= allowed and cnt < 2 and issued < U:
            if c.kind == "qkv" and OPT["early0"] >= 2 and issued == OPT["early0"]: run_side(-1, OPT["early0"])
            iss(issued); issued += 1; cnt += 1
        run_side(j, max(issued - 1, j + 2))
        j += 1
        if j < n: wait(j)
        pbar(a)
    if j < n:
        assert issued == j - 1 + S
        a(f"s_mov_b32 s27, {c.ABASE + (issued % S)*16384}")
        a(f"s_mov_b32 s32, {c.BBASE + (issued % S)*c.BB}")
        for (t0, t1, stride) in c.rounds:
            if t0 == c.gate_all_at:
                a(f"s_waitcnt vmcnt({(c.gate_all_at - c.prepoll_at) * L})")
                a(f"v_cmp_eq_u64 s[56:57], s[{TAG}:{TAG+1}], v[{PV_POLL}:{PV_POLL+1}]")
                a("s_nop 3")
                gate(a, "all", False)
            if t0 == c.prepoll_at:
                gate_setup(a, c.seamB, False)
                a(f"buffer_load_dwordx2 v[{PV_POLL}:{PV_POLL+1}], v26, s[{FLS}:{FLS+3}], s33 offen sc0 sc1")
            if t0 in c.round_hook: c.round_hook[t0]()
            lp = a.label("p_loop")
            set_soff(a, c, t0, True, False)
            a(f"s_mov_b32 s26, {t1 - t0}")
            a(f"{lp}:")
            a("s_lshl_b32 s29, s28, 3")
            issueA(a, c, None, False); issueB(a, c, None, False)
            a(f"s_add_u32 s28, s28, {stride*8192}")
            a(f"s_sub_u32 s31, s28, {112*8192}")
            a("s_cselect_b32 s28, s28, s31")
            a(f"s_waitcnt vmcnt({(S-2)*L})")
            if DIAG and OPT["steps"]:
                pbar(a)
                a(f"s_sub_u32 s26, s26, 1\ns_cmp_lg_u32 s26, 0\ns_cbranch_scc1 {lp}")
            else:
                a(f"s_sub_u32 s26, s26, 1\ns_cmp_lg_u32 s26, 0\ns_barrier\ns_cbranch_scc1 {lp}")
        j = n - S + 1
        stamp(a, c.sid + 2)
        while j < n:
            j += 1
            if j < n: a(f"s_waitcnt vmcnt({(n-1-j)*L})")
            pbar(a)
    stamp(a, c.sid + 3)
    pbar_flush(a, {'qkv':0,'wo':1,'w1':2,'w2':3}[c.kind])

def own_gate_setup(a, seam_id):
    a(f"""
    v_lshrrev_b32 v2, 2, v1
    s_add_u32 s30, s42, 1
    v_add_u32 v2, s30, v2
    v_and_b32 v2, 7, v2
    v_and_b32 v3, 4, v2
    v_add_u32 v2, v2, v3
    s_and_b32 s30, s25, 4
    v_add_u32 v2, s30, v2
    v_and_b32 v3, 3, v1
    v_lshl_add_u32 v2, v2, 2, v3
    v_lshlrev_b32 v26, 3, v2
    s_lshl_b32 s33, s24, 10
    s_add_u32 s33, s33, {seam_id*16384}
    s_mov_b64 s[56:57], 0
    s_mov_b32 s39, 0x200000
    """)

def w2_producer(a, c):
    n = c.n; S = c.S
    ops = []
    def A(st):
        if 3 <= st < 10: gate(a, st - 3, False)
        if st == 3: stamp(a, c.sid)
        if st == (10 if OPT["w1t"] else 14):
            last = max(i for i, x in enumerate(ops) if x == -7)
            a(f"s_waitcnt vmcnt({len(ops) - 1 - last})")
            a(f"v_cmp_eq_u64 s[56:57], s[{TAG}:{TAG+1}], v[{PV_POLL+2}:{PV_POLL+3}]")
            a("s_mov_b32 s33, s37")
            a("s_nop 3")
            gate(a, "all", False)
        set_soff(a, c, st, True, False)
        issueA(a, c, st % S, False); ops.extend([st] * 4)
    def B(st, same=False):
        if same: a("s_lshl_b32 s29, s28, 3")
        else: set_soff(a, c, st, False, True)
        issueB(a, c, st % S, False); ops.extend([st] * c.NBW)
    def wait(st):
        last = max(i for i, x in enumerate(ops) if 0 <= x <= st)
        a(f"s_waitcnt vmcnt({min(63, len(ops) - 1 - last)})")
    if DIAG and OPT['steps']: a('s_mov_b32 s99, 0\nv_mov_b32 v252, 0')
    own_gate_setup(a, 0)
    apoll = f"buffer_load_dwordx2 v[{PV_POLL}:{PV_POLL+1}], v26, s[{FLS}:{FLS+3}], s33 offen sc0 sc1"
    def acheck(cnt):
        a(f"s_waitcnt vmcnt({cnt})")
        a(f"v_cmp_eq_u64 s[56:57], s[{TAG}:{TAG+1}], v[{PV_POLL}:{PV_POLL+1}]")
        a("s_nop 3")
    if OPT["w1t"]:
        a("s_barrier")
        pre_B(a, c, 1, 4)
        a("s_barrier")
        a(apoll)
        acheck(0)
        sk = a.label("skip_a3"); sk2 = a.label("skip_a3b")
        a(f"""
        s_mov_b32 s40, 0
        s_and_b32 s30, s56, 15
        s_cmp_lg_u32 s30, 15
        s_cbranch_scc1 {sk}
        s_mov_b32 s40, 1
        """)
        set_soff(a, c, 3, True, False)
        issueA(a, c, 3, False)
        a(f"{sk}:")
        pbar(a)
        pbar(a)
        B(4)
        a(f"s_cmp_lg_u32 s40, 0")
        a(f"s_cbranch_scc1 {sk2}")
        A(3)
        a(f"{sk2}:")
        A(4)
        pbar(a)
        A(5); B(5, True)
    else:
        a("s_waitcnt vmcnt(0)")
        pbar(a)
        om = OPT["ownm"]
        pbar(a)
        if om == 1: a(apoll)
        B(4)
        pbar(a)
        if om == 1:
            acheck(4); A(3); B(5); A(4); A(5)
        else:
            B(5); A(3); A(4); A(5)
    wait(3)
    stamp(a, c.sid + 1)
    pbar(a)
    for j in range(3, n):
        st = j - 1 + S
        if st < n:
            if st == (OPT["pb"] if OPT["w1t"] else 12):
                a(f"s_add_u32 s37, s33, {3*16384}")
                a(f"buffer_load_dwordx2 v[{PV_POLL+2}:{PV_POLL+3}], v26, s[{FLS}:{FLS+3}], s37 offen sc0 sc1")
                ops.append(-7)
            A(st); B(st, True)
        if j + 1 < n: wait(j + 1)
        pbar(a)
    stamp(a, c.sid + 3)
    pbar_flush(a, 3)

def touch(a, ptr, total_bytes, sr_=20):
    nl = total_bytes // 128 // 1024
    srd_off(a, sr_, ptr, 0, total_bytes)
    a(f"""
    s_lshl_b32 s30, s2, 2
    s_add_u32 s30, s30, s38
    s_mul_i32 s30, s30, {nl*128}
    v_lshlrev_b32 v2, 7, v1
    s_mov_b32 exec_lo, {hex(((1 << nl) - 1) & 0xffffffff)}
    s_mov_b32 exec_hi, {hex(((1 << nl) - 1) >> 32)}
    buffer_load_dword v253, v2, s[{sr_}:{sr_+3}], s30 offen
    s_mov_b64 exec, -1
    """)
    return 1

def xtouch_setup(a, ptr, nbytes, sr_, vreg):
    srd_off(a, sr_, ptr, 0, nbytes)
    a(f"""
    v_lshrrev_b32 v2, 2, v1
    v_lshlrev_b32 v2, 11, v2
    v_and_b32 v3, 3, v1
    v_lshl_add_u32 v2, v3, 7, v2
    s_and_b32 s30, s2, 3
    s_lshl_b32 s30, s30, 9
    s_lshl_b32 s31, s38, 14
    s_add_u32 s30, s30, s31
    v_add_u32 v2, s30, v2
    v_mov_b32 v3, 0x40000000
    v_cmp_gt_u32 vcc, 32, v1
    v_cndmask_b32 v{vreg}, v3, v2, vcc
    """)

def w2_xtouch(a, q):
    a(f"""
    s_lshr_b32 s30, s2, 4
    s_mul_i32 s30, s30, {7*65536}
    s_bfe_u32 s31, s2, 0x10003
    s_mul_i32 s31, s31, {4*65536 if q < 3 else 0x20000000}
    s_add_u32 s30, s30, s31
    s_add_u32 s30, s30, {q*65536}
    buffer_load_dword v253, v23, s[44:47], s30 offen
    """)
    return 1

def attention_v1(a):
    SC = (32 ** -0.5) * LOG2E
    vF, vL, vQH = 2, 4, 5
    Q = 8; O = 16; SB = 32; F = 176; T = 248
    a(f"""
    v_bfe_u32 v6, v1, 4, 1
    v_lshlrev_b32 v{vF}, 10, v6
    v_lshrrev_b32 v6, 5, v1
    v_lshl_add_u32 v{vF}, v6, 8, v{vF}
    v_and_b32 v7, 15, v1
    v_lshl_add_u32 v{vF}, v7, 4, v{vF}
    v_and_b32 v7, 31, v1
    v_lshlrev_b32 v6, 2, v6
    v_sub_u32 v{vQH}, v7, v6
    s_lshr_b32 s34, s3, 2            ; hh
    s_and_b32 s35, s3, 3             ; qb
    s_mul_i32 s30, s34, {HEADW}
    s_lshl_b32 s31, s35, 11
    s_add_u32 s30, s30, s31
    v_add_u32 v{vL}, s30, v{vF}
    ds_read_b128 v[{Q}:{Q+3}], v{vL} offset:49152
    ds_read_b128 v[{Q+4}:{Q+7}], v{vL} offset:{49152+512}
    """)
    def fr(b, i): return F + b * 8 + i * 4
    rd = []
    for b in range(9):
        for i in range(2):
            rd.append(f"ds_read_b128 v[{fr(b,i)}:{fr(b,i)+3}], v{vL} offset:{b*2048 + i*512}")
    for x in rd[:8]: a(x)
    for r in range(16):
        cst = 8 * (r >> 2) + (r & 3)
        a(f"v_cmp_gt_i32 s[{40+2*r}:{41+2*r}], {cst}, v{vQH}")
    nissued = 8
    rv = []
    for b in range(9):
        for i in range(2):
            rv.append(f"ds_read_b128 v[{fr(b,i)}:{fr(b,i)+3}], v{vL} offset:{24576 + b*2048 + i*512}")
    for b in range(9):
        a(f"s_waitcnt lgkmcnt({nissued - (2*b+2)})")
        s = SB + 16 * b
        a(f"v_mfma_f32_32x32x16_bf16 v[{s}:{s+15}], v[{fr(b,0)}:{fr(b,0)+3}], v[{Q}:{Q+3}], 0")
        if nissued < 18: a(rd[nissued]); nissued += 1
        a(f"v_mfma_f32_32x32x16_bf16 v[{s}:{s+15}], v[{fr(b,1)}:{fr(b,1)+3}], v[{Q+4}:{Q+7}], v[{s}:{s+15}]")
        if nissued < 18: a(rd[nissued]); nissued += 1
    for x in rv[:14]: a(x)
    skip = a.label("at_valid")
    a(f"""
    s_lshl_b32 s30, s24, 2
    s_add_u32 s30, s30, s35
    s_cmp_ge_u32 s30, 8
    s_cbranch_scc1 {skip}
    """)
    for b in range(8):
        nb = a.label("at_nb")
        a(f"s_cmp_ge_u32 s30, {8-b}")
        a(f"s_cbranch_scc1 {nb}")
        for r in range(16):
            a(f"v_mov_b32 v{SB+16*b+r}, 0xff800000")
        a(f"{nb}:")
    a(f"{skip}:")
    mx = T; mx2 = T + 1; sm = T + 2
    a(f"v_max_f32 v{mx}, v{SB+16}, v{SB+17}")
    a(f"v_max_f32 v{mx2}, v{SB+18}, v{SB+19}")
    idx = list(range(20, 128))
    for k in range(0, len(idx), 2):
        m = mx if (k // 2) % 2 == 0 else mx2
        a(f"v_max3_f32 v{m}, v{SB+idx[k]}, v{SB+idx[k+1]}, v{m}")
    for r in range(16):
        a(f"v_cndmask_b32 v{SB+r}, v{SB+128+r}, v{SB+r}, s[{40+2*r}:{41+2*r}]")
    for k in range(0, 16, 2):
        m = mx if (k // 2) % 2 == 0 else mx2
        a(f"v_max3_f32 v{m}, v{SB+k}, v{SB+k+1}, v{m}")
    for x in rv[14:]: a(x)
    a(f"""
    v_max_f32 v{mx}, v{mx}, v{mx2}
    v_mov_b32 v{mx2}, v{mx}
    v_permlane32_swap_b32 v{mx}, v{mx2}
    v_max_f32 v{mx}, v{mx}, v{mx2}
    v_mov_b32 v{Q}, {f32(SC)}
    v_mov_b32 v{Q+1}, {f32(SC)}
    v_mul_f32 v{Q+2}, {f32(-SC)}, v{mx}
    v_mul_f32 v{Q+3}, {f32(-SC)}, v{mx}
    v_mov_b32 v{sm}, 0
    v_mov_b32 v{sm+1}, 0
    s_waitcnt lgkmcnt(0)
    s_barrier
    """)
    sk = a.label("skip_x1")
    a(f"""
    s_cmp_lt_u32 s3, 4
    s_cbranch_scc1 {sk}
    s_mul_i32 s30, s24, {64*7168}
    s_mul_i32 s31, s38, 7168
    """)
    for i in range(7):
        if i % 4 == 0: a(f"s_add_u32 m0, s31, {XB1 + i*1024}")
        a(f"buffer_load_dwordx4 v{O+i}, s[20:23], s30 offen offset:{(i&3)*1024} lds")
    if OPT["sk"] and OPT["sent"] == 1:
        sk2 = a.label("skip_x2")
        a(f"s_branch {sk2}")
        a(f"{sk}:")
        srd_off(a, 20, P_WS, XP_OFF, 8 * MB)
        a(f"""
        s_lshl_b32 s30, s24, 19
        s_lshl_b32 s31, s3, 13
        s_add_u32 s30, s30, s31
        s_lshl_b32 s31, s25, 15
        s_add_u32 s30, s30, s31
        v_lshlrev_b32 v{O+4}, 4, v1
        """)
        for i in range(4): a(f"v_mov_b32 v{O+i}, -1")
        for mt in range(4):
            a(f"buffer_store_dwordx4 v[{O}:{O+3}], v{O+4}, s[20:23], s30 offen offset:{mt*1024} sc0 sc1")
        a(f"{sk2}:")
    else:
        a(f"{sk}:")
    def pack(s):
        for d, r in [(0, 0), (1, 2), (2, 8), (3, 10), (4, 4), (5, 6), (6, 12), (7, 14)]:
            a(f"v_cvt_pk_bf16_f32 v{s+d}, v{s+r}, v{s+r+1}")
    first = [True]
    def pv(b, s):
        c0 = "0" if first[0] else f"v[{O}:{O+15}]"
        first[0] = False
        a(f"v_mfma_f32_32x32x16_bf16 v[{O}:{O+15}], v[{fr(b,0)}:{fr(b,0)+3}], v[{s}:{s+3}], {c0}")
        a(f"v_mfma_f32_32x32x16_bf16 v[{O}:{O+15}], v[{fr(b,1)}:{fr(b,1)+3}], v[{s+4}:{s+7}], v[{O}:{O+15}]")
    pending = None
    for b in [0, 1, 2, 3, 4, 5, 6, 7]:
        s = SB + 16 * b
        for r in range(0, 16, 2):
            a(f"v_pk_fma_f32 v[{s+r}:{s+r+1}], v[{s+r}:{s+r+1}], v[{Q}:{Q+1}], v[{Q+2}:{Q+3}]")
        if pending is not None:
            for p in pending: pv(*p)
            pending = None
        for r in range(16):
            a(f"v_exp_f32 v{s+r}, v{s+r}")
        for r in range(0, 16, 2):
            a(f"v_pk_add_f32 v[{sm}:{sm+1}], v[{sm}:{sm+1}], v[{s+r}:{s+r+1}]")
        if b == 0:
            s8 = SB + 128
            for r in range(16):
                a(f"v_cndmask_b32 v{s8+r}, v{s+r}, 0, s[{40+2*r}:{41+2*r}]")
                a(f"v_cndmask_b32 v{s+r}, 0, v{s+r}, s[{40+2*r}:{41+2*r}]")
            pack(s); pack(s8)
            pending = [(0, s), (8, s8)]
        else:
            pack(s)
            pending = [(b, s)]
    for p in pending: pv(*p)
    srd_off(a, 16, P_WS, O_OFF, 4 * MB)
    a(f"""
    v_add_f32 v{sm}, v{sm}, v{sm+1}
    v_mov_b32 v{sm+1}, v{sm}
    v_permlane32_swap_b32 v{sm}, v{sm+1}
    v_add_f32 v{sm}, v{sm}, v{sm+1}
    v_rcp_f32 v{sm+1}, v{sm}
    v_rcp_f32 v{sm}, v{sm}
    s_lshl_b32 s30, s24, 18
    s_lshl_b32 s31, s25, 14
    s_add_u32 s30, s30, s31
    s_lshl_b32 s31, s34, 13
    s_add_u32 s30, s30, s31
    s_lshl_b32 s31, s35, 11
    s_add_u32 s30, s30, s31
    """)
    for r in range(0, 16, 2):
        a(f"v_pk_mul_f32 v[{O+r}:{O+r+1}], v[{O+r}:{O+r+1}], v[{sm}:{sm+1}]")
    pack(O)
    a(f"""
    buffer_store_dwordx4 v[{O}:{O+3}], v{vF}, s[16:19], s30 offen sc0 sc1
    buffer_store_dwordx4 v[{O+4}:{O+7}], v{vF}, s[16:19], s30 offen offset:512 sc0 sc1
    """)
    stamp(a, 10)
    signal(a, 1, 3, SB)
    stamp(a, 11)

def attention(a):
    if not OPT["att2"]: return attention_v1(a)
    SC = (32 ** -0.5) * LOG2E
    vF, vL, vQH = 2, 4, 5
    Q = 8; O = 16; SB = 32; F = 176; T = 248
    MK = O + 8
    ONES = Q + 4
    LS = SB + 128
    mx = T; mx2 = T + 1
    a(f"""
    v_bfe_u32 v6, v1, 4, 1
    v_lshlrev_b32 v{vF}, 10, v6
    v_lshrrev_b32 v6, 5, v1
    v_lshl_add_u32 v{vF}, v6, 8, v{vF}
    v_and_b32 v7, 15, v1
    v_lshl_add_u32 v{vF}, v7, 4, v{vF}
    s_lshr_b32 s34, s3, 2
    s_and_b32 s35, s3, 3
    s_mul_i32 s30, s34, {HEADW}
    s_lshl_b32 s31, s35, 11
    s_add_u32 s30, s30, s31
    v_add_u32 v{vL}, s30, v{vF}
    ds_read_b128 v[{Q}:{Q+3}], v{vL} offset:49152
    ds_read_b128 v[{Q+4}:{Q+7}], v{vL} offset:{49152+512}
    """)
    def fr(b, i): return F + b * 8 + i * 4
    order = [0, 8, 1, 2, 3, 4, 5, 6, 7]
    rd = [f"ds_read_b128 v[{fr(b,i)}:{fr(b,i)+3}], v{vL} offset:{b*2048 + i*512}" for b in order for i in range(2)]
    rv = [f"ds_read_b128 v[{fr(b,i)}:{fr(b,i)+3}], v{vL} offset:{24576 + b*2048 + i*512}" for b in order for i in range(2)]
    for x in rd[:8]: a(x)
    a(f"""
    v_and_b32 v7, 31, v1
    v_lshlrev_b32 v6, 2, v6
    v_sub_u32 v{vQH}, v7, v6
    v_mov_b32 v6, 0xffff0000
    """)
    msk = lambda r: f"s[{40+2*r}:{41+2*r}]"
    for r in range(16):
        a(f"v_cmp_gt_i32 {msk(r)}, {8 * (r >> 2) + (r & 3)}, v{vQH}")
    PK = [(0, 0), (1, 2), (2, 8), (3, 10), (4, 4), (5, 6), (6, 12), (7, 14)]
    fill = {k: [] for k in range(9)}
    for d, r in PK:
        fill[d // 4].append(f"v_cndmask_b32 v{MK+d}, 0, v6, {msk(r+1)}")
        fill[d // 4].append(f"v_cndmask_b32 v{MK+d}, v{MK+d}, -1, {msk(r)}")
    def merge(): return [f"v_cndmask_b32 v{SB+r}, v{SB+128+r}, v{SB+r}, {msk(r)}" for r in range(16)]
    def maxblk(b, first=False):
        o = []; s_ = SB + 16 * b
        for k in range(0, 16, 2):
            m = mx if (k // 2) % 2 == 0 else mx2
            if first and k < 4: o.append(f"v_max_f32 v{m}, v{s_+k}, v{s_+k+1}")
            else: o.append(f"v_max3_f32 v{m}, v{s_+k}, v{s_+k+1}, v{m}")
        return o
    mg = merge()
    fill[3] += mg[:8]; fill[4] += mg[8:] + maxblk(1, True)[:4]
    fill[5] += maxblk(1, True)[4:] + maxblk(0); fill[6] += maxblk(2) + maxblk(3)[:4]
    fill[7] += maxblk(3)[4:] + maxblk(4); fill[8] += maxblk(5)
    nissued = 8
    late = []
    for k, b in enumerate(order):
        a(f"s_waitcnt lgkmcnt({nissued - (2*k+2)})")
        s_ = SB + 16 * b
        fl = fill[k]; h = len(fl) // 2
        if OPT["bis"] == 1: h = 0
        if OPT["bis"] == 2: late += fl; fl = []
        a(f"v_mfma_f32_32x32x16_bf16 v[{s_}:{s_+15}], v[{fr(b,0)}:{fr(b,0)+3}], v[{Q}:{Q+3}], 0")
        if nissued < 18: a(rd[nissued]); nissued += 1
        for x in fl[:h]: a(x)
        a(f"v_mfma_f32_32x32x16_bf16 v[{s_}:{s_+15}], v[{fr(b,1)}:{fr(b,1)+3}], v[{Q+4}:{Q+7}], v[{s_}:{s_+15}]")
        if nissued < 18: a(rd[nissued]); nissued += 1
        for x in fl[h:]: a(x)
    for x in rv[:12]: a(x)
    for x in late + maxblk(6) + maxblk(7): a(x)
    skip = a.label("at_valid")
    a(f"""
    s_lshl_b32 s30, s24, 2
    s_add_u32 s30, s30, s35
    s_cmp_ge_u32 s30, 8
    s_cbranch_scc1 {skip}
    v_mov_b32 v7, 0xff800000
    """)
    for r in range(16):
        a(f"v_cndmask_b32 v{SB+r}, v{SB+r}, v7, {msk(r)}")
    for b in range(1, 8):
        nb = a.label("at_nb")
        a(f"s_cmp_ge_u32 s30, {8-b}")
        a(f"s_cbranch_scc1 {nb}")
        for r in range(16):
            a(f"v_mov_b32 v{SB+16*b+r}, v7")
        a(f"{nb}:")
    for b in range(8):
        for x in maxblk(b, b == 0): a(x)
    a(f"{skip}:")
    for x in rv[12:]: a(x)
    a(f"""
    v_max_f32 v{mx}, v{mx}, v{mx2}
    v_mov_b32 v{Q}, {f32(SC)}
    v_mov_b32 v{Q+1}, {f32(SC)}
    v_mov_b32 v{mx2}, v{mx}
    """)
    for i in range(4): a(f"v_mov_b32 v{ONES+i}, 0x3f803f80")
    a(f"""
    v_permlane32_swap_b32 v{mx}, v{mx2}
    v_max_f32 v{mx}, v{mx}, v{mx2}
    v_mul_f32 v{Q+2}, {f32(-SC)}, v{mx}
    v_mul_f32 v{Q+3}, {f32(-SC)}, v{mx}
    """)
    def free_lds():
        a("s_waitcnt lgkmcnt(0)")
        a("s_barrier")
        sk = a.label("skip_x1")
        a(f"""
        s_cmp_lt_u32 s3, 4
        s_cbranch_scc1 {sk}
        """)
        if OPT["deepb"]:
            cw = mk("wo", **CFG["wo"]); cw.bstep = 64 * cw.ldb; cw.pvb = 250; cw.s35 = "s33"
            a("s_lshl_b32 s33, s38, 11")
            pre_B(a, cw, 4, 12)
        a(f"""
        s_mul_i32 s30, s24, {64*7168}
        s_mul_i32 s31, s38, 7168
        """)
        for i in range(7):
            if i % 4 == 0: a(f"s_add_u32 m0, s31, {xb1() + i*1024}")
            a(f"buffer_load_dwordx4 v{O+i}, s[20:23], s30 offen offset:{(i&3)*1024} lds")
        a(f"{sk}:")
    def pack(s_):
        return [f"v_cvt_pk_bf16_f32 v{s_+d}, v{s_+r}, v{s_+r+1}" for d, r in PK]
    fo = [True]; fl_ = [True]
    def pv(b, s_):
        o = []
        for i in range(2):
            c0 = "0" if fo[0] else f"v[{O}:{O+15}]"; fo[0] = False
            o.append(f"v_mfma_f32_32x32x16_bf16 v[{O}:{O+15}], v[{fr(b,i)}:{fr(b,i)+3}], v[{s_+4*i}:{s_+4*i+3}], {c0}")
        return o
    def rsum(s_):
        o = []
        for i in range(2):
            c0 = "0" if fl_[0] else f"v[{LS}:{LS+15}]"; fl_[0] = False
            o.append(f"v_mfma_f32_32x32x16_bf16 v[{LS}:{LS+15}], v[{ONES}:{ONES+3}], v[{s_+4*i}:{s_+4*i+3}], {c0}")
        return o
    pend = []
    BARB = OPT["attbar"]
    held = []
    for b in range(8):
        s_ = SB + 16 * b
        if b == BARB:
            free_lds(); pend += [x for bb, ss in held for x in pv(bb, ss)]; held = []
        work = [f"v_pk_fma_f32 v[{s_+r}:{s_+r+1}], v[{s_+r}:{s_+r+1}], v[{Q}:{Q+1}], v[{Q+2}:{Q+3}]" for r in range(0, 16, 2)]
        work += [f"v_exp_f32 v{s_+r}, v{s_+r}" for r in range(16)]
        work += pack(s_)
        take = pend[:6]; pend = pend[6:]
        for x in {3: interleave(work, take, 7, 1, 6), 5: interleave(work, take, 7, 3, 1), 6: interleave(work, take, 1, 1, 1), 7: interleave(work, take, 7, 8, 2), 8: interleave(work, take, 23, 1, 1)}.get(OPT["bis"], interleave(work, take, 2, 4, 1)): a(x)
        if b == 0:
            for d in range(8): a(f"v_and_b32 v{s_+8+d}, v{MK+d}, v{s_+d}")
            for d in range(8): a(f"v_xor_b32 v{s_+d}, v{s_+8+d}, v{s_+d}")
            pend += rsum(s_ + 8) + rsum(s_)
            blocks = [(0, s_ + 8), (8, s_)]
        else:
            pend += rsum(s_)
            blocks = [(b, s_)]
        if b < BARB: held += blocks
        else: pend += [x for bb, ss in blocks for x in pv(bb, ss)]
    for x in pend: a(x)
    srd_off(a, 16, P_WS, O_OFF, 4 * MB)
    a(f"""
    s_lshl_b32 s30, s24, 18
    s_lshl_b32 s31, s25, 14
    s_add_u32 s30, s30, s31
    s_lshl_b32 s31, s34, 13
    s_add_u32 s30, s30, s31
    s_lshl_b32 s31, s35, 11
    s_add_u32 s30, s30, s31
    """)
    if OPT["bis"] == 4: a("s_nop 15\ns_nop 15")
    a(f"v_rcp_f32 v{mx}, v{LS}")
    a(f"v_rcp_f32 v{mx+1}, v{LS}")
    for r in range(0, 16, 2):
        a(f"v_pk_mul_f32 v[{O+r}:{O+r+1}], v[{O+r}:{O+r+1}], v[{mx}:{mx+1}]")
    for x in pack(O): a(x)
    a(f"""
    buffer_store_dwordx4 v[{O}:{O+3}], v{vF}, s[16:19], s30 offen sc0 sc1
    buffer_store_dwordx4 v[{O+4}:{O+7}], v{vF}, s[16:19], s30 offen offset:512 sc0 sc1
    """)
    if OPT["owno"]:
        a(f"""
        s_lshl_b32 s30, s3, 11
        v_add_u32 v{vL}, s30, v{vF}
        ds_write_b128 v{vL}, v[{O}:{O+3}]
        ds_write_b128 v{vL}, v[{O+4}:{O+7}] offset:512
        """)
    stamp(a, 10)
    signal(a, 1, 3, SB)
    if OPT["owno"]: a("s_waitcnt lgkmcnt(0)")
    stamp(a, 11)

def build(header_src=None):
    a = Asm()
    C = {k: mk(k, **v) for k, v in CFG.items()}
    kernel_begin(a, KNAME)
    if OPT["t0"]: a("s_memrealtime s[96:97]")
    a(f"""
    s_cmp_ge_u32 s2, 256
    s_cbranch_scc1 L_end
    s_load_dwordx16 s[80:95], s[0:1], 0
    s_load_dwordx2 s[4:5], s[0:1], 64
    v_lshrrev_b32 v2, 6, v0
    v_and_b32 v1, 63, v0
    v_readfirstlane_b32 s3, v2
    s_getreg_b32 s74, hwreg(HW_REG_XCC_ID)
    s_and_b32 s74, s74, 15
    s_mov_b32 s{TAG}, 0
    s_mov_b32 s{TAG+1}, 0
    s_waitcnt lgkmcnt(0)
    """)
    srd_off(a, FLS, P_WS, FL_OFF, 131072)
    if DIAG: a(f"v_mov_b32 v{VS}, 0")
    stamp(a, 63)
    a("""
    s_cmp_ge_u32 s3, 4
    s_cbranch_scc1 L_prod
    """)
    a("""
    s_or_b32 s30, s2, s3
    s_cmp_lg_u32 s30, 0
    s_cbranch_scc1 L_notag
    """)
    srd_off(a, 16, P_DBG, 0, 256)
    a("""
    """)
    a("s_mov_b64 s[30:31], s[96:97]" if OPT["t0"] else "s_memrealtime s[30:31]")
    a("""
    v_mov_b32 v4, 0
    s_waitcnt lgkmcnt(0)
    s_or_b32 s30, s30, 1
    v_mov_b32 v2, s30
    v_mov_b32 v3, s31
    s_mov_b64 exec, 1
    buffer_store_dwordx2 v[2:3], v4, s[16:19], 0 offen sc0 sc1
    s_mov_b64 exec, -1
    L_notag:
    """)
    if OPT["cpf"]: code_prefetch(a)
    if OPT["prio"]: a(f"s_setprio {OPT['prio']}")
    gemm_consumer(a, C["qkv"])
    a("s_barrier")
    a("L_attn:")
    stamp(a, 9)
    attention(a)
    a("""
    s_barrier
    s_cmp_ge_u32 s3, 4
    s_cbranch_scc1 L_prod2
    """)
    colsum_tile(a, C["w1"], xb1(), "s3", 1, 32)
    if OPT["deepb"]: a("s_barrier")
    if OPT["cpf"] & 2: code_prefetch(a)
    gemm_consumer(a, C["wo"])
    if OPT["cpf"] & 4: code_prefetch(a)
    gemm_consumer(a, C["w1"])
    gemm_consumer(a, C["w2"])
    if OPT["spin"]:
        a(f"""
        s_waitcnt vmcnt(0)
        L_spin:
        s_memrealtime s[96:97]
        s_waitcnt lgkmcnt(0)
        s_sub_u32 s96, s96, s{TAG}
        s_cmp_lt_u32 s96, {OPT["spin"]}
        s_cbranch_scc1 L_spin
        """)
    stamp_flush(a)
    a("s_endpgm")
    C["w2"].ool()
    if OPT["reslate"]: C["wo"].ool()
    a("L_prod:")
    a("s_sub_u32 s38, s3, 4")
    c = C["qkv"]
    prod_setup(a, c)
    cq = c
    def q_extra():
        vb, sr_ = PV_B, 12
        if OPT["dil"]:
            cx = mk("qkv", **CFG["qkv"]); cx.pstride = 128; cx.bcol = 384
            vb, sr_ = 16, 20
            b_setup(a, cx, vb, sr_, False)
        a(f"s_mul_i32 s33, s24, {64*cq.ldb}")
        for i in range(cq.NBW):
            if OPT["dil"]:
                a(f"s_add_u32 m0, s35, {XB0 + i*1024}")
                a(f"buffer_load_dwordx4 v{vb+i}, s[{sr_}:{sr_+3}], s33 offen lds")
                continue
            if i % 4 == 0: a(f"s_add_u32 m0, s35, {XB0 + i*1024}")
            a(f"buffer_load_dwordx4 v{vb+i}, s[{sr_}:{sr_+3}], s33 offen offset:{(i&3)*1024} lds")
        return cq.NBW
    def q_colsum(part=None):
        if part in (None, 0):
            a(f"""
            v_mov_b32 v2, {ST_TAG}
            ds_read_b64 v[{PV_RD}:{PV_RD+1}], v2
            s_waitcnt lgkmcnt(0)
            v_readfirstlane_b32 s{TAG}, v{PV_RD}
            v_readfirstlane_b32 s{TAG+1}, v{PV_RD+1}
            """)
        a("s_setprio 3")
        colsum_tile(a, cq, XB0, "s38", 0, PV_RD, part)
        a("s_setprio 0")
        return 1 if part in (None, 3) else 0
    def hi(f):
        def g():
            a("s_setprio 3"); r = f(); a("s_setprio 0"); return r
        return g
    side = {-1: [q_extra], max(OPT['early0'], 1): [q_colsum], 12: [lambda: gather_cs_setup(a, cq), lambda: gather_rs_setup(a, cq)],
            14: [lambda: gather_rs(a, cq), lambda: gather_cs(a, 0, 16)]}
    side[15] = [lambda: a("s_waitcnt vmcnt(0)"), hi(lambda: gather_finish_cs(a, cq)), hi(lambda: gather_finish_rs(a, cq))]
    if OPT["two"] & 1:
        q2 = OPT["q2"]
        side[12] = [lambda: gather_rs_setup(a, cq)]
        side[q2] = [hi(lambda: l2_issue(a, cq))]
        side[q2 + 2] = [hi(lambda: l2_finish(a, cq))]
        side[14] = [lambda: gather_rs(a, cq), lambda: fin_issue(a, cq)]
        side[15] = [lambda: a("s_waitcnt vmcnt(0)"), hi(lambda: fin_finish(a, cq)), hi(lambda: gather_finish_rs(a, cq))]
    if OPT["cspl"]:
        cb = max(OPT["early0"], 1)
        del side[cb]
        for k in range(4): side.setdefault(cb + k, []).append(lambda k=k: q_colsum(k))
    if OPT["help"]:
        def help_setup():
            srd_off(a, 44, P_WQKV, 0, 6 * MB)
            a(f"""
            s_and_b32 s30, s25, 3
            s_lshl_b32 s31, s30, 11
            s_or_b32 s70, s25, 3
            s_lshl_b32 s70, s70, 7
            s_add_u32 s31, s31, s70
            v_mov_b32 v2, 6144
            v_mul_lo_u32 v23, v1, v2
            v_add_u32 v23, s31, v23
            s_and_b32 s70, s24, 7
            s_cmp_eq_u32 s30, 3
            s_cselect_b32 s70, 99, s70
            s_and_b32 s30, s25, 4
            s_cselect_b32 s70, 99, s70
            s_cmp_lg_u32 s38, 0
            s_cselect_b32 s70, 99, s70
            """)
            return 0
        def helper(k):
            def f():
                sk = a.label("skip_help")
                a(f"""
                s_cmp_lg_u32 s70, {k & 7}
                s_cbranch_scc1 {sk}
                s_mov_b32 s30, {(k + OPT['help']) * 64 * 6144}
                buffer_load_dword v253, v23, s[44:47], s30 offen
                {sk}:
                """)
                return 0
            return f
        side[-1].append(help_setup)
        for k in range(0, 16 - OPT["help"]): side.setdefault(k, []).insert(0, helper(k))
    if OPT["sk"] and OPT["sent"] == 2:
        def prefill(k):
            def f():
                if k == 0:
                    srd_off(a, 16, P_WS, XP_OFF, 8 * MB)
                    a(f"""
                    s_lshl_b32 s62, s24, 19
                    s_lshl_b32 s31, s38, 13
                    s_add_u32 s62, s62, s31
                    s_lshl_b32 s31, s25, 15
                    s_add_u32 s62, s62, s31
                    v_lshlrev_b32 v27, 4, v1
                    """)
                    for i in range(4): a(f"v_mov_b32 v{28+i}, -1")
                a(f"buffer_store_dwordx4 v[28:31], v27, s[16:19], s62 offen offset:{k*1024} sc0 sc1")
                return 1
            return f
        for k in range(4): side.setdefault(5 + (k // OPT["pfg"]), []).append(prefill(k))
    if OPT["tlb"]:
        def tlbwarm():
            G = OPT["tlb"] * MB // 2 if OPT["tlb"] > 1 else 2 * MB
            a(f"s_mul_i32 s30, s38, {12*MB}")
            a(f"s_add_u32 s30, s30, {8*MB}")
            a(f"s_add_u32 s98, s{P_WS}, s30")
            a(f"s_addc_u32 s99, s{P_WS+1}, 0")
            for k in range(6):
                a(f"s_load_dword s100, s[98:99], 0")
                a(f"s_add_u32 s98, s98, {2*MB}")
                a(f"s_addc_u32 s99, s99, 0")
            a(f"s_lshl_b32 s30, s38, 21")
            for ptr, npg in ((P_W1, 4), (P_OUT, 2), (P_WO, 1)):
                a(f"s_min_u32 s31, s30, {(npg-1)*2*MB}")
                a(f"s_add_u32 s98, s{ptr}, s31")
                a(f"s_addc_u32 s99, s{ptr+1}, 0")
                a(f"s_load_dword s101, s[98:99], 0")
            return 0
        side.setdefault(5, []).insert(0, tlbwarm)
    spf = [0]
    def sprefetch(k):
        def f():
            for _ in range(k):
                if spf[0] < 112:
                    a(f"s_load_dword s{100 + (spf[0] & 1)}, s[68:69], {spf[0]*64}")
                    spf[0] += 1
            return 0
        return f
    def spf_setup():
        a(f"""
        s_lshl_b32 s30, s2, 2
        s_add_u32 s30, s30, s38
        s_mul_i32 s30, s30, 7168
        s_add_u32 s68, s{P_W2}, s30
        s_addc_u32 s69, s{P_W2+1}, 0
        """)
        return 0
    if OPT["pf"] == 3:
        side.setdefault(5, []).append(spf_setup)
        for k in range(5, 13): side.setdefault(k, []).append(sprefetch(6))
    gemm_producer(a, c, False, None, side)
    if OPT["xst"]:
        for i in range(4): a(f"v_mov_b32 v{28+i}, v{PV_A+i}")
        a("""
        s_mov_b32 s48, s8
        s_mov_b32 s49, s9
        s_mov_b32 s50, s10
        s_mov_b32 s51, 0x20000
        """)
    a(f"""
    s_sub_u32 s30, s24, 1
    s_max_i32 s30, s30, 0
    s_sub_u32 s31, s24, 2
    s_max_i32 s31, s31, 0
    s_sub_u32 s30, s30, s31
    s_lshl_b32 s30, s30, 11
    v_bfe_u32 v2, v1, 2, 1
    v_mul_lo_u32 v2, v2, s30
    v_and_b32 v3, 3, v1
    v_lshl_add_u32 v2, v3, 3, v2
    s_lshl_b32 s31, s31, 11
    s_lshl_b32 s30, s25, 7
    s_add_u32 s33, s30, s31
    s_add_u32 s33, s33, 65536
    """)
    a(f"""
    s_lshr_b32 s34, s38, 1
    s_and_b32 s35, s38, 1
    s_lshl_b32 s30, s25, 1
    s_add_u32 s30, s30, s34
    s_lshl_b32 s30, s30, 17
    s_lshl_b32 s31, s35, 22
    s_add_u32 s30, s30, s31
    s_add_u32 s30, s30, {K_OFF}
    """)
    srd_off(a, 8, P_WS, "s30", 131072)
    a(f"""
    s_lshl_b32 s30, s24, 13
    s_sub_u32 s30, s30, 16384
    v_lshlrev_b32 v4, 4, v1
    v_add_u32 v4, s30, v4
    s_mul_i32 s34, s34, {HEADW}
    s_mul_i32 s35, s35, 24576
    s_add_u32 s34, s34, s35
    """)
    a("v_mov_b32 v5, v2")
    b_setup(a, C["w1"], 16, 20)
    wait_flags(a, 5, "s33", False, PV_RD)
    stamp(a, 5)
    for q in range(4):
        a(f"s_add_u32 m0, s34, {q*4096}")
        for i in range(4):
            a(f"buffer_load_dwordx4 v4, s[8:11], 0 offen offset:{i*1024}{NBF[OPT['nbf']]} lds")
        if q < 3: a("v_add_u32 v4, 0x1000, v4")
    a("s_mov_b32 s98, s24\ns_mov_b32 s99, s25")
    c = C["wo"]
    prod_setup(a, c)
    a("s_mov_b32 s24, s98\ns_mov_b32 s25, s99")
    if OPT["xt"]:
        xtouch_setup(a, P_WO, 2 * MB, 16, 25)
        a("s_lshr_b32 s37, s2, 3\ns_lshl_b32 s37, s37, 16")
    a("s_waitcnt vmcnt(0)")
    stamp(a, 6)
    a("s_barrier")
    if OPT["xst"]:
        a(f"s_add_u32 m0, s34, {XST}")
        a("s_lshl_b32 s30, s25, 7")
        for i in range(4):
            a(f"buffer_load_dwordx4 v{28+i}, s[48:51], s30 offen offset:{i*1024} lds")
    pre_B(a, c, 0, 4 if OPT["deepb"] else None)
    if OPT["xt"]:
        a("buffer_load_dword v253, v25, s[16:19], s37 offen")
    elif OPT["pf"]: touch(a, P_WO, 2 * MB, 16)
    if OPT["deepb"]: a("v_mov_b32 v250, v8\nv_mov_b32 v251, v9")
    a("s_branch L_attn")
    a("L_prod2:")
    c = C["wo"]
    prod_setup(a, c)
    a(f"s_add_u32 s29, s29, {c.SB*64*c.ldb}")
    a(f"s_and_b32 s29, s29, {16*64*c.ldb - 1}")
    gate_setup(a, 1, True)
    if OPT["deepb"]: a("s_barrier")
    gemm_producer(a, c, True, "wide")
    c = C["w1"]; c1 = c
    prod_setup(a, c)
    if OPT["wobar"] == 1: a("s_barrier")
    pre_B(a, c, 0, 1 if OPT["wobar"] >= 2 else None)
    gather_cs_setup(a, c)
    gather_rs_setup(a, c)
    if C["w2"].early: w2_early_setup(a, C["w2"])
    if OPT["wobar"] >= 2:
        a("s_barrier")
        pre_B(a, c, 1, 3)
    gate_setup(a, 2, False)
    def w2hook(k):
        def f():
            sk = a.label("skip_pf")
            a(f"""
            s_lshr_b32 s30, s2, 3
            s_and_b32 s30, s30, 7
            s_cmp_lg_u32 s30, {k}
            s_cbranch_scc1 {sk}
            """)
            touch(a, P_W2, 7 * MB, 44)
            a(f"{sk}:")
            return 0
        return f
    side = {}
    if OPT["pf"] == 2:
        for k in range(8): side.setdefault(3 + k, []).append(w2hook(k))
    if OPT["pf"] == 3:
        spf_setup()
        for k in range(0, 13): side.setdefault(k, []).append(sprefetch(5))
    def rs_add(p0, p1):
        def f():
            for p in range(max(p0, 1), p1): a(f"v_add_f32 v{G_RS}, v{G_RS}, v{G_RS+p}")
        return f
    side.setdefault(8, []).append(hi(rs_add(0, 16)))
    side.setdefault(13, []).append(hi(rs_add(16, 26)))
    side[14] = [lambda: gather_cs(a, 0, 16)]
    side[15] = [hi(rs_add(26, 32)), lambda: a("s_waitcnt vmcnt(0)"), hi(lambda: gather_finish_cs(a, c1)), hi(lambda: gather_finish_rs(a, c1))]
    if C["w2"].early:
        c2 = C["w2"]
        side[14].append(lambda: pre_B(a, c2, 0, 1))
        side[15] = [lambda: pre_B(a, c2, 1, 4), hi(rs_add(26, 32)), lambda: a("s_waitcnt vmcnt(16)"), hi(lambda: gather_finish_cs(a, c1)), hi(lambda: gather_finish_rs(a, c1))]
    if OPT["two"] & 2:
        side.setdefault(2, []).append(hi(lambda: l2_issue(a, c1)))
        side.setdefault(4, []).append(hi(lambda: l2_finish(a, c1)))
        side[14] = [lambda: fin_issue(a, c1), lambda: pre_B(a, c2, 0, 1)]
        side[15] = [lambda: pre_B(a, c2, 1, 4), hi(rs_add(26, 32)), lambda: a("s_waitcnt vmcnt(16)"), hi(lambda: fin_finish(a, c1)), hi(lambda: gather_finish_rs(a, c1))]
    if OPT["w1t"]:
        side[13].append(lambda: fin_issue(a, c1))
        side[14] = [lambda: pre_B(a, c2, 0, 1), hi(rs_add(26, 30))]
        side[15] = [hi(rs_add(30, 32)), hi(lambda: fin_finish(a, c1)), hi(lambda: gather_finish_rs(a, c1))]
    gemm_producer(a, c, True, "narrow", side, lambda st: gather_rs(a, c1, 2 * st, 2 * st + 2))
    c = C["w2"]
    c.rounds = [(16, OPT['prepoll'], 14), (OPT['prepoll'], 24, 14), (24, 40, 7), (40, 56, 7)]; c.prepoll_at = OPT['prepoll']; c.gate_all_at = 24; c.seamB = 3
    if c.sk:
        c.rounds = [(8, 10, 14), (10, 12, 14), (12, 20, 7), (20, 28, 7)]; c.prepoll_at = 10; c.gate_all_at = 12
    prod_setup(a, c)
    if not c.early: pre_B(a, c)
    side = {}
    c.round_hook = {}
    if OPT["xt"] and not c.sk:
        xtouch_setup(a, P_W2, 7 * MB, 44, 23)
        w2_xtouch(a, 0); w2_xtouch(a, 3)
        side = {4: [lambda: w2_xtouch(a, 1)]}
        c.round_hook = {24: lambda: w2_xtouch(a, 2)}
    if not OPT["w1t"]:
        a("s_barrier")
        a("s_barrier")
    if OPT["own"]:
        w2_producer(a, c)
    else:
        gate_setup(a, 0, False)
        gemm_producer(a, c, True, "narrow", side, None, 8 if c.sk else 16)
    stamp_flush(a)
    a("L_end:")
    a("s_endpgm")
    a("L_code_end:")
    if OPT["lay"]:
        L = a.lines
        i_br = next(i for i, x in enumerate(L) if x.strip() == "s_cbranch_scc1 L_prod")
        i0 = L.index("L_prod:")
        i1 = next(i for i, x in enumerate(L) if x.strip() == "s_branch L_attn")
        blk = L[i0:i1 + 1]
        a.lines = L[:i_br] + ["    s_cbranch_scc0 L_cons"] + blk + ["L_cons:"] + L[i_br + 1:i0] + L[i1 + 1:]
    body, nins = hazard.fix(a.lines)
    hdr = []
    if header_src:
        for ln in open(header_src):
            if ln.startswith(";") and "@launch" not in ln:
                hdr.append(ln.rstrip("\n"))
            elif not ln.startswith(";"):
                break
    hdr.append(f"; @launch grid=(256,1,1) block=(512,1,1) lds=163840")
    hdr.append('.amdgcn_target "amdgcn-amd-amdhsa--gfx950"')
    hdr.append(".text")
    hdr.extend(DESC.strip("\n").split("\n"))
    return "\n".join(hdr) + "\n" + "\n".join(body) + "\n" + kernel_desc(KNAME, 256, 102), nins

if __name__ == "__main__":
    if "--diag" in sys.argv:
        DIAG = True; sys.argv.remove("--diag")
    for arg in list(sys.argv[1:]):
        if "=" in arg:
            k_, v_ = arg.split("=", 1)
            if "." in k_:
                kk, f_ = k_.split(".")
                for kind_ in (CFG.keys() if kk == "all" else [kk]): CFG[kind_][f_] = int(v_)
            else: OPT[k_] = int(v_)
            sys.argv.remove(arg)
    out = sys.argv[1] if len(sys.argv) > 1 else "p1.s"
    txt, nins = build(header_src="sequential_preLN__sliding_block__dense_activation_silu__prompt.s.ref")
    open(out, "w").write(txt)
    print("wrote", out, len(txt), "bytes; nop states inserted:", nins)
```
